```python
import torch

def _softmax(x, axis=-1):
    return torch.softmax(x, dim=axis)
def _gelu(x):
    return torch.nn.functional.gelu(x, approximate="tanh")
def _silu(x):
    return torch.nn.functional.silu(x)
def _sigmoid(x):
    return torch.sigmoid(x)
def _layernorm(x, axis=-1, eps=1e-5):
    m = x.mean(dim=axis, keepdim=True)
    v = x.var(dim=axis, keepdim=True, unbiased=False)
    return (x - m) / torch.sqrt(v + eps)
def _scatter_add(tgt, idx, src, axis=0):
    return tgt.clone().index_add_(axis, idx, src)
def _segment_sum(src, seg, n):
    out = torch.zeros((n,) + src.shape[1:], dtype=src.dtype)
    return out.index_add_(0, seg, src)
def _pad(x, pw):
    flat = tuple(v for pair in reversed(pw) for v in pair)
    return torch.nn.functional.pad(x, flat)

kernel_name = 'concat_heads__softmax_full_mha__ssm_conv_h3__prompt'

def setup_inputs():

    _w = (lambda a: (lambda t: t.to(torch.bfloat16) if t.is_floating_point() else t)(torch.as_tensor(a)))
    def _A_setup():
        B, S, D = 1, 2048, 576
        return {
            "x": _w((lambda *s: torch.randn(*s, dtype=torch.bfloat16) * 0.2)(B, S, D)),
            "wqkv": _w((lambda *s: torch.randn(*s, dtype=torch.bfloat16) * 0.2)(D, 3 * D)),
            "wo": _w((lambda *s: torch.randn(*s, dtype=torch.bfloat16) * 0.05)(D, D)),
        }
    _A_in = _A_setup()

    def _B_setup():
        B, S, D = 1, 2048, 576
        ks = 4
        return {
            "q": _w((lambda *s: torch.randn(*s, dtype=torch.bfloat16) * 0.05)(B, S, D)),
            "k": _w((lambda *s: torch.randn(*s, dtype=torch.bfloat16) * 0.4)(B, S, D)),
            "v": _w((lambda *s: torch.randn(*s, dtype=torch.bfloat16) * 0.4)(B, S, D)),
            "shift_k": _w((lambda *s: torch.randn(*s, dtype=torch.bfloat16) * 0.4)(D, ks) * 0.5),
            "ssm_k": _w((lambda *s: torch.randn(*s, dtype=torch.bfloat16) * 1.6)(D, S) * (1.0 / S ** 0.5)),
            "ssm_D": _w((lambda *s: torch.randn(*s, dtype=torch.bfloat16) * 0.4)(D)),
        }
    _B_in = _B_setup()

    return {
        "A_x": _A_in["x"],
        "A_wqkv": _A_in["wqkv"],
        "A_wo": _A_in["wo"],
        "B_q": _B_in["q"],
        "B_k": _B_in["k"],
        "B_v": _B_in["v"],
        "B_shift_k": _B_in["shift_k"],
        "B_ssm_k": _B_in["ssm_k"],
        "B_ssm_D": _B_in["ssm_D"],
    }

def reference(A_x, A_wqkv, A_wo, B_q, B_k, B_v, B_shift_k, B_ssm_k, B_ssm_D):
    def _A_ref(x, wqkv, wo):
        B, S, D = x.shape
        H = 32; Dh = D // H
        qkv = (lambda x, *d: x.permute(*d))((x @ wqkv).reshape(B, S, 3, H, Dh), 2, 0, 3, 1, 4)
        q, k, v = qkv[0], qkv[1], qkv[2]
        scale = Dh ** -0.5
        scores = torch.einsum("bhqd,bhkd->bhqk", q, k) * scale
        p = _softmax(scores, axis=-1)
        o = torch.einsum("bhqk,bhkd->bhqd", p, v)
        return (lambda x, *d: x.permute(*d))(o, 0, 2, 1, 3).reshape(B, S, D) @ wo

    def _B_ref(q, k, v, shift_k, ssm_k, ssm_D):
        B, S, D = q.shape
        ks = shift_k.shape[-1]
        k_pad = _pad(k, ((0, 0), (ks - 1, 0), (0, 0)))
        k_shift = torch.zeros_like(k)
        for t in range(ks):
            k_shift = k_shift + k_pad[:, t:t + S, :] * shift_k[:, ks - 1 - t][None, None, :]
        kv = k_shift * v
        L = 2 * S
        kv_pad = _pad(kv, ((0, 0), (0, S), (0, 0)))
        kf_pad = _pad(ssm_k, ((0, 0), (0, S)))
        kv_f = (lambda x, axes=(-2,-1): torch.fft.rfft2(x.float(), dim=axes))(kv_pad[:, None, :, :], axes=(1, 2))
        kf_f = (lambda x, axes=(-2,-1): torch.fft.rfft2(x.float(), dim=axes))(kf_pad[:, None, :], axes=(1, 2))
        kf_f = (lambda x, *d: x.permute(*d))(kf_f, 1, 2, 0)
        y_f = kv_f * kf_f[None, :, :, :]
        y = (lambda x, s, axes=(-2,-1): torch.fft.irfft2(x, s=s, dim=axes).to(torch.bfloat16))(y_f, (1, L), axes=(1, 2))[:, 0, :S, :]
        y = y + kv * ssm_D[None, None, :]
        return q * y

    a = _A_ref(A_x, A_wqkv, A_wo)
    b = _B_ref(B_q, B_k, B_v, B_shift_k, B_ssm_k, B_ssm_D)
    return torch.concatenate([a, b], axis=-1)
```

```python
class Asm:
    def __init__(self):
        self.l = []
    def __call__(self, s):
        for line in s.strip("\n").split("\n"):
            line = line.strip()
            if not line: continue
            if line.endswith(":") or line.startswith("."):
                self.l.append(line)
            else:
                self.l.append("    " + line)
    def label(self, n): self.l.append(n + ":")
    def text(self): return ("\n".join(self.l) + "\n").replace(" lds sc1", " sc1 lds")

def V(b, n=1): return f"v{b}" if n == 1 else f"v[{b}:{b+n-1}]"
def S(b, n=1): return f"s{b}" if n == 1 else f"s[{b}:{b+n-1}]"

def kernel_head(name):
    return f".globl {name}\n.p2align 8\n.type {name},@function\n{name}:\n"

def kernel_desc(name, vgpr, sgpr=96):
    acc = (vgpr + 3) // 4 * 4
    return f""".p2align 6
.amdhsa_kernel {name}
  .amdhsa_next_free_vgpr {vgpr}
  .amdhsa_next_free_sgpr {sgpr}
  .amdhsa_accum_offset {acc}
  .amdhsa_group_segment_fixed_size 0
  .amdhsa_kernarg_size 96
  .amdhsa_user_sgpr_count 2
  .amdhsa_user_sgpr_kernarg_segment_ptr 1
  .amdhsa_system_sgpr_workgroup_id_x 1
.end_amdhsa_kernel
"""
```

```python
from asmlib import *
from layout import *
from k2 import stamp, stamp_out
import struct, math
CS_BITS = struct.unpack("<I", struct.pack("<f", math.log2(math.e)/math.sqrt(18)))[0]
NVGPR = 168
LDS_BYTES = 163840
XB, WB = 2048*1152, 576*3456

vT0, vT1, vT2, vT3, vTok, vHf = 1, 2, 3, 4, 5, 6
vXb, vWb = 8, 12
vX, vW = 14, 18
vEA = 20
FR = 36
ACC = 68
PK = 132

def XF(b, i): return FR + 16*b + 4*i
def WF(b, j): return FR + 16*b + 8 + 4*j
def acc(i, j): return ACC + 16*(2*i + j)

def reads(b, s):
    r = [f"ds_read_b128 {V(XF(b,0),4)}, v{vX+s}",
         f"ds_read_b64_tr_b16 {V(WF(b,0),2)}, v{vW} offset:{16384 + 4096*s}",
         f"ds_read_b64_tr_b16 {V(WF(b,0)+2,2)}, v{vW} offset:{16384 + 4096*s + 1024}",
         f"ds_read_b64_tr_b16 {V(WF(b,1),2)}, v{vW+1} offset:{16384 + 4096*s}",
         f"ds_read_b64_tr_b16 {V(WF(b,1)+2,2)}, v{vW+1} offset:{16384 + 4096*s + 1024}",
         f"ds_read_b128 {V(XF(b,1),4)}, v{vX+s} offset:4096"]
    return r

def mf(b, i, j, vtype):
    a, bb = (XF(b,i), WF(b,j)) if vtype else (WF(b,j), XF(b,i))
    return f"v_mfma_f32_32x32x16_bf16 {V(acc(i,j),16)}, {V(a,4)}, {V(bb,4)}, {V(acc(i,j),16)}"

def setaddr(A):
    for s in range(4): A(f"v_add_u32 v{vX+s}, s30, v{vXb+s}")
    for j in range(2): A(f"v_add_u32 v{vW+j}, s30, v{vWb+j}")

def main_loop(A, name, vtype):
    A(f"""
    s_mov_b32 s31, 9
    s_barrier
    """)
    for r in reads(0, 0): A(r)
    A(f".p2align 6\n{name}:")
    order = [(0,0),(0,1),(1,0),(1,1)]
    for s in range(4):
        b = s & 1
        A("s_waitcnt lgkmcnt(0)")
        A(mf(b, 0, 0, vtype))
        if s < 3:
            rd = reads(b ^ 1, s+1)
            for r in rd[:3]: A(r)
            A(mf(b, 0, 1, vtype))
            for r in rd[3:]: A(r)
            A(mf(b, 1, 0, vtype)); A(mf(b, 1, 1, vtype))
        else:
            A(f"""
            s_add_u32 s30, s30, 32768
            s_cmp_eq_u32 s30, {LDS_BYTES}
            s_cselect_b32 s30, 0, s30
            s_barrier
            """)
            setaddr(A)
            A(mf(b, 0, 1, vtype))
            rd = reads(0, 0)
            for r in rd[:3]: A(r)
            A(mf(b, 1, 0, vtype))
            for r in rd[3:]: A(r)
            A(mf(b, 1, 1, vtype))
    A(f"""
    s_sub_u32 s31, s31, 1
    s_cmp_lg_u32 s31, 0
    s_cbranch_scc1 {name}
    """)

def gen_gemm(A, name, dbg):
    A(f"""
    s_and_b32 s17, s2, 7               ; xcd
    s_lshr_b32 s18, s2, 3              ; idx 0..27
    s_and_b32 s19, s17, 3
    s_lshl_b32 s19, s19, 2
    s_and_b32 s20, s18, 3
    s_add_u32 s19, s19, s20            ; mb
    s_lshr_b32 s21, s17, 2
    s_mul_i32 s21, s21, 7
    s_lshr_b32 s22, s18, 2
    s_add_u32 s21, s21, s22            ; ng
    s_cmp_lt_u32 s16, 4
    s_cbranch_scc1 {name}_compute
    s_and_b32 s23, s16, 3              ; u
    s_mul_i32 s24, s20, 5
    s_lshr_b32 s24, s24, 1
    s_add_u32 s24, s24, s22
    s_cmp_ge_u32 s24, 9
    s_cselect_b32 s25, 9, 0
    s_sub_u32 s24, s24, s25            ; cc
    s_lshl_b32 s25, s19, 7
    s_lshl_b32 s26, s23, 5
    s_add_u32 s25, s25, s26
    s_mul_i32 s25, s25, 1152
    s_lshl_b32 s26, s24, 7
    s_add_u32 s40, s25, s26            ; sX
    s_lshl_b32 s25, s24, 2
    s_add_u32 s25, s25, s23
    s_mul_i32 s25, s25, {16*3456}
    s_lshl_b32 s26, s21, 8
    s_add_u32 s41, s25, s26            ; sW
    s_lshl_b32 s42, s23, 12
    v_lshrrev_b32 v{vT0}, 3, v0
    v_mul_u32_u24 v{vT0}, 1152, v{vT0}
    v_lshrrev_b32 v{vT1}, 4, v0
    v_and_b32 v{vT2}, 7, v0
    v_xor_b32 v{vT2}, v{vT2}, v{vT1}
    v_lshl_add_u32 v8, v{vT2}, 4, v{vT0}
    v_xor_b32 v9, 64, v8
    v_xor_b32 v{vT2}, 4, v{vT2}
    v_lshl_add_u32 v9, v{vT2}, 4, v{vT0}
    v_mul_u32_u24 v{vT0}, 3456, v{vT1}
    v_and_b32 v{vT2}, 15, v0
    v_lshlrev_b32 v{vT1}, 2, v{vT1}
    v_xor_b32 v{vT2}, v{vT2}, v{vT1}
    v_lshl_add_u32 v10, v{vT2}, 4, v{vT0}      ; W addr
    s_mov_b32 s31, 0
    s_waitcnt lgkmcnt(0)
    s_mov_b32 s8, s4
    s_mov_b32 s9, s5
    s_mov_b32 s10, {XB}
    s_mov_b32 s11, 0x20000
    s_mov_b32 s44, s6
    s_mov_b32 s45, s7
    s_mov_b32 s46, {WB}
    s_mov_b32 s47, 0x20000
{name}_ld:
    s_cmp_lt_u32 s31, 3
    s_cbranch_scc1 {name}_ld_go
    s_cmp_eq_u32 s31, 4
    s_cbranch_scc1 {name}_ld_go
    s_cmp_gt_u32 s31, 4
    s_cbranch_scc1 {name}_ld_w24
    s_waitcnt vmcnt(16)
{name}_ld_w24:
    s_waitcnt vmcnt(24)
    s_barrier
{name}_ld_go:
    s_mov_b32 m0, s42
    s_add_u32 s26, s40, 8192
    buffer_load_dwordx4 v8, s[8:11], s40 offen lds
    s_add_u32 s27, s40, 16384
    buffer_load_dwordx4 v9, s[8:11], s26 offen offset:1024 lds
    s_add_u32 s26, s40, 24576
    buffer_load_dwordx4 v8, s[8:11], s27 offen offset:2048 lds
    s_add_u32 s28, s42, 16384
    buffer_load_dwordx4 v9, s[8:11], s26 offen offset:3072 lds
    s_mov_b32 m0, s28
    s_add_u32 s26, s41, {13824-1024}
    buffer_load_dwordx4 v10, s[44:47], s41 offen lds
    s_add_u32 s27, s41, {2*(13824-1024)}
    buffer_load_dwordx4 v10, s[44:47], s26 offen offset:1024 lds
    s_add_u32 s26, s41, {3*(13824-1024)}
    buffer_load_dwordx4 v10, s[44:47], s27 offen offset:2048 lds
    s_add_u32 s40, s40, 128
    buffer_load_dwordx4 v10, s[44:47], s26 offen offset:3072 lds
    s_add_u32 s41, s41, {64*3456}
    s_add_u32 s24, s24, 1
    s_cmp_eq_u32 s24, 9
    s_cbranch_scc0 {name}_ld_nw
    s_mov_b32 s24, 0
    s_sub_u32 s40, s40, 1152
    s_sub_u32 s41, s41, {WB}
{name}_ld_nw:
    s_add_u32 s42, s42, 32768
    s_cmp_ge_u32 s42, {LDS_BYTES}
    s_cselect_b32 s26, {LDS_BYTES}, 0
    s_sub_u32 s42, s42, s26
    s_add_u32 s31, s31, 1
    s_cmp_lt_u32 s31, 9
    s_cbranch_scc1 {name}_ld
    s_waitcnt vmcnt(24)
    s_barrier
    s_waitcnt vmcnt(16)
    s_barrier
    s_waitcnt vmcnt(8)
    s_barrier
    s_waitcnt vmcnt(0)
    s_barrier
    s_endpgm
{name}_compute:
    s_and_b32 s23, s16, 1              ; wm
    s_lshr_b32 s24, s16, 1             ; wn
    v_and_b32 v{vTok}, 31, v0
    v_lshrrev_b32 v{vHf}, 5, v0
    s_lshl_b32 s25, s23, 13            ; 64*wm*128
    v_lshlrev_b32 v{vT0}, 7, v{vTok}
    v_add_u32 v{vT0}, s25, v{vT0}
    v_bfe_u32 v{vT1}, v0, 1, 3         ; z
    v_xor_b32 v{vT1}, v{vT1}, v{vHf}
    """)
    for s in range(4):
        A(f"v_xor_b32 v{vT2}, {2*s}, v{vT1}\nv_lshl_add_u32 v{vXb+s}, v{vT2}, 4, v{vT0}")
    A(f"""
    v_bfe_u32 v{vT0}, v0, 2, 2         ; r
    v_lshl_add_u32 v{vT1}, v{vHf}, 3, v{vT0}
    v_lshlrev_b32 v{vT1}, 8, v{vT1}    ; (8hf + r)*256
    v_bfe_u32 v{vT2}, v0, 4, 1
    v_lshl_add_u32 v{vT1}, v{vT2}, 5, v{vT1}
    v_and_b32 v{vT2}, 3, v0
    v_lshl_add_u32 v{vT1}, v{vT2}, 3, v{vT1}
    s_lshl_b32 s25, s24, 1
    v_xor_b32 v{vT2}, s25, v{vT0}
    v_lshl_add_u32 v{vWb}, v{vT2}, 6, v{vT1}
    v_xor_b32 v{vT2}, 1, v{vT2}
    v_lshl_add_u32 v{vWb+1}, v{vT2}, 6, v{vT1}
    s_mov_b32 s30, 0
    """)
    setaddr(A)
    for i in range(64): A(f"v_mov_b32 v{ACC+i}, 0")
    A(f"""
    s_lshl_b32 s26, s19, 2
    s_lshl_b32 s27, s23, 1
    s_add_u32 s26, s26, s27            ; T0
    s_waitcnt lgkmcnt(0)
    s_mov_b32 s12, s48
    s_mov_b32 s13, s49
    s_mov_b32 s14, {WS_END}
    s_mov_b32 s15, 0x20000
    s_cmp_ge_u32 s21, 9
    s_cbranch_scc1 {name}_vtype
    s_lshl_b32 s27, s21, 5
    s_lshl_b32 s28, s24, 4
    s_add_u32 s27, s27, s28
    v_add_u32 v{vT0}, s27, v{vHf}      ; G0
    s_lshl_b32 s28, s26, 10            ; T0*1024
    s_lshl_b32 s29, s26, 8
    s_add_u32 s29, s29, {LEFT}
    v_lshlrev_b32 v{vTok}, 3, v{vTok}
    v_add_u32 v{PK}, s29, v{vTok}
    v_add_u32 v{PK+1}, s28, v{vTok}
    v_add_u32 v{PK+2}, {MB-1280}, v{PK+1}
    v_mov_b32 v{PK+3}, 256
    v_mov_b32 v{PK+4}, 1024
    s_mov_b32 s32, {PAIR}
    """)
    for jg in range(8):
        A(f"""
        v_add_u32 v{vT1}, {8*(jg>>2) + 2*(jg&3)}, v{vT0}
        v_mul_u32_u24 v{vT2}, 7282, v{vT1}
        v_lshrrev_b32 v{vT2}, 16, v{vT2}           ; m
        v_mul_u32_u24 v{vT3}, 9, v{vT2}
        v_sub_u32 v{vT1}, v{vT1}, v{vT3}           ; g9
        v_cmp_lt_u32 vcc, 4, v{vT1}
        v_cmp_eq_u32 s[34:35], 4, v{vT1}
        v_mul_u32_u24 v{vT2}, s32, v{vT2}
        v_cndmask_b32 v{vT3}, v{PK+1}, v{PK+2}, vcc
        v_lshl_add_u32 v{vT3}, v{vT1}, 8, v{vT3}
        v_cndmask_b32 v{vT3}, v{vT3}, v{PK}, s[34:35]
        v_cndmask_b32 v{vT1}, v{PK+4}, v{PK+3}, s[34:35]
        v_add_u32 v{vEA+jg}, v{vT2}, v{vT3}
        v_add_u32 v{vEA+8+jg}, v{vEA+jg}, v{vT1}
        """)
    stamp(A, 1, dbg)
    main_loop(A, f"{name}_qk", False)
    stamp(A, 2, dbg)
    A(f"""
    s_lshl_b32 s27, s21, 2
    s_lshl_b32 s28, s24, 1
    s_add_u32 s27, s27, s28
    s_cmp_lt_u32 s27, 18
    s_cselect_b32 s28, {CS_BITS}, 1.0
    s_nop 7
    """)
    n = 0
    for i in range(2):
        for j in range(2):
            for g in range(4):
                a = acc(i, j) + 4*g
                p = PK + 2*(n % 8); n += 1
                for e in range(4): A(f"v_mul_f32 v{a+e}, s28, v{a+e}")
                A(f"v_cvt_pk_bf16_f32 v{p}, v{a}, v{a+1}\nv_cvt_pk_bf16_f32 v{p+1}, v{a+2}, v{a+3}")
                A(f"buffer_store_dwordx2 {V(p,2)}, v{vEA+8*i+4*j+g}, s[12:15], 0 offen")
    A(f"""
    s_branch {name}_done
{name}_vtype:
    s_sub_u32 s27, s21, 9
    s_lshl_b32 s27, s27, 7
    s_lshl_b32 s28, s24, 6
    s_add_u32 s27, s27, s28
    s_mul_i32 s28, s26, {VT}
    s_add_u32 s28, s28, {KV+65536}
    v_mul_u32_u24 v{vT3}, 288, v{vHf}
    v_add_u32 v{vT3}, s28, v{vT3}
    s_mov_b32 s32, {PAIR}
    s_mov_b32 s33, {MB}
    """)
    for j in range(2):
        A(f"""
        v_add_u32 v{vT0}, s27, v{vTok}
        v_add_u32 v{vT0}, {32*j}, v{vT0}           ; vc
        v_mul_u32_u24 v{vT1}, 3641, v{vT0}
        v_lshrrev_b32 v{vT1}, 16, v{vT1}           ; h
        v_mul_u32_u24 v{vT2}, 18, v{vT1}
        v_sub_u32 v{vT0}, v{vT0}, v{vT2}           ; d
        v_lshl_add_u32 v{vT0}, v{vT0}, 4, v{vT3}
        v_lshrrev_b32 v{vT2}, 1, v{vT1}
        v_and_b32 v{vT1}, 1, v{vT1}
        v_mad_u32_u24 v{vT0}, v{vT2}, s32, v{vT0}
        v_mad_u32_u24 v{vEA+j}, v{vT1}, s33, v{vT0}
        """)
    stamp(A, 1, dbg)
    main_loop(A, f"{name}_v", True)
    stamp(A, 2, dbg)
    A(f"""
    s_cmp_ge_u32 s27, 576
    s_cbranch_scc1 {name}_done
    s_nop 7
    """)
    n = 0
    for i in range(2):
        for j in range(2):
            for m in range(2):
                a = acc(i, j) + 8*m
                p = PK + 4*(n % 4); n += 1
                for e in range(4): A(f"v_cvt_pk_bf16_f32 v{p+e}, v{a+2*e}, v{a+2*e+1}")
                A(f"buffer_store_dwordx4 {V(p,4)}, v{vEA+j}, s[12:15], 0 offen offset:{i*VT+m*576}")
    A(f"{name}_done:")
    if dbg: A("s_waitcnt vmcnt(0)")
    stamp(A, 3, dbg)
    stamp_out(A, 4, dbg, base=STAMP+262144)
    A("s_endpgm")

def gen_stage1(A, name, dbg):
    KR, VR, CF, CR = 8, 52, 84, 116
    T0, T1 = 132, 144
    OUT = 116
    A(f"""
    s_sub_u32 s17, s2, 224
    v_and_b32 v{vT0}, 7, v0            ; cc
    v_lshrrev_b32 v{vT1}, 3, v0        ; tg
    s_mov_b32 s18, s16
    v_mul_u32_u24 v{vT2}, {8*1152}, v{vT1}
    v_lshl_add_u32 v{vT2}, v{vT0}, 4, v{vT2}
    s_mul_i32 s19, s17, {64*1152}
    v_add_u32 v{vT2}, s19, v{vT2}
    v_lshlrev_b32 v{vT3}, 6, v{vT0}
    v_lshlrev_b32 v5, 15, v{vT0}                   ; 8cc*4096
    v_lshl_add_u32 v5, v{vT1}, 4, v5
    s_lshl_b32 s19, s17, 7
    s_add_u32 s19, s19, {UT}
    v_add_u32 v5, s19, v5
    s_waitcnt lgkmcnt(0)
    s_mov_b32 s8, s50
    s_mov_b32 s9, s51
    s_mov_b32 s10, {XB}
    s_mov_b32 s11, 0x20000
    s_mov_b32 s44, s52
    s_mov_b32 s45, s53
    s_mov_b32 s46, {XB}
    s_mov_b32 s47, 0x20000
    s_mov_b32 s56, s54
    s_mov_b32 s57, s55
    s_mov_b32 s58, {576*8}
    s_mov_b32 s59, 0x20000
    s_mov_b32 s12, s48
    s_mov_b32 s13, s49
    s_mov_b32 s14, {WS_END}
    s_mov_b32 s15, 0x20000
{name}_task:
    s_lshl_b32 s20, s18, 7
    s_lshl_b32 s21, s18, 9
    s_lshl_b32 s22, s18, 18
    v_add_u32 v6, s20, v{vT2}
    """)
    for i in range(4): A(f"buffer_load_dwordx4 {V(CR+4*i,4)}, v{vT3}, s[56:59], s21 offen offset:{16*i}")
    for n in range(11):
        A(f"v_add_u32 v7, {(n-3)*1152 & 0xffffffff}, v6")
        A(f"buffer_load_dwordx4 {V(KR+4*n,4)}, v7, s[8:11], 0 offen")
        if n >= 3: A(f"buffer_load_dwordx4 {V(VR+4*(n-3),4)}, v7, s[44:47], 0 offen")
    A("s_waitcnt vmcnt(19)")
    for i in range(16):
        A(f"v_lshlrev_b32 v{CF+2*i}, 16, v{CR+i}\nv_and_b32 v{CF+2*i+1}, 0xffff0000, v{CR+i}")
    A("s_waitcnt vmcnt(0)")
    KU = 148
    U = 160
    for c in range(8):
        d, hi = c >> 1, c & 1
        for n in range(11):
            A(f"v_and_b32 v{KU+n}, 0xffff0000, v{KR+4*n+d}" if hi else f"v_lshlrev_b32 v{KU+n}, 16, v{KR+4*n+d}")
        for t in range(8):
            A(f"v_mul_f32 v{U+t}, v{KU+t+3}, v{CF+4*c}")
            for j in range(1, 4): A(f"v_fmac_f32 v{U+t}, v{KU+t+3-j}, v{CF+4*c+j}")
        for t in range(8):
            A(f"v_and_b32 v{KU+t}, 0xffff0000, v{VR+4*t+d}" if hi else f"v_lshlrev_b32 v{KU+t}, 16, v{VR+4*t+d}")
            A(f"v_mul_f32 v{U+t}, v{U+t}, v{KU+t}")
        o = OUT + 4*c
        for t in range(4): A(f"v_cvt_pk_bf16_f32 v{o+t}, v{U+2*t}, v{U+2*t+1}")
        A(f"s_add_u32 s23, s22, {4096*c}")
        A(f"buffer_store_dwordx4 {V(o,4)}, v5, s[12:15], s23 offen")
    A(f"""
    s_add_u32 s18, s18, 8
    s_cmp_eq_u32 s18, 8
    s_cbranch_scc1 {name}_task
    """)
    if dbg:
        A("s_waitcnt vmcnt(0)")
        stamp(A, 1, dbg); stamp(A, 2, dbg); stamp(A, 3, dbg)
        stamp_out(A, 4, dbg, base=STAMP+262144)
    A("s_endpgm")

def gen_k1(name="qkv_kernel", dbg=False):
    A = Asm()
    stamp(A, 0, dbg)
    A(f"""
    s_cmp_ge_u32 s2, 256
    s_cbranch_scc1 {name}_end
    s_load_dwordx4 s[4:7], s[0:1], 0
    s_load_dwordx2 s[48:49], s[0:1], 88
    s_load_dwordx2 s[50:51], s[0:1], 32
    s_load_dwordx4 s[52:55], s[0:1], 40
    v_lshrrev_b32 v{vT0}, 6, v0
    v_and_b32 v0, 63, v0
    v_readfirstlane_b32 s16, v{vT0}
    s_cmp_ge_u32 s2, 224
    s_cbranch_scc1 {name}_s1
    """)
    gen_gemm(A, name, dbg)
    A(f"{name}_s1:")
    gen_stage1(A, name + "_s1", dbg)
    A(f"{name}_end:\ns_endpgm")
    return A.text()
```

```python
from asmlib import *
from layout import *
import os
EXP = os.environ.get('K2EXP','').split(',')

vL8, vKM, vKL, vV, vT0, vT1, vT2, vT3 = 1, 2, 3, 4, 5, 6, 7, 8
vL16, vV0, vVinc = 9, 10, 11
Q1A, Q1B = 12, 16
Q2A, Q2B = 20, 24
NMA, NMB = 28, 44
SA, SB = 60, 76
PA, PB = 92, 100
OA, OB = 108, 124
KB = [140, 144]
KL = 148
VB = [152, 160]
NVGPR = 168
WIN = 65536 + VSZ + 16384
CONST = WIN
XCH = WIN + 5120
FLAG = WIN + 7168
LDS_BYTES = 163840

def m16(d, a, b, c): return f"v_mfma_f32_32x32x16_bf16 {V(d,16)}, {V(a,4)}, {V(b,4)}, {c}"
def m8(d, a, b): return f"v_mfma_f32_32x32x8_bf16 {V(d,16)}, {V(a,2)}, {V(b,2)}, {V(d,16)}"

def phase(A, S_, P, mf, extra):
    for g in range(4):
        A(mf[g])
        for e in extra[g]: A(e)
        for i in range(4): A(f"v_exp_f32 v{S_+4*g+i}, v{S_+4*g+i}")
        for i in range(2): A(f"v_cvt_pk_bf16_f32 v{P+2*g+i}, v{S_+4*g+2*i}, v{S_+4*g+2*i+1}")

def maxtree(A, dst, S_, acc=False):
    if acc:
        for i in range(8): A(f"v_max3_f32 v{dst}, v{S_+2*i}, v{S_+2*i+1}, v{dst}")
    else:
        A(f"v_max3_f32 v{dst}, v{S_}, v{S_+1}, v{S_+2}")
        for i in range(6): A(f"v_max3_f32 v{dst}, v{S_+3+2*i}, v{S_+4+2*i}, v{dst}")
        A(f"v_max_f32 v{dst}, v{S_+15}, v{dst}")

def stamp(A, i, on):
    if on:
        A(f"s_memtime s[{64+4*i}:{65+4*i}]")
        A(f"s_memrealtime s[{66+4*i}:{67+4*i}]")

def stamp_out(A, n, on, srd="s[12:15]", wgw="s16", nw=8, base=None):
    if not on: return
    A(f"""
    s_mov_b64 exec, -1
    s_waitcnt lgkmcnt(0)
    s_mul_i32 s25, s2, {nw}
    s_add_u32 s25, s25, {wgw}
    s_lshl_b32 s25, s25, 7
    s_add_u32 s25, s25, {STAMP if base is None else base}
    v_mov_b32 v1, 0
    """)
    for i in range(n):
        A(f"""
        v_mov_b32 v4, s{64+4*i}
        v_mov_b32 v5, s{65+4*i}
        v_mov_b32 v6, s{66+4*i}
        v_mov_b32 v7, s{67+4*i}
        buffer_store_dwordx4 v[4:7], v1, {srd}, s25 offen offset:{16*i}
        s_nop 1
        """)

def dma_iter(A):
    for r, off, st in ((40, 0, None), (40, 4096, "8192"), (41, 0, None), (41, 4096, "9216"), (42, 0, "s45")):
        if off:
            A(f"s_add_u32 s46, s{r}, {off}\ns_mov_b32 m0, s46\ns_add_u32 s{r}, s{r}, {st}\nbuffer_load_dwordx4 v{vL16}, s[8:11], s46 offen lds")
        else:
            A(f"s_mov_b32 m0, s{r}\ns_nop 0\nbuffer_load_dwordx4 v{vL16}, s[8:11], s{r} offen lds")
            if st: A(f"s_add_u32 s{r}, s{r}, {st}")

def gen_k2(name="attn_kernel", dbg=False):
    A = Asm()
    stamp(A, 0, dbg)
    A(f"""
    s_cmp_ge_u32 s2, 256
    s_cbranch_scc1 {name}_end
    s_load_dwordx2 s[4:5], s[0:1], 88
    v_lshrrev_b32 v{vT0}, 6, v0
    v_and_b32 v0, 63, v0
    v_readfirstlane_b32 s16, v{vT0}
    s_and_b32 s17, s2, 7
    s_lshl_b32 s17, s17, 2
    s_bfe_u32 s25, s2, 0x20003
    s_add_u32 s17, s17, s25            ; h
    s_lshr_b32 s18, s2, 5              ; qb
    s_lshr_b32 s19, s16, 2             ; kg
    s_and_b32 s20, s16, 3              ; qg
    s_and_b32 s21, s17, 1              ; parity
    s_lshr_b32 s26, s17, 1             ; pair
    v_lshlrev_b32 v{vL8}, 3, v0
    v_lshlrev_b32 v{vL16}, 4, v0
    s_mul_i32 s27, s26, {PAIR}
    s_mul_i32 s28, s21, {65536+VSZ}
    s_add_u32 s27, s27, s28
    s_add_u32 s27, s27, {KV}
    s_lshl_b32 s22, s21, 14
    s_add_u32 s23, s22, 65536
    s_cmp_eq_u32 s21, 0
    s_cselect_b32 s24, {65536+VSZ}, 0
    s_lshl_b32 s31, s18, 3
    s_lshl_b32 s32, s20, 1
    s_add_u32 s31, s31, s32
    s_add_u32 s32, s31, s19            ; tA
    s_xor_b32 s33, s32, 1              ; tB
    s_mul_i32 s39, s26, {PAIR}
    s_mul_i32 s34, s21, {MB}
    s_add_u32 s34, s34, s39
    s_lshl_b32 s35, s32, 10
    s_add_u32 s35, s35, s34
    s_lshl_b32 s36, s33, 10
    s_add_u32 s36, s36, s34
    s_add_u32 s34, s39, {LEFT}
    s_lshl_b32 s37, s32, 8
    s_add_u32 s37, s37, s34
    s_lshl_b32 s38, s33, 8
    s_add_u32 s38, s38, s34
    v_and_b32 v{vT1}, 31, v0
    v_lshlrev_b32 v{vT2}, 3, v{vT1}
    s_lshl_b32 s25, s20, 10
    s_lshl_b32 s46, s19, 13
    s_add_u32 s40, s22, s25
    s_add_u32 s40, s40, s46            ; KM
    s_mul_i32 s46, s19, 9216
    s_add_u32 s46, s46, s23
    s_add_u32 s41, s46, s25            ; V
    s_add_u32 s42, s46, 8192
    s_and_b32 s44, s20, 1
    s_lshl_b32 s46, s19, 1
    s_add_u32 s44, s44, s46
    s_lshl_b32 s44, s44, 10
    s_add_u32 s44, s44, s24
    s_cmp_eq_u32 s20, 0
    s_cselect_b32 s42, s42, s44
    s_cselect_b32 s45, 9, 2
    s_lshl_b32 s45, s45, 10
    s_waitcnt lgkmcnt(0)
    s_add_u32 s8, s4, s27
    s_addc_u32 s9, s5, 0
    s_mov_b32 s10, {WIN}
    s_mov_b32 s11, 0x20000
    s_mov_b32 s12, s4
    s_mov_b32 s13, s5
    s_mov_b32 s14, {WS_END}
    s_mov_b32 s15, 0x20000
    s_cmp_lg_u32 s19, 0
    s_cbranch_scc1 {name}_nodma0
    """)
    dma_iter(A)
    A(f"""
{name}_nodma0:
    buffer_load_dwordx2 {V(Q1A,2)}, v{vL8}, s[12:15], s35 offen
    buffer_load_dwordx2 {V(Q1A+2,2)}, v{vL8}, s[12:15], s35 offen offset:512
    buffer_load_dwordx2 {V(Q1B,2)}, v{vL8}, s[12:15], s36 offen
    buffer_load_dwordx2 {V(Q1B+2,2)}, v{vL8}, s[12:15], s36 offen offset:512
    buffer_load_dwordx2 {V(Q2A,2)}, v{vT2}, s[12:15], s37 offen
    buffer_load_dwordx2 {V(Q2B,2)}, v{vT2}, s[12:15], s38 offen
    v_mov_b32 v{SA}, 0
    v_mov_b32 v{SA+1}, 0
    v_mov_b32 v{SA+2}, 0
    v_mov_b32 v{SA+3}, 0
    s_lshl_b32 s25, s16, 10
    s_add_u32 s25, s25, {CONST}
    v_add_u32 v{vT3}, s25, v{vL16}
    ; is this lane's 16-B slot a ones slot?  slot index n = w*64+lane ; (n-14) % 36 == 0 and n < 14+36*8
    s_lshl_b32 s25, s16, 6
    s_sub_u32 s25, s25, 14
    v_add_u32 v{vT0}, s25, v0
    v_mul_u32_u24 v{vT2}, 1821, v{vT0}
    v_lshrrev_b32 v{vT2}, 16, v{vT2}
    v_mul_u32_u24 v{vT2}, 36, v{vT2}
    v_cmp_eq_u32 s[52:53], v{vT2}, v{vT0}
    v_cmp_gt_u32 vcc, {36*8}, v{vT0}
    v_mov_b32 v{vT0}, 0x3f803f80
    s_and_b64 vcc, vcc, s[52:53]
    v_cndmask_b32 v{SA}, v{SA}, v{vT0}, vcc
    v_cndmask_b32 v{SA+1}, v{SA+1}, v{vT0}, vcc
    v_cndmask_b32 v{SA+2}, v{SA+2}, v{vT0}, vcc
    v_cndmask_b32 v{SA+3}, v{SA+3}, v{vT0}, vcc
    ds_write_b128 v{vT3}, {V(SA,4)}
    v_lshrrev_b32 v{vT0}, 5, v0                 ; hf
    v_mul_u32_u24 v{vT3}, 288, v{vT0}
    s_mul_i32 s25, s19, {4*VT}
    s_add_u32 s47, s25, s23
    v_lshl_add_u32 v{vT2}, v{vT1}, 4, v{vT3}
    v_add_u32 v{vV0}, s47, v{vT2}
    v_mov_b32 v{vVinc}, {8*VT}
    v_mov_b32 v{vT2}, {CONST+240}
    v_mov_b32 v{vT3}, {CONST+224}
    v_cmp_eq_u32 vcc, 18, v{vT1}
    v_subrev_u32 v{vT0}, 20, v{vT1}
    v_cmp_gt_u32 s[52:53], 8, v{vT0}
    v_cndmask_b32 v{vT2}, v{vT2}, v{vT3}, vcc
    v_mov_b32 v{vT3}, {CONST+176}
    v_cmp_lt_u32 vcc, 17, v{vT1}
    v_cndmask_b32 v{vT2}, v{vT2}, v{vT3}, s[52:53]
    s_lshl_b32 s25, s19, 12
    s_add_u32 s48, s25, s22
    v_cndmask_b32 v{vV0}, v{vV0}, v{vT2}, vcc
    v_cndmask_b32 v{vVinc}, v{vVinc}, 0, vcc
    s_lshl_b32 s25, s19, 10
    s_add_u32 s49, s25, s24
    s_mov_b32 s50, 0                           ; pass
    v_cmp_gt_u32 vcc, 32, v0
    s_cmp_eq_u32 s21, 0
    s_cselect_b64 s[52:53], -1, 0
    s_cselect_b64 s[54:55], 0, -1
    s_and_b64 s[56:57], s[52:53], vcc
    s_and_b64 s[58:59], s[54:55], vcc
    s_andn2_b64 s[60:61], s[52:53], vcc
    s_andn2_b64 s[62:63], s[54:55], vcc
    v_add_u32 v{vT2}, s22, v{vL8}
    v_add_u32 v{vT3}, s24, v{vL8}
    s_waitcnt vmcnt(0) lgkmcnt(0)
    s_barrier
    """)
    stamp(A, 1, dbg)
    A(f"""
    ds_read2st64_b64 {V(KB[1],4)}, v{vT2} offset0:0 offset1:1
    ds_read_b64 {V(PA,2)}, v{vT3}
    s_cmp_eq_u32 s19, 0
    s_cbranch_scc1 {name}_nodma1
    """)
    dma_iter(A); dma_iter(A)
    A(f"{name}_nodma1:")
    for Q in (Q2A, Q2B):
        A(f"""
        v_cndmask_b32 v{Q+2}, 0, v{Q}, s[60:61]
        v_cndmask_b32 v{Q+3}, 0, v{Q+1}, s[62:63]
        v_cndmask_b32 v{Q}, 0, v{Q}, s[56:57]
        v_cndmask_b32 v{Q+1}, 0, v{Q+1}, s[58:59]
        """)
    A(f"""
    s_waitcnt lgkmcnt(0)
    {m16(SA, KB[1], Q1A, 0)}
    {m16(SB, KB[1], Q1B, 0)}
    {m8(SA, PA, Q2A)}
    {m8(SB, PA, Q2B)}
    """)
    for i in range(12): A(f"v_mov_b32 v{OA+i}, 0")
    maxtree(A, vT0, SA)
    maxtree(A, vT1, SB)
    A(f"""
{name}_setm:
    v_mov_b32 v{vT2}, v{vT0}
    v_mov_b32 v{vT3}, v{vT1}
    v_add_u32 v{vKM}, s48, v{vL8}
    v_add_u32 v{vKL}, s49, v{vL8}
    v_permlane32_swap_b32 v{vT0}, v{vT2}
    v_permlane32_swap_b32 v{vT1}, v{vT3}
    v_mov_b32 v{vV}, v{vV0}
    ds_read2st64_b64 {V(KB[0],4)}, v{vKM} offset0:0 offset1:1
    ds_read_b64 {V(KL,2)}, v{vKL}
    v_max_f32 v{vT0}, v{vT0}, v{vT2}
    v_max_f32 v{vT1}, v{vT1}, v{vT3}
    """)
    for i in range(16): A(f"v_sub_f32 v{NMA+i}, 0, v{vT0}")
    A(f"""
    v_sub_f32 v{NMB}, 0, v{vT1}
    s_waitcnt lgkmcnt(0)
    {m16(SA, KB[0], Q1A, V(NMA,16))}
    {m8(SA, KL, Q2A)}
    """)
    for i in range(1, 16): A(f"v_sub_f32 v{NMB+i}, 0, v{vT1}")
    for i in range(16): A(f"v_mov_b32 v{OA+i}, 0")
    for i in range(16): A(f"v_mov_b32 v{OB+i}, 0")
    for i in range(8): A(f"v_mov_b32 v{PB+i}, 0")
    for i in range(8): A(f"v_mov_b32 v{VB[1]+i}, 0")
    A(f"""
    s_or_b32 s30, s50, s19
    s_lshl_b32 s30, s30, 1
    s_mov_b32 s51, 8
    s_cmp_lg_u32 s50, 0
    s_cbranch_scc1 {name}_go
    s_cmp_eq_u32 s19, 0
    s_cbranch_scc1 {name}_go
    s_waitcnt vmcnt(5)
    s_barrier
    s_mov_b32 s25, 5
{name}_bulk:
    """)
    dma_iter(A)
    A(f"""
    s_sub_u32 s25, s25, 1
    s_cmp_lg_u32 s25, 0
    s_cbranch_scc1 {name}_bulk
    s_waitcnt vmcnt(0)
    s_barrier
    """)
    if 'noprio' not in EXP: A("s_setprio 1")
    A(f"{name}_go:")
    stamp(A, 2, dbg)
    A(f"""
.p2align 6
{name}_loop:
    """)
    for j in range(4):
        b = j & 1; nb = b ^ 1
        if j == 3:
            A(f"""
            s_cmp_gt_u32 s30, 1
            s_cbranch_scc1 {name}_nosync
            s_barrier
{name}_nosync:
            """)
        koff = 2*(j+1) if j < 3 else 16
        ex = [[f"ds_read2st64_b64 {V(KB[nb],4)}, v{vKM} offset0:{koff} offset1:{koff+1}"],
              [f"ds_read_b128 {V(VB[b],4)}, v{vV} offset:{j*VT}"],
              [f"ds_read_b128 {V(VB[b]+4,4)}, v{vV} offset:{j*VT+576}"],
              []]
        if j == 0: ex[3].append(f"ds_read_b64 {V(KL+2,2)}, v{vKL} offset:512")
        if j == 3: ex[0].append(f"ds_read_b64 {V(KL,2)}, v{vKL} offset:2048")
        klp = KL + 2*(j >> 1)
        phase(A, SA, PA, [m16(SB, KB[b], Q1B, V(NMB,16)), m8(SB, klp, Q2B + 2*(j & 1)),
                          m16(OB, VB[nb], PB, V(OB,16)), m16(OB, VB[nb]+4, PB+4, V(OB,16))], ex)
        jn = (j+1) & 3
        klp = KL + 2*(jn >> 1)
        A("s_waitcnt lgkmcnt(0)")
        ex = [[], [], [], []]
        if j == 3:
            ex[1] = ["s_add_u32 s30, s30, 1", "s_sub_u32 s51, s51, 1"]
            ex[2] = [f"v_add_u32 v{vKM}, 8192, v{vKM}", f"v_add_u32 v{vKL}, 2048, v{vKL}"]
            ex[3] = [f"v_add_u32 v{vV}, v{vVinc}, v{vV}"]
        phase(A, SB, PB, [m16(SA, KB[nb], Q1A, V(NMA,16)), m8(SA, klp, Q2A + 2*(jn & 1)),
                          m16(OA, VB[b], PA, V(OA,16)), m16(OA, VB[b]+4, PA+4, V(OA,16))], ex)
    PSW = int(os.environ.get('K2PSW', '1'))
    A(f"""
    s_cmp_gt_u32 s51, {PSW}
    s_cbranch_scc1 {name}_loop
    s_setprio 0
    s_cmp_lg_u32 s51, 0
    s_cbranch_scc1 {name}_loop
    """)
    stamp(A, 3, dbg)
    A(f"""
    {m16(OB, VB[1], PB, V(OB,16))}
    {m16(OB, VB[1]+4, PB+4, V(OB,16))}
    s_cmp_lg_u32 s50, 0
    s_cbranch_scc1 {name}_combine
    v_add_f32 v{vT0}, |v{OA}|, |v{OA+1}|
    """)
    for i in range(2, 11): A(f"v_add_f32 v{vT0}, |v{OA+i}|, v{vT0}")
    A("s_nop 1")
    for i in range(11): A(f"v_add_f32 v{vT0}, |v{OB+i}|, v{vT0}")
    A(f"""
    v_mov_b32 v{vT1}, 0x71800000        ; 2^100
    v_cmp_nlt_f32 vcc, v{vT0}, v{vT1}
    v_mov_b32 v{vT3}, {FLAG}
    v_mov_b32 v{vT2}, 1
    s_cbranch_vccz {name}_noflag
    ds_write_b32 v{vT3}, v{vT2}
{name}_noflag:
    s_waitcnt lgkmcnt(0)
    s_barrier
    ds_read_b32 v{vT2}, v{vT3}
    s_waitcnt lgkmcnt(0)
    v_readfirstlane_b32 s25, v{vT2}
    s_cmp_eq_u32 s25, 0
    s_cbranch_scc1 {name}_combine2
    s_mov_b32 s50, 1
    v_add_u32 v{vKM}, s48, v{vL8}
    v_add_u32 v{vKL}, s49, v{vL8}
    v_mov_b32 v{vT0}, 0xff800000
    v_mov_b32 v{vT1}, 0xff800000
    s_mov_b32 s51, 8
{name}_maxloop:
    ds_read2st64_b64 {V(KL,4)}, v{vKL} offset0:0 offset1:1
    """)
    for j in range(4):
        A(f"""
        ds_read2st64_b64 {V(KB[0],4)}, v{vKM} offset0:{2*j} offset1:{2*j+1}
        s_waitcnt lgkmcnt(0)
        {m16(SA, KB[0], Q1A, 0)}
        {m16(SB, KB[0], Q1B, 0)}
        {m8(SA, KL+2*(j>>1), Q2A+2*(j&1))}
        {m8(SB, KL+2*(j>>1), Q2B+2*(j&1))}
        s_nop 11
        """)
        maxtree(A, vT0, SA, True)
        maxtree(A, vT1, SB, True)
    A(f"""
    v_add_u32 v{vKM}, 8192, v{vKM}
    v_add_u32 v{vKL}, 2048, v{vKL}
    s_sub_u32 s51, s51, 1
    s_cmp_lg_u32 s51, 0
    s_cbranch_scc1 {name}_maxloop
    v_mov_b32 v{vT2}, v{vT0}
    v_mov_b32 v{vT3}, v{vT1}
    s_lshl_b32 s25, s16, 8
    s_xor_b32 s27, s25, 1024
    v_permlane32_swap_b32 v{vT0}, v{vT2}
    v_permlane32_swap_b32 v{vT1}, v{vT3}
    v_and_b32 v{vKM}, 31, v0
    v_lshlrev_b32 v{vKM}, 2, v{vKM}
    v_add_u32 v{vKM}, {XCH}, v{vKM}
    v_max_f32 v{vT0}, v{vT0}, v{vT2}
    v_max_f32 v{vT1}, v{vT1}, v{vT3}
    v_add_u32 v{vKL}, s25, v{vKM}
    v_add_u32 v{vKM}, s27, v{vKM}
    ds_write2_b32 v{vKL}, v{vT0}, v{vT1} offset0:0 offset1:32
    s_waitcnt lgkmcnt(0)
    s_barrier
    ds_read2_b32 {V(PA,2)}, v{vKM} offset0:32 offset1:0
    s_waitcnt lgkmcnt(0)
    v_max_f32 v{vT0}, v{vT0}, v{PA}
    v_max_f32 v{vT1}, v{vT1}, v{PA+1}
    s_branch {name}_setm
{name}_combine:
    s_barrier
{name}_combine2:
    s_mul_i32 s25, s16, 3072
    s_xor_b32 s27, s16, 4
    s_mul_i32 s27, s27, 3072
    v_add_u32 v{vT0}, s25, v{vL16}
    v_add_u32 v{vT1}, s27, v{vL16}
    s_nop 4
    ds_write_b128 v{vT0}, {V(OB,4)}
    ds_write_b128 v{vT0}, {V(OB+4,4)} offset:1024
    ds_write_b128 v{vT0}, {V(OB+8,4)} offset:2048
    s_mul_i32 s25, s32, {36*1024}
    s_add_u32 s25, s25, {OF}
    s_lshl_b32 s27, s17, 10
    s_add_u32 s27, s27, s25              ; main
    s_lshr_b32 s28, s17, 2
    s_lshl_b32 s28, s28, 9
    s_add_u32 s28, s28, s25
    s_and_b32 s29, s17, 3
    s_lshl_b32 s29, s29, 2
    s_add_u32 s28, s28, s29
    s_add_u32 s28, s28, 32768            ; leftover
    s_waitcnt lgkmcnt(0)
    s_barrier
    ds_read_b128 {V(SA,4)}, v{vT1}
    ds_read_b128 {V(SA+4,4)}, v{vT1} offset:1024
    ds_read_b128 {V(SA+8,4)}, v{vT1} offset:2048
    s_waitcnt lgkmcnt(0)
    v_add_f32 v{vT0}, v{OA+10}, v{SA+10}
    v_mov_b32 v{vT1}, v{vT0}
    """)
    for i in range(10): A(f"v_add_f32 v{OA+i}, v{OA+i}, v{SA+i}")
    A(f"""
    v_permlane32_swap_b32 v{vT0}, v{vT1}
    s_nop 1
    v_rcp_f32 v{vT0}, v{vT0}
    s_nop 0
    """)
    for i in range(10): A(f"v_mul_f32 v{OA+i}, v{OA+i}, v{vT0}")
    for i in range(5): A(f"v_cvt_pk_bf16_f32 v{PA+i}, v{OA+2*i}, v{OA+2*i+1}")
    A(f"""
    buffer_store_dwordx4 {V(PA,4)}, v{vL16}, s[12:15], s27 offen
    s_mov_b32 exec_hi, 0
    buffer_store_dword v{PA+4}, v{vL16}, s[12:15], s28 offen
    """)
    if dbg: A("s_waitcnt vmcnt(0)")
    stamp(A, 4, dbg)
    stamp_out(A, 5, dbg)
    A(f"""
{name}_end:
    s_endpgm
    """)
    return A.text()
```

```python
from asmlib import *
from layout import *
from k2 import stamp, stamp_out
NVGPR = 200
LDS_BYTES = 163840
OUTB = 2048*2304
WOB = 576*1152
XB = 2048*1152

def gen_oproj(A, name, dbg, wait_hook=None):
    BW = 40
    ACC = 184
    AF = 16
    A(f"""
    s_mov_b32 s8, s4
    s_mov_b32 s9, s5
    s_mov_b32 s10, {WOB}
    s_mov_b32 s11, 0x20000
    s_mov_b32 s12, s48
    s_mov_b32 s13, s49
    s_mov_b32 s14, {WS_END}
    s_mov_b32 s15, 0x20000
    s_mov_b32 s44, s6
    s_mov_b32 s45, s7
    s_mov_b32 s46, {OUTB}
    s_mov_b32 s47, 0x20000
    """)
    for i in range(3):
        A(f"""
        v_add_u32 v1, {64*i}, v0
        v_mul_u32_u24 v2, 5462, v1
        v_lshrrev_b32 v2, 16, v2            ; row = n/12
        v_mul_u32_u24 v3, 12, v2
        v_sub_u32 v1, v1, v3
        v_mul_u32_u24 v2, 1152, v2
        v_lshl_add_u32 v{4+i}, v1, 4, v2
        """)
    A(f"""
    v_subrev_u32 v5, 1024, v5
    v_subrev_u32 v6, 2048, v6
    s_mul_i32 s20, s18, 192
    s_mul_i32 s21, s16, {16*1152}
    s_add_u32 s20, s20, s21
    s_mul_i32 s21, s16, 3072             ; lds
    s_mov_b32 s22, s16
{name}_wo:
    s_mov_b32 m0, s21
    s_add_u32 s22, s22, 8
    buffer_load_dwordx4 v4, s[8:11], s20 offen lds
    buffer_load_dwordx4 v5, s[8:11], s20 offen offset:1024 lds
    buffer_load_dwordx4 v6, s[8:11], s20 offen offset:2048 lds
    s_add_u32 s20, s20, {8*16*1152}
    s_add_u32 s21, s21, {8*3072}
    s_cmp_lt_u32 s22, 36
    s_cbranch_scc1 {name}_wo
    s_and_b32 s23, s16, 1
    s_lshr_b32 s24, s16, 1
    v_lshrrev_b32 v1, 5, v0              ; hf
    v_bfe_u32 v2, v0, 2, 2               ; r
    v_bfe_u32 v3, v0, 4, 1
    v_lshlrev_b32 v3, 5, v3
    v_and_b32 v7, 3, v0
    v_lshl_add_u32 v3, v7, 3, v3
    s_lshl_b32 s25, s24, 6
    v_add_u32 v3, s25, v3
    v_lshl_add_u32 v7, v1, 2, v2         ; 4hf + r
    v_mul_u32_u24 v7, 192, v7
    v_add_u32 v8, v7, v3
    v_add_u32 v9, {16*18*192}, v8        ; steps 16..31
    v_mul_u32_u24 v7, 72, v1
    v_lshrrev_b32 v10, 1, v2
    v_mul_u32_u24 v10, 18, v10
    v_add_u32 v7, v7, v10
    v_and_b32 v10, 1, v2
    v_add3_u32 v7, v7, v10, 16
    v_mul_u32_u24 v7, 192, v7
    v_add_u32 v10, v7, v3
    v_add_u32 v11, {288*192}, v10        ; steps 34,35
    v_lshlrev_b32 v12, 4, v0             ; lane*16
    s_waitcnt vmcnt(0)
    s_barrier
    s_cmp_ge_u32 s16, 6
    s_cbranch_scc1 {name}_nopre
    """)
    for s in range(36):
        for e in range(2):
            if s < 32: base, off = (8, (18*s + 8*e)*192) if s < 16 else (9, (18*(s-16) + 8*e)*192)
            else: base, off = (10 + ((s-32) >> 1), (144*((s-32) & 1) + 36*e)*192)
            A(f"ds_read_b64_tr_b16 {V(BW+4*s+2*e,2)}, v{base} offset:{off}")
        if s % 6 == 5: A("s_waitcnt lgkmcnt(4)")
    A(f"""
{name}_nopre:
    """)
    for i in range(16): A(f"v_mov_b32 v{ACC+i}, 0")
    A(f"""
    s_mul_i32 s20, s17, {2*36*1024}
    s_add_u32 s20, s20, {OF}
    s_waitcnt lgkmcnt(0)
    """)
    if wait_hook: wait_hook(A)
    A("s_barrier")
    stamp(A, 1, dbg)
    A(f"""
    s_mul_i32 s21, s23, {36*1024}
    s_add_u32 s20, s20, s21
    s_lshl_b32 s21, s24, 10
    s_add_u32 s20, s20, s21              ; global
    s_lshl_b32 s21, s16, 10              ; lds
    """)
    for rr in range(9):
        A(f"""
        s_mov_b32 m0, s21
        s_add_u32 s21, s21, 8192
        buffer_load_dwordx4 v12, s[12:15], s20 offen lds {{SC}}
        s_add_u32 s20, s20, 4096
        """.replace("{SC}", "sc1" if wait_hook else ""))
    A(f"""
    s_lshl_b32 s21, s23, 10
    v_add_u32 v13, s21, v12
    """)
    for c in range(3):
        A(f"s_waitcnt vmcnt({6-3*c})\ns_barrier")
        if c == 0: A(f"s_cmp_ge_u32 s16, 6\ns_cbranch_scc1 {name}_idle")
        if c == 2: A(f"v_add_u32 v13, 49152, v13")
        for half in range(2):
            for i in range(6):
                s = 12*c + 6*half + i
                off = 2048*s - (49152 if c == 2 else 0)
                A(f"ds_read_b128 {V(AF+4*i,4)}, v13 offset:{off}")
            for i in range(6):
                s = 12*c + 6*half + i
                A(f"s_waitcnt lgkmcnt({5-i})")
                A(f"v_mfma_f32_32x32x16_bf16 {V(ACC,16)}, {V(BW+4*s,4)}, {V(AF+4*i,4)}, {V(ACC,16)}")
    stamp(A, 2, dbg)
    TR = 81920
    A(f"""
    v_and_b32 v1, 31, v0
    s_lshl_b32 s21, s23, 5
    v_add_u32 v1, s21, v1
    v_mul_u32_u24 v1, 208, v1
    v_lshrrev_b32 v2, 5, v0
    v_lshl_add_u32 v1, v2, 3, v1
    s_lshl_b32 s21, s24, 6
    s_add_u32 s21, s21, {TR}
    v_add_u32 v1, s21, v1
    s_nop 4
    """)
    for g in range(4):
        A(f"""
        v_cvt_pk_bf16_f32 v{AF+2*g}, v{ACC+4*g}, v{ACC+4*g+1}
        v_cvt_pk_bf16_f32 v{AF+2*g+1}, v{ACC+4*g+2}, v{ACC+4*g+3}
        ds_write_b64 v1, {V(AF+2*g,2)} offset:{16*g}
        """)
    A(f"""
    s_branch {name}_tr
{name}_idle:
    s_waitcnt vmcnt(3)
    s_barrier
    s_waitcnt vmcnt(0)
    s_barrier
{name}_tr:
    s_mul_i32 s21, s17, {64*2304}
    s_mul_i32 s22, s18, 192
    s_add_u32 s21, s21, s22
    s_lshl_b32 s22, s16, 7
    """)
    for i in range(2):
        A(f"""
        v_add_u32 v1, s22, v0
        v_add_u32 v1, {64*i}, v1
        v_mul_u32_u24 v2, 5462, v1
        v_lshrrev_b32 v2, 16, v2
        v_mul_u32_u24 v3, 12, v2
        v_sub_u32 v1, v1, v3
        v_lshlrev_b32 v1, 4, v1
        v_mul_u32_u24 v3, 208, v2
        v_add_u32 v{4+i}, v3, v1
        v_add_u32 v{4+i}, {TR}, v{4+i}
        v_mul_u32_u24 v3, 2304, v2
        v_add_u32 v{6+i}, v3, v1
        """)
    A(f"""
    s_waitcnt lgkmcnt(0)
    s_barrier
    s_cmp_ge_u32 s16, 6
    s_cbranch_scc1 {name}_done
    ds_read_b128 {V(AF,4)}, v4
    ds_read_b128 {V(AF+4,4)}, v5
    s_waitcnt lgkmcnt(1)
    buffer_store_dwordx4 {V(AF,4)}, v6, s[44:47], s21 offen
    s_waitcnt lgkmcnt(0)
    buffer_store_dwordx4 {V(AF+4,4)}, v7, s[44:47], s21 offen
{name}_done:
    """)

def gen_stage3(A, name, dbg, sc=""):
    YL = 0
    ZL = 40960
    A(f"""
    s_mov_b32 s8, s50
    s_mov_b32 s9, s51
    s_mov_b32 s10, {XB}
    s_mov_b32 s11, 0x20000
    s_mov_b32 s12, s48
    s_mov_b32 s13, s49
    s_mov_b32 s14, {WS_END}
    s_mov_b32 s15, 0x20000
    s_mov_b32 s44, s6
    s_mov_b32 s45, s7
    s_mov_b32 s46, {OUTB}
    s_mov_b32 s47, 0x20000
    v_lshrrev_b32 v1, 2, v0
    v_lshlrev_b32 v1, 12, v1
    v_and_b32 v2, 3, v0
    v_lshl_add_u32 v1, v2, 4, v1
    s_lshl_b32 s20, s17, 6
    s_lshl_b32 s21, s16, 16
    s_add_u32 s20, s20, s21
    s_add_u32 s20, s20, {YT}
    s_lshl_b32 s21, s16, 10
    s_mov_b32 s22, s16
{name}_y:
    s_mov_b32 m0, s21
    s_add_u32 s22, s22, 8
    buffer_load_dwordx4 v1, s[12:15], s20 offen lds {sc}
    s_add_u32 s20, s20, {8*65536}
    s_add_u32 s21, s21, 8192
    s_cmp_lt_u32 s22, 36
    s_cbranch_scc1 {name}_y
    s_lshl_b32 s22, s16, 6
    v_add_u32 v3, s22, v0               ; tid
    s_mul_i32 s20, s17, {32*1152}
    s_mul_i32 s23, s17, {32*2304}
    s_add_u32 s23, s23, 1152
    """)
    for i in range(5):
        A(f"""
        v_add_u32 v4, {512*i}, v3
        v_min_u32 v4, 2303, v4
        v_lshlrev_b32 v5, 4, v4
        buffer_load_dwordx4 {V(16+4*i,4)}, v5, s[8:11], s20 offen
        v_mul_u32_u24 v6, 3641, v4
        v_lshrrev_b32 v6, 18, v6         ; row = n/72
        v_lshl_add_u32 v{40+i}, v6, 4, v5
        v_add_u32 v{40+i}, {ZL}, v{40+i}
        v_mul_u32_u24 v6, 1152, v6
        v_add_u32 v{48+i}, v6, v5
        """)
    A(f"""
    v_bfe_u32 v4, v0, 2, 2              ; r
    v_lshrrev_b32 v5, 5, v0             ; octet
    v_lshl_add_u32 v4, v5, 3, v4
    v_lshlrev_b32 v4, 6, v4
    v_bfe_u32 v6, v0, 4, 1
    v_lshl_add_u32 v4, v6, 5, v4
    v_and_b32 v6, 3, v0
    v_lshl_add_u32 v4, v6, 3, v4
    s_lshl_b32 s21, s16, 10
    v_add_u32 v4, s21, v4
    v_and_b32 v6, 31, v0                ; token
    v_mul_u32_u24 v6, 1168, v6
    v_lshl_add_u32 v6, v5, 4, v6
    s_lshl_b32 s21, s16, 5
    s_add_u32 s21, s21, {ZL}
    v_add_u32 v6, s21, v6
    s_waitcnt vmcnt(5)
    """)
    for i in range(5):
        if i == 4: A(f"s_cmp_ge_u32 s16, 4\ns_cbranch_scc1 {name}_t4")
        A(f"""
        ds_read_b64_tr_b16 {V(56,2)}, v4 offset:{8192*i}
        ds_read_b64_tr_b16 {V(58,2)}, v4 offset:{8192*i+256}
        s_waitcnt lgkmcnt(0)
        ds_write_b128 v6, {V(56,4)} offset:{256*i}
        """)
    A(f"""
{name}_t4:
    s_waitcnt vmcnt(0) lgkmcnt(0)
    s_barrier
    """)
    for i in range(5): A(f"ds_read_b128 {V(60+4*i,4)}, v{40+i}")
    for i in range(5):
        A(f"s_waitcnt lgkmcnt({4-i})")
        for d in range(4):
            y = 60+4*i+d; q = 16+4*i+d
            A(f"""
            v_lshlrev_b32 v8, 16, v{y}
            v_lshlrev_b32 v9, 16, v{q}
            v_and_b32 v{y}, 0xffff0000, v{y}
            v_and_b32 v{q}, 0xffff0000, v{q}
            v_mul_f32 v8, v8, v9
            v_mul_f32 v9, v{y}, v{q}
            v_cvt_pk_bf16_f32 v{y}, v8, v9
            """)
        A(f"buffer_store_dwordx4 {V(60+4*i,4)}, v{48+i}, s[44:47], s23 offen {sc}")

def gen_k3(name="oproj_kernel", dbg=False):
    A = Asm()
    stamp(A, 0, dbg)
    A(f"""
    s_cmp_ge_u32 s2, 256
    s_cbranch_scc1 {name}_end
    s_load_dwordx2 s[4:5], s[0:1], 16
    s_load_dwordx2 s[50:51], s[0:1], 24
    s_load_dwordx2 s[6:7], s[0:1], 72
    s_load_dwordx2 s[48:49], s[0:1], 88
    v_lshrrev_b32 v1, 6, v0
    v_and_b32 v0, 63, v0
    v_readfirstlane_b32 s16, v1
    s_and_b32 s19, s2, 7
    s_lshr_b32 s20, s2, 3
    s_cmp_ge_u32 s20, 24
    s_cbranch_scc1 {name}_s3
    s_and_b32 s17, s20, 3
    s_lshl_b32 s19, s19, 2
    s_add_u32 s17, s17, s19
    s_lshr_b32 s18, s20, 2
    s_waitcnt lgkmcnt(0)
    """)
    gen_oproj(A, name, dbg)
    A(f"""
    s_branch {name}_fin
{name}_s3:
    s_sub_u32 s20, s20, 24
    s_lshl_b32 s17, s19, 3
    s_add_u32 s17, s17, s20
    s_waitcnt lgkmcnt(0)
    """)
    gen_stage3(A, name + "_s3", dbg)
    stamp(A, 1, dbg); stamp(A, 2, dbg)
    A(f"{name}_fin:")
    if dbg: A("s_waitcnt vmcnt(0)")
    stamp(A, 3, dbg)
    stamp_out(A, 4, dbg, base=STAMP+3*262144)
    A(f"{name}_end:\ns_endpgm")
    return A.text()
```

```python
from asmlib import *
from layout import *
from k2 import stamp, stamp_out
CH = 21504
HOFF = 17280
SETS = [[0,3,4,7],[1,2,5,6]]

class ConvRegs:
    def __init__(self, base):
        self.aA = base; self.aB = base+1; self.aU = base+2; self.t0 = base+3
        self.mask = base+4
        self.acc = base+8
        self.A = [base+24, base+56]
        self.B = [base+88, base+120]
        self.end = base+152

def conv_setup(A, R, s_slot):
    A(f"""
    v_bfe_u32 v{R.t0}, v0, 2, 2                 ; r
    v_mul_u32_u24 v{R.aA}, 4160, v{R.t0}
    v_and_b32 v{R.t0}, 3, v0                    ; cq
    v_lshl_add_u32 v{R.aA}, v{R.t0}, 3, v{R.aA}
    v_lshrrev_b32 v{R.t0}, 4, v0                ; g
    v_lshlrev_b32 v{R.aB}, 4, v{R.t0}
    v_sub_u32 v{R.aA}, v{R.aA}, v{R.aB}
    v_add_u32 v{R.aA}, {64+32-8}, v{R.aA}
    v_add_u32 v{R.aA}, {s_slot}, v{R.aA}
    v_and_b32 v{R.aU}, 15, v0
    v_lshlrev_b32 v{R.aU}, 5, v{R.aU}           ; 32a
    v_add_u32 v{R.aB}, v{R.aB}, v{R.aU}
    v_add_u32 v{R.aB}, {HOFF-32}, v{R.aB}
    v_add_u32 v{R.aB}, {s_slot}, v{R.aB}
    v_lshl_add_u32 v{R.aU}, v{R.t0}, 3, v{R.aU} ; 32a+8g
    v_and_b32 v{R.mask}, 15, v0
    v_lshlrev_b32 v{R.t0}, 3, v{R.t0}
    v_sub_u32 v{R.t0}, v{R.mask}, v{R.t0}
    v_add_u32 v{R.t0}, 17, v{R.t0}
    """)
    for d in range(4):
        A(f"""
        v_cmp_lt_i32 vcc, {2*d}, v{R.t0}
        v_mov_b32 v{R.acc}, 0xffff
        v_mov_b32 v{R.acc+1}, 0xffff0000
        v_cndmask_b32 v{R.mask+d}, 0, v{R.acc}, vcc
        v_cmp_lt_i32 vcc, {2*d+1}, v{R.t0}
        s_nop 1
        v_cndmask_b32 v{R.acc+1}, 0, v{R.acc+1}, vcc
        v_or_b32 v{R.mask+d}, v{R.mask+d}, v{R.acc+1}
        """)
    for i in range(16): A(f"v_mov_b32 v{R.acc+i}, 0")

def conv_reads(R, buf, n, doff):
    r = []
    for g in range(n):
        r.append(f"ds_read_b64_tr_b16 {V(R.A[buf]+4*g,2)}, v{R.aA} offset:{512*g+8+doff}")
        r.append(f"ds_read_b64_tr_b16 {V(R.A[buf]+4*g+2,2)}, v{R.aA} offset:{512*g+doff}")
        r.append(f"ds_read_b128 {V(R.B[buf]+4*g,4)}, v{R.aB} offset:{512*g+64-doff}")
    return r

def conv_main(A, R, name, st):
    S_ = SETS[st]; n = max(S_)+1
    mm = [(ti, tau, g) for g in range(n) for ti, tau in enumerate(S_) if g <= tau]
    mm.sort(key=lambda x: (max(x[2], x[1]-x[2]), x[0]))
    for r in conv_reads(R, 0, n, 0): A(r)
    A(f"s_mov_b32 s31, 4\n{name}:")
    for half in range(2):
        A("s_waitcnt lgkmcnt(0)")
        if half == 0:
            for d in range(4): A(f"v_and_b32 v{R.A[0]+d}, v{R.mask+d}, v{R.A[0]+d}")
            for d in range(4): A(f"v_mov_b32 v{R.mask+d}, -1")
            rd = conv_reads(R, 1, n, 64)
        else:
            A(f"v_add_u32 v{R.aA}, 128, v{R.aA}\nv_subrev_u32 v{R.aB}, 128, v{R.aB}")
            rd = conv_reads(R, 0, n, 0)
        k = 0
        for i, (ti, tau, g) in enumerate(mm):
            ac = V(R.acc+4*ti, 4)
            A(f"v_mfma_f32_16x16x32_bf16 {ac}, {V(R.A[half]+4*g,4)}, {V(R.B[half]+4*(tau-g),4)}, {ac}")
            for _ in range(2):
                if k < len(rd): A(rd[k]); k += 1
        assert k == len(rd)
    A(f"""
    s_sub_u32 s31, s31, 1
    s_cmp_lg_u32 s31, 0
    s_cbranch_scc1 {name}
    s_waitcnt lgkmcnt(0)
    """)

def conv_epi(A, R, st, s_slot, s_D, s_out, srd, flags=""):
    S_ = SETS[st]
    A(f"v_add_u32 v{R.t0}, {s_slot}, v{R.aU}")
    for ti, tau in enumerate(S_): A(f"ds_read_b64 {V(R.A[0]+2*ti,2)}, v{R.t0} offset:{64+512*tau}")
    A("s_waitcnt lgkmcnt(0)")
    for ti, tau in enumerate(S_):
        u = R.A[0]+2*ti; t = R.B[0]+4*ti; ac = R.acc+4*ti
        A(f"""
        v_lshlrev_b32 v{t}, 16, v{u}
        v_and_b32 v{t+1}, 0xffff0000, v{u}
        v_lshlrev_b32 v{t+2}, 16, v{u+1}
        v_and_b32 v{t+3}, 0xffff0000, v{u+1}
        v_fmac_f32 v{ac}, {s_D}, v{t}
        v_fmac_f32 v{ac+1}, {s_D}, v{t+1}
        v_fmac_f32 v{ac+2}, {s_D}, v{t+2}
        v_fmac_f32 v{ac+3}, {s_D}, v{t+3}
        v_cvt_pk_bf16_f32 v{t}, v{ac}, v{ac+1}
        v_cvt_pk_bf16_f32 v{t+1}, v{ac+2}, v{ac+3}
        buffer_store_dwordx2 {V(t,2)}, v{R.aU}, {srd}, {s_out} offen offset:{512*tau} {flags}
        """)

NVGPR = 168
LDS_BYTES = 2*CH
def gen_conv(name="conv_kernel", dbg=False):
    A = Asm(); R = ConvRegs(8)
    stamp(A, 0, dbg)
    A(f"""
    s_cmp_ge_u32 s2, 288
    s_cbranch_scc1 {name}_end
    s_load_dwordx4 s[4:7], s[0:1], 56
    s_load_dwordx2 s[48:49], s[0:1], 88
    v_lshrrev_b32 v1, 6, v0
    v_and_b32 v0, 63, v0
    v_readfirstlane_b32 s16, v1
    v_lshlrev_b32 v2, 4, v0
    s_lshr_b32 s17, s16, 1
    s_and_b32 s18, s16, 1                     ; set
    s_lshl_b32 s19, s2, 1
    s_add_u32 s19, s19, s17                   ; ch
    s_mul_i32 s20, s17, {CH}                  ; slot
    s_lshl_b32 s21, s19, 12                   ; ch*4096
    s_waitcnt lgkmcnt(0)
    s_lshl_b32 s22, s2, 2
    s_load_dword s23, s[6:7], s22
    s_mov_b32 s8, s4
    s_mov_b32 s9, s5
    s_mov_b32 s10, {576*4096}
    s_mov_b32 s11, 0x20000
    s_mov_b32 s12, s48
    s_mov_b32 s13, s49
    s_mov_b32 s14, {WS_END}
    s_mov_b32 s15, 0x20000
    s_mul_i32 s24, s18, {2*4160}
    s_add_u32 s24, s24, s20
    s_add_u32 s24, s24, 64
    s_lshl_b32 s25, s18, 2
    s_sub_u32 s25, s21, s25
    s_add_u32 s25, s25, {UT}
    """)
    for c in range(2):
        A("s_mov_b32 m0, s24\ns_nop 0")
        for i in range(4): A(f"buffer_load_dwordx4 v2, s[12:15], s25 offen offset:{1024*i} lds")
        if c == 0: A("s_add_u32 s24, s24, 4160\ns_sub_u32 s25, s25, 2")
    A(f"""
    s_lshl_b32 s25, s18, 11
    s_add_u32 s24, s25, s20
    s_add_u32 s24, s24, {HOFF}
    s_add_u32 s25, s25, s21
    s_mov_b32 m0, s24
    s_nop 0
    buffer_load_dwordx4 v2, s[8:11], s25 offen lds
    buffer_load_dwordx4 v2, s[8:11], s25 offen offset:1024 lds
    v_mov_b32 v4, 0
    v_mov_b32 v5, 0
    v_mov_b32 v6, 0
    v_mov_b32 v7, 0
    v_min_u32 v3, 35, v0
    v_lshlrev_b32 v3, 4, v3
    v_add_u32 v3, s20, v3
    ds_write_b128 v3, v[4:7] offset:{HOFF-576}
    """)
    conv_setup(A, R, "s20")
    A(f"""
    v_subrev_u32 v{R.aB}, 64, v{R.aB}
    s_add_u32 s26, s21, {YT}
    s_waitcnt vmcnt(0) lgkmcnt(0)
    s_lshl_b32 s24, s23, 16
    s_and_b32 s25, s23, 0xffff0000
    s_cmp_eq_u32 s17, 0
    s_cselect_b32 s23, s24, s25           ; D as f32
    s_barrier
    """)
    stamp(A, 1, dbg)
    A(f"""
    s_cmp_eq_u32 s18, 0
    s_cbranch_scc0 {name}_set1
    """)
    conv_main(A, R, f"{name}_l0", 0)
    stamp(A, 2, dbg)
    conv_epi(A, R, 0, "s20", "s23", "s26", "s[12:15]")
    A(f"s_branch {name}_done\n{name}_set1:")
    conv_main(A, R, f"{name}_l1", 1)
    stamp(A, 2, dbg)
    conv_epi(A, R, 1, "s20", "s23", "s26", "s[12:15]")
    A(f"{name}_done:")
    if dbg: A("s_waitcnt vmcnt(0)")
    stamp(A, 3, dbg)
    stamp_out(A, 4, dbg, nw=4, base=STAMP+2*262144)
    A(f"{name}_end:\ns_endpgm")
    return A.text()
```

```python
VT   = 1152
VSZ  = 64*VT
LEFT = 65536 + VSZ
MB   = LEFT + 16384
PAIR = 2*65536 + 2*VSZ + 16384
QP   = 0
KV   = 16*PAIR
OF   = 32*PAIR
UT   = OF + 64*36*1024 + 4096
YT   = UT + 576*4096 + 4096
CNT  = YT + 576*4096
VG   = CNT + 32*32768
WOF  = VG + 64*36864
STAMP = WOF + (1<<20)
WS_END = STAMP + (1<<20)
```

```python
import sys, os
from asmlib import *
import layout
import k1, k2, k3, kconv

HDR = open("concat_heads__softmax_full_mha__ssm_conv_h3__prompt.s.ref").read().split("; Override launch")[0]

def build(kernels, out):
    s = HDR
    for k in kernels:
        s += f"; @launch kernel={k[0]} grid=({k[3]},1,1) block=({k[4]},1,1) lds={k[5]}\n"
    s += '.amdgcn_target "amdgcn-amd-amdhsa--gfx950"\n.text\n'
    for k in kernels:
        s += kernel_head(k[0]) + k[1]
    s += '.section .rodata,"a"\n'
    for k in kernels:
        s += kernel_desc(k[0], k[2])
    open(out, "w").write(s)

if __name__ == "__main__":
    out = sys.argv[1]; which = sys.argv[2].split(","); dbg = len(sys.argv) > 3 and sys.argv[3] == "dbg"
    K = []
    if "k1" in which: K.append(("qkv_kernel", k1.gen_k1("qkv_kernel", dbg), k1.NVGPR, 256, 512, k1.LDS_BYTES))
    if "k2" in which: K.append(("attn_kernel", k2.gen_k2("attn_kernel", dbg), k2.NVGPR, 256, 512, k2.LDS_BYTES))
    if "kc" in which: K.append(("conv_kernel", kconv.gen_conv("conv_kernel", dbg), kconv.NVGPR, 288, 256, kconv.LDS_BYTES))
    if "k3" in which: K.append(("oproj_kernel", k3.gen_k3("oproj_kernel", dbg), k3.NVGPR, 256, 512, k3.LDS_BYTES))
    build(K, out)
```

```python
import os, struct, math
from asmlib import *
from layout import *
import kconv
EXP = os.environ.get('FEXP', '').split(',')
def opt(name, default): return int(os.environ.get(name, default))

CS_BITS = struct.unpack("<I", struct.pack("<f", math.log2(math.e)/math.sqrt(18)))[0]
XB, WB, OUTB, WOB = 2048*1152, 576*3456, 2048*2304, 576*1152
NVGPR = 216
LDS_BYTES = 163840
vST = 215
pX, pW, pWO, pQ, pK, pV, pSH, pH, pD, pOUT, pDBG, pWS = [64+2*i for i in range(12)]
WIN = 65536 + VSZ + 16384
CONST = WIN
XCH = WIN + 5120
SY = WIN + 7168
SC = "sc1"
NTG = 'nt' if 'ntg' in EXP else ''
NTB = 'nt' if 'ntb' in EXP else ''
SPIN = 200000
NREP = opt('NREP', 8)

class G:
    def __init__(self, dbg):
        self.A = Asm(); self.dbg = dbg; self.n = 0
    def lab(self, p="L"):
        self.n += 1; return f"{p}{self.n}"
    def stamp(self, i):
        if self.dbg:
            self.A(f"""
            s_memrealtime s[88:89]
            s_memtime s[90:91]
            s_waitcnt lgkmcnt(0)
            v_writelane_b32 v{vST}, s88, {i}
            v_writelane_b32 v{vST}, s90, {32+i}
            """)
    def srd(self, d, p, n):
        self.A(f"s_mov_b32 s{d}, s{p}\ns_mov_b32 s{d+1}, s{p+1}\ns_mov_b32 s{d+2}, {n}\ns_mov_b32 s{d+3}, 0x20000")
    def end(self):
        A = self.A
        if self.dbg:
            A("s_mov_b64 exec, -1\ns_waitcnt vmcnt(0)")
            self.stamp(31)
            A(f"""
            s_lshl_b32 s25, s2, 3
            s_add_u32 s25, s25, s16
            s_lshl_b32 s25, s25, 8
            s_add_u32 s25, s25, {STAMP}
            v_lshlrev_b32 v1, 2, v0
            buffer_store_dword v{vST}, v1, s[12:15], s25 offen
            """)
        A("s_endpgm")
    def post(self, val, t):
        self.A(f"""
        v_mov_b32 v{t}, s3
        v_mov_b32 v{t+1}, {val}
        ds_write_b32 v{t}, v{t+1}
        """)
    def wait_words(self, addr, val, t, n=4, sl=1):
        l = self.lab("Lw"); d = self.lab("Ld")
        rd = f"ds_read_b128 {V(t,4)}, v{t+4}" if n == 4 else f"ds_read_b32 v{t}, v{t+4}"
        mn = f"v_min_u32 v{t}, v{t}, v{t+1}\nv_min3_u32 v{t}, v{t}, v{t+2}, v{t+3}\ns_nop 0" if n == 4 else ""
        self.A(f"""
        v_mov_b32 v{t+4}, {addr}
        s_mov_b32 s93, {SPIN}
{l}:
        {rd}
        s_waitcnt lgkmcnt(0)
        {mn}
        v_readfirstlane_b32 s92, v{t}
        s_cmp_ge_u32 s92, {val}
        s_cbranch_scc1 {d}
        s_sleep {sl}
        s_sub_u32 s93, s93, 1
        s_cmp_lg_u32 s93, 0
        s_cbranch_scc1 {l}
{d}:
        """)
    def gsync(self, val, t):
        self.post(val, t)
        self.wait_words("s94", val, t)
    def ready(self, t):
        l = self.lab("Lr"); d = self.lab("Ld")
        self.A(f"""
        v_and_b32 v{t+1}, {NREP-1}, v0
        v_lshlrev_b32 v{t+1}, 2, v{t+1}
        s_mov_b32 s93, {SPIN}
{l}:
        global_load_dword v{t}, v{t+1}, s[{pDBG}:{pDBG+1}] {SC}
        s_waitcnt vmcnt(0)
        v_cmp_eq_u32 vcc, 0, v{t}
        s_nop 3
        s_cmp_eq_u64 vcc, 0
        s_cbranch_scc1 {d}
        s_sleep 2
        s_sub_u32 s93, s93, 1
        s_cmp_lg_u32 s93, 0
        s_cbranch_scc1 {l}
{d}:
        """)
    def signal(self, sidx, t):
        self.A(f"""
        s_lshl_b32 s92, {sidx}, 8
        s_add_u32 s92, s92, {CNT}
        v_lshlrev_b32 v{t}, 15, v0
        v_mov_b32 v{t+1}, 1
        s_mov_b64 exec, {(1 << NREP) - 1}
        buffer_atomic_add v{t+1}, v{t}, s[12:15], s92 offen {SC}
        s_mov_b64 exec, -1
        """)
    def poll(self, first, n, target, t, sl=None):
        l = self.lab("Lp"); d = self.lab("Ld")
        self.A(f"""
        v_min_u32 v{t+1}, {n-1}, v0
        v_add_u32 v{t+1}, {first}, v{t+1}
        v_lshlrev_b32 v{t+1}, 8, v{t+1}
        s_mov_b32 s93, {SPIN}
        s_and_b32 s92, s2, {NREP-1}
        s_lshl_b32 s92, s92, 15
        s_add_u32 s92, s92, {CNT}
        s_mov_b64 exec, {(1 << n) - 1}
{l}:
        buffer_load_dword v{t}, v{t+1}, s[12:15], s92 offen {SC}
        s_waitcnt vmcnt(0)
        v_cmp_le_u32 vcc, {target}, v{t}
        s_nop 3
        s_cmp_eq_u64 vcc, exec
        s_cbranch_scc1 {d}
        s_sleep {sl or opt('PSLEEP', 2)}
        s_sub_u32 s93, s93, 1
        s_cmp_lg_u32 s93, 0
        s_cbranch_scc1 {l}
{d}:
        s_mov_b64 exec, -1
        """)

vT0, vT1, vT2, vT3, vTok, vHf = 1, 2, 3, 4, 5, 6
vXb, vWb, vX, vW, vEA, FR, ACC, PK = 8, 12, 14, 18, 20, 36, 68, 132
RING = 131072
def XF(b, i): return FR + 16*b + 4*i
def WF(b, j): return FR + 16*b + 8 + 4*j
def acc(i, j): return ACC + 16*(2*i + j)
def g_reads(b, s):
    return [f"ds_read_b128 {V(XF(b,0),4)}, v{vX+s}",
            f"ds_read_b64_tr_b16 {V(WF(b,0),2)}, v{vW} offset:{16384 + 4096*s}",
            f"ds_read_b64_tr_b16 {V(WF(b,0)+2,2)}, v{vW} offset:{16384 + 4096*s + 1024}",
            f"ds_read_b64_tr_b16 {V(WF(b,1),2)}, v{vW+1} offset:{16384 + 4096*s}",
            f"ds_read_b64_tr_b16 {V(WF(b,1)+2,2)}, v{vW+1} offset:{16384 + 4096*s + 1024}",
            f"ds_read_b128 {V(XF(b,1),4)}, v{vX+s} offset:4096"]
def g_mf(b, i, j, vtype):
    a, bb = (XF(b,i), WF(b,j)) if vtype else (WF(b,j), XF(b,i))
    return f"v_mfma_f32_32x32x16_bf16 {V(acc(i,j),16)}, {V(a,4)}, {V(bb,4)}, {V(acc(i,j),16)}"
def g_setaddr(A):
    for s in range(4): A(f"v_add_u32 v{vX+s}, s30, v{vXb+s}")
    for j in range(2): A(f"v_add_u32 v{vW+j}, s30, v{vWb+j}")
def g_loop(g, name, vtype):
    A = g.A
    A("s_mov_b32 s31, 9\ns_barrier")
    for r in g_reads(0, 0): A(r)

    A(f".p2align 6\n{name}:")
    for s in range(4):
        b = s & 1
        A("s_waitcnt lgkmcnt(0)")
        A(g_mf(b, 0, 0, vtype))
        if s < 3:
            rd = g_reads(b ^ 1, s+1)
            for r in rd[:3]: A(r)
            A(g_mf(b, 0, 1, vtype))
            for r in rd[3:]: A(r)
            A(g_mf(b, 1, 0, vtype)); A(g_mf(b, 1, 1, vtype))
        else:
            A(f"""
            s_add_u32 s30, s30, 32768
            s_and_b32 s30, s30, {RING-1}
            s_sub_u32 s31, s31, 1
            s_cmp_eq_u32 s31, 0
            s_cbranch_scc1 {name}_nb
            s_barrier
{name}_nb:
            """)
            g_setaddr(A)
            A(g_mf(b, 0, 1, vtype))
            rd = g_reads(0, 0)
            for r in rd[:3]: A(r)
            A(g_mf(b, 1, 0, vtype))
            for r in rd[3:]: A(r)
            A(g_mf(b, 1, 1, vtype))
    A(f"s_cbranch_scc0 {name}")

def gen_gemm(g):
    A = g.A
    ROT = opt('ROT', 1)
    A(f"""
    s_and_b32 s17, s2, 7               ; xcd
    s_lshr_b32 s18, s2, 3              ; idx 0..27
    s_and_b32 s19, s17, 3
    s_lshl_b32 s19, s19, 2
    s_and_b32 s20, s18, 3
    s_add_u32 s19, s19, s20            ; mb
    s_lshr_b32 s21, s17, 2
    s_mul_i32 s21, s21, 7
    s_lshr_b32 s22, s18, 2
    s_add_u32 s21, s21, s22            ; ng
    s_cmp_lt_u32 s16, 4
    s_cbranch_scc1 Lg_compute
    s_and_b32 s23, s16, 3              ; u
    """)
    if ROT:
        A("""
        s_mul_i32 s24, s20, 5
        s_lshr_b32 s24, s24, 1
        s_add_u32 s24, s24, s22
        s_cmp_ge_u32 s24, 9
        s_cselect_b32 s25, 9, 0
        s_sub_u32 s24, s24, s25
        """)
    else: A("s_mov_b32 s24, 0")
    A(f"""
    s_lshl_b32 s25, s19, 7
    s_lshl_b32 s26, s23, 5
    s_add_u32 s25, s25, s26
    s_mul_i32 s25, s25, 1152
    s_lshl_b32 s26, s24, 7
    s_add_u32 s40, s25, s26            ; sX
    s_lshl_b32 s25, s24, 2
    s_add_u32 s25, s25, s23
    s_mul_i32 s25, s25, {16*3456}
    s_lshl_b32 s26, s21, 8
    s_add_u32 s41, s25, s26            ; sW
    s_lshl_b32 s42, s23, 12
    v_lshrrev_b32 v{vT0}, 3, v0
    v_mul_u32_u24 v{vT0}, 1152, v{vT0}
    v_lshrrev_b32 v{vT1}, 4, v0
    v_and_b32 v{vT2}, 7, v0
    v_xor_b32 v{vT2}, v{vT2}, v{vT1}
    v_lshl_add_u32 v8, v{vT2}, 4, v{vT0}
    v_xor_b32 v{vT2}, 4, v{vT2}
    v_lshl_add_u32 v9, v{vT2}, 4, v{vT0}       ; odd i
    v_mul_u32_u24 v{vT0}, 3456, v{vT1}
    v_and_b32 v{vT2}, 15, v0
    v_lshlrev_b32 v{vT1}, 2, v{vT1}
    v_xor_b32 v{vT2}, v{vT2}, v{vT1}
    v_lshl_add_u32 v10, v{vT2}, 4, v{vT0}      ; W addr
    s_mov_b32 s31, 0
    s_waitcnt lgkmcnt(0)
    """)
    g.srd(8, pX, XB); g.srd(44, pW, WB)
    A(f"""
Lg_ld:
    s_cmp_lt_u32 s31, 2
    s_cbranch_scc1 Lg_ld_go
    s_waitcnt vmcnt(8)
    s_barrier
Lg_ld_go:
    s_mov_b32 m0, s42
    s_add_u32 s26, s40, 8192
    buffer_load_dwordx4 v8, s[8:11], s40 offen {NTG} lds
    s_add_u32 s27, s40, 16384
    buffer_load_dwordx4 v9, s[8:11], s26 offen offset:1024 {NTG} lds
    s_add_u32 s26, s40, 24576
    buffer_load_dwordx4 v8, s[8:11], s27 offen offset:2048 {NTG} lds
    s_add_u32 s28, s42, 16384
    buffer_load_dwordx4 v9, s[8:11], s26 offen offset:3072 {NTG} lds
    s_mov_b32 m0, s28
    s_add_u32 s26, s41, {13824-1024}
    buffer_load_dwordx4 v10, s[44:47], s41 offen {NTG} lds
    s_add_u32 s27, s41, {2*(13824-1024)}
    buffer_load_dwordx4 v10, s[44:47], s26 offen offset:1024 {NTG} lds
    s_add_u32 s26, s41, {3*(13824-1024)}
    buffer_load_dwordx4 v10, s[44:47], s27 offen offset:2048 {NTG} lds
    s_add_u32 s40, s40, 128
    buffer_load_dwordx4 v10, s[44:47], s26 offen offset:3072 {NTG} lds
    s_add_u32 s41, s41, {64*3456}
    """)
    if ROT:
        A(f"""
        s_add_u32 s24, s24, 1
        s_cmp_eq_u32 s24, 9
        s_cbranch_scc0 Lg_ld_nw
        s_mov_b32 s24, 0
        s_sub_u32 s40, s40, 1152
        s_sub_u32 s41, s41, {WB}
Lg_ld_nw:
        """)
    A(f"""
    s_add_u32 s42, s42, 32768
    s_and_b32 s42, s42, {RING-1}
    s_add_u32 s31, s31, 1
    s_cmp_lt_u32 s31, 9
    s_cbranch_scc1 Lg_ld
    s_waitcnt vmcnt(8)
    s_barrier
    s_mov_b32 s95, 0
    s_setprio {opt('CPRIO', 1)}
    """)
    g.srd(12, pWS, WS_END)
    A(f"""
    s_waitcnt vmcnt(0)
    s_barrier
    s_branch Lattn
Lg_compute:
    s_mov_b32 s95, 2
    s_and_b32 s23, s16, 1              ; wm
    s_lshr_b32 s24, s16, 1             ; wn
    v_and_b32 v{vTok}, 31, v0
    v_lshrrev_b32 v{vHf}, 5, v0
    s_lshl_b32 s25, s23, 13
    v_lshlrev_b32 v{vT0}, 7, v{vTok}
    v_add_u32 v{vT0}, s25, v{vT0}
    v_bfe_u32 v{vT1}, v0, 1, 3
    v_xor_b32 v{vT1}, v{vT1}, v{vHf}
    """)
    for s in range(4):
        A(f"v_xor_b32 v{vT2}, {2*s}, v{vT1}\nv_lshl_add_u32 v{vXb+s}, v{vT2}, 4, v{vT0}")
    A(f"""
    v_bfe_u32 v{vT0}, v0, 2, 2
    v_lshl_add_u32 v{vT1}, v{vHf}, 3, v{vT0}
    v_lshlrev_b32 v{vT1}, 8, v{vT1}
    v_bfe_u32 v{vT2}, v0, 4, 1
    v_lshl_add_u32 v{vT1}, v{vT2}, 5, v{vT1}
    v_and_b32 v{vT2}, 3, v0
    v_lshl_add_u32 v{vT1}, v{vT2}, 3, v{vT1}
    s_lshl_b32 s25, s24, 1
    v_xor_b32 v{vT2}, s25, v{vT0}
    v_lshl_add_u32 v{vWb}, v{vT2}, 6, v{vT1}
    v_xor_b32 v{vT2}, 1, v{vT2}
    v_lshl_add_u32 v{vWb+1}, v{vT2}, 6, v{vT1}
    s_mov_b32 s30, 0
    s_waitcnt lgkmcnt(0)
    """)
    g.srd(12, pWS, WS_END)
    gen_init_misc(g, PK+8)
    g_setaddr(A)
    for i in range(64): A(f"v_mov_b32 v{ACC+i}, 0")
    A(f"""
    s_lshl_b32 s26, s19, 2
    s_lshl_b32 s27, s23, 1
    s_add_u32 s26, s26, s27            ; T0
    s_waitcnt lgkmcnt(0)
    s_cmp_ge_u32 s21, 9
    s_cbranch_scc1 Lg_vtype
    s_lshl_b32 s27, s21, 5
    s_lshl_b32 s28, s24, 4
    s_add_u32 s27, s27, s28
    v_add_u32 v{vT0}, s27, v{vHf}      ; G0
    s_lshl_b32 s28, s26, 10
    s_lshl_b32 s29, s26, 8
    s_add_u32 s29, s29, {LEFT}
    v_lshlrev_b32 v{vTok}, 3, v{vTok}
    v_add_u32 v{PK}, s29, v{vTok}
    v_add_u32 v{PK+1}, s28, v{vTok}
    v_add_u32 v{PK+2}, {MB-1280}, v{PK+1}
    v_mov_b32 v{PK+3}, 256
    v_mov_b32 v{PK+4}, 1024
    s_mov_b32 s32, {PAIR}
    """)
    for jg in range(8):
        A(f"""
        v_add_u32 v{vT1}, {8*(jg>>2) + 2*(jg&3)}, v{vT0}
        v_mul_u32_u24 v{vT2}, 7282, v{vT1}
        v_lshrrev_b32 v{vT2}, 16, v{vT2}
        v_mul_u32_u24 v{vT3}, 9, v{vT2}
        v_sub_u32 v{vT1}, v{vT1}, v{vT3}
        v_cmp_lt_u32 vcc, 4, v{vT1}
        v_cmp_eq_u32 s[34:35], 4, v{vT1}
        v_mul_u32_u24 v{vT2}, s32, v{vT2}
        v_cndmask_b32 v{vT3}, v{PK+1}, v{PK+2}, vcc
        v_lshl_add_u32 v{vT3}, v{vT1}, 8, v{vT3}
        v_cndmask_b32 v{vT3}, v{vT3}, v{PK}, s[34:35]
        v_cndmask_b32 v{vT1}, v{PK+4}, v{PK+3}, s[34:35]
        v_add_u32 v{vEA+jg}, v{vT2}, v{vT3}
        v_add_u32 v{vEA+8+jg}, v{vEA+jg}, v{vT1}
        """)
    g.stamp(1)
    g_loop(g, "Lg_qk", False)
    g.stamp(2)
    A(f"""
    s_lshl_b32 s27, s21, 2
    s_lshl_b32 s28, s24, 1
    s_add_u32 s27, s27, s28
    s_cmp_lt_u32 s27, 18
    s_cselect_b32 s28, {CS_BITS}, 1.0
    s_nop 7
    """)
    n = 0
    for i in range(2):
        for j in range(2):
            for q in range(4):
                a = acc(i, j) + 4*q
                p = PK + 2*(n % 8); n += 1
                for e in range(4): A(f"v_mul_f32 v{a+e}, s28, v{a+e}")
                A(f"v_cvt_pk_bf16_f32 v{p}, v{a}, v{a+1}\nv_cvt_pk_bf16_f32 v{p+1}, v{a+2}, v{a+3}")
                A(f"buffer_store_dwordx2 {V(p,2)}, v{vEA+8*i+4*j+q}, s[12:15], 0 offen {SC}")
    A(f"""
    s_branch Lg_done
Lg_vtype:
    s_sub_u32 s27, s21, 9
    s_lshl_b32 s27, s27, 7
    s_lshl_b32 s28, s24, 6
    s_add_u32 s27, s27, s28
    s_mul_i32 s28, s26, {VT}
    s_add_u32 s28, s28, {KV+65536}
    v_mul_u32_u24 v{vT3}, 288, v{vHf}
    v_add_u32 v{vT3}, s28, v{vT3}
    s_mov_b32 s32, {PAIR}
    s_mov_b32 s33, {MB}
    """)
    for j in range(2):
        A(f"""
        v_add_u32 v{vT0}, s27, v{vTok}
        v_add_u32 v{vT0}, {32*j}, v{vT0}
        v_mul_u32_u24 v{vT1}, 3641, v{vT0}
        v_lshrrev_b32 v{vT1}, 16, v{vT1}
        v_mul_u32_u24 v{vT2}, 18, v{vT1}
        v_sub_u32 v{vT0}, v{vT0}, v{vT2}
        v_lshl_add_u32 v{vT0}, v{vT0}, 4, v{vT3}
        v_lshrrev_b32 v{vT2}, 1, v{vT1}
        v_and_b32 v{vT1}, 1, v{vT1}
        v_mad_u32_u24 v{vT0}, v{vT2}, s32, v{vT0}
        v_mad_u32_u24 v{vEA+j}, v{vT1}, s33, v{vT0}
        """)
    g.stamp(1)
    g_loop(g, "Lg_v", True)
    g.stamp(2)
    A(f"""
    s_cmp_ge_u32 s27, 576
    s_cbranch_scc1 Lg_done
    s_nop 7
    """)
    n = 0
    for i in range(2):
        for j in range(2):
            for m in range(2):
                a = acc(i, j) + 8*m
                p = PK + 4*(n % 4); n += 1
                for e in range(4): A(f"v_cvt_pk_bf16_f32 v{p+e}, v{a+2*e}, v{a+2*e+1}")
                A(f"buffer_store_dwordx4 {V(p,4)}, v{vEA+j}, s[12:15], 0 offen offset:{i*VT+m*576} {SC}")
    A(f"""
Lg_done:
    """)
    g.stamp(15)
    A("s_cmp_lg_u32 s16, 0\ns_cbranch_scc1 Lg_d2")
    g.ready(8)
    A("Lg_d2:\ns_waitcnt vmcnt(0) lgkmcnt(0)")
    g.stamp(3)
    g.gsync(5, 8)
    A("s_cmp_lg_u32 s16, 0\ns_cbranch_scc1 Lattn")
    g.stamp(16)
    g.signal("s21", 8)
    if g.dbg: A("s_waitcnt vmcnt(0)")
    g.stamp(17)
    A("s_branch Lattn")

def gen_init_misc(g, t):
    A = g.A
    for i in range(2):
        A(f"""
        s_and_b32 s25, s16, 3
        s_lshl_b32 s25, s25, 7
        s_add_u32 s25, s25, {64*i-14 & 0xffffffff}
        v_add_u32 v{t+4}, s25, v0
        v_mul_u32_u24 v{t+5}, 1821, v{t+4}
        v_lshrrev_b32 v{t+5}, 16, v{t+5}
        v_mul_u32_u24 v{t+5}, 36, v{t+5}
        v_cmp_eq_u32 s[34:35], v{t+5}, v{t+4}
        v_cmp_gt_u32 vcc, {36*8}, v{t+4}
        v_mov_b32 v{t+5}, 0x3f803f80
        v_lshlrev_b32 v{t+4}, 4, v{t+4}
        s_and_b64 vcc, vcc, s[34:35]
        v_add_u32 v{t+4}, {CONST+224}, v{t+4}
        v_cndmask_b32 v{t}, 0, v{t+5}, vcc
        v_cndmask_b32 v{t+1}, 0, v{t+5}, vcc
        v_cndmask_b32 v{t+2}, 0, v{t+5}, vcc
        v_cndmask_b32 v{t+3}, 0, v{t+5}, vcc
        ds_write_b128 v{t+4}, {V(t,4)}
        """)

def gen_stage1(g):
    A = g.A
    KR, VR, CR, CF, KU, U, OUT = 16, 36, 44, 60, 92, 104, 108
    def up(dst, src, hi): return f"v_and_b32 v{dst}, 0xffff0000, v{src}" if hi else f"v_lshlrev_b32 v{dst}, 16, v{src}"
    def pk(op, d, a, b, c=None):
        return f"v_pk_{op}_f32 {V(d,2)}, {V(a,2)}, {V(b,2)}" + (f", {V(c,2)}" if c is not None else "")
    A("s_waitcnt lgkmcnt(0)")
    g.srd(12, pWS, WS_END)
    A(f"s_cmp_lt_u32 s16, 4\ns_cbranch_scc1 Lx_noinit")
    gen_init_misc(g, 132)
    A(f"""
    s_cmp_ge_u32 s2, {224+NREP}
    s_cbranch_scc1 Lx_noinit
    s_cmp_lg_u32 s16, 4
    s_cbranch_scc1 Lx_noinit
    v_lshlrev_b32 v{vT0}, 8, v0
    v_mov_b32 v{vT1}, 0
    s_sub_u32 s25, s2, 224
    s_lshl_b32 s25, s25, 15
    s_add_u32 s25, s25, {CNT}
    buffer_store_dword v{vT1}, v{vT0}, s[12:15], s25 offen {SC}
    s_add_u32 s25, s25, 16384
    s_mov_b64 exec, 0xfffff
    buffer_store_dword v{vT1}, v{vT0}, s[12:15], s25 offen {SC}
    s_mov_b64 exec, -1
Lx_noinit:
    s_getpc_b64 s[26:27]
Lpc0:
    s_add_u32 s26, s26, Lcode_begin-Lpc0
    s_addc_u32 s27, s27, -1
    s_and_b32 s25, s16, 3
    s_lshl_b32 s25, s25, 13
    v_lshlrev_b32 v8, 7, v0
    v_add_u32 v8, s25, v8
    v_min_u32 v8, Lcode_end-Lcode_begin-4, v8
    v_mov_b32 v11, s27
    v_add_co_u32 v10, vcc, s26, v8
    s_nop 1
    v_addc_co_u32 v11, vcc, 0, v11, vcc
    global_load_dword v210, v[10:11], off
    s_waitcnt lgkmcnt(0)
    s_barrier
    s_mov_b32 s95, 2
    s_sub_u32 s17, s2, 224             ; tb
    s_lshr_b32 s25, s16, 2
    s_add_u32 s18, s25, 7              ; cb
    s_lshl_b32 s19, s17, 1
    s_add_u32 s19, s19, s25
    s_and_b32 s43, s19, 3
    s_add_u32 s43, s43, 80
    s_lshl_b32 s19, s19, 1
    s_add_u32 s19, s19, 448
    s_lshl_b32 s24, s25, 16
    s_add_u32 s96, s24, 0
    s_add_u32 s97, s24, {kconv.CH}
    s_branch Ls1_go
Ls1_task:
    s_mul_i32 s17, s2, 9363
    s_lshr_b32 s17, s17, 16
    s_mul_i32 s18, s17, 7
    s_sub_u32 s18, s2, s18             ; cb
    s_and_b32 s43, s2, 15
    s_add_u32 s43, s43, 64
    s_lshl_b32 s19, s2, 1
    s_bfe_u32 s25, s2, 0x10003
    s_lshl_b32 s25, s25, 14
    s_add_u32 s96, s25, {65536-kconv.CH}
    s_add_u32 s97, s25, {65536+VSZ-kconv.CH}      ; V tail
    s_mov_b32 s24, s97
Ls1_go:
    s_and_b32 s23, s16, 3              ; u
    v_and_b32 v{vT0}, 7, v0            ; cc
    v_lshrrev_b32 v{vT1}, 3, v0        ; tg
    s_lshl_b32 s20, s17, 2
    s_add_u32 s20, s20, s23
    s_mul_i32 s20, s20, {16*1152}
    s_lshl_b32 s21, s18, 7
    s_add_u32 s20, s20, s21
    v_mul_u32_u24 v{vT2}, 2304, v{vT1}
    v_lshl_add_u32 v{vT2}, v{vT0}, 4, v{vT2}
    v_add_u32 v6, s20, v{vT2}
    v_lshlrev_b32 v{vT3}, 6, v{vT0}
    s_lshl_b32 s21, s18, 9
    """)
    g.srd(8, pK, XB); g.srd(44, pV, XB); g.srd(56, pSH, 576*8); g.srd(12, pWS, WS_END)
    for i in range(4): A(f"buffer_load_dwordx4 {V(CR+4*i,4)}, v{vT3}, s[56:59], s21 offen offset:{16*i}")
    for n in range(5):
        A(f"v_add_u32 v7, {(n-3)*1152 & 0xffffffff}, v6")
        A(f"buffer_load_dwordx4 {V(KR+4*n,4)}, v7, s[8:11], 0 offen {NTB}")
        if n >= 3: A(f"buffer_load_dwordx4 {V(VR+4*(n-3),4)}, v7, s[44:47], 0 offen {NTB}")
    SCR = 131072
    A(f"""
    v_mul_u32_u24 v6, 288, v{vT1}
    v_lshl_add_u32 v6, v{vT0}, 4, v6
    s_mul_i32 s25, s23, {16*144}
    s_add_u32 s25, s25, s24
    v_add_u32 v6, s25, v6
    v_lshrrev_b32 v{vT2}, 4, v0
    v_bfe_u32 v{vT3}, v0, 2, 2
    v_lshl_add_u32 v7, v{vT2}, 3, v{vT3}
    v_mul_u32_u24 v7, 144, v7
    v_and_b32 v{vT3}, 3, v0
    v_lshl_add_u32 v7, v{vT3}, 3, v7
    s_lshl_b32 s25, s23, 5
    s_add_u32 s25, s25, s24
    v_add_u32 v7, s25, v7
    v_and_b32 v{vT3}, 15, v0
    v_lshlrev_b32 v{vT3}, 7, v{vT3}
    v_lshl_add_u32 v13, v{vT2}, 4, v{vT3}
    s_lshl_b32 s25, s23, 11
    s_add_u32 s25, s25, s24
    s_add_u32 s25, s25, 9216
    v_add_u32 v13, s25, v13
    v_lshlrev_b32 v14, 4, v0
    v_add_u32 v14, s25, v14
    v_lshlrev_b32 v5, 12, v{vT1}
    v_lshl_add_u32 v5, v{vT0}, 4, v5
    s_lshl_b32 s22, s18, 2
    s_add_u32 s22, s22, s23
    s_lshl_b32 s22, s22, 16
    s_lshl_b32 s25, s17, 7
    s_add_u32 s22, s22, s25
    s_add_u32 s22, s22, {UT}
    s_add_u32 s21, s22, 32768
    s_cmp_lg_u32 s95, 1
    s_cbranch_scc1 Ls1_nodp
    s_waitcnt vmcnt(11)
    s_add_u32 s25, s3, 64
    v_mov_b32 v8, s25
    v_mov_b32 v9, 1
    ds_write_b32 v8, v9
Ls1_nodp:
    s_waitcnt vmcnt(7)
    s_sub_u32 s25, s2, 224
    s_cmp_ge_u32 s25, {NREP}
    s_cbranch_scc1 Ls1_nofl
    s_cmp_lg_u32 s16, 4
    s_cbranch_scc1 Ls1_nofl
    s_lshl_b32 s25, s25, 2
    v_mov_b32 v8, s25
    v_mov_b32 v9, 1
    s_mov_b64 exec, 1
    global_store_dword v8, v9, s[{pDBG}:{pDBG+1}] {SC}
    s_mov_b64 exec, -1
Ls1_nofl:
    """)
    for c in range(8):
        for j in range(4): A(up(CF + 8*(c >> 1) + 2*j + (c & 1), CR + 2*c + (j >> 1), j & 1))
    A("s_waitcnt vmcnt(0)")
    g.stamp(1)
    for d in range(4):
        for n in range(5):
            A(up(KU+2*n, KR+4*n+d, 0)); A(up(KU+2*n+1, KR+4*n+d, 1))
        for t in range(2):
            A(pk("mul", U+2*t, KU+2*(t+3), CF+8*d))
            for j in range(1, 4): A(pk("fma", U+2*t, KU+2*(t+3-j), CF+8*d+2*j, U+2*t))
            A(up(KU+10, VR+4*t+d, 0)); A(up(KU+11, VR+4*t+d, 1))
            A(pk("mul", U+2*t, U+2*t, KU+10))
            A(f"v_cvt_pk_bf16_f32 v{OUT+4*t+d}, v{U+2*t}, v{U+2*t+1}")
    A(f"""
    ds_write_b128 v6, {V(OUT,4)}
    ds_write_b128 v6, {V(OUT+4,4)} offset:144
    s_waitcnt lgkmcnt(0)
    """)
    g.gsync(1, 8)
    for i in range(2):
        A(f"ds_read_b64_tr_b16 {V(OUT+4*i,2)}, v7 offset:{32*144*i}")
        A(f"ds_read_b64_tr_b16 {V(OUT+4*i+2,2)}, v7 offset:{32*144*i+4*144}")
    A(f"""
    s_waitcnt lgkmcnt(0)
    ds_write_b128 v13, {V(OUT,4)}
    ds_write_b128 v13, {V(OUT+4,4)} offset:64
    ds_read_b128 {V(OUT+8,4)}, v14
    ds_read_b128 {V(OUT+12,4)}, v14 offset:1024
    s_waitcnt lgkmcnt(0)
    buffer_store_dwordx4 {V(OUT+8,4)}, v5, s[12:15], s22 offen {SC}
    buffer_store_dwordx4 {V(OUT+12,4)}, v5, s[12:15], s21 offen {SC}
    """)
    g.stamp(2)
    A("s_cmp_lg_u32 s23, 0\ns_cbranch_scc1 Ls1_c")
    g.ready(8)
    A(f"""
Ls1_c:
    s_waitcnt vmcnt(0)
    """)
    g.stamp(3)
    g.gsync(2, 8)
    A("s_cmp_lg_u32 s23, 0\ns_cbranch_scc1 Lconv")
    g.signal("s43", 8)

def gen_conv(g):
    A = g.A; R = kconv.ConvRegs(16); CH = kconv.CH; HOFF = kconv.HOFF
    A(f"""
Lconv:
    s_setprio {opt('CPRIO', 1)}
    s_bfe_u32 s17, s16, 0x10001
    s_and_b32 s18, s16, 1              ; set
    s_lshl_b32 s22, s19, 1
    s_load_dword s23, s[{pD}:{pD+1}], s22
    s_add_u32 s19, s19, s17            ; ch
    s_cmp_eq_u32 s17, 0
    s_cselect_b32 s20, s96, s97        ; slot
    s_lshl_b32 s21, s19, 12            ; ch*4096
    v_lshlrev_b32 v2, 4, v0
    """)
    g.srd(8, pH, 576*4096)
    A(f"""
    s_lshl_b32 s25, s18, 11
    s_add_u32 s24, s25, s20
    s_add_u32 s24, s24, {HOFF}
    s_add_u32 s25, s25, s21
    s_mov_b32 m0, s24
    s_nop 0
    buffer_load_dwordx4 v2, s[8:11], s25 offen {NTB} lds
    buffer_load_dwordx4 v2, s[8:11], s25 offen offset:1024 {NTB} lds
    v_mov_b32 v4, 0
    v_mov_b32 v5, 0
    v_mov_b32 v6, 0
    v_mov_b32 v7, 0
    v_min_u32 v3, 35, v0
    v_lshlrev_b32 v3, 4, v3
    v_add_u32 v3, s20, v3
    ds_write_b128 v3, v[4:7] offset:{HOFF-576}
    s_cmp_lg_u32 s16, 4
    s_cbranch_scc1 Lc_w
    """)
    A("s_cmp_eq_u32 s95, 2\ns_cbranch_scc1 Lc_px")
    g.poll(64, 16, 14, 8, sl=opt('USLEEP', 6))
    A("s_branch Lc_pd\nLc_px:")
    g.poll(80, 4, 16, 8, sl=opt('USLEEP', 6))
    A("Lc_pd:")
    A(f"""
    v_mov_b32 v8, {SY+36}
    v_mov_b32 v9, 1
    ds_write_b32 v8, v9
Lc_w:
    """)
    g.wait_words(SY+36, 1, 8, n=1, sl=opt('USLEEP', 6))
    g.stamp(4)
    A(f"""
    s_mul_i32 s24, s18, {2*4160}
    s_add_u32 s24, s24, s20
    s_add_u32 s24, s24, 64
    s_lshl_b32 s25, s18, 2
    s_sub_u32 s25, s21, s25
    s_add_u32 s25, s25, {UT}
    """)
    for c in range(2):
        A("s_mov_b32 m0, s24\ns_nop 0")
        for i in range(4): A(f"buffer_load_dwordx4 v2, s[12:15], s25 offen offset:{1024*i} lds {SC}")
        if c == 0: A("s_add_u32 s24, s24, 4160\ns_sub_u32 s25, s25, 2")
    kconv.conv_setup(A, R, "s20")
    A(f"""
    v_subrev_u32 v{R.aB}, 64, v{R.aB}
    s_add_u32 s26, s21, {YT}
    s_lshl_b32 s24, s23, 16
    s_and_b32 s25, s23, 0xffff0000
    s_cmp_eq_u32 s17, 0
    s_cselect_b32 s23, s24, s25
    s_waitcnt vmcnt(0) lgkmcnt(0)
    """)
    g.gsync(3, 8)
    g.stamp(5)
    A("s_cmp_eq_u32 s18, 0\ns_cbranch_scc0 Lc_set1")
    kconv.conv_main(A, R, "Lc_l0", 0)
    kconv.conv_epi(A, R, 0, "s20", "s23", "s26", "s[12:15]", SC)
    A("s_branch Lc_done\nLc_set1:")
    kconv.conv_main(A, R, "Lc_l1", 1)
    kconv.conv_epi(A, R, 1, "s20", "s23", "s26", "s[12:15]", SC)
    A("Lc_done:\ns_waitcnt vmcnt(0)")
    g.stamp(6)
    g.gsync(4, 8)
    A("s_and_b32 s25, s16, 3\ns_cmp_lg_u32 s25, 0\ns_cbranch_scc1 Lattn")
    A("s_and_b32 s25, s2, 15\ns_add_u32 s25, s25, 16")
    g.signal("s25", 8)

import k2
from k2 import m16, m8, phase, maxtree
from k2 import vL8, vKM, vKL, vV, vL16, vV0, vVinc, Q1A, Q1B, Q2A, Q2B, NMA, NMB, SA, SB, PA, PB, OA, OB, KB, KL, VB
aT0, aT1, aT2, aT3 = 5, 6, 7, 8
TMP = 168
vCA, vCR, vOne = 176, 177, 178
def dma_iter(A):
    for r, off, st in ((40, 0, None), (40, 4096, "8192"), (41, 0, None), (41, 4096, "9216"), (42, 0, "s45")):
        if off:
            A(f"s_add_u32 s46, s{r}, {off}\ns_mov_b32 m0, s46\ns_add_u32 s{r}, s{r}, {st}\nbuffer_load_dwordx4 v{vL16}, s[8:11], s46 offen lds {SC}")
        else:
            A(f"s_mov_b32 m0, s{r}\ns_nop 0\nbuffer_load_dwordx4 v{vL16}, s[8:11], s{r} offen lds {SC}")
            if st: A(f"s_add_u32 s{r}, s{r}, {st}")

def gen_attn(g):
    A = g.A; name = "La"
    FLAG = SY + 40
    A(f"""
Lattn:
    s_and_b32 s17, s2, 7
    s_lshl_b32 s17, s17, 2
    s_bfe_u32 s25, s2, 0x20003
    s_add_u32 s17, s17, s25            ; h
    s_lshr_b32 s18, s2, 5              ; qb
    s_lshr_b32 s19, s16, 2             ; kg
    s_and_b32 s20, s16, 3              ; qg
    s_and_b32 s21, s17, 1              ; parity
    s_lshr_b32 s26, s17, 1             ; pair
    v_lshlrev_b32 v{vL8}, 3, v0
    v_lshlrev_b32 v{vL16}, 4, v0
    s_mul_i32 s39, s26, {PAIR}
    s_mul_i32 s28, s21, {LEFT}
    s_add_u32 s27, s39, s28
    s_add_u32 s27, s27, {KV}
    s_add_u32 s8, s{pWS}, s27
    s_addc_u32 s9, s{pWS+1}, 0
    s_mov_b32 s10, {WIN}
    s_mov_b32 s11, 0x20000
    s_lshl_b32 s22, s21, 14
    s_add_u32 s23, s22, 65536
    s_cmp_eq_u32 s21, 0
    s_cselect_b32 s24, {LEFT}, 0
    s_lshl_b32 s31, s18, 3
    s_lshl_b32 s32, s20, 1
    s_add_u32 s31, s31, s32
    s_add_u32 s32, s31, s19            ; tA
    s_xor_b32 s33, s32, 1              ; tB
    s_mul_i32 s34, s21, {MB}
    s_add_u32 s34, s34, s39
    s_lshl_b32 s35, s32, 10
    s_add_u32 s35, s35, s34
    s_lshl_b32 s36, s33, 10
    s_add_u32 s36, s36, s34
    s_add_u32 s34, s39, {LEFT}
    s_lshl_b32 s37, s32, 8
    s_add_u32 s37, s37, s34
    s_lshl_b32 s38, s33, 8
    s_add_u32 s38, s38, s34
    v_and_b32 v{aT1}, 31, v0
    s_cmp_eq_u32 s95, 1
    s_cselect_b32 s47, 5, 1
    s_mul_i32 s47, s47, s19
    s_lshl_b32 s25, s20, 10
    s_lshl_b32 s46, s47, 13
    s_add_u32 s40, s22, s25
    s_add_u32 s40, s40, s46
    s_mul_i32 s46, s47, 9216
    s_add_u32 s46, s46, s23
    s_add_u32 s41, s46, s25
    s_add_u32 s42, s46, 8192
    s_and_b32 s44, s20, 1
    s_lshl_b32 s46, s47, 1
    s_add_u32 s44, s44, s46
    s_lshl_b32 s44, s44, 10
    s_add_u32 s44, s44, s24
    s_cmp_eq_u32 s20, 0
    s_cselect_b32 s42, s42, s44
    s_cselect_b32 s45, 9, 2
    s_lshl_b32 s45, s45, 10
    v_lshrrev_b32 v{aT0}, 5, v0
    v_mul_u32_u24 v{aT3}, 288, v{aT0}
    v_lshl_add_u32 v{aT2}, v{aT1}, 4, v{aT3}
    v_add_u32 v{vV0}, s23, v{aT2}
    v_mov_b32 v{vVinc}, {4*VT}
    v_mov_b32 v{aT2}, {CONST+240}
    v_mov_b32 v{aT3}, {CONST+224}
    v_cmp_eq_u32 vcc, 18, v{aT1}
    v_subrev_u32 v{aT0}, 20, v{aT1}
    v_cmp_gt_u32 s[52:53], 8, v{aT0}
    v_cndmask_b32 v{aT2}, v{aT2}, v{aT3}, vcc
    v_mov_b32 v{aT3}, {CONST+176}
    v_cmp_lt_u32 vcc, 17, v{aT1}
    v_cndmask_b32 v{aT2}, v{aT2}, v{aT3}, s[52:53]
    s_lshl_b32 s25, s19, 12
    s_add_u32 s48, s25, s22
    v_cndmask_b32 v{vV0}, v{vV0}, v{aT2}, vcc
    v_cndmask_b32 v{vVinc}, v{vVinc}, 0, vcc
    s_lshl_b32 s25, s19, 10
    s_add_u32 s49, s25, s24
    s_mov_b32 s50, 0
    v_cmp_gt_u32 vcc, 32, v0
    s_cmp_eq_u32 s21, 0
    s_cselect_b64 s[52:53], -1, 0
    s_cselect_b64 s[54:55], 0, -1
    s_and_b64 s[56:57], s[52:53], vcc
    s_and_b64 s[58:59], s[54:55], vcc
    s_andn2_b64 s[60:61], s[52:53], vcc
    s_andn2_b64 s[62:63], s[54:55], vcc
    v_lshlrev_b32 v{aT2}, 3, v{aT1}
    s_cmp_lg_u32 s16, 0
    s_cbranch_scc1 La_w
    """)
    g.poll(0, 14, 16, TMP)
    A("s_cmp_lt_u32 s2, 224\ns_cbranch_scc1 La_w0")
    g.wait_words(SY+16, 4, TMP)
    A("La_w0:")
    A(f"""
    v_mov_b32 v{TMP}, {SY+32}
    v_mov_b32 v{TMP+1}, 1
    ds_write_b32 v{TMP}, v{TMP+1}
La_w:
    """)
    A("s_cmp_lg_u32 s19, 0\ns_cbranch_scc1 La_wy")
    g.wait_words(SY+32, 1, TMP, n=1)
    A("s_branch La_wd\nLa_wy:")
    g.wait_words(SY, 6, TMP, sl=3)
    A("La_wd:")
    g.stamp(7)
    A(f"""
    s_mov_b32 s25, 0x070304
    s_lshl_b32 s27, s95, 3
    s_lshr_b32 s25, s25, s27
    s_and_b32 s25, s25, 15
    s_cmp_eq_u32 s19, 0
    s_cselect_b32 s25, 1, s25
La_bulk:
    """)
    dma_iter(A)
    A(f"""
    s_sub_u32 s25, s25, 1
    s_cmp_lg_u32 s25, 0
    s_cbranch_scc1 La_bulk
    s_cmp_lg_u32 s95, 0
    s_cbranch_scc1 La_q
    s_mov_b32 s95, 1
    s_branch Ls1_task
La_q:
    buffer_load_dwordx2 {V(Q1A,2)}, v{vL8}, s[12:15], s35 offen {SC}
    buffer_load_dwordx2 {V(Q1A+2,2)}, v{vL8}, s[12:15], s35 offen offset:512 {SC}
    buffer_load_dwordx2 {V(Q1B,2)}, v{vL8}, s[12:15], s36 offen {SC}
    buffer_load_dwordx2 {V(Q1B+2,2)}, v{vL8}, s[12:15], s36 offen offset:512 {SC}
    buffer_load_dwordx2 {V(Q2A,2)}, v{aT2}, s[12:15], s37 offen {SC}
    buffer_load_dwordx2 {V(Q2B,2)}, v{aT2}, s[12:15], s38 offen {SC}
    v_add_u32 v{aT2}, s22, v{vL8}
    v_add_u32 v{aT3}, s24, v{vL8}
    s_waitcnt vmcnt(0)
    s_cmp_lg_u32 s19, 0
    s_cbranch_scc1 La_pf
    """)
    g.post(6, TMP)
    A(f"""
    s_branch La_p4
La_pf:
    s_add_u32 s25, s3, 64
    v_mov_b32 v{TMP}, s25
    v_mov_b32 v{TMP+1}, 2
    ds_write_b32 v{TMP}, v{TMP+1}
    s_lshr_b32 s25, s2, 3
    s_lshl_b32 s25, s25, 2
    s_add_u32 s25, s25, s20            ; 0..127
    s_mul_i32 s27, s25, {41*128}
    v_lshlrev_b32 v{TMP}, 7, v0
    v_add_u32 v{TMP+1}, s27, v{TMP}
    v_min_u32 v{TMP+1}, {WOB-4}, v{TMP+1}
    s_mov_b32 exec_hi, 0x1ff
    global_load_dword v210, v{TMP+1}, s[{pWO}:{pWO+1}]
    s_and_b32 s27, s2, 7
    s_mul_i32 s27, s27, {256*1152}
    s_mul_i32 s25, s25, {18*128}
    s_add_u32 s27, s27, s25
    v_add_u32 v{TMP+1}, s27, v{TMP}
    s_mov_b64 exec, 0x3ffff
    global_load_dword v211, v{TMP+1}, s[{pQ}:{pQ+1}]
    s_mov_b64 exec, -1
La_p4:
    """)
    for Q in (Q2A, Q2B):
        A(f"""
        v_cndmask_b32 v{Q+2}, 0, v{Q}, s[60:61]
        v_cndmask_b32 v{Q+3}, 0, v{Q+1}, s[62:63]
        v_cndmask_b32 v{Q}, 0, v{Q}, s[56:57]
        v_cndmask_b32 v{Q+1}, 0, v{Q+1}, s[58:59]
        """)
    g.wait_words(SY, 6, TMP)
    g.stamp(8)
    A(f"""
    ds_read2st64_b64 {V(KB[1],4)}, v{aT2} offset0:0 offset1:1
    ds_read_b64 {V(PA,2)}, v{aT3}
    s_waitcnt lgkmcnt(0)
    {m16(SA, KB[1], Q1A, 0)}
    {m16(SB, KB[1], Q1B, 0)}
    {m8(SA, PA, Q2A)}
    {m8(SB, PA, Q2B)}
    """)
    for i in range(12): A(f"v_mov_b32 v{OA+i}, 0")
    maxtree(A, aT0, SA)
    maxtree(A, aT1, SB)
    A(f"""
La_setm:
    v_mov_b32 v{aT2}, v{aT0}
    v_mov_b32 v{aT3}, v{aT1}
    v_add_u32 v{vKM}, s48, v{vL8}
    v_add_u32 v{vKL}, s49, v{vL8}
    v_permlane32_swap_b32 v{aT0}, v{aT2}
    v_permlane32_swap_b32 v{aT1}, v{aT3}
    v_mad_u32_u24 v{vV}, s19, v{vVinc}, v{vV0}
    ds_read2st64_b64 {V(KB[0],4)}, v{vKM} offset0:0 offset1:1
    ds_read_b64 {V(KL,2)}, v{vKL}
    v_max_f32 v{aT0}, v{aT0}, v{aT2}
    v_max_f32 v{aT1}, v{aT1}, v{aT3}
    """)
    for i in range(16): A(f"v_sub_f32 v{NMA+i}, 0, v{aT0}")
    A(f"""
    v_sub_f32 v{NMB}, 0, v{aT1}
    s_waitcnt lgkmcnt(0)
    {m16(SA, KB[0], Q1A, V(NMA,16))}
    {m8(SA, KL, Q2A)}
    """)
    for i in range(1, 16): A(f"v_sub_f32 v{NMB+i}, 0, v{aT1}")
    for i in range(16): A(f"v_mov_b32 v{OA+i}, 0")
    for i in range(16): A(f"v_mov_b32 v{OB+i}, 0")
    for i in range(8): A(f"v_mov_b32 v{PB+i}, 0")
    for i in range(8): A(f"v_mov_b32 v{VB[1]+i}, 0")
    A(f"""
    s_lshl_b32 s25, s50, 4
    s_lshl_b32 s27, s20, 2
    s_add_u32 s25, s25, s27
    s_add_u32 s25, s25, {SY+48}
    v_mov_b32 v{vCA}, s25
    v_mov_b32 v{vOne}, 1
    s_mov_b32 s30, 16
    s_cmp_lg_u32 s50, 0
    s_cbranch_scc1 La_go
    s_mov_b32 s30, 2
    s_setprio 0
La_go:
    """)
    g.stamp(9)
    A(".p2align 6\nLa_loop:")
    for j in range(4):
        b = j & 1; nb = b ^ 1
        if j == 3:
            A(f"""
            s_cmp_ge_u32 s53, s30
            s_cbranch_scc1 La_chk
La_chkd:
            """)
        koff = 2*(j+1) if j < 3 else 0
        ex = [[f"ds_read2st64_b64 {V(KB[nb],4)}, v{vKM} offset0:{koff} offset1:{koff+1}"],
              [f"ds_read_b128 {V(VB[b],4)}, v{vV} offset:{j*VT}"],
              [f"ds_read_b128 {V(VB[b]+4,4)}, v{vV} offset:{j*VT+576}"],
              []]
        if j == 0: ex[3].append(f"ds_read_b64 {V(KL+2,2)}, v{vKL} offset:512")
        if j == 3: ex[0].append(f"ds_read_b64 {V(KL,2)}, v{vKL}")
        if j == 1: ex[3] += ["s_mov_b64 exec, 1", f"ds_add_rtn_u32 v{vCR}, v{vCA}, v{vOne}", "s_mov_b64 exec, -1"]
        klp = KL + 2*(j >> 1)
        phase(A, SA, PA, [m16(SB, KB[b], Q1B, V(NMB,16)), m8(SB, klp, Q2B + 2*(j & 1)),
                          m16(OB, VB[nb], PB, V(OB,16)), m16(OB, VB[nb]+4, PB+4, V(OB,16))], ex)
        jn = (j+1) & 3
        klp = KL + 2*(jn >> 1)
        A("s_waitcnt lgkmcnt(0)")
        ex = [[], [], [], []]
        if j == 2:
            ex[0] = [f"v_readfirstlane_b32 s52, v{vCR}"]
            ex[1] = ["s_add_u32 s52, s52, 2", "s_min_u32 s53, s52, 15", "s_lshl_b32 s54, s53, 12", "s_add_u32 s54, s54, s22"]
            ex[2] = ["s_lshl_b32 s55, s53, 10", "s_add_u32 s55, s55, s24", f"v_add_u32 v{vKM}, s54, v{vL8}"]
            ex[3] = [f"v_add_u32 v{vKL}, s55, v{vL8}"]
        if j == 3:
            ex[3] = [f"v_mad_u32_u24 v{vV}, s53, v{vVinc}, v{vV0}"]
        phase(A, SB, PB, [m16(SA, KB[nb], Q1A, V(NMA,16)), m8(SA, klp, Q2A + 2*(jn & 1)),
                          m16(OA, VB[b], PA, V(OA,16)), m16(OA, VB[b]+4, PA+4, V(OA,16))], ex)
    A(f"""
    s_cmp_lt_u32 s52, 16
    s_cbranch_scc1 La_loop
    """)
    g.stamp(10)
    A(f"""
    {m16(OB, VB[1], PB, V(OB,16))}
    {m16(OB, VB[1]+4, PB+4, V(OB,16))}
    s_cmp_lg_u32 s50, 0
    s_cbranch_scc1 La_combine
    v_add_f32 v{aT0}, |v{OA}|, |v{OA+1}|
    """)
    for i in range(2, 11): A(f"v_add_f32 v{aT0}, |v{OA+i}|, v{aT0}")
    A("s_nop 1")
    for i in range(11): A(f"v_add_f32 v{aT0}, |v{OB+i}|, v{aT0}")
    A(f"""
    v_mov_b32 v{aT1}, 0x71800000
    v_cmp_nlt_f32 vcc, v{aT0}, v{aT1}
    v_mov_b32 v{aT3}, {FLAG}
    v_mov_b32 v{aT2}, 1
    s_cbranch_vccz La_noflag
    ds_write_b32 v{aT3}, v{aT2}
La_noflag:
    s_waitcnt lgkmcnt(0)
    s_barrier
    ds_read_b32 v{aT2}, v{aT3}
    s_waitcnt lgkmcnt(0)
    v_readfirstlane_b32 s25, v{aT2}
    s_cmp_lg_u32 s25, 0
    s_cbranch_scc1 La_slow
La_combine2:
    s_mul_i32 s25, s16, 3072
    s_add_u32 s25, s25, {XO}
    s_xor_b32 s27, s16, 4
    s_mul_i32 s27, s27, 3072
    s_add_u32 s27, s27, {XO}
    v_add_u32 v{aT0}, s25, v{vL16}
    v_add_u32 v{aT1}, s27, v{vL16}
    s_nop 4
    ds_write_b128 v{aT0}, {V(OB,4)}
    ds_write_b128 v{aT0}, {V(OB+4,4)} offset:1024
    ds_write_b128 v{aT0}, {V(OB+8,4)} offset:2048
    s_mul_i32 s25, s32, {36*1024}
    s_add_u32 s25, s25, {OF}
    s_lshl_b32 s27, s17, 10
    s_add_u32 s27, s27, s25
    s_lshr_b32 s28, s17, 2
    s_lshl_b32 s28, s28, 9
    s_add_u32 s28, s28, s25
    s_and_b32 s29, s17, 3
    s_lshl_b32 s29, s29, 2
    s_add_u32 s28, s28, s29
    s_add_u32 s28, s28, 32768
    s_waitcnt lgkmcnt(0)
    s_barrier
    ds_read_b128 {V(SA,4)}, v{aT1}
    ds_read_b128 {V(SA+4,4)}, v{aT1} offset:1024
    ds_read_b128 {V(SA+8,4)}, v{aT1} offset:2048
    s_waitcnt lgkmcnt(0)
    v_add_f32 v{aT0}, v{OA+10}, v{SA+10}
    v_mov_b32 v{aT1}, v{aT0}
    """)
    for i in range(10): A(f"v_add_f32 v{OA+i}, v{OA+i}, v{SA+i}")
    A(f"""
    v_permlane32_swap_b32 v{aT0}, v{aT1}
    s_nop 1
    v_rcp_f32 v{aT0}, v{aT0}
    s_nop 0
    """)
    for i in range(10): A(f"v_mul_f32 v{OA+i}, v{OA+i}, v{aT0}")
    for i in range(5): A(f"v_cvt_pk_bf16_f32 v{PA+i}, v{OA+2*i}, v{OA+2*i+1}")
    A(f"""
    buffer_store_dwordx4 {V(PA,4)}, v{vL16}, s[12:15], s27 offen {SC}
    s_mov_b32 exec_hi, 0
    buffer_store_dword v{PA+4}, v{vL16}, s[12:15], s28 offen {SC}
    s_mov_b32 exec_hi, -1
    s_lshl_b32 s51, s18, 2
    s_lshr_b32 s25, s17, 3
    s_add_u32 s51, s51, s25
    s_add_u32 s51, s51, 32
    s_branch Lp3
    """)
    A(f"""
La_chk:
    """)
    g.wait_words(SY+80, 1, TMP)
    A(f"""
    s_mov_b32 s30, 10
    s_cmp_lt_u32 s53, 10
    s_cbranch_scc1 La_chkd
    """)
    g.wait_words(SY+80, 2, TMP)
    A(f"""
    s_mov_b32 s30, 16
    s_branch La_chkd
La_combine:
    s_barrier
    s_branch La_combine2
La_slow:
    s_mov_b32 s50, 1
    v_add_u32 v{vKM}, s48, v{vL8}
    v_add_u32 v{vKL}, s49, v{vL8}
    v_mov_b32 v{aT0}, 0xff800000
    v_mov_b32 v{aT1}, 0xff800000
    s_mov_b32 s51, 8
La_maxloop:
    ds_read2st64_b64 {V(KL,4)}, v{vKL} offset0:0 offset1:1
    """)
    for j in range(4):
        A(f"""
        ds_read2st64_b64 {V(KB[0],4)}, v{vKM} offset0:{2*j} offset1:{2*j+1}
        s_waitcnt lgkmcnt(0)
        {m16(SA, KB[0], Q1A, 0)}
        {m16(SB, KB[0], Q1B, 0)}
        {m8(SA, KL+2*(j>>1), Q2A+2*(j&1))}
        {m8(SB, KL+2*(j>>1), Q2B+2*(j&1))}
        s_nop 11
        """)
        maxtree(A, aT0, SA, True)
        maxtree(A, aT1, SB, True)
    A(f"""
    v_add_u32 v{vKM}, 8192, v{vKM}
    v_add_u32 v{vKL}, 2048, v{vKL}
    s_sub_u32 s51, s51, 1
    s_cmp_lg_u32 s51, 0
    s_cbranch_scc1 La_maxloop
    v_mov_b32 v{aT2}, v{aT0}
    v_mov_b32 v{aT3}, v{aT1}
    s_lshl_b32 s25, s16, 8
    s_xor_b32 s27, s25, 1024
    v_permlane32_swap_b32 v{aT0}, v{aT2}
    v_permlane32_swap_b32 v{aT1}, v{aT3}
    v_and_b32 v{vKM}, 31, v0
    v_lshlrev_b32 v{vKM}, 2, v{vKM}
    v_add_u32 v{vKM}, {XCH}, v{vKM}
    v_max_f32 v{aT0}, v{aT0}, v{aT2}
    v_max_f32 v{aT1}, v{aT1}, v{aT3}
    v_add_u32 v{vKL}, s25, v{vKM}
    v_add_u32 v{vKM}, s27, v{vKM}
    ds_write2_b32 v{vKL}, v{aT0}, v{aT1} offset0:0 offset1:32
    s_waitcnt lgkmcnt(0)
    s_barrier
    ds_read2_b32 {V(PA,2)}, v{vKM} offset0:32 offset1:0
    s_waitcnt lgkmcnt(0)
    v_max_f32 v{aT0}, v{aT0}, v{PA}
    v_max_f32 v{aT1}, v{aT1}, v{PA+1}
    s_branch La_setm
    """)
XO = 122880

import k3
def gen_p3(g):
    A = g.A
    BW, ACC_, AF = 40, 184, 16
    A(f"""
Lp3:
    s_and_b32 s19, s2, 7
    s_lshr_b32 s20, s2, 3
    s_cmp_ge_u32 s20, 24
    s_cbranch_scc1 Lp3_s3
    s_and_b32 s17, s20, 3
    s_lshl_b32 s19, s19, 2
    s_add_u32 s17, s17, s19            ; tb
    s_lshr_b32 s18, s20, 2             ; ng
    """)
    g.srd(8, pWO, WOB)
    for i in range(3):
        A(f"""
        v_add_u32 v1, {64*i}, v0
        v_mul_u32_u24 v2, 5462, v1
        v_lshrrev_b32 v2, 16, v2
        v_mul_u32_u24 v3, 12, v2
        v_sub_u32 v1, v1, v3
        v_mul_u32_u24 v2, 1152, v2
        v_lshl_add_u32 v{4+i}, v1, 4, v2
        """)
    A(f"""
    v_subrev_u32 v5, 1024, v5
    v_subrev_u32 v6, 2048, v6
    s_mul_i32 s20, s18, 192
    s_mul_i32 s21, s16, {16*1152}
    s_add_u32 s20, s20, s21
    s_mul_i32 s21, s16, 3072
    s_mov_b32 s22, s16
Lo_wo:
    s_mov_b32 m0, s21
    s_add_u32 s22, s22, 8
    buffer_load_dwordx4 v4, s[8:11], s20 offen lds
    buffer_load_dwordx4 v5, s[8:11], s20 offen offset:1024 lds
    buffer_load_dwordx4 v6, s[8:11], s20 offen offset:2048 lds
    s_add_u32 s20, s20, {8*16*1152}
    s_add_u32 s21, s21, {8*3072}
    s_cmp_lt_u32 s22, 16
    s_cbranch_scc1 Lo_wo
    s_cmp_ge_u32 s22, 24
    s_cbranch_scc1 Lo_wo2
    s_waitcnt vmcnt(6)
    s_barrier
    """)
    g.stamp(11)
    A("s_cmp_lg_u32 s16, 7\ns_cbranch_scc1 Lo_wo2")
    g.signal("s51", 14)
    A(f"""
Lo_wo2:
    s_cmp_lt_u32 s22, 36
    s_cbranch_scc1 Lo_wo
    s_and_b32 s23, s16, 1
    s_lshr_b32 s24, s16, 1
    v_lshrrev_b32 v1, 5, v0
    v_bfe_u32 v2, v0, 2, 2
    v_bfe_u32 v3, v0, 4, 1
    v_lshlrev_b32 v3, 5, v3
    v_and_b32 v7, 3, v0
    v_lshl_add_u32 v3, v7, 3, v3
    s_lshl_b32 s25, s24, 6
    v_add_u32 v3, s25, v3
    v_lshl_add_u32 v7, v1, 2, v2
    v_mul_u32_u24 v7, 192, v7
    v_add_u32 v8, v7, v3
    v_add_u32 v9, {16*18*192}, v8
    v_mul_u32_u24 v7, 72, v1
    v_lshrrev_b32 v10, 1, v2
    v_mul_u32_u24 v10, 18, v10
    v_add_u32 v7, v7, v10
    v_and_b32 v10, 1, v2
    v_add3_u32 v7, v7, v10, 16
    v_mul_u32_u24 v7, 192, v7
    v_add_u32 v10, v7, v3
    v_add_u32 v11, {288*192}, v10
    v_lshlrev_b32 v12, 4, v0
    """)
    g.srd(44, pOUT, OUTB)
    A(f"""
    s_waitcnt vmcnt(0)
    s_barrier
    s_cmp_ge_u32 s16, 6
    s_cbranch_scc1 Lo_nopre
    """)
    for s_ in range(36):
        for e in range(2):
            if s_ < 32: base, off = (8, (18*s_ + 8*e)*192) if s_ < 16 else (9, (18*(s_-16) + 8*e)*192)
            else: base, off = (10 + ((s_-32) >> 1), (144*((s_-32) & 1) + 36*e)*192)
            A(f"ds_read_b64_tr_b16 {V(BW+4*s_+2*e,2)}, v{base} offset:{off}")
        if s_ % 6 == 5: A("s_waitcnt lgkmcnt(4)")
    A("Lo_nopre:")
    for i in range(16): A(f"v_mov_b32 v{ACC_+i}, 0")
    TR = 81920
    A(f"""
    s_mul_i32 s20, s17, {2*36*1024}
    s_add_u32 s20, s20, {OF}
    s_mul_i32 s21, s23, {36*1024}
    s_add_u32 s20, s20, s21
    s_lshl_b32 s21, s24, 10
    s_add_u32 s20, s20, s21
    s_lshl_b32 s21, s23, 10
    v_add_u32 v13, s21, v12
    v_and_b32 v1, 31, v0
    s_lshl_b32 s21, s23, 5
    v_add_u32 v1, s21, v1
    v_mul_u32_u24 v1, 208, v1
    v_lshrrev_b32 v2, 5, v0
    v_lshl_add_u32 v1, v2, 3, v1
    s_lshl_b32 s21, s24, 6
    s_add_u32 s21, s21, {TR}
    v_add_u32 v200, s21, v1
    s_mul_i32 s26, s17, {64*2304}
    s_mul_i32 s22, s18, 192
    s_add_u32 s26, s26, s22
    s_lshl_b32 s22, s16, 7
    """)
    for i in range(2):
        A(f"""
        v_add_u32 v1, s22, v0
        v_add_u32 v1, {64*i}, v1
        v_mul_u32_u24 v2, 5462, v1
        v_lshrrev_b32 v2, 16, v2
        v_mul_u32_u24 v3, 12, v2
        v_sub_u32 v1, v1, v3
        v_lshlrev_b32 v1, 4, v1
        v_mul_u32_u24 v3, 208, v2
        v_add_u32 v{4+i}, v3, v1
        v_add_u32 v{4+i}, {TR}, v{4+i}
        v_mul_u32_u24 v3, 2304, v2
        v_add_u32 v{6+i}, v3, v1
        """)
    A("s_lshl_b32 s21, s16, 10\ns_waitcnt lgkmcnt(0)")
    g.stamp(12)
    A("s_cmp_lg_u32 s16, 7\ns_cbranch_scc1 Lp3_h\ns_add_u32 s25, s19, 32")
    g.poll("s25", 4, 8, 16)
    A("Lp3_h:\ns_barrier")
    g.stamp(13)
    for rr in range(9):
        A(f"""
        s_mov_b32 m0, s21
        s_add_u32 s21, s21, 8192
        buffer_load_dwordx4 v12, s[12:15], s20 offen lds {SC}
        s_add_u32 s20, s20, 4096
        """)
    for c in range(3):
        A(f"s_waitcnt vmcnt({6-3*c})\ns_barrier")
        if c == 0: A(f"s_cmp_ge_u32 s16, 6\ns_cbranch_scc1 Lo_idle")
        if c == 2: A(f"v_add_u32 v13, 49152, v13")
        for half in range(2):
            for i in range(6):
                s_ = 12*c + 6*half + i
                off = 2048*s_ - (49152 if c == 2 else 0)
                A(f"ds_read_b128 {V(AF+4*i,4)}, v13 offset:{off}")
            for i in range(6):
                s_ = 12*c + 6*half + i
                A(f"s_waitcnt lgkmcnt({5-i})")
                A(f"v_mfma_f32_32x32x16_bf16 {V(ACC_,16)}, {V(BW+4*s_,4)}, {V(AF+4*i,4)}, {V(ACC_,16)}")
    g.stamp(14)
    A("s_nop 11")
    for q in range(4):
        A(f"""
        v_cvt_pk_bf16_f32 v{AF+2*q}, v{ACC_+4*q}, v{ACC_+4*q+1}
        v_cvt_pk_bf16_f32 v{AF+2*q+1}, v{ACC_+4*q+2}, v{ACC_+4*q+3}
        ds_write_b64 v200, {V(AF+2*q,2)} offset:{16*q}
        """)
    A(f"""
    s_waitcnt lgkmcnt(0)
    s_barrier
    ds_read_b128 {V(AF,4)}, v4
    ds_read_b128 {V(AF+4,4)}, v5
    s_waitcnt lgkmcnt(1)
    buffer_store_dwordx4 {V(AF,4)}, v6, s[44:47], s26 offen
    s_waitcnt lgkmcnt(0)
    buffer_store_dwordx4 {V(AF+4,4)}, v7, s[44:47], s26 offen
    s_branch Lfin
Lo_idle:
    s_waitcnt vmcnt(3)
    s_barrier
    s_waitcnt vmcnt(0)
    s_barrier
    s_branch Lfin
Lp3_s3:
    s_sub_u32 s20, s20, 24
    s_lshl_b32 s17, s19, 3
    s_add_u32 s17, s17, s20
    s_mov_b64 s[6:7], s[{pOUT}:{pOUT+1}]
    s_mov_b64 s[48:49], s[{pWS}:{pWS+1}]
    s_mov_b32 s30, s51
    s_mov_b64 s[50:51], s[{pQ}:{pQ+1}]
    """)
    g.poll(16, 16, 18, 16)
    A("s_barrier")
    g.stamp(11)
    A("s_cmp_lg_u32 s16, 7\ns_cbranch_scc1 Ls3_go")
    g.signal("s30", 14)
    A("s_waitcnt vmcnt(0)\nLs3_go:")
    k3.gen_stage3(A, "Ls3", False, SC)
    A("Lfin:")
    g.end()

def gen(name, dbg=False):
    g = G(dbg); A = g.A
    A("Lcode_begin:")
    A(f"""
    s_cmp_ge_u32 s2, 256
    s_cbranch_scc1 Lend
    s_load_dwordx16 s[64:79], s[0:1], 0
    s_load_dwordx8 s[80:87], s[0:1], 64
    v_lshrrev_b32 v1, 6, v0
    v_and_b32 v0, 63, v0
    v_readfirstlane_b32 s16, v1
    """)
    if dbg: A(f"v_mov_b32 v{vST}, 0")
    g.stamp(0)
    A(f"""
    s_lshl_b32 s3, s16, 2
    s_add_u32 s3, s3, {SY}
    s_and_b32 s94, s3, {0xffffffff & ~15}
    s_cmp_ge_u32 s2, 224
    s_cbranch_scc1 Ls1
    """)
    gen_gemm(g)
    A("Ls1:")
    gen_stage1(g)
    gen_conv(g)
    gen_attn(g)
    gen_p3(g)
    A("Lend:\ns_endpgm\nLcode_end:")
    return A.text()

if __name__ == "__main__":
    import sys
    out = sys.argv[1]; dbg = len(sys.argv) > 2 and sys.argv[2] == "dbg"
    name = "concat_heads__softmax_full_mha__ssm_conv_h3__prompt_kernel"
    HDR = open("concat_heads__softmax_full_mha__ssm_conv_h3__prompt.s.ref").read().split("; Override launch")[0]
    s = HDR
    if dbg or 'list' in EXP: s += f"; @launch kernel={name} grid=(256,1,1) block=(512,1,1) lds={LDS_BYTES}\n"
    else: s += f"; @launch grid=(256,1,1) block=(512,1,1) lds={LDS_BYTES}\n"
    s += '.amdgcn_target "amdgcn-amd-amdhsa--gfx950"\n.text\n' + kernel_head(name) + gen(name, dbg)
    s += '.section .rodata,"a"\n' + kernel_desc(name, NVGPR, 100)
    open(out, "w").write(s)
```

```python
import os, struct, math
from asmlib import *
from layout import *
import kconv
EXP = os.environ.get('FEXP', '').split(',')
def opt(name, default): return int(os.environ.get(name, default))

CS_BITS = struct.unpack("<I", struct.pack("<f", math.log2(math.e)/math.sqrt(18)))[0]
XB, WB, OUTB, WOB = 2048*1152, 576*3456, 2048*2304, 576*1152
NVGPR = 216
LDS_BYTES = 163840
vST = 215
pX, pW, pWO, pQ, pK, pV, pSH, pH, pD, pOUT, pDBG, pWS = [64+2*i for i in range(12)]
WIN = 65536 + VSZ + 16384
CONST = WIN
UC = WIN + 4352
XCH = WIN + 5376
SY = WIN + 7424
SC = "sc1"
NTG = 'nt' if 'ntg' in EXP else ''
NTB = '' if 'nontb' in EXP else 'nt'
SPIN = 200000
NREP = opt('NREP', 8)

class G:
    def __init__(self, dbg):
        self.A = Asm(); self.dbg = dbg; self.n = 0
    def lab(self, p="L"):
        self.n += 1; return f"{p}{self.n}"
    def stamp(self, i):
        if self.dbg:
            self.A(f"""
            s_memrealtime s[88:89]
            s_memtime s[90:91]
            s_waitcnt lgkmcnt(0)
            v_writelane_b32 v{vST}, s88, {i}
            v_writelane_b32 v{vST}, s90, {32+i}
            """)
    def srd(self, d, p, n):
        self.A(f"s_mov_b32 s{d}, s{p}\ns_mov_b32 s{d+1}, s{p+1}\ns_mov_b32 s{d+2}, {n}\ns_mov_b32 s{d+3}, 0x20000")
    def end(self):
        A = self.A
        if self.dbg:
            A("s_mov_b64 exec, -1\ns_waitcnt vmcnt(0)")
            self.stamp(31)
            A(f"""
            s_lshl_b32 s25, s2, 3
            s_add_u32 s25, s25, s16
            s_lshl_b32 s25, s25, 8
            s_add_u32 s25, s25, {STAMP}
            v_lshlrev_b32 v1, 2, v0
            buffer_store_dword v{vST}, v1, s[12:15], s25 offen
            """)
        A("s_endpgm")
    def post(self, val, t):
        self.A(f"""
        v_mov_b32 v{t}, s3
        v_mov_b32 v{t+1}, {val}
        ds_write_b32 v{t}, v{t+1}
        """)
    def wait_words(self, addr, val, t, n=4, sl=1):
        l = self.lab("Lw"); d = self.lab("Ld")
        rd = f"ds_read_b128 {V(t,4)}, v{t+4}" if n == 4 else f"ds_read_b32 v{t}, v{t+4}"
        mn = f"v_min_u32 v{t}, v{t}, v{t+1}\nv_min3_u32 v{t}, v{t}, v{t+2}, v{t+3}\ns_nop 0" if n == 4 else ""
        self.A(f"""
        v_mov_b32 v{t+4}, {addr}
        s_mov_b32 s93, {SPIN}
{l}:
        {rd}
        s_waitcnt lgkmcnt(0)
        {mn}
        v_readfirstlane_b32 s92, v{t}
        s_cmp_ge_u32 s92, {val}
        s_cbranch_scc1 {d}
        s_sleep {sl}
        s_sub_u32 s93, s93, 1
        s_cmp_lg_u32 s93, 0
        s_cbranch_scc1 {l}
{d}:
        """)
    def gsync(self, val, t):
        self.post(val, t)
        self.wait_words("s94", val, t)
    def ready(self, t):
        l = self.lab("Lr"); d = self.lab("Ld")
        self.A(f"""
        v_and_b32 v{t+1}, {NREP-1}, v0
        v_lshlrev_b32 v{t+1}, 2, v{t+1}
        s_mov_b32 s93, {SPIN}
{l}:
        global_load_dword v{t}, v{t+1}, s[{pDBG}:{pDBG+1}] {SC}
        s_waitcnt vmcnt(0)
        v_cmp_eq_u32 vcc, 0, v{t}
        s_nop 3
        s_cmp_eq_u64 vcc, 0
        s_cbranch_scc1 {d}
        s_sleep 2
        s_sub_u32 s93, s93, 1
        s_cmp_lg_u32 s93, 0
        s_cbranch_scc1 {l}
{d}:
        """)
    def signal(self, sidx, t):
        self.A(f"""
        s_lshl_b32 s92, {sidx}, 8
        s_add_u32 s92, s92, {CNT}
        v_lshlrev_b32 v{t}, 15, v0
        v_mov_b32 v{t+1}, 1
        s_mov_b64 exec, {(1 << NREP) - 1}
        buffer_atomic_add v{t+1}, v{t}, s[12:15], s92 offen {SC}
        s_mov_b64 exec, -1
        """)
    def poll(self, first, n, target, t, sl=None):
        l = self.lab("Lp"); d = self.lab("Ld")
        self.A(f"""
        v_min_u32 v{t+1}, {n-1}, v0
        v_add_u32 v{t+1}, {first}, v{t+1}
        v_lshlrev_b32 v{t+1}, 8, v{t+1}
        s_mov_b32 s93, {SPIN}
        s_and_b32 s92, s2, {NREP-1}
        s_lshl_b32 s92, s92, 15
        s_add_u32 s92, s92, {CNT}
        s_mov_b64 exec, {(1 << n) - 1}
{l}:
        buffer_load_dword v{t}, v{t+1}, s[12:15], s92 offen {SC}
        s_waitcnt vmcnt(0)
        v_cmp_le_u32 vcc, {target}, v{t}
        s_nop 3
        s_cmp_eq_u64 vcc, exec
        s_cbranch_scc1 {d}
        s_sleep {sl or opt('PSLEEP', 2)}
        s_sub_u32 s93, s93, 1
        s_cmp_lg_u32 s93, 0
        s_cbranch_scc1 {l}
{d}:
        s_mov_b64 exec, -1
        """)

vT0, vT1, vT2, vT3, vTok, vHf = 1, 2, 3, 4, 5, 6
vXb, vWb, vX, vW, vEA, FR, ACC, PK = 8, 12, 14, 18, 20, 36, 68, 132
RING = 98304
def XF(b, i): return FR + 16*b + 4*i
def WF(b, j): return FR + 16*b + 8 + 4*j
def acc(i, j): return ACC + 16*(2*i + j)
def g_reads(b, s):
    return [f"ds_read_b128 {V(XF(b,0),4)}, v{vX+s}",
            f"ds_read_b64_tr_b16 {V(WF(b,0),2)}, v{vW} offset:{16384 + 4096*s}",
            f"ds_read_b64_tr_b16 {V(WF(b,0)+2,2)}, v{vW} offset:{16384 + 4096*s + 1024}",
            f"ds_read_b64_tr_b16 {V(WF(b,1),2)}, v{vW+1} offset:{16384 + 4096*s}",
            f"ds_read_b64_tr_b16 {V(WF(b,1)+2,2)}, v{vW+1} offset:{16384 + 4096*s + 1024}",
            f"ds_read_b128 {V(XF(b,1),4)}, v{vX+s} offset:4096"]
def g_mf(b, i, j, vtype):
    a, bb = (XF(b,i), WF(b,j)) if vtype else (WF(b,j), XF(b,i))
    return f"v_mfma_f32_32x32x16_bf16 {V(acc(i,j),16)}, {V(a,4)}, {V(bb,4)}, {V(acc(i,j),16)}"
def g_setaddr(A):
    for s in range(4): A(f"v_add_u32 v{vX+s}, s30, v{vXb+s}")
    for j in range(2): A(f"v_add_u32 v{vW+j}, s30, v{vWb+j}")
def g_loop(g, name, vtype):
    A = g.A
    A("s_mov_b32 s31, 9\ns_barrier")
    for r in g_reads(0, 0): A(r)

    A(f".p2align 6\n{name}:")
    for s in range(4):
        b = s & 1
        A("s_waitcnt lgkmcnt(0)")
        A(g_mf(b, 0, 0, vtype))
        if s < 3:
            rd = g_reads(b ^ 1, s+1)
            for r in rd[:3]: A(r)
            A(g_mf(b, 0, 1, vtype))
            for r in rd[3:]: A(r)
            A(g_mf(b, 1, 0, vtype)); A(g_mf(b, 1, 1, vtype))
        else:
            A(f"""
            s_add_u32 s30, s30, 32768
            s_cmp_eq_u32 s30, {RING}
            s_cselect_b32 s30, 0, s30
            s_sub_u32 s31, s31, 1
            s_cmp_eq_u32 s31, 0
            s_cbranch_scc1 {name}_nb
            s_barrier
{name}_nb:
            """)
            g_setaddr(A)
            A(g_mf(b, 0, 1, vtype))
            rd = g_reads(0, 0)
            for r in rd[:3]: A(r)
            A(g_mf(b, 1, 0, vtype))
            for r in rd[3:]: A(r)
            A(g_mf(b, 1, 1, vtype))
    A(f"s_cbranch_scc0 {name}")
    g.post(1, vT0)

def ld_chunk(g, skip=True):
    A = g.A; l = g.lab("Lk")
    if skip: A(f"s_cmp_lg_u32 s95, 0\ns_cbranch_scc1 {l}")
    A(f"""
    s_mov_b32 m0, s42
    s_add_u32 s26, s40, 8192
    buffer_load_dwordx4 v8, s[8:11], s40 offen lds
    s_add_u32 s27, s40, 16384
    buffer_load_dwordx4 v9, s[8:11], s26 offen offset:1024 lds
    s_add_u32 s26, s40, 24576
    buffer_load_dwordx4 v8, s[8:11], s27 offen offset:2048 lds
    s_add_u32 s28, s42, 16384
    buffer_load_dwordx4 v9, s[8:11], s26 offen offset:3072 lds
    s_mov_b32 m0, s28
    s_add_u32 s26, s41, {13824-1024}
    buffer_load_dwordx4 v10, s[44:47], s41 offen lds
    s_add_u32 s27, s41, {2*(13824-1024)}
    buffer_load_dwordx4 v10, s[44:47], s26 offen offset:1024 lds
    s_add_u32 s26, s41, {3*(13824-1024)}
    buffer_load_dwordx4 v10, s[44:47], s27 offen offset:2048 lds
    s_add_u32 s40, s40, 128
    buffer_load_dwordx4 v10, s[44:47], s26 offen offset:3072 lds
    s_add_u32 s41, s41, {64*3456}
    s_add_u32 s24, s24, 1
    s_cmp_eq_u32 s24, 9
    s_cselect_b32 s26, 1152, 0
    s_cselect_b32 s27, {WB}, 0
    s_sub_u32 s40, s40, s26
    s_sub_u32 s41, s41, s27
    s_add_u32 s42, s42, 32768
    s_cmp_ge_u32 s42, {RING}
    s_cselect_b32 s26, {RING}, 0
    s_sub_u32 s42, s42, s26
{l}:
    """)

def gen_gemm(g):
    A = g.A
    ROT = opt('ROT', 1)
    A(f"""
    s_and_b32 s17, s2, 7               ; xcd
    s_lshr_b32 s18, s2, 3              ; idx 0..27
    s_and_b32 s19, s17, 3
    s_lshl_b32 s19, s19, 2
    s_and_b32 s20, s18, 3
    s_add_u32 s19, s19, s20            ; mb
    s_lshr_b32 s21, s17, 2
    s_mul_i32 s21, s21, 7
    s_lshr_b32 s22, s18, 2
    s_add_u32 s21, s21, s22            ; ng
    s_cmp_lt_u32 s16, 4
    s_cbranch_scc1 Lg_compute
    s_and_b32 s23, s16, 3              ; u
    """)
    if ROT:
        A("""
        s_mul_i32 s24, s20, 5
        s_lshr_b32 s24, s24, 1
        s_add_u32 s24, s24, s22
        s_cmp_ge_u32 s24, 9
        s_cselect_b32 s25, 9, 0
        s_sub_u32 s24, s24, s25
        """)
    else: A("s_mov_b32 s24, 0")
    A(f"""
    s_lshl_b32 s25, s19, 7
    s_lshl_b32 s26, s23, 5
    s_add_u32 s25, s25, s26
    s_mul_i32 s25, s25, 1152
    s_lshl_b32 s26, s24, 7
    s_add_u32 s40, s25, s26            ; sX
    s_lshl_b32 s25, s24, 2
    s_add_u32 s25, s25, s23
    s_mul_i32 s25, s25, {16*3456}
    s_lshl_b32 s26, s21, 8
    s_add_u32 s41, s25, s26            ; sW
    s_lshl_b32 s42, s23, 12
    v_lshrrev_b32 v{vT0}, 3, v0
    v_mul_u32_u24 v{vT0}, 1152, v{vT0}
    v_lshrrev_b32 v{vT1}, 4, v0
    v_and_b32 v{vT2}, 7, v0
    v_xor_b32 v{vT2}, v{vT2}, v{vT1}
    v_lshl_add_u32 v8, v{vT2}, 4, v{vT0}
    v_xor_b32 v{vT2}, 4, v{vT2}
    v_lshl_add_u32 v9, v{vT2}, 4, v{vT0}       ; odd i
    v_mul_u32_u24 v{vT0}, 3456, v{vT1}
    v_and_b32 v{vT2}, 15, v0
    v_lshlrev_b32 v{vT1}, 2, v{vT1}
    v_xor_b32 v{vT2}, v{vT2}, v{vT1}
    v_lshl_add_u32 v10, v{vT2}, 4, v{vT0}      ; W addr
    s_mov_b32 s95, 0
    s_setprio {opt('LPRIO', 0)}
    s_waitcnt lgkmcnt(0)
    """)
    g.srd(8, pX, XB); g.srd(44, pW, WB)
    g.stamp(18)
    ld_chunk(g, False); ld_chunk(g, False)
    g.stamp(19)
    A(f"""
    s_mul_i32 s17, s2, 9363
    s_lshr_b32 s17, s17, 16
    s_mul_i32 s18, s17, 7
    s_sub_u32 s18, s2, s18             ; cb
    s_and_b32 s43, s2, 15
    s_add_u32 s43, s43, 64
    s_lshl_b32 s19, s2, 1
    s_bfe_u32 s25, s2, 0x10003
    s_lshl_b32 s25, s25, 14
    s_add_u32 s96, s25, 40960
    s_add_u32 s97, s25, {65536+46080}  ; V tail
    s_branch Ls1_go
Lg_compute:
    s_and_b32 s23, s16, 1              ; wm
    s_lshr_b32 s24, s16, 1             ; wn
    v_and_b32 v{vTok}, 31, v0
    v_lshrrev_b32 v{vHf}, 5, v0
    s_lshl_b32 s25, s23, 13
    v_lshlrev_b32 v{vT0}, 7, v{vTok}
    v_add_u32 v{vT0}, s25, v{vT0}
    v_bfe_u32 v{vT1}, v0, 1, 3
    v_xor_b32 v{vT1}, v{vT1}, v{vHf}
    """)
    for s in range(4):
        A(f"v_xor_b32 v{vT2}, {2*s}, v{vT1}\nv_lshl_add_u32 v{vXb+s}, v{vT2}, 4, v{vT0}")
    A(f"""
    v_bfe_u32 v{vT0}, v0, 2, 2
    v_lshl_add_u32 v{vT1}, v{vHf}, 3, v{vT0}
    v_lshlrev_b32 v{vT1}, 8, v{vT1}
    v_bfe_u32 v{vT2}, v0, 4, 1
    v_lshl_add_u32 v{vT1}, v{vT2}, 5, v{vT1}
    v_and_b32 v{vT2}, 3, v0
    v_lshl_add_u32 v{vT1}, v{vT2}, 3, v{vT1}
    s_lshl_b32 s25, s24, 1
    v_xor_b32 v{vT2}, s25, v{vT0}
    v_lshl_add_u32 v{vWb}, v{vT2}, 6, v{vT1}
    v_xor_b32 v{vT2}, 1, v{vT2}
    v_lshl_add_u32 v{vWb+1}, v{vT2}, 6, v{vT1}
    s_mov_b32 s30, 0
    s_waitcnt lgkmcnt(0)
    """)
    g.srd(12, pWS, WS_END)
    gen_init_misc(g, PK+8)
    g_setaddr(A)
    for i in range(64): A(f"v_mov_b32 v{ACC+i}, 0")
    A(f"""
    s_lshl_b32 s26, s19, 2
    s_lshl_b32 s27, s23, 1
    s_add_u32 s26, s26, s27            ; T0
    s_waitcnt lgkmcnt(0)
    s_cmp_ge_u32 s21, 9
    s_cbranch_scc1 Lg_vtype
    s_lshl_b32 s27, s21, 5
    s_lshl_b32 s28, s24, 4
    s_add_u32 s27, s27, s28
    v_add_u32 v{vT0}, s27, v{vHf}      ; G0
    s_lshl_b32 s28, s26, 10
    s_lshl_b32 s29, s26, 8
    s_add_u32 s29, s29, {LEFT}
    v_lshlrev_b32 v{vTok}, 3, v{vTok}
    v_add_u32 v{PK}, s29, v{vTok}
    v_add_u32 v{PK+1}, s28, v{vTok}
    v_add_u32 v{PK+2}, {MB-1280}, v{PK+1}
    v_mov_b32 v{PK+3}, 256
    v_mov_b32 v{PK+4}, 1024
    s_mov_b32 s32, {PAIR}
    """)
    for jg in range(8):
        A(f"""
        v_add_u32 v{vT1}, {8*(jg>>2) + 2*(jg&3)}, v{vT0}
        v_mul_u32_u24 v{vT2}, 7282, v{vT1}
        v_lshrrev_b32 v{vT2}, 16, v{vT2}
        v_mul_u32_u24 v{vT3}, 9, v{vT2}
        v_sub_u32 v{vT1}, v{vT1}, v{vT3}
        v_cmp_lt_u32 vcc, 4, v{vT1}
        v_cmp_eq_u32 s[34:35], 4, v{vT1}
        v_mul_u32_u24 v{vT2}, s32, v{vT2}
        v_cndmask_b32 v{vT3}, v{PK+1}, v{PK+2}, vcc
        v_lshl_add_u32 v{vT3}, v{vT1}, 8, v{vT3}
        v_cndmask_b32 v{vT3}, v{vT3}, v{PK}, s[34:35]
        v_cndmask_b32 v{vT1}, v{PK+4}, v{PK+3}, s[34:35]
        v_add_u32 v{vEA+jg}, v{vT2}, v{vT3}
        v_add_u32 v{vEA+8+jg}, v{vEA+jg}, v{vT1}
        """)
    g.stamp(1)
    g_loop(g, "Lg_qk", False)
    g.stamp(2)
    A(f"""
    s_lshl_b32 s27, s21, 2
    s_lshl_b32 s28, s24, 1
    s_add_u32 s27, s27, s28
    s_cmp_lt_u32 s27, 18
    s_cselect_b32 s28, {CS_BITS}, 1.0
    s_nop 7
    """)
    n = 0
    for i in range(2):
        for j in range(2):
            for q in range(4):
                a = acc(i, j) + 4*q
                p = PK + 2*(n % 8); n += 1
                for e in range(4): A(f"v_mul_f32 v{a+e}, s28, v{a+e}")
                A(f"v_cvt_pk_bf16_f32 v{p}, v{a}, v{a+1}\nv_cvt_pk_bf16_f32 v{p+1}, v{a+2}, v{a+3}")
                A(f"buffer_store_dwordx2 {V(p,2)}, v{vEA+8*i+4*j+q}, s[12:15], 0 offen {SC}")
    A(f"""
    s_branch Lg_done
Lg_vtype:
    s_sub_u32 s27, s21, 9
    s_lshl_b32 s27, s27, 7
    s_lshl_b32 s28, s24, 6
    s_add_u32 s27, s27, s28
    s_mul_i32 s28, s26, 36864
    s_add_u32 s28, s28, {VG}
    v_mul_u32_u24 v{vT3}, 9216, v{vHf}
    v_add_u32 v{vT0}, s27, v{vTok}
    v_lshl_add_u32 v{vEA}, v{vT0}, 4, v{vT3}
    """)
    g.stamp(1)
    g_loop(g, "Lg_v", True)
    g.stamp(2)
    A(f"""
    s_cmp_ge_u32 s27, 576
    s_cbranch_scc1 Lg_done
    s_nop 7
    """)
    n = 0
    for i in range(2):
        for j in range(2):
            for m in range(2):
                a = acc(i, j) + 8*m
                p = PK + 4*(n % 4); n += 1
                for e in range(4): A(f"v_cvt_pk_bf16_f32 v{p+e}, v{a+2*e}, v{a+2*e+1}")
                A(f"s_add_u32 s29, s28, {i*36864+m*18432}")
                A(f"buffer_store_dwordx4 {V(p,4)}, v{vEA}, s[12:15], s29 offen offset:{512*j} {SC}")
    A(f"""
Lg_done:
    s_setprio 2
    """)
    g.stamp(15)
    A("s_cmp_lg_u32 s16, 0\ns_cbranch_scc1 Lg_d2")
    g.ready(8)
    A("Lg_d2:\ns_waitcnt vmcnt(0) lgkmcnt(0)")
    g.stamp(3)
    g.gsync(5, 8)
    A("s_cmp_lg_u32 s16, 0\ns_cbranch_scc1 Lattn")
    g.stamp(16)
    g.signal("s21", 8)
    if g.dbg: A("s_waitcnt vmcnt(0)")
    g.stamp(17)
    A("s_branch Lattn")

def gen_init_misc(g, t):
    A = g.A
    for i in range(2):
        A(f"""
        s_and_b32 s25, s16, 3
        s_lshl_b32 s25, s25, 7
        s_add_u32 s25, s25, {64*i-14 & 0xffffffff}
        v_add_u32 v{t+4}, s25, v0
        v_mul_u32_u24 v{t+5}, 1821, v{t+4}
        v_lshrrev_b32 v{t+5}, 16, v{t+5}
        v_mul_u32_u24 v{t+5}, 36, v{t+5}
        v_cmp_eq_u32 s[34:35], v{t+5}, v{t+4}
        v_cmp_gt_u32 vcc, {36*8}, v{t+4}
        v_mov_b32 v{t+5}, 0x3f803f80
        v_lshlrev_b32 v{t+4}, 4, v{t+4}
        s_and_b64 vcc, vcc, s[34:35]
        v_add_u32 v{t+4}, {CONST+224}, v{t+4}
        v_cndmask_b32 v{t}, 0, v{t+5}, vcc
        v_cndmask_b32 v{t+1}, 0, v{t+5}, vcc
        v_cndmask_b32 v{t+2}, 0, v{t+5}, vcc
        v_cndmask_b32 v{t+3}, 0, v{t+5}, vcc
        ds_write_b128 v{t+4}, {V(t,4)}
        """)

def gen_stage1(g):
    A = g.A
    KR, VR, CR, CF, KU, UU, OUT = 16, 36, 44, 60, 92, 104, 112
    def up(dst, src, hi): return f"v_and_b32 v{dst}, 0xffff0000, v{src}" if hi else f"v_lshlrev_b32 v{dst}, 16, v{src}"
    A(f"""
    v_mov_b32 v8, 0
    v_mov_b32 v9, 0
    v_mov_b32 v10, 0
    s_and_b32 s23, s16, 3
    s_mov_b32 s95, 1
    s_sub_u32 s17, s2, 224             ; tb
    s_lshr_b32 s25, s16, 2
    s_add_u32 s18, s25, 7              ; cb
    s_lshl_b32 s19, s17, 1
    s_add_u32 s19, s19, s25
    s_and_b32 s43, s19, 3
    s_add_u32 s43, s43, 80
    s_lshl_b32 s19, s19, 1
    s_add_u32 s19, s19, 448
    s_lshl_b32 s96, s25, 16
    s_add_u32 s97, s96, 24576
    s_getpc_b64 s[26:27]
Lpc0:
    s_add_u32 s26, s26, Lcode_begin-Lpc0
    s_addc_u32 s27, s27, -1
    s_lshl_b32 s25, s16, 12
    v_lshlrev_b32 v12, 7, v0
    v_and_b32 v12, 0xfff, v12
    v_add_u32 v12, s25, v12
    v_min_u32 v12, Lcode_end-Lcode_begin-4, v12
    v_mov_b32 v15, s27
    v_add_co_u32 v14, vcc, s26, v12
    s_nop 1
    v_addc_co_u32 v15, vcc, 0, v15, vcc
    global_load_dword v210, v[14:15], off
    s_waitcnt lgkmcnt(0)
    """)
    g.srd(8, pX, XB); g.srd(44, pW, WB)
    A(f"""
Ls1_go:
    v_and_b32 v{vT0}, 7, v0            ; cc
    v_lshrrev_b32 v{vT1}, 3, v0        ; tg
    s_lshl_b32 s20, s17, 3
    s_add_u32 s20, s20, s23
    s_mul_i32 s20, s20, {8*1152}
    s_lshl_b32 s21, s18, 7
    s_add_u32 s20, s20, s21
    v_mul_u32_u24 v{vT2}, 1152, v{vT1}
    v_lshl_add_u32 v{vT2}, v{vT0}, 4, v{vT2}
    v_add_u32 v6, s20, v{vT2}          ; v rows
    v_subrev_u32 v7, {3*1152}, v6
    s_add_u32 s99, s97, 9344
    s_lshl_b32 s25, s23, 10
    s_add_u32 s25, s25, s99
    v_lshlrev_b32 v14, 4, v0
    """)
    g.srd(48, pK, XB); g.srd(52, pV, XB); g.srd(60, pH, 576*4096)
    g.stamp(23)
    A(f"""
    s_mov_b32 m0, s25
    s_add_u32 s26, s25, 4096
    buffer_load_dwordx4 v7, s[48:51], 0 offen {NTB} lds
    s_mov_b32 m0, s26
    v_add_u32 v7, {32*1152}, v7
    s_add_u32 s26, s25, 9216
    buffer_load_dwordx4 v7, s[48:51], 0 offen {NTB} lds
    s_mov_b32 m0, s26
    s_add_u32 s26, s26, 4096
    buffer_load_dwordx4 v6, s[52:55], 0 offen {NTB} lds
    s_mov_b32 m0, s26
    s_mov_b32 s27, {32*1152}
    buffer_load_dwordx4 v6, s[52:55], s27 offen {NTB} lds
    v_add_u32 v7, {32*1152}, v7
    s_lshl_b32 s21, s18, 9
    v_add_u32 v6, s21, v14
    s_cmp_eq_u32 s23, 0
    s_cselect_b32 s56, s{pK}, s{pSH}
    s_cselect_b32 s57, s{pK+1}, s{pSH+1}
    s_cselect_b32 s58, s50, {576*8}
    s_mov_b32 s59, 0x20000
    s_cselect_b64 vcc, -1, 0
    s_cselect_b32 s26, 8, 17
    s_cselect_b32 exec_hi, -1, 0
    s_lshl_b32 s26, s26, 10
    s_add_u32 s26, s26, s99
    s_mov_b32 m0, s26
    v_cndmask_b32 v6, v6, v7, vcc
    buffer_load_dwordx4 v6, s[56:59], 0 offen lds
    s_mov_b32 exec_hi, -1
    s_lshr_b32 s25, s23, 1
    s_add_u32 s98, s19, s25            ; channel
    s_cmp_eq_u32 s25, 0
    s_cselect_b32 s96, s96, s99
    s_mul_i32 s25, s25, 4672
    s_add_u32 s97, s97, s25
    s_add_u32 s97, s97, 576
    s_and_b32 s25, s23, 1
    s_lshl_b32 s25, s25, 11
    s_add_u32 s26, s97, s25
    s_mov_b32 m0, s26
    s_lshl_b32 s27, s98, 12
    s_add_u32 s27, s27, s25
    buffer_load_dwordx4 v14, s[60:63], s27 offen {NTB} lds
    buffer_load_dwordx4 v14, s[60:63], s27 offen offset:1024 {NTB} lds
    s_lshl_b32 s25, s19, 1
    s_load_dword s33, s[{pD}:{pD+1}], s25
    """)
    g.srd(12, pWS, WS_END)
    A(f"""
    v_mov_b32 v{OUT}, 0
    v_mov_b32 v{OUT+1}, 0
    v_mov_b32 v{OUT+2}, 0
    v_mov_b32 v{OUT+3}, 0
    v_min_u32 v7, 35, v0
    v_lshlrev_b32 v7, 4, v7
    s_sub_u32 s25, s97, 576
    v_add_u32 v7, s25, v7
    ds_write_b128 v7, {V(OUT,4)}
    v_lshlrev_b32 v6, 8, v{vT1}
    v_lshl_add_u32 v6, v{vT0}, 4, v6
    s_lshl_b32 s25, s23, 11
    s_add_u32 s25, s25, s99
    v_add_u32 v6, s25, v6
    v_lshlrev_b32 v15, 6, v{vT0}
    v_add_u32 v15, s99, v15            ; coefficients
    v_lshrrev_b32 v{vT2}, 4, v0
    v_and_b32 v{vT3}, 15, v0
    v_lshlrev_b32 v{vT3}, 7, v{vT3}
    v_lshl_add_u32 v13, v{vT2}, 4, v{vT3}
    v_add_u32 v13, s25, v13
    v_add_u32 v14, s25, v14
    v_bfe_u32 v{vT3}, v0, 2, 2
    v_lshl_add_u32 v7, v{vT2}, 3, v{vT3}
    v_lshlrev_b32 v7, 7, v7
    v_and_b32 v{vT3}, 3, v0
    v_lshl_add_u32 v7, v{vT3}, 3, v7
    s_lshl_b32 s25, s23, 5
    s_add_u32 s25, s25, s99
    v_add_u32 v7, s25, v7
    v_lshlrev_b32 v5, 12, v{vT1}
    v_lshl_add_u32 v5, v{vT0}, 4, v5
    s_lshl_b32 s22, s18, 2
    s_add_u32 s22, s22, s23
    s_lshl_b32 s22, s22, 16
    s_lshl_b32 s25, s17, 7
    s_add_u32 s22, s22, s25
    s_add_u32 s22, s22, {UT}
    s_add_u32 s21, s22, 32768
    """)
    A(f"""
    s_cmp_eq_u32 s95, 0
    s_cbranch_scc1 Lx_noinit
    s_cmp_lt_u32 s16, 4
    s_cbranch_scc1 Lx_noinit
    """)
    gen_init_misc(g, 132)
    A(f"""
    s_cmp_ge_u32 s2, {224+NREP}
    s_cbranch_scc1 Lx_noinit
    s_cmp_lg_u32 s16, 4
    s_cbranch_scc1 Lx_noinit
    v_lshlrev_b32 v11, 8, v0
    v_mov_b32 v12, 0
    s_sub_u32 s25, s2, 224
    s_lshl_b32 s25, s25, 15
    s_add_u32 s25, s25, {CNT}
    buffer_store_dword v12, v11, s[12:15], s25 offen {SC}
    s_add_u32 s25, s25, 16384
    s_mov_b64 exec, 0xfffff
    buffer_store_dword v12, v11, s[12:15], s25 offen {SC}
    s_mov_b64 exec, -1
Lx_noinit:
    """)
    g.stamp(20)
    NS = 7
    def dcol(d):
        for n in range(5):
            A(up(KU+2*n, KR+4*n+d, 0)); A(up(KU+2*n+1, KR+4*n+d, 1))
        for t in range(2):
            for e in range(2): A(f"v_mul_f32 v{UU+2*t+e}, v{KU+2*(t+3)+e}, v{CF+8*d+e}")
        for j in range(1, 4):
            for t in range(2):
                for e in range(2): A(f"v_fmac_f32 v{UU+2*t+e}, v{KU+2*(t+3-j)+e}, v{CF+8*d+2*j+e}")
        for t in range(2):
            for e in range(2): A(up(UU+4+2*t+e, VR+4*t+d, e))
        for t in range(2):
            for e in range(2): A(f"v_mul_f32 v{UU+2*t+e}, v{UU+2*t+e}, v{UU+4+2*t+e}")
        for t in range(2): A(f"v_cvt_pk_bf16_f32 v{OUT+4*t+d}, v{UU+2*t}, v{UU+2*t+1}")
    A(f"s_waitcnt vmcnt({8+NS}) lgkmcnt(0)\ns_barrier"); g.stamp(21); ld_chunk(g)
    A(f"s_waitcnt vmcnt({8+NS})\ns_barrier"); g.stamp(22); ld_chunk(g)
    A(f"""
    s_cmp_eq_u32 s95, 0
    s_cbranch_scc1 Ls1_nofl
    s_waitcnt vmcnt(0)
    s_sub_u32 s25, s2, 224
    s_cmp_ge_u32 s25, {NREP}
    s_cbranch_scc1 Ls1_nofl
    s_cmp_lg_u32 s16, 4
    s_cbranch_scc1 Ls1_nofl
    s_lshl_b32 s25, s25, 2
    v_mov_b32 v11, s25
    v_mov_b32 v12, 1
    s_mov_b64 exec, 1
    global_store_dword v11, v12, s[{pDBG}:{pDBG+1}] {SC}
    s_mov_b64 exec, -1
Ls1_nofl:
    s_waitcnt vmcnt(8)
    s_barrier
    """)
    for i in range(4): A(f"ds_read_b128 {V(CR+4*i,4)}, v15 offset:{17408+16*i}")
    for n in range(5): A(f"ds_read_b128 {V(KR+4*n,4)}, v6 offset:{128*n}")
    for t in range(2): A(f"ds_read_b128 {V(VR+4*t,4)}, v6 offset:{9216+128*t}")
    ld_chunk(g)
    A("s_waitcnt lgkmcnt(0)")
    g.stamp(1)
    for c in range(8):
        for j in range(4): A(up(CF + 8*(c >> 1) + 2*j + (c & 1), CR + 2*c + (j >> 1), j & 1))
    dcol(0)
    A("s_waitcnt vmcnt(8)\ns_barrier"); ld_chunk(g)
    dcol(1); dcol(2)
    A("s_waitcnt vmcnt(8)\ns_barrier"); ld_chunk(g)
    dcol(3)
    A(f"""
    ds_write_b128 v6, {V(OUT,4)} offset:9216
    ds_write_b128 v6, {V(OUT+4,4)} offset:{9216+128}
    s_waitcnt vmcnt(8) lgkmcnt(0)
    s_barrier
    """); ld_chunk(g)
    for i in range(2):
        A(f"ds_read_b64_tr_b16 {V(OUT+4*i,2)}, v7 offset:{9216+4096*i}")
        A(f"ds_read_b64_tr_b16 {V(OUT+4*i+2,2)}, v7 offset:{9216+4096*i+512}")
    A(f"""
    s_waitcnt lgkmcnt(0)
    ds_write_b128 v13, {V(OUT,4)}
    ds_write_b128 v13, {V(OUT+4,4)} offset:64
    ds_read_b128 {V(OUT+8,4)}, v14
    ds_read_b128 {V(OUT+12,4)}, v14 offset:1024
    v_and_b32 v11, {NREP-1}, v0
    v_lshlrev_b32 v11, 2, v11
    s_waitcnt vmcnt(8) lgkmcnt(0)
    s_barrier
    """); ld_chunk(g)
    A(f"""
    buffer_store_dwordx4 {V(OUT+8,4)}, v5, s[12:15], s22 offen {SC}
    buffer_store_dwordx4 {V(OUT+12,4)}, v5, s[12:15], s21 offen {SC}
    global_load_dword v12, v11, s[{pDBG}:{pDBG+1}] {SC}
    """)
    g.stamp(2)
    R = kconv.ConvRegs(16)
    conv_setup(A, R)
    A(f"""
    s_waitcnt vmcnt(11)
    s_barrier
    s_waitcnt vmcnt(3)
    s_barrier
    s_setprio 0
    s_waitcnt vmcnt(0)
    v_cmp_eq_u32 vcc, 0, v12
    """)
    g.stamp(3)
    A("s_mov_b64 s[34:35], vcc")
    g.gsync(2, 8)
    A(f"""
    s_cmp_lg_u32 s23, 0
    s_cbranch_scc1 Lc_w
    s_cmp_eq_u64 s[34:35], 0
    s_cbranch_scc1 Lc_sig
    """)
    g.ready(8)
    A("Lc_sig:")
    g.signal("s43", 8)
    A("s_cmp_lg_u32 s16, 4\ns_cbranch_scc1 Lc_w")
    A("s_cmp_eq_u32 s95, 1\ns_cbranch_scc1 Lc_px")
    if opt('UDELAY', 1): g.wait_words(SY, 5, 8, sl=4)
    g.poll(64, 16, 14, 8, sl=opt('USLEEP', 3))
    A("s_branch Lc_pd\nLc_px:")
    g.poll(80, 4, 16, 8, sl=opt('USLEEP', 3))
    A(f"""
Lc_pd:
    v_mov_b32 v8, {SY+36}
    v_mov_b32 v9, 1
    ds_write_b32 v8, v9
Lc_w:
    """)
    g.wait_words(SY+36, 1, 8, n=1, sl=opt('WSL', 4))
    g.wait_words(SY, 1, 8)
    g.stamp(4)
    for c in range(2):
        A("s_mov_b32 m0, s24\ns_nop 0")
        for i in range(4): A(f"buffer_load_dwordx4 v2, s[12:15], s25 offen offset:{1024*i} lds {SC}")
        if c == 0: A("s_add_u32 s24, s24, 4160\ns_sub_u32 s25, s25, 2")
    A("s_waitcnt vmcnt(0)")
    g.gsync(3, 8)
    A(f"s_setprio {opt('CPRIO', 1)}")
    g.stamp(5)
    A("s_cmp_eq_u32 s18, 0\ns_cbranch_scc0 Lc_set1")
    kconv.conv_main(A, R, "Lc_l0", 0)
    kconv.conv_epi(A, R, 0, "s96", "s33", "s26", "s[12:15]", SC)
    A("s_branch Lc_done\nLc_set1:")
    kconv.conv_main(A, R, "Lc_l1", 1)
    kconv.conv_epi(A, R, 1, "s96", "s33", "s26", "s[12:15]", SC)
    A("Lc_done:")
    g.stamp(6)
    g.post(4, 8)

def conv_setup(A, R):
    A(f"""
    v_bfe_u32 v{R.t0}, v0, 2, 2
    v_mul_u32_u24 v{R.aA}, 4160, v{R.t0}
    v_and_b32 v{R.t0}, 3, v0
    v_lshl_add_u32 v{R.aA}, v{R.t0}, 3, v{R.aA}
    v_lshrrev_b32 v{R.t0}, 4, v0
    v_lshlrev_b32 v{R.aB}, 4, v{R.t0}
    v_sub_u32 v{R.aA}, v{R.aA}, v{R.aB}
    s_add_u32 s25, s96, {64+32-8}
    v_add_u32 v{R.aA}, s25, v{R.aA}
    v_and_b32 v{R.aU}, 15, v0
    v_lshlrev_b32 v{R.aU}, 5, v{R.aU}
    v_add_u32 v{R.aB}, v{R.aB}, v{R.aU}
    s_sub_u32 s25, s97, 96
    v_add_u32 v{R.aB}, s25, v{R.aB}
    v_lshl_add_u32 v{R.aU}, v{R.t0}, 3, v{R.aU}
    v_and_b32 v{R.mask}, 15, v0
    v_lshlrev_b32 v{R.t0}, 3, v{R.t0}
    v_sub_u32 v{R.t0}, v{R.mask}, v{R.t0}
    v_add_u32 v{R.t0}, 17, v{R.t0}
    v_mov_b32 v{R.acc}, 0xffff
    v_mov_b32 v{R.acc+1}, 0xffff0000
    """)
    for d in range(4):
        A(f"""
        v_cmp_lt_i32 vcc, {2*d}, v{R.t0}
        v_cmp_lt_i32 s[34:35], {2*d+1}, v{R.t0}
        s_nop 0
        v_cndmask_b32 v{R.mask+d}, 0, v{R.acc}, vcc
        v_cndmask_b32 v{R.acc+2}, 0, v{R.acc+1}, s[34:35]
        v_or_b32 v{R.mask+d}, v{R.mask+d}, v{R.acc+2}
        """)
    for i in range(16): A(f"v_mov_b32 v{R.acc+i}, 0")
    A(f"""
    s_and_b32 s18, s16, 1              ; set
    s_lshl_b32 s21, s98, 12
    s_add_u32 s26, s21, {YT}
    s_lshl_b32 s24, s33, 16
    s_and_b32 s25, s33, 0xffff0000
    s_bitcmp0_b32 s98, 0
    s_cselect_b32 s33, s24, s25        ; D
    s_mul_i32 s24, s18, {2*4160}
    s_add_u32 s24, s24, s96
    s_add_u32 s24, s24, 64
    s_lshl_b32 s25, s18, 2
    s_sub_u32 s25, s21, s25
    s_add_u32 s25, s25, {UT}
    v_lshlrev_b32 v2, 4, v0
    """)

import k2
from k2 import m16, m8, phase, maxtree
from k2 import vL8, vKM, vKL, vV, vL16, vV0, vVinc, Q1A, Q1B, Q2A, Q2B, NMA, NMB, SA, SB, PA, PB, OA, OB, KB, KL, VB
aT0, aT1, aT2, aT3 = 5, 6, 7, 8
TMP = 168
vCA, vCR, vOne, vKM0, vKL0 = 176, 177, 178, 179, 180
def zero_acc(A):
    for i in range(16): A(f"v_mov_b32 v{OA+i}, 0")
    for i in range(16): A(f"v_mov_b32 v{OB+i}, 0")
    for i in range(8): A(f"v_mov_b32 v{PB+i}, 0")
    for i in range(8): A(f"v_mov_b32 v{VB[1]+i}, 0")
vG0, vG1, vG2 = 181, 182, 183
def dma_iter(A):
    A(f"""
    s_mov_b32 m0, s40
    s_add_u32 s46, s40, 4096
    buffer_load_dwordx4 v{vL16}, s[8:11], s40 offen lds {SC}
    s_mov_b32 m0, s46
    s_add_u32 s40, s40, 8192
    buffer_load_dwordx4 v{vL16}, s[8:11], s46 offen lds {SC}
    s_mov_b32 m0, s41
    s_add_u32 s46, s41, 4096
    buffer_load_dwordx4 v{vG0}, s[12:15], s43 offen lds {SC}
    s_mov_b32 m0, s46
    s_add_u32 s41, s41, 9216
    buffer_load_dwordx4 v{vG1}, s[12:15], s43 offen lds {SC}
    s_mov_b32 m0, s42
    s_add_u32 s43, s43, {8*36864}
    buffer_load_dwordx4 v{vG2}, s[12:15], s44 offen lds {SC}
    s_add_u32 s42, s42, s45
    s_add_u32 s44, s44, s47
    """)

def gen_attn(g):
    A = g.A; name = "La"
    FLAG = SY + 40
    A(f"""
Lattn:
    s_and_b32 s17, s2, 7
    s_lshl_b32 s17, s17, 2
    s_bfe_u32 s25, s2, 0x20003
    s_add_u32 s17, s17, s25            ; h
    s_lshr_b32 s18, s2, 5              ; qb
    s_lshr_b32 s19, s16, 2             ; kg
    s_and_b32 s20, s16, 3              ; qg
    s_and_b32 s21, s17, 1              ; parity
    s_lshr_b32 s26, s17, 1             ; pair
    v_lshlrev_b32 v{vL8}, 3, v0
    v_lshlrev_b32 v{vL16}, 4, v0
    s_mul_i32 s39, s26, {PAIR}
    s_mul_i32 s28, s21, {LEFT}
    s_add_u32 s27, s39, s28
    s_add_u32 s27, s27, {KV}
    s_add_u32 s8, s{pWS}, s27
    s_addc_u32 s9, s{pWS+1}, 0
    s_mov_b32 s10, {WIN}
    s_mov_b32 s11, 0x20000
    s_lshl_b32 s22, s21, 14
    s_add_u32 s23, s22, 65536
    s_cmp_eq_u32 s21, 0
    s_cselect_b32 s24, {LEFT}, 0
    s_lshl_b32 s31, s18, 3
    s_lshl_b32 s32, s20, 1
    s_add_u32 s31, s31, s32
    s_add_u32 s32, s31, s19            ; tA
    s_xor_b32 s33, s32, 1              ; tB
    s_mul_i32 s34, s21, {MB}
    s_add_u32 s34, s34, s39
    s_lshl_b32 s35, s32, 10
    s_add_u32 s35, s35, s34
    s_lshl_b32 s36, s33, 10
    s_add_u32 s36, s36, s34
    s_add_u32 s34, s39, {LEFT}
    s_lshl_b32 s37, s32, 8
    s_add_u32 s37, s37, s34
    s_lshl_b32 s38, s33, 8
    s_add_u32 s38, s38, s34
    v_and_b32 v{aT1}, 31, v0
    s_mul_i32 s47, s19, 3
    s_lshl_b32 s25, s20, 10
    s_lshl_b32 s46, s47, 13
    s_add_u32 s40, s22, s25
    s_add_u32 s40, s40, s46
    s_mul_i32 s46, s47, 9216
    s_add_u32 s46, s46, s23
    s_add_u32 s41, s46, s25
    s_add_u32 s42, s46, 8192
    s_and_b32 s44, s20, 1
    s_lshl_b32 s46, s47, 1
    s_add_u32 s44, s44, s46
    s_lshl_b32 s44, s44, 10
    s_add_u32 s44, s44, s24
    s_mul_i32 s43, s47, {8*36864}
    s_mul_i32 s46, s17, 288
    s_add_u32 s43, s43, s46
    s_add_u32 s43, s43, {VG}
    s_add_u32 s46, s44, s27
    s_cmp_eq_u32 s20, 0
    s_cselect_b32 s42, s42, s44
    s_cselect_b32 s44, s43, s46
    s_cselect_b32 s45, 9, 2
    s_cselect_b32 s47, 288, 2
    s_cselect_b64 vcc, -1, 0
    s_lshl_b32 s45, s45, 10
    s_lshl_b32 s47, s47, 10
    """)
    for r, base in ((vG0, "s25"), (vG1, "s46"), (vG2, "512")):
        A(f"""
        s_lshl_b32 s25, s20, 6
        s_add_u32 s46, s25, 256
        v_add_u32 v{aT0}, {base}, v0
        v_mul_u32_u24 v{aT2}, 3641, v{aT0}
        v_lshrrev_b32 v{aT2}, 16, v{aT2}           ; run = c / 18
        v_mul_u32_u24 v{aT3}, {9216-288}, v{aT2}
        v_lshl_add_u32 v{r}, v{aT0}, 4, v{aT3}
        """)
    A(f"""
    v_cndmask_b32 v{vG2}, v{vL16}, v{vG2}, vcc
    v_lshrrev_b32 v{aT0}, 5, v0
    v_mul_u32_u24 v{aT3}, 288, v{aT0}
    v_lshl_add_u32 v{aT2}, v{aT1}, 4, v{aT3}
    v_add_u32 v{vV0}, s23, v{aT2}
    v_mov_b32 v{vVinc}, {4*VT}
    v_mov_b32 v{aT2}, {CONST+240}
    v_mov_b32 v{aT3}, {CONST+224}
    v_cmp_eq_u32 vcc, 18, v{aT1}
    v_subrev_u32 v{aT0}, 20, v{aT1}
    v_cmp_gt_u32 s[52:53], 8, v{aT0}
    v_cndmask_b32 v{aT2}, v{aT2}, v{aT3}, vcc
    v_mov_b32 v{aT3}, {CONST+176}
    v_cmp_lt_u32 vcc, 17, v{aT1}
    v_cndmask_b32 v{aT2}, v{aT2}, v{aT3}, s[52:53]
    s_lshl_b32 s25, s19, 12
    s_add_u32 s48, s25, s22
    v_cndmask_b32 v{vV0}, v{vV0}, v{aT2}, vcc
    v_cndmask_b32 v{vVinc}, v{vVinc}, 0, vcc
    s_lshl_b32 s25, s19, 10
    s_add_u32 s49, s25, s24
    s_mov_b32 s50, 0
    v_cmp_gt_u32 vcc, 32, v0
    s_cmp_eq_u32 s21, 0
    s_cselect_b64 s[52:53], -1, 0
    s_cselect_b64 s[54:55], 0, -1
    s_and_b64 s[56:57], s[52:53], vcc
    s_and_b64 s[58:59], s[54:55], vcc
    s_andn2_b64 s[60:61], s[52:53], vcc
    s_andn2_b64 s[62:63], s[54:55], vcc
    v_lshlrev_b32 v{aT2}, 3, v{aT1}
    v_add_u32 v{vKM0}, s22, v{vL8}
    v_add_u32 v{vKL0}, s24, v{vL8}
    s_lshl_b32 s25, s20, 8
    s_add_u32 s25, s25, {UC}
    v_lshlrev_b32 v{vCA}, 2, v0
    v_add_u32 v{vCA}, s25, v{vCA}
    v_mov_b32 v{vOne}, 1
    """)
    zero_acc(A)
    A(f"""
    s_cmp_lg_u32 s19, 0
    s_cbranch_scc1 La_wy
    s_cmp_lg_u32 s16, 0
    s_cbranch_scc1 La_w
    """)
    g.poll(0, 14, 16, TMP)
    A("s_cmp_lt_u32 s2, 224\ns_cbranch_scc1 La_w0")
    g.wait_words(SY, 4, TMP)
    g.wait_words(SY+16, 4, TMP)
    A(f"""
La_w0:
    v_mov_b32 v{TMP}, {SY+32}
    v_mov_b32 v{TMP+1}, 1
    ds_write_b32 v{TMP}, v{TMP+1}
La_w:
    """)
    g.wait_words(SY+32, 1, TMP, n=1)
    g.stamp(7)
    dma_iter(A)
    A("s_mov_b32 s25, 2\ns_branch La_q\nLa_wy:")
    g.wait_words(SY+16, 4, TMP, sl=2)
    g.wait_words(SY, 6, TMP, sl=2)
    g.stamp(7)
    A(f"""
    s_mov_b32 s25, 5
La_q:
    buffer_load_dwordx2 {V(Q1A,2)}, v{vL8}, s[12:15], s35 offen {SC}
    buffer_load_dwordx2 {V(Q1A+2,2)}, v{vL8}, s[12:15], s35 offen offset:512 {SC}
    buffer_load_dwordx2 {V(Q1B,2)}, v{vL8}, s[12:15], s36 offen {SC}
    buffer_load_dwordx2 {V(Q1B+2,2)}, v{vL8}, s[12:15], s36 offen offset:512 {SC}
    buffer_load_dwordx2 {V(Q2A,2)}, v{aT2}, s[12:15], s37 offen {SC}
    buffer_load_dwordx2 {V(Q2B,2)}, v{aT2}, s[12:15], s38 offen {SC}
La_bulk:
    """)
    dma_iter(A)
    A(f"""
    s_sub_u32 s25, s25, 1
    s_cmp_lg_u32 s25, 0
    s_cbranch_scc1 La_bulk
    s_waitcnt vmcnt(10)
    s_cmp_lg_u32 s19, 0
    s_cbranch_scc1 La_p4
    """)
    g.post(6, TMP)
    A("La_p4:")
    for Q in (Q2A, Q2B):
        A(f"""
        v_cndmask_b32 v{Q+2}, 0, v{Q}, s[60:61]
        v_cndmask_b32 v{Q+3}, 0, v{Q+1}, s[62:63]
        v_cndmask_b32 v{Q}, 0, v{Q}, s[56:57]
        v_cndmask_b32 v{Q+1}, 0, v{Q+1}, s[58:59]
        """)
    g.wait_words(SY, 6, TMP)
    g.stamp(8)
    A(f"""
    ds_read2st64_b64 {V(KB[1],4)}, v{vKM0} offset0:0 offset1:1
    ds_read_b64 {V(PA,2)}, v{vKL0}
    s_waitcnt lgkmcnt(0)
    {m16(SA, KB[1], Q1A, 0)}
    {m16(SB, KB[1], Q1B, 0)}
    {m8(SA, PA, Q2A)}
    {m8(SB, PA, Q2B)}
    s_nop 10
    """)
    maxtree(A, aT0, SA)
    maxtree(A, aT1, SB)
    A(f"""
La_setm:
    v_mov_b32 v{aT2}, v{aT0}
    v_mov_b32 v{aT3}, v{aT1}
    v_lshl_add_u32 v{vKM}, s19, 12, v{vKM0}
    v_lshl_add_u32 v{vKL}, s19, 10, v{vKL0}
    v_permlane32_swap_b32 v{aT0}, v{aT2}
    v_permlane32_swap_b32 v{aT1}, v{aT3}
    v_mad_u32_u24 v{vV}, s19, v{vVinc}, v{vV0}
    ds_read2st64_b64 {V(KB[0],4)}, v{vKM} offset0:0 offset1:1
    ds_read_b64 {V(KL,2)}, v{vKL}
    ds_read_b128 {V(VB[0],4)}, v{vV}
    ds_read_b128 {V(VB[0]+4,4)}, v{vV} offset:576
    v_max_f32 v{aT0}, v{aT0}, v{aT2}
    v_max_f32 v{aT1}, v{aT1}, v{aT3}
    """)
    for i in range(16): A(f"v_sub_f32 v{NMA+i}, 0, v{aT0}")
    A(f"""
    v_sub_f32 v{NMB}, 0, v{aT1}
    s_waitcnt lgkmcnt(0)
    {m16(SA, KB[0], Q1A, V(NMA,16))}
    {m8(SA, KL, Q2A)}
    """)
    for i in range(1, 16): A(f"v_sub_f32 v{NMB+i}, 0, v{aT1}")
    A(f"""
    s_mov_b32 s30, 16
    s_mov_b32 s54, -14
    s_cmp_lg_u32 s50, 0
    s_cbranch_scc1 La_go
    s_mov_b32 s30, 2
    s_mov_b32 s54, 2
    s_setprio 0
    s_cmp_eq_u32 s19, 0
    s_cbranch_scc1 La_go
    s_waitcnt vmcnt(0)
    """)
    g.post(7, TMP)
    A(f"""
    s_lshr_b32 s25, s2, 3
    s_lshl_b32 s25, s25, 2
    s_add_u32 s25, s25, s20            ; 0..127
    s_mul_i32 s27, s25, {41*128}
    v_lshlrev_b32 v{TMP}, 7, v0
    v_add_u32 v{TMP+1}, s27, v{TMP}
    v_min_u32 v{TMP+1}, {WOB-4}, v{TMP+1}
    s_mov_b32 exec_hi, 0x1ff
    global_load_dword v210, v{TMP+1}, s[{pWO}:{pWO+1}]
    s_and_b32 s27, s2, 7
    s_mul_i32 s27, s27, {256*1152}
    s_mul_i32 s25, s25, {18*128}
    s_add_u32 s27, s27, s25
    v_add_u32 v{TMP+1}, s27, v{TMP}
    s_mov_b64 exec, 0x3ffff
    global_load_dword v211, v{TMP+1}, s[{pQ}:{pQ+1}]
    s_mov_b64 exec, -1
La_go:
    """)
    g.stamp(9)
    A(".p2align 6\nLa_loop:")
    for j in range(4):
        b = j & 1; nb = b ^ 1
        koff = 2*(j+1) if j < 3 else 0
        ex = [[f"ds_read2st64_b64 {V(KB[nb],4)}, v{vKM} offset0:{koff} offset1:{koff+1}"], [], [], ["s_waitcnt lgkmcnt(0)"]]
        if j == 0: ex[0].append(f"ds_read_b64 {V(KL+2,2)}, v{vKL} offset:512")
        if j == 1: ex[0].append(f"ds_add_rtn_u32 v{vCR}, v{vCA}, v{vOne}")
        if j == 2: ex[2] = ["s_min_u32 s53, s52, 15"]
        if j == 3:
            ex[0].append(f"ds_read_b64 {V(KL,2)}, v{vKL}")
            ex[1] = [f"v_mad_u32_u24 v{vV}, s53, v{vVinc}, v{vV0}"]
            ex[2] = ["s_cmp_lt_u32 s52, 16"]
        klp = KL + 2*(j >> 1)
        phase(A, SA, PA, [m16(SB, KB[b], Q1B, V(NMB,16)), m8(SB, klp, Q2B + 2*(j & 1)),
                          m16(OB, VB[nb], PB, V(OB,16)), m16(OB, VB[nb]+4, PB+4, V(OB,16))], ex)
        jn = (j+1) & 3
        klp = KL + 2*(jn >> 1)
        ex = [[], [], [f"ds_read_b128 {V(VB[nb],4)}, v{vV} offset:{jn*VT}"], [f"ds_read_b128 {V(VB[nb]+4,4)}, v{vV} offset:{jn*VT+576}"]]
        if j == 1:
            ex[1] = [f"v_readfirstlane_b32 s52, v{vCR}"]
            ex[3].append("s_add_u32 s52, s52, s54")
        if j == 2:
            ex[0] = ["s_cmp_ge_u32 s53, s30"]
            ex[1] = [f"v_lshl_add_u32 v{vKM}, s53, 12, v{vKM0}", f"v_lshl_add_u32 v{vKL}, s53, 10, v{vKL0}"]
            ex[3] += ["s_cbranch_scc1 La_chk", "La_chkd:"]
        phase(A, SB, PB, [m16(SA, KB[nb], Q1A, V(NMA,16)), m8(SA, klp, Q2A + 2*(jn & 1)),
                          m16(OA, VB[b], PA, V(OA,16)), m16(OA, VB[b]+4, PA+4, V(OA,16))], ex)
    A(f"""
    s_cbranch_scc1 La_loop
    """)
    g.stamp(10)
    A(f"""
    {m16(OB, VB[1], PB, V(OB,16))}
    {m16(OB, VB[1]+4, PB+4, V(OB,16))}
    s_cmp_lg_u32 s50, 0
    s_cbranch_scc1 La_combine
    v_add_f32 v{aT0}, |v{OA}|, |v{OA+1}|
    """)
    for i in range(2, 11): A(f"v_add_f32 v{aT0}, |v{OA+i}|, v{aT0}")
    A("s_nop 1")
    for i in range(11): A(f"v_add_f32 v{aT0}, |v{OB+i}|, v{aT0}")
    A(f"""
    v_mov_b32 v{aT1}, 0x71800000
    v_cmp_nlt_f32 vcc, v{aT0}, v{aT1}
    v_mov_b32 v{aT3}, {FLAG}
    v_mov_b32 v{aT2}, 1
    s_cbranch_vccz La_noflag
    ds_write_b32 v{aT3}, v{aT2}
La_noflag:
    s_waitcnt lgkmcnt(0)
    s_barrier
    ds_read_b32 v{aT2}, v{aT3}
    s_waitcnt lgkmcnt(0)
    v_readfirstlane_b32 s25, v{aT2}
    s_cmp_lg_u32 s25, 0
    s_cbranch_scc1 La_slow
La_combine2:
    s_mul_i32 s25, s16, 3072
    s_add_u32 s25, s25, {XO}
    s_xor_b32 s27, s16, 4
    s_mul_i32 s27, s27, 3072
    s_add_u32 s27, s27, {XO}
    v_add_u32 v{aT0}, s25, v{vL16}
    v_add_u32 v{aT1}, s27, v{vL16}
    s_nop 4
    ds_write_b128 v{aT0}, {V(OB,4)}
    ds_write_b128 v{aT0}, {V(OB+4,4)} offset:1024
    ds_write_b128 v{aT0}, {V(OB+8,4)} offset:2048
    s_mul_i32 s25, s32, {36*1024}
    s_add_u32 s25, s25, {OF}
    s_lshl_b32 s27, s17, 10
    s_add_u32 s27, s27, s25
    s_lshl_b32 s28, s17, 7
    s_add_u32 s28, s28, s25
    s_add_u32 s28, s28, 32768
    v_lshlrev_b32 v{aT2}, 2, v0
    s_waitcnt lgkmcnt(0)
    s_barrier
    ds_read_b128 {V(SA,4)}, v{aT1}
    ds_read_b128 {V(SA+4,4)}, v{aT1} offset:1024
    ds_read_b128 {V(SA+8,4)}, v{aT1} offset:2048
    s_waitcnt lgkmcnt(0)
    v_add_f32 v{aT0}, v{OA+10}, v{SA+10}
    v_mov_b32 v{aT1}, v{aT0}
    """)
    for i in range(10): A(f"v_add_f32 v{OA+i}, v{OA+i}, v{SA+i}")
    A(f"""
    v_permlane32_swap_b32 v{aT0}, v{aT1}
    s_nop 1
    v_rcp_f32 v{aT0}, v{aT0}
    s_nop 0
    """)
    for i in range(10): A(f"v_mul_f32 v{OA+i}, v{OA+i}, v{aT0}")
    for i in range(5): A(f"v_cvt_pk_bf16_f32 v{PA+i}, v{OA+2*i}, v{OA+2*i+1}")
    A(f"""
    buffer_store_dwordx4 {V(PA,4)}, v{vL16}, s[12:15], s27 offen {SC}
    s_mov_b32 exec_hi, 0
    buffer_store_dword v{PA+4}, v{aT2}, s[12:15], s28 offen {SC}
    s_mov_b32 exec_hi, -1
    s_lshl_b32 s51, s18, 2
    s_lshr_b32 s25, s17, 3
    s_add_u32 s51, s51, s25
    s_add_u32 s51, s51, 32
    s_branch Lp3
    """)
    A(f"""
La_chk:
    s_cmp_lg_u32 s19, 0
    s_cbranch_scc1 La_chk1
    s_waitcnt vmcnt(0)
    """)
    g.post(7, TMP)
    A("La_chk1:")
    g.wait_words(SY, 7, TMP)
    A(f"""
    s_mov_b32 s30, 6
    s_cmp_lt_u32 s53, 6
    s_cbranch_scc1 La_chkd
    """)
    g.wait_words(SY+16, 7, TMP)
    A(f"""
    s_mov_b32 s30, 16
    s_cmp_lg_u32 s16, 0
    s_cbranch_scc1 La_chkd
    s_and_b32 s25, s2, 15
    s_add_u32 s25, s25, 16
    """)
    g.signal("s25", TMP)
    A(f"""
    s_branch La_chkd
La_combine:
    s_barrier
    s_branch La_combine2
La_slow:
    s_mov_b32 s50, 1
    v_add_u32 v{vKM}, s48, v{vL8}
    v_add_u32 v{vKL}, s49, v{vL8}
    v_mov_b32 v{aT0}, 0xff800000
    v_mov_b32 v{aT1}, 0xff800000
    s_mov_b32 s51, 8
La_maxloop:
    ds_read2st64_b64 {V(KL,4)}, v{vKL} offset0:0 offset1:1
    """)
    for j in range(4):
        A(f"""
        ds_read2st64_b64 {V(KB[0],4)}, v{vKM} offset0:{2*j} offset1:{2*j+1}
        s_waitcnt lgkmcnt(0)
        {m16(SA, KB[0], Q1A, 0)}
        {m16(SB, KB[0], Q1B, 0)}
        {m8(SA, KL+2*(j>>1), Q2A+2*(j&1))}
        {m8(SB, KL+2*(j>>1), Q2B+2*(j&1))}
        s_nop 11
        """)
        maxtree(A, aT0, SA, True)
        maxtree(A, aT1, SB, True)
    A(f"""
    v_add_u32 v{vKM}, 8192, v{vKM}
    v_add_u32 v{vKL}, 2048, v{vKL}
    s_sub_u32 s51, s51, 1
    s_cmp_lg_u32 s51, 0
    s_cbranch_scc1 La_maxloop
    v_mov_b32 v{aT2}, v{aT0}
    v_mov_b32 v{aT3}, v{aT1}
    s_lshl_b32 s25, s16, 8
    s_xor_b32 s27, s25, 1024
    v_permlane32_swap_b32 v{aT0}, v{aT2}
    v_permlane32_swap_b32 v{aT1}, v{aT3}
    v_and_b32 v{vKM}, 31, v0
    v_lshlrev_b32 v{vKM}, 2, v{vKM}
    v_add_u32 v{vKM}, {XCH}, v{vKM}
    v_max_f32 v{aT0}, v{aT0}, v{aT2}
    v_max_f32 v{aT1}, v{aT1}, v{aT3}
    v_add_u32 v{vKL}, s25, v{vKM}
    v_add_u32 v{vKM}, s27, v{vKM}
    ds_write2_b32 v{vKL}, v{aT0}, v{aT1} offset0:0 offset1:32
    s_waitcnt lgkmcnt(0)
    s_barrier
    ds_read2_b32 {V(PA,2)}, v{vKM} offset0:32 offset1:0
    s_waitcnt lgkmcnt(0)
    v_max_f32 v{aT0}, v{aT0}, v{PA}
    v_max_f32 v{aT1}, v{aT1}, v{PA+1}
    """)
    zero_acc(A)
    A("s_branch La_setm")
XO = 122880

import k3
def gen_p3(g):
    A = g.A
    BW, ACC_, AF = 40, 184, 16
    A(f"""
Lp3:
    s_and_b32 s19, s2, 7
    s_lshr_b32 s20, s2, 3
    s_cmp_ge_u32 s20, 24
    s_cbranch_scc1 Lp3_s3
    s_and_b32 s17, s20, 3
    s_lshl_b32 s19, s19, 2
    s_add_u32 s17, s17, s19            ; tb
    s_lshr_b32 s18, s20, 2             ; ng
    """)
    g.srd(8, pWO, WOB)
    for i in range(3):
        A(f"""
        v_add_u32 v1, {64*i}, v0
        v_mul_u32_u24 v2, 5462, v1
        v_lshrrev_b32 v2, 16, v2
        v_mul_u32_u24 v3, 12, v2
        v_sub_u32 v1, v1, v3
        v_mul_u32_u24 v2, 1152, v2
        v_lshl_add_u32 v{4+i}, v1, 4, v2
        """)
    A(f"""
    v_subrev_u32 v5, 1024, v5
    v_subrev_u32 v6, 2048, v6
    s_mul_i32 s20, s18, 192
    s_mul_i32 s21, s16, {16*1152}
    s_add_u32 s20, s20, s21
    s_mul_i32 s21, s16, 3072
    s_mov_b32 s22, s16
Lo_wo:
    s_mov_b32 m0, s21
    s_add_u32 s22, s22, 8
    buffer_load_dwordx4 v4, s[8:11], s20 offen lds
    buffer_load_dwordx4 v5, s[8:11], s20 offen offset:1024 lds
    buffer_load_dwordx4 v6, s[8:11], s20 offen offset:2048 lds
    s_add_u32 s20, s20, {8*16*1152}
    s_add_u32 s21, s21, {8*3072}
    s_cmp_lt_u32 s22, 16
    s_cbranch_scc1 Lo_wo
    s_cmp_ge_u32 s22, 24
    s_cbranch_scc1 Lo_wo2
    s_waitcnt vmcnt(6)
    s_barrier
    """)
    g.stamp(11)
    A("s_cmp_lg_u32 s16, 7\ns_cbranch_scc1 Lo_wo2")
    g.signal("s51", 14)
    A(f"""
Lo_wo2:
    s_cmp_lt_u32 s22, 36
    s_cbranch_scc1 Lo_wo
    s_and_b32 s23, s16, 1
    s_lshr_b32 s24, s16, 1
    v_lshrrev_b32 v1, 5, v0
    v_bfe_u32 v2, v0, 2, 2
    v_bfe_u32 v3, v0, 4, 1
    v_lshlrev_b32 v3, 5, v3
    v_and_b32 v7, 3, v0
    v_lshl_add_u32 v3, v7, 3, v3
    s_lshl_b32 s25, s24, 6
    v_add_u32 v3, s25, v3
    v_lshl_add_u32 v7, v1, 2, v2
    v_mul_u32_u24 v7, 192, v7
    v_add_u32 v8, v7, v3
    v_add_u32 v9, {16*18*192}, v8
    v_mul_u32_u24 v7, 72, v1
    v_lshrrev_b32 v10, 1, v2
    v_mul_u32_u24 v10, 18, v10
    v_add_u32 v7, v7, v10
    v_and_b32 v10, 1, v2
    v_add3_u32 v7, v7, v10, 16
    v_mul_u32_u24 v7, 192, v7
    v_add_u32 v10, v7, v3
    v_add_u32 v11, {288*192}, v10
    v_lshlrev_b32 v12, 4, v0
    """)
    g.srd(44, pOUT, OUTB)
    A(f"""
    s_waitcnt vmcnt(0)
    s_barrier
    s_cmp_ge_u32 s16, 6
    s_cbranch_scc1 Lo_nopre
    """)
    for s_ in range(36):
        for e in range(2):
            if s_ < 32: base, off = (8, (18*s_ + 8*e)*192) if s_ < 16 else (9, (18*(s_-16) + 8*e)*192)
            else: base, off = (10 + ((s_-32) >> 1), (144*((s_-32) & 1) + 36*e)*192)
            A(f"ds_read_b64_tr_b16 {V(BW+4*s_+2*e,2)}, v{base} offset:{off}")
        if s_ % 6 == 5: A("s_waitcnt lgkmcnt(4)")
    A("Lo_nopre:")
    for i in range(16): A(f"v_mov_b32 v{ACC_+i}, 0")
    TR = 81920
    A(f"""
    s_mul_i32 s20, s17, {2*36*1024}
    s_add_u32 s20, s20, {OF}
    s_mul_i32 s21, s23, {36*1024}
    s_add_u32 s20, s20, s21
    s_lshl_b32 s21, s24, 10
    s_add_u32 s20, s20, s21
    s_lshl_b32 s21, s23, 10
    v_add_u32 v13, s21, v12
    v_and_b32 v1, 31, v0
    v_lshlrev_b32 v1, 2, v1
    v_lshrrev_b32 v2, 5, v0
    v_lshl_add_u32 v1, v2, 9, v1
    s_add_u32 s21, s21, 65536
    v_add_u32 v201, s21, v1
    v_add_u32 v202, 2048, v201
    v_add_u32 v203, 4096, v201
    v_add_u32 v204, 6144, v201
    v_and_b32 v1, 31, v0
    s_lshl_b32 s21, s23, 5
    v_add_u32 v1, s21, v1
    v_mul_u32_u24 v1, 208, v1
    v_lshrrev_b32 v2, 5, v0
    v_lshl_add_u32 v1, v2, 3, v1
    s_lshl_b32 s21, s24, 6
    s_add_u32 s21, s21, {TR}
    v_add_u32 v200, s21, v1
    s_mul_i32 s26, s17, {64*2304}
    s_mul_i32 s22, s18, 192
    s_add_u32 s26, s26, s22
    s_lshl_b32 s22, s16, 7
    """)
    for i in range(2):
        A(f"""
        v_add_u32 v1, s22, v0
        v_add_u32 v1, {64*i}, v1
        v_mul_u32_u24 v2, 5462, v1
        v_lshrrev_b32 v2, 16, v2
        v_mul_u32_u24 v3, 12, v2
        v_sub_u32 v1, v1, v3
        v_lshlrev_b32 v1, 4, v1
        v_mul_u32_u24 v3, 208, v2
        v_add_u32 v{4+i}, v3, v1
        v_add_u32 v{4+i}, {TR}, v{4+i}
        v_mul_u32_u24 v3, 2304, v2
        v_add_u32 v{6+i}, v3, v1
        """)
    A("s_lshl_b32 s21, s16, 10\ns_waitcnt lgkmcnt(0)")
    g.stamp(12)
    A("s_cmp_lg_u32 s16, 7\ns_cbranch_scc1 Lp3_h\ns_add_u32 s25, s19, 32")
    g.poll("s25", 4, 8, 16)
    A("Lp3_h:\ns_barrier")
    g.stamp(13)
    for rr in range(9):
        A(f"""
        s_mov_b32 m0, s21
        s_add_u32 s21, s21, 8192
        buffer_load_dwordx4 v12, s[12:15], s20 offen lds {SC}
        s_add_u32 s20, s20, 4096
        """)
    for c in range(3):
        A(f"s_waitcnt vmcnt({6-3*c})\ns_barrier")
        if c == 0: A(f"s_cmp_ge_u32 s16, 6\ns_cbranch_scc1 Lo_idle")
        if c == 2: A(f"v_add_u32 v13, 49152, v13")
        for half in range(2):
            for i in range(6):
                s_ = 12*c + 6*half + i
                off = 2048*s_ - (49152 if c == 2 else 0)
                if s_ < 32: A(f"ds_read_b128 {V(AF+4*i,4)}, v13 offset:{off}")
                else:
                    A(f"ds_read2_b32 {V(AF+4*i,2)}, v{201+s_-32} offset0:0 offset1:32")
                    A(f"ds_read2_b32 {V(AF+4*i+2,2)}, v{201+s_-32} offset0:64 offset1:96")
            for i in range(6):
                s_ = 12*c + 6*half + i
                last = 12*c + 6*half + 5
                A(f"s_waitcnt lgkmcnt({sum(1 if x < 32 else 2 for x in range(s_+1, last+1))})")
                A(f"v_mfma_f32_32x32x16_bf16 {V(ACC_,16)}, {V(BW+4*s_,4)}, {V(AF+4*i,4)}, {V(ACC_,16)}")
    g.stamp(14)
    A("s_nop 11")
    for q in range(4):
        A(f"""
        v_cvt_pk_bf16_f32 v{AF+2*q}, v{ACC_+4*q}, v{ACC_+4*q+1}
        v_cvt_pk_bf16_f32 v{AF+2*q+1}, v{ACC_+4*q+2}, v{ACC_+4*q+3}
        ds_write_b64 v200, {V(AF+2*q,2)} offset:{16*q}
        """)
    A(f"""
    s_waitcnt lgkmcnt(0)
    s_barrier
    ds_read_b128 {V(AF,4)}, v4
    ds_read_b128 {V(AF+4,4)}, v5
    s_waitcnt lgkmcnt(1)
    buffer_store_dwordx4 {V(AF,4)}, v6, s[44:47], s26 offen
    s_waitcnt lgkmcnt(0)
    buffer_store_dwordx4 {V(AF+4,4)}, v7, s[44:47], s26 offen
    s_branch Lfin
Lo_idle:
    s_waitcnt vmcnt(3)
    s_barrier
    s_waitcnt vmcnt(0)
    s_barrier
    s_branch Lfin
Lp3_s3:
    s_sub_u32 s20, s20, 24
    s_lshl_b32 s17, s19, 3
    s_add_u32 s17, s17, s20
    s_mov_b64 s[6:7], s[{pOUT}:{pOUT+1}]
    s_mov_b64 s[48:49], s[{pWS}:{pWS+1}]
    s_mov_b32 s30, s51
    s_mov_b64 s[50:51], s[{pQ}:{pQ+1}]
    """)
    g.poll(16, 16, 16, 16)
    A("s_barrier")
    g.stamp(11)
    A("s_cmp_lg_u32 s16, 7\ns_cbranch_scc1 Ls3_go")
    g.signal("s30", 14)
    A("s_waitcnt vmcnt(0)\nLs3_go:")
    k3.gen_stage3(A, "Ls3", False, SC)
    A("Lfin:")
    g.end()

def gen(name, dbg=False):
    g = G(dbg); A = g.A
    A("Lcode_begin:")
    A(f"""
    s_cmp_ge_u32 s2, 256
    s_cbranch_scc1 Lend
    s_load_dwordx16 s[64:79], s[0:1], 0
    s_load_dwordx8 s[80:87], s[0:1], 64
    v_lshrrev_b32 v1, 6, v0
    v_and_b32 v0, 63, v0
    v_readfirstlane_b32 s16, v1
    """)
    if dbg: A(f"v_mov_b32 v{vST}, 0")
    g.stamp(0)
    A(f"""
    s_lshl_b32 s3, s16, 2
    s_add_u32 s3, s3, {SY}
    s_and_b32 s94, s3, {0xffffffff & ~15}
    s_cmp_ge_u32 s2, 224
    s_cbranch_scc1 Ls1
    """)
    gen_gemm(g)
    A("Ls1:")
    gen_stage1(g)
    gen_attn(g)
    gen_p3(g)
    A("Lend:\ns_endpgm\nLcode_end:")
    return A.text()

if __name__ == "__main__":
    import sys
    out = sys.argv[1]; dbg = len(sys.argv) > 2 and sys.argv[2] == "dbg"
    name = "concat_heads__softmax_full_mha__ssm_conv_h3__prompt_kernel"
    HDR = open("concat_heads__softmax_full_mha__ssm_conv_h3__prompt.s.ref").read().split("; Override launch")[0]
    s = HDR
    if dbg or 'list' in EXP: s += f"; @launch kernel={name} grid=(256,1,1) block=(512,1,1) lds={LDS_BYTES}\n"
    else: s += f"; @launch grid=(256,1,1) block=(512,1,1) lds={LDS_BYTES}\n"
    s += '.amdgcn_target "amdgcn-amd-amdhsa--gfx950"\n.text\n' + kernel_head(name) + gen(name, dbg)
    s += '.section .rodata,"a"\n' + kernel_desc(name, NVGPR, 102)
    open(out, "w").write(s)
```

```python
import os, struct, math
from asmlib import *
from layout import *
import kconv
EXP = os.environ.get('FEXP', '').split(',')
def opt(name, default): return int(os.environ.get(name, default))

CS_BITS = struct.unpack("<I", struct.pack("<f", math.log2(math.e)/math.sqrt(18)))[0]
XB, WB, OUTB, WOB = 2048*1152, 576*3456, 2048*2304, 576*1152
NVGPR = 248
LDS_BYTES = 163840
vST = 215
pX, pW, pWO, pQ, pK, pV, pSH, pH, pD, pOUT, pDBG, pWS = [64+2*i for i in range(12)]
WIN = 65536 + VSZ + 16384
CONST = WIN
UC = WIN + 4352
XCH = WIN + 6144
SY = WIN + 5376
SC = "sc1"
NTG = 'nt' if 'ntg' in EXP else ''
NTB = 'nt' if 'ntb' in EXP else ''
SPIN = 200000
NREP = opt('NREP', 8)

class G:
    def __init__(self, dbg):
        self.A = Asm(); self.dbg = dbg; self.n = 0
    def lab(self, p="L"):
        self.n += 1; return f"{p}{self.n}"
    def stamp(self, i):
        if self.dbg:
            self.A(f"""
            s_memrealtime s[88:89]
            s_memtime s[90:91]
            s_waitcnt lgkmcnt(0)
            v_writelane_b32 v{vST}, s88, {i}
            v_writelane_b32 v{vST}, s90, {32+i}
            """)
    def srd(self, d, p, n):
        self.A(f"s_mov_b32 s{d}, s{p}\ns_mov_b32 s{d+1}, s{p+1}\ns_mov_b32 s{d+2}, {n}\ns_mov_b32 s{d+3}, 0x20000")
    def end(self):
        A = self.A
        if self.dbg:
            A("s_mov_b64 exec, -1\ns_waitcnt vmcnt(0)")
            self.stamp(31)
            A(f"""
            s_lshl_b32 s25, s2, 3
            s_add_u32 s25, s25, s16
            s_lshl_b32 s25, s25, 8
            s_add_u32 s25, s25, {STAMP}
            v_lshlrev_b32 v1, 2, v0
            buffer_store_dword v{vST}, v1, s[12:15], s25 offen
            s_add_u32 s25, s25, {2048*256}
            buffer_store_dword v214, v1, s[12:15], s25 offen
            """)
        A("s_endpgm")
    def post(self, val, t):
        self.A(f"""
        v_mov_b32 v{t}, s3
        v_mov_b32 v{t+1}, {val}
        ds_write_b32 v{t}, v{t+1}
        """)
    def wait_words(self, addr, val, t, n=4, sl=1):
        l = self.lab("Lw"); d = self.lab("Ld")
        rd = f"ds_read_b128 {V(t,4)}, v{t+4}" if n == 4 else f"ds_read_b32 v{t}, v{t+4}"
        mn = f"v_min_u32 v{t}, v{t}, v{t+1}\nv_min3_u32 v{t}, v{t}, v{t+2}, v{t+3}\ns_nop 0" if n == 4 else ""
        self.A(f"""
        v_mov_b32 v{t+4}, {addr}
        s_mov_b32 s93, {SPIN}
{l}:
        {rd}
        s_waitcnt lgkmcnt(0)
        {mn}
        v_readfirstlane_b32 s92, v{t}
        s_cmp_ge_u32 s92, {val}
        s_cbranch_scc1 {d}
        s_sleep {sl}
        s_sub_u32 s93, s93, 1
        s_cmp_lg_u32 s93, 0
        s_cbranch_scc1 {l}
{d}:
        """)
    def gsync(self, val, t):
        self.post(val, t)
        self.wait_words("s94", val, t)
    def ready(self, t):
        l = self.lab("Lr"); d = self.lab("Ld")
        self.A(f"""
        v_and_b32 v{t+1}, {NREP-1}, v0
        v_lshlrev_b32 v{t+1}, 2, v{t+1}
        s_mov_b32 s93, {SPIN}
{l}:
        global_load_dword v{t}, v{t+1}, s[{pDBG}:{pDBG+1}] {SC}
        s_waitcnt vmcnt(0)
        v_cmp_eq_u32 vcc, 0, v{t}
        s_nop 3
        s_cmp_eq_u64 vcc, 0
        s_cbranch_scc1 {d}
        s_sleep 2
        s_sub_u32 s93, s93, 1
        s_cmp_lg_u32 s93, 0
        s_cbranch_scc1 {l}
{d}:
        """)
    def signal(self, sidx, t):
        self.A(f"""
        s_lshl_b32 s92, {sidx}, 8
        s_add_u32 s92, s92, {CNT}
        v_lshlrev_b32 v{t}, 15, v0
        v_mov_b32 v{t+1}, 1
        s_mov_b64 exec, {(1 << NREP) - 1}
        buffer_atomic_add v{t+1}, v{t}, s[12:15], s92 offen {SC}
        s_mov_b64 exec, -1
        """)
    def poll(self, first, n, target, t, sl=None):
        l = self.lab("Lp"); d = self.lab("Ld")
        self.A(f"""
        v_min_u32 v{t+1}, {n-1}, v0
        v_add_u32 v{t+1}, {first}, v{t+1}
        v_lshlrev_b32 v{t+1}, 8, v{t+1}
        s_mov_b32 s93, {SPIN}
        s_and_b32 s92, s2, {NREP-1}
        s_lshl_b32 s92, s92, 15
        s_add_u32 s92, s92, {CNT}
        s_mov_b64 exec, {(1 << n) - 1}
{l}:
        buffer_load_dword v{t}, v{t+1}, s[12:15], s92 offen {SC}
        s_waitcnt vmcnt(0)
        v_cmp_le_u32 vcc, {target}, v{t}
        s_nop 3
        s_cmp_eq_u64 vcc, exec
        s_cbranch_scc1 {d}
        s_sleep {sl or opt('PSLEEP', 2)}
        s_sub_u32 s93, s93, 1
        s_cmp_lg_u32 s93, 0
        s_cbranch_scc1 {l}
{d}:
        s_mov_b64 exec, -1
        """)

vT0, vT1, vT2, vT3, vTok, vHf = 1, 2, 3, 4, 5, 6
vXb, vWb, vX, vW, vEA, FR, ACC, PK = 8, 12, 14, 18, 20, 36, 68, 132
RING = 98304
def XF(b, i): return FR + 16*b + 4*i
def WF(b, j): return FR + 16*b + 8 + 4*j
def acc(i, j): return ACC + 16*(2*i + j)
def g_reads(b, s):
    return [f"ds_read_b128 {V(XF(b,0),4)}, v{vX+s}",
            f"ds_read_b64_tr_b16 {V(WF(b,0),2)}, v{vW} offset:{16384 + 4096*s}",
            f"ds_read_b64_tr_b16 {V(WF(b,0)+2,2)}, v{vW} offset:{16384 + 4096*s + 1024}",
            f"ds_read_b64_tr_b16 {V(WF(b,1),2)}, v{vW+1} offset:{16384 + 4096*s}",
            f"ds_read_b64_tr_b16 {V(WF(b,1)+2,2)}, v{vW+1} offset:{16384 + 4096*s + 1024}",
            f"ds_read_b128 {V(XF(b,1),4)}, v{vX+s} offset:4096"]
def g_mf(b, i, j, vtype):
    a, bb = (XF(b,i), WF(b,j)) if vtype else (WF(b,j), XF(b,i))
    return f"v_mfma_f32_32x32x16_bf16 {V(acc(i,j),16)}, {V(a,4)}, {V(bb,4)}, {V(acc(i,j),16)}"
def g_setaddr(A):
    for s in range(4): A(f"v_add_u32 v{vX+s}, s30, v{vXb+s}")
    for j in range(2): A(f"v_add_u32 v{vW+j}, s30, v{vWb+j}")
def g_loop(g, name, vtype):
    A = g.A
    A("s_mov_b32 s31, 9\ns_barrier")
    for r in g_reads(0, 0): A(r)

    A(f".p2align 6\n{name}:")
    for s in range(4):
        b = s & 1
        A("s_waitcnt lgkmcnt(0)")
        A(g_mf(b, 0, 0, vtype))
        if s < 3:
            rd = g_reads(b ^ 1, s+1)
            for r in rd[:3]: A(r)
            A(g_mf(b, 0, 1, vtype))
            for r in rd[3:]: A(r)
            A(g_mf(b, 1, 0, vtype)); A(g_mf(b, 1, 1, vtype))
        else:
            A(f"""
            s_add_u32 s30, s30, 32768
            s_cmp_eq_u32 s30, {RING}
            s_cselect_b32 s30, 0, s30
            s_sub_u32 s31, s31, 1
            s_cmp_eq_u32 s31, 0
            s_cbranch_scc1 {name}_nb
            s_barrier
{name}_nb:
            """)
            g_setaddr(A)
            A(g_mf(b, 0, 1, vtype))
            rd = g_reads(0, 0)
            for r in rd[:3]: A(r)
            A(g_mf(b, 1, 0, vtype))
            for r in rd[3:]: A(r)
            A(g_mf(b, 1, 1, vtype))
    A(f"s_cbranch_scc0 {name}")

def ld_chunk(g, skip=True):
    A = g.A; l = g.lab("Lk")
    if skip: A(f"s_cmp_lg_u32 s95, 0\ns_cbranch_scc1 {l}")
    A(f"""
    s_mov_b32 m0, s42
    s_add_u32 s26, s40, 8192
    buffer_load_dwordx4 v8, s[8:11], s40 offen lds
    s_add_u32 s27, s40, 16384
    buffer_load_dwordx4 v9, s[8:11], s26 offen offset:1024 lds
    s_add_u32 s26, s40, 24576
    buffer_load_dwordx4 v8, s[8:11], s27 offen offset:2048 lds
    s_add_u32 s28, s42, 16384
    buffer_load_dwordx4 v9, s[8:11], s26 offen offset:3072 lds
    s_mov_b32 m0, s28
    s_add_u32 s26, s41, {13824-1024}
    buffer_load_dwordx4 v10, s[44:47], s41 offen lds
    s_add_u32 s27, s41, {2*(13824-1024)}
    buffer_load_dwordx4 v10, s[44:47], s26 offen offset:1024 lds
    s_add_u32 s26, s41, {3*(13824-1024)}
    buffer_load_dwordx4 v10, s[44:47], s27 offen offset:2048 lds
    s_add_u32 s40, s40, 128
    buffer_load_dwordx4 v10, s[44:47], s26 offen offset:3072 lds
    s_add_u32 s41, s41, {64*3456}
    s_add_u32 s24, s24, 1
    s_cmp_eq_u32 s24, 9
    s_cselect_b32 s26, 1152, 0
    s_cselect_b32 s27, {WB}, 0
    s_sub_u32 s40, s40, s26
    s_sub_u32 s41, s41, s27
    s_add_u32 s42, s42, 32768
    s_cmp_ge_u32 s42, {RING}
    s_cselect_b32 s26, {RING}, 0
    s_sub_u32 s42, s42, s26
{l}:
    """)

def gen_gemm(g):
    A = g.A
    ROT = opt('ROT', 1)
    A(f"""
    s_and_b32 s17, s2, 7               ; xcd
    s_lshr_b32 s18, s2, 3              ; idx 0..27
    s_and_b32 s19, s17, 3
    s_lshl_b32 s19, s19, 2
    s_and_b32 s20, s18, 3
    s_add_u32 s19, s19, s20            ; mb
    s_lshr_b32 s21, s17, 2
    s_mul_i32 s21, s21, 7
    s_lshr_b32 s22, s18, 2
    s_add_u32 s21, s21, s22            ; ng
    s_cmp_lt_u32 s16, 4
    s_cbranch_scc1 Lg_compute
    s_and_b32 s23, s16, 3              ; u
    """)
    if ROT:
        A("""
        s_mul_i32 s24, s20, 5
        s_lshr_b32 s24, s24, 1
        s_add_u32 s24, s24, s22
        s_cmp_ge_u32 s24, 9
        s_cselect_b32 s25, 9, 0
        s_sub_u32 s24, s24, s25
        """)
    else: A("s_mov_b32 s24, 0")
    A(f"""
    s_lshl_b32 s25, s19, 7
    s_lshl_b32 s26, s23, 5
    s_add_u32 s25, s25, s26
    s_mul_i32 s25, s25, 1152
    s_lshl_b32 s26, s24, 7
    s_add_u32 s40, s25, s26            ; sX
    s_lshl_b32 s25, s24, 2
    s_add_u32 s25, s25, s23
    s_mul_i32 s25, s25, {16*3456}
    s_lshl_b32 s26, s21, 8
    s_add_u32 s41, s25, s26            ; sW
    s_lshl_b32 s42, s23, 12
    v_lshrrev_b32 v{vT0}, 3, v0
    v_mul_u32_u24 v{vT0}, 1152, v{vT0}
    v_lshrrev_b32 v{vT1}, 4, v0
    v_and_b32 v{vT2}, 7, v0
    v_xor_b32 v{vT2}, v{vT2}, v{vT1}
    v_lshl_add_u32 v8, v{vT2}, 4, v{vT0}
    v_xor_b32 v{vT2}, 4, v{vT2}
    v_lshl_add_u32 v9, v{vT2}, 4, v{vT0}       ; odd i
    v_mul_u32_u24 v{vT0}, 3456, v{vT1}
    v_and_b32 v{vT2}, 15, v0
    v_lshlrev_b32 v{vT1}, 2, v{vT1}
    v_xor_b32 v{vT2}, v{vT2}, v{vT1}
    v_lshl_add_u32 v10, v{vT2}, 4, v{vT0}      ; W addr
    s_mov_b32 s95, 0
    s_setprio {opt('LPRIO', 0)}
    s_waitcnt lgkmcnt(0)
    """)
    g.srd(8, pX, XB); g.srd(44, pW, WB)
    A(f"""
    s_mov_b32 s31, 0
Lld:
    s_cmp_lt_u32 s31, 2
    s_cbranch_scc1 Lld_go
    s_waitcnt vmcnt(8)
    s_barrier
Lld_go:
    """)
    ld_chunk(g, False)
    A(f"""
    s_add_u32 s31, s31, 1
    s_cmp_lt_u32 s31, 9
    s_cbranch_scc1 Lld
    s_waitcnt vmcnt(8)
    s_barrier
    """)
    g.srd(12, pWS, WS_END)
    A(f"""
    s_waitcnt vmcnt(0)
    s_barrier
    s_branch Lh_start
Lg_compute:
    s_and_b32 s23, s16, 1              ; wm
    s_lshr_b32 s24, s16, 1             ; wn
    v_and_b32 v{vTok}, 31, v0
    v_lshrrev_b32 v{vHf}, 5, v0
    s_lshl_b32 s25, s23, 13
    v_lshlrev_b32 v{vT0}, 7, v{vTok}
    v_add_u32 v{vT0}, s25, v{vT0}
    v_bfe_u32 v{vT1}, v0, 1, 3
    v_xor_b32 v{vT1}, v{vT1}, v{vHf}
    """)
    for s in range(4):
        A(f"v_xor_b32 v{vT2}, {2*s}, v{vT1}\nv_lshl_add_u32 v{vXb+s}, v{vT2}, 4, v{vT0}")
    A(f"""
    v_bfe_u32 v{vT0}, v0, 2, 2
    v_lshl_add_u32 v{vT1}, v{vHf}, 3, v{vT0}
    v_lshlrev_b32 v{vT1}, 8, v{vT1}
    v_bfe_u32 v{vT2}, v0, 4, 1
    v_lshl_add_u32 v{vT1}, v{vT2}, 5, v{vT1}
    v_and_b32 v{vT2}, 3, v0
    v_lshl_add_u32 v{vT1}, v{vT2}, 3, v{vT1}
    s_lshl_b32 s25, s24, 1
    v_xor_b32 v{vT2}, s25, v{vT0}
    v_lshl_add_u32 v{vWb}, v{vT2}, 6, v{vT1}
    v_xor_b32 v{vT2}, 1, v{vT2}
    v_lshl_add_u32 v{vWb+1}, v{vT2}, 6, v{vT1}
    s_mov_b32 s30, 0
    s_waitcnt lgkmcnt(0)
    """)
    g.srd(12, pWS, WS_END)
    gen_init_misc(g, PK+8)
    g_setaddr(A)
    for i in range(64): A(f"v_mov_b32 v{ACC+i}, 0")
    A(f"""
    s_lshl_b32 s26, s19, 2
    s_lshl_b32 s27, s23, 1
    s_add_u32 s26, s26, s27            ; T0
    s_waitcnt lgkmcnt(0)
    s_cmp_ge_u32 s21, 9
    s_cbranch_scc1 Lg_vtype
    s_lshl_b32 s27, s21, 5
    s_lshl_b32 s28, s24, 4
    s_add_u32 s27, s27, s28
    v_add_u32 v{vT0}, s27, v{vHf}      ; G0
    s_lshl_b32 s28, s26, 10
    s_lshl_b32 s29, s26, 8
    s_add_u32 s29, s29, {LEFT}
    v_lshlrev_b32 v{vTok}, 3, v{vTok}
    v_add_u32 v{PK}, s29, v{vTok}
    v_add_u32 v{PK+1}, s28, v{vTok}
    v_add_u32 v{PK+2}, {MB-1280}, v{PK+1}
    v_mov_b32 v{PK+3}, 256
    v_mov_b32 v{PK+4}, 1024
    s_mov_b32 s32, {PAIR}
    """)
    for jg in range(8):
        A(f"""
        v_add_u32 v{vT1}, {8*(jg>>2) + 2*(jg&3)}, v{vT0}
        v_mul_u32_u24 v{vT2}, 7282, v{vT1}
        v_lshrrev_b32 v{vT2}, 16, v{vT2}
        v_mul_u32_u24 v{vT3}, 9, v{vT2}
        v_sub_u32 v{vT1}, v{vT1}, v{vT3}
        v_cmp_lt_u32 vcc, 4, v{vT1}
        v_cmp_eq_u32 s[34:35], 4, v{vT1}
        v_mul_u32_u24 v{vT2}, s32, v{vT2}
        v_cndmask_b32 v{vT3}, v{PK+1}, v{PK+2}, vcc
        v_lshl_add_u32 v{vT3}, v{vT1}, 8, v{vT3}
        v_cndmask_b32 v{vT3}, v{vT3}, v{PK}, s[34:35]
        v_cndmask_b32 v{vT1}, v{PK+4}, v{PK+3}, s[34:35]
        v_add_u32 v{vEA+jg}, v{vT2}, v{vT3}
        v_add_u32 v{vEA+8+jg}, v{vEA+jg}, v{vT1}
        """)
    g.stamp(1)
    g_loop(g, "Lg_qk", False)
    g.stamp(2)
    A(f"""
    s_lshl_b32 s27, s21, 2
    s_lshl_b32 s28, s24, 1
    s_add_u32 s27, s27, s28
    s_cmp_lt_u32 s27, 18
    s_cselect_b32 s28, {CS_BITS}, 1.0
    s_nop 7
    """)
    n = 0
    for i in range(2):
        for j in range(2):
            for q in range(4):
                a = acc(i, j) + 4*q
                p = PK + 2*(n % 8); n += 1
                for e in range(4): A(f"v_mul_f32 v{a+e}, s28, v{a+e}")
                A(f"v_cvt_pk_bf16_f32 v{p}, v{a}, v{a+1}\nv_cvt_pk_bf16_f32 v{p+1}, v{a+2}, v{a+3}")
                A(f"buffer_store_dwordx2 {V(p,2)}, v{vEA+8*i+4*j+q}, s[12:15], 0 offen {SC}")
    A(f"""
    s_branch Lg_done
Lg_vtype:
    s_sub_u32 s27, s21, 9
    s_lshl_b32 s27, s27, 7
    s_lshl_b32 s28, s24, 6
    s_add_u32 s27, s27, s28
    s_mul_i32 s28, s26, 36864
    s_add_u32 s28, s28, {VG}
    v_mul_u32_u24 v{vT3}, 9216, v{vHf}
    v_add_u32 v{vT0}, s27, v{vTok}
    v_lshl_add_u32 v{vEA}, v{vT0}, 4, v{vT3}
    """)
    g.stamp(1)
    g_loop(g, "Lg_v", True)
    g.stamp(2)
    A(f"""
    s_cmp_ge_u32 s27, 576
    s_cbranch_scc1 Lg_done
    s_nop 7
    """)
    n = 0
    for i in range(2):
        for j in range(2):
            for m in range(2):
                a = acc(i, j) + 8*m
                p = PK + 4*(n % 4); n += 1
                for e in range(4): A(f"v_cvt_pk_bf16_f32 v{p+e}, v{a+2*e}, v{a+2*e+1}")
                A(f"s_add_u32 s29, s28, {i*36864+m*18432}")
                A(f"buffer_store_dwordx4 {V(p,4)}, v{vEA}, s[12:15], s29 offen offset:{512*j} {SC}")
    A(f"""
Lg_done:
    s_setprio 2
    """)
    g.stamp(15)
    A("s_cmp_lg_u32 s16, 0\ns_cbranch_scc1 Lg_d2")
    g.ready(8)
    A("Lg_d2:\ns_waitcnt vmcnt(0) lgkmcnt(0)")
    g.stamp(3)
    g.gsync(5, 8)
    A("s_cmp_lg_u32 s16, 0\ns_cbranch_scc1 Lattn")
    g.stamp(16)
    g.signal("s21", 8)
    if g.dbg: A("s_waitcnt vmcnt(0)")
    g.stamp(17)
    A("s_branch Lattn")

def gen_init_misc(g, t):
    A = g.A
    for i in range(2):
        A(f"""
        s_and_b32 s25, s16, 3
        s_lshl_b32 s25, s25, 7
        s_add_u32 s25, s25, {64*i-14 & 0xffffffff}
        v_add_u32 v{t+4}, s25, v0
        v_mul_u32_u24 v{t+5}, 1821, v{t+4}
        v_lshrrev_b32 v{t+5}, 16, v{t+5}
        v_mul_u32_u24 v{t+5}, 36, v{t+5}
        v_cmp_eq_u32 s[34:35], v{t+5}, v{t+4}
        v_cmp_gt_u32 vcc, {36*8}, v{t+4}
        v_mov_b32 v{t+5}, 0x3f803f80
        v_lshlrev_b32 v{t+4}, 4, v{t+4}
        s_and_b64 vcc, vcc, s[34:35]
        v_add_u32 v{t+4}, {CONST+224}, v{t+4}
        v_cndmask_b32 v{t}, 0, v{t+5}, vcc
        v_cndmask_b32 v{t+1}, 0, v{t+5}, vcc
        v_cndmask_b32 v{t+2}, 0, v{t+5}, vcc
        v_cndmask_b32 v{t+3}, 0, v{t+5}, vcc
        ds_write_b128 v{t+4}, {V(t,4)}
        """)

import k2, k3
from k2 import m16, m8, phase, maxtree
from k2 import vL8, vKM, vKL, vV, vL16, vV0, vVinc, Q1A, Q1B, Q2A, Q2B, NMA, NMB, SA, SB, PA, PB, OA, OB, KB, KL, VB
aT0, aT1, aT2, aT3 = 5, 6, 7, 8
TMP = 168
vCA, vCR, vOne, vKM0, vKL0, vG0, vG1, vG2 = range(176, 184)
bKG, bVG, b5G, bRD, bTR, bBW, bBR, bUO, bZP, bPG = range(184, 194)
CM = 216
FLAG = SY + 40

def head_params(A):
    A(f"""
    s_and_b32 s17, s2, 7
    s_lshl_b32 s17, s17, 2
    s_bfe_u32 s25, s2, 0x20003
    s_add_u32 s17, s17, s25            ; h
    s_lshr_b32 s18, s2, 5              ; qb
    s_and_b32 s20, s16, 3              ; qg / u
    s_and_b32 s21, s17, 1              ; parity
    s_lshr_b32 s26, s17, 1             ; pair
    v_lshlrev_b32 v{vL16}, 4, v0
    s_mul_i32 s39, s26, {PAIR}
    s_mul_i32 s28, s21, {LEFT}
    s_add_u32 s27, s39, s28
    s_add_u32 s27, s27, {KV}
    s_add_u32 s8, s{pWS}, s27
    s_addc_u32 s9, s{pWS+1}, 0
    s_mov_b32 s10, {WIN}
    s_mov_b32 s11, 0x20000
    s_lshl_b32 s22, s21, 14
    s_add_u32 s23, s22, 65536
    s_cmp_eq_u32 s21, 0
    s_cselect_b32 s24, {LEFT}, 0
    s_lshl_b32 s25, s20, 10
    s_add_u32 s40, s22, s25
    s_add_u32 s41, s23, s25
    s_add_u32 s42, s23, 8192
    s_and_b32 s44, s20, 1
    s_lshl_b32 s44, s44, 10
    s_add_u32 s44, s44, s24
    s_mul_i32 s43, s17, 288
    s_add_u32 s43, s43, {VG}
    s_add_u32 s46, s44, s27
    s_cmp_eq_u32 s20, 0
    s_cselect_b32 s42, s42, s44
    s_cselect_b32 s44, s43, s46
    s_cselect_b32 s45, 9, 2
    s_cselect_b32 s47, 288, 2
    s_cselect_b64 vcc, -1, 0
    s_lshl_b32 s45, s45, 10
    s_lshl_b32 s47, s47, 10
    s_lshl_b32 s25, s20, 6
    s_add_u32 s46, s25, 256
    """)
    for r, base in ((vG0, "s25"), (vG1, "s46"), (vG2, "512")):
        A(f"""
        v_add_u32 v{aT0}, {base}, v0
        v_mul_u32_u24 v{aT2}, 3641, v{aT0}
        v_lshrrev_b32 v{aT2}, 16, v{aT2}
        v_mul_u32_u24 v{aT3}, {9216-288}, v{aT2}
        v_lshl_add_u32 v{r}, v{aT0}, 4, v{aT3}
        """)
    A(f"v_cndmask_b32 v{vG2}, v{vL16}, v{vG2}, vcc")

def dma_skip(A, n):
    A(f"""
    s_add_u32 s40, s40, {(n*8192) & 0xffffffff}
    s_add_u32 s41, s41, {(n*9216) & 0xffffffff}
    s_add_u32 s43, s43, {(n*8*36864) & 0xffffffff}
    s_mul_i32 s25, s45, {n}
    s_add_u32 s42, s42, s25
    s_mul_i32 s25, s47, {n}
    s_add_u32 s44, s44, s25
    """)

def dma_iter(A):
    A(f"""
    s_mov_b32 m0, s40
    s_add_u32 s46, s40, 4096
    buffer_load_dwordx4 v{vL16}, s[8:11], s40 offen lds {SC}
    s_mov_b32 m0, s46
    s_add_u32 s40, s40, 8192
    buffer_load_dwordx4 v{vL16}, s[8:11], s46 offen lds {SC}
    s_mov_b32 m0, s41
    s_add_u32 s46, s41, 4096
    buffer_load_dwordx4 v{vG0}, s[12:15], s43 offen lds {SC}
    s_mov_b32 m0, s46
    s_add_u32 s41, s41, 9216
    buffer_load_dwordx4 v{vG1}, s[12:15], s43 offen lds {SC}
    s_mov_b32 m0, s42
    s_add_u32 s43, s43, {8*36864}
    buffer_load_dwordx4 v{vG2}, s[12:15], s44 offen lds {SC}
    s_add_u32 s42, s42, s45
    s_add_u32 s44, s44, s47
    """)
def dma_n(g, n):
    l = g.lab("Ldm")
    g.A(f"s_mov_b32 s31, {n}\n{l}:")
    dma_iter(g.A)
    g.A(f"s_sub_u32 s31, s31, 1\ns_cmp_lg_u32 s31, 0\ns_cbranch_scc1 {l}")

def avail_add(g, units):
    l = g.lab("Lav")
    g.A(f"""
    s_cmp_lg_u32 s16, 4
    s_cbranch_scc1 {l}
    v_mov_b32 v{TMP}, {units << 8}
    s_mov_b64 exec, 15
    ds_add_u32 v{bPG}, v{TMP}
    s_mov_b64 exec, -1
{l}:
    """)
def wait_progress(g, n, sl=4):
    l = g.lab("Lq"); d = g.lab("Ld")
    g.A(f"""
    s_mov_b32 s93, {SPIN}
{l}:
    ds_read_b32 v{TMP}, v{bPG}
    s_waitcnt lgkmcnt(0)
    v_and_b32 v{TMP}, 0xff, v{TMP}
    v_cmp_gt_u32 vcc, {n}, v{TMP}
    s_nop 3
    s_cmp_eq_u64 vcc, 0
    s_cbranch_scc1 {d}
    s_sleep {sl}
    s_sub_u32 s93, s93, 1
    s_cmp_lg_u32 s93, 0
    s_cbranch_scc1 {l}
{d}:
    """)

def gen_stage1(g):
    A = g.A
    KR, VR, CR, UU, OUT = 40, 60, 68, 84, 136
    T = TMP
    R = kconv.ConvRegs(16)
    A("s_waitcnt lgkmcnt(0)")
    g.srd(12, pWS, WS_END)
    A(f"""
    s_sub_u32 s17, s2, 224
    s_cmp_ge_u32 s16, 4
    s_cbranch_scc1 Lx_h
    s_mov_b32 s95, 1
    s_mov_b32 s18, 8
    s_lshl_b32 s19, s17, 1
    s_add_u32 s19, s19, 512
    s_mov_b32 s96, 0
    s_mov_b32 s97, 24576
    s_mov_b32 s99, 65536
    s_branch Lb_setup
Lx_h:
    s_cmp_ge_u32 s17, {NREP}
    s_cbranch_scc1 Lx_1
    s_cmp_lg_u32 s16, 4
    s_cbranch_scc1 Lx_1
    v_lshlrev_b32 v11, 8, v0
    v_mov_b32 v12, 0
    s_lshl_b32 s25, s17, 15
    s_add_u32 s25, s25, {CNT}
    buffer_store_dword v12, v11, s[12:15], s25 offen {SC}
    s_add_u32 s25, s25, 16384
    s_mov_b64 exec, 0xfffff
    buffer_store_dword v12, v11, s[12:15], s25 offen {SC}
    s_mov_b64 exec, -1
Lx_1:
    s_getpc_b64 s[26:27]
Lpc0:
    s_add_u32 s26, s26, Lcode_begin-Lpc0
    s_addc_u32 s27, s27, -1
    s_and_b32 s25, s16, 3
    s_lshl_b32 s25, s25, 13
    v_lshlrev_b32 v13, 7, v0
    v_add_u32 v13, s25, v13
    v_min_u32 v13, Lcode_end-Lcode_begin-4, v13
    v_mov_b32 v15, s27
    v_add_co_u32 v14, vcc, s26, v13
    s_nop 1
    v_addc_co_u32 v15, vcc, 0, v15, vcc
    global_load_dword v210, v[14:15], off
    """)
    gen_init_misc(g, 144)
    A(f"""
    s_waitcnt lgkmcnt(0)
    s_barrier
    s_cmp_ge_u32 s17, {NREP}
    s_cbranch_scc1 Lh_start
    s_cmp_lg_u32 s16, 4
    s_cbranch_scc1 Lh_start
    s_lshl_b32 s27, s17, 2
    v_mov_b32 v11, s27
    v_mov_b32 v12, 1
    s_mov_b64 exec, 1
    s_waitcnt vmcnt(1)
    global_store_dword v11, v12, s[{pDBG}:{pDBG+1}] {SC}
    s_mov_b64 exec, -1
Lh_start:
    s_mov_b32 s95, 0
    s_lshr_b32 s17, s2, 3              ; tb
    s_and_b32 s18, s2, 7               ; cb
    s_lshl_b32 s19, s2, 1
    s_bfe_u32 s25, s2, 0x10003
    s_lshl_b32 s96, s25, 14
    s_add_u32 s97, s96, 65536          ; V blocks 0..2
    s_add_u32 s99, s96, {65536+6*9216}
Lb_setup:
    s_and_b32 s23, s16, 3              ; u
    v_and_b32 v{vT0}, 7, v0            ; cc
    v_lshrrev_b32 v{vT1}, 3, v0        ; tg
    s_lshl_b32 s21, s18, 9
    v_lshlrev_b32 v{vT3}, 6, v{vT0}
    """)
    g.srd(4, pSH, 576*8)
    for i in range(4): A(f"buffer_load_dwordx4 {V(CR+4*i,4)}, v{vT3}, s[4:7], s21 offen offset:{16*i}")
    A(f"""
    s_mul_i32 s20, s17, {64*1152}
    s_lshl_b32 s21, s18, 7
    s_add_u32 s20, s20, s21
    v_mul_u32_u24 v{vT2}, 1152, v{vT1}
    v_lshl_add_u32 v{vT2}, v{vT0}, 4, v{vT2}
    v_add_u32 v{vT2}, s20, v{vT2}
    v_add_u32 v{b5G}, {61*1152}, v{vT2}
    s_mul_i32 s20, s23, {8*1152}
    v_add_u32 v{bVG}, s20, v{vT2}
    v_subrev_u32 v{bKG}, {3*1152}, v{bVG}
    v_lshlrev_b32 v{vL16}, 4, v0
    s_add_u32 s28, s97, 9344
    s_lshr_b32 s25, s23, 1
    s_add_u32 s98, s19, s25            ; channel
    s_cmp_eq_u32 s25, 0
    s_cselect_b32 s96, s96, s28
    s_mul_i32 s25, s25, 4672
    s_add_u32 s97, s97, s25
    s_add_u32 s97, s97, 576
    s_lshl_b32 s25, s19, 1
    s_load_dword s100, s[{pD}:{pD+1}], s25
    s_cmp_eq_u32 s95, 1
    s_cbranch_scc1 Lb_load
Lb_setup2:
    v_lshlrev_b32 v{bRD}, 8, v{vT1}
    v_lshl_add_u32 v{bRD}, v{vT0}, 4, v{bRD}
    s_lshl_b32 s25, s23, 11
    s_add_u32 s25, s25, s99
    v_add_u32 v{bRD}, s25, v{bRD}
    v_lshrrev_b32 v{vT2}, 4, v0
    v_and_b32 v{vT3}, 15, v0
    v_lshlrev_b32 v{vT3}, 7, v{vT3}
    v_lshl_add_u32 v{bBW}, v{vT2}, 4, v{vT3}
    v_add_u32 v{bBW}, s25, v{bBW}
    v_add_u32 v{bBR}, s25, v{vL16}
    v_bfe_u32 v{vT3}, v0, 2, 2
    v_lshl_add_u32 v{bTR}, v{vT2}, 3, v{vT3}
    v_lshlrev_b32 v{bTR}, 7, v{bTR}
    v_and_b32 v{vT3}, 3, v0
    v_lshl_add_u32 v{bTR}, v{vT3}, 3, v{bTR}
    v_lshlrev_b32 v{bPG}, 8, v{vT3}
    v_add_u32 v{bPG}, {UC}, v{bPG}
    s_lshl_b32 s25, s23, 5
    s_add_u32 s25, s25, s99
    v_add_u32 v{bTR}, s25, v{bTR}
    v_lshlrev_b32 v{bUO}, 12, v{vT1}
    v_lshl_add_u32 v{bUO}, v{vT0}, 4, v{bUO}
    s_lshl_b32 s22, s18, 2
    s_add_u32 s22, s22, s23
    s_lshl_b32 s22, s22, 16
    s_lshl_b32 s25, s17, 7
    s_add_u32 s22, s22, s25
    s_add_u32 s22, s22, {UT}
    v_add_u32 v{bUO}, s22, v{bUO}
    v_min_u32 v{bZP}, 35, v0
    v_lshlrev_b32 v{bZP}, 4, v{bZP}
    s_sub_u32 s25, s97, 576
    v_add_u32 v{bZP}, s25, v{bZP}
    s_waitcnt lgkmcnt(0)
    """)
    conv_setup(A, R)
    A("s_mov_b32 s29, 0xffff0000\ns_mov_b32 s28, 0xffff\ns_waitcnt vmcnt(0)")
    for c in range(8):
        for j in range(4):
            d, e, src = CM + 8*(c >> 1) + 2*j + (c & 1), c & 1, CR + 2*c + (j >> 1)
            if (j & 1) == e: A(f"v_and_b32 v{d}, {'s29' if e else 's28'}, v{src}")
            elif e: A(f"v_lshlrev_b32 v{d}, 16, v{src}")
            else: A(f"v_lshrrev_b32 v{d}, 16, v{src}")
    A(f"""
    s_cmp_eq_u32 s95, 0
    s_cbranch_scc1 Lh_kv
    s_barrier
    s_branch Lb_s0
Lh_kv:
    """)
    head_params(A)
    dma_skip(A, 1)
    g.wait_words(SY, 7, T, sl=2)
    A(f"s_setprio {opt('CPRIO', 1)}")
    dma_n(g, 2)
    A("s_waitcnt vmcnt(0)")
    g.gsync(1, T)
    avail_add(g, 4)
    A(f"""
Lb_load:
    s_and_b32 s28, s16, 3
    s_lshl_b32 s25, s28, 10
    s_add_u32 s25, s25, s99
    """)
    g.srd(4, pK, XB)
    A(f"""
    s_mov_b32 m0, s25
    s_add_u32 s27, s25, 4096
    buffer_load_dwordx4 v{bKG}, s[4:7], 0 offen {NTB} lds
    s_mov_b32 m0, s27
    v_add_u32 v{bKG}, {32*1152}, v{bKG}
    s_add_u32 s27, s99, 8192
    buffer_load_dwordx4 v{bKG}, s[4:7], 0 offen {NTB} lds
    s_mov_b32 m0, s27
    s_add_u32 s27, s25, 9216
    buffer_load_dwordx4 v{b5G}, s[4:7], 0 offen lds
    s_mov_b32 s4, s{pV}
    s_mov_b32 s5, s{pV+1}
    s_mov_b32 m0, s27
    s_add_u32 s27, s27, 4096
    buffer_load_dwordx4 v{bVG}, s[4:7], 0 offen {NTB} lds
    s_mov_b32 m0, s27
    s_mov_b32 s27, {32*1152}
    buffer_load_dwordx4 v{bVG}, s[4:7], s27 offen {NTB} lds
    s_mov_b32 s4, s{pH}
    s_mov_b32 s5, s{pH+1}
    s_and_b32 s25, s28, 1
    s_lshl_b32 s25, s25, 11
    s_lshl_b32 s27, s98, 12
    s_add_u32 s27, s27, s25
    v_lshlrev_b32 v{T}, 3, v{vL16}
    s_mov_b64 exec, 0xffff
    buffer_load_dword v209, v{T}, s[4:7], s27 offen
    s_mov_b64 exec, -1
    s_cmp_eq_u32 s95, 1
    s_cbranch_scc1 Lb_setup2
    """)
    dma_n(g, 3)
    A("s_waitcnt vmcnt(16)\nLb_s0:")
    g.gsync(2, T)
    g.stamp(1)
    for n in range(5): A(f"ds_read_b128 {V(KR+4*n,4)}, v{bRD} offset:{128*n}")
    for t in range(2): A(f"ds_read_b128 {V(VR+4*t,4)}, v{bRD} offset:{9216+128*t}")
    A("s_mov_b32 s29, 0xffff0000\ns_waitcnt lgkmcnt(2)")
    for j in range(4):
        for d in range(4):
            for t in range(2):
                for e in range(2):
                    u = UU + 4*d + 2*t + e
                    if j == 0: A(f"v_dot2_f32_bf16 v{u}, v{KR+4*(t+3)+d}, v{CM+8*d+e}, 0")
                    else: A(f"v_dot2c_f32_bf16 v{u}, v{KR+4*(t+3-j)+d}, v{CM+8*d+2*j+e}")
    A("s_waitcnt lgkmcnt(0)")
    for d in range(4):
        for t in range(2):
            x = UU + 16 + 4*d + 2*t
            A(f"v_lshlrev_b32 v{x}, 16, v{VR+4*t+d}\nv_and_b32 v{x+1}, s29, v{VR+4*t+d}")
    for i in range(8): A(f"v_pk_mul_f32 {V(UU+2*i,2)}, {V(UU+2*i,2)}, {V(UU+16+2*i,2)}")
    for d in range(4):
        for t in range(2): A(f"v_cvt_pk_bf16_f32 v{OUT+4*t+d}, v{UU+4*d+2*t}, v{UU+4*d+2*t+1}")
    A(f"""
    ds_write_b128 v{bRD}, {V(OUT,4)} offset:9216
    ds_write_b128 v{bRD}, {V(OUT+4,4)} offset:{9216+128}
    s_waitcnt lgkmcnt(0)
    """)
    g.gsync(3, T)
    for i in range(2):
        A(f"ds_read_b64_tr_b16 {V(OUT+4*i,2)}, v{bTR} offset:{9216+4096*i}")
        A(f"ds_read_b64_tr_b16 {V(OUT+4*i+2,2)}, v{bTR} offset:{9216+4096*i+512}")
    A(f"""
    s_mov_b32 s27, 32768
    s_waitcnt lgkmcnt(0)
    ds_write_b128 v{bBW}, {V(OUT,4)}
    ds_write_b128 v{bBW}, {V(OUT+4,4)} offset:64
    ds_read_b128 {V(OUT+8,4)}, v{bBR}
    ds_read_b128 {V(OUT+12,4)}, v{bBR} offset:1024
    s_waitcnt lgkmcnt(0)
    buffer_store_dwordx4 {V(OUT+8,4)}, v{bUO}, s[12:15], 0 offen {SC}
    buffer_store_dwordx4 {V(OUT+12,4)}, v{bUO}, s[12:15], s27 offen {SC}
    """)
    g.stamp(2)
    A("s_cmp_lg_u32 s16, 0\ns_cbranch_scc1 Lb_nr")
    g.ready(T)
    A("Lb_nr:\ns_waitcnt vmcnt(0)")
    g.stamp(3)
    g.gsync(4, T)
    A("s_cmp_eq_u32 s95, 1\ns_cbranch_scc1 Lc_x")
    avail_add(g, 6)
    A("s_cmp_lg_u32 s16, 4\ns_cbranch_scc1 Lc_k\ns_and_b32 s25, s2, 15\ns_add_u32 s25, s25, 64")
    g.signal("s25", T)
    A("Lc_k:")
    dma_n(g, 2)
    A("s_cmp_lg_u32 s16, 4\ns_cbranch_scc1 Lc_w")
    wait_progress(g, 7, 8)
    g.poll(64, 16, 16, T, sl=opt('USLEEP', 4))
    A("s_branch Lc_pd\nLc_x:\ns_cmp_lg_u32 s16, 0\ns_cbranch_scc1 Lc_w\ns_and_b32 s25, s2, 3\ns_add_u32 s25, s25, 80")
    g.signal("s25", T)
    g.poll(80, 4, 8, T, sl=2)
    A(f"""
Lc_pd:
    s_lshr_b32 s25, s16, 2
    s_add_u32 s25, s25, 1
    v_mov_b32 v{T}, {SY+36}
    v_mov_b32 v{T+1}, s25
    ds_write_b32 v{T}, v{T+1}
Lc_w:
    s_lshr_b32 s91, s16, 2
    s_add_u32 s91, s91, 1
    """)
    g.wait_words(SY+36, "s91", T, n=1, sl=opt('WSL', 8))
    g.stamp(4)
    A(f"""
    s_and_b32 s28, s16, 1
    s_lshl_b32 s25, s28, 11
    s_add_u32 s27, s97, s25
    s_mov_b32 m0, s27
    s_lshl_b32 s27, s98, 12
    s_add_u32 s27, s27, s25
    buffer_load_dwordx4 v{vL16}, s[4:7], s27 offen lds
    buffer_load_dwordx4 v{vL16}, s[4:7], s27 offen offset:1024 lds
    ds_write_b128 v{bZP}, {V(R.acc,4)}
    s_mul_i32 s25, s28, {2*4160}
    s_add_u32 s25, s25, s96
    s_add_u32 s25, s25, 64
    s_lshl_b32 s27, s28, 2
    s_sub_u32 s27, s101, s27
    s_sub_u32 s27, s27, {YT-UT}
    """)
    for c in range(2):
        A("s_mov_b32 m0, s25\ns_nop 0")
        for i in range(4): A(f"buffer_load_dwordx4 v{vL16}, s[12:15], s27 offen offset:{1024*i} lds {SC}")
        if c == 0: A("s_add_u32 s25, s25, 4160\ns_sub_u32 s27, s27, 2")
    A("s_waitcnt vmcnt(0) lgkmcnt(0)")
    g.gsync(5, T)
    avail_add(g, 4)
    A(f"s_setprio {opt('VPRIO', 0)}")
    g.stamp(5)
    A("s_cmp_eq_u32 s28, 0\ns_cbranch_scc0 Lc_set1")
    kconv.conv_main(A, R, "Lc_l0", 0)
    A("s_setprio 1")
    kconv.conv_epi(A, R, 0, "s96", "s100", "s101", "s[12:15]", SC)
    A("s_branch Lc_done\nLc_set1:")
    kconv.conv_main(A, R, "Lc_l1", 1)
    A("s_setprio 1")
    kconv.conv_epi(A, R, 1, "s96", "s100", "s101", "s[12:15]", SC)
    A("Lc_done:\ns_waitcnt vmcnt(0)")
    g.stamp(6)
    g.gsync(6, T)
    A("s_and_b32 s25, s16, 3\ns_cmp_lg_u32 s25, 0\ns_cbranch_scc1 Lc_e\ns_and_b32 s25, s2, 15\ns_add_u32 s25, s25, 16")
    g.signal("s25", T)
    A("Lc_e:\ns_cmp_eq_u32 s95, 0\ns_cbranch_scc1 Lh_p3")

def conv_setup(A, R):
    A(f"""
    v_bfe_u32 v{R.t0}, v0, 2, 2
    v_mul_u32_u24 v{R.aA}, 4160, v{R.t0}
    v_and_b32 v{R.t0}, 3, v0
    v_lshl_add_u32 v{R.aA}, v{R.t0}, 3, v{R.aA}
    v_lshrrev_b32 v{R.t0}, 4, v0
    v_lshlrev_b32 v{R.aB}, 4, v{R.t0}
    v_sub_u32 v{R.aA}, v{R.aA}, v{R.aB}
    s_add_u32 s25, s96, {64+32-8}
    v_add_u32 v{R.aA}, s25, v{R.aA}
    v_and_b32 v{R.aU}, 15, v0
    v_lshlrev_b32 v{R.aU}, 5, v{R.aU}
    v_add_u32 v{R.aB}, v{R.aB}, v{R.aU}
    s_sub_u32 s25, s97, 96
    v_add_u32 v{R.aB}, s25, v{R.aB}
    v_lshl_add_u32 v{R.aU}, v{R.t0}, 3, v{R.aU}
    v_and_b32 v{R.mask}, 15, v0
    v_lshlrev_b32 v{R.t0}, 3, v{R.t0}
    v_sub_u32 v{R.t0}, v{R.mask}, v{R.t0}
    v_add_u32 v{R.t0}, 17, v{R.t0}
    v_mov_b32 v{R.acc}, 0xffff
    v_mov_b32 v{R.acc+1}, 0xffff0000
    """)
    for d in range(4):
        A(f"""
        v_cmp_lt_i32 vcc, {2*d}, v{R.t0}
        v_cmp_lt_i32 s[26:27], {2*d+1}, v{R.t0}
        s_nop 0
        v_cndmask_b32 v{R.mask+d}, 0, v{R.acc}, vcc
        v_cndmask_b32 v{R.acc+2}, 0, v{R.acc+1}, s[26:27]
        v_or_b32 v{R.mask+d}, v{R.mask+d}, v{R.acc+2}
        """)
    for i in range(16): A(f"v_mov_b32 v{R.acc+i}, 0")
    A(f"""
    s_lshl_b32 s101, s98, 12
    s_add_u32 s101, s101, {YT}
    s_lshl_b32 s25, s100, 16
    s_and_b32 s27, s100, 0xffff0000
    s_bitcmp0_b32 s98, 0
    s_cselect_b32 s100, s25, s27       ; D
    """)

def zero_acc(A):
    for i in range(16): A(f"v_mov_b32 v{OA+i}, 0")
    for i in range(16): A(f"v_mov_b32 v{OB+i}, 0")
    for i in range(8): A(f"v_mov_b32 v{PB+i}, 0")
    for i in range(8): A(f"v_mov_b32 v{VB[1]+i}, 0")

def gen_attn(g):
    A = g.A
    A("Lattn:\ns_setprio 2")
    head_params(A)
    A(f"""
    v_lshlrev_b32 v{vL8}, 3, v0
    s_lshl_b32 s31, s18, 3
    s_lshl_b32 s32, s20, 1
    s_add_u32 s32, s31, s32
    s_mul_i32 s34, s21, {MB}
    s_add_u32 s34, s34, s39
    s_lshl_b32 s35, s32, 10
    s_add_u32 s35, s35, s34
    s_add_u32 s34, s39, {LEFT}
    s_lshl_b32 s37, s32, 8
    s_add_u32 s37, s37, s34
    v_and_b32 v{aT1}, 31, v0
    v_lshrrev_b32 v{aT0}, 5, v0
    v_mul_u32_u24 v{aT3}, 288, v{aT0}
    v_lshl_add_u32 v{aT2}, v{aT1}, 4, v{aT3}
    v_add_u32 v{vV0}, s23, v{aT2}
    v_mov_b32 v{vVinc}, {4*VT}
    v_mov_b32 v{aT2}, {CONST+240}
    v_mov_b32 v{aT3}, {CONST+224}
    v_cmp_eq_u32 vcc, 18, v{aT1}
    v_subrev_u32 v{aT0}, 20, v{aT1}
    v_cmp_gt_u32 s[52:53], 8, v{aT0}
    v_cndmask_b32 v{aT2}, v{aT2}, v{aT3}, vcc
    v_mov_b32 v{aT3}, {CONST+176}
    v_cmp_lt_u32 vcc, 17, v{aT1}
    v_cndmask_b32 v{aT2}, v{aT2}, v{aT3}, s[52:53]
    s_mov_b32 s50, 0
    v_cndmask_b32 v{vV0}, v{vV0}, v{aT2}, vcc
    v_cndmask_b32 v{vVinc}, v{vVinc}, 0, vcc
    v_cmp_gt_u32 vcc, 32, v0
    s_cmp_eq_u32 s21, 0
    s_cselect_b64 s[52:53], -1, 0
    s_cselect_b64 s[54:55], 0, -1
    s_and_b64 s[56:57], s[52:53], vcc
    s_and_b64 s[58:59], s[54:55], vcc
    s_andn2_b64 s[60:61], s[52:53], vcc
    s_andn2_b64 s[62:63], s[54:55], vcc
    v_lshlrev_b32 v{aT2}, 3, v{aT1}
    v_add_u32 v{vKM0}, s22, v{vL8}
    v_add_u32 v{vKL0}, s24, v{vL8}
    s_lshl_b32 s25, s20, 8
    s_add_u32 s25, s25, {UC}
    v_lshlrev_b32 v{vCA}, 2, v0
    v_add_u32 v{vCA}, s25, v{vCA}
    v_mov_b32 v{vOne}, 1
    s_mul_i32 s25, s32, {36*1024}
    s_add_u32 s25, s25, {OF}
    s_lshl_b32 s48, s17, 10
    s_add_u32 s48, s48, s25
    s_lshl_b32 s49, s17, 7
    s_add_u32 s49, s49, s25
    s_add_u32 s49, s49, 32768
    """)
    zero_acc(A)
    A("s_cmp_lg_u32 s16, 0\ns_cbranch_scc1 La_w")
    g.poll(0, 14, 16, TMP)
    A(f"""
    v_mov_b32 v{TMP}, {SY+32}
    v_mov_b32 v{TMP+1}, 1
    ds_write_b32 v{TMP}, v{TMP+1}
La_w:
    """)
    g.wait_words(SY+32, 1, TMP, n=1)
    g.stamp(7)
    dma_iter(A)
    A(f"""
    buffer_load_dwordx2 {V(Q1A,2)}, v{vL8}, s[12:15], s35 offen {SC}
    buffer_load_dwordx2 {V(Q1A+2,2)}, v{vL8}, s[12:15], s35 offen offset:512 {SC}
    buffer_load_dwordx2 {V(Q1B,2)}, v{vL8}, s[12:15], s35 offen offset:1024 {SC}
    buffer_load_dwordx2 {V(Q1B+2,2)}, v{vL8}, s[12:15], s35 offen offset:1536 {SC}
    buffer_load_dwordx2 {V(Q2A,2)}, v{aT2}, s[12:15], s37 offen {SC}
    buffer_load_dwordx2 {V(Q2B,2)}, v{aT2}, s[12:15], s37 offen offset:256 {SC}
    s_waitcnt vmcnt(0)
    """)
    g.post(7, TMP)
    for Q in (Q2A, Q2B):
        A(f"""
        v_cndmask_b32 v{Q+2}, 0, v{Q}, s[60:61]
        v_cndmask_b32 v{Q+3}, 0, v{Q+1}, s[62:63]
        v_cndmask_b32 v{Q}, 0, v{Q}, s[56:57]
        v_cndmask_b32 v{Q+1}, 0, v{Q+1}, s[58:59]
        """)
    g.wait_words(SY, 7, TMP)
    g.stamp(8)
    A(f"""
    ds_read2st64_b64 {V(KB[0],4)}, v{vKM0} offset0:0 offset1:1
    ds_read_b64 {V(KL,2)}, v{vKL0}
    s_waitcnt lgkmcnt(0)
    {m16(SA, KB[0], Q1A, 0)}
    {m16(SB, KB[0], Q1B, 0)}
    {m8(SA, KL, Q2A)}
    {m8(SB, KL, Q2B)}
    s_nop 10
    """)
    maxtree(A, aT0, SA)
    maxtree(A, aT1, SB)
    A(f"""
La_setm:
    v_mov_b32 v{aT2}, v{aT0}
    v_mov_b32 v{aT3}, v{aT1}
    v_mov_b32 v{vKM}, v{vKM0}
    v_mov_b32 v{vKL}, v{vKL0}
    v_permlane32_swap_b32 v{aT0}, v{aT2}
    v_permlane32_swap_b32 v{aT1}, v{aT3}
    v_mov_b32 v{vV}, v{vV0}
    ds_read_b128 {V(VB[0],4)}, v{vV0}
    ds_read_b128 {V(VB[0]+4,4)}, v{vV0} offset:576
    v_max_f32 v{aT0}, v{aT0}, v{aT2}
    v_max_f32 v{aT1}, v{aT1}, v{aT3}
    """)
    for i in range(16): A(f"v_sub_f32 v{NMA+i}, 0, v{aT0}")
    A(f"""
    v_sub_f32 v{NMB}, 0, v{aT1}
    s_mov_b32 s51, 0
    {m16(SA, KB[0], Q1A, V(NMA,16))}
    {m8(SA, KL, Q2A)}
    """)
    for i in range(1, 16): A(f"v_sub_f32 v{NMB+i}, 0, v{aT1}")
    A("s_setprio 0")
    g.stamp(9)
    if g.dbg and 'its' in EXP: A("s_mov_b32 s55, 0\nv_mov_b32 v214, 0\nv_writelane_b32 v214, s88, 0\nv_writelane_b32 v214, s90, 32")
    A(".p2align 6\nLa_loop:")
    for j in range(4):
        b = j & 1; nb = b ^ 1
        koff = 2*(j+1)
        ex = [[f"ds_read2st64_b64 {V(KB[nb],4)}, v{vKM} offset0:{koff} offset1:{koff+1}"], [], [], ["s_waitcnt lgkmcnt(0)"]]
        if j == 0:
            ex[0].append(f"ds_read_b64 {V(KL+2,2)}, v{vKL} offset:512")
            ex[2] = ["s_min_u32 s53, s51, 14"]
        if j == 1: ex[0].append(f"ds_add_rtn_u32 v{vCR}, v{vCA}, v{vOne}")
        if j == 2: ex[2] = ["s_lshr_b32 s52, s52, 8"]
        if j == 3:
            ex[0].append(f"ds_read_b64 {V(KL,2)}, v{vKL} offset:1024")
            ex[1] = [f"v_add_u32 v{vV}, v{vVinc}, v{vV}"]
            ex[2] = ["s_cmp_lt_u32 s51, 16"]
        klp = KL + 2*(j >> 1)
        phase(A, SA, PA, [m16(SB, KB[b], Q1B, V(NMB,16)), m8(SB, klp, Q2B + 2*(j & 1)),
                          m16(OB, VB[nb], PB, V(OB,16)), m16(OB, VB[nb]+4, PB+4, V(OB,16))], ex)
        jn = (j+1) & 3
        klp = KL + 2*(jn >> 1)
        ex = [[], [], [f"ds_read_b128 {V(VB[nb],4)}, v{vV} offset:{jn*VT}"], [f"ds_read_b128 {V(VB[nb]+4,4)}, v{vV} offset:{jn*VT+576}"]]
        if j == 0: ex[0] = ["s_add_u32 s51, s51, 1"]
        if j == 1: ex[1] = [f"v_readfirstlane_b32 s52, v{vCR}"]
        if j == 2:
            ex[0] = ["s_cmp_gt_u32 s53, s52"]
            ex[3] += ["s_cbranch_scc1 La_chk", "La_chkd:"]
        if j == 3:
            ex[1] = [f"v_add_u32 v{vKM}, 4096, v{vKM}", f"v_add_u32 v{vKL}, 1024, v{vKL}"]
        phase(A, SB, PB, [m16(SA, KB[nb], Q1A, V(NMA,16)), m8(SA, klp, Q2A + 2*(jn & 1)),
                          m16(OA, VB[b], PA, V(OA,16)), m16(OA, VB[b]+4, PA+4, V(OA,16))], ex)
    if g.dbg and 'its' in EXP:
        A(f"""
        s_memrealtime s[88:89]
        s_memtime s[90:91]
        s_mov_b32 m0, s51
        s_waitcnt lgkmcnt(0)
        v_writelane_b32 v214, s88, m0
        s_add_u32 m0, s51, 32
        s_nop 0
        v_writelane_b32 v214, s90, m0
        s_cmp_lt_u32 s51, 16
        """)
    A("s_cbranch_scc1 La_loop")
    A(f"""
    s_setprio 2
    {m16(OB, VB[1], PB, V(OB,16))}
    {m16(OB, VB[1]+4, PB+4, V(OB,16))}
    """)
    g.stamp(10)
    A(f"v_lshlrev_b32 v{aT2}, 2, v0\nv_mov_b32 v{aT3}, 0")
    for n, (O, P) in enumerate(((OA, PA), (OB, PB))):
        A(f"""
        v_mov_b32 v{aT0}, v{O+10}
        v_mov_b32 v{aT1}, v{O+10}
        """)
        for i in range(11): A(f"v_add_f32 v{aT3}, |v{O+i}|, v{aT3}")
        A(f"""
        v_permlane32_swap_b32 v{aT0}, v{aT1}
        s_nop 1
        v_rcp_f32 v{aT0}, v{aT0}
        s_add_u32 s25, s48, {n*36*1024}
        s_add_u32 s27, s49, {n*36*1024}
        """)
        for i in range(10): A(f"v_mul_f32 v{O+i}, v{O+i}, v{aT0}")
        for i in range(5): A(f"v_cvt_pk_bf16_f32 v{P+i}, v{O+2*i}, v{O+2*i+1}")
        A(f"""
        buffer_store_dwordx4 {V(P,4)}, v{vL16}, s[12:15], s25 offen {SC}
        s_mov_b32 exec_hi, 0
        buffer_store_dword v{P+4}, v{aT2}, s[12:15], s27 offen {SC}
        s_mov_b32 exec_hi, -1
        """)
    A(f"""
    v_mov_b32 v{aT1}, 0x71800000
    v_cmp_nlt_f32 vcc, v{aT3}, v{aT1}
    v_mov_b32 v{aT3}, {FLAG}
    v_mov_b32 v{aT2}, 1
    s_cmp_lg_u32 s50, 0
    s_cbranch_scc1 Lp3
    s_cbranch_vccz Lp3
    ds_write_b32 v{aT3}, v{aT2}
    s_branch Lp3
La_chk:
    s_mov_b32 s93, {SPIN}
La_chk1:
    ds_read_b32 v{vCR}, v{vCA}
    s_waitcnt lgkmcnt(0)
    v_readfirstlane_b32 s52, v{vCR}
    s_lshr_b32 s52, s52, 8
    s_cmp_le_u32 s53, s52
    s_cbranch_scc1 La_chkd
    s_sleep 1
    s_sub_u32 s93, s93, 1
    s_cmp_lg_u32 s93, 0
    s_cbranch_scc1 La_chk1
    s_branch La_chkd
La_slow:
    s_mov_b32 s50, 1
    s_barrier
    v_mov_b32 v{aT0}, {14 << 8}
    ds_write_b32 v{vCA}, v{aT0}
    v_mov_b32 v{aT3}, {FLAG}
    v_mov_b32 v{aT2}, 0
    ds_write_b32 v{aT3}, v{aT2}
    v_mov_b32 v{vKM}, v{vKM0}
    v_mov_b32 v{vKL}, v{vKL0}
    v_mov_b32 v{aT0}, 0xff800000
    v_mov_b32 v{aT1}, 0xff800000
    s_mov_b32 s51, 16
    s_waitcnt lgkmcnt(0)
    s_barrier
La_maxloop:
    ds_read2st64_b64 {V(KL,4)}, v{vKL} offset0:0 offset1:1
    """)
    for j in range(4):
        A(f"""
        ds_read2st64_b64 {V(KB[0],4)}, v{vKM} offset0:{2*j} offset1:{2*j+1}
        s_waitcnt lgkmcnt(0)
        {m16(SA, KB[0], Q1A, 0)}
        {m16(SB, KB[0], Q1B, 0)}
        {m8(SA, KL+2*(j>>1), Q2A+2*(j&1))}
        {m8(SB, KL+2*(j>>1), Q2B+2*(j&1))}
        s_nop 11
        """)
        maxtree(A, aT0, SA, True)
        maxtree(A, aT1, SB, True)
    A(f"""
    v_add_u32 v{vKM}, 4096, v{vKM}
    v_add_u32 v{vKL}, 1024, v{vKL}
    s_sub_u32 s51, s51, 1
    s_cmp_lg_u32 s51, 0
    s_cbranch_scc1 La_maxloop
    ds_read2st64_b64 {V(KB[0],4)}, v{vKM0} offset0:0 offset1:1
    ds_read_b64 {V(KL,2)}, v{vKL0}
    """)
    zero_acc(A)
    A("s_waitcnt lgkmcnt(0)\ns_branch La_setm")

def gen_p3(g):
    A = g.A
    BW, ACC_, AF = 40, 184, 16
    wA = 196
    A(f"""
Lh_slow:
    s_barrier
    """)
    dma_skip(A, -8)
    dma_n(g, 8)
    A(f"""
    s_waitcnt vmcnt(0)
    s_barrier
Lh_p3:
    s_and_b32 s19, s2, 7
    s_lshr_b32 s33, s2, 3
    v_lshlrev_b32 v{TMP}, 7, v0
    s_cmp_ge_u32 s33, 24
    s_cbranch_scc0 Lh_wo
    s_sub_u32 s25, s33, 24
    s_lshl_b32 s27, s19, 3
    s_add_u32 s25, s25, s27
    s_mul_i32 s25, s25, {32*1152}
    s_mul_i32 s27, s20, {72*128}
    s_add_u32 s25, s25, s27
    v_add_u32 v{TMP+1}, s25, v{TMP}
    global_load_dword v210, v{TMP+1}, s[{pQ}:{pQ+1}]
    global_load_dword v211, v{TMP+1}, s[{pQ}:{pQ+1}] offset:1024
    s_branch Lp3
Lh_wo:
    s_lshl_b32 s25, s33, 2
    s_add_u32 s25, s25, s20
    s_mul_i32 s25, s25, {54*128}
    """)
    g.srd(4, pWO, WOB)
    A(f"""
    s_mov_b32 exec_hi, 0x3fffff
    buffer_load_dword v210, v{TMP}, s[4:7], s25 offen
    s_mov_b32 exec_hi, -1
    """)
    for i in range(3):
        A(f"""
        v_add_u32 v1, {64*i}, v0
        v_mul_u32_u24 v2, 5462, v1
        v_lshrrev_b32 v2, 16, v2
        v_mul_u32_u24 v3, 12, v2
        v_sub_u32 v1, v1, v3
        v_mul_u32_u24 v2, 1152, v2
        v_lshl_add_u32 v{wA+i}, v1, 4, v2
        """)
    A(f"""
    v_subrev_u32 v{wA+1}, 1024, v{wA+1}
    v_subrev_u32 v{wA+2}, 2048, v{wA+2}
    s_lshr_b32 s25, s33, 2
    s_mul_i32 s28, s25, 192
    s_mul_i32 s25, s20, {16*1152}
    s_add_u32 s28, s28, s25
    """)
    for half, (n, base) in enumerate(((13, "s23"), (15, "s22"))):
        wait_progress(g, n, 6)
        A(f"""
        s_add_u32 s27, s28, {half*288*1152}
        s_mul_i32 s25, s20, 3072
        s_add_u32 s25, s25, {base}
        s_mov_b32 s31, s20
Lo_wo{half}:
        s_mov_b32 m0, s25
        s_add_u32 s31, s31, 4
        buffer_load_dwordx4 v{wA}, s[4:7], s27 offen lds
        buffer_load_dwordx4 v{wA+1}, s[4:7], s27 offen offset:1024 lds
        buffer_load_dwordx4 v{wA+2}, s[4:7], s27 offen offset:2048 lds
        s_add_u32 s27, s27, {4*16*1152}
        s_add_u32 s25, s25, {4*3072}
        s_cmp_lt_u32 s31, 18
        s_cbranch_scc1 Lo_wo{half}
        """)
    A(f"""
Lp3:
    v_mov_b32 v{TMP+1}, {FLAG}
    s_lshl_b32 s30, s18, 2
    s_lshr_b32 s25, s17, 3
    s_add_u32 s30, s30, s25
    s_add_u32 s30, s30, 32
    s_waitcnt vmcnt(0) lgkmcnt(0)
    s_barrier
    ds_read_b32 v{TMP}, v{TMP+1}
    s_and_b32 s19, s2, 7
    s_lshr_b32 s33, s2, 3
    s_waitcnt lgkmcnt(0)
    v_readfirstlane_b32 s25, v{TMP}
    s_cmp_eq_u32 s25, 0
    s_cbranch_scc1 Lp3_ok
    s_cmp_lt_u32 s16, 4
    s_cbranch_scc1 La_slow
    s_branch Lh_slow
Lp3_ok:
    """)
    g.stamp(11)
    A("s_cmp_lg_u32 s16, 7\ns_cbranch_scc1 Lp3_1")
    g.signal("s30", 14)
    A(f"""
Lp3_1:
    s_cmp_ge_u32 s33, 24
    s_cbranch_scc1 Lp3_s3
    s_and_b32 s17, s33, 3
    s_lshl_b32 s19, s19, 2
    s_add_u32 s17, s17, s19            ; tb
    s_lshr_b32 s18, s33, 2             ; ng
    s_mov_b32 s28, s23
    s_mov_b32 s29, s22
    s_and_b32 s23, s16, 1
    s_lshr_b32 s24, s16, 1
    v_lshlrev_b32 v12, 4, v0
    s_cmp_ge_u32 s16, 6
    s_cbranch_scc1 Lo_nopre
    v_lshrrev_b32 v1, 5, v0
    v_bfe_u32 v2, v0, 2, 2
    v_bfe_u32 v3, v0, 4, 1
    v_lshlrev_b32 v3, 5, v3
    v_and_b32 v7, 3, v0
    v_lshl_add_u32 v3, v7, 3, v3
    s_lshl_b32 s25, s24, 6
    v_add_u32 v3, s25, v3
    v_lshl_add_u32 v7, v1, 2, v2
    v_mul_u32_u24 v7, 192, v7
    v_add3_u32 v8, v7, v3, s28
    v_add3_u32 v9, v7, v3, s29
    v_mul_u32_u24 v7, 72, v1
    v_lshrrev_b32 v10, 1, v2
    v_mul_u32_u24 v10, 18, v10
    v_add_u32 v7, v7, v10
    v_and_b32 v10, 1, v2
    v_add3_u32 v7, v7, v10, 16
    v_mul_u32_u24 v7, 192, v7
    v_add3_u32 v10, v7, v3, s28
    v_add3_u32 v11, v7, v3, s29
    """)
    for s_ in range(36):
        for e in range(2):
            if s_ < 32: base, off = (8, (18*s_ + 8*e)*192) if s_ < 16 else (9, (18*(s_-16) + 8*e)*192)
            else: base, off = (10 + ((s_-32) >> 1), (144*((s_-32) & 1) + 36*e)*192)
            A(f"ds_read_b64_tr_b16 {V(BW+4*s_+2*e,2)}, v{base} offset:{off}")
        if s_ % 6 == 5: A("s_waitcnt lgkmcnt(4)")
    A("Lo_nopre:")
    g.srd(44, pOUT, OUTB)
    for i in range(16): A(f"v_mov_b32 v{ACC_+i}, 0")
    TR = 81920
    A(f"""
    s_mul_i32 s20, s17, {2*36*1024}
    s_add_u32 s20, s20, {OF}
    s_mul_i32 s21, s23, {36*1024}
    s_add_u32 s20, s20, s21
    s_lshl_b32 s21, s24, 10
    s_add_u32 s20, s20, s21
    s_lshl_b32 s21, s23, 10
    v_add_u32 v13, s21, v12
    v_and_b32 v1, 31, v0
    v_lshlrev_b32 v1, 2, v1
    v_lshrrev_b32 v2, 5, v0
    v_lshl_add_u32 v1, v2, 9, v1
    s_add_u32 s21, s21, 65536
    v_add_u32 v201, s21, v1
    v_add_u32 v202, 2048, v201
    v_add_u32 v203, 4096, v201
    v_add_u32 v204, 6144, v201
    v_and_b32 v1, 31, v0
    s_lshl_b32 s21, s23, 5
    v_add_u32 v1, s21, v1
    v_mul_u32_u24 v1, 208, v1
    v_lshl_add_u32 v1, v2, 3, v1
    s_lshl_b32 s21, s24, 6
    s_add_u32 s21, s21, {TR}
    v_add_u32 v200, s21, v1
    s_mul_i32 s26, s17, {64*2304}
    s_mul_i32 s22, s18, 192
    s_add_u32 s26, s26, s22
    s_lshl_b32 s22, s16, 7
    """)
    for i in range(2):
        A(f"""
        v_add_u32 v1, s22, v0
        v_add_u32 v1, {64*i}, v1
        v_mul_u32_u24 v2, 5462, v1
        v_lshrrev_b32 v2, 16, v2
        v_mul_u32_u24 v3, 12, v2
        v_sub_u32 v1, v1, v3
        v_lshlrev_b32 v1, 4, v1
        v_mul_u32_u24 v3, 208, v2
        v_add_u32 v{4+i}, v3, v1
        v_add_u32 v{4+i}, {TR}, v{4+i}
        v_mul_u32_u24 v3, 2304, v2
        v_add_u32 v{6+i}, v3, v1
        """)
    A("s_lshl_b32 s21, s16, 10\ns_waitcnt lgkmcnt(0)")
    g.stamp(12)
    A("s_cmp_lg_u32 s16, 7\ns_cbranch_scc1 Lp3_h\ns_add_u32 s25, s19, 32")
    g.poll("s25", 4, 8, 16)
    A("Lp3_h:\ns_barrier")
    g.stamp(13)
    for rr in range(9):
        A(f"""
        s_mov_b32 m0, s21
        s_add_u32 s21, s21, 8192
        buffer_load_dwordx4 v12, s[12:15], s20 offen lds {SC}
        s_add_u32 s20, s20, 4096
        """)
    for c in range(3):
        A(f"s_waitcnt vmcnt({6-3*c})\ns_barrier")
        if c == 0: A(f"s_cmp_ge_u32 s16, 6\ns_cbranch_scc1 Lo_idle")
        if c == 2: A(f"v_add_u32 v13, 49152, v13")
        for half in range(2):
            for i in range(6):
                s_ = 12*c + 6*half + i
                off = 2048*s_ - (49152 if c == 2 else 0)
                if s_ < 32: A(f"ds_read_b128 {V(AF+4*i,4)}, v13 offset:{off}")
                else:
                    A(f"ds_read2_b32 {V(AF+4*i,2)}, v{201+s_-32} offset0:0 offset1:32")
                    A(f"ds_read2_b32 {V(AF+4*i+2,2)}, v{201+s_-32} offset0:64 offset1:96")
            for i in range(6):
                s_ = 12*c + 6*half + i
                last = 12*c + 6*half + 5
                A(f"s_waitcnt lgkmcnt({sum(1 if x < 32 else 2 for x in range(s_+1, last+1))})")
                A(f"v_mfma_f32_32x32x16_bf16 {V(ACC_,16)}, {V(BW+4*s_,4)}, {V(AF+4*i,4)}, {V(ACC_,16)}")
    g.stamp(14)
    A("s_nop 11")
    for q in range(4):
        A(f"""
        v_cvt_pk_bf16_f32 v{AF+2*q}, v{ACC_+4*q}, v{ACC_+4*q+1}
        v_cvt_pk_bf16_f32 v{AF+2*q+1}, v{ACC_+4*q+2}, v{ACC_+4*q+3}
        ds_write_b64 v200, {V(AF+2*q,2)} offset:{16*q}
        """)
    A(f"""
    s_waitcnt lgkmcnt(0)
    s_barrier
    ds_read_b128 {V(AF,4)}, v4
    ds_read_b128 {V(AF+4,4)}, v5
    s_waitcnt lgkmcnt(1)
    buffer_store_dwordx4 {V(AF,4)}, v6, s[44:47], s26 offen
    s_waitcnt lgkmcnt(0)
    buffer_store_dwordx4 {V(AF+4,4)}, v7, s[44:47], s26 offen
    s_branch Lfin
Lo_idle:
    s_waitcnt vmcnt(3)
    s_barrier
    s_waitcnt vmcnt(0)
    s_barrier
    s_branch Lfin
Lp3_s3:
    s_sub_u32 s20, s33, 24
    s_lshl_b32 s17, s19, 3
    s_add_u32 s17, s17, s20
    s_mov_b64 s[6:7], s[{pOUT}:{pOUT+1}]
    s_mov_b64 s[48:49], s[{pWS}:{pWS+1}]
    s_mov_b64 s[50:51], s[{pQ}:{pQ+1}]
    """)
    g.poll(16, 16, 18, 16)
    k3.gen_stage3(A, "Ls3", False, SC)
    A("Lfin:")
    g.end()

def gen(name, dbg=False):
    g = G(dbg); A = g.A
    A("Lcode_begin:")
    A(f"""
    s_cmp_ge_u32 s2, 256
    s_cbranch_scc1 Lend
    s_load_dwordx16 s[64:79], s[0:1], 0
    s_load_dwordx8 s[80:87], s[0:1], 64
    v_lshrrev_b32 v1, 6, v0
    v_and_b32 v0, 63, v0
    v_readfirstlane_b32 s16, v1
    """)
    if dbg: A(f"v_mov_b32 v{vST}, 0")
    g.stamp(0)
    A(f"""
    s_lshl_b32 s3, s16, 2
    s_add_u32 s3, s3, {SY}
    s_and_b32 s94, s3, {0xffffffff & ~15}
    s_cmp_ge_u32 s2, 224
    s_cbranch_scc1 Ls1
    """)
    gen_gemm(g)
    A("Ls1:")
    gen_stage1(g)
    gen_attn(g)
    gen_p3(g)
    A("Lend:\ns_endpgm\nLcode_end:")
    return A.text()

if __name__ == "__main__":
    import sys
    out = sys.argv[1]; dbg = len(sys.argv) > 2 and sys.argv[2] == "dbg"
    name = "concat_heads__softmax_full_mha__ssm_conv_h3__prompt_kernel"
    HDR = open("concat_heads__softmax_full_mha__ssm_conv_h3__prompt.s.ref").read().split("; Override launch")[0]
    s = HDR
    if dbg or 'list' in EXP: s += f"; @launch kernel={name} grid=(256,1,1) block=(512,1,1) lds={LDS_BYTES}\n"
    else: s += f"; @launch grid=(256,1,1) block=(512,1,1) lds={LDS_BYTES}\n"
    s += '.amdgcn_target "amdgcn-amd-amdhsa--gfx950"\n.text\n' + kernel_head(name) + gen(name, dbg)
    s += '.section .rodata,"a"\n' + kernel_desc(name, NVGPR, 102)
    open(out, "w").write(s)
```

```python
import os, struct, math
from asmlib import *
from layout import *
import kconv
EXP = os.environ.get('FEXP', '').split(',')
def opt(name, default): return int(os.environ.get(name, default))

CS_BITS = struct.unpack("<I", struct.pack("<f", math.log2(math.e)/math.sqrt(18)))[0]
XB, WB, OUTB, WOB = 2048*1152, 576*3456, 2048*2304, 576*1152
NVGPR = 248
LDS_BYTES = 163840
vST = 215
pX, pW, pWO, pQ, pK, pV, pSH, pH, pD, pOUT, pDBG, pWS = [64+2*i for i in range(12)]
WIN = 65536 + VSZ + 16384
CONST = WIN
UC = WIN + 4352
XCH = WIN + 6144
SY = WIN + 5376
SC = "sc1"
NTG = 'nt' if 'ntg' in EXP else ''
NTB = 'nt' if 'ntb' in EXP else ''
SPIN = 200000
NREP = opt('NREP', 8)

class G:
    def __init__(self, dbg):
        self.A = Asm(); self.dbg = dbg; self.n = 0
    def lab(self, p="L"):
        self.n += 1; return f"{p}{self.n}"
    def stamp(self, i):
        if self.dbg:
            self.A(f"""
            s_memrealtime s[88:89]
            s_memtime s[90:91]
            s_waitcnt lgkmcnt(0)
            v_writelane_b32 v{vST}, s88, {i}
            v_writelane_b32 v{vST}, s90, {32+i}
            """)
    def srd(self, d, p, n):
        self.A(f"s_mov_b32 s{d}, s{p}\ns_mov_b32 s{d+1}, s{p+1}\ns_mov_b32 s{d+2}, {n}\ns_mov_b32 s{d+3}, 0x20000")
    def end(self):
        A = self.A
        if self.dbg:
            A("s_mov_b64 exec, -1\ns_waitcnt vmcnt(0)")
            self.stamp(31)
            A(f"""
            s_lshl_b32 s25, s2, 3
            s_add_u32 s25, s25, s16
            s_lshl_b32 s25, s25, 8
            s_add_u32 s25, s25, {STAMP}
            v_lshlrev_b32 v1, 2, v0
            buffer_store_dword v{vST}, v1, s[12:15], s25 offen
            s_add_u32 s25, s25, {2048*256}
            buffer_store_dword v214, v1, s[12:15], s25 offen
            """)
        dd = os.environ.get('DD')
        if self.dbg and dd:
            wg, w, *idx = [int(x) for x in dd.split(',')]
            A(f"""
            s_cmp_lg_u32 s2, {wg}
            s_cbranch_scc1 Ldd_e
            s_cmp_lg_u32 s16, {w}
            s_cbranch_scc1 Ldd_e
            v_readlane_b32 s40, v{vST}, 0
            v_mov_b32 v2, 0
            """)
            for k, i in enumerate(idx):
                A(f"""
                v_readlane_b32 s41, v{vST}, {i}
                s_nop 3
                s_sub_u32 s41, s41, s40
                v_mov_b32 v3, s41
                global_store_dword v2, v3, s[{pDBG}:{pDBG+1}] offset:{32+4*k}
                """)
            A("Ldd_e:")
        A("s_endpgm")
    def post(self, val, t):
        self.A(f"""
        v_mov_b32 v{t}, s3
        v_mov_b32 v{t+1}, {val}
        ds_write_b32 v{t}, v{t+1}
        """)
    def wait_words(self, addr, val, t, n=4, sl=1):
        l = self.lab("Lw"); d = self.lab("Ld")
        rd = f"ds_read_b128 {V(t,4)}, v{t+4}" if n == 4 else f"ds_read_b32 v{t}, v{t+4}"
        mn = f"v_min_u32 v{t}, v{t}, v{t+1}\nv_min3_u32 v{t}, v{t}, v{t+2}, v{t+3}\ns_nop 0" if n == 4 else ""
        self.A(f"""
        v_mov_b32 v{t+4}, {addr}
        s_mov_b32 s93, {SPIN}
{l}:
        {rd}
        s_waitcnt lgkmcnt(0)
        {mn}
        v_readfirstlane_b32 s92, v{t}
        s_cmp_ge_u32 s92, {val}
        s_cbranch_scc1 {d}
        s_sleep {sl}
        s_sub_u32 s93, s93, 1
        s_cmp_lg_u32 s93, 0
        s_cbranch_scc1 {l}
{d}:
        """)
    def gsync(self, val, t):
        self.post(val, t)
        self.wait_words("s94", val, t)
    def ready(self, t):
        l = self.lab("Lr"); d = self.lab("Ld")
        self.A(f"""
        v_and_b32 v{t+1}, {NREP-1}, v0
        v_lshlrev_b32 v{t+1}, 2, v{t+1}
        s_mov_b32 s93, {SPIN}
{l}:
        global_load_dword v{t}, v{t+1}, s[{pDBG}:{pDBG+1}] {SC}
        s_waitcnt vmcnt(0)
        v_cmp_eq_u32 vcc, 0, v{t}
        s_nop 3
        s_cmp_eq_u64 vcc, 0
        s_cbranch_scc1 {d}
        s_sleep 2
        s_sub_u32 s93, s93, 1
        s_cmp_lg_u32 s93, 0
        s_cbranch_scc1 {l}
{d}:
        """)
    def signal(self, sidx, t):
        self.A(f"""
        s_lshl_b32 s92, {sidx}, 8
        s_add_u32 s92, s92, {CNT}
        v_lshlrev_b32 v{t}, 15, v0
        v_mov_b32 v{t+1}, 1
        s_mov_b64 exec, {(1 << NREP) - 1}
        buffer_atomic_add v{t+1}, v{t}, s[12:15], s92 offen {SC}
        s_mov_b64 exec, -1
        """)
    def poll(self, first, n, target, t, sl=None):
        l = self.lab("Lp"); d = self.lab("Ld")
        self.A(f"""
        v_min_u32 v{t+1}, {n-1}, v0
        v_add_u32 v{t+1}, {first}, v{t+1}
        v_lshlrev_b32 v{t+1}, 8, v{t+1}
        s_mov_b32 s93, {SPIN}
        s_and_b32 s92, s2, {NREP-1}
        s_lshl_b32 s92, s92, 15
        s_add_u32 s92, s92, {CNT}
        s_mov_b64 exec, {(1 << n) - 1}
{l}:
        buffer_load_dword v{t}, v{t+1}, s[12:15], s92 offen {SC}
        s_waitcnt vmcnt(0)
        v_cmp_le_u32 vcc, {target}, v{t}
        s_nop 3
        s_cmp_eq_u64 vcc, exec
        s_cbranch_scc1 {d}
        s_sleep {sl or opt('PSLEEP', 2)}
        s_sub_u32 s93, s93, 1
        s_cmp_lg_u32 s93, 0
        s_cbranch_scc1 {l}
{d}:
        s_mov_b64 exec, -1
        """)

vT0, vT1, vT2, vT3, vTok, vHf = 1, 2, 3, 4, 5, 6
vXb, vWb, vX, vW, vEA, FR, ACC, PK = 8, 12, 14, 18, 20, 36, 68, 132
RING = 98304
def XF(b, i): return FR + 16*b + 4*i
def WF(b, j): return FR + 16*b + 8 + 4*j
def acc(i, j): return ACC + 16*(2*i + j)
def g_reads(b, s):
    return [f"ds_read_b128 {V(XF(b,0),4)}, v{vX+s}",
            f"ds_read_b64_tr_b16 {V(WF(b,0),2)}, v{vW} offset:{16384 + 4096*s}",
            f"ds_read_b64_tr_b16 {V(WF(b,0)+2,2)}, v{vW} offset:{16384 + 4096*s + 1024}",
            f"ds_read_b64_tr_b16 {V(WF(b,1),2)}, v{vW+1} offset:{16384 + 4096*s}",
            f"ds_read_b64_tr_b16 {V(WF(b,1)+2,2)}, v{vW+1} offset:{16384 + 4096*s + 1024}",
            f"ds_read_b128 {V(XF(b,1),4)}, v{vX+s} offset:4096"]
def g_mf(b, i, j, vtype):
    a, bb = (XF(b,i), WF(b,j)) if vtype else (WF(b,j), XF(b,i))
    return f"v_mfma_f32_32x32x16_bf16 {V(acc(i,j),16)}, {V(a,4)}, {V(bb,4)}, {V(acc(i,j),16)}"
def g_setaddr(A):
    for s in range(4): A(f"v_add_u32 v{vX+s}, s30, v{vXb+s}")
    for j in range(2): A(f"v_add_u32 v{vW+j}, s30, v{vWb+j}")
def g_loop(g, name, vtype):
    A = g.A
    A("s_mov_b32 s31, 9\ns_barrier")
    for r in g_reads(0, 0): A(r)

    A(f".p2align 6\n{name}:")
    for s in range(4):
        b = s & 1
        A("s_waitcnt lgkmcnt(0)")
        A(g_mf(b, 0, 0, vtype))
        if s < 3:
            rd = g_reads(b ^ 1, s+1)
            for r in rd[:3]: A(r)
            A(g_mf(b, 0, 1, vtype))
            for r in rd[3:]: A(r)
            A(g_mf(b, 1, 0, vtype)); A(g_mf(b, 1, 1, vtype))
        else:
            A(f"""
            s_add_u32 s30, s30, 32768
            s_cmp_eq_u32 s30, {RING}
            s_cselect_b32 s30, 0, s30
            s_sub_u32 s31, s31, 1
            s_cmp_eq_u32 s31, 0
            s_cbranch_scc1 {name}_nb
            s_barrier
{name}_nb:
            """)
            g_setaddr(A)
            A(g_mf(b, 0, 1, vtype))
            rd = g_reads(0, 0)
            for r in rd[:3]: A(r)
            A(g_mf(b, 1, 0, vtype))
            for r in rd[3:]: A(r)
            A(g_mf(b, 1, 1, vtype))
    A(f"s_cbranch_scc0 {name}")

def ld_chunk(g, skip=True):
    A = g.A; l = g.lab("Lk")
    if skip: A(f"s_cmp_lg_u32 s95, 0\ns_cbranch_scc1 {l}")
    A(f"""
    s_mov_b32 m0, s42
    s_add_u32 s26, s40, 8192
    buffer_load_dwordx4 v8, s[8:11], s40 offen lds
    s_add_u32 s27, s40, 16384
    buffer_load_dwordx4 v9, s[8:11], s26 offen offset:1024 lds
    s_add_u32 s26, s40, 24576
    buffer_load_dwordx4 v8, s[8:11], s27 offen offset:2048 lds
    s_add_u32 s28, s42, 16384
    buffer_load_dwordx4 v9, s[8:11], s26 offen offset:3072 lds
    s_mov_b32 m0, s28
    s_add_u32 s26, s41, {13824-1024}
    buffer_load_dwordx4 v10, s[44:47], s41 offen lds
    s_add_u32 s27, s41, {2*(13824-1024)}
    buffer_load_dwordx4 v10, s[44:47], s26 offen offset:1024 lds
    s_add_u32 s26, s41, {3*(13824-1024)}
    buffer_load_dwordx4 v10, s[44:47], s27 offen offset:2048 lds
    s_add_u32 s40, s40, 128
    buffer_load_dwordx4 v10, s[44:47], s26 offen offset:3072 lds
    s_add_u32 s41, s41, {64*3456}
    s_add_u32 s24, s24, 1
    s_cmp_eq_u32 s24, 9
    s_cselect_b32 s26, 1152, 0
    s_cselect_b32 s27, {WB}, 0
    s_sub_u32 s40, s40, s26
    s_sub_u32 s41, s41, s27
    s_add_u32 s42, s42, 32768
    s_cmp_ge_u32 s42, {RING}
    s_cselect_b32 s26, {RING}, 0
    s_sub_u32 s42, s42, s26
{l}:
    """)

def gen_gemm(g):
    A = g.A
    ROT = opt('ROT', 1)
    A(f"""
    s_and_b32 s17, s2, 7               ; xcd
    s_lshr_b32 s18, s2, 3              ; idx 0..27
    s_and_b32 s19, s17, 3
    s_lshl_b32 s19, s19, 2
    s_and_b32 s20, s18, 3
    s_add_u32 s19, s19, s20            ; mb
    s_lshr_b32 s21, s17, 2
    s_mul_i32 s21, s21, 7
    s_lshr_b32 s22, s18, 2
    s_add_u32 s21, s21, s22            ; ng
    s_cmp_lt_u32 s16, 4
    s_cbranch_scc1 Lg_compute
    s_and_b32 s23, s16, 3              ; u
    """)
    if ROT:
        A("""
        s_mul_i32 s24, s20, 5
        s_lshr_b32 s24, s24, 1
        s_add_u32 s24, s24, s22
        s_cmp_ge_u32 s24, 9
        s_cselect_b32 s25, 9, 0
        s_sub_u32 s24, s24, s25
        """)
    else: A("s_mov_b32 s24, 0")
    A(f"""
    s_lshl_b32 s25, s19, 7
    s_lshl_b32 s26, s23, 5
    s_add_u32 s25, s25, s26
    s_mul_i32 s25, s25, 1152
    s_lshl_b32 s26, s24, 7
    s_add_u32 s40, s25, s26            ; sX
    s_lshl_b32 s25, s24, 2
    s_add_u32 s25, s25, s23
    s_mul_i32 s25, s25, {16*3456}
    s_lshl_b32 s26, s21, 8
    s_add_u32 s41, s25, s26            ; sW
    s_lshl_b32 s42, s23, 12
    v_lshrrev_b32 v{vT0}, 3, v0
    v_mul_u32_u24 v{vT0}, 1152, v{vT0}
    v_lshrrev_b32 v{vT1}, 4, v0
    v_and_b32 v{vT2}, 7, v0
    v_xor_b32 v{vT2}, v{vT2}, v{vT1}
    v_lshl_add_u32 v8, v{vT2}, 4, v{vT0}
    v_xor_b32 v{vT2}, 4, v{vT2}
    v_lshl_add_u32 v9, v{vT2}, 4, v{vT0}       ; odd i
    v_mul_u32_u24 v{vT0}, 3456, v{vT1}
    v_and_b32 v{vT2}, 15, v0
    v_lshlrev_b32 v{vT1}, 2, v{vT1}
    v_xor_b32 v{vT2}, v{vT2}, v{vT1}
    v_lshl_add_u32 v10, v{vT2}, 4, v{vT0}      ; W addr
    s_mov_b32 s95, 0
    s_setprio {opt('LPRIO', 0)}
    s_waitcnt lgkmcnt(0)
    """)
    g.srd(8, pX, XB); g.srd(44, pW, WB)
    A(f"""
    s_mov_b32 s31, 0
Lld:
    s_cmp_lt_u32 s31, 2
    s_cbranch_scc1 Lld_go
    s_waitcnt vmcnt(8)
    s_barrier
Lld_go:
    """)
    ld_chunk(g, False)
    A(f"""
    s_add_u32 s31, s31, 1
    s_cmp_lt_u32 s31, 9
    s_cbranch_scc1 Lld
    s_waitcnt vmcnt(8)
    s_barrier
    """)
    g.srd(12, pWS, WS_END)
    A(f"""
    s_waitcnt vmcnt(0)
    s_barrier
    s_branch Lh_start
Lg_compute:
    s_and_b32 s23, s16, 1              ; wm
    s_lshr_b32 s24, s16, 1             ; wn
    v_and_b32 v{vTok}, 31, v0
    v_lshrrev_b32 v{vHf}, 5, v0
    s_lshl_b32 s25, s23, 13
    v_lshlrev_b32 v{vT0}, 7, v{vTok}
    v_add_u32 v{vT0}, s25, v{vT0}
    v_bfe_u32 v{vT1}, v0, 1, 3
    v_xor_b32 v{vT1}, v{vT1}, v{vHf}
    """)
    for s in range(4):
        A(f"v_xor_b32 v{vT2}, {2*s}, v{vT1}\nv_lshl_add_u32 v{vXb+s}, v{vT2}, 4, v{vT0}")
    A(f"""
    v_bfe_u32 v{vT0}, v0, 2, 2
    v_lshl_add_u32 v{vT1}, v{vHf}, 3, v{vT0}
    v_lshlrev_b32 v{vT1}, 8, v{vT1}
    v_bfe_u32 v{vT2}, v0, 4, 1
    v_lshl_add_u32 v{vT1}, v{vT2}, 5, v{vT1}
    v_and_b32 v{vT2}, 3, v0
    v_lshl_add_u32 v{vT1}, v{vT2}, 3, v{vT1}
    s_lshl_b32 s25, s24, 1
    v_xor_b32 v{vT2}, s25, v{vT0}
    v_lshl_add_u32 v{vWb}, v{vT2}, 6, v{vT1}
    v_xor_b32 v{vT2}, 1, v{vT2}
    v_lshl_add_u32 v{vWb+1}, v{vT2}, 6, v{vT1}
    s_mov_b32 s30, 0
    s_waitcnt lgkmcnt(0)
    """)
    g.srd(12, pWS, WS_END)
    gen_init_misc(g, PK+8)
    g_setaddr(A)
    for i in range(64): A(f"v_mov_b32 v{ACC+i}, 0")
    A(f"""
    s_lshl_b32 s26, s19, 2
    s_lshl_b32 s27, s23, 1
    s_add_u32 s26, s26, s27            ; T0
    s_waitcnt lgkmcnt(0)
    s_cmp_ge_u32 s21, 9
    s_cbranch_scc1 Lg_vtype
    s_lshl_b32 s27, s21, 5
    s_lshl_b32 s28, s24, 4
    s_add_u32 s27, s27, s28
    v_add_u32 v{vT0}, s27, v{vHf}      ; G0
    s_lshl_b32 s28, s26, 10
    s_lshl_b32 s29, s26, 8
    s_add_u32 s29, s29, {LEFT}
    v_lshlrev_b32 v{vTok}, 3, v{vTok}
    v_add_u32 v{PK}, s29, v{vTok}
    v_add_u32 v{PK+1}, s28, v{vTok}
    v_add_u32 v{PK+2}, {MB-1280}, v{PK+1}
    v_mov_b32 v{PK+3}, 256
    v_mov_b32 v{PK+4}, 1024
    s_mov_b32 s32, {PAIR}
    """)
    for jg in range(8):
        A(f"""
        v_add_u32 v{vT1}, {8*(jg>>2) + 2*(jg&3)}, v{vT0}
        v_mul_u32_u24 v{vT2}, 7282, v{vT1}
        v_lshrrev_b32 v{vT2}, 16, v{vT2}
        v_mul_u32_u24 v{vT3}, 9, v{vT2}
        v_sub_u32 v{vT1}, v{vT1}, v{vT3}
        v_cmp_lt_u32 vcc, 4, v{vT1}
        v_cmp_eq_u32 s[34:35], 4, v{vT1}
        v_mul_u32_u24 v{vT2}, s32, v{vT2}
        v_cndmask_b32 v{vT3}, v{PK+1}, v{PK+2}, vcc
        v_lshl_add_u32 v{vT3}, v{vT1}, 8, v{vT3}
        v_cndmask_b32 v{vT3}, v{vT3}, v{PK}, s[34:35]
        v_cndmask_b32 v{vT1}, v{PK+4}, v{PK+3}, s[34:35]
        v_add_u32 v{vEA+jg}, v{vT2}, v{vT3}
        v_add_u32 v{vEA+8+jg}, v{vEA+jg}, v{vT1}
        """)
    g.stamp(1)
    g_loop(g, "Lg_qk", False)
    g.stamp(2)
    A(f"""
    s_lshl_b32 s27, s21, 2
    s_lshl_b32 s28, s24, 1
    s_add_u32 s27, s27, s28
    s_cmp_lt_u32 s27, 18
    s_cselect_b32 s28, {CS_BITS}, 1.0
    s_nop 7
    """)
    n = 0
    for i in range(2):
        for j in range(2):
            for q in range(4):
                a = acc(i, j) + 4*q
                p = PK + 2*(n % 8); n += 1
                for e in range(4): A(f"v_mul_f32 v{a+e}, s28, v{a+e}")
                A(f"v_cvt_pk_bf16_f32 v{p}, v{a}, v{a+1}\nv_cvt_pk_bf16_f32 v{p+1}, v{a+2}, v{a+3}")
                A(f"buffer_store_dwordx2 {V(p,2)}, v{vEA+8*i+4*j+q}, s[12:15], 0 offen {SC}")
    A(f"""
    s_branch Lg_done
Lg_vtype:
    s_sub_u32 s27, s21, 9
    s_lshl_b32 s27, s27, 7
    s_lshl_b32 s28, s24, 6
    s_add_u32 s27, s27, s28
    s_mul_i32 s28, s26, 36864
    s_add_u32 s28, s28, {VG}
    v_mul_u32_u24 v{vT3}, 9216, v{vHf}
    v_add_u32 v{vT0}, s27, v{vTok}
    v_lshl_add_u32 v{vEA}, v{vT0}, 4, v{vT3}
    """)
    g.stamp(1)
    g_loop(g, "Lg_v", True)
    g.stamp(2)
    A(f"""
    s_cmp_ge_u32 s27, 576
    s_cbranch_scc1 Lg_done
    s_nop 7
    """)
    n = 0
    for i in range(2):
        for j in range(2):
            for m in range(2):
                a = acc(i, j) + 8*m
                p = PK + 4*(n % 4); n += 1
                for e in range(4): A(f"v_cvt_pk_bf16_f32 v{p+e}, v{a+2*e}, v{a+2*e+1}")
                A(f"s_add_u32 s29, s28, {i*36864+m*18432}")
                A(f"buffer_store_dwordx4 {V(p,4)}, v{vEA}, s[12:15], s29 offen offset:{512*j} {SC}")
    A(f"""
Lg_done:
    s_setprio 2
    """)
    g.stamp(15)
    A("s_cmp_lg_u32 s16, 0\ns_cbranch_scc1 Lg_d2")
    g.ready(8)
    A("Lg_d2:\ns_waitcnt vmcnt(0) lgkmcnt(0)")
    g.stamp(3)
    g.gsync(5, 8)
    A("s_cmp_lg_u32 s16, 0\ns_cbranch_scc1 Lattn")
    g.stamp(16)
    g.signal("s21", 8)
    if g.dbg: A("s_waitcnt vmcnt(0)")
    g.stamp(17)
    A("s_branch Lattn")

def gen_init_misc(g, t):
    A = g.A
    for i in range(2):
        A(f"""
        s_and_b32 s25, s16, 3
        s_lshl_b32 s25, s25, 7
        s_add_u32 s25, s25, {64*i-14 & 0xffffffff}
        v_add_u32 v{t+4}, s25, v0
        v_mul_u32_u24 v{t+5}, 1821, v{t+4}
        v_lshrrev_b32 v{t+5}, 16, v{t+5}
        v_mul_u32_u24 v{t+5}, 36, v{t+5}
        v_cmp_eq_u32 s[34:35], v{t+5}, v{t+4}
        v_cmp_gt_u32 vcc, {36*8}, v{t+4}
        v_mov_b32 v{t+5}, 0x3f803f80
        v_lshlrev_b32 v{t+4}, 4, v{t+4}
        s_and_b64 vcc, vcc, s[34:35]
        v_add_u32 v{t+4}, {CONST+224}, v{t+4}
        v_cndmask_b32 v{t}, 0, v{t+5}, vcc
        v_cndmask_b32 v{t+1}, 0, v{t+5}, vcc
        v_cndmask_b32 v{t+2}, 0, v{t+5}, vcc
        v_cndmask_b32 v{t+3}, 0, v{t+5}, vcc
        ds_write_b128 v{t+4}, {V(t,4)}
        """)

import k2, k3
from k2 import m16, m8, phase, maxtree
from k2 import vL8, vKM, vKL, vV, vL16, vV0, vVinc, Q1A, Q1B, Q2A, Q2B, NMA, NMB, SA, SB, PA, PB, OA, OB, KB, KL, VB
aT0, aT1, aT2, aT3 = 5, 6, 7, 8
TMP = 168
vCA, vCR, vOne, vKM0, vKL0, vG0, vG1, vG2 = range(176, 184)
bKG, bVG, b5G, bRD, bTR, bBW, bBR, bUO, bZP, bPG = range(184, 194)
CM = 216
FLAG = SY + 40

def head_params(A):
    A(f"""
    s_and_b32 s17, s2, 7
    s_lshl_b32 s17, s17, 2
    s_bfe_u32 s25, s2, 0x20003
    s_add_u32 s17, s17, s25            ; h
    s_lshr_b32 s18, s2, 5              ; qb
    s_and_b32 s20, s16, 3              ; qg / u
    s_and_b32 s21, s17, 1              ; parity
    s_lshr_b32 s26, s17, 1             ; pair
    v_lshlrev_b32 v{vL16}, 4, v0
    s_mul_i32 s39, s26, {PAIR}
    s_mul_i32 s28, s21, {LEFT}
    s_add_u32 s27, s39, s28
    s_add_u32 s27, s27, {KV}
    s_add_u32 s8, s{pWS}, s27
    s_addc_u32 s9, s{pWS+1}, 0
    s_mov_b32 s10, {WIN}
    s_mov_b32 s11, 0x20000
    s_lshl_b32 s22, s21, 14
    s_add_u32 s23, s22, 65536
    s_cmp_eq_u32 s21, 0
    s_cselect_b32 s24, {LEFT}, 0
    s_lshl_b32 s25, s20, 10
    s_add_u32 s40, s22, s25
    s_add_u32 s41, s23, s25
    s_add_u32 s42, s23, 8192
    s_and_b32 s44, s20, 1
    s_lshl_b32 s44, s44, 10
    s_add_u32 s44, s44, s24
    s_mul_i32 s43, s17, 288
    s_add_u32 s43, s43, {VG}
    s_add_u32 s46, s44, s27
    s_cmp_eq_u32 s20, 0
    s_cselect_b32 s42, s42, s44
    s_cselect_b32 s44, s43, s46
    s_cselect_b32 s45, 9, 2
    s_cselect_b32 s47, 288, 2
    s_cselect_b64 vcc, -1, 0
    s_lshl_b32 s45, s45, 10
    s_lshl_b32 s47, s47, 10
    s_lshl_b32 s25, s20, 6
    s_add_u32 s46, s25, 256
    """)
    for r, base in ((vG0, "s25"), (vG1, "s46"), (vG2, "512")):
        A(f"""
        v_add_u32 v{aT0}, {base}, v0
        v_mul_u32_u24 v{aT2}, 3641, v{aT0}
        v_lshrrev_b32 v{aT2}, 16, v{aT2}
        v_mul_u32_u24 v{aT3}, {9216-288}, v{aT2}
        v_lshl_add_u32 v{r}, v{aT0}, 4, v{aT3}
        """)
    A(f"v_cndmask_b32 v{vG2}, v{vL16}, v{vG2}, vcc")

def dma_skip(A, n):
    A(f"""
    s_add_u32 s40, s40, {(n*8192) & 0xffffffff}
    s_add_u32 s41, s41, {(n*9216) & 0xffffffff}
    s_add_u32 s43, s43, {(n*8*36864) & 0xffffffff}
    s_mul_i32 s25, s45, {n}
    s_add_u32 s42, s42, s25
    s_mul_i32 s25, s47, {n}
    s_add_u32 s44, s44, s25
    """)

def dma_iter(A):
    A(f"""
    s_mov_b32 m0, s40
    s_add_u32 s46, s40, 4096
    buffer_load_dwordx4 v{vL16}, s[8:11], s40 offen lds {SC}
    s_mov_b32 m0, s46
    s_add_u32 s40, s40, 8192
    buffer_load_dwordx4 v{vL16}, s[8:11], s46 offen lds {SC}
    s_mov_b32 m0, s41
    s_add_u32 s46, s41, 4096
    buffer_load_dwordx4 v{vG0}, s[12:15], s43 offen lds {SC}
    s_mov_b32 m0, s46
    s_add_u32 s41, s41, 9216
    buffer_load_dwordx4 v{vG1}, s[12:15], s43 offen lds {SC}
    s_mov_b32 m0, s42
    s_add_u32 s43, s43, {8*36864}
    buffer_load_dwordx4 v{vG2}, s[12:15], s44 offen lds {SC}
    s_add_u32 s42, s42, s45
    s_add_u32 s44, s44, s47
    """)
def dma_n(g, n):
    l = g.lab("Ldm")
    g.A(f"s_mov_b32 s31, {n}\n{l}:")
    dma_iter(g.A)
    g.A(f"s_sub_u32 s31, s31, 1\ns_cmp_lg_u32 s31, 0\ns_cbranch_scc1 {l}")

def avail_add(g, units):
    l = g.lab("Lav")
    g.A(f"""
    s_cmp_lg_u32 s16, 4
    s_cbranch_scc1 {l}
    v_mov_b32 v{TMP}, {units << 8}
    s_mov_b64 exec, 15
    ds_add_u32 v{bPG}, v{TMP}
    s_mov_b64 exec, -1
{l}:
    """)
def wait_progress(g, n, sl=4):
    l = g.lab("Lq"); d = g.lab("Ld")
    g.A(f"""
    s_mov_b32 s93, {SPIN}
{l}:
    ds_read_b32 v{TMP}, v{bPG}
    s_waitcnt lgkmcnt(0)
    v_and_b32 v{TMP}, 0xff, v{TMP}
    v_cmp_gt_u32 vcc, {n}, v{TMP}
    s_nop 3
    s_cmp_eq_u64 vcc, 0
    s_cbranch_scc1 {d}
    s_sleep {sl}
    s_sub_u32 s93, s93, 1
    s_cmp_lg_u32 s93, 0
    s_cbranch_scc1 {l}
{d}:
    """)

def gen_stage1(g):
    A = g.A
    KR, VR, CR, UU, OUT = 40, 60, 68, 84, 136
    T = TMP
    R = kconv.ConvRegs(16)
    A("s_waitcnt lgkmcnt(0)")
    g.srd(12, pWS, WS_END)
    A(f"""
    s_sub_u32 s17, s2, 224
    s_cmp_ge_u32 s16, 4
    s_cbranch_scc1 Lx_h
    s_mov_b32 s95, 1
    s_mov_b32 s18, 8
    s_lshl_b32 s19, s17, 1
    s_add_u32 s19, s19, 512
    s_mov_b32 s96, 0
    s_mov_b32 s97, 24576
    s_mov_b32 s99, 65536
    s_branch Lb_setup
Lx_h:
    s_cmp_ge_u32 s17, {NREP}
    s_cbranch_scc1 Lx_1
    s_cmp_lg_u32 s16, 4
    s_cbranch_scc1 Lx_1
    v_lshlrev_b32 v11, 8, v0
    v_mov_b32 v12, 0
    s_lshl_b32 s25, s17, 15
    s_add_u32 s25, s25, {CNT}
    buffer_store_dword v12, v11, s[12:15], s25 offen {SC}
    s_add_u32 s25, s25, 16384
    s_mov_b64 exec, 0xfffff
    buffer_store_dword v12, v11, s[12:15], s25 offen {SC}
    s_mov_b64 exec, -1
Lx_1:
    s_getpc_b64 s[26:27]
Lpc0:
    s_add_u32 s26, s26, Lcode_begin-Lpc0
    s_addc_u32 s27, s27, -1
    s_and_b32 s25, s16, 3
    s_lshl_b32 s25, s25, 13
    v_lshlrev_b32 v13, 7, v0
    v_add_u32 v13, s25, v13
    v_min_u32 v13, Lcode_end-Lcode_begin-4, v13
    v_mov_b32 v15, s27
    v_add_co_u32 v14, vcc, s26, v13
    s_nop 1
    v_addc_co_u32 v15, vcc, 0, v15, vcc
    global_load_dword v210, v[14:15], off
    """)
    gen_init_misc(g, 144)
    A(f"""
    s_waitcnt lgkmcnt(0)
    s_barrier
    s_cmp_ge_u32 s17, {NREP}
    s_cbranch_scc1 Lh_start
    s_cmp_lg_u32 s16, 4
    s_cbranch_scc1 Lh_start
    s_lshl_b32 s27, s17, 2
    v_mov_b32 v11, s27
    v_mov_b32 v12, 1
    s_mov_b64 exec, 1
    s_waitcnt vmcnt(1)
    global_store_dword v11, v12, s[{pDBG}:{pDBG+1}] {SC}
    s_mov_b64 exec, -1
Lh_start:
    s_mov_b32 s95, 0
    s_lshr_b32 s17, s2, 3              ; tb
    s_and_b32 s18, s2, 7               ; cb
    s_lshl_b32 s19, s2, 1
    s_bfe_u32 s25, s2, 0x10003
    s_lshl_b32 s96, s25, 14
    s_add_u32 s97, s96, 65536          ; V blocks 0..2
    s_add_u32 s99, s96, {65536+6*9216}
Lb_setup:
    s_and_b32 s23, s16, 3              ; u
    v_and_b32 v{vT0}, 7, v0            ; cc
    v_lshrrev_b32 v{vT1}, 3, v0        ; tg
    s_lshl_b32 s21, s18, 9
    v_lshlrev_b32 v{vT3}, 6, v{vT0}
    """)
    g.srd(4, pSH, 576*8)
    for i in range(4): A(f"buffer_load_dwordx4 {V(CR+4*i,4)}, v{vT3}, s[4:7], s21 offen offset:{16*i}")
    A(f"""
    s_mul_i32 s20, s17, {64*1152}
    s_lshl_b32 s21, s18, 7
    s_add_u32 s20, s20, s21
    v_mul_u32_u24 v{vT2}, 1152, v{vT1}
    v_lshl_add_u32 v{vT2}, v{vT0}, 4, v{vT2}
    v_add_u32 v{vT2}, s20, v{vT2}
    v_add_u32 v{b5G}, {61*1152}, v{vT2}
    s_mul_i32 s20, s23, {8*1152}
    v_add_u32 v{bVG}, s20, v{vT2}
    v_subrev_u32 v{bKG}, {3*1152}, v{bVG}
    v_lshlrev_b32 v{vL16}, 4, v0
    s_add_u32 s28, s97, 9344
    s_lshr_b32 s25, s23, 1
    s_add_u32 s98, s19, s25            ; channel
    s_cmp_eq_u32 s25, 0
    s_cselect_b32 s96, s96, s28
    s_mul_i32 s25, s25, 4672
    s_add_u32 s97, s97, s25
    s_add_u32 s97, s97, 576
    s_lshl_b32 s25, s19, 1
    s_load_dword s100, s[{pD}:{pD+1}], s25
    s_cmp_eq_u32 s95, 1
    s_cbranch_scc1 Lb_load
Lb_setup2:
    v_lshlrev_b32 v{bRD}, 8, v{vT1}
    v_lshl_add_u32 v{bRD}, v{vT0}, 4, v{bRD}
    s_lshl_b32 s25, s23, 11
    s_add_u32 s25, s25, s99
    v_add_u32 v{bRD}, s25, v{bRD}
    v_lshrrev_b32 v{vT2}, 4, v0
    v_and_b32 v{vT3}, 15, v0
    v_lshlrev_b32 v{vT3}, 7, v{vT3}
    v_lshl_add_u32 v{bBW}, v{vT2}, 4, v{vT3}
    v_add_u32 v{bBW}, s25, v{bBW}
    v_add_u32 v{bBR}, s25, v{vL16}
    v_bfe_u32 v{vT3}, v0, 2, 2
    v_lshl_add_u32 v{bTR}, v{vT2}, 3, v{vT3}
    v_lshlrev_b32 v{bTR}, 7, v{bTR}
    v_and_b32 v{vT3}, 3, v0
    v_lshl_add_u32 v{bTR}, v{vT3}, 3, v{bTR}
    v_lshlrev_b32 v{bPG}, 8, v{vT3}
    v_add_u32 v{bPG}, {UC}, v{bPG}
    s_lshl_b32 s25, s23, 5
    s_add_u32 s25, s25, s99
    v_add_u32 v{bTR}, s25, v{bTR}
    v_lshlrev_b32 v{bUO}, 12, v{vT1}
    v_lshl_add_u32 v{bUO}, v{vT0}, 4, v{bUO}
    s_lshl_b32 s22, s18, 2
    s_add_u32 s22, s22, s23
    s_lshl_b32 s22, s22, 16
    s_lshl_b32 s25, s17, 7
    s_add_u32 s22, s22, s25
    s_add_u32 s22, s22, {UT}
    v_add_u32 v{bUO}, s22, v{bUO}
    v_min_u32 v{bZP}, 35, v0
    v_lshlrev_b32 v{bZP}, 4, v{bZP}
    s_sub_u32 s25, s97, 576
    v_add_u32 v{bZP}, s25, v{bZP}
    s_waitcnt lgkmcnt(0)
    """)
    conv_setup(A, R)
    A("s_mov_b32 s29, 0xffff0000\ns_mov_b32 s28, 0xffff\ns_waitcnt vmcnt(0)")
    for c in range(8):
        for j in range(4):
            d, e, src = CM + 8*(c >> 1) + 2*j + (c & 1), c & 1, CR + 2*c + (j >> 1)
            if (j & 1) == e: A(f"v_and_b32 v{d}, {'s29' if e else 's28'}, v{src}")
            elif e: A(f"v_lshlrev_b32 v{d}, 16, v{src}")
            else: A(f"v_lshrrev_b32 v{d}, 16, v{src}")
    A(f"""
    s_cmp_eq_u32 s95, 0
    s_cbranch_scc1 Lh_kv
    s_barrier
    s_branch Lb_s0
Lh_kv:
    """)
    head_params(A)
    dma_skip(A, 1)
    g.wait_words(SY, 7, T, sl=2)
    A(f"s_setprio {opt('CPRIO', 1)}")
    dma_n(g, 2)
    A("s_waitcnt vmcnt(0)")
    g.gsync(1, T)
    avail_add(g, 4)
    A(f"""
Lb_load:
    s_and_b32 s28, s16, 3
    s_lshl_b32 s25, s28, 10
    s_add_u32 s25, s25, s99
    """)
    g.srd(4, pK, XB)
    A(f"""
    s_mov_b32 m0, s25
    s_add_u32 s27, s25, 4096
    buffer_load_dwordx4 v{bKG}, s[4:7], 0 offen {NTB} lds
    s_mov_b32 m0, s27
    v_add_u32 v{bKG}, {32*1152}, v{bKG}
    s_add_u32 s27, s99, 8192
    buffer_load_dwordx4 v{bKG}, s[4:7], 0 offen {NTB} lds
    s_mov_b32 m0, s27
    s_add_u32 s27, s25, 9216
    buffer_load_dwordx4 v{b5G}, s[4:7], 0 offen lds
    s_mov_b32 s4, s{pV}
    s_mov_b32 s5, s{pV+1}
    s_mov_b32 m0, s27
    s_add_u32 s27, s27, 4096
    buffer_load_dwordx4 v{bVG}, s[4:7], 0 offen {NTB} lds
    s_mov_b32 m0, s27
    s_mov_b32 s27, {32*1152}
    buffer_load_dwordx4 v{bVG}, s[4:7], s27 offen {NTB} lds
    s_mov_b32 s4, s{pH}
    s_mov_b32 s5, s{pH+1}
    s_and_b32 s25, s28, 1
    s_lshl_b32 s25, s25, 11
    s_lshl_b32 s27, s98, 12
    s_add_u32 s27, s27, s25
    v_lshlrev_b32 v{T}, 3, v{vL16}
    s_mov_b64 exec, 0xffff
    buffer_load_dword v209, v{T}, s[4:7], s27 offen
    s_mov_b64 exec, -1
    s_cmp_eq_u32 s95, 1
    s_cbranch_scc1 Lb_setup2
    """)
    dma_n(g, 3)
    A("s_waitcnt vmcnt(16)\nLb_s0:")
    g.gsync(2, T)
    g.stamp(1)
    for n in range(5): A(f"ds_read_b128 {V(KR+4*n,4)}, v{bRD} offset:{128*n}")
    for t in range(2): A(f"ds_read_b128 {V(VR+4*t,4)}, v{bRD} offset:{9216+128*t}")
    A("s_mov_b32 s29, 0xffff0000\ns_waitcnt lgkmcnt(2)")
    for j in range(4):
        for d in range(4):
            for t in range(2):
                for e in range(2):
                    u = UU + 4*d + 2*t + e
                    if j == 0: A(f"v_dot2_f32_bf16 v{u}, v{KR+4*(t+3)+d}, v{CM+8*d+e}, 0")
                    else: A(f"v_dot2c_f32_bf16 v{u}, v{KR+4*(t+3-j)+d}, v{CM+8*d+2*j+e}")
    A("s_waitcnt lgkmcnt(0)")
    for d in range(4):
        for t in range(2):
            x = UU + 16 + 4*d + 2*t
            A(f"v_lshlrev_b32 v{x}, 16, v{VR+4*t+d}\nv_and_b32 v{x+1}, s29, v{VR+4*t+d}")
    for i in range(8): A(f"v_pk_mul_f32 {V(UU+2*i,2)}, {V(UU+2*i,2)}, {V(UU+16+2*i,2)}")
    for d in range(4):
        for t in range(2): A(f"v_cvt_pk_bf16_f32 v{OUT+4*t+d}, v{UU+4*d+2*t}, v{UU+4*d+2*t+1}")
    A(f"""
    ds_write_b128 v{bRD}, {V(OUT,4)} offset:9216
    ds_write_b128 v{bRD}, {V(OUT+4,4)} offset:{9216+128}
    s_waitcnt lgkmcnt(0)
    """)
    g.gsync(3, T)
    for i in range(2):
        A(f"ds_read_b64_tr_b16 {V(OUT+4*i,2)}, v{bTR} offset:{9216+4096*i}")
        A(f"ds_read_b64_tr_b16 {V(OUT+4*i+2,2)}, v{bTR} offset:{9216+4096*i+512}")
    A(f"""
    s_mov_b32 s27, 32768
    s_waitcnt lgkmcnt(0)
    ds_write_b128 v{bBW}, {V(OUT,4)}
    ds_write_b128 v{bBW}, {V(OUT+4,4)} offset:64
    ds_read_b128 {V(OUT+8,4)}, v{bBR}
    ds_read_b128 {V(OUT+12,4)}, v{bBR} offset:1024
    s_waitcnt lgkmcnt(0)
    buffer_store_dwordx4 {V(OUT+8,4)}, v{bUO}, s[12:15], 0 offen {SC}
    buffer_store_dwordx4 {V(OUT+12,4)}, v{bUO}, s[12:15], s27 offen {SC}
    """)
    g.stamp(2)
    A("s_cmp_lg_u32 s16, 0\ns_cbranch_scc1 Lb_nr")
    g.ready(T)
    A("Lb_nr:\ns_waitcnt vmcnt(0)")
    g.stamp(3)
    g.gsync(4, T)
    A("s_cmp_eq_u32 s95, 1\ns_cbranch_scc1 Lc_x")
    avail_add(g, 6)
    A("s_cmp_lg_u32 s16, 4\ns_cbranch_scc1 Lc_k\ns_and_b32 s25, s2, 15\ns_add_u32 s25, s25, 64")
    g.signal("s25", T)
    A("Lc_k:")
    dma_n(g, 2)
    A("s_cmp_lg_u32 s16, 4\ns_cbranch_scc1 Lc_w")
    wait_progress(g, 7, 8)
    g.poll(64, 16, 16, T, sl=opt('USLEEP', 4))
    A("s_branch Lc_pd\nLc_x:\ns_cmp_lg_u32 s16, 0\ns_cbranch_scc1 Lc_w\ns_and_b32 s25, s2, 3\ns_add_u32 s25, s25, 80")
    g.signal("s25", T)
    g.poll(80, 4, 8, T, sl=2)
    A(f"""
Lc_pd:
    s_lshr_b32 s25, s16, 2
    s_add_u32 s25, s25, 1
    v_mov_b32 v{T}, {SY+36}
    v_mov_b32 v{T+1}, s25
    ds_write_b32 v{T}, v{T+1}
Lc_w:
    s_lshr_b32 s91, s16, 2
    s_add_u32 s91, s91, 1
    """)
    g.wait_words(SY+36, "s91", T, n=1, sl=opt('WSL', 8))
    g.stamp(4)
    A(f"""
    s_and_b32 s28, s16, 1
    s_lshl_b32 s25, s28, 11
    s_add_u32 s27, s97, s25
    s_mov_b32 m0, s27
    s_lshl_b32 s27, s98, 12
    s_add_u32 s27, s27, s25
    buffer_load_dwordx4 v{vL16}, s[4:7], s27 offen lds
    buffer_load_dwordx4 v{vL16}, s[4:7], s27 offen offset:1024 lds
    ds_write_b128 v{bZP}, {V(R.acc,4)}
    s_mul_i32 s25, s28, {2*4160}
    s_add_u32 s25, s25, s96
    s_add_u32 s25, s25, 64
    s_lshl_b32 s27, s28, 2
    s_sub_u32 s27, s101, s27
    s_sub_u32 s27, s27, {YT-UT}
    """)
    for c in range(2):
        A("s_mov_b32 m0, s25\ns_nop 0")
        for i in range(4): A(f"buffer_load_dwordx4 v{vL16}, s[12:15], s27 offen offset:{1024*i} lds {SC}")
        if c == 0: A("s_add_u32 s25, s25, 4160\ns_sub_u32 s27, s27, 2")
    A("s_waitcnt vmcnt(0) lgkmcnt(0)")
    g.gsync(5, T)
    avail_add(g, 4)
    A(f"s_setprio {opt('VPRIO', 0)}")
    g.stamp(5)
    A("s_cmp_eq_u32 s28, 0\ns_cbranch_scc0 Lc_set1")
    kconv.conv_main(A, R, "Lc_l0", 0)
    A("s_setprio 1")
    kconv.conv_epi(A, R, 0, "s96", "s100", "s101", "s[12:15]", SC)
    A("s_branch Lc_done\nLc_set1:")
    kconv.conv_main(A, R, "Lc_l1", 1)
    A("s_setprio 1")
    kconv.conv_epi(A, R, 1, "s96", "s100", "s101", "s[12:15]", SC)
    A("Lc_done:\ns_waitcnt vmcnt(0)")
    g.stamp(6)
    g.gsync(6, T)
    A("s_and_b32 s25, s16, 3\ns_cmp_lg_u32 s25, 0\ns_cbranch_scc1 Lc_e\ns_and_b32 s25, s2, 15\ns_add_u32 s25, s25, 16")
    g.signal("s25", T)
    A("Lc_e:\ns_cmp_eq_u32 s95, 0\ns_cbranch_scc1 Lh_p3")

def conv_setup(A, R):
    A(f"""
    v_bfe_u32 v{R.t0}, v0, 2, 2
    v_mul_u32_u24 v{R.aA}, 4160, v{R.t0}
    v_and_b32 v{R.t0}, 3, v0
    v_lshl_add_u32 v{R.aA}, v{R.t0}, 3, v{R.aA}
    v_lshrrev_b32 v{R.t0}, 4, v0
    v_lshlrev_b32 v{R.aB}, 4, v{R.t0}
    v_sub_u32 v{R.aA}, v{R.aA}, v{R.aB}
    s_add_u32 s25, s96, {64+32-8}
    v_add_u32 v{R.aA}, s25, v{R.aA}
    v_and_b32 v{R.aU}, 15, v0
    v_lshlrev_b32 v{R.aU}, 5, v{R.aU}
    v_add_u32 v{R.aB}, v{R.aB}, v{R.aU}
    s_sub_u32 s25, s97, 96
    v_add_u32 v{R.aB}, s25, v{R.aB}
    v_lshl_add_u32 v{R.aU}, v{R.t0}, 3, v{R.aU}
    v_and_b32 v{R.mask}, 15, v0
    v_lshlrev_b32 v{R.t0}, 3, v{R.t0}
    v_sub_u32 v{R.t0}, v{R.mask}, v{R.t0}
    v_add_u32 v{R.t0}, 17, v{R.t0}
    v_mov_b32 v{R.acc}, 0xffff
    v_mov_b32 v{R.acc+1}, 0xffff0000
    """)
    for d in range(4):
        A(f"""
        v_cmp_lt_i32 vcc, {2*d}, v{R.t0}
        v_cmp_lt_i32 s[26:27], {2*d+1}, v{R.t0}
        s_nop 0
        v_cndmask_b32 v{R.mask+d}, 0, v{R.acc}, vcc
        v_cndmask_b32 v{R.acc+2}, 0, v{R.acc+1}, s[26:27]
        v_or_b32 v{R.mask+d}, v{R.mask+d}, v{R.acc+2}
        """)
    for i in range(16): A(f"v_mov_b32 v{R.acc+i}, 0")
    A(f"""
    s_lshl_b32 s101, s98, 12
    s_add_u32 s101, s101, {YT}
    s_lshl_b32 s25, s100, 16
    s_and_b32 s27, s100, 0xffff0000
    s_bitcmp0_b32 s98, 0
    s_cselect_b32 s100, s25, s27       ; D
    """)

def zero_acc(A):
    for i in range(16): A(f"v_mov_b32 v{OA+i}, 0")
    for i in range(16): A(f"v_mov_b32 v{OB+i}, 0")
    for i in range(8): A(f"v_mov_b32 v{PB+i}, 0")
    for i in range(8): A(f"v_mov_b32 v{VB[1]+i}, 0")

def gen_attn(g):
    A = g.A
    A("Lattn:\ns_setprio 2")
    head_params(A)
    A(f"""
    v_lshlrev_b32 v{vL8}, 3, v0
    s_lshl_b32 s31, s18, 3
    s_lshl_b32 s32, s20, 1
    s_add_u32 s32, s31, s32
    s_mul_i32 s34, s21, {MB}
    s_add_u32 s34, s34, s39
    s_lshl_b32 s35, s32, 10
    s_add_u32 s35, s35, s34
    s_add_u32 s34, s39, {LEFT}
    s_lshl_b32 s37, s32, 8
    s_add_u32 s37, s37, s34
    v_and_b32 v{aT1}, 31, v0
    v_lshrrev_b32 v{aT0}, 5, v0
    v_mul_u32_u24 v{aT3}, 288, v{aT0}
    v_lshl_add_u32 v{aT2}, v{aT1}, 4, v{aT3}
    v_add_u32 v{vV0}, s23, v{aT2}
    v_mov_b32 v{vVinc}, {4*VT}
    v_mov_b32 v{aT2}, {CONST+240}
    v_mov_b32 v{aT3}, {CONST+224}
    v_cmp_eq_u32 vcc, 18, v{aT1}
    v_subrev_u32 v{aT0}, 20, v{aT1}
    v_cmp_gt_u32 s[52:53], 8, v{aT0}
    v_cndmask_b32 v{aT2}, v{aT2}, v{aT3}, vcc
    v_mov_b32 v{aT3}, {CONST+176}
    v_cmp_lt_u32 vcc, 17, v{aT1}
    v_cndmask_b32 v{aT2}, v{aT2}, v{aT3}, s[52:53]
    s_mov_b32 s50, 0
    v_cndmask_b32 v{vV0}, v{vV0}, v{aT2}, vcc
    v_cndmask_b32 v{vVinc}, v{vVinc}, 0, vcc
    v_cmp_gt_u32 vcc, 32, v0
    s_cmp_eq_u32 s21, 0
    s_cselect_b64 s[52:53], -1, 0
    s_cselect_b64 s[54:55], 0, -1
    s_and_b64 s[56:57], s[52:53], vcc
    s_and_b64 s[58:59], s[54:55], vcc
    s_andn2_b64 s[60:61], s[52:53], vcc
    s_andn2_b64 s[62:63], s[54:55], vcc
    v_lshlrev_b32 v{aT2}, 3, v{aT1}
    v_add_u32 v{vKM0}, s22, v{vL8}
    v_add_u32 v{vKL0}, s24, v{vL8}
    s_lshl_b32 s25, s20, 8
    s_add_u32 s25, s25, {UC}
    v_lshlrev_b32 v{vCA}, 2, v0
    v_add_u32 v{vCA}, s25, v{vCA}
    v_mov_b32 v{vOne}, 1
    s_mul_i32 s25, s32, {36*1024}
    s_add_u32 s25, s25, {OF}
    s_lshl_b32 s48, s17, 10
    s_add_u32 s48, s48, s25
    s_lshl_b32 s49, s17, 7
    s_add_u32 s49, s49, s25
    s_add_u32 s49, s49, 32768
    """)
    zero_acc(A)
    A("s_cmp_lg_u32 s16, 0\ns_cbranch_scc1 La_w")
    g.poll(0, 14, 16, TMP)
    A(f"""
    v_mov_b32 v{TMP}, {SY+32}
    v_mov_b32 v{TMP+1}, 1
    ds_write_b32 v{TMP}, v{TMP+1}
La_w:
    """)
    g.wait_words(SY+32, 1, TMP, n=1)
    g.stamp(7)
    dma_iter(A)
    A(f"""
    buffer_load_dwordx2 {V(Q1A,2)}, v{vL8}, s[12:15], s35 offen {SC}
    buffer_load_dwordx2 {V(Q1A+2,2)}, v{vL8}, s[12:15], s35 offen offset:512 {SC}
    buffer_load_dwordx2 {V(Q1B,2)}, v{vL8}, s[12:15], s35 offen offset:1024 {SC}
    buffer_load_dwordx2 {V(Q1B+2,2)}, v{vL8}, s[12:15], s35 offen offset:1536 {SC}
    buffer_load_dwordx2 {V(Q2A,2)}, v{aT2}, s[12:15], s37 offen {SC}
    buffer_load_dwordx2 {V(Q2B,2)}, v{aT2}, s[12:15], s37 offen offset:256 {SC}
    s_waitcnt vmcnt(0)
    """)
    g.post(7, TMP)
    for Q in (Q2A, Q2B):
        A(f"""
        v_cndmask_b32 v{Q+2}, 0, v{Q}, s[60:61]
        v_cndmask_b32 v{Q+3}, 0, v{Q+1}, s[62:63]
        v_cndmask_b32 v{Q}, 0, v{Q}, s[56:57]
        v_cndmask_b32 v{Q+1}, 0, v{Q+1}, s[58:59]
        """)
    g.wait_words(SY, 7, TMP)
    g.stamp(8)
    A(f"""
    ds_read2st64_b64 {V(KB[0],4)}, v{vKM0} offset0:0 offset1:1
    ds_read_b64 {V(KL,2)}, v{vKL0}
    s_waitcnt lgkmcnt(0)
    {m16(SA, KB[0], Q1A, 0)}
    {m16(SB, KB[0], Q1B, 0)}
    {m8(SA, KL, Q2A)}
    {m8(SB, KL, Q2B)}
    s_nop 10
    """)
    maxtree(A, aT0, SA)
    maxtree(A, aT1, SB)
    A(f"""
La_setm:
    v_mov_b32 v{aT2}, v{aT0}
    v_mov_b32 v{aT3}, v{aT1}
    v_mov_b32 v{vKM}, v{vKM0}
    v_mov_b32 v{vKL}, v{vKL0}
    v_permlane32_swap_b32 v{aT0}, v{aT2}
    v_permlane32_swap_b32 v{aT1}, v{aT3}
    v_mov_b32 v{vV}, v{vV0}
    ds_read_b128 {V(VB[0],4)}, v{vV0}
    ds_read_b128 {V(VB[0]+4,4)}, v{vV0} offset:576
    v_max_f32 v{aT0}, v{aT0}, v{aT2}
    v_max_f32 v{aT1}, v{aT1}, v{aT3}
    """)
    for i in range(16): A(f"v_sub_f32 v{NMA+i}, 0, v{aT0}")
    A(f"""
    v_sub_f32 v{NMB}, 0, v{aT1}
    s_mov_b32 s51, 0
    {m16(SA, KB[0], Q1A, V(NMA,16))}
    {m8(SA, KL, Q2A)}
    """)
    for i in range(1, 16): A(f"v_sub_f32 v{NMB+i}, 0, v{aT1}")
    A("s_setprio 0")
    g.stamp(9)
    if g.dbg and 'its' in EXP: A("s_mov_b32 s55, 0\nv_mov_b32 v214, 0\nv_writelane_b32 v214, s88, 0\nv_writelane_b32 v214, s90, 32")
    A(".p2align 6\nLa_loop:")
    for j in range(4):
        b = j & 1; nb = b ^ 1
        koff = 2*(j+1)
        ex = [[f"ds_read2st64_b64 {V(KB[nb],4)}, v{vKM} offset0:{koff} offset1:{koff+1}"], [], [], ["s_waitcnt lgkmcnt(0)"]]
        if j == 0:
            ex[0].append(f"ds_read_b64 {V(KL+2,2)}, v{vKL} offset:512")
            ex[2] = ["s_min_u32 s53, s51, 14"]
        if j == 1: ex[0].append(f"ds_add_rtn_u32 v{vCR}, v{vCA}, v{vOne}")
        if j == 2: ex[2] = ["s_lshr_b32 s52, s52, 8"]
        if j == 3:
            ex[0].append(f"ds_read_b64 {V(KL,2)}, v{vKL} offset:1024")
            ex[1] = [f"v_add_u32 v{vV}, v{vVinc}, v{vV}"]
            ex[2] = ["s_cmp_lt_u32 s51, 16"]
        klp = KL + 2*(j >> 1)
        phase(A, SA, PA, [m16(SB, KB[b], Q1B, V(NMB,16)), m8(SB, klp, Q2B + 2*(j & 1)),
                          m16(OB, VB[nb], PB, V(OB,16)), m16(OB, VB[nb]+4, PB+4, V(OB,16))], ex)
        jn = (j+1) & 3
        klp = KL + 2*(jn >> 1)
        ex = [[], [], [f"ds_read_b128 {V(VB[nb],4)}, v{vV} offset:{jn*VT}"], [f"ds_read_b128 {V(VB[nb]+4,4)}, v{vV} offset:{jn*VT+576}"]]
        if j == 0: ex[0] = ["s_add_u32 s51, s51, 1"]
        if j == 1: ex[1] = [f"v_readfirstlane_b32 s52, v{vCR}"]
        if j == 2:
            ex[0] = ["s_cmp_gt_u32 s53, s52"]
            ex[3] += ["s_cbranch_scc1 La_chk", "La_chkd:"]
        if j == 3:
            ex[1] = [f"v_add_u32 v{vKM}, 4096, v{vKM}", f"v_add_u32 v{vKL}, 1024, v{vKL}"]
        phase(A, SB, PB, [m16(SA, KB[nb], Q1A, V(NMA,16)), m8(SA, klp, Q2A + 2*(jn & 1)),
                          m16(OA, VB[b], PA, V(OA,16)), m16(OA, VB[b]+4, PA+4, V(OA,16))], ex)
    if g.dbg and 'its' in EXP:
        A(f"""
        s_memrealtime s[88:89]
        s_memtime s[90:91]
        s_mov_b32 m0, s51
        s_waitcnt lgkmcnt(0)
        v_writelane_b32 v214, s88, m0
        s_add_u32 m0, s51, 32
        s_nop 0
        v_writelane_b32 v214, s90, m0
        s_cmp_lt_u32 s51, 16
        """)
    A("s_cbranch_scc1 La_loop")
    A(f"""
    s_setprio 2
    {m16(OB, VB[1], PB, V(OB,16))}
    {m16(OB, VB[1]+4, PB+4, V(OB,16))}
    """)
    g.stamp(10)
    A(f"v_lshlrev_b32 v{aT2}, 2, v0\nv_mov_b32 v{aT3}, 0")
    for n, (O, P) in enumerate(((OA, PA), (OB, PB))):
        A(f"""
        v_mov_b32 v{aT0}, v{O+10}
        v_mov_b32 v{aT1}, v{O+10}
        """)
        for i in range(11): A(f"v_add_f32 v{aT3}, |v{O+i}|, v{aT3}")
        A(f"""
        v_permlane32_swap_b32 v{aT0}, v{aT1}
        s_nop 1
        v_rcp_f32 v{aT0}, v{aT0}
        s_add_u32 s25, s48, {n*36*1024}
        s_add_u32 s27, s49, {n*36*1024}
        """)
        for i in range(10): A(f"v_mul_f32 v{O+i}, v{O+i}, v{aT0}")
        for i in range(5): A(f"v_cvt_pk_bf16_f32 v{P+i}, v{O+2*i}, v{O+2*i+1}")
        A(f"""
        buffer_store_dwordx4 {V(P,4)}, v{vL16}, s[12:15], s25 offen {SC}
        s_mov_b32 exec_hi, 0
        buffer_store_dword v{P+4}, v{aT2}, s[12:15], s27 offen {SC}
        s_mov_b32 exec_hi, -1
        """)
    A(f"""
    v_mov_b32 v{aT1}, 0x71800000
    v_cmp_nlt_f32 vcc, v{aT3}, v{aT1}
    v_mov_b32 v{aT3}, {FLAG}
    v_mov_b32 v{aT2}, 1
    s_cmp_lg_u32 s50, 0
    s_cbranch_scc1 Lp3
    s_cbranch_vccz Lp3
    ds_write_b32 v{aT3}, v{aT2}
    s_branch Lp3
La_chk:
    s_mov_b32 s93, {SPIN}
La_chk1:
    ds_read_b32 v{vCR}, v{vCA}
    s_waitcnt lgkmcnt(0)
    v_readfirstlane_b32 s52, v{vCR}
    s_lshr_b32 s52, s52, 8
    s_cmp_le_u32 s53, s52
    s_cbranch_scc1 La_chkd
    s_sleep 1
    s_sub_u32 s93, s93, 1
    s_cmp_lg_u32 s93, 0
    s_cbranch_scc1 La_chk1
    s_branch La_chkd
La_slow:
    s_mov_b32 s50, 1
    s_barrier
    v_mov_b32 v{aT0}, {14 << 8}
    ds_write_b32 v{vCA}, v{aT0}
    v_mov_b32 v{aT3}, {FLAG}
    v_mov_b32 v{aT2}, 0
    ds_write_b32 v{aT3}, v{aT2}
    v_mov_b32 v{vKM}, v{vKM0}
    v_mov_b32 v{vKL}, v{vKL0}
    v_mov_b32 v{aT0}, 0xff800000
    v_mov_b32 v{aT1}, 0xff800000
    s_mov_b32 s51, 16
    s_waitcnt lgkmcnt(0)
    s_barrier
La_maxloop:
    ds_read2st64_b64 {V(KL,4)}, v{vKL} offset0:0 offset1:1
    """)
    for j in range(4):
        A(f"""
        ds_read2st64_b64 {V(KB[0],4)}, v{vKM} offset0:{2*j} offset1:{2*j+1}
        s_waitcnt lgkmcnt(0)
        {m16(SA, KB[0], Q1A, 0)}
        {m16(SB, KB[0], Q1B, 0)}
        {m8(SA, KL+2*(j>>1), Q2A+2*(j&1))}
        {m8(SB, KL+2*(j>>1), Q2B+2*(j&1))}
        s_nop 11
        """)
        maxtree(A, aT0, SA, True)
        maxtree(A, aT1, SB, True)
    A(f"""
    v_add_u32 v{vKM}, 4096, v{vKM}
    v_add_u32 v{vKL}, 1024, v{vKL}
    s_sub_u32 s51, s51, 1
    s_cmp_lg_u32 s51, 0
    s_cbranch_scc1 La_maxloop
    ds_read2st64_b64 {V(KB[0],4)}, v{vKM0} offset0:0 offset1:1
    ds_read_b64 {V(KL,2)}, v{vKL0}
    """)
    zero_acc(A)
    A("s_waitcnt lgkmcnt(0)\ns_branch La_setm")

def gen_p3(g):
    A = g.A
    BW, ACC_, AF = 40, 184, 16
    wA = 196
    A(f"""
Lh_slow:
    s_barrier
    """)
    dma_skip(A, -8)
    dma_n(g, 8)
    A(f"""
    s_waitcnt vmcnt(0)
    s_barrier
Lh_p3:
    s_and_b32 s19, s2, 7
    s_lshr_b32 s33, s2, 3
    v_lshlrev_b32 v{TMP}, 7, v0
    s_cmp_ge_u32 s33, 24
    s_cbranch_scc0 Lh_wo
    s_sub_u32 s25, s33, 24
    s_lshl_b32 s27, s19, 3
    s_add_u32 s25, s25, s27
    s_mul_i32 s25, s25, {32*1152}
    s_mul_i32 s27, s20, {72*128}
    s_add_u32 s25, s25, s27
    v_add_u32 v{TMP+1}, s25, v{TMP}
    global_load_dword v210, v{TMP+1}, s[{pQ}:{pQ+1}]
    global_load_dword v211, v{TMP+1}, s[{pQ}:{pQ+1}] offset:1024
    s_branch Lp3
Lh_wo:
    s_lshl_b32 s25, s33, 2
    s_add_u32 s25, s25, s20
    s_mul_i32 s25, s25, {54*128}
    """)
    g.srd(4, pWO, WOB)
    A(f"""
    s_mov_b32 exec_hi, 0x3fffff
    buffer_load_dword v210, v{TMP}, s[4:7], s25 offen
    s_mov_b32 exec_hi, -1
    """)
    for i in range(3):
        A(f"""
        v_add_u32 v1, {64*i}, v0
        v_mul_u32_u24 v2, 5462, v1
        v_lshrrev_b32 v2, 16, v2
        v_mul_u32_u24 v3, 12, v2
        v_sub_u32 v1, v1, v3
        v_mul_u32_u24 v2, 1152, v2
        v_lshl_add_u32 v{wA+i}, v1, 4, v2
        """)
    A(f"""
    v_subrev_u32 v{wA+1}, 1024, v{wA+1}
    v_subrev_u32 v{wA+2}, 2048, v{wA+2}
    s_lshr_b32 s25, s33, 2
    s_mul_i32 s28, s25, 192
    s_mul_i32 s25, s20, {16*1152}
    s_add_u32 s28, s28, s25
    """)
    for half, (n, base) in enumerate(((13, "s23"), (15, "s22"))):
        wait_progress(g, n, 6)
        A(f"""
        s_add_u32 s27, s28, {half*288*1152}
        s_mul_i32 s25, s20, 3072
        s_add_u32 s25, s25, {base}
        s_mov_b32 s31, s20
Lo_wo{half}:
        s_mov_b32 m0, s25
        s_add_u32 s31, s31, 4
        buffer_load_dwordx4 v{wA}, s[4:7], s27 offen lds
        buffer_load_dwordx4 v{wA+1}, s[4:7], s27 offen offset:1024 lds
        buffer_load_dwordx4 v{wA+2}, s[4:7], s27 offen offset:2048 lds
        s_add_u32 s27, s27, {4*16*1152}
        s_add_u32 s25, s25, {4*3072}
        s_cmp_lt_u32 s31, 18
        s_cbranch_scc1 Lo_wo{half}
        """)
    A(f"""
Lp3:
    v_mov_b32 v{TMP+1}, {FLAG}
    s_lshl_b32 s30, s18, 2
    s_lshr_b32 s25, s17, 3
    s_add_u32 s30, s30, s25
    s_add_u32 s30, s30, 32
    s_waitcnt vmcnt(0) lgkmcnt(0)
    s_barrier
    ds_read_b32 v{TMP}, v{TMP+1}
    s_and_b32 s19, s2, 7
    s_lshr_b32 s33, s2, 3
    s_waitcnt lgkmcnt(0)
    v_readfirstlane_b32 s25, v{TMP}
    s_cmp_eq_u32 s25, 0
    s_cbranch_scc1 Lp3_ok
    s_cmp_lt_u32 s16, 4
    s_cbranch_scc1 La_slow
    s_branch Lh_slow
Lp3_ok:
    """)
    g.stamp(11)
    A("s_cmp_lg_u32 s16, 7\ns_cbranch_scc1 Lp3_1")
    g.signal("s30", 14)
    A(f"""
Lp3_1:
    s_cmp_ge_u32 s33, 24
    s_cbranch_scc1 Lp3_s3
    s_and_b32 s17, s33, 3
    s_lshl_b32 s19, s19, 2
    s_add_u32 s17, s17, s19            ; tb
    s_lshr_b32 s18, s33, 2             ; ng
    s_mov_b32 s28, s23
    s_mov_b32 s29, s22
    s_and_b32 s23, s16, 1
    s_lshr_b32 s24, s16, 1
    v_lshlrev_b32 v12, 4, v0
    s_cmp_ge_u32 s16, 6
    s_cbranch_scc1 Lo_nopre
    v_lshrrev_b32 v1, 5, v0
    v_bfe_u32 v2, v0, 2, 2
    v_bfe_u32 v3, v0, 4, 1
    v_lshlrev_b32 v3, 5, v3
    v_and_b32 v7, 3, v0
    v_lshl_add_u32 v3, v7, 3, v3
    s_lshl_b32 s25, s24, 6
    v_add_u32 v3, s25, v3
    v_lshl_add_u32 v7, v1, 2, v2
    v_mul_u32_u24 v7, 192, v7
    v_add3_u32 v8, v7, v3, s28
    v_add3_u32 v9, v7, v3, s29
    v_mul_u32_u24 v7, 72, v1
    v_lshrrev_b32 v10, 1, v2
    v_mul_u32_u24 v10, 18, v10
    v_add_u32 v7, v7, v10
    v_and_b32 v10, 1, v2
    v_add3_u32 v7, v7, v10, 16
    v_mul_u32_u24 v7, 192, v7
    v_add3_u32 v10, v7, v3, s28
    v_add3_u32 v11, v7, v3, s29
    """)
    for s_ in range(36):
        for e in range(2):
            if s_ < 32: base, off = (8, (18*s_ + 8*e)*192) if s_ < 16 else (9, (18*(s_-16) + 8*e)*192)
            else: base, off = (10 + ((s_-32) >> 1), (144*((s_-32) & 1) + 36*e)*192)
            A(f"ds_read_b64_tr_b16 {V(BW+4*s_+2*e,2)}, v{base} offset:{off}")
        if s_ % 6 == 5: A("s_waitcnt lgkmcnt(4)")
    A("Lo_nopre:")
    g.srd(44, pOUT, OUTB)
    for i in range(16): A(f"v_mov_b32 v{ACC_+i}, 0")
    TR = 81920
    A(f"""
    s_mul_i32 s20, s17, {2*36*1024}
    s_add_u32 s20, s20, {OF}
    s_mul_i32 s21, s23, {36*1024}
    s_add_u32 s20, s20, s21
    s_lshl_b32 s21, s24, 10
    s_add_u32 s20, s20, s21
    s_lshl_b32 s21, s23, 10
    v_add_u32 v13, s21, v12
    v_and_b32 v1, 31, v0
    v_lshlrev_b32 v1, 2, v1
    v_lshrrev_b32 v2, 5, v0
    v_lshl_add_u32 v1, v2, 9, v1
    s_add_u32 s21, s21, 65536
    v_add_u32 v201, s21, v1
    v_add_u32 v202, 2048, v201
    v_add_u32 v203, 4096, v201
    v_add_u32 v204, 6144, v201
    v_and_b32 v1, 31, v0
    s_lshl_b32 s21, s23, 5
    v_add_u32 v1, s21, v1
    v_mul_u32_u24 v1, 208, v1
    v_lshl_add_u32 v1, v2, 3, v1
    s_lshl_b32 s21, s24, 6
    s_add_u32 s21, s21, {TR}
    v_add_u32 v200, s21, v1
    s_mul_i32 s26, s17, {64*2304}
    s_mul_i32 s22, s18, 192
    s_add_u32 s26, s26, s22
    s_lshl_b32 s22, s16, 7
    """)
    for i in range(2):
        A(f"""
        v_add_u32 v1, s22, v0
        v_add_u32 v1, {64*i}, v1
        v_mul_u32_u24 v2, 5462, v1
        v_lshrrev_b32 v2, 16, v2
        v_mul_u32_u24 v3, 12, v2
        v_sub_u32 v1, v1, v3
        v_lshlrev_b32 v1, 4, v1
        v_mul_u32_u24 v3, 208, v2
        v_add_u32 v{4+i}, v3, v1
        v_add_u32 v{4+i}, {TR}, v{4+i}
        v_mul_u32_u24 v3, 2304, v2
        v_add_u32 v{6+i}, v3, v1
        """)
    A("s_lshl_b32 s21, s16, 10\ns_waitcnt lgkmcnt(0)")
    g.stamp(12)
    A("s_cmp_lg_u32 s16, 7\ns_cbranch_scc1 Lp3_h\ns_add_u32 s25, s19, 32")
    g.poll("s25", 4, 8, 16)
    A("Lp3_h:\ns_barrier")
    g.stamp(13)
    for rr in range(9):
        A(f"""
        s_mov_b32 m0, s21
        s_add_u32 s21, s21, 8192
        buffer_load_dwordx4 v12, s[12:15], s20 offen lds {SC}
        s_add_u32 s20, s20, 4096
        """)
    for c in range(3):
        A(f"s_waitcnt vmcnt({6-3*c})\ns_barrier")
        if c == 0: A(f"s_cmp_ge_u32 s16, 6\ns_cbranch_scc1 Lo_idle")
        if c == 2: A(f"v_add_u32 v13, 49152, v13")
        for half in range(2):
            for i in range(6):
                s_ = 12*c + 6*half + i
                off = 2048*s_ - (49152 if c == 2 else 0)
                if s_ < 32: A(f"ds_read_b128 {V(AF+4*i,4)}, v13 offset:{off}")
                else:
                    A(f"ds_read2_b32 {V(AF+4*i,2)}, v{201+s_-32} offset0:0 offset1:32")
                    A(f"ds_read2_b32 {V(AF+4*i+2,2)}, v{201+s_-32} offset0:64 offset1:96")
            for i in range(6):
                s_ = 12*c + 6*half + i
                last = 12*c + 6*half + 5
                A(f"s_waitcnt lgkmcnt({sum(1 if x < 32 else 2 for x in range(s_+1, last+1))})")
                A(f"v_mfma_f32_32x32x16_bf16 {V(ACC_,16)}, {V(BW+4*s_,4)}, {V(AF+4*i,4)}, {V(ACC_,16)}")
    g.stamp(14)
    A("s_nop 11")
    for q in range(4):
        A(f"""
        v_cvt_pk_bf16_f32 v{AF+2*q}, v{ACC_+4*q}, v{ACC_+4*q+1}
        v_cvt_pk_bf16_f32 v{AF+2*q+1}, v{ACC_+4*q+2}, v{ACC_+4*q+3}
        ds_write_b64 v200, {V(AF+2*q,2)} offset:{16*q}
        """)
    A(f"""
    s_waitcnt lgkmcnt(0)
    s_barrier
    ds_read_b128 {V(AF,4)}, v4
    ds_read_b128 {V(AF+4,4)}, v5
    s_waitcnt lgkmcnt(1)
    buffer_store_dwordx4 {V(AF,4)}, v6, s[44:47], s26 offen
    s_waitcnt lgkmcnt(0)
    buffer_store_dwordx4 {V(AF+4,4)}, v7, s[44:47], s26 offen
    s_branch Lfin
Lo_idle:
    s_waitcnt vmcnt(3)
    s_barrier
    s_waitcnt vmcnt(0)
    s_barrier
    s_branch Lfin
Lp3_s3:
    s_sub_u32 s20, s33, 24
    s_lshl_b32 s17, s19, 3
    s_add_u32 s17, s17, s20
    s_mov_b64 s[6:7], s[{pOUT}:{pOUT+1}]
    s_mov_b64 s[48:49], s[{pWS}:{pWS+1}]
    s_mov_b64 s[50:51], s[{pQ}:{pQ+1}]
    """)
    g.poll(16, 16, 18, 16)
    k3.gen_stage3(A, "Ls3", False, SC)
    A("Lfin:")
    g.end()

def gen(name, dbg=False):
    g = G(dbg); A = g.A
    A("Lcode_begin:")
    A(f"""
    s_cmp_ge_u32 s2, 256
    s_cbranch_scc1 Lend
    s_load_dwordx16 s[64:79], s[0:1], 0
    s_load_dwordx8 s[80:87], s[0:1], 64
    v_lshrrev_b32 v1, 6, v0
    v_and_b32 v0, 63, v0
    v_readfirstlane_b32 s16, v1
    """)
    if dbg: A(f"v_mov_b32 v{vST}, 0")
    g.stamp(0)
    A(f"""
    s_lshl_b32 s3, s16, 2
    s_add_u32 s3, s3, {SY}
    s_and_b32 s94, s3, {0xffffffff & ~15}
    s_cmp_ge_u32 s2, 224
    s_cbranch_scc1 Ls1
    """)
    gen_gemm(g)
    A("Ls1:")
    gen_stage1(g)
    gen_attn(g)
    gen_p3(g)
    A("Lend:\ns_endpgm\nLcode_end:")
    return A.text()

if __name__ == "__main__":
    import sys
    out = sys.argv[1]; dbg = len(sys.argv) > 2 and sys.argv[2] == "dbg"
    name = "concat_heads__softmax_full_mha__ssm_conv_h3__prompt_kernel"
    HDR = open("concat_heads__softmax_full_mha__ssm_conv_h3__prompt.s.ref").read().split("; Override launch")[0]
    s = HDR
    if (dbg and not os.environ.get('DD')) or 'list' in EXP: s += f"; @launch kernel={name} grid=(256,1,1) block=(512,1,1) lds={LDS_BYTES}\n"
    else: s += f"; @launch grid=(256,1,1) block=(512,1,1) lds={LDS_BYTES}\n"
    s += '.amdgcn_target "amdgcn-amd-amdhsa--gfx950"\n.text\n' + kernel_head(name) + gen(name, dbg)
    s += '.section .rodata,"a"\n' + kernel_desc(name, NVGPR, 102)
    open(out, "w").write(s)
```

```python
import os, struct, math
from asmlib import *
from layout import *
import kconv
EXP = os.environ.get('FEXP', '').split(',')
def opt(name, default): return int(os.environ.get(name, default))

CS_BITS = struct.unpack("<I", struct.pack("<f", math.log2(math.e)/math.sqrt(18)))[0]
XB, WB, OUTB, WOB = 2048*1152, 576*3456, 2048*2304, 576*1152
NVGPR = 248
LDS_BYTES = 163840
vST = 215
pX, pW, pWO, pQ, pK, pV, pSH, pH, pD, pOUT, pDBG, pWS = [64+2*i for i in range(12)]
WIN = 65536 + VSZ + 16384
CONST = WIN
UC = WIN + 4352
XCH = WIN + 6144
SY = WIN + 5376
SC = "sc1"
NTG = 'nt' if 'ntg' in EXP else ''
NTB = 'nt' if 'ntb' in EXP else ''
SPIN = 200000
NREP = opt('NREP', 8)

class G:
    def __init__(self, dbg):
        self.A = Asm(); self.dbg = dbg; self.n = 0
    def lab(self, p="L"):
        self.n += 1; return f"{p}{self.n}"
    def stamp(self, i):
        if self.dbg:
            self.A(f"""
            s_memrealtime s[88:89]
            s_memtime s[90:91]
            s_waitcnt lgkmcnt(0)
            v_writelane_b32 v{vST}, s88, {i}
            v_writelane_b32 v{vST}, s90, {32+i}
            """)
    def srd(self, d, p, n):
        self.A(f"s_mov_b32 s{d}, s{p}\ns_mov_b32 s{d+1}, s{p+1}\ns_mov_b32 s{d+2}, {n}\ns_mov_b32 s{d+3}, 0x20000")
    def end(self):
        A = self.A
        if self.dbg:
            A("s_mov_b64 exec, -1\ns_waitcnt vmcnt(0)")
            self.stamp(31)
            A(f"""
            s_lshl_b32 s25, s2, 3
            s_add_u32 s25, s25, s16
            s_lshl_b32 s25, s25, 8
            s_add_u32 s25, s25, {STAMP}
            v_lshlrev_b32 v1, 2, v0
            buffer_store_dword v{vST}, v1, s[12:15], s25 offen
            s_add_u32 s25, s25, {2048*256}
            buffer_store_dword v214, v1, s[12:15], s25 offen
            """)
        amp = os.environ.get('AMP')
        if self.dbg and amp:
            wg, w, i, j = [int(x) for x in amp.split(',')]
            A(f"""
            s_cmp_lg_u32 s2, {wg}
            s_cbranch_scc1 Lam_e
            s_cmp_lg_u32 s16, {w}
            s_cbranch_scc1 Lam_e
            v_readlane_b32 s40, v{vST}, {i}
            v_readlane_b32 s41, v{vST}, {j}
            s_memrealtime s[42:43]
            s_nop 3
            s_sub_u32 s41, s41, s40
            s_min_u32 s41, s41, 10000
            s_lshl_b32 s41, s41, 3
            s_add_u32 s41, s41, {os.environ.get('AMPC', '0')}
            s_waitcnt lgkmcnt(0)
Lam_l:
            s_memrealtime s[44:45]
            s_waitcnt lgkmcnt(0)
            s_sub_u32 s44, s44, s42
            s_cmp_lt_u32 s44, s41
            s_cbranch_scc1 Lam_l
Lam_e:
            """)
        dd = os.environ.get('DD')
        if self.dbg and dd:
            wg, w, *idx = [int(x) for x in dd.split(',')]
            A(f"""
            s_cmp_lg_u32 s2, {wg}
            s_cbranch_scc1 Ldd_e
            s_cmp_lg_u32 s16, {w}
            s_cbranch_scc1 Ldd_e
            v_readlane_b32 s40, v{vST}, 0
            v_mov_b32 v2, 0
            """)
            for k, i in enumerate(idx):
                A(f"""
                v_readlane_b32 s41, v{vST}, {i}
                s_nop 3
                s_sub_u32 s41, s41, s40
                v_mov_b32 v3, s41
                global_store_dword v2, v3, s[{pDBG}:{pDBG+1}] offset:{32+4*k}
                """)
            A("Ldd_e:")
        A("s_endpgm")
    def post(self, val, t):
        self.A(f"""
        v_mov_b32 v{t}, s3
        v_mov_b32 v{t+1}, {val}
        ds_write_b32 v{t}, v{t+1}
        """)
    def wait_words(self, addr, val, t, n=4, sl=1):
        l = self.lab("Lw"); d = self.lab("Ld")
        rd = f"ds_read_b128 {V(t,4)}, v{t+4}" if n == 4 else f"ds_read_b32 v{t}, v{t+4}"
        mn = f"v_min_u32 v{t}, v{t}, v{t+1}\nv_min3_u32 v{t}, v{t}, v{t+2}, v{t+3}\ns_nop 0" if n == 4 else ""
        self.A(f"""
        v_mov_b32 v{t+4}, {addr}
        s_mov_b32 s93, {SPIN}
{l}:
        {rd}
        s_waitcnt lgkmcnt(0)
        {mn}
        v_readfirstlane_b32 s92, v{t}
        s_cmp_ge_u32 s92, {val}
        s_cbranch_scc1 {d}
        s_sleep {sl}
        s_sub_u32 s93, s93, 1
        s_cmp_lg_u32 s93, 0
        s_cbranch_scc1 {l}
{d}:
        """)
    def gsync(self, val, t):
        self.post(val, t)
        self.wait_words("s94", val, t)
    def ready(self, t):
        l = self.lab("Lr"); d = self.lab("Ld")
        self.A(f"""
        v_and_b32 v{t+1}, {NREP-1}, v0
        v_lshlrev_b32 v{t+1}, 2, v{t+1}
        s_mov_b32 s93, {SPIN}
{l}:
        global_load_dword v{t}, v{t+1}, s[{pDBG}:{pDBG+1}] {SC}
        s_waitcnt vmcnt(0)
        v_cmp_eq_u32 vcc, 0, v{t}
        s_nop 3
        s_cmp_eq_u64 vcc, 0
        s_cbranch_scc1 {d}
        s_sleep 2
        s_sub_u32 s93, s93, 1
        s_cmp_lg_u32 s93, 0
        s_cbranch_scc1 {l}
{d}:
        """)
    def signal(self, sidx, t):
        self.A(f"""
        s_lshl_b32 s92, {sidx}, 8
        s_add_u32 s92, s92, {CNT}
        v_lshlrev_b32 v{t}, 15, v0
        v_mov_b32 v{t+1}, 1
        s_mov_b64 exec, {(1 << NREP) - 1}
        buffer_atomic_add v{t+1}, v{t}, s[12:15], s92 offen {SC}
        s_mov_b64 exec, -1
        """)
    def poll(self, first, n, target, t, sl=None):
        l = self.lab("Lp"); d = self.lab("Ld")
        self.A(f"""
        v_min_u32 v{t+1}, {n-1}, v0
        v_add_u32 v{t+1}, {first}, v{t+1}
        v_lshlrev_b32 v{t+1}, 8, v{t+1}
        s_mov_b32 s93, {SPIN}
        s_and_b32 s92, s2, {NREP-1}
        s_lshl_b32 s92, s92, 15
        s_add_u32 s92, s92, {CNT}
        s_mov_b64 exec, {(1 << n) - 1}
{l}:
        buffer_load_dword v{t}, v{t+1}, s[12:15], s92 offen {SC}
        s_waitcnt vmcnt(0)
        v_cmp_le_u32 vcc, {target}, v{t}
        s_nop 3
        s_cmp_eq_u64 vcc, exec
        s_cbranch_scc1 {d}
        s_sleep {sl or opt('PSLEEP', 2)}
        s_sub_u32 s93, s93, 1
        s_cmp_lg_u32 s93, 0
        s_cbranch_scc1 {l}
{d}:
        s_mov_b64 exec, -1
        """)

vT0, vT1, vT2, vT3, vTok, vHf = 1, 2, 3, 4, 5, 6
vXb, vWb, vX, vW, vEA, FR, ACC, PK = 8, 12, 14, 18, 20, 36, 68, 132
RING = 98304
def XF(b, i): return FR + 16*b + 4*i
def WF(b, j): return FR + 16*b + 8 + 4*j
def acc(i, j): return ACC + 16*(2*i + j)
def g_reads(b, s):
    return [f"ds_read_b128 {V(XF(b,0),4)}, v{vX+s}",
            f"ds_read_b64_tr_b16 {V(WF(b,0),2)}, v{vW} offset:{16384 + 4096*s}",
            f"ds_read_b64_tr_b16 {V(WF(b,0)+2,2)}, v{vW} offset:{16384 + 4096*s + 1024}",
            f"ds_read_b64_tr_b16 {V(WF(b,1),2)}, v{vW+1} offset:{16384 + 4096*s}",
            f"ds_read_b64_tr_b16 {V(WF(b,1)+2,2)}, v{vW+1} offset:{16384 + 4096*s + 1024}",
            f"ds_read_b128 {V(XF(b,1),4)}, v{vX+s} offset:4096"]
def g_mf(b, i, j, vtype):
    a, bb = (XF(b,i), WF(b,j)) if vtype else (WF(b,j), XF(b,i))
    return f"v_mfma_f32_32x32x16_bf16 {V(acc(i,j),16)}, {V(a,4)}, {V(bb,4)}, {V(acc(i,j),16)}"
def g_setaddr(A):
    for s in range(4): A(f"v_add_u32 v{vX+s}, s30, v{vXb+s}")
    for j in range(2): A(f"v_add_u32 v{vW+j}, s30, v{vWb+j}")
def g_loop(g, name, vtype):
    A = g.A
    A("s_mov_b32 s31, 9\ns_barrier")
    for r in g_reads(0, 0): A(r)

    A(f".p2align 6\n{name}:")
    for s in range(4):
        b = s & 1
        A("s_waitcnt lgkmcnt(0)")
        A(g_mf(b, 0, 0, vtype))
        if s < 3:
            rd = g_reads(b ^ 1, s+1)
            for r in rd[:3]: A(r)
            A(g_mf(b, 0, 1, vtype))
            for r in rd[3:]: A(r)
            A(g_mf(b, 1, 0, vtype)); A(g_mf(b, 1, 1, vtype))
        else:
            A(f"""
            s_add_u32 s30, s30, 32768
            s_cmp_eq_u32 s30, {RING}
            s_cselect_b32 s30, 0, s30
            s_sub_u32 s31, s31, 1
            s_cmp_eq_u32 s31, 0
            s_cbranch_scc1 {name}_nb
            s_barrier
{name}_nb:
            """)
            g_setaddr(A)
            A(g_mf(b, 0, 1, vtype))
            rd = g_reads(0, 0)
            for r in rd[:3]: A(r)
            A(g_mf(b, 1, 0, vtype))
            for r in rd[3:]: A(r)
            A(g_mf(b, 1, 1, vtype))
    A(f"s_cbranch_scc0 {name}")

def ld_chunk(g, skip=True):
    A = g.A; l = g.lab("Lk")
    if skip: A(f"s_cmp_lg_u32 s95, 0\ns_cbranch_scc1 {l}")
    A(f"""
    s_mov_b32 m0, s42
    s_add_u32 s26, s40, 8192
    buffer_load_dwordx4 v8, s[8:11], s40 offen lds
    s_add_u32 s27, s40, 16384
    buffer_load_dwordx4 v9, s[8:11], s26 offen offset:1024 lds
    s_add_u32 s26, s40, 24576
    buffer_load_dwordx4 v8, s[8:11], s27 offen offset:2048 lds
    s_add_u32 s28, s42, 16384
    buffer_load_dwordx4 v9, s[8:11], s26 offen offset:3072 lds
    s_mov_b32 m0, s28
    s_add_u32 s26, s41, {13824-1024}
    buffer_load_dwordx4 v10, s[44:47], s41 offen lds
    s_add_u32 s27, s41, {2*(13824-1024)}
    buffer_load_dwordx4 v10, s[44:47], s26 offen offset:1024 lds
    s_add_u32 s26, s41, {3*(13824-1024)}
    buffer_load_dwordx4 v10, s[44:47], s27 offen offset:2048 lds
    s_add_u32 s40, s40, 128
    buffer_load_dwordx4 v10, s[44:47], s26 offen offset:3072 lds
    s_add_u32 s41, s41, {64*3456}
    s_add_u32 s24, s24, 1
    s_cmp_eq_u32 s24, 9
    s_cselect_b32 s26, 1152, 0
    s_cselect_b32 s27, {WB}, 0
    s_sub_u32 s40, s40, s26
    s_sub_u32 s41, s41, s27
    s_add_u32 s42, s42, 32768
    s_cmp_ge_u32 s42, {RING}
    s_cselect_b32 s26, {RING}, 0
    s_sub_u32 s42, s42, s26
{l}:
    """)

def gen_gemm(g):
    A = g.A
    ROT = opt('ROT', 1)
    A(f"""
    s_and_b32 s17, s2, 7               ; xcd
    s_lshr_b32 s18, s2, 3              ; idx 0..27
    s_and_b32 s19, s17, 3
    s_lshl_b32 s19, s19, 2
    s_and_b32 s20, s18, 3
    s_add_u32 s19, s19, s20            ; mb
    s_lshr_b32 s21, s17, 2
    s_mul_i32 s21, s21, 7
    s_lshr_b32 s22, s18, 2
    s_add_u32 s21, s21, s22            ; ng
    s_cmp_lt_u32 s16, 4
    s_cbranch_scc1 Lg_compute
    s_and_b32 s23, s16, 3              ; u
    """)
    if ROT:
        A("""
        s_mul_i32 s24, s20, 5
        s_lshr_b32 s24, s24, 1
        s_add_u32 s24, s24, s22
        s_cmp_ge_u32 s24, 9
        s_cselect_b32 s25, 9, 0
        s_sub_u32 s24, s24, s25
        """)
    else: A("s_mov_b32 s24, 0")
    A(f"""
    s_lshl_b32 s25, s19, 7
    s_lshl_b32 s26, s23, 5
    s_add_u32 s25, s25, s26
    s_mul_i32 s25, s25, 1152
    s_lshl_b32 s26, s24, 7
    s_add_u32 s40, s25, s26            ; sX
    s_lshl_b32 s25, s24, 2
    s_add_u32 s25, s25, s23
    s_mul_i32 s25, s25, {16*3456}
    s_lshl_b32 s26, s21, 8
    s_add_u32 s41, s25, s26            ; sW
    s_lshl_b32 s42, s23, 12
    v_lshrrev_b32 v{vT0}, 3, v0
    v_mul_u32_u24 v{vT0}, 1152, v{vT0}
    v_lshrrev_b32 v{vT1}, 4, v0
    v_and_b32 v{vT2}, 7, v0
    v_xor_b32 v{vT2}, v{vT2}, v{vT1}
    v_lshl_add_u32 v8, v{vT2}, 4, v{vT0}
    v_xor_b32 v{vT2}, 4, v{vT2}
    v_lshl_add_u32 v9, v{vT2}, 4, v{vT0}       ; odd i
    v_mul_u32_u24 v{vT0}, 3456, v{vT1}
    v_and_b32 v{vT2}, 15, v0
    v_lshlrev_b32 v{vT1}, 2, v{vT1}
    v_xor_b32 v{vT2}, v{vT2}, v{vT1}
    v_lshl_add_u32 v10, v{vT2}, 4, v{vT0}      ; W addr
    s_mov_b32 s95, 0
    s_setprio {opt('LPRIO', 0)}
    s_waitcnt lgkmcnt(0)
    """)
    g.srd(8, pX, XB); g.srd(44, pW, WB)
    A(f"""
    s_mov_b32 s31, 0
Lld:
    s_cmp_lt_u32 s31, 2
    s_cbranch_scc1 Lld_go
    s_waitcnt vmcnt(8)
    s_barrier
Lld_go:
    """)
    ld_chunk(g, False)
    A(f"""
    s_add_u32 s31, s31, 1
    s_cmp_lt_u32 s31, 9
    s_cbranch_scc1 Lld
    s_waitcnt vmcnt(8)
    s_barrier
    """)
    g.srd(12, pWS, WS_END)
    A(f"""
    s_waitcnt vmcnt(0)
    s_barrier
    s_branch Lh_start
Lg_compute:
    s_and_b32 s23, s16, 1              ; wm
    s_lshr_b32 s24, s16, 1             ; wn
    v_and_b32 v{vTok}, 31, v0
    v_lshrrev_b32 v{vHf}, 5, v0
    s_lshl_b32 s25, s23, 13
    v_lshlrev_b32 v{vT0}, 7, v{vTok}
    v_add_u32 v{vT0}, s25, v{vT0}
    v_bfe_u32 v{vT1}, v0, 1, 3
    v_xor_b32 v{vT1}, v{vT1}, v{vHf}
    """)
    for s in range(4):
        A(f"v_xor_b32 v{vT2}, {2*s}, v{vT1}\nv_lshl_add_u32 v{vXb+s}, v{vT2}, 4, v{vT0}")
    A(f"""
    v_bfe_u32 v{vT0}, v0, 2, 2
    v_lshl_add_u32 v{vT1}, v{vHf}, 3, v{vT0}
    v_lshlrev_b32 v{vT1}, 8, v{vT1}
    v_bfe_u32 v{vT2}, v0, 4, 1
    v_lshl_add_u32 v{vT1}, v{vT2}, 5, v{vT1}
    v_and_b32 v{vT2}, 3, v0
    v_lshl_add_u32 v{vT1}, v{vT2}, 3, v{vT1}
    s_lshl_b32 s25, s24, 1
    v_xor_b32 v{vT2}, s25, v{vT0}
    v_lshl_add_u32 v{vWb}, v{vT2}, 6, v{vT1}
    v_xor_b32 v{vT2}, 1, v{vT2}
    v_lshl_add_u32 v{vWb+1}, v{vT2}, 6, v{vT1}
    s_mov_b32 s30, 0
    s_waitcnt lgkmcnt(0)
    """)
    g.srd(12, pWS, WS_END)
    gen_init_misc(g, PK+8)
    g_setaddr(A)
    for i in range(64): A(f"v_mov_b32 v{ACC+i}, 0")
    A(f"""
    s_lshl_b32 s26, s19, 2
    s_lshl_b32 s27, s23, 1
    s_add_u32 s26, s26, s27            ; T0
    s_waitcnt lgkmcnt(0)
    s_cmp_ge_u32 s21, 9
    s_cbranch_scc1 Lg_vtype
    s_lshl_b32 s27, s21, 5
    s_lshl_b32 s28, s24, 4
    s_add_u32 s27, s27, s28
    v_add_u32 v{vT0}, s27, v{vHf}      ; G0
    s_lshl_b32 s28, s26, 10
    s_lshl_b32 s29, s26, 8
    s_add_u32 s29, s29, {LEFT}
    v_lshlrev_b32 v{vTok}, 3, v{vTok}
    v_add_u32 v{PK}, s29, v{vTok}
    v_add_u32 v{PK+1}, s28, v{vTok}
    v_add_u32 v{PK+2}, {MB-1280}, v{PK+1}
    v_mov_b32 v{PK+3}, 256
    v_mov_b32 v{PK+4}, 1024
    s_mov_b32 s32, {PAIR}
    """)
    for jg in range(8):
        A(f"""
        v_add_u32 v{vT1}, {8*(jg>>2) + 2*(jg&3)}, v{vT0}
        v_mul_u32_u24 v{vT2}, 7282, v{vT1}
        v_lshrrev_b32 v{vT2}, 16, v{vT2}
        v_mul_u32_u24 v{vT3}, 9, v{vT2}
        v_sub_u32 v{vT1}, v{vT1}, v{vT3}
        v_cmp_lt_u32 vcc, 4, v{vT1}
        v_cmp_eq_u32 s[34:35], 4, v{vT1}
        v_mul_u32_u24 v{vT2}, s32, v{vT2}
        v_cndmask_b32 v{vT3}, v{PK+1}, v{PK+2}, vcc
        v_lshl_add_u32 v{vT3}, v{vT1}, 8, v{vT3}
        v_cndmask_b32 v{vT3}, v{vT3}, v{PK}, s[34:35]
        v_cndmask_b32 v{vT1}, v{PK+4}, v{PK+3}, s[34:35]
        v_add_u32 v{vEA+jg}, v{vT2}, v{vT3}
        v_add_u32 v{vEA+8+jg}, v{vEA+jg}, v{vT1}
        """)
    g.stamp(1)
    g_loop(g, "Lg_qk", False)
    g.stamp(2)
    A(f"""
    s_lshl_b32 s27, s21, 2
    s_lshl_b32 s28, s24, 1
    s_add_u32 s27, s27, s28
    s_cmp_lt_u32 s27, 18
    s_cselect_b32 s28, {CS_BITS}, 1.0
    s_nop 7
    """)
    n = 0
    for i in range(2):
        for j in range(2):
            for q in range(4):
                a = acc(i, j) + 4*q
                p = PK + 2*(n % 8); n += 1
                for e in range(4): A(f"v_mul_f32 v{a+e}, s28, v{a+e}")
                A(f"v_cvt_pk_bf16_f32 v{p}, v{a}, v{a+1}\nv_cvt_pk_bf16_f32 v{p+1}, v{a+2}, v{a+3}")
                A(f"buffer_store_dwordx2 {V(p,2)}, v{vEA+8*i+4*j+q}, s[12:15], 0 offen {SC}")
    A(f"""
    s_branch Lg_done
Lg_vtype:
    s_sub_u32 s27, s21, 9
    s_lshl_b32 s27, s27, 7
    s_lshl_b32 s28, s24, 6
    s_add_u32 s27, s27, s28
    s_mul_i32 s28, s26, 36864
    s_add_u32 s28, s28, {VG}
    v_mul_u32_u24 v{vT3}, 9216, v{vHf}
    v_add_u32 v{vT0}, s27, v{vTok}
    v_lshl_add_u32 v{vEA}, v{vT0}, 4, v{vT3}
    """)
    g.stamp(1)
    g_loop(g, "Lg_v", True)
    g.stamp(2)
    A(f"""
    s_cmp_ge_u32 s27, 576
    s_cbranch_scc1 Lg_done
    s_nop 7
    """)
    n = 0
    for i in range(2):
        for j in range(2):
            for m in range(2):
                a = acc(i, j) + 8*m
                p = PK + 4*(n % 4); n += 1
                for e in range(4): A(f"v_cvt_pk_bf16_f32 v{p+e}, v{a+2*e}, v{a+2*e+1}")
                A(f"s_add_u32 s29, s28, {i*36864+m*18432}")
                A(f"buffer_store_dwordx4 {V(p,4)}, v{vEA}, s[12:15], s29 offen offset:{512*j} {SC}")
    A(f"""
Lg_done:
    s_setprio 2
    """)
    g.stamp(15)
    A("s_cmp_lg_u32 s16, 0\ns_cbranch_scc1 Lg_d2")
    g.ready(8)
    A("Lg_d2:\ns_waitcnt vmcnt(0) lgkmcnt(0)")
    g.stamp(3)
    g.gsync(5, 8)
    A("s_cmp_lg_u32 s16, 0\ns_cbranch_scc1 Lattn")
    g.stamp(16)
    g.signal("s21", 8)
    if g.dbg: A("s_waitcnt vmcnt(0)")
    g.stamp(17)
    A("s_branch Lattn")

def gen_init_misc(g, t):
    A = g.A
    for i in range(2):
        A(f"""
        s_and_b32 s25, s16, 3
        s_lshl_b32 s25, s25, 7
        s_add_u32 s25, s25, {64*i-14 & 0xffffffff}
        v_add_u32 v{t+4}, s25, v0
        v_mul_u32_u24 v{t+5}, 1821, v{t+4}
        v_lshrrev_b32 v{t+5}, 16, v{t+5}
        v_mul_u32_u24 v{t+5}, 36, v{t+5}
        v_cmp_eq_u32 s[34:35], v{t+5}, v{t+4}
        v_cmp_gt_u32 vcc, {36*8}, v{t+4}
        v_mov_b32 v{t+5}, 0x3f803f80
        v_lshlrev_b32 v{t+4}, 4, v{t+4}
        s_and_b64 vcc, vcc, s[34:35]
        v_add_u32 v{t+4}, {CONST+224}, v{t+4}
        v_cndmask_b32 v{t}, 0, v{t+5}, vcc
        v_cndmask_b32 v{t+1}, 0, v{t+5}, vcc
        v_cndmask_b32 v{t+2}, 0, v{t+5}, vcc
        v_cndmask_b32 v{t+3}, 0, v{t+5}, vcc
        ds_write_b128 v{t+4}, {V(t,4)}
        """)

import k2, k3
from k2 import m16, m8, phase, maxtree
from k2 import vL8, vKM, vKL, vV, vL16, vV0, vVinc, Q1A, Q1B, Q2A, Q2B, NMA, NMB, SA, SB, PA, PB, OA, OB, KB, KL, VB
aT0, aT1, aT2, aT3 = 5, 6, 7, 8
TMP = 168
vCA, vCR, vOne, vKM0, vKL0, vG0, vG1, vG2 = range(176, 184)
bKG, bVG, b5G, bRD, bTR, bBW, bBR, bUO, bZP, bPG = range(184, 194)
CM = 216
FLAG = SY + 40

def head_params(A):
    A(f"""
    s_and_b32 s17, s2, 7
    s_lshl_b32 s17, s17, 2
    s_bfe_u32 s25, s2, 0x20003
    s_add_u32 s17, s17, s25            ; h
    s_lshr_b32 s18, s2, 5              ; qb
    s_and_b32 s20, s16, 3              ; qg / u
    s_and_b32 s21, s17, 1              ; parity
    s_lshr_b32 s26, s17, 1             ; pair
    v_lshlrev_b32 v{vL16}, 4, v0
    s_mul_i32 s39, s26, {PAIR}
    s_mul_i32 s28, s21, {LEFT}
    s_add_u32 s27, s39, s28
    s_add_u32 s27, s27, {KV}
    s_add_u32 s8, s{pWS}, s27
    s_addc_u32 s9, s{pWS+1}, 0
    s_mov_b32 s10, {WIN}
    s_mov_b32 s11, 0x20000
    s_lshl_b32 s22, s21, 14
    s_add_u32 s23, s22, 65536
    s_cmp_eq_u32 s21, 0
    s_cselect_b32 s24, {LEFT}, 0
    s_lshl_b32 s25, s20, 10
    s_add_u32 s40, s22, s25
    s_add_u32 s41, s23, s25
    s_add_u32 s42, s23, 8192
    s_and_b32 s44, s20, 1
    s_lshl_b32 s44, s44, 10
    s_add_u32 s44, s44, s24
    s_mul_i32 s43, s17, 288
    s_add_u32 s43, s43, {VG}
    s_add_u32 s46, s44, s27
    s_cmp_eq_u32 s20, 0
    s_cselect_b32 s42, s42, s44
    s_cselect_b32 s44, s43, s46
    s_cselect_b32 s45, 9, 2
    s_cselect_b32 s47, 288, 2
    s_cselect_b64 vcc, -1, 0
    s_lshl_b32 s45, s45, 10
    s_lshl_b32 s47, s47, 10
    s_lshl_b32 s25, s20, 6
    s_add_u32 s46, s25, 256
    """)
    for r, base in ((vG0, "s25"), (vG1, "s46"), (vG2, "512")):
        A(f"""
        v_add_u32 v{aT0}, {base}, v0
        v_mul_u32_u24 v{aT2}, 3641, v{aT0}
        v_lshrrev_b32 v{aT2}, 16, v{aT2}
        v_mul_u32_u24 v{aT3}, {9216-288}, v{aT2}
        v_lshl_add_u32 v{r}, v{aT0}, 4, v{aT3}
        """)
    A(f"v_cndmask_b32 v{vG2}, v{vL16}, v{vG2}, vcc")

def dma_skip(A, n):
    A(f"""
    s_add_u32 s40, s40, {(n*8192) & 0xffffffff}
    s_add_u32 s41, s41, {(n*9216) & 0xffffffff}
    s_add_u32 s43, s43, {(n*8*36864) & 0xffffffff}
    s_mul_i32 s25, s45, {n}
    s_add_u32 s42, s42, s25
    s_mul_i32 s25, s47, {n}
    s_add_u32 s44, s44, s25
    """)

def dma_iter(A):
    A(f"""
    s_mov_b32 m0, s40
    s_add_u32 s46, s40, 4096
    buffer_load_dwordx4 v{vL16}, s[8:11], s40 offen lds {SC}
    s_mov_b32 m0, s46
    s_add_u32 s40, s40, 8192
    buffer_load_dwordx4 v{vL16}, s[8:11], s46 offen lds {SC}
    s_mov_b32 m0, s41
    s_add_u32 s46, s41, 4096
    buffer_load_dwordx4 v{vG0}, s[12:15], s43 offen lds {SC}
    s_mov_b32 m0, s46
    s_add_u32 s41, s41, 9216
    buffer_load_dwordx4 v{vG1}, s[12:15], s43 offen lds {SC}
    s_mov_b32 m0, s42
    s_add_u32 s43, s43, {8*36864}
    buffer_load_dwordx4 v{vG2}, s[12:15], s44 offen lds {SC}
    s_add_u32 s42, s42, s45
    s_add_u32 s44, s44, s47
    """)
def dma_n(g, n):
    l = g.lab("Ldm")
    g.A(f"s_mov_b32 s31, {n}\n{l}:")
    dma_iter(g.A)
    g.A(f"s_sub_u32 s31, s31, 1\ns_cmp_lg_u32 s31, 0\ns_cbranch_scc1 {l}")

def avail_add(g, units):
    l = g.lab("Lav")
    g.A(f"""
    s_cmp_lg_u32 s16, 4
    s_cbranch_scc1 {l}
    v_mov_b32 v{TMP}, {units << 8}
    s_mov_b64 exec, 15
    ds_add_u32 v{bPG}, v{TMP}
    s_mov_b64 exec, -1
{l}:
    """)
def wait_progress(g, n, sl=4):
    l = g.lab("Lq"); d = g.lab("Ld")
    g.A(f"""
    s_mov_b32 s93, {SPIN}
{l}:
    ds_read_b32 v{TMP}, v{bPG}
    s_waitcnt lgkmcnt(0)
    v_and_b32 v{TMP}, 0xff, v{TMP}
    v_cmp_gt_u32 vcc, {n}, v{TMP}
    s_nop 3
    s_cmp_eq_u64 vcc, 0
    s_cbranch_scc1 {d}
    s_sleep {sl}
    s_sub_u32 s93, s93, 1
    s_cmp_lg_u32 s93, 0
    s_cbranch_scc1 {l}
{d}:
    """)

def gen_stage1(g):
    A = g.A
    KR, VR, CR, UU, OUT = 40, 60, 68, 84, 136
    T = TMP
    R = kconv.ConvRegs(16)
    A("s_waitcnt lgkmcnt(0)")
    g.srd(12, pWS, WS_END)
    A(f"""
    s_sub_u32 s17, s2, 224
    s_cmp_ge_u32 s16, 4
    s_cbranch_scc1 Lx_h
    s_mov_b32 s95, 1
    s_mov_b32 s18, 8
    s_lshl_b32 s19, s17, 1
    s_add_u32 s19, s19, 512
    s_mov_b32 s96, 0
    s_mov_b32 s97, 24576
    s_mov_b32 s99, 65536
    s_branch Lb_setup
Lx_h:
    s_cmp_ge_u32 s17, {NREP}
    s_cbranch_scc1 Lx_1
    s_cmp_lg_u32 s16, 4
    s_cbranch_scc1 Lx_1
    v_lshlrev_b32 v11, 8, v0
    v_mov_b32 v12, 0
    s_lshl_b32 s25, s17, 15
    s_add_u32 s25, s25, {CNT}
    buffer_store_dword v12, v11, s[12:15], s25 offen {SC}
    s_add_u32 s25, s25, 16384
    s_mov_b64 exec, 0xfffff
    buffer_store_dword v12, v11, s[12:15], s25 offen {SC}
    s_mov_b64 exec, -1
Lx_1:
    s_getpc_b64 s[26:27]
Lpc0:
    s_add_u32 s26, s26, Lcode_begin-Lpc0
    s_addc_u32 s27, s27, -1
    s_and_b32 s25, s16, 3
    s_lshl_b32 s25, s25, 13
    v_lshlrev_b32 v13, 7, v0
    v_add_u32 v13, s25, v13
    v_min_u32 v13, Lcode_end-Lcode_begin-4, v13
    v_mov_b32 v15, s27
    v_add_co_u32 v14, vcc, s26, v13
    s_nop 1
    v_addc_co_u32 v15, vcc, 0, v15, vcc
    global_load_dword v210, v[14:15], off
    """)
    gen_init_misc(g, 144)
    A(f"""
    s_waitcnt lgkmcnt(0)
    s_barrier
    s_cmp_ge_u32 s17, {NREP}
    s_cbranch_scc1 Lh_start
    s_cmp_lg_u32 s16, 4
    s_cbranch_scc1 Lh_start
    s_lshl_b32 s27, s17, 2
    v_mov_b32 v11, s27
    v_mov_b32 v12, 1
    s_mov_b64 exec, 1
    s_waitcnt vmcnt(1)
    global_store_dword v11, v12, s[{pDBG}:{pDBG+1}] {SC}
    s_mov_b64 exec, -1
Lh_start:
    s_mov_b32 s95, 0
    s_lshr_b32 s17, s2, 3              ; tb
    s_and_b32 s18, s2, 7               ; cb
    s_lshl_b32 s19, s2, 1
    s_bfe_u32 s25, s2, 0x10003
    s_lshl_b32 s96, s25, 14
    s_add_u32 s97, s96, 65536          ; V blocks 0..2
    s_add_u32 s99, s96, {65536+6*9216}
Lb_setup:
    s_and_b32 s23, s16, 3              ; u
    v_and_b32 v{vT0}, 7, v0            ; cc
    v_lshrrev_b32 v{vT1}, 3, v0        ; tg
    s_lshl_b32 s21, s18, 9
    v_lshlrev_b32 v{vT3}, 6, v{vT0}
    """)
    g.srd(4, pSH, 576*8)
    for i in range(4): A(f"buffer_load_dwordx4 {V(CR+4*i,4)}, v{vT3}, s[4:7], s21 offen offset:{16*i}")
    A(f"""
    s_mul_i32 s20, s17, {64*1152}
    s_lshl_b32 s21, s18, 7
    s_add_u32 s20, s20, s21
    v_mul_u32_u24 v{vT2}, 1152, v{vT1}
    v_lshl_add_u32 v{vT2}, v{vT0}, 4, v{vT2}
    v_add_u32 v{vT2}, s20, v{vT2}
    v_add_u32 v{b5G}, {61*1152}, v{vT2}
    s_mul_i32 s20, s23, {8*1152}
    v_add_u32 v{bVG}, s20, v{vT2}
    v_subrev_u32 v{bKG}, {3*1152}, v{bVG}
    v_lshlrev_b32 v{vL16}, 4, v0
    s_add_u32 s28, s97, 9344
    s_lshr_b32 s25, s23, 1
    s_add_u32 s98, s19, s25            ; channel
    s_cmp_eq_u32 s25, 0
    s_cselect_b32 s96, s96, s28
    s_mul_i32 s25, s25, 4672
    s_add_u32 s97, s97, s25
    s_add_u32 s97, s97, 576
    s_lshl_b32 s25, s19, 1
    s_load_dword s100, s[{pD}:{pD+1}], s25
    s_cmp_eq_u32 s95, 1
    s_cbranch_scc1 Lb_load
Lb_setup2:
    v_lshlrev_b32 v{bRD}, 8, v{vT1}
    v_lshl_add_u32 v{bRD}, v{vT0}, 4, v{bRD}
    s_lshl_b32 s25, s23, 11
    s_add_u32 s25, s25, s99
    v_add_u32 v{bRD}, s25, v{bRD}
    v_lshrrev_b32 v{vT2}, 4, v0
    v_and_b32 v{vT3}, 15, v0
    v_lshlrev_b32 v{vT3}, 7, v{vT3}
    v_lshl_add_u32 v{bBW}, v{vT2}, 4, v{vT3}
    v_add_u32 v{bBW}, s25, v{bBW}
    v_add_u32 v{bBR}, s25, v{vL16}
    v_bfe_u32 v{vT3}, v0, 2, 2
    v_lshl_add_u32 v{bTR}, v{vT2}, 3, v{vT3}
    v_lshlrev_b32 v{bTR}, 7, v{bTR}
    v_and_b32 v{vT3}, 3, v0
    v_lshl_add_u32 v{bTR}, v{vT3}, 3, v{bTR}
    v_lshlrev_b32 v{bPG}, 8, v{vT3}
    v_add_u32 v{bPG}, {UC}, v{bPG}
    s_lshl_b32 s25, s23, 5
    s_add_u32 s25, s25, s99
    v_add_u32 v{bTR}, s25, v{bTR}
    v_lshlrev_b32 v{bUO}, 12, v{vT1}
    v_lshl_add_u32 v{bUO}, v{vT0}, 4, v{bUO}
    s_lshl_b32 s22, s18, 2
    s_add_u32 s22, s22, s23
    s_lshl_b32 s22, s22, 16
    s_lshl_b32 s25, s17, 7
    s_add_u32 s22, s22, s25
    s_add_u32 s22, s22, {UT}
    v_add_u32 v{bUO}, s22, v{bUO}
    v_min_u32 v{bZP}, 35, v0
    v_lshlrev_b32 v{bZP}, 4, v{bZP}
    s_sub_u32 s25, s97, 576
    v_add_u32 v{bZP}, s25, v{bZP}
    s_waitcnt lgkmcnt(0)
    """)
    conv_setup(A, R)
    A("s_mov_b32 s29, 0xffff0000\ns_mov_b32 s28, 0xffff\ns_waitcnt vmcnt(0)")
    for c in range(8):
        for j in range(4):
            d, e, src = CM + 8*(c >> 1) + 2*j + (c & 1), c & 1, CR + 2*c + (j >> 1)
            if (j & 1) == e: A(f"v_and_b32 v{d}, {'s29' if e else 's28'}, v{src}")
            elif e: A(f"v_lshlrev_b32 v{d}, 16, v{src}")
            else: A(f"v_lshrrev_b32 v{d}, 16, v{src}")
    A(f"""
    s_cmp_eq_u32 s95, 0
    s_cbranch_scc1 Lh_kv
    s_barrier
    s_branch Lb_s0
Lh_kv:
    """)
    head_params(A)
    dma_skip(A, 1)
    g.wait_words(SY, 7, T, sl=2)
    A(f"s_setprio {opt('CPRIO', 1)}")
    dma_n(g, 2)
    A("s_waitcnt vmcnt(0)")
    g.gsync(1, T)
    avail_add(g, 4)
    A(f"""
Lb_load:
    s_and_b32 s28, s16, 3
    s_lshl_b32 s25, s28, 10
    s_add_u32 s25, s25, s99
    """)
    g.srd(4, pK, XB)
    A(f"""
    s_mov_b32 m0, s25
    s_add_u32 s27, s25, 4096
    buffer_load_dwordx4 v{bKG}, s[4:7], 0 offen {NTB} lds
    s_mov_b32 m0, s27
    v_add_u32 v{bKG}, {32*1152}, v{bKG}
    s_add_u32 s27, s99, 8192
    buffer_load_dwordx4 v{bKG}, s[4:7], 0 offen {NTB} lds
    s_mov_b32 m0, s27
    s_add_u32 s27, s25, 9216
    buffer_load_dwordx4 v{b5G}, s[4:7], 0 offen lds
    s_mov_b32 s4, s{pV}
    s_mov_b32 s5, s{pV+1}
    s_mov_b32 m0, s27
    s_add_u32 s27, s27, 4096
    buffer_load_dwordx4 v{bVG}, s[4:7], 0 offen {NTB} lds
    s_mov_b32 m0, s27
    s_mov_b32 s27, {32*1152}
    buffer_load_dwordx4 v{bVG}, s[4:7], s27 offen {NTB} lds
    s_mov_b32 s4, s{pH}
    s_mov_b32 s5, s{pH+1}
    s_and_b32 s25, s28, 1
    s_lshl_b32 s25, s25, 11
    s_lshl_b32 s27, s98, 12
    s_add_u32 s27, s27, s25
    v_lshlrev_b32 v{T}, 3, v{vL16}
    s_mov_b64 exec, 0xffff
    buffer_load_dword v209, v{T}, s[4:7], s27 offen
    s_mov_b64 exec, -1
    s_cmp_eq_u32 s95, 1
    s_cbranch_scc1 Lb_setup2
    """)
    dma_n(g, 3)
    A("s_waitcnt vmcnt(16)\nLb_s0:")
    g.gsync(2, T)
    g.stamp(1)
    for n in range(5): A(f"ds_read_b128 {V(KR+4*n,4)}, v{bRD} offset:{128*n}")
    for t in range(2): A(f"ds_read_b128 {V(VR+4*t,4)}, v{bRD} offset:{9216+128*t}")
    A("s_mov_b32 s29, 0xffff0000\ns_waitcnt lgkmcnt(2)")
    for j in range(4):
        for d in range(4):
            for t in range(2):
                for e in range(2):
                    u = UU + 4*d + 2*t + e
                    if j == 0: A(f"v_dot2_f32_bf16 v{u}, v{KR+4*(t+3)+d}, v{CM+8*d+e}, 0")
                    else: A(f"v_dot2c_f32_bf16 v{u}, v{KR+4*(t+3-j)+d}, v{CM+8*d+2*j+e}")
    A("s_waitcnt lgkmcnt(0)")
    for d in range(4):
        for t in range(2):
            x = UU + 16 + 4*d + 2*t
            A(f"v_lshlrev_b32 v{x}, 16, v{VR+4*t+d}\nv_and_b32 v{x+1}, s29, v{VR+4*t+d}")
    for i in range(8): A(f"v_pk_mul_f32 {V(UU+2*i,2)}, {V(UU+2*i,2)}, {V(UU+16+2*i,2)}")
    for d in range(4):
        for t in range(2): A(f"v_cvt_pk_bf16_f32 v{OUT+4*t+d}, v{UU+4*d+2*t}, v{UU+4*d+2*t+1}")
    A(f"""
    ds_write_b128 v{bRD}, {V(OUT,4)} offset:9216
    ds_write_b128 v{bRD}, {V(OUT+4,4)} offset:{9216+128}
    s_waitcnt lgkmcnt(0)
    """)
    g.gsync(3, T)
    for i in range(2):
        A(f"ds_read_b64_tr_b16 {V(OUT+4*i,2)}, v{bTR} offset:{9216+4096*i}")
        A(f"ds_read_b64_tr_b16 {V(OUT+4*i+2,2)}, v{bTR} offset:{9216+4096*i+512}")
    A(f"""
    s_mov_b32 s27, 32768
    s_waitcnt lgkmcnt(0)
    ds_write_b128 v{bBW}, {V(OUT,4)}
    ds_write_b128 v{bBW}, {V(OUT+4,4)} offset:64
    ds_read_b128 {V(OUT+8,4)}, v{bBR}
    ds_read_b128 {V(OUT+12,4)}, v{bBR} offset:1024
    s_waitcnt lgkmcnt(0)
    buffer_store_dwordx4 {V(OUT+8,4)}, v{bUO}, s[12:15], 0 offen {SC}
    buffer_store_dwordx4 {V(OUT+12,4)}, v{bUO}, s[12:15], s27 offen {SC}
    """)
    g.stamp(2)
    A("s_cmp_lg_u32 s16, 0\ns_cbranch_scc1 Lb_nr")
    g.ready(T)
    A("Lb_nr:\ns_waitcnt vmcnt(0)")
    g.stamp(3)
    g.gsync(4, T)
    A("s_cmp_eq_u32 s95, 1\ns_cbranch_scc1 Lc_x")
    avail_add(g, 6)
    A("s_cmp_lg_u32 s16, 4\ns_cbranch_scc1 Lc_k\ns_and_b32 s25, s2, 15\ns_add_u32 s25, s25, 64")
    g.signal("s25", T)
    A("Lc_k:")
    dma_n(g, 2)
    A("s_cmp_lg_u32 s16, 4\ns_cbranch_scc1 Lc_w")
    wait_progress(g, 7, 8)
    g.poll(64, 16, 16, T, sl=opt('USLEEP', 4))
    A("s_branch Lc_pd\nLc_x:\ns_cmp_lg_u32 s16, 0\ns_cbranch_scc1 Lc_w\ns_and_b32 s25, s2, 3\ns_add_u32 s25, s25, 80")
    g.signal("s25", T)
    g.poll(80, 4, 8, T, sl=2)
    A(f"""
Lc_pd:
    s_lshr_b32 s25, s16, 2
    s_add_u32 s25, s25, 1
    v_mov_b32 v{T}, {SY+36}
    v_mov_b32 v{T+1}, s25
    ds_write_b32 v{T}, v{T+1}
Lc_w:
    s_lshr_b32 s91, s16, 2
    s_add_u32 s91, s91, 1
    """)
    g.wait_words(SY+36, "s91", T, n=1, sl=opt('WSL', 8))
    g.stamp(4)
    A(f"""
    s_and_b32 s28, s16, 1
    s_lshl_b32 s25, s28, 11
    s_add_u32 s27, s97, s25
    s_mov_b32 m0, s27
    s_lshl_b32 s27, s98, 12
    s_add_u32 s27, s27, s25
    buffer_load_dwordx4 v{vL16}, s[4:7], s27 offen lds
    buffer_load_dwordx4 v{vL16}, s[4:7], s27 offen offset:1024 lds
    ds_write_b128 v{bZP}, {V(R.acc,4)}
    s_mul_i32 s25, s28, {2*4160}
    s_add_u32 s25, s25, s96
    s_add_u32 s25, s25, 64
    s_lshl_b32 s27, s28, 2
    s_sub_u32 s27, s101, s27
    s_sub_u32 s27, s27, {YT-UT}
    """)
    for c in range(2):
        A("s_mov_b32 m0, s25\ns_nop 0")
        for i in range(4): A(f"buffer_load_dwordx4 v{vL16}, s[12:15], s27 offen offset:{1024*i} lds {SC}")
        if c == 0: A("s_add_u32 s25, s25, 4160\ns_sub_u32 s27, s27, 2")
    A("s_waitcnt vmcnt(0) lgkmcnt(0)")
    g.gsync(5, T)
    avail_add(g, 4)
    A(f"s_setprio {opt('VPRIO', 0)}")
    g.stamp(5)
    A("s_cmp_eq_u32 s28, 0\ns_cbranch_scc0 Lc_set1")
    kconv.conv_main(A, R, "Lc_l0", 0)
    A("s_setprio 1")
    kconv.conv_epi(A, R, 0, "s96", "s100", "s101", "s[12:15]", SC)
    A("s_branch Lc_done\nLc_set1:")
    kconv.conv_main(A, R, "Lc_l1", 1)
    A("s_setprio 1")
    kconv.conv_epi(A, R, 1, "s96", "s100", "s101", "s[12:15]", SC)
    A("Lc_done:\ns_waitcnt vmcnt(0)")
    g.stamp(6)
    g.gsync(6, T)
    A("s_and_b32 s25, s16, 3\ns_cmp_lg_u32 s25, 0\ns_cbranch_scc1 Lc_e\ns_and_b32 s25, s2, 15\ns_add_u32 s25, s25, 16")
    g.signal("s25", T)
    A("Lc_e:\ns_cmp_eq_u32 s95, 0\ns_cbranch_scc1 Lh_p3")

def conv_setup(A, R):
    A(f"""
    v_bfe_u32 v{R.t0}, v0, 2, 2
    v_mul_u32_u24 v{R.aA}, 4160, v{R.t0}
    v_and_b32 v{R.t0}, 3, v0
    v_lshl_add_u32 v{R.aA}, v{R.t0}, 3, v{R.aA}
    v_lshrrev_b32 v{R.t0}, 4, v0
    v_lshlrev_b32 v{R.aB}, 4, v{R.t0}
    v_sub_u32 v{R.aA}, v{R.aA}, v{R.aB}
    s_add_u32 s25, s96, {64+32-8}
    v_add_u32 v{R.aA}, s25, v{R.aA}
    v_and_b32 v{R.aU}, 15, v0
    v_lshlrev_b32 v{R.aU}, 5, v{R.aU}
    v_add_u32 v{R.aB}, v{R.aB}, v{R.aU}
    s_sub_u32 s25, s97, 96
    v_add_u32 v{R.aB}, s25, v{R.aB}
    v_lshl_add_u32 v{R.aU}, v{R.t0}, 3, v{R.aU}
    v_and_b32 v{R.mask}, 15, v0
    v_lshlrev_b32 v{R.t0}, 3, v{R.t0}
    v_sub_u32 v{R.t0}, v{R.mask}, v{R.t0}
    v_add_u32 v{R.t0}, 17, v{R.t0}
    v_mov_b32 v{R.acc}, 0xffff
    v_mov_b32 v{R.acc+1}, 0xffff0000
    """)
    for d in range(4):
        A(f"""
        v_cmp_lt_i32 vcc, {2*d}, v{R.t0}
        v_cmp_lt_i32 s[26:27], {2*d+1}, v{R.t0}
        s_nop 0
        v_cndmask_b32 v{R.mask+d}, 0, v{R.acc}, vcc
        v_cndmask_b32 v{R.acc+2}, 0, v{R.acc+1}, s[26:27]
        v_or_b32 v{R.mask+d}, v{R.mask+d}, v{R.acc+2}
        """)
    for i in range(16): A(f"v_mov_b32 v{R.acc+i}, 0")
    A(f"""
    s_lshl_b32 s101, s98, 12
    s_add_u32 s101, s101, {YT}
    s_lshl_b32 s25, s100, 16
    s_and_b32 s27, s100, 0xffff0000
    s_bitcmp0_b32 s98, 0
    s_cselect_b32 s100, s25, s27       ; D
    """)

def zero_acc(A):
    for i in range(16): A(f"v_mov_b32 v{OA+i}, 0")
    for i in range(16): A(f"v_mov_b32 v{OB+i}, 0")
    for i in range(8): A(f"v_mov_b32 v{PB+i}, 0")
    for i in range(8): A(f"v_mov_b32 v{VB[1]+i}, 0")

def gen_attn(g):
    A = g.A
    A("Lattn:\ns_setprio 2")
    head_params(A)
    A(f"""
    v_lshlrev_b32 v{vL8}, 3, v0
    s_lshl_b32 s31, s18, 3
    s_lshl_b32 s32, s20, 1
    s_add_u32 s32, s31, s32
    s_mul_i32 s34, s21, {MB}
    s_add_u32 s34, s34, s39
    s_lshl_b32 s35, s32, 10
    s_add_u32 s35, s35, s34
    s_add_u32 s34, s39, {LEFT}
    s_lshl_b32 s37, s32, 8
    s_add_u32 s37, s37, s34
    v_and_b32 v{aT1}, 31, v0
    v_lshrrev_b32 v{aT0}, 5, v0
    v_mul_u32_u24 v{aT3}, 288, v{aT0}
    v_lshl_add_u32 v{aT2}, v{aT1}, 4, v{aT3}
    v_add_u32 v{vV0}, s23, v{aT2}
    v_mov_b32 v{vVinc}, {4*VT}
    v_mov_b32 v{aT2}, {CONST+240}
    v_mov_b32 v{aT3}, {CONST+224}
    v_cmp_eq_u32 vcc, 18, v{aT1}
    v_subrev_u32 v{aT0}, 20, v{aT1}
    v_cmp_gt_u32 s[52:53], 8, v{aT0}
    v_cndmask_b32 v{aT2}, v{aT2}, v{aT3}, vcc
    v_mov_b32 v{aT3}, {CONST+176}
    v_cmp_lt_u32 vcc, 17, v{aT1}
    v_cndmask_b32 v{aT2}, v{aT2}, v{aT3}, s[52:53]
    s_mov_b32 s50, 0
    v_cndmask_b32 v{vV0}, v{vV0}, v{aT2}, vcc
    v_cndmask_b32 v{vVinc}, v{vVinc}, 0, vcc
    v_cmp_gt_u32 vcc, 32, v0
    s_cmp_eq_u32 s21, 0
    s_cselect_b64 s[52:53], -1, 0
    s_cselect_b64 s[54:55], 0, -1
    s_and_b64 s[56:57], s[52:53], vcc
    s_and_b64 s[58:59], s[54:55], vcc
    s_andn2_b64 s[60:61], s[52:53], vcc
    s_andn2_b64 s[62:63], s[54:55], vcc
    v_lshlrev_b32 v{aT2}, 3, v{aT1}
    v_add_u32 v{vKM0}, s22, v{vL8}
    v_add_u32 v{vKL0}, s24, v{vL8}
    s_lshl_b32 s25, s20, 8
    s_add_u32 s25, s25, {UC}
    v_lshlrev_b32 v{vCA}, 2, v0
    v_add_u32 v{vCA}, s25, v{vCA}
    v_mov_b32 v{vOne}, 1
    s_mul_i32 s25, s32, {36*1024}
    s_add_u32 s25, s25, {OF}
    s_lshl_b32 s48, s17, 10
    s_add_u32 s48, s48, s25
    s_lshl_b32 s49, s17, 7
    s_add_u32 s49, s49, s25
    s_add_u32 s49, s49, 32768
    """)
    zero_acc(A)
    A("s_cmp_lg_u32 s16, 0\ns_cbranch_scc1 La_w")
    g.poll(0, 14, 16, TMP)
    A(f"""
    v_mov_b32 v{TMP}, {SY+32}
    v_mov_b32 v{TMP+1}, 1
    ds_write_b32 v{TMP}, v{TMP+1}
La_w:
    """)
    g.wait_words(SY+32, 1, TMP, n=1)
    g.stamp(7)
    dma_iter(A)
    A(f"""
    buffer_load_dwordx2 {V(Q1A,2)}, v{vL8}, s[12:15], s35 offen {SC}
    buffer_load_dwordx2 {V(Q1A+2,2)}, v{vL8}, s[12:15], s35 offen offset:512 {SC}
    buffer_load_dwordx2 {V(Q1B,2)}, v{vL8}, s[12:15], s35 offen offset:1024 {SC}
    buffer_load_dwordx2 {V(Q1B+2,2)}, v{vL8}, s[12:15], s35 offen offset:1536 {SC}
    buffer_load_dwordx2 {V(Q2A,2)}, v{aT2}, s[12:15], s37 offen {SC}
    buffer_load_dwordx2 {V(Q2B,2)}, v{aT2}, s[12:15], s37 offen offset:256 {SC}
    s_waitcnt vmcnt(0)
    """)
    g.post(7, TMP)
    for Q in (Q2A, Q2B):
        A(f"""
        v_cndmask_b32 v{Q+2}, 0, v{Q}, s[60:61]
        v_cndmask_b32 v{Q+3}, 0, v{Q+1}, s[62:63]
        v_cndmask_b32 v{Q}, 0, v{Q}, s[56:57]
        v_cndmask_b32 v{Q+1}, 0, v{Q+1}, s[58:59]
        """)
    g.wait_words(SY, 7, TMP)
    g.stamp(8)
    A(f"""
    ds_read2st64_b64 {V(KB[0],4)}, v{vKM0} offset0:0 offset1:1
    ds_read_b64 {V(KL,2)}, v{vKL0}
    s_waitcnt lgkmcnt(0)
    {m16(SA, KB[0], Q1A, 0)}
    {m16(SB, KB[0], Q1B, 0)}
    {m8(SA, KL, Q2A)}
    {m8(SB, KL, Q2B)}
    s_nop 10
    """)
    maxtree(A, aT0, SA)
    maxtree(A, aT1, SB)
    A(f"""
La_setm:
    v_mov_b32 v{aT2}, v{aT0}
    v_mov_b32 v{aT3}, v{aT1}
    v_mov_b32 v{vKM}, v{vKM0}
    v_mov_b32 v{vKL}, v{vKL0}
    v_permlane32_swap_b32 v{aT0}, v{aT2}
    v_permlane32_swap_b32 v{aT1}, v{aT3}
    v_mov_b32 v{vV}, v{vV0}
    ds_read_b128 {V(VB[0],4)}, v{vV0}
    ds_read_b128 {V(VB[0]+4,4)}, v{vV0} offset:576
    v_max_f32 v{aT0}, v{aT0}, v{aT2}
    v_max_f32 v{aT1}, v{aT1}, v{aT3}
    """)
    for i in range(16): A(f"v_sub_f32 v{NMA+i}, 0, v{aT0}")
    A(f"""
    v_sub_f32 v{NMB}, 0, v{aT1}
    s_mov_b32 s51, 0
    {m16(SA, KB[0], Q1A, V(NMA,16))}
    {m8(SA, KL, Q2A)}
    """)
    for i in range(1, 16): A(f"v_sub_f32 v{NMB+i}, 0, v{aT1}")
    A("s_setprio 0")
    g.stamp(9)
    if g.dbg and 'its' in EXP: A("s_mov_b32 s55, 0\nv_mov_b32 v214, 0\nv_writelane_b32 v214, s88, 0\nv_writelane_b32 v214, s90, 32")
    A(".p2align 6\nLa_loop:")
    for j in range(4):
        b = j & 1; nb = b ^ 1
        koff = 2*(j+1)
        ex = [[f"ds_read2st64_b64 {V(KB[nb],4)}, v{vKM} offset0:{koff} offset1:{koff+1}"], [], [], ["s_waitcnt lgkmcnt(0)"]]
        if j == 0:
            ex[0].append(f"ds_read_b64 {V(KL+2,2)}, v{vKL} offset:512")
            ex[2] = ["s_min_u32 s53, s51, 14"]
        if j == 1: ex[0].append(f"ds_add_rtn_u32 v{vCR}, v{vCA}, v{vOne}")
        if j == 2: ex[2] = ["s_lshr_b32 s52, s52, 8"]
        if j == 3:
            ex[0].append(f"ds_read_b64 {V(KL,2)}, v{vKL} offset:1024")
            ex[1] = [f"v_add_u32 v{vV}, v{vVinc}, v{vV}"]
            ex[2] = ["s_cmp_lt_u32 s51, 16"]
        klp = KL + 2*(j >> 1)
        phase(A, SA, PA, [m16(SB, KB[b], Q1B, V(NMB,16)), m8(SB, klp, Q2B + 2*(j & 1)),
                          m16(OB, VB[nb], PB, V(OB,16)), m16(OB, VB[nb]+4, PB+4, V(OB,16))], ex)
        jn = (j+1) & 3
        klp = KL + 2*(jn >> 1)
        ex = [[], [], [f"ds_read_b128 {V(VB[nb],4)}, v{vV} offset:{jn*VT}"], [f"ds_read_b128 {V(VB[nb]+4,4)}, v{vV} offset:{jn*VT+576}"]]
        if j == 0: ex[0] = ["s_add_u32 s51, s51, 1"]
        if j == 1: ex[1] = [f"v_readfirstlane_b32 s52, v{vCR}"]
        if j == 2:
            ex[0] = ["s_cmp_gt_u32 s53, s52"]
            ex[3] += ["s_cbranch_scc1 La_chk", "La_chkd:"]
        if j == 3:
            ex[1] = [f"v_add_u32 v{vKM}, 4096, v{vKM}", f"v_add_u32 v{vKL}, 1024, v{vKL}"]
        phase(A, SB, PB, [m16(SA, KB[nb], Q1A, V(NMA,16)), m8(SA, klp, Q2A + 2*(jn & 1)),
                          m16(OA, VB[b], PA, V(OA,16)), m16(OA, VB[b]+4, PA+4, V(OA,16))], ex)
    if g.dbg and 'its' in EXP:
        A(f"""
        s_memrealtime s[88:89]
        s_memtime s[90:91]
        s_mov_b32 m0, s51
        s_waitcnt lgkmcnt(0)
        v_writelane_b32 v214, s88, m0
        s_add_u32 m0, s51, 32
        s_nop 0
        v_writelane_b32 v214, s90, m0
        s_cmp_lt_u32 s51, 16
        """)
    A("s_cbranch_scc1 La_loop")
    A(f"""
    s_setprio 2
    {m16(OB, VB[1], PB, V(OB,16))}
    {m16(OB, VB[1]+4, PB+4, V(OB,16))}
    """)
    g.stamp(10)
    A(f"v_lshlrev_b32 v{aT2}, 2, v0\nv_mov_b32 v{aT3}, 0")
    for n, (O, P) in enumerate(((OA, PA), (OB, PB))):
        A(f"""
        v_mov_b32 v{aT0}, v{O+10}
        v_mov_b32 v{aT1}, v{O+10}
        """)
        for i in range(11): A(f"v_add_f32 v{aT3}, |v{O+i}|, v{aT3}")
        A(f"""
        v_permlane32_swap_b32 v{aT0}, v{aT1}
        s_nop 1
        v_rcp_f32 v{aT0}, v{aT0}
        s_add_u32 s25, s48, {n*36*1024}
        s_add_u32 s27, s49, {n*36*1024}
        """)
        for i in range(10): A(f"v_mul_f32 v{O+i}, v{O+i}, v{aT0}")
        for i in range(5): A(f"v_cvt_pk_bf16_f32 v{P+i}, v{O+2*i}, v{O+2*i+1}")
        A(f"""
        buffer_store_dwordx4 {V(P,4)}, v{vL16}, s[12:15], s25 offen {SC}
        s_mov_b32 exec_hi, 0
        buffer_store_dword v{P+4}, v{aT2}, s[12:15], s27 offen {SC}
        s_mov_b32 exec_hi, -1
        """)
    A(f"""
    v_mov_b32 v{aT1}, 0x71800000
    v_cmp_nlt_f32 vcc, v{aT3}, v{aT1}
    v_mov_b32 v{aT3}, {FLAG}
    v_mov_b32 v{aT2}, 1
    s_cmp_lg_u32 s50, 0
    s_cbranch_scc1 Lp3
    s_cbranch_vccz Lp3
    ds_write_b32 v{aT3}, v{aT2}
    s_branch Lp3
La_chk:
    s_mov_b32 s93, {SPIN}
La_chk1:
    ds_read_b32 v{vCR}, v{vCA}
    s_waitcnt lgkmcnt(0)
    v_readfirstlane_b32 s52, v{vCR}
    s_lshr_b32 s52, s52, 8
    s_cmp_le_u32 s53, s52
    s_cbranch_scc1 La_chkd
    s_sleep 1
    s_sub_u32 s93, s93, 1
    s_cmp_lg_u32 s93, 0
    s_cbranch_scc1 La_chk1
    s_branch La_chkd
La_slow:
    s_mov_b32 s50, 1
    s_barrier
    v_mov_b32 v{aT0}, {14 << 8}
    ds_write_b32 v{vCA}, v{aT0}
    v_mov_b32 v{aT3}, {FLAG}
    v_mov_b32 v{aT2}, 0
    ds_write_b32 v{aT3}, v{aT2}
    v_mov_b32 v{vKM}, v{vKM0}
    v_mov_b32 v{vKL}, v{vKL0}
    v_mov_b32 v{aT0}, 0xff800000
    v_mov_b32 v{aT1}, 0xff800000
    s_mov_b32 s51, 16
    s_waitcnt lgkmcnt(0)
    s_barrier
La_maxloop:
    ds_read2st64_b64 {V(KL,4)}, v{vKL} offset0:0 offset1:1
    """)
    for j in range(4):
        A(f"""
        ds_read2st64_b64 {V(KB[0],4)}, v{vKM} offset0:{2*j} offset1:{2*j+1}
        s_waitcnt lgkmcnt(0)
        {m16(SA, KB[0], Q1A, 0)}
        {m16(SB, KB[0], Q1B, 0)}
        {m8(SA, KL+2*(j>>1), Q2A+2*(j&1))}
        {m8(SB, KL+2*(j>>1), Q2B+2*(j&1))}
        s_nop 11
        """)
        maxtree(A, aT0, SA, True)
        maxtree(A, aT1, SB, True)
    A(f"""
    v_add_u32 v{vKM}, 4096, v{vKM}
    v_add_u32 v{vKL}, 1024, v{vKL}
    s_sub_u32 s51, s51, 1
    s_cmp_lg_u32 s51, 0
    s_cbranch_scc1 La_maxloop
    ds_read2st64_b64 {V(KB[0],4)}, v{vKM0} offset0:0 offset1:1
    ds_read_b64 {V(KL,2)}, v{vKL0}
    """)
    zero_acc(A)
    A("s_waitcnt lgkmcnt(0)\ns_branch La_setm")

def gen_p3(g):
    A = g.A
    BW, ACC_, AF = 40, 184, 16
    wA = 196
    A(f"""
Lh_slow:
    s_barrier
    """)
    dma_skip(A, -8)
    dma_n(g, 8)
    A(f"""
    s_waitcnt vmcnt(0)
    s_barrier
Lh_p3:
    s_and_b32 s19, s2, 7
    s_lshr_b32 s33, s2, 3
    v_lshlrev_b32 v{TMP}, 7, v0
    s_cmp_ge_u32 s33, 24
    s_cbranch_scc0 Lh_wo
    s_sub_u32 s25, s33, 24
    s_lshl_b32 s27, s19, 3
    s_add_u32 s25, s25, s27
    s_mul_i32 s25, s25, {32*1152}
    s_mul_i32 s27, s20, {72*128}
    s_add_u32 s25, s25, s27
    v_add_u32 v{TMP+1}, s25, v{TMP}
    global_load_dword v210, v{TMP+1}, s[{pQ}:{pQ+1}]
    global_load_dword v211, v{TMP+1}, s[{pQ}:{pQ+1}] offset:1024
    s_branch Lp3
Lh_wo:
    s_lshl_b32 s25, s33, 2
    s_add_u32 s25, s25, s20
    s_mul_i32 s25, s25, {54*128}
    """)
    g.srd(4, pWO, WOB)
    A(f"""
    s_mov_b32 exec_hi, 0x3fffff
    buffer_load_dword v210, v{TMP}, s[4:7], s25 offen
    s_mov_b32 exec_hi, -1
    """)
    for i in range(3):
        A(f"""
        v_add_u32 v1, {64*i}, v0
        v_mul_u32_u24 v2, 5462, v1
        v_lshrrev_b32 v2, 16, v2
        v_mul_u32_u24 v3, 12, v2
        v_sub_u32 v1, v1, v3
        v_mul_u32_u24 v2, 1152, v2
        v_lshl_add_u32 v{wA+i}, v1, 4, v2
        """)
    A(f"""
    v_subrev_u32 v{wA+1}, 1024, v{wA+1}
    v_subrev_u32 v{wA+2}, 2048, v{wA+2}
    s_lshr_b32 s25, s33, 2
    s_mul_i32 s28, s25, 192
    s_mul_i32 s25, s20, {16*1152}
    s_add_u32 s28, s28, s25
    """)
    for half, (n, base) in enumerate(((13, "s23"), (15, "s22"))):
        wait_progress(g, n, 6)
        A(f"""
        s_add_u32 s27, s28, {half*288*1152}
        s_mul_i32 s25, s20, 3072
        s_add_u32 s25, s25, {base}
        s_mov_b32 s31, s20
Lo_wo{half}:
        s_mov_b32 m0, s25
        s_add_u32 s31, s31, 4
        buffer_load_dwordx4 v{wA}, s[4:7], s27 offen lds
        buffer_load_dwordx4 v{wA+1}, s[4:7], s27 offen offset:1024 lds
        buffer_load_dwordx4 v{wA+2}, s[4:7], s27 offen offset:2048 lds
        s_add_u32 s27, s27, {4*16*1152}
        s_add_u32 s25, s25, {4*3072}
        s_cmp_lt_u32 s31, 18
        s_cbranch_scc1 Lo_wo{half}
        """)
    A(f"""
Lp3:
    v_mov_b32 v{TMP+1}, {FLAG}
    s_lshl_b32 s30, s18, 2
    s_lshr_b32 s25, s17, 3
    s_add_u32 s30, s30, s25
    s_add_u32 s30, s30, 32
    s_waitcnt vmcnt(0) lgkmcnt(0)
    s_barrier
    ds_read_b32 v{TMP}, v{TMP+1}
    s_and_b32 s19, s2, 7
    s_lshr_b32 s33, s2, 3
    s_waitcnt lgkmcnt(0)
    v_readfirstlane_b32 s25, v{TMP}
    s_cmp_eq_u32 s25, 0
    s_cbranch_scc1 Lp3_ok
    s_cmp_lt_u32 s16, 4
    s_cbranch_scc1 La_slow
    s_branch Lh_slow
Lp3_ok:
    """)
    g.stamp(11)
    A("s_cmp_lg_u32 s16, 7\ns_cbranch_scc1 Lp3_1")
    g.signal("s30", 14)
    A(f"""
Lp3_1:
    s_cmp_ge_u32 s33, 24
    s_cbranch_scc1 Lp3_s3
    s_and_b32 s17, s33, 3
    s_lshl_b32 s19, s19, 2
    s_add_u32 s17, s17, s19            ; tb
    s_lshr_b32 s18, s33, 2             ; ng
    s_mov_b32 s28, s23
    s_mov_b32 s29, s22
    s_and_b32 s23, s16, 1
    s_lshr_b32 s24, s16, 1
    v_lshlrev_b32 v12, 4, v0
    s_cmp_ge_u32 s16, 6
    s_cbranch_scc1 Lo_nopre
    v_lshrrev_b32 v1, 5, v0
    v_bfe_u32 v2, v0, 2, 2
    v_bfe_u32 v3, v0, 4, 1
    v_lshlrev_b32 v3, 5, v3
    v_and_b32 v7, 3, v0
    v_lshl_add_u32 v3, v7, 3, v3
    s_lshl_b32 s25, s24, 6
    v_add_u32 v3, s25, v3
    v_lshl_add_u32 v7, v1, 2, v2
    v_mul_u32_u24 v7, 192, v7
    v_add3_u32 v8, v7, v3, s28
    v_add3_u32 v9, v7, v3, s29
    v_mul_u32_u24 v7, 72, v1
    v_lshrrev_b32 v10, 1, v2
    v_mul_u32_u24 v10, 18, v10
    v_add_u32 v7, v7, v10
    v_and_b32 v10, 1, v2
    v_add3_u32 v7, v7, v10, 16
    v_mul_u32_u24 v7, 192, v7
    v_add3_u32 v10, v7, v3, s28
    v_add3_u32 v11, v7, v3, s29
    """)
    for s_ in range(36):
        for e in range(2):
            if s_ < 32: base, off = (8, (18*s_ + 8*e)*192) if s_ < 16 else (9, (18*(s_-16) + 8*e)*192)
            else: base, off = (10 + ((s_-32) >> 1), (144*((s_-32) & 1) + 36*e)*192)
            A(f"ds_read_b64_tr_b16 {V(BW+4*s_+2*e,2)}, v{base} offset:{off}")
        if s_ % 6 == 5: A("s_waitcnt lgkmcnt(4)")
    A("Lo_nopre:")
    g.srd(44, pOUT, OUTB)
    for i in range(16): A(f"v_mov_b32 v{ACC_+i}, 0")
    TR = 81920
    A(f"""
    s_mul_i32 s20, s17, {2*36*1024}
    s_add_u32 s20, s20, {OF}
    s_mul_i32 s21, s23, {36*1024}
    s_add_u32 s20, s20, s21
    s_lshl_b32 s21, s24, 10
    s_add_u32 s20, s20, s21
    s_lshl_b32 s21, s23, 10
    v_add_u32 v13, s21, v12
    v_and_b32 v1, 31, v0
    v_lshlrev_b32 v1, 2, v1
    v_lshrrev_b32 v2, 5, v0
    v_lshl_add_u32 v1, v2, 9, v1
    s_add_u32 s21, s21, 65536
    v_add_u32 v201, s21, v1
    v_add_u32 v202, 2048, v201
    v_add_u32 v203, 4096, v201
    v_add_u32 v204, 6144, v201
    v_and_b32 v1, 31, v0
    s_lshl_b32 s21, s23, 5
    v_add_u32 v1, s21, v1
    v_mul_u32_u24 v1, 208, v1
    v_lshl_add_u32 v1, v2, 3, v1
    s_lshl_b32 s21, s24, 6
    s_add_u32 s21, s21, {TR}
    v_add_u32 v200, s21, v1
    s_mul_i32 s26, s17, {64*2304}
    s_mul_i32 s22, s18, 192
    s_add_u32 s26, s26, s22
    s_lshl_b32 s22, s16, 7
    """)
    for i in range(2):
        A(f"""
        v_add_u32 v1, s22, v0
        v_add_u32 v1, {64*i}, v1
        v_mul_u32_u24 v2, 5462, v1
        v_lshrrev_b32 v2, 16, v2
        v_mul_u32_u24 v3, 12, v2
        v_sub_u32 v1, v1, v3
        v_lshlrev_b32 v1, 4, v1
        v_mul_u32_u24 v3, 208, v2
        v_add_u32 v{4+i}, v3, v1
        v_add_u32 v{4+i}, {TR}, v{4+i}
        v_mul_u32_u24 v3, 2304, v2
        v_add_u32 v{6+i}, v3, v1
        """)
    A("s_lshl_b32 s21, s16, 10\ns_waitcnt lgkmcnt(0)")
    g.stamp(12)
    A("s_cmp_lg_u32 s16, 7\ns_cbranch_scc1 Lp3_h\ns_add_u32 s25, s19, 32")
    g.poll("s25", 4, 8, 16)
    A("Lp3_h:\ns_barrier")
    g.stamp(13)
    for rr in range(9):
        A(f"""
        s_mov_b32 m0, s21
        s_add_u32 s21, s21, 8192
        buffer_load_dwordx4 v12, s[12:15], s20 offen lds {SC}
        s_add_u32 s20, s20, 4096
        """)
    for c in range(3):
        A(f"s_waitcnt vmcnt({6-3*c})\ns_barrier")
        if c == 0: A(f"s_cmp_ge_u32 s16, 6\ns_cbranch_scc1 Lo_idle")
        if c == 2: A(f"v_add_u32 v13, 49152, v13")
        for half in range(2):
            for i in range(6):
                s_ = 12*c + 6*half + i
                off = 2048*s_ - (49152 if c == 2 else 0)
                if s_ < 32: A(f"ds_read_b128 {V(AF+4*i,4)}, v13 offset:{off}")
                else:
                    A(f"ds_read2_b32 {V(AF+4*i,2)}, v{201+s_-32} offset0:0 offset1:32")
                    A(f"ds_read2_b32 {V(AF+4*i+2,2)}, v{201+s_-32} offset0:64 offset1:96")
            for i in range(6):
                s_ = 12*c + 6*half + i
                last = 12*c + 6*half + 5
                A(f"s_waitcnt lgkmcnt({sum(1 if x < 32 else 2 for x in range(s_+1, last+1))})")
                A(f"v_mfma_f32_32x32x16_bf16 {V(ACC_,16)}, {V(BW+4*s_,4)}, {V(AF+4*i,4)}, {V(ACC_,16)}")
    g.stamp(14)
    A("s_nop 11")
    for q in range(4):
        A(f"""
        v_cvt_pk_bf16_f32 v{AF+2*q}, v{ACC_+4*q}, v{ACC_+4*q+1}
        v_cvt_pk_bf16_f32 v{AF+2*q+1}, v{ACC_+4*q+2}, v{ACC_+4*q+3}
        ds_write_b64 v200, {V(AF+2*q,2)} offset:{16*q}
        """)
    A(f"""
    s_waitcnt lgkmcnt(0)
    s_barrier
    ds_read_b128 {V(AF,4)}, v4
    ds_read_b128 {V(AF+4,4)}, v5
    s_waitcnt lgkmcnt(1)
    buffer_store_dwordx4 {V(AF,4)}, v6, s[44:47], s26 offen
    s_waitcnt lgkmcnt(0)
    buffer_store_dwordx4 {V(AF+4,4)}, v7, s[44:47], s26 offen
    s_branch Lfin
Lo_idle:
    s_waitcnt vmcnt(3)
    s_barrier
    s_waitcnt vmcnt(0)
    s_barrier
    s_branch Lfin
Lp3_s3:
    s_sub_u32 s20, s33, 24
    s_lshl_b32 s17, s19, 3
    s_add_u32 s17, s17, s20
    s_mov_b64 s[6:7], s[{pOUT}:{pOUT+1}]
    s_mov_b64 s[48:49], s[{pWS}:{pWS+1}]
    s_mov_b64 s[50:51], s[{pQ}:{pQ+1}]
    """)
    g.poll(16, 16, 18, 16)
    k3.gen_stage3(A, "Ls3", False, SC)
    A("Lfin:")
    g.end()

def gen(name, dbg=False):
    g = G(dbg); A = g.A
    A("Lcode_begin:")
    A(f"""
    s_cmp_ge_u32 s2, 256
    s_cbranch_scc1 Lend
    s_load_dwordx16 s[64:79], s[0:1], 0
    s_load_dwordx8 s[80:87], s[0:1], 64
    v_lshrrev_b32 v1, 6, v0
    v_and_b32 v0, 63, v0
    v_readfirstlane_b32 s16, v1
    """)
    if dbg: A(f"v_mov_b32 v{vST}, 0")
    g.stamp(0)
    A(f"""
    s_lshl_b32 s3, s16, 2
    s_add_u32 s3, s3, {SY}
    s_and_b32 s94, s3, {0xffffffff & ~15}
    s_cmp_ge_u32 s2, 224
    s_cbranch_scc1 Ls1
    """)
    gen_gemm(g)
    A("Ls1:")
    gen_stage1(g)
    gen_attn(g)
    gen_p3(g)
    A("Lend:\ns_endpgm\nLcode_end:")
    return A.text()

if __name__ == "__main__":
    import sys
    out = sys.argv[1]; dbg = len(sys.argv) > 2 and sys.argv[2] == "dbg"
    name = "concat_heads__softmax_full_mha__ssm_conv_h3__prompt_kernel"
    HDR = open("concat_heads__softmax_full_mha__ssm_conv_h3__prompt.s.ref").read().split("; Override launch")[0]
    s = HDR
    if (dbg and not os.environ.get('DD') and not os.environ.get('AMP')) or 'list' in EXP: s += f"; @launch kernel={name} grid=(256,1,1) block=(512,1,1) lds={LDS_BYTES}\n"
    else: s += f"; @launch grid=(256,1,1) block=(512,1,1) lds={LDS_BYTES}\n"
    s += '.amdgcn_target "amdgcn-amd-amdhsa--gfx950"\n.text\n' + kernel_head(name) + gen(name, dbg)
    s += '.section .rodata,"a"\n' + kernel_desc(name, NVGPR, 102)
    open(out, "w").write(s)
```

```python
import os, struct, math
from asmlib import *
from layout import *
import kconv
EXP = os.environ.get('FEXP', '').split(',')
def opt(name, default): return int(os.environ.get(name, default))

CS_BITS = struct.unpack("<I", struct.pack("<f", math.log2(math.e)/math.sqrt(18)))[0]
XB, WB, OUTB, WOB = 2048*1152, 576*3456, 2048*2304, 576*1152
NVGPR = 216
LDS_BYTES = 163840
vST = 215
pX, pW, pWO, pQ, pK, pV, pSH, pH, pD, pOUT, pDBG, pWS = [64+2*i for i in range(12)]
WIN = 65536 + VSZ + 16384
CONST = WIN
UC = WIN + 4352
XCH = WIN + 5376
SY = WIN + 7424
SC = "sc1"
NTG = 'nt' if 'ntg' in EXP else ''
NTB = '' if 'nontb' in EXP else 'nt'
SPIN = 200000
NREP = opt('NREP', 8)

class G:
    def __init__(self, dbg):
        self.A = Asm(); self.dbg = dbg; self.n = 0
    def lab(self, p="L"):
        self.n += 1; return f"{p}{self.n}"
    def stamp(self, i):
        if self.dbg:
            self.A(f"""
            s_memrealtime s[88:89]
            s_memtime s[90:91]
            s_waitcnt lgkmcnt(0)
            v_writelane_b32 v{vST}, s88, {i}
            v_writelane_b32 v{vST}, s90, {32+i}
            """)
    def srd(self, d, p, n):
        self.A(f"s_mov_b32 s{d}, s{p}\ns_mov_b32 s{d+1}, s{p+1}\ns_mov_b32 s{d+2}, {n}\ns_mov_b32 s{d+3}, 0x20000")
    def end(self):
        A = self.A
        if self.dbg:
            A("s_mov_b64 exec, -1\ns_waitcnt vmcnt(0)")
            self.stamp(31)
            A(f"""
            s_lshl_b32 s25, s2, 3
            s_add_u32 s25, s25, s16
            s_lshl_b32 s25, s25, 8
            s_add_u32 s25, s25, {STAMP}
            v_lshlrev_b32 v1, 2, v0
            buffer_store_dword v{vST}, v1, s[12:15], s25 offen
            """)
        amp = os.environ.get('AMP')
        if self.dbg and amp:
            wg, w, i, j = [int(x) for x in amp.split(',')]
            A(f"""
            s_cmp_lg_u32 s2, {wg}
            s_cbranch_scc1 Lam_e
            s_cmp_lg_u32 s16, {w}
            s_cbranch_scc1 Lam_e
            v_readlane_b32 s40, v{vST}, {i}
            v_readlane_b32 s41, v{vST}, {j}
            s_memrealtime s[42:43]
            s_nop 3
            s_sub_u32 s41, s41, s40
            s_min_u32 s41, s41, 10000
            s_lshl_b32 s41, s41, 3
            s_add_u32 s41, s41, {os.environ.get('AMPC', '0')}
            s_waitcnt lgkmcnt(0)
Lam_l:
            s_memrealtime s[44:45]
            s_waitcnt lgkmcnt(0)
            s_sub_u32 s44, s44, s42
            s_cmp_lt_u32 s44, s41
            s_cbranch_scc1 Lam_l
Lam_e:
            """)
        dd = os.environ.get('DD')
        if self.dbg and dd:
            wg, w, *idx = [int(x) for x in dd.split(',')]
            A(f"""
            s_cmp_lg_u32 s2, {wg}
            s_cbranch_scc1 Ldd_e
            s_cmp_lg_u32 s16, {w}
            s_cbranch_scc1 Ldd_e
            v_readlane_b32 s40, v{vST}, 0
            v_mov_b32 v2, 0
            """)
            for k, i in enumerate(idx):
                A(f"""
                v_readlane_b32 s41, v{vST}, {i}
                s_nop 3
                s_sub_u32 s41, s41, s40
                v_mov_b32 v3, s41
                global_store_dword v2, v3, s[{pDBG}:{pDBG+1}] offset:{32+4*k}
                """)
            A("Ldd_e:")
        A("s_endpgm")
    def post(self, val, t):
        self.A(f"""
        v_mov_b32 v{t}, s3
        v_mov_b32 v{t+1}, {val}
        ds_write_b32 v{t}, v{t+1}
        """)
    def wait_words(self, addr, val, t, n=4, sl=1):
        l = self.lab("Lw"); d = self.lab("Ld")
        rd = f"ds_read_b128 {V(t,4)}, v{t+4}" if n == 4 else f"ds_read_b32 v{t}, v{t+4}"
        mn = f"v_min_u32 v{t}, v{t}, v{t+1}\nv_min3_u32 v{t}, v{t}, v{t+2}, v{t+3}\ns_nop 0" if n == 4 else ""
        self.A(f"""
        v_mov_b32 v{t+4}, {addr}
        s_mov_b32 s93, {SPIN}
{l}:
        {rd}
        s_waitcnt lgkmcnt(0)
        {mn}
        v_readfirstlane_b32 s92, v{t}
        s_cmp_ge_u32 s92, {val}
        s_cbranch_scc1 {d}
        s_sleep {sl}
        s_sub_u32 s93, s93, 1
        s_cmp_lg_u32 s93, 0
        s_cbranch_scc1 {l}
{d}:
        """)
    def gsync(self, val, t):
        self.post(val, t)
        self.wait_words("s94", val, t)
    def ready(self, t):
        l = self.lab("Lr"); d = self.lab("Ld")
        self.A(f"""
        v_and_b32 v{t+1}, {NREP-1}, v0
        v_lshlrev_b32 v{t+1}, 2, v{t+1}
        s_mov_b32 s93, {SPIN}
{l}:
        global_load_dword v{t}, v{t+1}, s[{pDBG}:{pDBG+1}] {SC}
        s_waitcnt vmcnt(0)
        v_cmp_eq_u32 vcc, 0, v{t}
        s_nop 3
        s_cmp_eq_u64 vcc, 0
        s_cbranch_scc1 {d}
        s_sleep 2
        s_sub_u32 s93, s93, 1
        s_cmp_lg_u32 s93, 0
        s_cbranch_scc1 {l}
{d}:
        """)
    def signal(self, sidx, t):
        self.A(f"""
        s_lshl_b32 s92, {sidx}, 8
        s_add_u32 s92, s92, {CNT}
        v_lshlrev_b32 v{t}, 15, v0
        v_mov_b32 v{t+1}, 1
        s_mov_b64 exec, {(1 << NREP) - 1}
        buffer_atomic_add v{t+1}, v{t}, s[12:15], s92 offen {SC}
        s_mov_b64 exec, -1
        """)
    def poll(self, first, n, target, t, sl=None):
        l = self.lab("Lp"); d = self.lab("Ld")
        self.A(f"""
        v_min_u32 v{t+1}, {n-1}, v0
        v_add_u32 v{t+1}, {first}, v{t+1}
        v_lshlrev_b32 v{t+1}, 8, v{t+1}
        s_mov_b32 s93, {SPIN}
        s_and_b32 s92, s2, {NREP-1}
        s_lshl_b32 s92, s92, 15
        s_add_u32 s92, s92, {CNT}
        s_mov_b64 exec, {(1 << n) - 1}
{l}:
        buffer_load_dword v{t}, v{t+1}, s[12:15], s92 offen {SC}
        s_waitcnt vmcnt(0)
        v_cmp_le_u32 vcc, {target}, v{t}
        s_nop 3
        s_cmp_eq_u64 vcc, exec
        s_cbranch_scc1 {d}
        s_sleep {sl or opt('PSLEEP', 2)}
        s_sub_u32 s93, s93, 1
        s_cmp_lg_u32 s93, 0
        s_cbranch_scc1 {l}
{d}:
        s_mov_b64 exec, -1
        """)

vT0, vT1, vT2, vT3, vTok, vHf = 1, 2, 3, 4, 5, 6
vXb, vWb, vX, vW, vEA, FR, ACC, PK = 8, 12, 14, 18, 20, 36, 68, 132
RING = 98304
def XF(b, i): return FR + 16*b + 4*i
def WF(b, j): return FR + 16*b + 8 + 4*j
def acc(i, j): return ACC + 16*(2*i + j)
def g_reads(b, s):
    return [f"ds_read_b128 {V(XF(b,0),4)}, v{vX+s}",
            f"ds_read_b64_tr_b16 {V(WF(b,0),2)}, v{vW} offset:{16384 + 4096*s}",
            f"ds_read_b64_tr_b16 {V(WF(b,0)+2,2)}, v{vW} offset:{16384 + 4096*s + 1024}",
            f"ds_read_b64_tr_b16 {V(WF(b,1),2)}, v{vW+1} offset:{16384 + 4096*s}",
            f"ds_read_b64_tr_b16 {V(WF(b,1)+2,2)}, v{vW+1} offset:{16384 + 4096*s + 1024}",
            f"ds_read_b128 {V(XF(b,1),4)}, v{vX+s} offset:4096"]
def g_mf(b, i, j, vtype):
    a, bb = (XF(b,i), WF(b,j)) if vtype else (WF(b,j), XF(b,i))
    return f"v_mfma_f32_32x32x16_bf16 {V(acc(i,j),16)}, {V(a,4)}, {V(bb,4)}, {V(acc(i,j),16)}"
def g_setaddr(A):
    for s in range(4): A(f"v_add_u32 v{vX+s}, s30, v{vXb+s}")
    for j in range(2): A(f"v_add_u32 v{vW+j}, s30, v{vWb+j}")
def g_loop(g, name, vtype):
    A = g.A
    A("s_mov_b32 s31, 9\ns_barrier")
    for r in g_reads(0, 0): A(r)

    A(f".p2align 6\n{name}:")
    for s in range(4):
        b = s & 1
        A("s_waitcnt lgkmcnt(0)")
        A(g_mf(b, 0, 0, vtype))
        if s < 3:
            rd = g_reads(b ^ 1, s+1)
            for r in rd[:3]: A(r)
            A(g_mf(b, 0, 1, vtype))
            for r in rd[3:]: A(r)
            A(g_mf(b, 1, 0, vtype)); A(g_mf(b, 1, 1, vtype))
        else:
            A(f"""
            s_add_u32 s30, s30, 32768
            s_cmp_eq_u32 s30, {RING}
            s_cselect_b32 s30, 0, s30
            s_sub_u32 s31, s31, 1
            s_cmp_eq_u32 s31, 0
            s_cbranch_scc1 {name}_nb
            s_barrier
{name}_nb:
            """)
            g_setaddr(A)
            A(g_mf(b, 0, 1, vtype))
            rd = g_reads(0, 0)
            for r in rd[:3]: A(r)
            A(g_mf(b, 1, 0, vtype))
            for r in rd[3:]: A(r)
            A(g_mf(b, 1, 1, vtype))
    A(f"s_cbranch_scc0 {name}")
    g.post(1, vT0)

def ld_chunk(g, skip=True):
    A = g.A; l = g.lab("Lk")
    if skip: A(f"s_cmp_lg_u32 s95, 0\ns_cbranch_scc1 {l}")
    A(f"""
    s_mov_b32 m0, s42
    s_add_u32 s26, s40, 8192
    buffer_load_dwordx4 v8, s[8:11], s40 offen lds
    s_add_u32 s27, s40, 16384
    buffer_load_dwordx4 v9, s[8:11], s26 offen offset:1024 lds
    s_add_u32 s26, s40, 24576
    buffer_load_dwordx4 v8, s[8:11], s27 offen offset:2048 lds
    s_add_u32 s28, s42, 16384
    buffer_load_dwordx4 v9, s[8:11], s26 offen offset:3072 lds
    s_mov_b32 m0, s28
    s_add_u32 s26, s41, {13824-1024}
    buffer_load_dwordx4 v10, s[44:47], s41 offen lds
    s_add_u32 s27, s41, {2*(13824-1024)}
    buffer_load_dwordx4 v10, s[44:47], s26 offen offset:1024 lds
    s_add_u32 s26, s41, {3*(13824-1024)}
    buffer_load_dwordx4 v10, s[44:47], s27 offen offset:2048 lds
    s_add_u32 s40, s40, 128
    buffer_load_dwordx4 v10, s[44:47], s26 offen offset:3072 lds
    s_add_u32 s41, s41, {64*3456}
    s_add_u32 s24, s24, 1
    s_cmp_eq_u32 s24, 9
    s_cselect_b32 s26, 1152, 0
    s_cselect_b32 s27, {WB}, 0
    s_sub_u32 s40, s40, s26
    s_sub_u32 s41, s41, s27
    s_add_u32 s42, s42, 32768
    s_cmp_ge_u32 s42, {RING}
    s_cselect_b32 s26, {RING}, 0
    s_sub_u32 s42, s42, s26
{l}:
    """)

def gen_gemm(g):
    A = g.A
    ROT = opt('ROT', 1)
    A(f"""
    s_and_b32 s17, s2, 7               ; xcd
    s_lshr_b32 s18, s2, 3              ; idx 0..27
    s_and_b32 s19, s17, 3
    s_lshl_b32 s19, s19, 2
    s_and_b32 s20, s18, 3
    s_add_u32 s19, s19, s20            ; mb
    s_lshr_b32 s21, s17, 2
    s_mul_i32 s21, s21, 7
    s_lshr_b32 s22, s18, 2
    s_add_u32 s21, s21, s22            ; ng
    s_cmp_lt_u32 s16, 4
    s_cbranch_scc1 Lg_compute
    s_and_b32 s23, s16, 3              ; u
    """)
    if ROT:
        A("""
        s_mul_i32 s24, s20, 5
        s_lshr_b32 s24, s24, 1
        s_add_u32 s24, s24, s22
        s_cmp_ge_u32 s24, 9
        s_cselect_b32 s25, 9, 0
        s_sub_u32 s24, s24, s25
        """)
    else: A("s_mov_b32 s24, 0")
    A(f"""
    s_lshl_b32 s25, s19, 7
    s_lshl_b32 s26, s23, 5
    s_add_u32 s25, s25, s26
    s_mul_i32 s25, s25, 1152
    s_lshl_b32 s26, s24, 7
    s_add_u32 s40, s25, s26            ; sX
    s_lshl_b32 s25, s24, 2
    s_add_u32 s25, s25, s23
    s_mul_i32 s25, s25, {16*3456}
    s_lshl_b32 s26, s21, 8
    s_add_u32 s41, s25, s26            ; sW
    s_lshl_b32 s42, s23, 12
    v_lshrrev_b32 v{vT0}, 3, v0
    v_mul_u32_u24 v{vT0}, 1152, v{vT0}
    v_lshrrev_b32 v{vT1}, 4, v0
    v_and_b32 v{vT2}, 7, v0
    v_xor_b32 v{vT2}, v{vT2}, v{vT1}
    v_lshl_add_u32 v8, v{vT2}, 4, v{vT0}
    v_xor_b32 v{vT2}, 4, v{vT2}
    v_lshl_add_u32 v9, v{vT2}, 4, v{vT0}       ; odd i
    v_mul_u32_u24 v{vT0}, 3456, v{vT1}
    v_and_b32 v{vT2}, 15, v0
    v_lshlrev_b32 v{vT1}, 2, v{vT1}
    v_xor_b32 v{vT2}, v{vT2}, v{vT1}
    v_lshl_add_u32 v10, v{vT2}, 4, v{vT0}      ; W addr
    s_mov_b32 s95, 0
    s_setprio {opt('LPRIO', 0)}
    s_waitcnt lgkmcnt(0)
    """)
    g.srd(8, pX, XB); g.srd(44, pW, WB)
    g.stamp(18)
    ld_chunk(g, False); ld_chunk(g, False)
    g.stamp(19)
    A(f"""
    s_mul_i32 s17, s2, 9363
    s_lshr_b32 s17, s17, 16
    s_mul_i32 s18, s17, 7
    s_sub_u32 s18, s2, s18             ; cb
    s_and_b32 s43, s2, 15
    s_add_u32 s43, s43, 64
    s_lshl_b32 s19, s2, 1
    s_bfe_u32 s25, s2, 0x10003
    s_lshl_b32 s25, s25, 14
    s_add_u32 s96, s25, 40960
    s_add_u32 s97, s25, {65536+46080}  ; V tail
    s_branch Ls1_go
Lg_compute:
    s_and_b32 s23, s16, 1              ; wm
    s_lshr_b32 s24, s16, 1             ; wn
    v_and_b32 v{vTok}, 31, v0
    v_lshrrev_b32 v{vHf}, 5, v0
    s_lshl_b32 s25, s23, 13
    v_lshlrev_b32 v{vT0}, 7, v{vTok}
    v_add_u32 v{vT0}, s25, v{vT0}
    v_bfe_u32 v{vT1}, v0, 1, 3
    v_xor_b32 v{vT1}, v{vT1}, v{vHf}
    """)
    for s in range(4):
        A(f"v_xor_b32 v{vT2}, {2*s}, v{vT1}\nv_lshl_add_u32 v{vXb+s}, v{vT2}, 4, v{vT0}")
    A(f"""
    v_bfe_u32 v{vT0}, v0, 2, 2
    v_lshl_add_u32 v{vT1}, v{vHf}, 3, v{vT0}
    v_lshlrev_b32 v{vT1}, 8, v{vT1}
    v_bfe_u32 v{vT2}, v0, 4, 1
    v_lshl_add_u32 v{vT1}, v{vT2}, 5, v{vT1}
    v_and_b32 v{vT2}, 3, v0
    v_lshl_add_u32 v{vT1}, v{vT2}, 3, v{vT1}
    s_lshl_b32 s25, s24, 1
    v_xor_b32 v{vT2}, s25, v{vT0}
    v_lshl_add_u32 v{vWb}, v{vT2}, 6, v{vT1}
    v_xor_b32 v{vT2}, 1, v{vT2}
    v_lshl_add_u32 v{vWb+1}, v{vT2}, 6, v{vT1}
    s_mov_b32 s30, 0
    s_waitcnt lgkmcnt(0)
    """)
    g.srd(12, pWS, WS_END)
    gen_init_misc(g, PK+8)
    g_setaddr(A)
    for i in range(64): A(f"v_mov_b32 v{ACC+i}, 0")
    A(f"""
    s_lshl_b32 s26, s19, 2
    s_lshl_b32 s27, s23, 1
    s_add_u32 s26, s26, s27            ; T0
    s_waitcnt lgkmcnt(0)
    s_cmp_ge_u32 s21, 9
    s_cbranch_scc1 Lg_vtype
    s_lshl_b32 s27, s21, 5
    s_lshl_b32 s28, s24, 4
    s_add_u32 s27, s27, s28
    v_add_u32 v{vT0}, s27, v{vHf}      ; G0
    s_lshl_b32 s28, s26, 10
    s_lshl_b32 s29, s26, 8
    s_add_u32 s29, s29, {LEFT}
    v_lshlrev_b32 v{vTok}, 3, v{vTok}
    v_add_u32 v{PK}, s29, v{vTok}
    v_add_u32 v{PK+1}, s28, v{vTok}
    v_add_u32 v{PK+2}, {MB-1280}, v{PK+1}
    v_mov_b32 v{PK+3}, 256
    v_mov_b32 v{PK+4}, 1024
    s_mov_b32 s32, {PAIR}
    """)
    for jg in range(8):
        A(f"""
        v_add_u32 v{vT1}, {8*(jg>>2) + 2*(jg&3)}, v{vT0}
        v_mul_u32_u24 v{vT2}, 7282, v{vT1}
        v_lshrrev_b32 v{vT2}, 16, v{vT2}
        v_mul_u32_u24 v{vT3}, 9, v{vT2}
        v_sub_u32 v{vT1}, v{vT1}, v{vT3}
        v_cmp_lt_u32 vcc, 4, v{vT1}
        v_cmp_eq_u32 s[34:35], 4, v{vT1}
        v_mul_u32_u24 v{vT2}, s32, v{vT2}
        v_cndmask_b32 v{vT3}, v{PK+1}, v{PK+2}, vcc
        v_lshl_add_u32 v{vT3}, v{vT1}, 8, v{vT3}
        v_cndmask_b32 v{vT3}, v{vT3}, v{PK}, s[34:35]
        v_cndmask_b32 v{vT1}, v{PK+4}, v{PK+3}, s[34:35]
        v_add_u32 v{vEA+jg}, v{vT2}, v{vT3}
        v_add_u32 v{vEA+8+jg}, v{vEA+jg}, v{vT1}
        """)
    g.stamp(1)
    g_loop(g, "Lg_qk", False)
    g.stamp(2)
    A(f"""
    s_lshl_b32 s27, s21, 2
    s_lshl_b32 s28, s24, 1
    s_add_u32 s27, s27, s28
    s_cmp_lt_u32 s27, 18
    s_cselect_b32 s28, {CS_BITS}, 1.0
    s_nop 7
    """)
    n = 0
    for i in range(2):
        for j in range(2):
            for q in range(4):
                a = acc(i, j) + 4*q
                p = PK + 2*(n % 8); n += 1
                for e in range(4): A(f"v_mul_f32 v{a+e}, s28, v{a+e}")
                A(f"v_cvt_pk_bf16_f32 v{p}, v{a}, v{a+1}\nv_cvt_pk_bf16_f32 v{p+1}, v{a+2}, v{a+3}")
                A(f"buffer_store_dwordx2 {V(p,2)}, v{vEA+8*i+4*j+q}, s[12:15], 0 offen {SC}")
    A(f"""
    s_branch Lg_done
Lg_vtype:
    s_sub_u32 s27, s21, 9
    s_lshl_b32 s27, s27, 7
    s_lshl_b32 s28, s24, 6
    s_add_u32 s27, s27, s28
    s_mul_i32 s28, s26, 36864
    s_add_u32 s28, s28, {VG}
    v_mul_u32_u24 v{vT3}, 9216, v{vHf}
    v_add_u32 v{vT0}, s27, v{vTok}
    v_lshl_add_u32 v{vEA}, v{vT0}, 4, v{vT3}
    """)
    g.stamp(1)
    g_loop(g, "Lg_v", True)
    g.stamp(2)
    A(f"""
    s_cmp_ge_u32 s27, 576
    s_cbranch_scc1 Lg_done
    s_nop 7
    """)
    n = 0
    for i in range(2):
        for j in range(2):
            for m in range(2):
                a = acc(i, j) + 8*m
                p = PK + 4*(n % 4); n += 1
                for e in range(4): A(f"v_cvt_pk_bf16_f32 v{p+e}, v{a+2*e}, v{a+2*e+1}")
                A(f"s_add_u32 s29, s28, {i*36864+m*18432}")
                A(f"buffer_store_dwordx4 {V(p,4)}, v{vEA}, s[12:15], s29 offen offset:{512*j} {SC}")
    A(f"""
Lg_done:
    s_setprio 2
    """)
    g.stamp(15)
    A("s_cmp_lg_u32 s16, 0\ns_cbranch_scc1 Lg_d2")
    g.ready(8)
    A("Lg_d2:\ns_waitcnt vmcnt(0) lgkmcnt(0)")
    g.stamp(3)
    g.gsync(5, 8)
    A("s_cmp_lg_u32 s16, 0\ns_cbranch_scc1 Lattn")
    g.stamp(16)
    g.signal("s21", 8)
    if g.dbg: A("s_waitcnt vmcnt(0)")
    g.stamp(17)
    A("s_branch Lattn")

def gen_init_misc(g, t):
    A = g.A
    for i in range(2):
        A(f"""
        s_and_b32 s25, s16, 3
        s_lshl_b32 s25, s25, 7
        s_add_u32 s25, s25, {64*i-14 & 0xffffffff}
        v_add_u32 v{t+4}, s25, v0
        v_mul_u32_u24 v{t+5}, 1821, v{t+4}
        v_lshrrev_b32 v{t+5}, 16, v{t+5}
        v_mul_u32_u24 v{t+5}, 36, v{t+5}
        v_cmp_eq_u32 s[34:35], v{t+5}, v{t+4}
        v_cmp_gt_u32 vcc, {36*8}, v{t+4}
        v_mov_b32 v{t+5}, 0x3f803f80
        v_lshlrev_b32 v{t+4}, 4, v{t+4}
        s_and_b64 vcc, vcc, s[34:35]
        v_add_u32 v{t+4}, {CONST+224}, v{t+4}
        v_cndmask_b32 v{t}, 0, v{t+5}, vcc
        v_cndmask_b32 v{t+1}, 0, v{t+5}, vcc
        v_cndmask_b32 v{t+2}, 0, v{t+5}, vcc
        v_cndmask_b32 v{t+3}, 0, v{t+5}, vcc
        ds_write_b128 v{t+4}, {V(t,4)}
        """)

def gen_stage1(g):
    A = g.A
    KR, VR, CR, CF, KU, UU, OUT = 16, 36, 44, 60, 92, 104, 112
    def up(dst, src, hi): return f"v_and_b32 v{dst}, 0xffff0000, v{src}" if hi else f"v_lshlrev_b32 v{dst}, 16, v{src}"
    A(f"""
    v_mov_b32 v8, 0
    v_mov_b32 v9, 0
    v_mov_b32 v10, 0
    s_and_b32 s23, s16, 3
    s_mov_b32 s95, 1
    s_sub_u32 s17, s2, 224             ; tb
    s_lshr_b32 s25, s16, 2
    s_add_u32 s18, s25, 7              ; cb
    s_lshl_b32 s19, s17, 1
    s_add_u32 s19, s19, s25
    s_and_b32 s43, s19, 3
    s_add_u32 s43, s43, 80
    s_lshl_b32 s19, s19, 1
    s_add_u32 s19, s19, 448
    s_lshl_b32 s96, s25, 16
    s_add_u32 s97, s96, 24576
    s_getpc_b64 s[26:27]
Lpc0:
    s_add_u32 s26, s26, Lcode_begin-Lpc0
    s_addc_u32 s27, s27, -1
    s_lshl_b32 s25, s16, 12
    v_lshlrev_b32 v12, 7, v0
    v_and_b32 v12, 0xfff, v12
    v_add_u32 v12, s25, v12
    v_min_u32 v12, Lcode_end-Lcode_begin-4, v12
    v_mov_b32 v15, s27
    v_add_co_u32 v14, vcc, s26, v12
    s_nop 1
    v_addc_co_u32 v15, vcc, 0, v15, vcc
    global_load_dword v210, v[14:15], off
    s_waitcnt lgkmcnt(0)
    """)
    g.srd(8, pX, XB); g.srd(44, pW, WB)
    A(f"""
Ls1_go:
    v_and_b32 v{vT0}, 7, v0            ; cc
    v_lshrrev_b32 v{vT1}, 3, v0        ; tg
    s_lshl_b32 s20, s17, 3
    s_add_u32 s20, s20, s23
    s_mul_i32 s20, s20, {8*1152}
    s_lshl_b32 s21, s18, 7
    s_add_u32 s20, s20, s21
    v_mul_u32_u24 v{vT2}, 1152, v{vT1}
    v_lshl_add_u32 v{vT2}, v{vT0}, 4, v{vT2}
    v_add_u32 v6, s20, v{vT2}          ; v rows
    v_subrev_u32 v7, {3*1152}, v6
    s_add_u32 s99, s97, 9344
    s_lshl_b32 s25, s23, 10
    s_add_u32 s25, s25, s99
    v_lshlrev_b32 v14, 4, v0
    """)
    g.srd(48, pK, XB); g.srd(52, pV, XB); g.srd(60, pH, 576*4096)
    g.stamp(23)
    A(f"""
    s_mov_b32 m0, s25
    s_add_u32 s26, s25, 4096
    buffer_load_dwordx4 v7, s[48:51], 0 offen {NTB} lds
    s_mov_b32 m0, s26
    v_add_u32 v7, {32*1152}, v7
    s_add_u32 s26, s25, 9216
    buffer_load_dwordx4 v7, s[48:51], 0 offen {NTB} lds
    s_mov_b32 m0, s26
    s_add_u32 s26, s26, 4096
    buffer_load_dwordx4 v6, s[52:55], 0 offen {NTB} lds
    s_mov_b32 m0, s26
    s_mov_b32 s27, {32*1152}
    buffer_load_dwordx4 v6, s[52:55], s27 offen {NTB} lds
    v_add_u32 v7, {32*1152}, v7
    s_lshl_b32 s21, s18, 9
    v_add_u32 v6, s21, v14
    s_cmp_eq_u32 s23, 0
    s_cselect_b32 s56, s{pK}, s{pSH}
    s_cselect_b32 s57, s{pK+1}, s{pSH+1}
    s_cselect_b32 s58, s50, {576*8}
    s_mov_b32 s59, 0x20000
    s_cselect_b64 vcc, -1, 0
    s_cselect_b32 s26, 8, 17
    s_cselect_b32 exec_hi, -1, 0
    s_lshl_b32 s26, s26, 10
    s_add_u32 s26, s26, s99
    s_mov_b32 m0, s26
    v_cndmask_b32 v6, v6, v7, vcc
    buffer_load_dwordx4 v6, s[56:59], 0 offen lds
    s_mov_b32 exec_hi, -1
    s_lshr_b32 s25, s23, 1
    s_add_u32 s98, s19, s25            ; channel
    s_cmp_eq_u32 s25, 0
    s_cselect_b32 s96, s96, s99
    s_mul_i32 s25, s25, 4672
    s_add_u32 s97, s97, s25
    s_add_u32 s97, s97, 576
    s_and_b32 s25, s23, 1
    s_lshl_b32 s25, s25, 11
    s_add_u32 s26, s97, s25
    s_mov_b32 m0, s26
    s_lshl_b32 s27, s98, 12
    s_add_u32 s27, s27, s25
    buffer_load_dwordx4 v14, s[60:63], s27 offen {NTB} lds
    buffer_load_dwordx4 v14, s[60:63], s27 offen offset:1024 {NTB} lds
    s_lshl_b32 s25, s19, 1
    s_load_dword s33, s[{pD}:{pD+1}], s25
    """)
    g.srd(12, pWS, WS_END)
    A(f"""
    v_mov_b32 v{OUT}, 0
    v_mov_b32 v{OUT+1}, 0
    v_mov_b32 v{OUT+2}, 0
    v_mov_b32 v{OUT+3}, 0
    v_min_u32 v7, 35, v0
    v_lshlrev_b32 v7, 4, v7
    s_sub_u32 s25, s97, 576
    v_add_u32 v7, s25, v7
    ds_write_b128 v7, {V(OUT,4)}
    v_lshlrev_b32 v6, 8, v{vT1}
    v_lshl_add_u32 v6, v{vT0}, 4, v6
    s_lshl_b32 s25, s23, 11
    s_add_u32 s25, s25, s99
    v_add_u32 v6, s25, v6
    v_lshlrev_b32 v15, 6, v{vT0}
    v_add_u32 v15, s99, v15            ; coefficients
    v_lshrrev_b32 v{vT2}, 4, v0
    v_and_b32 v{vT3}, 15, v0
    v_lshlrev_b32 v{vT3}, 7, v{vT3}
    v_lshl_add_u32 v13, v{vT2}, 4, v{vT3}
    v_add_u32 v13, s25, v13
    v_add_u32 v14, s25, v14
    v_bfe_u32 v{vT3}, v0, 2, 2
    v_lshl_add_u32 v7, v{vT2}, 3, v{vT3}
    v_lshlrev_b32 v7, 7, v7
    v_and_b32 v{vT3}, 3, v0
    v_lshl_add_u32 v7, v{vT3}, 3, v7
    s_lshl_b32 s25, s23, 5
    s_add_u32 s25, s25, s99
    v_add_u32 v7, s25, v7
    v_lshlrev_b32 v5, 12, v{vT1}
    v_lshl_add_u32 v5, v{vT0}, 4, v5
    s_lshl_b32 s22, s18, 2
    s_add_u32 s22, s22, s23
    s_lshl_b32 s22, s22, 16
    s_lshl_b32 s25, s17, 7
    s_add_u32 s22, s22, s25
    s_add_u32 s22, s22, {UT}
    s_add_u32 s21, s22, 32768
    """)
    A(f"""
    s_cmp_eq_u32 s95, 0
    s_cbranch_scc1 Lx_noinit
    s_cmp_lt_u32 s16, 4
    s_cbranch_scc1 Lx_noinit
    """)
    gen_init_misc(g, 132)
    A(f"""
    s_cmp_ge_u32 s2, {224+NREP}
    s_cbranch_scc1 Lx_noinit
    s_cmp_lg_u32 s16, 4
    s_cbranch_scc1 Lx_noinit
    v_lshlrev_b32 v11, 8, v0
    v_mov_b32 v12, 0
    s_sub_u32 s25, s2, 224
    s_lshl_b32 s25, s25, 15
    s_add_u32 s25, s25, {CNT}
    buffer_store_dword v12, v11, s[12:15], s25 offen {SC}
    s_add_u32 s25, s25, 16384
    s_mov_b64 exec, 0xfffff
    buffer_store_dword v12, v11, s[12:15], s25 offen {SC}
    s_mov_b64 exec, -1
Lx_noinit:
    """)
    g.stamp(20)
    NS = 7
    def dcol(d):
        for n in range(5):
            A(up(KU+2*n, KR+4*n+d, 0)); A(up(KU+2*n+1, KR+4*n+d, 1))
        for t in range(2):
            for e in range(2): A(f"v_mul_f32 v{UU+2*t+e}, v{KU+2*(t+3)+e}, v{CF+8*d+e}")
        for j in range(1, 4):
            for t in range(2):
                for e in range(2): A(f"v_fmac_f32 v{UU+2*t+e}, v{KU+2*(t+3-j)+e}, v{CF+8*d+2*j+e}")
        for t in range(2):
            for e in range(2): A(up(UU+4+2*t+e, VR+4*t+d, e))
        for t in range(2):
            for e in range(2): A(f"v_mul_f32 v{UU+2*t+e}, v{UU+2*t+e}, v{UU+4+2*t+e}")
        for t in range(2): A(f"v_cvt_pk_bf16_f32 v{OUT+4*t+d}, v{UU+2*t}, v{UU+2*t+1}")
    A(f"s_waitcnt vmcnt({8+NS}) lgkmcnt(0)\ns_barrier"); g.stamp(21); ld_chunk(g)
    A(f"s_waitcnt vmcnt({8+NS})\ns_barrier"); g.stamp(22); ld_chunk(g)
    A(f"""
    s_cmp_eq_u32 s95, 0
    s_cbranch_scc1 Ls1_nofl
    s_waitcnt vmcnt(0)
    s_sub_u32 s25, s2, 224
    s_cmp_ge_u32 s25, {NREP}
    s_cbranch_scc1 Ls1_nofl
    s_cmp_lg_u32 s16, 4
    s_cbranch_scc1 Ls1_nofl
    s_lshl_b32 s25, s25, 2
    v_mov_b32 v11, s25
    v_mov_b32 v12, 1
    s_mov_b64 exec, 1
    global_store_dword v11, v12, s[{pDBG}:{pDBG+1}] {SC}
    s_mov_b64 exec, -1
Ls1_nofl:
    s_waitcnt vmcnt(8)
    s_barrier
    """)
    for i in range(4): A(f"ds_read_b128 {V(CR+4*i,4)}, v15 offset:{17408+16*i}")
    for n in range(5): A(f"ds_read_b128 {V(KR+4*n,4)}, v6 offset:{128*n}")
    for t in range(2): A(f"ds_read_b128 {V(VR+4*t,4)}, v6 offset:{9216+128*t}")
    ld_chunk(g)
    A("s_waitcnt lgkmcnt(0)")
    g.stamp(1)
    for c in range(8):
        for j in range(4): A(up(CF + 8*(c >> 1) + 2*j + (c & 1), CR + 2*c + (j >> 1), j & 1))
    dcol(0)
    A("s_waitcnt vmcnt(8)\ns_barrier"); ld_chunk(g)
    dcol(1); dcol(2)
    A("s_waitcnt vmcnt(8)\ns_barrier"); ld_chunk(g)
    dcol(3)
    A(f"""
    ds_write_b128 v6, {V(OUT,4)} offset:9216
    ds_write_b128 v6, {V(OUT+4,4)} offset:{9216+128}
    s_waitcnt vmcnt(8) lgkmcnt(0)
    s_barrier
    """); ld_chunk(g)
    for i in range(2):
        A(f"ds_read_b64_tr_b16 {V(OUT+4*i,2)}, v7 offset:{9216+4096*i}")
        A(f"ds_read_b64_tr_b16 {V(OUT+4*i+2,2)}, v7 offset:{9216+4096*i+512}")
    A(f"""
    s_waitcnt lgkmcnt(0)
    ds_write_b128 v13, {V(OUT,4)}
    ds_write_b128 v13, {V(OUT+4,4)} offset:64
    ds_read_b128 {V(OUT+8,4)}, v14
    ds_read_b128 {V(OUT+12,4)}, v14 offset:1024
    v_and_b32 v11, {NREP-1}, v0
    v_lshlrev_b32 v11, 2, v11
    s_waitcnt vmcnt(8) lgkmcnt(0)
    s_barrier
    """); ld_chunk(g)
    A(f"""
    buffer_store_dwordx4 {V(OUT+8,4)}, v5, s[12:15], s22 offen {SC}
    buffer_store_dwordx4 {V(OUT+12,4)}, v5, s[12:15], s21 offen {SC}
    global_load_dword v12, v11, s[{pDBG}:{pDBG+1}] {SC}
    """)
    g.stamp(2)
    R = kconv.ConvRegs(16)
    conv_setup(A, R)
    A(f"""
    s_waitcnt vmcnt(11)
    s_barrier
    s_waitcnt vmcnt(3)
    s_barrier
    s_setprio 0
    s_waitcnt vmcnt(0)
    v_cmp_eq_u32 vcc, 0, v12
    """)
    g.stamp(3)
    A("s_mov_b64 s[34:35], vcc")
    g.gsync(2, 8)
    A(f"""
    s_cmp_lg_u32 s23, 0
    s_cbranch_scc1 Lc_w
    s_cmp_eq_u64 s[34:35], 0
    s_cbranch_scc1 Lc_sig
    """)
    g.ready(8)
    A("Lc_sig:")
    g.signal("s43", 8)
    A("s_cmp_lg_u32 s16, 4\ns_cbranch_scc1 Lc_w")
    A("s_cmp_eq_u32 s95, 1\ns_cbranch_scc1 Lc_px")
    if opt('UDELAY', 1): g.wait_words(SY, 5, 8, sl=4)
    g.poll(64, 16, 14, 8, sl=opt('USLEEP', 3))
    A("s_branch Lc_pd\nLc_px:")
    g.poll(80, 4, 16, 8, sl=opt('USLEEP', 3))
    A(f"""
Lc_pd:
    v_mov_b32 v8, {SY+36}
    v_mov_b32 v9, 1
    ds_write_b32 v8, v9
Lc_w:
    """)
    g.wait_words(SY+36, 1, 8, n=1, sl=opt('WSL', 4))
    g.wait_words(SY, 1, 8)
    g.stamp(4)
    for c in range(2):
        A("s_mov_b32 m0, s24\ns_nop 0")
        for i in range(4): A(f"buffer_load_dwordx4 v2, s[12:15], s25 offen offset:{1024*i} lds {SC}")
        if c == 0: A("s_add_u32 s24, s24, 4160\ns_sub_u32 s25, s25, 2")
    A("s_waitcnt vmcnt(0)")
    g.gsync(3, 8)
    A(f"s_setprio {opt('CPRIO', 1)}")
    g.stamp(5)
    A("s_cmp_eq_u32 s18, 0\ns_cbranch_scc0 Lc_set1")
    kconv.conv_main(A, R, "Lc_l0", 0)
    kconv.conv_epi(A, R, 0, "s96", "s33", "s26", "s[12:15]", SC)
    A("s_branch Lc_done\nLc_set1:")
    kconv.conv_main(A, R, "Lc_l1", 1)
    kconv.conv_epi(A, R, 1, "s96", "s33", "s26", "s[12:15]", SC)
    A("Lc_done:")
    g.stamp(6)
    g.post(4, 8)

def conv_setup(A, R):
    A(f"""
    v_bfe_u32 v{R.t0}, v0, 2, 2
    v_mul_u32_u24 v{R.aA}, 4160, v{R.t0}
    v_and_b32 v{R.t0}, 3, v0
    v_lshl_add_u32 v{R.aA}, v{R.t0}, 3, v{R.aA}
    v_lshrrev_b32 v{R.t0}, 4, v0
    v_lshlrev_b32 v{R.aB}, 4, v{R.t0}
    v_sub_u32 v{R.aA}, v{R.aA}, v{R.aB}
    s_add_u32 s25, s96, {64+32-8}
    v_add_u32 v{R.aA}, s25, v{R.aA}
    v_and_b32 v{R.aU}, 15, v0
    v_lshlrev_b32 v{R.aU}, 5, v{R.aU}
    v_add_u32 v{R.aB}, v{R.aB}, v{R.aU}
    s_sub_u32 s25, s97, 96
    v_add_u32 v{R.aB}, s25, v{R.aB}
    v_lshl_add_u32 v{R.aU}, v{R.t0}, 3, v{R.aU}
    v_and_b32 v{R.mask}, 15, v0
    v_lshlrev_b32 v{R.t0}, 3, v{R.t0}
    v_sub_u32 v{R.t0}, v{R.mask}, v{R.t0}
    v_add_u32 v{R.t0}, 17, v{R.t0}
    v_mov_b32 v{R.acc}, 0xffff
    v_mov_b32 v{R.acc+1}, 0xffff0000
    """)
    for d in range(4):
        A(f"""
        v_cmp_lt_i32 vcc, {2*d}, v{R.t0}
        v_cmp_lt_i32 s[34:35], {2*d+1}, v{R.t0}
        s_nop 0
        v_cndmask_b32 v{R.mask+d}, 0, v{R.acc}, vcc
        v_cndmask_b32 v{R.acc+2}, 0, v{R.acc+1}, s[34:35]
        v_or_b32 v{R.mask+d}, v{R.mask+d}, v{R.acc+2}
        """)
    for i in range(16): A(f"v_mov_b32 v{R.acc+i}, 0")
    A(f"""
    s_and_b32 s18, s16, 1              ; set
    s_lshl_b32 s21, s98, 12
    s_add_u32 s26, s21, {YT}
    s_lshl_b32 s24, s33, 16
    s_and_b32 s25, s33, 0xffff0000
    s_bitcmp0_b32 s98, 0
    s_cselect_b32 s33, s24, s25        ; D
    s_mul_i32 s24, s18, {2*4160}
    s_add_u32 s24, s24, s96
    s_add_u32 s24, s24, 64
    s_lshl_b32 s25, s18, 2
    s_sub_u32 s25, s21, s25
    s_add_u32 s25, s25, {UT}
    v_lshlrev_b32 v2, 4, v0
    """)

import k2
from k2 import m16, m8, phase, maxtree
from k2 import vL8, vKM, vKL, vV, vL16, vV0, vVinc, Q1A, Q1B, Q2A, Q2B, NMA, NMB, SA, SB, PA, PB, OA, OB, KB, KL, VB
aT0, aT1, aT2, aT3 = 5, 6, 7, 8
TMP = 168
vCA, vCR, vOne, vKM0, vKL0 = 176, 177, 178, 179, 180
def zero_acc(A):
    for i in range(16): A(f"v_mov_b32 v{OA+i}, 0")
    for i in range(16): A(f"v_mov_b32 v{OB+i}, 0")
    for i in range(8): A(f"v_mov_b32 v{PB+i}, 0")
    for i in range(8): A(f"v_mov_b32 v{VB[1]+i}, 0")
vG0, vG1, vG2 = 181, 182, 183
def dma_iter(A):
    A(f"""
    s_mov_b32 m0, s40
    s_add_u32 s46, s40, 4096
    buffer_load_dwordx4 v{vL16}, s[8:11], s40 offen lds {SC}
    s_mov_b32 m0, s46
    s_add_u32 s40, s40, 8192
    buffer_load_dwordx4 v{vL16}, s[8:11], s46 offen lds {SC}
    s_mov_b32 m0, s41
    s_add_u32 s46, s41, 4096
    buffer_load_dwordx4 v{vG0}, s[12:15], s43 offen lds {SC}
    s_mov_b32 m0, s46
    s_add_u32 s41, s41, 9216
    buffer_load_dwordx4 v{vG1}, s[12:15], s43 offen lds {SC}
    s_mov_b32 m0, s42
    s_add_u32 s43, s43, {8*36864}
    buffer_load_dwordx4 v{vG2}, s[12:15], s44 offen lds {SC}
    s_add_u32 s42, s42, s45
    s_add_u32 s44, s44, s47
    """)

def gen_attn(g):
    A = g.A; name = "La"
    FLAG = SY + 40
    A(f"""
Lattn:
    s_and_b32 s17, s2, 7
    s_lshl_b32 s17, s17, 2
    s_bfe_u32 s25, s2, 0x20003
    s_add_u32 s17, s17, s25            ; h
    s_lshr_b32 s18, s2, 5              ; qb
    s_lshr_b32 s19, s16, 2             ; kg
    s_and_b32 s20, s16, 3              ; qg
    s_and_b32 s21, s17, 1              ; parity
    s_lshr_b32 s26, s17, 1             ; pair
    v_lshlrev_b32 v{vL8}, 3, v0
    v_lshlrev_b32 v{vL16}, 4, v0
    s_mul_i32 s39, s26, {PAIR}
    s_mul_i32 s28, s21, {LEFT}
    s_add_u32 s27, s39, s28
    s_add_u32 s27, s27, {KV}
    s_add_u32 s8, s{pWS}, s27
    s_addc_u32 s9, s{pWS+1}, 0
    s_mov_b32 s10, {WIN}
    s_mov_b32 s11, 0x20000
    s_lshl_b32 s22, s21, 14
    s_add_u32 s23, s22, 65536
    s_cmp_eq_u32 s21, 0
    s_cselect_b32 s24, {LEFT}, 0
    s_lshl_b32 s31, s18, 3
    s_lshl_b32 s32, s20, 1
    s_add_u32 s31, s31, s32
    s_add_u32 s32, s31, s19            ; tA
    s_xor_b32 s33, s32, 1              ; tB
    s_mul_i32 s34, s21, {MB}
    s_add_u32 s34, s34, s39
    s_lshl_b32 s35, s32, 10
    s_add_u32 s35, s35, s34
    s_lshl_b32 s36, s33, 10
    s_add_u32 s36, s36, s34
    s_add_u32 s34, s39, {LEFT}
    s_lshl_b32 s37, s32, 8
    s_add_u32 s37, s37, s34
    s_lshl_b32 s38, s33, 8
    s_add_u32 s38, s38, s34
    v_and_b32 v{aT1}, 31, v0
    s_mul_i32 s47, s19, 3
    s_lshl_b32 s25, s20, 10
    s_lshl_b32 s46, s47, 13
    s_add_u32 s40, s22, s25
    s_add_u32 s40, s40, s46
    s_mul_i32 s46, s47, 9216
    s_add_u32 s46, s46, s23
    s_add_u32 s41, s46, s25
    s_add_u32 s42, s46, 8192
    s_and_b32 s44, s20, 1
    s_lshl_b32 s46, s47, 1
    s_add_u32 s44, s44, s46
    s_lshl_b32 s44, s44, 10
    s_add_u32 s44, s44, s24
    s_mul_i32 s43, s47, {8*36864}
    s_mul_i32 s46, s17, 288
    s_add_u32 s43, s43, s46
    s_add_u32 s43, s43, {VG}
    s_add_u32 s46, s44, s27
    s_cmp_eq_u32 s20, 0
    s_cselect_b32 s42, s42, s44
    s_cselect_b32 s44, s43, s46
    s_cselect_b32 s45, 9, 2
    s_cselect_b32 s47, 288, 2
    s_cselect_b64 vcc, -1, 0
    s_lshl_b32 s45, s45, 10
    s_lshl_b32 s47, s47, 10
    """)
    for r, base in ((vG0, "s25"), (vG1, "s46"), (vG2, "512")):
        A(f"""
        s_lshl_b32 s25, s20, 6
        s_add_u32 s46, s25, 256
        v_add_u32 v{aT0}, {base}, v0
        v_mul_u32_u24 v{aT2}, 3641, v{aT0}
        v_lshrrev_b32 v{aT2}, 16, v{aT2}           ; run = c / 18
        v_mul_u32_u24 v{aT3}, {9216-288}, v{aT2}
        v_lshl_add_u32 v{r}, v{aT0}, 4, v{aT3}
        """)
    A(f"""
    v_cndmask_b32 v{vG2}, v{vL16}, v{vG2}, vcc
    v_lshrrev_b32 v{aT0}, 5, v0
    v_mul_u32_u24 v{aT3}, 288, v{aT0}
    v_lshl_add_u32 v{aT2}, v{aT1}, 4, v{aT3}
    v_add_u32 v{vV0}, s23, v{aT2}
    v_mov_b32 v{vVinc}, {4*VT}
    v_mov_b32 v{aT2}, {CONST+240}
    v_mov_b32 v{aT3}, {CONST+224}
    v_cmp_eq_u32 vcc, 18, v{aT1}
    v_subrev_u32 v{aT0}, 20, v{aT1}
    v_cmp_gt_u32 s[52:53], 8, v{aT0}
    v_cndmask_b32 v{aT2}, v{aT2}, v{aT3}, vcc
    v_mov_b32 v{aT3}, {CONST+176}
    v_cmp_lt_u32 vcc, 17, v{aT1}
    v_cndmask_b32 v{aT2}, v{aT2}, v{aT3}, s[52:53]
    s_lshl_b32 s25, s19, 12
    s_add_u32 s48, s25, s22
    v_cndmask_b32 v{vV0}, v{vV0}, v{aT2}, vcc
    v_cndmask_b32 v{vVinc}, v{vVinc}, 0, vcc
    s_lshl_b32 s25, s19, 10
    s_add_u32 s49, s25, s24
    s_mov_b32 s50, 0
    v_cmp_gt_u32 vcc, 32, v0
    s_cmp_eq_u32 s21, 0
    s_cselect_b64 s[52:53], -1, 0
    s_cselect_b64 s[54:55], 0, -1
    s_and_b64 s[56:57], s[52:53], vcc
    s_and_b64 s[58:59], s[54:55], vcc
    s_andn2_b64 s[60:61], s[52:53], vcc
    s_andn2_b64 s[62:63], s[54:55], vcc
    v_lshlrev_b32 v{aT2}, 3, v{aT1}
    v_add_u32 v{vKM0}, s22, v{vL8}
    v_add_u32 v{vKL0}, s24, v{vL8}
    s_lshl_b32 s25, s20, 8
    s_add_u32 s25, s25, {UC}
    v_lshlrev_b32 v{vCA}, 2, v0
    v_add_u32 v{vCA}, s25, v{vCA}
    v_mov_b32 v{vOne}, 1
    """)
    zero_acc(A)
    A(f"""
    s_cmp_lg_u32 s19, 0
    s_cbranch_scc1 La_wy
    s_cmp_lg_u32 s16, 0
    s_cbranch_scc1 La_w
    """)
    g.poll(0, 14, 16, TMP)
    A("s_cmp_lt_u32 s2, 224\ns_cbranch_scc1 La_w0")
    g.wait_words(SY, 4, TMP)
    g.wait_words(SY+16, 4, TMP)
    A(f"""
La_w0:
    v_mov_b32 v{TMP}, {SY+32}
    v_mov_b32 v{TMP+1}, 1
    ds_write_b32 v{TMP}, v{TMP+1}
La_w:
    """)
    g.wait_words(SY+32, 1, TMP, n=1)
    g.stamp(7)
    dma_iter(A)
    A("s_mov_b32 s25, 2\ns_branch La_q\nLa_wy:")
    g.wait_words(SY+16, 4, TMP, sl=2)
    g.wait_words(SY, 6, TMP, sl=2)
    g.stamp(7)
    A(f"""
    s_mov_b32 s25, 5
La_q:
    buffer_load_dwordx2 {V(Q1A,2)}, v{vL8}, s[12:15], s35 offen {SC}
    buffer_load_dwordx2 {V(Q1A+2,2)}, v{vL8}, s[12:15], s35 offen offset:512 {SC}
    buffer_load_dwordx2 {V(Q1B,2)}, v{vL8}, s[12:15], s36 offen {SC}
    buffer_load_dwordx2 {V(Q1B+2,2)}, v{vL8}, s[12:15], s36 offen offset:512 {SC}
    buffer_load_dwordx2 {V(Q2A,2)}, v{aT2}, s[12:15], s37 offen {SC}
    buffer_load_dwordx2 {V(Q2B,2)}, v{aT2}, s[12:15], s38 offen {SC}
La_bulk:
    """)
    dma_iter(A)
    A(f"""
    s_sub_u32 s25, s25, 1
    s_cmp_lg_u32 s25, 0
    s_cbranch_scc1 La_bulk
    s_waitcnt vmcnt(10)
    s_cmp_lg_u32 s19, 0
    s_cbranch_scc1 La_p4
    """)
    g.post(6, TMP)
    A("La_p4:")
    for Q in (Q2A, Q2B):
        A(f"""
        v_cndmask_b32 v{Q+2}, 0, v{Q}, s[60:61]
        v_cndmask_b32 v{Q+3}, 0, v{Q+1}, s[62:63]
        v_cndmask_b32 v{Q}, 0, v{Q}, s[56:57]
        v_cndmask_b32 v{Q+1}, 0, v{Q+1}, s[58:59]
        """)
    g.wait_words(SY, 6, TMP)
    g.stamp(8)
    A(f"""
    ds_read2st64_b64 {V(KB[1],4)}, v{vKM0} offset0:0 offset1:1
    ds_read_b64 {V(PA,2)}, v{vKL0}
    s_waitcnt lgkmcnt(0)
    {m16(SA, KB[1], Q1A, 0)}
    {m16(SB, KB[1], Q1B, 0)}
    {m8(SA, PA, Q2A)}
    {m8(SB, PA, Q2B)}
    s_nop 10
    """)
    maxtree(A, aT0, SA)
    maxtree(A, aT1, SB)
    A(f"""
La_setm:
    v_mov_b32 v{aT2}, v{aT0}
    v_mov_b32 v{aT3}, v{aT1}
    v_lshl_add_u32 v{vKM}, s19, 12, v{vKM0}
    v_lshl_add_u32 v{vKL}, s19, 10, v{vKL0}
    v_permlane32_swap_b32 v{aT0}, v{aT2}
    v_permlane32_swap_b32 v{aT1}, v{aT3}
    v_mad_u32_u24 v{vV}, s19, v{vVinc}, v{vV0}
    ds_read2st64_b64 {V(KB[0],4)}, v{vKM} offset0:0 offset1:1
    ds_read_b64 {V(KL,2)}, v{vKL}
    ds_read_b128 {V(VB[0],4)}, v{vV}
    ds_read_b128 {V(VB[0]+4,4)}, v{vV} offset:576
    v_max_f32 v{aT0}, v{aT0}, v{aT2}
    v_max_f32 v{aT1}, v{aT1}, v{aT3}
    """)
    for i in range(16): A(f"v_sub_f32 v{NMA+i}, 0, v{aT0}")
    A(f"""
    v_sub_f32 v{NMB}, 0, v{aT1}
    s_waitcnt lgkmcnt(0)
    {m16(SA, KB[0], Q1A, V(NMA,16))}
    {m8(SA, KL, Q2A)}
    """)
    for i in range(1, 16): A(f"v_sub_f32 v{NMB+i}, 0, v{aT1}")
    A(f"""
    s_mov_b32 s30, 16
    s_mov_b32 s54, -14
    s_cmp_lg_u32 s50, 0
    s_cbranch_scc1 La_go
    s_mov_b32 s30, 2
    s_mov_b32 s54, 2
    s_setprio 0
    s_cmp_eq_u32 s19, 0
    s_cbranch_scc1 La_go
    s_waitcnt vmcnt(0)
    """)
    g.post(7, TMP)
    A(f"""
    s_lshr_b32 s25, s2, 3
    s_lshl_b32 s25, s25, 2
    s_add_u32 s25, s25, s20            ; 0..127
    s_mul_i32 s27, s25, {41*128}
    v_lshlrev_b32 v{TMP}, 7, v0
    v_add_u32 v{TMP+1}, s27, v{TMP}
    v_min_u32 v{TMP+1}, {WOB-4}, v{TMP+1}
    s_mov_b32 exec_hi, 0x1ff
    global_load_dword v210, v{TMP+1}, s[{pWO}:{pWO+1}]
    s_and_b32 s27, s2, 7
    s_mul_i32 s27, s27, {256*1152}
    s_mul_i32 s25, s25, {18*128}
    s_add_u32 s27, s27, s25
    v_add_u32 v{TMP+1}, s27, v{TMP}
    s_mov_b64 exec, 0x3ffff
    global_load_dword v211, v{TMP+1}, s[{pQ}:{pQ+1}]
    s_mov_b64 exec, -1
La_go:
    """)
    g.stamp(9)
    A(".p2align 6\nLa_loop:")
    for j in range(4):
        b = j & 1; nb = b ^ 1
        koff = 2*(j+1) if j < 3 else 0
        ex = [[f"ds_read2st64_b64 {V(KB[nb],4)}, v{vKM} offset0:{koff} offset1:{koff+1}"], [], [], ["s_waitcnt lgkmcnt(0)"]]
        if j == 0: ex[0].append(f"ds_read_b64 {V(KL+2,2)}, v{vKL} offset:512")
        if j == 1: ex[0].append(f"ds_add_rtn_u32 v{vCR}, v{vCA}, v{vOne}")
        if j == 2: ex[2] = ["s_min_u32 s53, s52, 15"]
        if j == 3:
            ex[0].append(f"ds_read_b64 {V(KL,2)}, v{vKL}")
            ex[1] = [f"v_mad_u32_u24 v{vV}, s53, v{vVinc}, v{vV0}"]
            ex[2] = ["s_cmp_lt_u32 s52, 16"]
        klp = KL + 2*(j >> 1)
        phase(A, SA, PA, [m16(SB, KB[b], Q1B, V(NMB,16)), m8(SB, klp, Q2B + 2*(j & 1)),
                          m16(OB, VB[nb], PB, V(OB,16)), m16(OB, VB[nb]+4, PB+4, V(OB,16))], ex)
        jn = (j+1) & 3
        klp = KL + 2*(jn >> 1)
        ex = [[], [], [f"ds_read_b128 {V(VB[nb],4)}, v{vV} offset:{jn*VT}"], [f"ds_read_b128 {V(VB[nb]+4,4)}, v{vV} offset:{jn*VT+576}"]]
        if j == 1:
            ex[1] = [f"v_readfirstlane_b32 s52, v{vCR}"]
            ex[3].append("s_add_u32 s52, s52, s54")
        if j == 2:
            ex[0] = ["s_cmp_ge_u32 s53, s30"]
            ex[1] = [f"v_lshl_add_u32 v{vKM}, s53, 12, v{vKM0}", f"v_lshl_add_u32 v{vKL}, s53, 10, v{vKL0}"]
            ex[3] += ["s_cbranch_scc1 La_chk", "La_chkd:"]
        phase(A, SB, PB, [m16(SA, KB[nb], Q1A, V(NMA,16)), m8(SA, klp, Q2A + 2*(jn & 1)),
                          m16(OA, VB[b], PA, V(OA,16)), m16(OA, VB[b]+4, PA+4, V(OA,16))], ex)
    A(f"""
    s_cbranch_scc1 La_loop
    """)
    g.stamp(10)
    A(f"""
    {m16(OB, VB[1], PB, V(OB,16))}
    {m16(OB, VB[1]+4, PB+4, V(OB,16))}
    s_cmp_lg_u32 s50, 0
    s_cbranch_scc1 La_combine
    v_add_f32 v{aT0}, |v{OA}|, |v{OA+1}|
    """)
    for i in range(2, 11): A(f"v_add_f32 v{aT0}, |v{OA+i}|, v{aT0}")
    A("s_nop 1")
    for i in range(11): A(f"v_add_f32 v{aT0}, |v{OB+i}|, v{aT0}")
    A(f"""
    v_mov_b32 v{aT1}, 0x71800000
    v_cmp_nlt_f32 vcc, v{aT0}, v{aT1}
    v_mov_b32 v{aT3}, {FLAG}
    v_mov_b32 v{aT2}, 1
    s_cbranch_vccz La_noflag
    ds_write_b32 v{aT3}, v{aT2}
La_noflag:
    s_waitcnt lgkmcnt(0)
    s_barrier
    ds_read_b32 v{aT2}, v{aT3}
    s_waitcnt lgkmcnt(0)
    v_readfirstlane_b32 s25, v{aT2}
    s_cmp_lg_u32 s25, 0
    s_cbranch_scc1 La_slow
La_combine2:
    s_mul_i32 s25, s16, 3072
    s_add_u32 s25, s25, {XO}
    s_xor_b32 s27, s16, 4
    s_mul_i32 s27, s27, 3072
    s_add_u32 s27, s27, {XO}
    v_add_u32 v{aT0}, s25, v{vL16}
    v_add_u32 v{aT1}, s27, v{vL16}
    s_nop 4
    ds_write_b128 v{aT0}, {V(OB,4)}
    ds_write_b128 v{aT0}, {V(OB+4,4)} offset:1024
    ds_write_b128 v{aT0}, {V(OB+8,4)} offset:2048
    s_mul_i32 s25, s32, {36*1024}
    s_add_u32 s25, s25, {OF}
    s_lshl_b32 s27, s17, 10
    s_add_u32 s27, s27, s25
    s_lshl_b32 s28, s17, 7
    s_add_u32 s28, s28, s25
    s_add_u32 s28, s28, 32768
    v_lshlrev_b32 v{aT2}, 2, v0
    s_waitcnt lgkmcnt(0)
    s_barrier
    ds_read_b128 {V(SA,4)}, v{aT1}
    ds_read_b128 {V(SA+4,4)}, v{aT1} offset:1024
    ds_read_b128 {V(SA+8,4)}, v{aT1} offset:2048
    s_waitcnt lgkmcnt(0)
    v_add_f32 v{aT0}, v{OA+10}, v{SA+10}
    v_mov_b32 v{aT1}, v{aT0}
    """)
    for i in range(10): A(f"v_add_f32 v{OA+i}, v{OA+i}, v{SA+i}")
    A(f"""
    v_permlane32_swap_b32 v{aT0}, v{aT1}
    s_nop 1
    v_rcp_f32 v{aT0}, v{aT0}
    s_nop 0
    """)
    for i in range(10): A(f"v_mul_f32 v{OA+i}, v{OA+i}, v{aT0}")
    for i in range(5): A(f"v_cvt_pk_bf16_f32 v{PA+i}, v{OA+2*i}, v{OA+2*i+1}")
    A(f"""
    buffer_store_dwordx4 {V(PA,4)}, v{vL16}, s[12:15], s27 offen {SC}
    s_mov_b32 exec_hi, 0
    buffer_store_dword v{PA+4}, v{aT2}, s[12:15], s28 offen {SC}
    s_mov_b32 exec_hi, -1
    s_lshl_b32 s51, s18, 2
    s_lshr_b32 s25, s17, 3
    s_add_u32 s51, s51, s25
    s_add_u32 s51, s51, 32
    s_branch Lp3
    """)
    A(f"""
La_chk:
    s_cmp_lg_u32 s19, 0
    s_cbranch_scc1 La_chk1
    s_waitcnt vmcnt(0)
    """)
    g.post(7, TMP)
    A("La_chk1:")
    g.wait_words(SY, 7, TMP)
    A(f"""
    s_mov_b32 s30, 6
    s_cmp_lt_u32 s53, 6
    s_cbranch_scc1 La_chkd
    """)
    g.wait_words(SY+16, 7, TMP)
    A(f"""
    s_mov_b32 s30, 16
    s_cmp_lg_u32 s16, 0
    s_cbranch_scc1 La_chkd
    s_and_b32 s25, s2, 15
    s_add_u32 s25, s25, 16
    """)
    g.signal("s25", TMP)
    A(f"""
    s_branch La_chkd
La_combine:
    s_barrier
    s_branch La_combine2
La_slow:
    s_mov_b32 s50, 1
    v_add_u32 v{vKM}, s48, v{vL8}
    v_add_u32 v{vKL}, s49, v{vL8}
    v_mov_b32 v{aT0}, 0xff800000
    v_mov_b32 v{aT1}, 0xff800000
    s_mov_b32 s51, 8
La_maxloop:
    ds_read2st64_b64 {V(KL,4)}, v{vKL} offset0:0 offset1:1
    """)
    for j in range(4):
        A(f"""
        ds_read2st64_b64 {V(KB[0],4)}, v{vKM} offset0:{2*j} offset1:{2*j+1}
        s_waitcnt lgkmcnt(0)
        {m16(SA, KB[0], Q1A, 0)}
        {m16(SB, KB[0], Q1B, 0)}
        {m8(SA, KL+2*(j>>1), Q2A+2*(j&1))}
        {m8(SB, KL+2*(j>>1), Q2B+2*(j&1))}
        s_nop 11
        """)
        maxtree(A, aT0, SA, True)
        maxtree(A, aT1, SB, True)
    A(f"""
    v_add_u32 v{vKM}, 8192, v{vKM}
    v_add_u32 v{vKL}, 2048, v{vKL}
    s_sub_u32 s51, s51, 1
    s_cmp_lg_u32 s51, 0
    s_cbranch_scc1 La_maxloop
    v_mov_b32 v{aT2}, v{aT0}
    v_mov_b32 v{aT3}, v{aT1}
    s_lshl_b32 s25, s16, 8
    s_xor_b32 s27, s25, 1024
    v_permlane32_swap_b32 v{aT0}, v{aT2}
    v_permlane32_swap_b32 v{aT1}, v{aT3}
    v_and_b32 v{vKM}, 31, v0
    v_lshlrev_b32 v{vKM}, 2, v{vKM}
    v_add_u32 v{vKM}, {XCH}, v{vKM}
    v_max_f32 v{aT0}, v{aT0}, v{aT2}
    v_max_f32 v{aT1}, v{aT1}, v{aT3}
    v_add_u32 v{vKL}, s25, v{vKM}
    v_add_u32 v{vKM}, s27, v{vKM}
    ds_write2_b32 v{vKL}, v{aT0}, v{aT1} offset0:0 offset1:32
    s_waitcnt lgkmcnt(0)
    s_barrier
    ds_read2_b32 {V(PA,2)}, v{vKM} offset0:32 offset1:0
    s_waitcnt lgkmcnt(0)
    v_max_f32 v{aT0}, v{aT0}, v{PA}
    v_max_f32 v{aT1}, v{aT1}, v{PA+1}
    """)
    zero_acc(A)
    A("s_branch La_setm")
XO = 122880

import k3
def gen_p3(g):
    A = g.A
    BW, ACC_, AF = 40, 184, 16
    A(f"""
Lp3:
    s_and_b32 s19, s2, 7
    s_lshr_b32 s20, s2, 3
    s_cmp_ge_u32 s20, 24
    s_cbranch_scc1 Lp3_s3
    s_and_b32 s17, s20, 3
    s_lshl_b32 s19, s19, 2
    s_add_u32 s17, s17, s19            ; tb
    s_lshr_b32 s18, s20, 2             ; ng
    """)
    g.srd(8, pWO, WOB)
    for i in range(3):
        A(f"""
        v_add_u32 v1, {64*i}, v0
        v_mul_u32_u24 v2, 5462, v1
        v_lshrrev_b32 v2, 16, v2
        v_mul_u32_u24 v3, 12, v2
        v_sub_u32 v1, v1, v3
        v_mul_u32_u24 v2, 1152, v2
        v_lshl_add_u32 v{4+i}, v1, 4, v2
        """)
    A(f"""
    v_subrev_u32 v5, 1024, v5
    v_subrev_u32 v6, 2048, v6
    s_mul_i32 s20, s18, 192
    s_mul_i32 s21, s16, {16*1152}
    s_add_u32 s20, s20, s21
    s_mul_i32 s21, s16, 3072
    s_mov_b32 s22, s16
Lo_wo:
    s_mov_b32 m0, s21
    s_add_u32 s22, s22, 8
    buffer_load_dwordx4 v4, s[8:11], s20 offen lds
    buffer_load_dwordx4 v5, s[8:11], s20 offen offset:1024 lds
    buffer_load_dwordx4 v6, s[8:11], s20 offen offset:2048 lds
    s_add_u32 s20, s20, {8*16*1152}
    s_add_u32 s21, s21, {8*3072}
    s_cmp_lt_u32 s22, 16
    s_cbranch_scc1 Lo_wo
    s_cmp_ge_u32 s22, 24
    s_cbranch_scc1 Lo_wo2
    s_waitcnt vmcnt(6)
    s_barrier
    """)
    g.stamp(11)
    A("s_cmp_lg_u32 s16, 7\ns_cbranch_scc1 Lo_wo2")
    g.signal("s51", 14)
    A(f"""
Lo_wo2:
    s_cmp_lt_u32 s22, 36
    s_cbranch_scc1 Lo_wo
    s_and_b32 s23, s16, 1
    s_lshr_b32 s24, s16, 1
    v_lshrrev_b32 v1, 5, v0
    v_bfe_u32 v2, v0, 2, 2
    v_bfe_u32 v3, v0, 4, 1
    v_lshlrev_b32 v3, 5, v3
    v_and_b32 v7, 3, v0
    v_lshl_add_u32 v3, v7, 3, v3
    s_lshl_b32 s25, s24, 6
    v_add_u32 v3, s25, v3
    v_lshl_add_u32 v7, v1, 2, v2
    v_mul_u32_u24 v7, 192, v7
    v_add_u32 v8, v7, v3
    v_add_u32 v9, {16*18*192}, v8
    v_mul_u32_u24 v7, 72, v1
    v_lshrrev_b32 v10, 1, v2
    v_mul_u32_u24 v10, 18, v10
    v_add_u32 v7, v7, v10
    v_and_b32 v10, 1, v2
    v_add3_u32 v7, v7, v10, 16
    v_mul_u32_u24 v7, 192, v7
    v_add_u32 v10, v7, v3
    v_add_u32 v11, {288*192}, v10
    v_lshlrev_b32 v12, 4, v0
    """)
    g.srd(44, pOUT, OUTB)
    A(f"""
    s_waitcnt vmcnt(0)
    s_barrier
    s_cmp_ge_u32 s16, 6
    s_cbranch_scc1 Lo_nopre
    """)
    for s_ in range(36):
        for e in range(2):
            if s_ < 32: base, off = (8, (18*s_ + 8*e)*192) if s_ < 16 else (9, (18*(s_-16) + 8*e)*192)
            else: base, off = (10 + ((s_-32) >> 1), (144*((s_-32) & 1) + 36*e)*192)
            A(f"ds_read_b64_tr_b16 {V(BW+4*s_+2*e,2)}, v{base} offset:{off}")
        if s_ % 6 == 5: A("s_waitcnt lgkmcnt(4)")
    A("Lo_nopre:")
    for i in range(16): A(f"v_mov_b32 v{ACC_+i}, 0")
    TR = 81920
    A(f"""
    s_mul_i32 s20, s17, {2*36*1024}
    s_add_u32 s20, s20, {OF}
    s_mul_i32 s21, s23, {36*1024}
    s_add_u32 s20, s20, s21
    s_lshl_b32 s21, s24, 10
    s_add_u32 s20, s20, s21
    s_lshl_b32 s21, s23, 10
    v_add_u32 v13, s21, v12
    v_and_b32 v1, 31, v0
    v_lshlrev_b32 v1, 2, v1
    v_lshrrev_b32 v2, 5, v0
    v_lshl_add_u32 v1, v2, 9, v1
    s_add_u32 s21, s21, 65536
    v_add_u32 v201, s21, v1
    v_add_u32 v202, 2048, v201
    v_add_u32 v203, 4096, v201
    v_add_u32 v204, 6144, v201
    v_and_b32 v1, 31, v0
    s_lshl_b32 s21, s23, 5
    v_add_u32 v1, s21, v1
    v_mul_u32_u24 v1, 208, v1
    v_lshrrev_b32 v2, 5, v0
    v_lshl_add_u32 v1, v2, 3, v1
    s_lshl_b32 s21, s24, 6
    s_add_u32 s21, s21, {TR}
    v_add_u32 v200, s21, v1
    s_mul_i32 s26, s17, {64*2304}
    s_mul_i32 s22, s18, 192
    s_add_u32 s26, s26, s22
    s_lshl_b32 s22, s16, 7
    """)
    for i in range(2):
        A(f"""
        v_add_u32 v1, s22, v0
        v_add_u32 v1, {64*i}, v1
        v_mul_u32_u24 v2, 5462, v1
        v_lshrrev_b32 v2, 16, v2
        v_mul_u32_u24 v3, 12, v2
        v_sub_u32 v1, v1, v3
        v_lshlrev_b32 v1, 4, v1
        v_mul_u32_u24 v3, 208, v2
        v_add_u32 v{4+i}, v3, v1
        v_add_u32 v{4+i}, {TR}, v{4+i}
        v_mul_u32_u24 v3, 2304, v2
        v_add_u32 v{6+i}, v3, v1
        """)
    A("s_lshl_b32 s21, s16, 10\ns_waitcnt lgkmcnt(0)")
    g.stamp(12)
    A("s_cmp_lg_u32 s16, 7\ns_cbranch_scc1 Lp3_h\ns_add_u32 s25, s19, 32")
    g.poll("s25", 4, 8, 16)
    A("Lp3_h:\ns_barrier")
    g.stamp(13)
    for rr in range(9):
        A(f"""
        s_mov_b32 m0, s21
        s_add_u32 s21, s21, 8192
        buffer_load_dwordx4 v12, s[12:15], s20 offen lds {SC}
        s_add_u32 s20, s20, 4096
        """)
    for c in range(3):
        A(f"s_waitcnt vmcnt({6-3*c})\ns_barrier")
        if c == 0: A(f"s_cmp_ge_u32 s16, 6\ns_cbranch_scc1 Lo_idle")
        if c == 2: A(f"v_add_u32 v13, 49152, v13")
        for half in range(2):
            for i in range(6):
                s_ = 12*c + 6*half + i
                off = 2048*s_ - (49152 if c == 2 else 0)
                if s_ < 32: A(f"ds_read_b128 {V(AF+4*i,4)}, v13 offset:{off}")
                else:
                    A(f"ds_read2_b32 {V(AF+4*i,2)}, v{201+s_-32} offset0:0 offset1:32")
                    A(f"ds_read2_b32 {V(AF+4*i+2,2)}, v{201+s_-32} offset0:64 offset1:96")
            for i in range(6):
                s_ = 12*c + 6*half + i
                last = 12*c + 6*half + 5
                A(f"s_waitcnt lgkmcnt({sum(1 if x < 32 else 2 for x in range(s_+1, last+1))})")
                A(f"v_mfma_f32_32x32x16_bf16 {V(ACC_,16)}, {V(BW+4*s_,4)}, {V(AF+4*i,4)}, {V(ACC_,16)}")
    g.stamp(14)
    A("s_nop 11")
    for q in range(4):
        A(f"""
        v_cvt_pk_bf16_f32 v{AF+2*q}, v{ACC_+4*q}, v{ACC_+4*q+1}
        v_cvt_pk_bf16_f32 v{AF+2*q+1}, v{ACC_+4*q+2}, v{ACC_+4*q+3}
        ds_write_b64 v200, {V(AF+2*q,2)} offset:{16*q}
        """)
    A(f"""
    s_waitcnt lgkmcnt(0)
    s_barrier
    ds_read_b128 {V(AF,4)}, v4
    ds_read_b128 {V(AF+4,4)}, v5
    s_waitcnt lgkmcnt(1)
    buffer_store_dwordx4 {V(AF,4)}, v6, s[44:47], s26 offen
    s_waitcnt lgkmcnt(0)
    buffer_store_dwordx4 {V(AF+4,4)}, v7, s[44:47], s26 offen
    s_branch Lfin
Lo_idle:
    s_waitcnt vmcnt(3)
    s_barrier
    s_waitcnt vmcnt(0)
    s_barrier
    s_branch Lfin
Lp3_s3:
    s_sub_u32 s20, s20, 24
    s_lshl_b32 s17, s19, 3
    s_add_u32 s17, s17, s20
    s_mov_b64 s[6:7], s[{pOUT}:{pOUT+1}]
    s_mov_b64 s[48:49], s[{pWS}:{pWS+1}]
    s_mov_b32 s30, s51
    s_mov_b64 s[50:51], s[{pQ}:{pQ+1}]
    """)
    g.poll(16, 16, 16, 16)
    A("s_barrier")
    g.stamp(11)
    A("s_cmp_lg_u32 s16, 7\ns_cbranch_scc1 Ls3_go")
    g.signal("s30", 14)
    A("s_waitcnt vmcnt(0)\nLs3_go:")
    k3.gen_stage3(A, "Ls3", False, SC)
    A("Lfin:")
    g.end()

def gen(name, dbg=False):
    g = G(dbg); A = g.A
    A("Lcode_begin:")
    A(f"""
    s_cmp_ge_u32 s2, 256
    s_cbranch_scc1 Lend
    s_load_dwordx16 s[64:79], s[0:1], 0
    s_load_dwordx8 s[80:87], s[0:1], 64
    v_lshrrev_b32 v1, 6, v0
    v_and_b32 v0, 63, v0
    v_readfirstlane_b32 s16, v1
    """)
    if dbg: A(f"v_mov_b32 v{vST}, 0")
    g.stamp(0)
    A(f"""
    s_lshl_b32 s3, s16, 2
    s_add_u32 s3, s3, {SY}
    s_and_b32 s94, s3, {0xffffffff & ~15}
    s_cmp_ge_u32 s2, 224
    s_cbranch_scc1 Ls1
    """)
    gen_gemm(g)
    A("Ls1:")
    gen_stage1(g)
    gen_attn(g)
    gen_p3(g)
    A("Lend:\ns_endpgm\nLcode_end:")
    return A.text()

if __name__ == "__main__":
    import sys
    out = sys.argv[1]; dbg = len(sys.argv) > 2 and sys.argv[2] == "dbg"
    name = "concat_heads__softmax_full_mha__ssm_conv_h3__prompt_kernel"
    HDR = open("concat_heads__softmax_full_mha__ssm_conv_h3__prompt.s.ref").read().split("; Override launch")[0]
    s = HDR
    if (dbg and not os.environ.get('AMP')) or 'list' in EXP: s += f"; @launch kernel={name} grid=(256,1,1) block=(512,1,1) lds={LDS_BYTES}\n"
    else: s += f"; @launch grid=(256,1,1) block=(512,1,1) lds={LDS_BYTES}\n"
    s += '.amdgcn_target "amdgcn-amd-amdhsa--gfx950"\n.text\n' + kernel_head(name) + gen(name, dbg)
    s += '.section .rodata,"a"\n' + kernel_desc(name, NVGPR, 102)
    open(out, "w").write(s)
```

```python
import os, struct, math
from asmlib import *
from layout import *
import kconv
EXP = os.environ.get('FEXP', '').split(',')
def opt(name, default): return int(os.environ.get(name, default))

CS_BITS = struct.unpack("<I", struct.pack("<f", math.log2(math.e)/math.sqrt(18)))[0]
XB, WB, OUTB, WOB = 2048*1152, 576*3456, 2048*2304, 576*1152
NVGPR = 248
LDS_BYTES = 163840
vST = 215
pX, pW, pWO, pQ, pK, pV, pSH, pH, pD, pOUT, pDBG, pWS = [64+2*i for i in range(12)]
WIN = 65536 + VSZ + 16384
CONST = WIN
UC = WIN + 4352
XCH = WIN + 6144
SY = WIN + 5376
SC = "sc1"
NTG = 'nt' if 'ntg' in EXP else ''
NTB = 'nt' if 'ntb' in EXP else ''
SPIN = 200000
NREP = opt('NREP', 8)

class G:
    def __init__(self, dbg):
        self.A = Asm(); self.dbg = dbg; self.n = 0
    def lab(self, p="L"):
        self.n += 1; return f"{p}{self.n}"
    def stamp(self, i):
        if self.dbg:
            self.A(f"""
            s_memrealtime s[88:89]
            s_memtime s[90:91]
            s_waitcnt lgkmcnt(0)
            v_writelane_b32 v{vST}, s88, {i}
            v_writelane_b32 v{vST}, s90, {32+i}
            """)
    def srd(self, d, p, n):
        self.A(f"s_mov_b32 s{d}, s{p}\ns_mov_b32 s{d+1}, s{p+1}\ns_mov_b32 s{d+2}, {n}\ns_mov_b32 s{d+3}, 0x20000")
    def end(self):
        A = self.A
        if self.dbg:
            A("s_mov_b64 exec, -1\ns_waitcnt vmcnt(0)")
            self.stamp(31)
            A(f"""
            s_lshl_b32 s25, s2, 3
            s_add_u32 s25, s25, s16
            s_lshl_b32 s25, s25, 8
            s_add_u32 s25, s25, {STAMP}
            v_lshlrev_b32 v1, 2, v0
            buffer_store_dword v{vST}, v1, s[12:15], s25 offen
            s_add_u32 s25, s25, {2048*256}
            buffer_store_dword v214, v1, s[12:15], s25 offen
            """)
        amp = os.environ.get('AMP')
        if self.dbg and amp:
            wg, w, i, j = [int(x) for x in amp.split(',')]
            A(f"""
            s_cmp_lg_u32 s2, {wg}
            s_cbranch_scc1 Lam_e
            s_cmp_lg_u32 s16, {w}
            s_cbranch_scc1 Lam_e
            v_readlane_b32 s40, v{vST}, {i}
            v_readlane_b32 s41, v{vST}, {j}
            s_memrealtime s[42:43]
            s_nop 3
            s_sub_u32 s41, s41, s40
            s_min_u32 s41, s41, 10000
            s_lshl_b32 s41, s41, 3
            s_add_u32 s41, s41, {os.environ.get('AMPC', '0')}
            s_waitcnt lgkmcnt(0)
Lam_l:
            s_memrealtime s[44:45]
            s_waitcnt lgkmcnt(0)
            s_sub_u32 s44, s44, s42
            s_cmp_lt_u32 s44, s41
            s_cbranch_scc1 Lam_l
Lam_e:
            """)
        dd = os.environ.get('DD')
        if self.dbg and dd:
            wg, w, *idx = [int(x) for x in dd.split(',')]
            A(f"""
            s_cmp_lg_u32 s2, {wg}
            s_cbranch_scc1 Ldd_e
            s_cmp_lg_u32 s16, {w}
            s_cbranch_scc1 Ldd_e
            v_readlane_b32 s40, v{vST}, 0
            v_mov_b32 v2, 0
            """)
            for k, i in enumerate(idx):
                A(f"""
                v_readlane_b32 s41, v{vST}, {i}
                s_nop 3
                s_sub_u32 s41, s41, s40
                v_mov_b32 v3, s41
                global_store_dword v2, v3, s[{pDBG}:{pDBG+1}] offset:{32+4*k}
                """)
            A("Ldd_e:")
        A("s_endpgm")
    def post(self, val, t):
        self.A(f"""
        v_mov_b32 v{t}, s3
        v_mov_b32 v{t+1}, {val}
        ds_write_b32 v{t}, v{t+1}
        """)
    def wait_words(self, addr, val, t, n=4, sl=1):
        l = self.lab("Lw"); d = self.lab("Ld")
        rd = f"ds_read_b128 {V(t,4)}, v{t+4}" if n == 4 else f"ds_read_b32 v{t}, v{t+4}"
        mn = f"v_min_u32 v{t}, v{t}, v{t+1}\nv_min3_u32 v{t}, v{t}, v{t+2}, v{t+3}\ns_nop 0" if n == 4 else ""
        self.A(f"""
        v_mov_b32 v{t+4}, {addr}
        s_mov_b32 s93, {SPIN}
{l}:
        {rd}
        s_waitcnt lgkmcnt(0)
        {mn}
        v_readfirstlane_b32 s92, v{t}
        s_cmp_ge_u32 s92, {val}
        s_cbranch_scc1 {d}
        s_sleep {sl}
        s_sub_u32 s93, s93, 1
        s_cmp_lg_u32 s93, 0
        s_cbranch_scc1 {l}
{d}:
        """)
    def gsync(self, val, t):
        self.post(val, t)
        self.wait_words("s94", val, t)
    def ready(self, t):
        l = self.lab("Lr"); d = self.lab("Ld")
        self.A(f"""
        v_and_b32 v{t+1}, {NREP-1}, v0
        v_lshlrev_b32 v{t+1}, 2, v{t+1}
        s_mov_b32 s93, {SPIN}
{l}:
        global_load_dword v{t}, v{t+1}, s[{pDBG}:{pDBG+1}] {SC}
        s_waitcnt vmcnt(0)
        v_cmp_eq_u32 vcc, 0, v{t}
        s_nop 3
        s_cmp_eq_u64 vcc, 0
        s_cbranch_scc1 {d}
        s_sleep 2
        s_sub_u32 s93, s93, 1
        s_cmp_lg_u32 s93, 0
        s_cbranch_scc1 {l}
{d}:
        """)
    def signal(self, sidx, t):
        self.A(f"""
        s_lshl_b32 s92, {sidx}, 8
        s_add_u32 s92, s92, {CNT}
        v_lshlrev_b32 v{t}, 15, v0
        v_mov_b32 v{t+1}, 1
        s_mov_b64 exec, {(1 << NREP) - 1}
        buffer_atomic_add v{t+1}, v{t}, s[12:15], s92 offen {SC}
        s_mov_b64 exec, -1
        """)
    def poll(self, first, n, target, t, sl=None):
        l = self.lab("Lp"); d = self.lab("Ld")
        self.A(f"""
        v_min_u32 v{t+1}, {n-1}, v0
        v_add_u32 v{t+1}, {first}, v{t+1}
        v_lshlrev_b32 v{t+1}, 8, v{t+1}
        s_mov_b32 s93, {SPIN}
        s_and_b32 s92, s2, {NREP-1}
        s_lshl_b32 s92, s92, 15
        s_add_u32 s92, s92, {CNT}
        s_mov_b64 exec, {(1 << n) - 1}
{l}:
        buffer_load_dword v{t}, v{t+1}, s[12:15], s92 offen {SC}
        s_waitcnt vmcnt(0)
        v_cmp_le_u32 vcc, {target}, v{t}
        s_nop 3
        s_cmp_eq_u64 vcc, exec
        s_cbranch_scc1 {d}
        s_sleep {sl or opt('PSLEEP', 2)}
        s_sub_u32 s93, s93, 1
        s_cmp_lg_u32 s93, 0
        s_cbranch_scc1 {l}
{d}:
        s_mov_b64 exec, -1
        """)

vT0, vT1, vT2, vT3, vTok, vHf = 1, 2, 3, 4, 5, 6
vXb, vWb, vX, vW, vEA, FR, ACC, PK = 8, 12, 14, 18, 20, 36, 68, 132
RING = 98304
def XF(b, i): return FR + 16*b + 4*i
def WF(b, j): return FR + 16*b + 8 + 4*j
def acc(i, j): return ACC + 16*(2*i + j)
def g_reads(b, s):
    return [f"ds_read_b128 {V(XF(b,0),4)}, v{vX+s}",
            f"ds_read_b64_tr_b16 {V(WF(b,0),2)}, v{vW} offset:{16384 + 4096*s}",
            f"ds_read_b64_tr_b16 {V(WF(b,0)+2,2)}, v{vW} offset:{16384 + 4096*s + 1024}",
            f"ds_read_b64_tr_b16 {V(WF(b,1),2)}, v{vW+1} offset:{16384 + 4096*s}",
            f"ds_read_b64_tr_b16 {V(WF(b,1)+2,2)}, v{vW+1} offset:{16384 + 4096*s + 1024}",
            f"ds_read_b128 {V(XF(b,1),4)}, v{vX+s} offset:4096"]
def g_mf(b, i, j, vtype):
    a, bb = (XF(b,i), WF(b,j)) if vtype else (WF(b,j), XF(b,i))
    return f"v_mfma_f32_32x32x16_bf16 {V(acc(i,j),16)}, {V(a,4)}, {V(bb,4)}, {V(acc(i,j),16)}"
def g_setaddr(A):
    for s in range(4): A(f"v_add_u32 v{vX+s}, s30, v{vXb+s}")
    for j in range(2): A(f"v_add_u32 v{vW+j}, s30, v{vWb+j}")
def g_loop(g, name, vtype):
    A = g.A
    A("s_mov_b32 s31, 9\ns_barrier")
    for r in g_reads(0, 0): A(r)

    A(f".p2align 6\n{name}:")
    for s in range(4):
        b = s & 1
        A("s_waitcnt lgkmcnt(0)")
        A(g_mf(b, 0, 0, vtype))
        if s < 3:
            rd = g_reads(b ^ 1, s+1)
            for r in rd[:3]: A(r)
            A(g_mf(b, 0, 1, vtype))
            for r in rd[3:]: A(r)
            A(g_mf(b, 1, 0, vtype)); A(g_mf(b, 1, 1, vtype))
        else:
            A(f"""
            s_add_u32 s30, s30, 32768
            s_cmp_eq_u32 s30, {RING}
            s_cselect_b32 s30, 0, s30
            s_sub_u32 s31, s31, 1
            s_cmp_eq_u32 s31, 0
            s_cbranch_scc1 {name}_nb
            s_barrier
{name}_nb:
            """)
            g_setaddr(A)
            A(g_mf(b, 0, 1, vtype))
            rd = g_reads(0, 0)
            for r in rd[:3]: A(r)
            A(g_mf(b, 1, 0, vtype))
            for r in rd[3:]: A(r)
            A(g_mf(b, 1, 1, vtype))
    A(f"s_cbranch_scc0 {name}")

def ld_chunk(g, skip=True):
    A = g.A; l = g.lab("Lk")
    if skip: A(f"s_cmp_lg_u32 s95, 0\ns_cbranch_scc1 {l}")
    A(f"""
    s_mov_b32 m0, s42
    s_add_u32 s26, s40, 8192
    buffer_load_dwordx4 v8, s[8:11], s40 offen lds
    s_add_u32 s27, s40, 16384
    buffer_load_dwordx4 v9, s[8:11], s26 offen offset:1024 lds
    s_add_u32 s26, s40, 24576
    buffer_load_dwordx4 v8, s[8:11], s27 offen offset:2048 lds
    s_add_u32 s28, s42, 16384
    buffer_load_dwordx4 v9, s[8:11], s26 offen offset:3072 lds
    s_mov_b32 m0, s28
    s_add_u32 s26, s41, {13824-1024}
    buffer_load_dwordx4 v10, s[44:47], s41 offen lds
    s_add_u32 s27, s41, {2*(13824-1024)}
    buffer_load_dwordx4 v10, s[44:47], s26 offen offset:1024 lds
    s_add_u32 s26, s41, {3*(13824-1024)}
    buffer_load_dwordx4 v10, s[44:47], s27 offen offset:2048 lds
    s_add_u32 s40, s40, 128
    buffer_load_dwordx4 v10, s[44:47], s26 offen offset:3072 lds
    s_add_u32 s41, s41, {64*3456}
    s_add_u32 s24, s24, 1
    s_cmp_eq_u32 s24, 9
    s_cselect_b32 s26, 1152, 0
    s_cselect_b32 s27, {WB}, 0
    s_sub_u32 s40, s40, s26
    s_sub_u32 s41, s41, s27
    s_add_u32 s42, s42, 32768
    s_cmp_ge_u32 s42, {RING}
    s_cselect_b32 s26, {RING}, 0
    s_sub_u32 s42, s42, s26
{l}:
    """)

def gen_gemm(g):
    A = g.A
    ROT = opt('ROT', 1)
    A(f"""
    s_and_b32 s17, s2, 7               ; xcd
    s_lshr_b32 s18, s2, 3              ; idx 0..27
    s_and_b32 s19, s17, 3
    s_lshl_b32 s19, s19, 2
    s_and_b32 s20, s18, 3
    s_add_u32 s19, s19, s20            ; mb
    s_lshr_b32 s21, s17, 2
    s_mul_i32 s21, s21, 7
    s_lshr_b32 s22, s18, 2
    s_add_u32 s21, s21, s22            ; ng
    s_cmp_lt_u32 s16, 4
    s_cbranch_scc1 Lg_compute
    s_and_b32 s23, s16, 3              ; u
    """)
    if ROT:
        A("""
        s_mul_i32 s24, s20, 5
        s_lshr_b32 s24, s24, 1
        s_add_u32 s24, s24, s22
        s_cmp_ge_u32 s24, 9
        s_cselect_b32 s25, 9, 0
        s_sub_u32 s24, s24, s25
        """)
    else: A("s_mov_b32 s24, 0")
    A(f"""
    s_lshl_b32 s25, s19, 7
    s_lshl_b32 s26, s23, 5
    s_add_u32 s25, s25, s26
    s_mul_i32 s25, s25, 1152
    s_lshl_b32 s26, s24, 7
    s_add_u32 s40, s25, s26            ; sX
    s_lshl_b32 s25, s24, 2
    s_add_u32 s25, s25, s23
    s_mul_i32 s25, s25, {16*3456}
    s_lshl_b32 s26, s21, 8
    s_add_u32 s41, s25, s26            ; sW
    s_lshl_b32 s42, s23, 12
    v_lshrrev_b32 v{vT0}, 3, v0
    v_mul_u32_u24 v{vT0}, 1152, v{vT0}
    v_lshrrev_b32 v{vT1}, 4, v0
    v_and_b32 v{vT2}, 7, v0
    v_xor_b32 v{vT2}, v{vT2}, v{vT1}
    v_lshl_add_u32 v8, v{vT2}, 4, v{vT0}
    v_xor_b32 v{vT2}, 4, v{vT2}
    v_lshl_add_u32 v9, v{vT2}, 4, v{vT0}       ; odd i
    v_mul_u32_u24 v{vT0}, 3456, v{vT1}
    v_and_b32 v{vT2}, 15, v0
    v_lshlrev_b32 v{vT1}, 2, v{vT1}
    v_xor_b32 v{vT2}, v{vT2}, v{vT1}
    v_lshl_add_u32 v10, v{vT2}, 4, v{vT0}      ; W addr
    s_mov_b32 s95, 0
    s_setprio {opt('LPRIO', 0)}
    s_waitcnt lgkmcnt(0)
    """)
    g.srd(8, pX, XB); g.srd(44, pW, WB)
    A(f"""
    s_mov_b32 s31, 0
Lld:
    s_cmp_lt_u32 s31, 2
    s_cbranch_scc1 Lld_go
    s_waitcnt vmcnt(8)
    s_barrier
Lld_go:
    """)
    ld_chunk(g, False)
    A(f"""
    s_add_u32 s31, s31, 1
    s_cmp_lt_u32 s31, 9
    s_cbranch_scc1 Lld
    s_waitcnt vmcnt(8)
    s_barrier
    """)
    g.srd(12, pWS, WS_END)
    A(f"""
    s_waitcnt vmcnt(0)
    s_barrier
    s_branch Lh_start
Lg_compute:
    s_and_b32 s23, s16, 1              ; wm
    s_lshr_b32 s24, s16, 1             ; wn
    v_and_b32 v{vTok}, 31, v0
    v_lshrrev_b32 v{vHf}, 5, v0
    s_lshl_b32 s25, s23, 13
    v_lshlrev_b32 v{vT0}, 7, v{vTok}
    v_add_u32 v{vT0}, s25, v{vT0}
    v_bfe_u32 v{vT1}, v0, 1, 3
    v_xor_b32 v{vT1}, v{vT1}, v{vHf}
    """)
    for s in range(4):
        A(f"v_xor_b32 v{vT2}, {2*s}, v{vT1}\nv_lshl_add_u32 v{vXb+s}, v{vT2}, 4, v{vT0}")
    A(f"""
    v_bfe_u32 v{vT0}, v0, 2, 2
    v_lshl_add_u32 v{vT1}, v{vHf}, 3, v{vT0}
    v_lshlrev_b32 v{vT1}, 8, v{vT1}
    v_bfe_u32 v{vT2}, v0, 4, 1
    v_lshl_add_u32 v{vT1}, v{vT2}, 5, v{vT1}
    v_and_b32 v{vT2}, 3, v0
    v_lshl_add_u32 v{vT1}, v{vT2}, 3, v{vT1}
    s_lshl_b32 s25, s24, 1
    v_xor_b32 v{vT2}, s25, v{vT0}
    v_lshl_add_u32 v{vWb}, v{vT2}, 6, v{vT1}
    v_xor_b32 v{vT2}, 1, v{vT2}
    v_lshl_add_u32 v{vWb+1}, v{vT2}, 6, v{vT1}
    s_mov_b32 s30, 0
    s_waitcnt lgkmcnt(0)
    """)
    g.srd(12, pWS, WS_END)
    gen_init_misc(g, PK+8)
    g_setaddr(A)
    for i in range(64): A(f"v_mov_b32 v{ACC+i}, 0")
    A(f"""
    s_lshl_b32 s26, s19, 2
    s_lshl_b32 s27, s23, 1
    s_add_u32 s26, s26, s27            ; T0
    s_waitcnt lgkmcnt(0)
    s_cmp_ge_u32 s21, 9
    s_cbranch_scc1 Lg_vtype
    s_lshl_b32 s27, s21, 5
    s_lshl_b32 s28, s24, 4
    s_add_u32 s27, s27, s28
    v_add_u32 v{vT0}, s27, v{vHf}      ; G0
    s_lshl_b32 s28, s26, 10
    s_lshl_b32 s29, s26, 8
    s_add_u32 s29, s29, {LEFT}
    v_lshlrev_b32 v{vTok}, 3, v{vTok}
    v_add_u32 v{PK}, s29, v{vTok}
    v_add_u32 v{PK+1}, s28, v{vTok}
    v_add_u32 v{PK+2}, {MB-1280}, v{PK+1}
    v_mov_b32 v{PK+3}, 256
    v_mov_b32 v{PK+4}, 1024
    s_mov_b32 s32, {PAIR}
    """)
    for jg in range(8):
        A(f"""
        v_add_u32 v{vT1}, {8*(jg>>2) + 2*(jg&3)}, v{vT0}
        v_mul_u32_u24 v{vT2}, 7282, v{vT1}
        v_lshrrev_b32 v{vT2}, 16, v{vT2}
        v_mul_u32_u24 v{vT3}, 9, v{vT2}
        v_sub_u32 v{vT1}, v{vT1}, v{vT3}
        v_cmp_lt_u32 vcc, 4, v{vT1}
        v_cmp_eq_u32 s[34:35], 4, v{vT1}
        v_mul_u32_u24 v{vT2}, s32, v{vT2}
        v_cndmask_b32 v{vT3}, v{PK+1}, v{PK+2}, vcc
        v_lshl_add_u32 v{vT3}, v{vT1}, 8, v{vT3}
        v_cndmask_b32 v{vT3}, v{vT3}, v{PK}, s[34:35]
        v_cndmask_b32 v{vT1}, v{PK+4}, v{PK+3}, s[34:35]
        v_add_u32 v{vEA+jg}, v{vT2}, v{vT3}
        v_add_u32 v{vEA+8+jg}, v{vEA+jg}, v{vT1}
        """)
    g.stamp(1)
    g_loop(g, "Lg_qk", False)
    g.stamp(2)
    A(f"""
    s_lshl_b32 s27, s21, 2
    s_lshl_b32 s28, s24, 1
    s_add_u32 s27, s27, s28
    s_cmp_lt_u32 s27, 18
    s_cselect_b32 s28, {CS_BITS}, 1.0
    s_nop 7
    """)
    n = 0
    for i in range(2):
        for j in range(2):
            for q in range(4):
                a = acc(i, j) + 4*q
                p = PK + 2*(n % 8); n += 1
                for e in range(4): A(f"v_mul_f32 v{a+e}, s28, v{a+e}")
                A(f"v_cvt_pk_bf16_f32 v{p}, v{a}, v{a+1}\nv_cvt_pk_bf16_f32 v{p+1}, v{a+2}, v{a+3}")
                A(f"buffer_store_dwordx2 {V(p,2)}, v{vEA+8*i+4*j+q}, s[12:15], 0 offen {SC}")
    A(f"""
    s_branch Lg_done
Lg_vtype:
    s_sub_u32 s27, s21, 9
    s_lshl_b32 s27, s27, 7
    s_lshl_b32 s28, s24, 6
    s_add_u32 s27, s27, s28
    s_mul_i32 s28, s26, 36864
    s_add_u32 s28, s28, {VG}
    v_mul_u32_u24 v{vT3}, 9216, v{vHf}
    v_add_u32 v{vT0}, s27, v{vTok}
    v_lshl_add_u32 v{vEA}, v{vT0}, 4, v{vT3}
    """)
    g.stamp(1)
    g_loop(g, "Lg_v", True)
    g.stamp(2)
    A(f"""
    s_cmp_ge_u32 s27, 576
    s_cbranch_scc1 Lg_done
    s_nop 7
    """)
    n = 0
    for i in range(2):
        for j in range(2):
            for m in range(2):
                a = acc(i, j) + 8*m
                p = PK + 4*(n % 4); n += 1
                for e in range(4): A(f"v_cvt_pk_bf16_f32 v{p+e}, v{a+2*e}, v{a+2*e+1}")
                A(f"s_add_u32 s29, s28, {i*36864+m*18432}")
                A(f"buffer_store_dwordx4 {V(p,4)}, v{vEA}, s[12:15], s29 offen offset:{512*j} {SC}")
    A(f"""
Lg_done:
    s_setprio 2
    """)
    g.stamp(15)
    A("s_cmp_lg_u32 s16, 0\ns_cbranch_scc1 Lg_d2")
    g.ready(8)
    A("Lg_d2:\ns_waitcnt vmcnt(0) lgkmcnt(0)")
    g.stamp(3)
    g.gsync(5, 8)
    A("s_cmp_lg_u32 s16, 0\ns_cbranch_scc1 Lattn")
    g.stamp(16)
    g.signal("s21", 8)
    if g.dbg: A("s_waitcnt vmcnt(0)")
    g.stamp(17)
    A("s_branch Lattn")

def gen_init_misc(g, t):
    A = g.A
    for i in range(2):
        A(f"""
        s_and_b32 s25, s16, 3
        s_lshl_b32 s25, s25, 7
        s_add_u32 s25, s25, {64*i-14 & 0xffffffff}
        v_add_u32 v{t+4}, s25, v0
        v_mul_u32_u24 v{t+5}, 1821, v{t+4}
        v_lshrrev_b32 v{t+5}, 16, v{t+5}
        v_mul_u32_u24 v{t+5}, 36, v{t+5}
        v_cmp_eq_u32 s[34:35], v{t+5}, v{t+4}
        v_cmp_gt_u32 vcc, {36*8}, v{t+4}
        v_mov_b32 v{t+5}, 0x3f803f80
        v_lshlrev_b32 v{t+4}, 4, v{t+4}
        s_and_b64 vcc, vcc, s[34:35]
        v_add_u32 v{t+4}, {CONST+224}, v{t+4}
        v_cndmask_b32 v{t}, 0, v{t+5}, vcc
        v_cndmask_b32 v{t+1}, 0, v{t+5}, vcc
        v_cndmask_b32 v{t+2}, 0, v{t+5}, vcc
        v_cndmask_b32 v{t+3}, 0, v{t+5}, vcc
        ds_write_b128 v{t+4}, {V(t,4)}
        """)

import k2, k3
from k2 import m16, m8, phase, maxtree
from k2 import vL8, vKM, vKL, vV, vL16, vV0, vVinc, Q1A, Q1B, Q2A, Q2B, NMA, NMB, SA, SB, PA, PB, OA, OB, KB, KL, VB
aT0, aT1, aT2, aT3 = 5, 6, 7, 8
TMP = 168
vCA, vCR, vOne, vKM0, vKL0, vG0, vG1, vG2 = range(176, 184)
bKG, bVG, b5G, bRD, bTR, bBW, bBR, bUO, bZP, bPG = range(184, 194)
CM = 216
FLAG = SY + 40

def head_params(A):
    A(f"""
    s_and_b32 s17, s2, 7
    s_lshl_b32 s17, s17, 2
    s_bfe_u32 s25, s2, 0x20003
    s_add_u32 s17, s17, s25            ; h
    s_lshr_b32 s18, s2, 5              ; qb
    s_and_b32 s20, s16, 3              ; qg / u
    s_and_b32 s21, s17, 1              ; parity
    s_lshr_b32 s26, s17, 1             ; pair
    v_lshlrev_b32 v{vL16}, 4, v0
    s_mul_i32 s39, s26, {PAIR}
    s_mul_i32 s28, s21, {LEFT}
    s_add_u32 s27, s39, s28
    s_add_u32 s27, s27, {KV}
    s_add_u32 s8, s{pWS}, s27
    s_addc_u32 s9, s{pWS+1}, 0
    s_mov_b32 s10, {WIN}
    s_mov_b32 s11, 0x20000
    s_lshl_b32 s22, s21, 14
    s_add_u32 s23, s22, 65536
    s_cmp_eq_u32 s21, 0
    s_cselect_b32 s24, {LEFT}, 0
    s_lshl_b32 s25, s20, 10
    s_add_u32 s40, s22, s25
    s_add_u32 s41, s23, s25
    s_add_u32 s42, s23, 8192
    s_and_b32 s44, s20, 1
    s_lshl_b32 s44, s44, 10
    s_add_u32 s44, s44, s24
    s_mul_i32 s43, s17, 288
    s_add_u32 s43, s43, {VG}
    s_add_u32 s46, s44, s27
    s_cmp_eq_u32 s20, 0
    s_cselect_b32 s42, s42, s44
    s_cselect_b32 s44, s43, s46
    s_cselect_b32 s45, 9, 2
    s_cselect_b32 s47, 288, 2
    s_cselect_b64 vcc, -1, 0
    s_lshl_b32 s45, s45, 10
    s_lshl_b32 s47, s47, 10
    s_lshl_b32 s25, s20, 6
    s_add_u32 s46, s25, 256
    """)
    for r, base in ((vG0, "s25"), (vG1, "s46"), (vG2, "512")):
        A(f"""
        v_add_u32 v{aT0}, {base}, v0
        v_mul_u32_u24 v{aT2}, 3641, v{aT0}
        v_lshrrev_b32 v{aT2}, 16, v{aT2}
        v_mul_u32_u24 v{aT3}, {9216-288}, v{aT2}
        v_lshl_add_u32 v{r}, v{aT0}, 4, v{aT3}
        """)
    A(f"v_cndmask_b32 v{vG2}, v{vL16}, v{vG2}, vcc")

def dma_skip(A, n):
    A(f"""
    s_add_u32 s40, s40, {(n*8192) & 0xffffffff}
    s_add_u32 s41, s41, {(n*9216) & 0xffffffff}
    s_add_u32 s43, s43, {(n*8*36864) & 0xffffffff}
    s_mul_i32 s25, s45, {n}
    s_add_u32 s42, s42, s25
    s_mul_i32 s25, s47, {n}
    s_add_u32 s44, s44, s25
    """)

def dma_iter(A):
    A(f"""
    s_mov_b32 m0, s40
    s_add_u32 s46, s40, 4096
    buffer_load_dwordx4 v{vL16}, s[8:11], s40 offen lds {SC}
    s_mov_b32 m0, s46
    s_add_u32 s40, s40, 8192
    buffer_load_dwordx4 v{vL16}, s[8:11], s46 offen lds {SC}
    s_mov_b32 m0, s41
    s_add_u32 s46, s41, 4096
    buffer_load_dwordx4 v{vG0}, s[12:15], s43 offen lds {SC}
    s_mov_b32 m0, s46
    s_add_u32 s41, s41, 9216
    buffer_load_dwordx4 v{vG1}, s[12:15], s43 offen lds {SC}
    s_mov_b32 m0, s42
    s_add_u32 s43, s43, {8*36864}
    buffer_load_dwordx4 v{vG2}, s[12:15], s44 offen lds {SC}
    s_add_u32 s42, s42, s45
    s_add_u32 s44, s44, s47
    """)
def dma_n(g, n):
    l = g.lab("Ldm")
    g.A(f"s_mov_b32 s31, {n}\n{l}:")
    dma_iter(g.A)
    g.A(f"s_sub_u32 s31, s31, 1\ns_cmp_lg_u32 s31, 0\ns_cbranch_scc1 {l}")

def avail_add(g, units):
    l = g.lab("Lav")
    g.A(f"""
    s_cmp_lg_u32 s16, 4
    s_cbranch_scc1 {l}
    v_mov_b32 v{TMP}, {units << 8}
    s_mov_b64 exec, 15
    ds_add_u32 v{bPG}, v{TMP}
    s_mov_b64 exec, -1
{l}:
    """)
def wait_progress(g, n, sl=4):
    l = g.lab("Lq"); d = g.lab("Ld")
    g.A(f"""
    s_mov_b32 s93, {SPIN}
{l}:
    ds_read_b32 v{TMP}, v{bPG}
    s_waitcnt lgkmcnt(0)
    v_and_b32 v{TMP}, 0xff, v{TMP}
    v_cmp_gt_u32 vcc, {n}, v{TMP}
    s_nop 3
    s_cmp_eq_u64 vcc, 0
    s_cbranch_scc1 {d}
    s_sleep {sl}
    s_sub_u32 s93, s93, 1
    s_cmp_lg_u32 s93, 0
    s_cbranch_scc1 {l}
{d}:
    """)

def gen_stage1(g):
    A = g.A
    KR, VR, CR, UU, OUT = 40, 60, 68, 84, 136
    T = TMP
    R = kconv.ConvRegs(16)
    A("s_waitcnt lgkmcnt(0)")
    g.srd(12, pWS, WS_END)
    A(f"""
    s_sub_u32 s17, s2, 224
    s_cmp_ge_u32 s16, 4
    s_cbranch_scc1 Lx_h
    s_mov_b32 s95, 1
    s_mov_b32 s18, 8
    s_lshl_b32 s19, s17, 1
    s_add_u32 s19, s19, 512
    s_mov_b32 s96, 0
    s_mov_b32 s97, 24576
    s_mov_b32 s99, 65536
    s_branch Lb_setup
Lx_h:
    s_cmp_ge_u32 s17, {NREP}
    s_cbranch_scc1 Lx_1
    s_cmp_lg_u32 s16, 4
    s_cbranch_scc1 Lx_1
    v_lshlrev_b32 v11, 8, v0
    v_mov_b32 v12, 0
    s_lshl_b32 s25, s17, 15
    s_add_u32 s25, s25, {CNT}
    buffer_store_dword v12, v11, s[12:15], s25 offen {SC}
    s_add_u32 s25, s25, 16384
    s_mov_b64 exec, 0xfffff
    buffer_store_dword v12, v11, s[12:15], s25 offen {SC}
    s_mov_b64 exec, -1
Lx_1:
    s_getpc_b64 s[26:27]
Lpc0:
    s_add_u32 s26, s26, Lcode_begin-Lpc0
    s_addc_u32 s27, s27, -1
    s_and_b32 s25, s16, 3
    s_lshl_b32 s25, s25, 13
    v_lshlrev_b32 v13, 7, v0
    v_add_u32 v13, s25, v13
    v_min_u32 v13, Lcode_end-Lcode_begin-4, v13
    v_mov_b32 v15, s27
    v_add_co_u32 v14, vcc, s26, v13
    s_nop 1
    v_addc_co_u32 v15, vcc, 0, v15, vcc
    global_load_dword v210, v[14:15], off
    """)
    if 'notlb' not in EXP:
        A(f"""
        v_lshlrev_b32 v13, 18, v0
        s_cmp_lg_u32 s16, 5
        s_cbranch_scc1 Lx_t1
        s_mov_b32 s25, {64 << 18}
        buffer_load_dword v211, v13, s[12:15], 0 offen {SC}
        buffer_load_dword v212, v13, s[12:15], s25 offen {SC}
Lx_t1:
        s_cmp_lg_u32 s16, 6
        s_cbranch_scc1 Lx_t2
        s_mov_b64 exec, 0x1ff
        global_load_dword v211, v13, s[{pK}:{pK+1}] {SC}
        global_load_dword v212, v13, s[{pV}:{pV+1}] {SC}
        global_load_dword v213, v13, s[{pH}:{pH+1}] {SC}
        global_load_dword v208, v13, s[{pQ}:{pQ+1}] {SC}
        s_mov_b64 exec, 0x3ffff
        global_load_dword v207, v13, s[{pOUT}:{pOUT+1}] {SC}
        s_mov_b64 exec, 7
        global_load_dword v206, v13, s[{pWO}:{pWO+1}] {SC}
        s_mov_b64 exec, -1
Lx_t2:
        """)
    gen_init_misc(g, 144)
    A(f"""
    s_waitcnt lgkmcnt(0)
    s_barrier
    s_cmp_ge_u32 s17, {NREP}
    s_cbranch_scc1 Lh_start
    s_cmp_lg_u32 s16, 4
    s_cbranch_scc1 Lh_start
    s_lshl_b32 s27, s17, 2
    v_mov_b32 v11, s27
    v_mov_b32 v12, 1
    s_mov_b64 exec, 1
    s_waitcnt vmcnt(1)
    global_store_dword v11, v12, s[{pDBG}:{pDBG+1}] {SC}
    s_mov_b64 exec, -1
Lh_start:
    s_mov_b32 s95, 0
    s_lshr_b32 s17, s2, 3              ; tb
    s_and_b32 s18, s2, 7               ; cb
    s_lshl_b32 s19, s2, 1
    s_bfe_u32 s25, s2, 0x10003
    s_lshl_b32 s96, s25, 14
    s_add_u32 s97, s96, 65536          ; V blocks 0..2
    s_add_u32 s99, s96, {65536+6*9216}
Lb_setup:
    s_and_b32 s23, s16, 3              ; u
    v_and_b32 v{vT0}, 7, v0            ; cc
    v_lshrrev_b32 v{vT1}, 3, v0        ; tg
    s_lshl_b32 s21, s18, 9
    v_lshlrev_b32 v{vT3}, 6, v{vT0}
    """)
    g.srd(4, pSH, 576*8)
    for i in range(4): A(f"buffer_load_dwordx4 {V(CR+4*i,4)}, v{vT3}, s[4:7], s21 offen offset:{16*i}")
    A(f"""
    s_mul_i32 s20, s17, {64*1152}
    s_lshl_b32 s21, s18, 7
    s_add_u32 s20, s20, s21
    v_mul_u32_u24 v{vT2}, 1152, v{vT1}
    v_lshl_add_u32 v{vT2}, v{vT0}, 4, v{vT2}
    v_add_u32 v{vT2}, s20, v{vT2}
    v_add_u32 v{b5G}, {61*1152}, v{vT2}
    s_mul_i32 s20, s23, {8*1152}
    v_add_u32 v{bVG}, s20, v{vT2}
    v_subrev_u32 v{bKG}, {3*1152}, v{bVG}
    v_lshlrev_b32 v{vL16}, 4, v0
    s_add_u32 s28, s97, 9344
    s_lshr_b32 s25, s23, 1
    s_add_u32 s98, s19, s25            ; channel
    s_cmp_eq_u32 s25, 0
    s_cselect_b32 s96, s96, s28
    s_mul_i32 s25, s25, 4672
    s_add_u32 s97, s97, s25
    s_add_u32 s97, s97, 576
    s_lshl_b32 s25, s19, 1
    s_load_dword s100, s[{pD}:{pD+1}], s25
    s_cmp_eq_u32 s95, 1
    s_cbranch_scc1 Lb_load
Lb_setup2:
    v_lshlrev_b32 v{bRD}, 8, v{vT1}
    v_lshl_add_u32 v{bRD}, v{vT0}, 4, v{bRD}
    s_lshl_b32 s25, s23, 11
    s_add_u32 s25, s25, s99
    v_add_u32 v{bRD}, s25, v{bRD}
    v_lshrrev_b32 v{vT2}, 4, v0
    v_and_b32 v{vT3}, 15, v0
    v_lshlrev_b32 v{vT3}, 7, v{vT3}
    v_lshl_add_u32 v{bBW}, v{vT2}, 4, v{vT3}
    v_add_u32 v{bBW}, s25, v{bBW}
    v_add_u32 v{bBR}, s25, v{vL16}
    v_bfe_u32 v{vT3}, v0, 2, 2
    v_lshl_add_u32 v{bTR}, v{vT2}, 3, v{vT3}
    v_lshlrev_b32 v{bTR}, 7, v{bTR}
    v_and_b32 v{vT3}, 3, v0
    v_lshl_add_u32 v{bTR}, v{vT3}, 3, v{bTR}
    v_lshlrev_b32 v{bPG}, 8, v{vT3}
    v_add_u32 v{bPG}, {UC}, v{bPG}
    s_lshl_b32 s25, s23, 5
    s_add_u32 s25, s25, s99
    v_add_u32 v{bTR}, s25, v{bTR}
    v_lshlrev_b32 v{bUO}, 12, v{vT1}
    v_lshl_add_u32 v{bUO}, v{vT0}, 4, v{bUO}
    s_lshl_b32 s22, s18, 2
    s_add_u32 s22, s22, s23
    s_lshl_b32 s22, s22, 16
    s_lshl_b32 s25, s17, 7
    s_add_u32 s22, s22, s25
    s_add_u32 s22, s22, {UT}
    v_add_u32 v{bUO}, s22, v{bUO}
    v_min_u32 v{bZP}, 35, v0
    v_lshlrev_b32 v{bZP}, 4, v{bZP}
    s_sub_u32 s25, s97, 576
    v_add_u32 v{bZP}, s25, v{bZP}
    s_waitcnt lgkmcnt(0)
    """)
    conv_setup(A, R)
    A("s_mov_b32 s29, 0xffff0000\ns_mov_b32 s28, 0xffff\ns_waitcnt vmcnt(0)")
    for c in range(8):
        for j in range(4):
            d, e, src = CM + 8*(c >> 1) + 2*j + (c & 1), c & 1, CR + 2*c + (j >> 1)
            if (j & 1) == e: A(f"v_and_b32 v{d}, {'s29' if e else 's28'}, v{src}")
            elif e: A(f"v_lshlrev_b32 v{d}, 16, v{src}")
            else: A(f"v_lshrrev_b32 v{d}, 16, v{src}")
    A(f"""
    s_cmp_eq_u32 s95, 0
    s_cbranch_scc1 Lh_kv
    s_barrier
    s_branch Lb_s0
Lh_kv:
    """)
    head_params(A)
    dma_skip(A, 1)
    g.wait_words(SY, 9, T, sl=2)
    A(f"s_setprio {opt('CPRIO', 1)}")
    dma_n(g, 2)
    dma_n(g, 3)
    A("s_waitcnt vmcnt(15)")
    g.gsync(1, T)
    avail_add(g, 4)
    A(f"""
Lb_load:
    s_and_b32 s28, s16, 3
    s_lshl_b32 s25, s28, 10
    s_add_u32 s25, s25, s99
    """)
    g.srd(4, pK, XB)
    A(f"""
    s_mov_b32 m0, s25
    s_add_u32 s27, s25, 4096
    buffer_load_dwordx4 v{bKG}, s[4:7], 0 offen {NTB} lds
    s_mov_b32 m0, s27
    v_add_u32 v{bKG}, {32*1152}, v{bKG}
    s_add_u32 s27, s99, 8192
    buffer_load_dwordx4 v{bKG}, s[4:7], 0 offen {NTB} lds
    s_mov_b32 m0, s27
    s_add_u32 s27, s25, 9216
    buffer_load_dwordx4 v{b5G}, s[4:7], 0 offen lds
    s_mov_b32 s4, s{pV}
    s_mov_b32 s5, s{pV+1}
    s_mov_b32 m0, s27
    s_add_u32 s27, s27, 4096
    buffer_load_dwordx4 v{bVG}, s[4:7], 0 offen {NTB} lds
    s_mov_b32 m0, s27
    s_mov_b32 s27, {32*1152}
    buffer_load_dwordx4 v{bVG}, s[4:7], s27 offen {NTB} lds
    s_mov_b32 s4, s{pH}
    s_mov_b32 s5, s{pH+1}
    s_and_b32 s25, s28, 1
    s_lshl_b32 s25, s25, 11
    s_lshl_b32 s27, s98, 12
    s_add_u32 s27, s27, s25
    v_lshlrev_b32 v{T}, 3, v{vL16}
    s_mov_b64 exec, 0xffff
    buffer_load_dword v209, v{T}, s[4:7], s27 offen
    s_mov_b64 exec, -1
    s_cmp_eq_u32 s95, 1
    s_cbranch_scc1 Lb_setup2
    """)
    A("s_waitcnt vmcnt(6)")
    g.post(2, T)
    A("s_cmp_lg_u32 s16, 4\ns_cbranch_scc1 Lb_a6")
    g.wait_words("s94", 2, T)
    avail_add(g, 6)
    A("Lb_a6:\ns_waitcnt vmcnt(1)\nLb_s0:")
    g.gsync(3, T)
    g.stamp(1)
    for n in range(5): A(f"ds_read_b128 {V(KR+4*n,4)}, v{bRD} offset:{128*n}")
    for t in range(2): A(f"ds_read_b128 {V(VR+4*t,4)}, v{bRD} offset:{9216+128*t}")
    A("s_mov_b32 s29, 0xffff0000\ns_waitcnt lgkmcnt(2)")
    for j in range(4):
        for d in range(4):
            for t in range(2):
                for e in range(2):
                    u = UU + 4*d + 2*t + e
                    if j == 0: A(f"v_dot2_f32_bf16 v{u}, v{KR+4*(t+3)+d}, v{CM+8*d+e}, 0")
                    else: A(f"v_dot2c_f32_bf16 v{u}, v{KR+4*(t+3-j)+d}, v{CM+8*d+2*j+e}")
    A("s_waitcnt lgkmcnt(0)")
    for d in range(4):
        for t in range(2):
            x = UU + 16 + 4*d + 2*t
            A(f"v_lshlrev_b32 v{x}, 16, v{VR+4*t+d}\nv_and_b32 v{x+1}, s29, v{VR+4*t+d}")
    for i in range(8): A(f"v_pk_mul_f32 {V(UU+2*i,2)}, {V(UU+2*i,2)}, {V(UU+16+2*i,2)}")
    for d in range(4):
        for t in range(2): A(f"v_cvt_pk_bf16_f32 v{OUT+4*t+d}, v{UU+4*d+2*t}, v{UU+4*d+2*t+1}")
    A(f"""
    ds_write_b128 v{bRD}, {V(OUT,4)} offset:9216
    ds_write_b128 v{bRD}, {V(OUT+4,4)} offset:{9216+128}
    s_waitcnt lgkmcnt(0)
    """)
    g.gsync(4, T)
    for i in range(2):
        A(f"ds_read_b64_tr_b16 {V(OUT+4*i,2)}, v{bTR} offset:{9216+4096*i}")
        A(f"ds_read_b64_tr_b16 {V(OUT+4*i+2,2)}, v{bTR} offset:{9216+4096*i+512}")
    A(f"""
    s_mov_b32 s27, 32768
    s_waitcnt lgkmcnt(0)
    ds_write_b128 v{bBW}, {V(OUT,4)}
    ds_write_b128 v{bBW}, {V(OUT+4,4)} offset:64
    ds_read_b128 {V(OUT+8,4)}, v{bBR}
    ds_read_b128 {V(OUT+12,4)}, v{bBR} offset:1024
    s_waitcnt lgkmcnt(0)
    buffer_store_dwordx4 {V(OUT+8,4)}, v{bUO}, s[12:15], 0 offen {SC}
    buffer_store_dwordx4 {V(OUT+12,4)}, v{bUO}, s[12:15], s27 offen {SC}
    """)
    g.stamp(2)
    A("s_cmp_lg_u32 s16, 0\ns_cbranch_scc1 Lb_nr")
    g.ready(T)
    A("Lb_nr:\ns_waitcnt vmcnt(0)")
    g.stamp(3)
    g.gsync(5, T)
    A("s_cmp_eq_u32 s95, 1\ns_cbranch_scc1 Lc_x")
    A("s_cmp_lg_u32 s16, 4\ns_cbranch_scc1 Lc_k\ns_and_b32 s25, s2, 15\ns_add_u32 s25, s25, 64")
    g.signal("s25", T)
    A("Lc_k:")
    dma_n(g, 2)
    A("s_waitcnt vmcnt(0)")
    g.post(6, T)
    A("s_cmp_lg_u32 s16, 4\ns_cbranch_scc1 Lc_w")
    g.wait_words("s94", 6, T)
    avail_add(g, 4)
    wait_progress(g, 7, 8)
    g.poll(64, 16, 16, T, sl=opt('USLEEP', 4))
    A("s_branch Lc_pd\nLc_x:\ns_cmp_lg_u32 s16, 0\ns_cbranch_scc1 Lc_w\ns_and_b32 s25, s2, 3\ns_add_u32 s25, s25, 80")
    g.signal("s25", T)
    g.poll(80, 4, 8, T, sl=2)
    A(f"""
Lc_pd:
    s_lshr_b32 s25, s16, 2
    s_add_u32 s25, s25, 1
    v_mov_b32 v{T}, {SY+36}
    v_mov_b32 v{T+1}, s25
    ds_write_b32 v{T}, v{T+1}
Lc_w:
    s_lshr_b32 s91, s16, 2
    s_add_u32 s91, s91, 1
    """)
    g.wait_words(SY+36, "s91", T, n=1, sl=opt('WSL', 8))
    g.stamp(4)
    A(f"""
    s_and_b32 s28, s16, 1
    s_lshl_b32 s25, s28, 11
    s_add_u32 s27, s97, s25
    s_mov_b32 m0, s27
    s_lshl_b32 s27, s98, 12
    s_add_u32 s27, s27, s25
    buffer_load_dwordx4 v{vL16}, s[4:7], s27 offen lds
    buffer_load_dwordx4 v{vL16}, s[4:7], s27 offen offset:1024 lds
    ds_write_b128 v{bZP}, {V(R.acc,4)}
    s_mul_i32 s25, s28, {2*4160}
    s_add_u32 s25, s25, s96
    s_add_u32 s25, s25, 64
    s_lshl_b32 s27, s28, 2
    s_sub_u32 s27, s101, s27
    s_sub_u32 s27, s27, {YT-UT}
    """)
    for c in range(2):
        A("s_mov_b32 m0, s25\ns_nop 0")
        for i in range(4): A(f"buffer_load_dwordx4 v{vL16}, s[12:15], s27 offen offset:{1024*i} lds {SC}")
        if c == 0: A("s_add_u32 s25, s25, 4160\ns_sub_u32 s27, s27, 2")
    A("s_waitcnt vmcnt(0) lgkmcnt(0)")
    g.gsync(7, T)
    A(f"s_setprio {opt('VPRIO', 0)}")
    g.stamp(5)
    A("s_cmp_eq_u32 s28, 0\ns_cbranch_scc0 Lc_set1")
    kconv.conv_main(A, R, "Lc_l0", 0)
    A("s_setprio 1")
    kconv.conv_epi(A, R, 0, "s96", "s100", "s101", "s[12:15]", SC)
    A("s_branch Lc_done\nLc_set1:")
    kconv.conv_main(A, R, "Lc_l1", 1)
    A("s_setprio 1")
    kconv.conv_epi(A, R, 1, "s96", "s100", "s101", "s[12:15]", SC)
    A("Lc_done:\ns_waitcnt vmcnt(0)")
    g.stamp(6)
    g.gsync(8, T)
    A("s_and_b32 s25, s16, 3\ns_cmp_lg_u32 s25, 0\ns_cbranch_scc1 Lc_e\ns_and_b32 s25, s2, 15\ns_add_u32 s25, s25, 16")
    g.signal("s25", T)
    A("Lc_e:\ns_cmp_eq_u32 s95, 0\ns_cbranch_scc1 Lh_p3")

def conv_setup(A, R):
    A(f"""
    v_bfe_u32 v{R.t0}, v0, 2, 2
    v_mul_u32_u24 v{R.aA}, 4160, v{R.t0}
    v_and_b32 v{R.t0}, 3, v0
    v_lshl_add_u32 v{R.aA}, v{R.t0}, 3, v{R.aA}
    v_lshrrev_b32 v{R.t0}, 4, v0
    v_lshlrev_b32 v{R.aB}, 4, v{R.t0}
    v_sub_u32 v{R.aA}, v{R.aA}, v{R.aB}
    s_add_u32 s25, s96, {64+32-8}
    v_add_u32 v{R.aA}, s25, v{R.aA}
    v_and_b32 v{R.aU}, 15, v0
    v_lshlrev_b32 v{R.aU}, 5, v{R.aU}
    v_add_u32 v{R.aB}, v{R.aB}, v{R.aU}
    s_sub_u32 s25, s97, 96
    v_add_u32 v{R.aB}, s25, v{R.aB}
    v_lshl_add_u32 v{R.aU}, v{R.t0}, 3, v{R.aU}
    v_and_b32 v{R.mask}, 15, v0
    v_lshlrev_b32 v{R.t0}, 3, v{R.t0}
    v_sub_u32 v{R.t0}, v{R.mask}, v{R.t0}
    v_add_u32 v{R.t0}, 17, v{R.t0}
    v_mov_b32 v{R.acc}, 0xffff
    v_mov_b32 v{R.acc+1}, 0xffff0000
    """)
    for d in range(4):
        A(f"""
        v_cmp_lt_i32 vcc, {2*d}, v{R.t0}
        v_cmp_lt_i32 s[26:27], {2*d+1}, v{R.t0}
        s_nop 0
        v_cndmask_b32 v{R.mask+d}, 0, v{R.acc}, vcc
        v_cndmask_b32 v{R.acc+2}, 0, v{R.acc+1}, s[26:27]
        v_or_b32 v{R.mask+d}, v{R.mask+d}, v{R.acc+2}
        """)
    for i in range(16): A(f"v_mov_b32 v{R.acc+i}, 0")
    A(f"""
    s_lshl_b32 s101, s98, 12
    s_add_u32 s101, s101, {YT}
    s_lshl_b32 s25, s100, 16
    s_and_b32 s27, s100, 0xffff0000
    s_bitcmp0_b32 s98, 0
    s_cselect_b32 s100, s25, s27       ; D
    """)

def zero_acc(A):
    for i in range(16): A(f"v_mov_b32 v{OA+i}, 0")
    for i in range(16): A(f"v_mov_b32 v{OB+i}, 0")
    for i in range(8): A(f"v_mov_b32 v{PB+i}, 0")
    for i in range(8): A(f"v_mov_b32 v{VB[1]+i}, 0")

def gen_attn(g):
    A = g.A
    A("Lattn:\ns_setprio 2")
    head_params(A)
    A(f"""
    v_lshlrev_b32 v{vL8}, 3, v0
    s_lshl_b32 s31, s18, 3
    s_lshl_b32 s32, s20, 1
    s_add_u32 s32, s31, s32
    s_mul_i32 s34, s21, {MB}
    s_add_u32 s34, s34, s39
    s_lshl_b32 s35, s32, 10
    s_add_u32 s35, s35, s34
    s_add_u32 s34, s39, {LEFT}
    s_lshl_b32 s37, s32, 8
    s_add_u32 s37, s37, s34
    v_and_b32 v{aT1}, 31, v0
    v_lshrrev_b32 v{aT0}, 5, v0
    v_mul_u32_u24 v{aT3}, 288, v{aT0}
    v_lshl_add_u32 v{aT2}, v{aT1}, 4, v{aT3}
    v_add_u32 v{vV0}, s23, v{aT2}
    v_mov_b32 v{vVinc}, {4*VT}
    v_mov_b32 v{aT2}, {CONST+240}
    v_mov_b32 v{aT3}, {CONST+224}
    v_cmp_eq_u32 vcc, 18, v{aT1}
    v_subrev_u32 v{aT0}, 20, v{aT1}
    v_cmp_gt_u32 s[52:53], 8, v{aT0}
    v_cndmask_b32 v{aT2}, v{aT2}, v{aT3}, vcc
    v_mov_b32 v{aT3}, {CONST+176}
    v_cmp_lt_u32 vcc, 17, v{aT1}
    v_cndmask_b32 v{aT2}, v{aT2}, v{aT3}, s[52:53]
    s_mov_b32 s50, 0
    v_cndmask_b32 v{vV0}, v{vV0}, v{aT2}, vcc
    v_cndmask_b32 v{vVinc}, v{vVinc}, 0, vcc
    v_cmp_gt_u32 vcc, 32, v0
    s_cmp_eq_u32 s21, 0
    s_cselect_b64 s[52:53], -1, 0
    s_cselect_b64 s[54:55], 0, -1
    s_and_b64 s[56:57], s[52:53], vcc
    s_and_b64 s[58:59], s[54:55], vcc
    s_andn2_b64 s[60:61], s[52:53], vcc
    s_andn2_b64 s[62:63], s[54:55], vcc
    v_lshlrev_b32 v{aT2}, 3, v{aT1}
    v_add_u32 v{vKM0}, s22, v{vL8}
    v_add_u32 v{vKL0}, s24, v{vL8}
    s_lshl_b32 s25, s20, 8
    s_add_u32 s25, s25, {UC}
    v_lshlrev_b32 v{vCA}, 2, v0
    v_add_u32 v{vCA}, s25, v{vCA}
    v_mov_b32 v{vOne}, 1
    s_mul_i32 s25, s32, {36*1024}
    s_add_u32 s25, s25, {OF}
    s_lshl_b32 s48, s17, 10
    s_add_u32 s48, s48, s25
    s_lshl_b32 s49, s17, 7
    s_add_u32 s49, s49, s25
    s_add_u32 s49, s49, 32768
    """)
    zero_acc(A)
    A("s_cmp_lg_u32 s16, 0\ns_cbranch_scc1 La_w")
    g.poll(0, 14, 16, TMP)
    A(f"""
    v_mov_b32 v{TMP}, {SY+32}
    v_mov_b32 v{TMP+1}, 1
    ds_write_b32 v{TMP}, v{TMP+1}
La_w:
    """)
    g.wait_words(SY+32, 1, TMP, n=1)
    g.stamp(7)
    dma_iter(A)
    A(f"""
    buffer_load_dwordx2 {V(Q1A,2)}, v{vL8}, s[12:15], s35 offen {SC}
    buffer_load_dwordx2 {V(Q1A+2,2)}, v{vL8}, s[12:15], s35 offen offset:512 {SC}
    buffer_load_dwordx2 {V(Q1B,2)}, v{vL8}, s[12:15], s35 offen offset:1024 {SC}
    buffer_load_dwordx2 {V(Q1B+2,2)}, v{vL8}, s[12:15], s35 offen offset:1536 {SC}
    buffer_load_dwordx2 {V(Q2A,2)}, v{aT2}, s[12:15], s37 offen {SC}
    buffer_load_dwordx2 {V(Q2B,2)}, v{aT2}, s[12:15], s37 offen offset:256 {SC}
    s_waitcnt vmcnt(0)
    """)
    g.post(9, TMP)
    for Q in (Q2A, Q2B):
        A(f"""
        v_cndmask_b32 v{Q+2}, 0, v{Q}, s[60:61]
        v_cndmask_b32 v{Q+3}, 0, v{Q+1}, s[62:63]
        v_cndmask_b32 v{Q}, 0, v{Q}, s[56:57]
        v_cndmask_b32 v{Q+1}, 0, v{Q+1}, s[58:59]
        """)
    g.wait_words(SY, 9, TMP)
    g.stamp(8)
    A(f"""
    ds_read2st64_b64 {V(KB[0],4)}, v{vKM0} offset0:0 offset1:1
    ds_read_b64 {V(KL,2)}, v{vKL0}
    s_waitcnt lgkmcnt(0)
    {m16(SA, KB[0], Q1A, 0)}
    {m16(SB, KB[0], Q1B, 0)}
    {m8(SA, KL, Q2A)}
    {m8(SB, KL, Q2B)}
    s_nop 10
    """)
    maxtree(A, aT0, SA)
    maxtree(A, aT1, SB)
    A(f"""
La_setm:
    v_mov_b32 v{aT2}, v{aT0}
    v_mov_b32 v{aT3}, v{aT1}
    v_mov_b32 v{vKM}, v{vKM0}
    v_mov_b32 v{vKL}, v{vKL0}
    v_permlane32_swap_b32 v{aT0}, v{aT2}
    v_permlane32_swap_b32 v{aT1}, v{aT3}
    v_mov_b32 v{vV}, v{vV0}
    ds_read_b128 {V(VB[0],4)}, v{vV0}
    ds_read_b128 {V(VB[0]+4,4)}, v{vV0} offset:576
    v_max_f32 v{aT0}, v{aT0}, v{aT2}
    v_max_f32 v{aT1}, v{aT1}, v{aT3}
    """)
    for i in range(16): A(f"v_sub_f32 v{NMA+i}, 0, v{aT0}")
    A(f"""
    v_sub_f32 v{NMB}, 0, v{aT1}
    s_mov_b32 s51, 0
    {m16(SA, KB[0], Q1A, V(NMA,16))}
    {m8(SA, KL, Q2A)}
    """)
    for i in range(1, 16): A(f"v_sub_f32 v{NMB+i}, 0, v{aT1}")
    A("s_setprio 0")
    g.stamp(9)
    if g.dbg and 'its' in EXP: A("s_mov_b32 s55, 0\nv_mov_b32 v214, 0\nv_writelane_b32 v214, s88, 0\nv_writelane_b32 v214, s90, 32")
    A(".p2align 6\nLa_loop:")
    for j in range(4):
        b = j & 1; nb = b ^ 1
        koff = 2*(j+1)
        ex = [[f"ds_read2st64_b64 {V(KB[nb],4)}, v{vKM} offset0:{koff} offset1:{koff+1}"], [], [], ["s_waitcnt lgkmcnt(0)"]]
        if j == 0:
            ex[0].append(f"ds_read_b64 {V(KL+2,2)}, v{vKL} offset:512")
            ex[2] = ["s_min_u32 s53, s51, 14"]
        if j == 1: ex[0].append(f"ds_add_rtn_u32 v{vCR}, v{vCA}, v{vOne}")
        if j == 2: ex[2] = ["s_lshr_b32 s52, s52, 8"]
        if j == 3:
            ex[0].append(f"ds_read_b64 {V(KL,2)}, v{vKL} offset:1024")
            ex[1] = [f"v_add_u32 v{vV}, v{vVinc}, v{vV}"]
            ex[2] = ["s_cmp_lt_u32 s51, 16"]
        klp = KL + 2*(j >> 1)
        phase(A, SA, PA, [m16(SB, KB[b], Q1B, V(NMB,16)), m8(SB, klp, Q2B + 2*(j & 1)),
                          m16(OB, VB[nb], PB, V(OB,16)), m16(OB, VB[nb]+4, PB+4, V(OB,16))], ex)
        jn = (j+1) & 3
        klp = KL + 2*(jn >> 1)
        ex = [[], [], [f"ds_read_b128 {V(VB[nb],4)}, v{vV} offset:{jn*VT}"], [f"ds_read_b128 {V(VB[nb]+4,4)}, v{vV} offset:{jn*VT+576}"]]
        if j == 0: ex[0] = ["s_add_u32 s51, s51, 1"]
        if j == 1: ex[1] = [f"v_readfirstlane_b32 s52, v{vCR}"]
        if j == 2:
            ex[0] = ["s_cmp_gt_u32 s53, s52"]
            ex[3] += ["s_cbranch_scc1 La_chk", "La_chkd:"]
        if j == 3:
            ex[1] = [f"v_add_u32 v{vKM}, 4096, v{vKM}", f"v_add_u32 v{vKL}, 1024, v{vKL}"]
        phase(A, SB, PB, [m16(SA, KB[nb], Q1A, V(NMA,16)), m8(SA, klp, Q2A + 2*(jn & 1)),
                          m16(OA, VB[b], PA, V(OA,16)), m16(OA, VB[b]+4, PA+4, V(OA,16))], ex)
    if g.dbg and 'its' in EXP:
        A(f"""
        s_memrealtime s[88:89]
        s_memtime s[90:91]
        s_mov_b32 m0, s51
        s_waitcnt lgkmcnt(0)
        v_writelane_b32 v214, s88, m0
        s_add_u32 m0, s51, 32
        s_nop 0
        v_writelane_b32 v214, s90, m0
        s_cmp_lt_u32 s51, 16
        """)
    A("s_cbranch_scc1 La_loop")
    A(f"""
    s_setprio 2
    {m16(OB, VB[1], PB, V(OB,16))}
    {m16(OB, VB[1]+4, PB+4, V(OB,16))}
    """)
    g.stamp(10)
    A(f"v_lshlrev_b32 v{aT2}, 2, v0\nv_mov_b32 v{aT3}, 0")
    for n, (O, P) in enumerate(((OA, PA), (OB, PB))):
        A(f"""
        v_mov_b32 v{aT0}, v{O+10}
        v_mov_b32 v{aT1}, v{O+10}
        """)
        for i in range(11): A(f"v_add_f32 v{aT3}, |v{O+i}|, v{aT3}")
        A(f"""
        v_permlane32_swap_b32 v{aT0}, v{aT1}
        s_nop 1
        v_rcp_f32 v{aT0}, v{aT0}
        s_add_u32 s25, s48, {n*36*1024}
        s_add_u32 s27, s49, {n*36*1024}
        """)
        for i in range(10): A(f"v_mul_f32 v{O+i}, v{O+i}, v{aT0}")
        for i in range(5): A(f"v_cvt_pk_bf16_f32 v{P+i}, v{O+2*i}, v{O+2*i+1}")
        A(f"""
        buffer_store_dwordx4 {V(P,4)}, v{vL16}, s[12:15], s25 offen {SC}
        s_mov_b32 exec_hi, 0
        buffer_store_dword v{P+4}, v{aT2}, s[12:15], s27 offen {SC}
        s_mov_b32 exec_hi, -1
        """)
    A(f"""
    v_mov_b32 v{aT1}, 0x71800000
    v_cmp_nlt_f32 vcc, v{aT3}, v{aT1}
    v_mov_b32 v{aT3}, {FLAG}
    v_mov_b32 v{aT2}, 1
    s_cmp_lg_u32 s50, 0
    s_cbranch_scc1 Lp3
    s_cbranch_vccz Lp3
    ds_write_b32 v{aT3}, v{aT2}
    s_branch Lp3
La_chk:
    s_mov_b32 s93, {SPIN}
La_chk1:
    ds_read_b32 v{vCR}, v{vCA}
    s_waitcnt lgkmcnt(0)
    v_readfirstlane_b32 s52, v{vCR}
    s_lshr_b32 s52, s52, 8
    s_cmp_le_u32 s53, s52
    s_cbranch_scc1 La_chkd
    s_sleep 1
    s_sub_u32 s93, s93, 1
    s_cmp_lg_u32 s93, 0
    s_cbranch_scc1 La_chk1
    s_branch La_chkd
La_slow:
    s_mov_b32 s50, 1
    s_barrier
    v_mov_b32 v{aT0}, {14 << 8}
    ds_write_b32 v{vCA}, v{aT0}
    v_mov_b32 v{aT3}, {FLAG}
    v_mov_b32 v{aT2}, 0
    ds_write_b32 v{aT3}, v{aT2}
    v_mov_b32 v{vKM}, v{vKM0}
    v_mov_b32 v{vKL}, v{vKL0}
    v_mov_b32 v{aT0}, 0xff800000
    v_mov_b32 v{aT1}, 0xff800000
    s_mov_b32 s51, 16
    s_waitcnt lgkmcnt(0)
    s_barrier
La_maxloop:
    ds_read2st64_b64 {V(KL,4)}, v{vKL} offset0:0 offset1:1
    """)
    for j in range(4):
        A(f"""
        ds_read2st64_b64 {V(KB[0],4)}, v{vKM} offset0:{2*j} offset1:{2*j+1}
        s_waitcnt lgkmcnt(0)
        {m16(SA, KB[0], Q1A, 0)}
        {m16(SB, KB[0], Q1B, 0)}
        {m8(SA, KL+2*(j>>1), Q2A+2*(j&1))}
        {m8(SB, KL+2*(j>>1), Q2B+2*(j&1))}
        s_nop 11
        """)
        maxtree(A, aT0, SA, True)
        maxtree(A, aT1, SB, True)
    A(f"""
    v_add_u32 v{vKM}, 4096, v{vKM}
    v_add_u32 v{vKL}, 1024, v{vKL}
    s_sub_u32 s51, s51, 1
    s_cmp_lg_u32 s51, 0
    s_cbranch_scc1 La_maxloop
    ds_read2st64_b64 {V(KB[0],4)}, v{vKM0} offset0:0 offset1:1
    ds_read_b64 {V(KL,2)}, v{vKL0}
    """)
    zero_acc(A)
    A("s_waitcnt lgkmcnt(0)\ns_branch La_setm")

def gen_p3(g):
    A = g.A
    BW, ACC_, AF = 40, 184, 16
    wA = 196
    A(f"""
Lh_slow:
    s_barrier
    """)
    dma_skip(A, -8)
    dma_n(g, 8)
    A(f"""
    s_waitcnt vmcnt(0)
    s_barrier
Lh_p3:
    s_and_b32 s19, s2, 7
    s_lshr_b32 s33, s2, 3
    v_lshlrev_b32 v{TMP}, 7, v0
    s_cmp_ge_u32 s33, 24
    s_cbranch_scc0 Lh_wo
    s_sub_u32 s25, s33, 24
    s_lshl_b32 s27, s19, 3
    s_add_u32 s25, s25, s27
    s_mul_i32 s25, s25, {32*1152}
    s_mul_i32 s27, s20, {72*128}
    s_add_u32 s25, s25, s27
    v_add_u32 v{TMP+1}, s25, v{TMP}
    global_load_dword v210, v{TMP+1}, s[{pQ}:{pQ+1}]
    global_load_dword v211, v{TMP+1}, s[{pQ}:{pQ+1}] offset:1024
    s_branch Lp3
Lh_wo:
    s_lshl_b32 s25, s33, 2
    s_add_u32 s25, s25, s20
    s_mul_i32 s25, s25, {54*128}
    """)
    g.srd(4, pWO, WOB)
    A(f"""
    s_mov_b32 exec_hi, 0x3fffff
    buffer_load_dword v210, v{TMP}, s[4:7], s25 offen
    s_mov_b32 exec_hi, -1
    """)
    for i in range(3):
        A(f"""
        v_add_u32 v1, {64*i}, v0
        v_mul_u32_u24 v2, 5462, v1
        v_lshrrev_b32 v2, 16, v2
        v_mul_u32_u24 v3, 12, v2
        v_sub_u32 v1, v1, v3
        v_mul_u32_u24 v2, 1152, v2
        v_lshl_add_u32 v{wA+i}, v1, 4, v2
        """)
    A(f"""
    v_subrev_u32 v{wA+1}, 1024, v{wA+1}
    v_subrev_u32 v{wA+2}, 2048, v{wA+2}
    s_lshr_b32 s25, s33, 2
    s_mul_i32 s28, s25, 192
    s_mul_i32 s25, s20, {16*1152}
    s_add_u32 s28, s28, s25
    """)
    for half, (n, base) in enumerate(((13, "s23"), (15, "s22"))):
        wait_progress(g, n, 6)
        A(f"""
        s_add_u32 s27, s28, {half*288*1152}
        s_mul_i32 s25, s20, 3072
        s_add_u32 s25, s25, {base}
        s_mov_b32 s31, s20
Lo_wo{half}:
        s_mov_b32 m0, s25
        s_add_u32 s31, s31, 4
        buffer_load_dwordx4 v{wA}, s[4:7], s27 offen lds
        buffer_load_dwordx4 v{wA+1}, s[4:7], s27 offen offset:1024 lds
        buffer_load_dwordx4 v{wA+2}, s[4:7], s27 offen offset:2048 lds
        s_add_u32 s27, s27, {4*16*1152}
        s_add_u32 s25, s25, {4*3072}
        s_cmp_lt_u32 s31, 18
        s_cbranch_scc1 Lo_wo{half}
        """)
    A(f"""
Lp3:
    v_mov_b32 v{TMP+1}, {FLAG}
    s_lshl_b32 s30, s18, 2
    s_lshr_b32 s25, s17, 3
    s_add_u32 s30, s30, s25
    s_add_u32 s30, s30, 32
    s_waitcnt vmcnt(0) lgkmcnt(0)
    s_barrier
    ds_read_b32 v{TMP}, v{TMP+1}
    s_and_b32 s19, s2, 7
    s_lshr_b32 s33, s2, 3
    s_waitcnt lgkmcnt(0)
    v_readfirstlane_b32 s25, v{TMP}
    s_cmp_eq_u32 s25, 0
    s_cbranch_scc1 Lp3_ok
    s_cmp_lt_u32 s16, 4
    s_cbranch_scc1 La_slow
    s_branch Lh_slow
Lp3_ok:
    """)
    g.stamp(11)
    A("s_cmp_lg_u32 s16, 7\ns_cbranch_scc1 Lp3_1")
    g.signal("s30", 14)
    A(f"""
Lp3_1:
    s_cmp_ge_u32 s33, 24
    s_cbranch_scc1 Lp3_s3
    s_and_b32 s17, s33, 3
    s_lshl_b32 s19, s19, 2
    s_add_u32 s17, s17, s19            ; tb
    s_lshr_b32 s18, s33, 2             ; ng
    s_mov_b32 s28, s23
    s_mov_b32 s29, s22
    s_and_b32 s23, s16, 1
    s_lshr_b32 s24, s16, 1
    v_lshlrev_b32 v12, 4, v0
    s_cmp_ge_u32 s16, 6
    s_cbranch_scc1 Lo_nopre
    v_lshrrev_b32 v1, 5, v0
    v_bfe_u32 v2, v0, 2, 2
    v_bfe_u32 v3, v0, 4, 1
    v_lshlrev_b32 v3, 5, v3
    v_and_b32 v7, 3, v0
    v_lshl_add_u32 v3, v7, 3, v3
    s_lshl_b32 s25, s24, 6
    v_add_u32 v3, s25, v3
    v_lshl_add_u32 v7, v1, 2, v2
    v_mul_u32_u24 v7, 192, v7
    v_add3_u32 v8, v7, v3, s28
    v_add3_u32 v9, v7, v3, s29
    v_mul_u32_u24 v7, 72, v1
    v_lshrrev_b32 v10, 1, v2
    v_mul_u32_u24 v10, 18, v10
    v_add_u32 v7, v7, v10
    v_and_b32 v10, 1, v2
    v_add3_u32 v7, v7, v10, 16
    v_mul_u32_u24 v7, 192, v7
    v_add3_u32 v10, v7, v3, s28
    v_add3_u32 v11, v7, v3, s29
    """)
    for s_ in range(36):
        for e in range(2):
            if s_ < 32: base, off = (8, (18*s_ + 8*e)*192) if s_ < 16 else (9, (18*(s_-16) + 8*e)*192)
            else: base, off = (10 + ((s_-32) >> 1), (144*((s_-32) & 1) + 36*e)*192)
            A(f"ds_read_b64_tr_b16 {V(BW+4*s_+2*e,2)}, v{base} offset:{off}")
        if s_ % 6 == 5: A("s_waitcnt lgkmcnt(4)")
    A("Lo_nopre:")
    g.srd(44, pOUT, OUTB)
    for i in range(16): A(f"v_mov_b32 v{ACC_+i}, 0")
    TR = 81920
    A(f"""
    s_mul_i32 s20, s17, {2*36*1024}
    s_add_u32 s20, s20, {OF}
    s_mul_i32 s21, s23, {36*1024}
    s_add_u32 s20, s20, s21
    s_lshl_b32 s21, s24, 10
    s_add_u32 s20, s20, s21
    s_lshl_b32 s21, s23, 10
    v_add_u32 v13, s21, v12
    v_and_b32 v1, 31, v0
    v_lshlrev_b32 v1, 2, v1
    v_lshrrev_b32 v2, 5, v0
    v_lshl_add_u32 v1, v2, 9, v1
    s_add_u32 s21, s21, 65536
    v_add_u32 v201, s21, v1
    v_add_u32 v202, 2048, v201
    v_add_u32 v203, 4096, v201
    v_add_u32 v204, 6144, v201
    v_and_b32 v1, 31, v0
    s_lshl_b32 s21, s23, 5
    v_add_u32 v1, s21, v1
    v_mul_u32_u24 v1, 208, v1
    v_lshl_add_u32 v1, v2, 3, v1
    s_lshl_b32 s21, s24, 6
    s_add_u32 s21, s21, {TR}
    v_add_u32 v200, s21, v1
    s_mul_i32 s26, s17, {64*2304}
    s_mul_i32 s22, s18, 192
    s_add_u32 s26, s26, s22
    s_lshl_b32 s22, s16, 7
    """)
    for i in range(2):
        A(f"""
        v_add_u32 v1, s22, v0
        v_add_u32 v1, {64*i}, v1
        v_mul_u32_u24 v2, 5462, v1
        v_lshrrev_b32 v2, 16, v2
        v_mul_u32_u24 v3, 12, v2
        v_sub_u32 v1, v1, v3
        v_lshlrev_b32 v1, 4, v1
        v_mul_u32_u24 v3, 208, v2
        v_add_u32 v{4+i}, v3, v1
        v_add_u32 v{4+i}, {TR}, v{4+i}
        v_mul_u32_u24 v3, 2304, v2
        v_add_u32 v{6+i}, v3, v1
        """)
    A("s_lshl_b32 s21, s16, 10\ns_waitcnt lgkmcnt(0)")
    g.stamp(12)
    A("s_cmp_lg_u32 s16, 7\ns_cbranch_scc1 Lp3_h\ns_add_u32 s25, s19, 32")
    g.poll("s25", 4, 8, 16)
    A("Lp3_h:\ns_barrier")
    g.stamp(13)
    for rr in range(9):
        A(f"""
        s_mov_b32 m0, s21
        s_add_u32 s21, s21, 8192
        buffer_load_dwordx4 v12, s[12:15], s20 offen lds {SC}
        s_add_u32 s20, s20, 4096
        """)
    for c in range(3):
        A(f"s_waitcnt vmcnt({6-3*c})\ns_barrier")
        if c == 0: A(f"s_cmp_ge_u32 s16, 6\ns_cbranch_scc1 Lo_idle")
        if c == 2: A(f"v_add_u32 v13, 49152, v13")
        for half in range(2):
            for i in range(6):
                s_ = 12*c + 6*half + i
                off = 2048*s_ - (49152 if c == 2 else 0)
                if s_ < 32: A(f"ds_read_b128 {V(AF+4*i,4)}, v13 offset:{off}")
                else:
                    A(f"ds_read2_b32 {V(AF+4*i,2)}, v{201+s_-32} offset0:0 offset1:32")
                    A(f"ds_read2_b32 {V(AF+4*i+2,2)}, v{201+s_-32} offset0:64 offset1:96")
            for i in range(6):
                s_ = 12*c + 6*half + i
                last = 12*c + 6*half + 5
                A(f"s_waitcnt lgkmcnt({sum(1 if x < 32 else 2 for x in range(s_+1, last+1))})")
                A(f"v_mfma_f32_32x32x16_bf16 {V(ACC_,16)}, {V(BW+4*s_,4)}, {V(AF+4*i,4)}, {V(ACC_,16)}")
    g.stamp(14)
    A("s_nop 11")
    for q in range(4):
        A(f"""
        v_cvt_pk_bf16_f32 v{AF+2*q}, v{ACC_+4*q}, v{ACC_+4*q+1}
        v_cvt_pk_bf16_f32 v{AF+2*q+1}, v{ACC_+4*q+2}, v{ACC_+4*q+3}
        ds_write_b64 v200, {V(AF+2*q,2)} offset:{16*q}
        """)
    A(f"""
    s_waitcnt lgkmcnt(0)
    s_barrier
    ds_read_b128 {V(AF,4)}, v4
    ds_read_b128 {V(AF+4,4)}, v5
    s_waitcnt lgkmcnt(1)
    buffer_store_dwordx4 {V(AF,4)}, v6, s[44:47], s26 offen
    s_waitcnt lgkmcnt(0)
    buffer_store_dwordx4 {V(AF+4,4)}, v7, s[44:47], s26 offen
    s_branch Lfin
Lo_idle:
    s_waitcnt vmcnt(3)
    s_barrier
    s_waitcnt vmcnt(0)
    s_barrier
    s_branch Lfin
Lp3_s3:
    s_sub_u32 s20, s33, 24
    s_lshl_b32 s17, s19, 3
    s_add_u32 s17, s17, s20
    s_mov_b64 s[6:7], s[{pOUT}:{pOUT+1}]
    s_mov_b64 s[48:49], s[{pWS}:{pWS+1}]
    s_mov_b64 s[50:51], s[{pQ}:{pQ+1}]
    """)
    g.poll(16, 16, 18, 16)
    k3.gen_stage3(A, "Ls3", False, SC)
    A("Lfin:")
    g.end()

def gen(name, dbg=False):
    g = G(dbg); A = g.A
    A("Lcode_begin:")
    A(f"""
    s_cmp_ge_u32 s2, 256
    s_cbranch_scc1 Lend
    s_load_dwordx16 s[64:79], s[0:1], 0
    s_load_dwordx8 s[80:87], s[0:1], 64
    v_lshrrev_b32 v1, 6, v0
    v_and_b32 v0, 63, v0
    v_readfirstlane_b32 s16, v1
    """)
    if dbg: A(f"v_mov_b32 v{vST}, 0")
    g.stamp(0)
    A(f"""
    s_lshl_b32 s3, s16, 2
    s_add_u32 s3, s3, {SY}
    s_and_b32 s94, s3, {0xffffffff & ~15}
    s_cmp_ge_u32 s2, 224
    s_cbranch_scc1 Ls1
    """)
    gen_gemm(g)
    A("Ls1:")
    gen_stage1(g)
    gen_attn(g)
    gen_p3(g)
    A("Lend:\ns_endpgm\nLcode_end:")
    return A.text()

if __name__ == "__main__":
    import sys
    out = sys.argv[1]; dbg = len(sys.argv) > 2 and sys.argv[2] == "dbg"
    name = "concat_heads__softmax_full_mha__ssm_conv_h3__prompt_kernel"
    HDR = open("concat_heads__softmax_full_mha__ssm_conv_h3__prompt.s.ref").read().split("; Override launch")[0]
    s = HDR
    if (dbg and not os.environ.get('DD') and not os.environ.get('AMP')) or 'list' in EXP: s += f"; @launch kernel={name} grid=(256,1,1) block=(512,1,1) lds={LDS_BYTES}\n"
    else: s += f"; @launch grid=(256,1,1) block=(512,1,1) lds={LDS_BYTES}\n"
    s += '.amdgcn_target "amdgcn-amd-amdhsa--gfx950"\n.text\n' + kernel_head(name) + gen(name, dbg)
    s += '.section .rodata,"a"\n' + kernel_desc(name, NVGPR, 102)
    open(out, "w").write(s)
```

```python
import os, struct, math
from asmlib import *
from layout import *
import kconv
EXP = os.environ.get('FEXP', '').split(',')
def opt(name, default): return int(os.environ.get(name, default))

CS_BITS = struct.unpack("<I", struct.pack("<f", math.log2(math.e)/math.sqrt(18)))[0]
XB, WB, OUTB, WOB = 2048*1152, 576*3456, 2048*2304, 576*1152
NVGPR = 248
LDS_BYTES = 163840
vST = 215
pX, pW, pWO, pQ, pK, pV, pSH, pH, pD, pOUT, pDBG, pWS = [64+2*i for i in range(12)]
WIN = 65536 + VSZ + 16384
CONST = WIN
UC = WIN + 4352
XCH = WIN + 6144
SY = WIN + 5376
SC = "sc1"
NTG = 'nt' if 'ntg' in EXP else ''
NTB = 'nt' if 'ntb' in EXP else ''
SPIN = 200000
NREP = opt('NREP', 8)

class G:
    def __init__(self, dbg):
        self.A = Asm(); self.dbg = dbg; self.n = 0
    def lab(self, p="L"):
        self.n += 1; return f"{p}{self.n}"
    def stamp(self, i):
        if self.dbg:
            self.A(f"""
            s_memrealtime s[88:89]
            s_memtime s[90:91]
            s_waitcnt lgkmcnt(0)
            v_writelane_b32 v{vST}, s88, {i}
            v_writelane_b32 v{vST}, s90, {32+i}
            """)
    def srd(self, d, p, n):
        self.A(f"s_mov_b32 s{d}, s{p}\ns_mov_b32 s{d+1}, s{p+1}\ns_mov_b32 s{d+2}, {n}\ns_mov_b32 s{d+3}, 0x20000")
    def end(self):
        A = self.A
        if self.dbg:
            A("s_mov_b64 exec, -1\ns_waitcnt vmcnt(0)")
            self.stamp(31)
            A(f"""
            s_lshl_b32 s25, s2, 3
            s_add_u32 s25, s25, s16
            s_lshl_b32 s25, s25, 8
            s_add_u32 s25, s25, {STAMP}
            v_lshlrev_b32 v1, 2, v0
            buffer_store_dword v{vST}, v1, s[12:15], s25 offen
            s_add_u32 s25, s25, {2048*256}
            buffer_store_dword v214, v1, s[12:15], s25 offen
            """)
        amp = os.environ.get('AMP')
        if self.dbg and amp:
            wg, w, i, j = [int(x) for x in amp.split(',')]
            A(f"""
            s_cmp_lg_u32 s2, {wg}
            s_cbranch_scc1 Lam_e
            s_cmp_lg_u32 s16, {w}
            s_cbranch_scc1 Lam_e
            v_readlane_b32 s40, v{vST}, {i}
            v_readlane_b32 s41, v{vST}, {j}
            s_memrealtime s[42:43]
            s_nop 3
            s_sub_u32 s41, s41, s40
            s_min_u32 s41, s41, 10000
            s_lshl_b32 s41, s41, 3
            s_add_u32 s41, s41, {os.environ.get('AMPC', '0')}
            s_waitcnt lgkmcnt(0)
Lam_l:
            s_memrealtime s[44:45]
            s_waitcnt lgkmcnt(0)
            s_sub_u32 s44, s44, s42
            s_cmp_lt_u32 s44, s41
            s_cbranch_scc1 Lam_l
Lam_e:
            """)
        dd = os.environ.get('DD')
        if self.dbg and dd:
            wg, w, *idx = [int(x) for x in dd.split(',')]
            A(f"""
            s_cmp_lg_u32 s2, {wg}
            s_cbranch_scc1 Ldd_e
            s_cmp_lg_u32 s16, {w}
            s_cbranch_scc1 Ldd_e
            v_readlane_b32 s40, v{vST}, 0
            v_mov_b32 v2, 0
            """)
            for k, i in enumerate(idx):
                A(f"""
                v_readlane_b32 s41, v{vST}, {i}
                s_nop 3
                s_sub_u32 s41, s41, s40
                v_mov_b32 v3, s41
                global_store_dword v2, v3, s[{pDBG}:{pDBG+1}] offset:{32+4*k}
                """)
            A("Ldd_e:")
        A("s_endpgm")
    def post(self, val, t):
        self.A(f"""
        v_mov_b32 v{t}, s3
        v_mov_b32 v{t+1}, {val}
        ds_write_b32 v{t}, v{t+1}
        """)
    def wait_words(self, addr, val, t, n=4, sl=1):
        l = self.lab("Lw"); d = self.lab("Ld")
        rd = f"ds_read_b128 {V(t,4)}, v{t+4}" if n == 4 else f"ds_read_b32 v{t}, v{t+4}"
        mn = f"v_min_u32 v{t}, v{t}, v{t+1}\nv_min3_u32 v{t}, v{t}, v{t+2}, v{t+3}\ns_nop 0" if n == 4 else ""
        self.A(f"""
        v_mov_b32 v{t+4}, {addr}
        s_mov_b32 s93, {SPIN}
{l}:
        {rd}
        s_waitcnt lgkmcnt(0)
        {mn}
        v_readfirstlane_b32 s92, v{t}
        s_cmp_ge_u32 s92, {val}
        s_cbranch_scc1 {d}
        s_sleep {sl}
        s_sub_u32 s93, s93, 1
        s_cmp_lg_u32 s93, 0
        s_cbranch_scc1 {l}
{d}:
        """)
    def gsync(self, val, t):
        self.post(val, t)
        self.wait_words("s94", val, t)
    def ready(self, t):
        l = self.lab("Lr"); d = self.lab("Ld")
        self.A(f"""
        v_and_b32 v{t+1}, {NREP-1}, v0
        v_lshlrev_b32 v{t+1}, 2, v{t+1}
        s_mov_b32 s93, {SPIN}
{l}:
        global_load_dword v{t}, v{t+1}, s[{pDBG}:{pDBG+1}] {SC}
        s_waitcnt vmcnt(0)
        v_cmp_eq_u32 vcc, 0, v{t}
        s_nop 3
        s_cmp_eq_u64 vcc, 0
        s_cbranch_scc1 {d}
        s_sleep 2
        s_sub_u32 s93, s93, 1
        s_cmp_lg_u32 s93, 0
        s_cbranch_scc1 {l}
{d}:
        """)
    def signal(self, sidx, t):
        self.A(f"""
        s_lshl_b32 s92, {sidx}, 8
        s_add_u32 s92, s92, {CNT}
        v_lshlrev_b32 v{t}, 15, v0
        v_mov_b32 v{t+1}, 1
        s_mov_b64 exec, {(1 << NREP) - 1}
        buffer_atomic_add v{t+1}, v{t}, s[12:15], s92 offen {SC}
        s_mov_b64 exec, -1
        """)
    def poll(self, first, n, target, t, sl=None):
        l = self.lab("Lp"); d = self.lab("Ld")
        self.A(f"""
        v_min_u32 v{t+1}, {n-1}, v0
        v_add_u32 v{t+1}, {first}, v{t+1}
        v_lshlrev_b32 v{t+1}, 8, v{t+1}
        s_mov_b32 s93, {SPIN}
        s_and_b32 s92, s2, {NREP-1}
        s_lshl_b32 s92, s92, 15
        s_add_u32 s92, s92, {CNT}
        s_mov_b64 exec, {(1 << n) - 1}
{l}:
        buffer_load_dword v{t}, v{t+1}, s[12:15], s92 offen {SC}
        s_waitcnt vmcnt(0)
        v_cmp_le_u32 vcc, {target}, v{t}
        s_nop 3
        s_cmp_eq_u64 vcc, exec
        s_cbranch_scc1 {d}
        s_sleep {sl or opt('PSLEEP', 2)}
        s_sub_u32 s93, s93, 1
        s_cmp_lg_u32 s93, 0
        s_cbranch_scc1 {l}
{d}:
        s_mov_b64 exec, -1
        """)

vT0, vT1, vT2, vT3, vTok, vHf = 1, 2, 3, 4, 5, 6
vXb, vWb, vX, vW, vEA, FR, ACC, PK = 8, 12, 14, 18, 20, 36, 68, 132
RING = 98304
def XF(b, i): return FR + 16*b + 4*i
def WF(b, j): return FR + 16*b + 8 + 4*j
def acc(i, j): return ACC + 16*(2*i + j)
def g_reads(b, s):
    return [f"ds_read_b128 {V(XF(b,0),4)}, v{vX+s}",
            f"ds_read_b64_tr_b16 {V(WF(b,0),2)}, v{vW} offset:{16384 + 4096*s}",
            f"ds_read_b64_tr_b16 {V(WF(b,0)+2,2)}, v{vW} offset:{16384 + 4096*s + 1024}",
            f"ds_read_b64_tr_b16 {V(WF(b,1),2)}, v{vW+1} offset:{16384 + 4096*s}",
            f"ds_read_b64_tr_b16 {V(WF(b,1)+2,2)}, v{vW+1} offset:{16384 + 4096*s + 1024}",
            f"ds_read_b128 {V(XF(b,1),4)}, v{vX+s} offset:4096"]
def g_mf(b, i, j, vtype):
    a, bb = (XF(b,i), WF(b,j)) if vtype else (WF(b,j), XF(b,i))
    return f"v_mfma_f32_32x32x16_bf16 {V(acc(i,j),16)}, {V(a,4)}, {V(bb,4)}, {V(acc(i,j),16)}"
def g_setaddr(A):
    for s in range(4): A(f"v_add_u32 v{vX+s}, s30, v{vXb+s}")
    for j in range(2): A(f"v_add_u32 v{vW+j}, s30, v{vWb+j}")
def g_loop(g, name, vtype):
    A = g.A
    A("s_mov_b32 s31, 9\ns_barrier")
    for r in g_reads(0, 0): A(r)

    A(f".p2align 6\n{name}:")
    for s in range(4):
        b = s & 1
        A("s_waitcnt lgkmcnt(0)")
        A(g_mf(b, 0, 0, vtype))
        if s < 3:
            rd = g_reads(b ^ 1, s+1)
            for r in rd[:3]: A(r)
            A(g_mf(b, 0, 1, vtype))
            for r in rd[3:]: A(r)
            A(g_mf(b, 1, 0, vtype)); A(g_mf(b, 1, 1, vtype))
        else:
            A(f"""
            s_add_u32 s30, s30, 32768
            s_cmp_eq_u32 s30, {RING}
            s_cselect_b32 s30, 0, s30
            s_sub_u32 s31, s31, 1
            s_cmp_eq_u32 s31, 0
            s_cbranch_scc1 {name}_nb
            s_barrier
{name}_nb:
            """)
            g_setaddr(A)
            A(g_mf(b, 0, 1, vtype))
            rd = g_reads(0, 0)
            for r in rd[:3]: A(r)
            A(g_mf(b, 1, 0, vtype))
            for r in rd[3:]: A(r)
            A(g_mf(b, 1, 1, vtype))
    A(f"s_cbranch_scc0 {name}")

def ld_chunk(g, skip=True):
    A = g.A; l = g.lab("Lk")
    if skip: A(f"s_cmp_lg_u32 s95, 0\ns_cbranch_scc1 {l}")
    A(f"""
    s_mov_b32 m0, s42
    s_add_u32 s26, s40, 8192
    buffer_load_dwordx4 v8, s[8:11], s40 offen lds
    s_add_u32 s27, s40, 16384
    buffer_load_dwordx4 v9, s[8:11], s26 offen offset:1024 lds
    s_add_u32 s26, s40, 24576
    buffer_load_dwordx4 v8, s[8:11], s27 offen offset:2048 lds
    s_add_u32 s28, s42, 16384
    buffer_load_dwordx4 v9, s[8:11], s26 offen offset:3072 lds
    s_mov_b32 m0, s28
    s_add_u32 s26, s41, {13824-1024}
    buffer_load_dwordx4 v10, s[44:47], s41 offen lds
    s_add_u32 s27, s41, {2*(13824-1024)}
    buffer_load_dwordx4 v10, s[44:47], s26 offen offset:1024 lds
    s_add_u32 s26, s41, {3*(13824-1024)}
    buffer_load_dwordx4 v10, s[44:47], s27 offen offset:2048 lds
    s_add_u32 s40, s40, 128
    buffer_load_dwordx4 v10, s[44:47], s26 offen offset:3072 lds
    s_add_u32 s41, s41, {64*3456}
    s_add_u32 s24, s24, 1
    s_cmp_eq_u32 s24, 9
    s_cselect_b32 s26, 1152, 0
    s_cselect_b32 s27, {WB}, 0
    s_sub_u32 s40, s40, s26
    s_sub_u32 s41, s41, s27
    s_add_u32 s42, s42, 32768
    s_cmp_ge_u32 s42, {RING}
    s_cselect_b32 s26, {RING}, 0
    s_sub_u32 s42, s42, s26
{l}:
    """)

def gen_gemm(g):
    A = g.A
    ROT = opt('ROT', 1)
    A(f"""
    s_and_b32 s17, s2, 7               ; xcd
    s_lshr_b32 s18, s2, 3              ; idx 0..27
    s_and_b32 s19, s17, 3
    s_lshl_b32 s19, s19, 2
    s_and_b32 s20, s18, 3
    s_add_u32 s19, s19, s20            ; mb
    s_lshr_b32 s21, s17, 2
    s_mul_i32 s21, s21, 7
    s_lshr_b32 s22, s18, 2
    s_add_u32 s21, s21, s22            ; ng
    s_cmp_lt_u32 s16, 4
    s_cbranch_scc1 Lg_compute
    s_and_b32 s23, s16, 3              ; u
    """)
    if ROT:
        A("""
        s_mul_i32 s24, s20, 5
        s_lshr_b32 s24, s24, 1
        s_add_u32 s24, s24, s22
        s_cmp_ge_u32 s24, 9
        s_cselect_b32 s25, 9, 0
        s_sub_u32 s24, s24, s25
        """)
    else: A("s_mov_b32 s24, 0")
    A(f"""
    s_lshl_b32 s25, s19, 7
    s_lshl_b32 s26, s23, 5
    s_add_u32 s25, s25, s26
    s_mul_i32 s25, s25, 1152
    s_lshl_b32 s26, s24, 7
    s_add_u32 s40, s25, s26            ; sX
    s_lshl_b32 s25, s24, 2
    s_add_u32 s25, s25, s23
    s_mul_i32 s25, s25, {16*3456}
    s_lshl_b32 s26, s21, 8
    s_add_u32 s41, s25, s26            ; sW
    s_lshl_b32 s42, s23, 12
    v_lshrrev_b32 v{vT0}, 3, v0
    v_mul_u32_u24 v{vT0}, 1152, v{vT0}
    v_lshrrev_b32 v{vT1}, 4, v0
    v_and_b32 v{vT2}, 7, v0
    v_xor_b32 v{vT2}, v{vT2}, v{vT1}
    v_lshl_add_u32 v8, v{vT2}, 4, v{vT0}
    v_xor_b32 v{vT2}, 4, v{vT2}
    v_lshl_add_u32 v9, v{vT2}, 4, v{vT0}       ; odd i
    v_mul_u32_u24 v{vT0}, 3456, v{vT1}
    v_and_b32 v{vT2}, 15, v0
    v_lshlrev_b32 v{vT1}, 2, v{vT1}
    v_xor_b32 v{vT2}, v{vT2}, v{vT1}
    v_lshl_add_u32 v10, v{vT2}, 4, v{vT0}      ; W addr
    s_mov_b32 s95, 0
    s_setprio {opt('LPRIO', 0)}
    s_waitcnt lgkmcnt(0)
    """)
    g.srd(8, pX, XB); g.srd(44, pW, WB)
    A(f"""
    s_mov_b32 s31, 0
Lld:
    s_cmp_lt_u32 s31, 2
    s_cbranch_scc1 Lld_go
    s_waitcnt vmcnt(8)
    s_barrier
Lld_go:
    """)
    ld_chunk(g, False)
    A(f"""
    s_add_u32 s31, s31, 1
    s_cmp_lt_u32 s31, 9
    s_cbranch_scc1 Lld
    s_waitcnt vmcnt(8)
    s_barrier
    """)
    g.srd(12, pWS, WS_END)
    A(f"""
    s_waitcnt vmcnt(0)
    s_barrier
    s_branch Lh_start
Lg_compute:
    s_and_b32 s23, s16, 1              ; wm
    s_lshr_b32 s24, s16, 1             ; wn
    v_and_b32 v{vTok}, 31, v0
    v_lshrrev_b32 v{vHf}, 5, v0
    s_lshl_b32 s25, s23, 13
    v_lshlrev_b32 v{vT0}, 7, v{vTok}
    v_add_u32 v{vT0}, s25, v{vT0}
    v_bfe_u32 v{vT1}, v0, 1, 3
    v_xor_b32 v{vT1}, v{vT1}, v{vHf}
    """)
    for s in range(4):
        A(f"v_xor_b32 v{vT2}, {2*s}, v{vT1}\nv_lshl_add_u32 v{vXb+s}, v{vT2}, 4, v{vT0}")
    A(f"""
    v_bfe_u32 v{vT0}, v0, 2, 2
    v_lshl_add_u32 v{vT1}, v{vHf}, 3, v{vT0}
    v_lshlrev_b32 v{vT1}, 8, v{vT1}
    v_bfe_u32 v{vT2}, v0, 4, 1
    v_lshl_add_u32 v{vT1}, v{vT2}, 5, v{vT1}
    v_and_b32 v{vT2}, 3, v0
    v_lshl_add_u32 v{vT1}, v{vT2}, 3, v{vT1}
    s_lshl_b32 s25, s24, 1
    v_xor_b32 v{vT2}, s25, v{vT0}
    v_lshl_add_u32 v{vWb}, v{vT2}, 6, v{vT1}
    v_xor_b32 v{vT2}, 1, v{vT2}
    v_lshl_add_u32 v{vWb+1}, v{vT2}, 6, v{vT1}
    s_mov_b32 s30, 0
    s_waitcnt lgkmcnt(0)
    """)
    g.srd(12, pWS, WS_END)
    gen_init_misc(g, PK+8)
    g_setaddr(A)
    for i in range(64): A(f"v_mov_b32 v{ACC+i}, 0")
    A(f"""
    s_lshl_b32 s26, s19, 2
    s_lshl_b32 s27, s23, 1
    s_add_u32 s26, s26, s27            ; T0
    s_waitcnt lgkmcnt(0)
    s_cmp_ge_u32 s21, 9
    s_cbranch_scc1 Lg_vtype
    s_lshl_b32 s27, s21, 5
    s_lshl_b32 s28, s24, 4
    s_add_u32 s27, s27, s28
    v_add_u32 v{vT0}, s27, v{vHf}      ; G0
    s_lshl_b32 s28, s26, 10
    s_lshl_b32 s29, s26, 8
    s_add_u32 s29, s29, {LEFT}
    v_lshlrev_b32 v{vTok}, 3, v{vTok}
    v_add_u32 v{PK}, s29, v{vTok}
    v_add_u32 v{PK+1}, s28, v{vTok}
    v_add_u32 v{PK+2}, {MB-1280}, v{PK+1}
    v_mov_b32 v{PK+3}, 256
    v_mov_b32 v{PK+4}, 1024
    s_mov_b32 s32, {PAIR}
    """)
    for jg in range(8):
        A(f"""
        v_add_u32 v{vT1}, {8*(jg>>2) + 2*(jg&3)}, v{vT0}
        v_mul_u32_u24 v{vT2}, 7282, v{vT1}
        v_lshrrev_b32 v{vT2}, 16, v{vT2}
        v_mul_u32_u24 v{vT3}, 9, v{vT2}
        v_sub_u32 v{vT1}, v{vT1}, v{vT3}
        v_cmp_lt_u32 vcc, 4, v{vT1}
        v_cmp_eq_u32 s[34:35], 4, v{vT1}
        v_mul_u32_u24 v{vT2}, s32, v{vT2}
        v_cndmask_b32 v{vT3}, v{PK+1}, v{PK+2}, vcc
        v_lshl_add_u32 v{vT3}, v{vT1}, 8, v{vT3}
        v_cndmask_b32 v{vT3}, v{vT3}, v{PK}, s[34:35]
        v_cndmask_b32 v{vT1}, v{PK+4}, v{PK+3}, s[34:35]
        v_add_u32 v{vEA+jg}, v{vT2}, v{vT3}
        v_add_u32 v{vEA+8+jg}, v{vEA+jg}, v{vT1}
        """)
    g.stamp(1)
    g_loop(g, "Lg_qk", False)
    g.stamp(2)
    A(f"""
    s_lshl_b32 s27, s21, 2
    s_lshl_b32 s28, s24, 1
    s_add_u32 s27, s27, s28
    s_cmp_lt_u32 s27, 18
    s_cselect_b32 s28, {CS_BITS}, 1.0
    s_nop 7
    """)
    n = 0
    for i in range(2):
        for j in range(2):
            for q in range(4):
                a = acc(i, j) + 4*q
                p = PK + 2*(n % 8); n += 1
                for e in range(4): A(f"v_mul_f32 v{a+e}, s28, v{a+e}")
                A(f"v_cvt_pk_bf16_f32 v{p}, v{a}, v{a+1}\nv_cvt_pk_bf16_f32 v{p+1}, v{a+2}, v{a+3}")
                A(f"buffer_store_dwordx2 {V(p,2)}, v{vEA+8*i+4*j+q}, s[12:15], 0 offen {SC}")
    A(f"""
    s_branch Lg_done
Lg_vtype:
    s_sub_u32 s27, s21, 9
    s_lshl_b32 s27, s27, 7
    s_lshl_b32 s28, s24, 6
    s_add_u32 s27, s27, s28
    s_mul_i32 s28, s26, 36864
    s_add_u32 s28, s28, {VG}
    v_mul_u32_u24 v{vT3}, 9216, v{vHf}
    v_add_u32 v{vT0}, s27, v{vTok}
    v_lshl_add_u32 v{vEA}, v{vT0}, 4, v{vT3}
    """)
    g.stamp(1)
    g_loop(g, "Lg_v", True)
    g.stamp(2)
    A(f"""
    s_cmp_ge_u32 s27, 576
    s_cbranch_scc1 Lg_done
    s_nop 7
    """)
    n = 0
    for i in range(2):
        for j in range(2):
            for m in range(2):
                a = acc(i, j) + 8*m
                p = PK + 4*(n % 4); n += 1
                for e in range(4): A(f"v_cvt_pk_bf16_f32 v{p+e}, v{a+2*e}, v{a+2*e+1}")
                A(f"s_add_u32 s29, s28, {i*36864+m*18432}")
                A(f"buffer_store_dwordx4 {V(p,4)}, v{vEA}, s[12:15], s29 offen offset:{512*j} {SC}")
    A(f"""
Lg_done:
    s_setprio 2
    """)
    g.stamp(15)
    A("s_cmp_lg_u32 s16, 0\ns_cbranch_scc1 Lg_d2")
    g.ready(8)
    A("Lg_d2:\ns_waitcnt vmcnt(0) lgkmcnt(0)")
    g.stamp(3)
    g.gsync(5, 8)
    A("s_cmp_lg_u32 s16, 0\ns_cbranch_scc1 Lattn")
    g.stamp(16)
    g.signal("s21", 8)
    if g.dbg: A("s_waitcnt vmcnt(0)")
    g.stamp(17)
    A("s_branch Lattn")

def gen_init_misc(g, t):
    A = g.A
    for i in range(2):
        A(f"""
        s_and_b32 s25, s16, 3
        s_lshl_b32 s25, s25, 7
        s_add_u32 s25, s25, {64*i-14 & 0xffffffff}
        v_add_u32 v{t+4}, s25, v0
        v_mul_u32_u24 v{t+5}, 1821, v{t+4}
        v_lshrrev_b32 v{t+5}, 16, v{t+5}
        v_mul_u32_u24 v{t+5}, 36, v{t+5}
        v_cmp_eq_u32 s[34:35], v{t+5}, v{t+4}
        v_cmp_gt_u32 vcc, {36*8}, v{t+4}
        v_mov_b32 v{t+5}, 0x3f803f80
        v_lshlrev_b32 v{t+4}, 4, v{t+4}
        s_and_b64 vcc, vcc, s[34:35]
        v_add_u32 v{t+4}, {CONST+224}, v{t+4}
        v_cndmask_b32 v{t}, 0, v{t+5}, vcc
        v_cndmask_b32 v{t+1}, 0, v{t+5}, vcc
        v_cndmask_b32 v{t+2}, 0, v{t+5}, vcc
        v_cndmask_b32 v{t+3}, 0, v{t+5}, vcc
        ds_write_b128 v{t+4}, {V(t,4)}
        """)

import k2, k3
from k2 import m16, m8, phase, maxtree
from k2 import vL8, vKM, vKL, vV, vL16, vV0, vVinc, Q1A, Q1B, Q2A, Q2B, NMA, NMB, SA, SB, PA, PB, OA, OB, KB, KL, VB
aT0, aT1, aT2, aT3 = 5, 6, 7, 8
TMP = 168
vCA, vCR, vOne, vKM0, vKL0, vG0, vG1, vG2 = range(176, 184)
bKG, bVG, b5G, bRD, bTR, bBW, bBR, bUO, bZP, bPG = range(184, 194)
CM = 216
FLAG = SY + 40

def head_params(A):
    A(f"""
    s_and_b32 s17, s2, 7
    s_lshl_b32 s17, s17, 2
    s_bfe_u32 s25, s2, 0x20003
    s_add_u32 s17, s17, s25            ; h
    s_lshr_b32 s18, s2, 5              ; qb
    s_and_b32 s20, s16, 3              ; qg / u
    s_and_b32 s21, s17, 1              ; parity
    s_lshr_b32 s26, s17, 1             ; pair
    v_lshlrev_b32 v{vL16}, 4, v0
    s_mul_i32 s39, s26, {PAIR}
    s_mul_i32 s28, s21, {LEFT}
    s_add_u32 s27, s39, s28
    s_add_u32 s27, s27, {KV}
    s_add_u32 s8, s{pWS}, s27
    s_addc_u32 s9, s{pWS+1}, 0
    s_mov_b32 s10, {WIN}
    s_mov_b32 s11, 0x20000
    s_lshl_b32 s22, s21, 14
    s_add_u32 s23, s22, 65536
    s_cmp_eq_u32 s21, 0
    s_cselect_b32 s24, {LEFT}, 0
    s_lshl_b32 s25, s20, 10
    s_add_u32 s40, s22, s25
    s_add_u32 s41, s23, s25
    s_add_u32 s42, s23, 8192
    s_and_b32 s44, s20, 1
    s_lshl_b32 s44, s44, 10
    s_add_u32 s44, s44, s24
    s_mul_i32 s43, s17, 288
    s_add_u32 s43, s43, {VG}
    s_add_u32 s46, s44, s27
    s_cmp_eq_u32 s20, 0
    s_cselect_b32 s42, s42, s44
    s_cselect_b32 s44, s43, s46
    s_cselect_b32 s45, 9, 2
    s_cselect_b32 s47, 288, 2
    s_cselect_b64 vcc, -1, 0
    s_lshl_b32 s45, s45, 10
    s_lshl_b32 s47, s47, 10
    s_lshl_b32 s25, s20, 6
    s_add_u32 s46, s25, 256
    """)
    for r, base in ((vG0, "s25"), (vG1, "s46"), (vG2, "512")):
        A(f"""
        v_add_u32 v{aT0}, {base}, v0
        v_mul_u32_u24 v{aT2}, 3641, v{aT0}
        v_lshrrev_b32 v{aT2}, 16, v{aT2}
        v_mul_u32_u24 v{aT3}, {9216-288}, v{aT2}
        v_lshl_add_u32 v{r}, v{aT0}, 4, v{aT3}
        """)
    A(f"v_cndmask_b32 v{vG2}, v{vL16}, v{vG2}, vcc")

def dma_skip(A, n):
    A(f"""
    s_add_u32 s40, s40, {(n*8192) & 0xffffffff}
    s_add_u32 s41, s41, {(n*9216) & 0xffffffff}
    s_add_u32 s43, s43, {(n*8*36864) & 0xffffffff}
    s_mul_i32 s25, s45, {n}
    s_add_u32 s42, s42, s25
    s_mul_i32 s25, s47, {n}
    s_add_u32 s44, s44, s25
    """)

def dma_iter(A):
    A(f"""
    s_mov_b32 m0, s40
    s_add_u32 s46, s40, 4096
    buffer_load_dwordx4 v{vL16}, s[8:11], s40 offen lds {SC}
    s_mov_b32 m0, s46
    s_add_u32 s40, s40, 8192
    buffer_load_dwordx4 v{vL16}, s[8:11], s46 offen lds {SC}
    s_mov_b32 m0, s41
    s_add_u32 s46, s41, 4096
    buffer_load_dwordx4 v{vG0}, s[12:15], s43 offen lds {SC}
    s_mov_b32 m0, s46
    s_add_u32 s41, s41, 9216
    buffer_load_dwordx4 v{vG1}, s[12:15], s43 offen lds {SC}
    s_mov_b32 m0, s42
    s_add_u32 s43, s43, {8*36864}
    buffer_load_dwordx4 v{vG2}, s[12:15], s44 offen lds {SC}
    s_add_u32 s42, s42, s45
    s_add_u32 s44, s44, s47
    """)
def dma_n(g, n):
    l = g.lab("Ldm")
    g.A(f"s_mov_b32 s31, {n}\n{l}:")
    dma_iter(g.A)
    g.A(f"s_sub_u32 s31, s31, 1\ns_cmp_lg_u32 s31, 0\ns_cbranch_scc1 {l}")

def avail_add(g, units):
    l = g.lab("Lav")
    g.A(f"""
    s_cmp_lg_u32 s16, 4
    s_cbranch_scc1 {l}
    v_mov_b32 v{TMP}, {units << 8}
    s_mov_b64 exec, 15
    ds_add_u32 v{bPG}, v{TMP}
    s_mov_b64 exec, -1
{l}:
    """)
def wait_progress(g, n, sl=4):
    l = g.lab("Lq"); d = g.lab("Ld")
    g.A(f"""
    s_mov_b32 s93, {SPIN}
{l}:
    ds_read_b32 v{TMP}, v{bPG}
    s_waitcnt lgkmcnt(0)
    v_and_b32 v{TMP}, 0xff, v{TMP}
    v_cmp_gt_u32 vcc, {n}, v{TMP}
    s_nop 3
    s_cmp_eq_u64 vcc, 0
    s_cbranch_scc1 {d}
    s_sleep {sl}
    s_sub_u32 s93, s93, 1
    s_cmp_lg_u32 s93, 0
    s_cbranch_scc1 {l}
{d}:
    """)

def gen_stage1(g):
    A = g.A
    KR, VR, CR, UU, OUT = 40, 60, 68, 84, 136
    T = TMP
    R = kconv.ConvRegs(16)
    A("s_waitcnt lgkmcnt(0)")
    g.srd(12, pWS, WS_END)
    A(f"""
    s_sub_u32 s17, s2, 224
    s_cmp_lt_u32 s16, 4
    s_cbranch_scc1 Lx_a
    s_mov_b32 s95, 1
    s_mov_b32 s18, 8
    s_lshl_b32 s19, s17, 1
    s_add_u32 s19, s19, 512
    s_bfe_u32 s25, s2, 0x10003
    s_lshl_b32 s25, s25, 14
    s_add_u32 s96, s25, 40960
    s_add_u32 s97, s25, {65536+46080}
    s_add_u32 s99, s97, 9344
    s_add_u32 s3, s3, 32
    s_add_u32 s94, s94, 32
    s_branch Lb_setup
Lx_a:
    s_cmp_ge_u32 s17, {NREP}
    s_cbranch_scc1 Lx_1
    s_cmp_lg_u32 s16, 0
    s_cbranch_scc1 Lx_1
    v_lshlrev_b32 v11, 8, v0
    v_mov_b32 v12, 0
    s_lshl_b32 s25, s17, 15
    s_add_u32 s25, s25, {CNT}
    buffer_store_dword v12, v11, s[12:15], s25 offen {SC}
    s_add_u32 s25, s25, 16384
    s_mov_b64 exec, 0xfffff
    buffer_store_dword v12, v11, s[12:15], s25 offen {SC}
    s_mov_b64 exec, -1
Lx_1:
    s_getpc_b64 s[26:27]
Lpc0:
    s_add_u32 s26, s26, Lcode_begin-Lpc0
    s_addc_u32 s27, s27, -1
    s_lshl_b32 s25, s16, 13
    v_lshlrev_b32 v13, 7, v0
    v_add_u32 v13, s25, v13
    v_min_u32 v13, Lcode_end-Lcode_begin-4, v13
    v_mov_b32 v15, s27
    v_add_co_u32 v14, vcc, s26, v13
    s_nop 1
    v_addc_co_u32 v15, vcc, 0, v15, vcc
    global_load_dword v210, v[14:15], off
    """)
    gen_init_misc(g, 144)
    A(f"""
    s_cmp_ge_u32 s17, {NREP}
    s_cbranch_scc1 Lx_2
    s_cmp_lg_u32 s16, 0
    s_cbranch_scc1 Lx_2
    s_lshl_b32 s27, s17, 2
    v_mov_b32 v11, s27
    v_mov_b32 v12, 1
    s_mov_b64 exec, 1
    s_waitcnt vmcnt(1)
    global_store_dword v11, v12, s[{pDBG}:{pDBG+1}] {SC}
    s_mov_b64 exec, -1
Lx_2:
    s_waitcnt lgkmcnt(0)
    s_barrier
    s_cmp_lg_u32 s16, 0
    s_cbranch_scc1 Lattn
    """)
    g.wait_words(SY+36, 1, T, n=1, sl=8)
    A(f"""
    s_branch Lattn
Lh_restart:
    s_sub_u32 s3, s3, 32
    s_sub_u32 s94, s94, 32
Lh_start:
    s_mov_b32 s95, 0
    s_lshr_b32 s17, s2, 3              ; tb
    s_and_b32 s18, s2, 7               ; cb
    s_lshl_b32 s19, s2, 1
    s_bfe_u32 s25, s2, 0x10003
    s_lshl_b32 s96, s25, 14
    s_add_u32 s97, s96, 65536          ; V blocks 0..2
    s_add_u32 s99, s96, {65536+6*9216}
Lb_setup:
    s_and_b32 s23, s16, 3              ; u
    v_and_b32 v{vT0}, 7, v0            ; cc
    v_lshrrev_b32 v{vT1}, 3, v0        ; tg
    s_lshl_b32 s21, s18, 9
    v_lshlrev_b32 v{vT3}, 6, v{vT0}
    """)
    g.srd(4, pSH, 576*8)
    for i in range(4): A(f"buffer_load_dwordx4 {V(CR+4*i,4)}, v{vT3}, s[4:7], s21 offen offset:{16*i}")
    A(f"""
    s_mul_i32 s20, s17, {64*1152}
    s_lshl_b32 s21, s18, 7
    s_add_u32 s20, s20, s21
    v_mul_u32_u24 v{vT2}, 1152, v{vT1}
    v_lshl_add_u32 v{vT2}, v{vT0}, 4, v{vT2}
    v_add_u32 v{vT2}, s20, v{vT2}
    v_add_u32 v{b5G}, {61*1152}, v{vT2}
    s_mul_i32 s20, s23, {8*1152}
    v_add_u32 v{bVG}, s20, v{vT2}
    v_subrev_u32 v{bKG}, {3*1152}, v{bVG}
    v_lshlrev_b32 v{vL16}, 4, v0
    s_add_u32 s28, s97, 9344
    s_lshr_b32 s25, s23, 1
    s_add_u32 s98, s19, s25            ; channel
    s_cmp_eq_u32 s25, 0
    s_cselect_b32 s96, s96, s28
    s_mul_i32 s25, s25, 4672
    s_add_u32 s97, s97, s25
    s_add_u32 s97, s97, 576
    s_lshl_b32 s25, s19, 1
    s_load_dword s100, s[{pD}:{pD+1}], s25
    s_cmp_eq_u32 s95, 1
    s_cbranch_scc1 Lb_load
Lb_setup2:
    v_lshlrev_b32 v{bRD}, 8, v{vT1}
    v_lshl_add_u32 v{bRD}, v{vT0}, 4, v{bRD}
    s_lshl_b32 s25, s23, 11
    s_add_u32 s25, s25, s99
    v_add_u32 v{bRD}, s25, v{bRD}
    v_lshrrev_b32 v{vT2}, 4, v0
    v_and_b32 v{vT3}, 15, v0
    v_lshlrev_b32 v{vT3}, 7, v{vT3}
    v_lshl_add_u32 v{bBW}, v{vT2}, 4, v{vT3}
    v_add_u32 v{bBW}, s25, v{bBW}
    v_add_u32 v{bBR}, s25, v{vL16}
    v_bfe_u32 v{vT3}, v0, 2, 2
    v_lshl_add_u32 v{bTR}, v{vT2}, 3, v{vT3}
    v_lshlrev_b32 v{bTR}, 7, v{bTR}
    v_and_b32 v{vT3}, 3, v0
    v_lshl_add_u32 v{bTR}, v{vT3}, 3, v{bTR}
    v_lshlrev_b32 v{bPG}, 8, v{vT3}
    v_add_u32 v{bPG}, {UC}, v{bPG}
    s_lshl_b32 s25, s23, 5
    s_add_u32 s25, s25, s99
    v_add_u32 v{bTR}, s25, v{bTR}
    v_lshlrev_b32 v{bUO}, 12, v{vT1}
    v_lshl_add_u32 v{bUO}, v{vT0}, 4, v{bUO}
    s_lshl_b32 s22, s18, 2
    s_add_u32 s22, s22, s23
    s_lshl_b32 s22, s22, 16
    s_lshl_b32 s25, s17, 7
    s_add_u32 s22, s22, s25
    s_add_u32 s22, s22, {UT}
    v_add_u32 v{bUO}, s22, v{bUO}
    v_min_u32 v{bZP}, 35, v0
    v_lshlrev_b32 v{bZP}, 4, v{bZP}
    s_sub_u32 s25, s97, 576
    v_add_u32 v{bZP}, s25, v{bZP}
    s_waitcnt lgkmcnt(0)
    """)
    conv_setup(A, R)
    A("s_mov_b32 s29, 0xffff0000\ns_mov_b32 s28, 0xffff\ns_waitcnt vmcnt(0)")
    for c in range(8):
        for j in range(4):
            d, e, src = CM + 8*(c >> 1) + 2*j + (c & 1), c & 1, CR + 2*c + (j >> 1)
            if (j & 1) == e: A(f"v_and_b32 v{d}, {'s29' if e else 's28'}, v{src}")
            elif e: A(f"v_lshlrev_b32 v{d}, 16, v{src}")
            else: A(f"v_lshrrev_b32 v{d}, 16, v{src}")
    A(f"""
    s_cmp_eq_u32 s95, 0
    s_cbranch_scc1 Lh_kv
    s_barrier
    s_branch Lb_s0
Lh_kv:
    """)
    head_params(A)
    dma_skip(A, 1)
    g.wait_words(SY, 9, T, sl=2)
    A(f"s_setprio {opt('CPRIO', 1)}")
    A("s_cmp_ge_u32 s2, 224\ns_cbranch_scc1 Lh_kx")
    dma_n(g, 5)
    A("s_waitcnt vmcnt(15)")
    g.gsync(1, T)
    avail_add(g, 4)
    A("s_branch Lb_load\nLh_kx:")
    dma_skip(A, 2)
    dma_n(g, 3)
    A(f"""
Lb_load:
    s_and_b32 s28, s16, 3
    s_lshl_b32 s25, s28, 10
    s_add_u32 s25, s25, s99
    """)
    g.srd(4, pK, XB)
    A(f"""
    s_mov_b32 m0, s25
    s_add_u32 s27, s25, 4096
    buffer_load_dwordx4 v{bKG}, s[4:7], 0 offen {NTB} lds
    s_mov_b32 m0, s27
    v_add_u32 v{bKG}, {32*1152}, v{bKG}
    s_add_u32 s27, s99, 8192
    buffer_load_dwordx4 v{bKG}, s[4:7], 0 offen {NTB} lds
    s_mov_b32 m0, s27
    s_add_u32 s27, s25, 9216
    buffer_load_dwordx4 v{b5G}, s[4:7], 0 offen lds
    s_mov_b32 s4, s{pV}
    s_mov_b32 s5, s{pV+1}
    s_mov_b32 m0, s27
    s_add_u32 s27, s27, 4096
    buffer_load_dwordx4 v{bVG}, s[4:7], 0 offen {NTB} lds
    s_mov_b32 m0, s27
    s_mov_b32 s27, {32*1152}
    buffer_load_dwordx4 v{bVG}, s[4:7], s27 offen {NTB} lds
    s_mov_b32 s4, s{pH}
    s_mov_b32 s5, s{pH+1}
    s_and_b32 s25, s28, 1
    s_lshl_b32 s25, s25, 11
    s_lshl_b32 s27, s98, 12
    s_add_u32 s27, s27, s25
    v_lshlrev_b32 v{T}, 3, v{vL16}
    s_mov_b64 exec, 0xffff
    buffer_load_dword v209, v{T}, s[4:7], s27 offen
    s_mov_b64 exec, -1
    s_cmp_eq_u32 s95, 1
    s_cbranch_scc1 Lb_setup2
    """)
    A("s_waitcnt vmcnt(6)")
    g.post(2, T)
    A("s_cmp_lg_u32 s16, 4\ns_cbranch_scc1 Lb_a6")
    g.wait_words("s94", 2, T)
    avail_add(g, 6)
    A("Lb_a6:\ns_waitcnt vmcnt(1)\nLb_s0:")
    g.gsync(3, T)
    g.stamp(1)
    for n in range(5): A(f"ds_read_b128 {V(KR+4*n,4)}, v{bRD} offset:{128*n}")
    for t in range(2): A(f"ds_read_b128 {V(VR+4*t,4)}, v{bRD} offset:{9216+128*t}")
    A("s_mov_b32 s29, 0xffff0000\ns_waitcnt lgkmcnt(2)")
    for j in range(4):
        for d in range(4):
            for t in range(2):
                for e in range(2):
                    u = UU + 4*d + 2*t + e
                    if j == 0: A(f"v_dot2_f32_bf16 v{u}, v{KR+4*(t+3)+d}, v{CM+8*d+e}, 0")
                    else: A(f"v_dot2c_f32_bf16 v{u}, v{KR+4*(t+3-j)+d}, v{CM+8*d+2*j+e}")
    A("s_waitcnt lgkmcnt(0)")
    for d in range(4):
        for t in range(2):
            x = UU + 16 + 4*d + 2*t
            A(f"v_lshlrev_b32 v{x}, 16, v{VR+4*t+d}\nv_and_b32 v{x+1}, s29, v{VR+4*t+d}")
    for i in range(8): A(f"v_pk_mul_f32 {V(UU+2*i,2)}, {V(UU+2*i,2)}, {V(UU+16+2*i,2)}")
    for d in range(4):
        for t in range(2): A(f"v_cvt_pk_bf16_f32 v{OUT+4*t+d}, v{UU+4*d+2*t}, v{UU+4*d+2*t+1}")
    A(f"""
    ds_write_b128 v{bRD}, {V(OUT,4)} offset:9216
    ds_write_b128 v{bRD}, {V(OUT+4,4)} offset:{9216+128}
    s_waitcnt lgkmcnt(0)
    """)
    g.gsync(4, T)
    for i in range(2):
        A(f"ds_read_b64_tr_b16 {V(OUT+4*i,2)}, v{bTR} offset:{9216+4096*i}")
        A(f"ds_read_b64_tr_b16 {V(OUT+4*i+2,2)}, v{bTR} offset:{9216+4096*i+512}")
    A(f"""
    s_mov_b32 s27, 32768
    s_waitcnt lgkmcnt(0)
    ds_write_b128 v{bBW}, {V(OUT,4)}
    ds_write_b128 v{bBW}, {V(OUT+4,4)} offset:64
    ds_read_b128 {V(OUT+8,4)}, v{bBR}
    ds_read_b128 {V(OUT+12,4)}, v{bBR} offset:1024
    s_waitcnt lgkmcnt(0)
    buffer_store_dwordx4 {V(OUT+8,4)}, v{bUO}, s[12:15], 0 offen {SC}
    buffer_store_dwordx4 {V(OUT+12,4)}, v{bUO}, s[12:15], s27 offen {SC}
    """)
    g.stamp(2)
    A("s_cmp_lg_u32 s16, 4\ns_cbranch_scc1 Lb_nr\ns_cmp_eq_u32 s95, 0\ns_cbranch_scc1 Lb_nr")
    g.ready(T)
    A("Lb_nr:\ns_waitcnt vmcnt(0)")
    g.stamp(3)
    g.gsync(5, T)
    A("s_cmp_eq_u32 s95, 1\ns_cbranch_scc1 Lc_x")
    A("s_cmp_lg_u32 s16, 4\ns_cbranch_scc1 Lc_k\ns_and_b32 s25, s2, 15\ns_add_u32 s25, s25, 64")
    g.signal("s25", T)
    A("Lc_k:")
    dma_n(g, 2)
    A("s_waitcnt vmcnt(0)")
    g.post(6, T)
    A("s_cmp_lg_u32 s16, 4\ns_cbranch_scc1 Lc_w")
    g.wait_words("s94", 6, T)
    avail_add(g, 4)
    wait_progress(g, 7, 8)
    g.poll(64, 16, 16, T, sl=opt('USLEEP', 4))
    A("s_branch Lc_pd\nLc_x:\ns_cmp_lg_u32 s16, 4\ns_cbranch_scc1 Lc_w\ns_and_b32 s25, s2, 3\ns_add_u32 s25, s25, 80")
    g.signal("s25", T)
    g.poll(80, 4, 8, T, sl=2)
    A(f"""
Lc_pd:
    s_sub_u32 s25, 2, s95
    v_mov_b32 v{T}, {SY+36}
    v_mov_b32 v{T+1}, s25
    ds_write_b32 v{T}, v{T+1}
Lc_w:
    s_sub_u32 s91, 2, s95
    """)
    g.wait_words(SY+36, "s91", T, n=1, sl=opt('WSL', 8))
    g.stamp(4)
    A(f"""
    s_and_b32 s28, s16, 1
    s_lshl_b32 s25, s28, 11
    s_add_u32 s27, s97, s25
    s_mov_b32 m0, s27
    s_lshl_b32 s27, s98, 12
    s_add_u32 s27, s27, s25
    buffer_load_dwordx4 v{vL16}, s[4:7], s27 offen lds
    buffer_load_dwordx4 v{vL16}, s[4:7], s27 offen offset:1024 lds
    ds_write_b128 v{bZP}, {V(R.acc,4)}
    s_mul_i32 s25, s28, {2*4160}
    s_add_u32 s25, s25, s96
    s_add_u32 s25, s25, 64
    s_lshl_b32 s27, s28, 2
    s_sub_u32 s27, s101, s27
    s_sub_u32 s27, s27, {YT-UT}
    """)
    for c in range(2):
        A("s_mov_b32 m0, s25\ns_nop 0")
        for i in range(4): A(f"buffer_load_dwordx4 v{vL16}, s[12:15], s27 offen offset:{1024*i} lds {SC}")
        if c == 0: A("s_add_u32 s25, s25, 4160\ns_sub_u32 s27, s27, 2")
    A("s_waitcnt vmcnt(0) lgkmcnt(0)")
    g.gsync(7, T)
    A(f"s_setprio {opt('VPRIO', 0)}")
    g.stamp(5)
    A("s_cmp_eq_u32 s28, 0\ns_cbranch_scc0 Lc_set1")
    kconv.conv_main(A, R, "Lc_l0", 0)
    A("s_setprio 1")
    kconv.conv_epi(A, R, 0, "s96", "s100", "s101", "s[12:15]", SC)
    A("s_branch Lc_done\nLc_set1:")
    kconv.conv_main(A, R, "Lc_l1", 1)
    A("s_setprio 1")
    kconv.conv_epi(A, R, 1, "s96", "s100", "s101", "s[12:15]", SC)
    A("Lc_done:\ns_waitcnt vmcnt(0)")
    g.stamp(6)
    g.gsync(8, T)
    A("s_and_b32 s25, s16, 3\ns_cmp_lg_u32 s25, 0\ns_cbranch_scc1 Lc_e\ns_and_b32 s25, s2, 15\ns_add_u32 s25, s25, 16")
    g.signal("s25", T)
    A("Lc_e:\ns_cmp_eq_u32 s95, 0\ns_cbranch_scc1 Lh_p3\ns_branch Lh_restart")

def conv_setup(A, R):
    A(f"""
    v_bfe_u32 v{R.t0}, v0, 2, 2
    v_mul_u32_u24 v{R.aA}, 4160, v{R.t0}
    v_and_b32 v{R.t0}, 3, v0
    v_lshl_add_u32 v{R.aA}, v{R.t0}, 3, v{R.aA}
    v_lshrrev_b32 v{R.t0}, 4, v0
    v_lshlrev_b32 v{R.aB}, 4, v{R.t0}
    v_sub_u32 v{R.aA}, v{R.aA}, v{R.aB}
    s_add_u32 s25, s96, {64+32-8}
    v_add_u32 v{R.aA}, s25, v{R.aA}
    v_and_b32 v{R.aU}, 15, v0
    v_lshlrev_b32 v{R.aU}, 5, v{R.aU}
    v_add_u32 v{R.aB}, v{R.aB}, v{R.aU}
    s_sub_u32 s25, s97, 96
    v_add_u32 v{R.aB}, s25, v{R.aB}
    v_lshl_add_u32 v{R.aU}, v{R.t0}, 3, v{R.aU}
    v_and_b32 v{R.mask}, 15, v0
    v_lshlrev_b32 v{R.t0}, 3, v{R.t0}
    v_sub_u32 v{R.t0}, v{R.mask}, v{R.t0}
    v_add_u32 v{R.t0}, 17, v{R.t0}
    v_mov_b32 v{R.acc}, 0xffff
    v_mov_b32 v{R.acc+1}, 0xffff0000
    """)
    for d in range(4):
        A(f"""
        v_cmp_lt_i32 vcc, {2*d}, v{R.t0}
        v_cmp_lt_i32 s[26:27], {2*d+1}, v{R.t0}
        s_nop 0
        v_cndmask_b32 v{R.mask+d}, 0, v{R.acc}, vcc
        v_cndmask_b32 v{R.acc+2}, 0, v{R.acc+1}, s[26:27]
        v_or_b32 v{R.mask+d}, v{R.mask+d}, v{R.acc+2}
        """)
    for i in range(16): A(f"v_mov_b32 v{R.acc+i}, 0")
    A(f"""
    s_lshl_b32 s101, s98, 12
    s_add_u32 s101, s101, {YT}
    s_lshl_b32 s25, s100, 16
    s_and_b32 s27, s100, 0xffff0000
    s_bitcmp0_b32 s98, 0
    s_cselect_b32 s100, s25, s27       ; D
    """)

def zero_acc(A):
    for i in range(16): A(f"v_mov_b32 v{OA+i}, 0")
    for i in range(16): A(f"v_mov_b32 v{OB+i}, 0")
    for i in range(8): A(f"v_mov_b32 v{PB+i}, 0")
    for i in range(8): A(f"v_mov_b32 v{VB[1]+i}, 0")

def gen_attn(g):
    A = g.A
    A("Lattn:\ns_setprio 2")
    head_params(A)
    A(f"""
    v_lshlrev_b32 v{vL8}, 3, v0
    s_lshl_b32 s31, s18, 3
    s_lshl_b32 s32, s20, 1
    s_add_u32 s32, s31, s32
    s_mul_i32 s34, s21, {MB}
    s_add_u32 s34, s34, s39
    s_lshl_b32 s35, s32, 10
    s_add_u32 s35, s35, s34
    s_add_u32 s34, s39, {LEFT}
    s_lshl_b32 s37, s32, 8
    s_add_u32 s37, s37, s34
    v_and_b32 v{aT1}, 31, v0
    v_lshrrev_b32 v{aT0}, 5, v0
    v_mul_u32_u24 v{aT3}, 288, v{aT0}
    v_lshl_add_u32 v{aT2}, v{aT1}, 4, v{aT3}
    v_add_u32 v{vV0}, s23, v{aT2}
    v_mov_b32 v{vVinc}, {4*VT}
    v_mov_b32 v{aT2}, {CONST+240}
    v_mov_b32 v{aT3}, {CONST+224}
    v_cmp_eq_u32 vcc, 18, v{aT1}
    v_subrev_u32 v{aT0}, 20, v{aT1}
    v_cmp_gt_u32 s[52:53], 8, v{aT0}
    v_cndmask_b32 v{aT2}, v{aT2}, v{aT3}, vcc
    v_mov_b32 v{aT3}, {CONST+176}
    v_cmp_lt_u32 vcc, 17, v{aT1}
    v_cndmask_b32 v{aT2}, v{aT2}, v{aT3}, s[52:53]
    s_mov_b32 s50, 0
    v_cndmask_b32 v{vV0}, v{vV0}, v{aT2}, vcc
    v_cndmask_b32 v{vVinc}, v{vVinc}, 0, vcc
    v_cmp_gt_u32 vcc, 32, v0
    s_cmp_eq_u32 s21, 0
    s_cselect_b64 s[52:53], -1, 0
    s_cselect_b64 s[54:55], 0, -1
    s_and_b64 s[56:57], s[52:53], vcc
    s_and_b64 s[58:59], s[54:55], vcc
    s_andn2_b64 s[60:61], s[52:53], vcc
    s_andn2_b64 s[62:63], s[54:55], vcc
    v_lshlrev_b32 v{aT2}, 3, v{aT1}
    v_add_u32 v{vKM0}, s22, v{vL8}
    v_add_u32 v{vKL0}, s24, v{vL8}
    s_lshl_b32 s25, s20, 8
    s_add_u32 s25, s25, {UC}
    v_lshlrev_b32 v{vCA}, 2, v0
    v_add_u32 v{vCA}, s25, v{vCA}
    v_mov_b32 v{vOne}, 1
    s_mul_i32 s25, s32, {36*1024}
    s_add_u32 s25, s25, {OF}
    s_lshl_b32 s48, s17, 10
    s_add_u32 s48, s48, s25
    s_lshl_b32 s49, s17, 7
    s_add_u32 s49, s49, s25
    s_add_u32 s49, s49, 32768
    """)
    zero_acc(A)
    A("s_cmp_lg_u32 s16, 0\ns_cbranch_scc1 La_w")
    g.poll(0, 14, 16, TMP)
    A(f"""
    v_mov_b32 v{TMP}, {SY+32}
    v_mov_b32 v{TMP+1}, 1
    ds_write_b32 v{TMP}, v{TMP+1}
La_w:
    """)
    g.wait_words(SY+32, 1, TMP, n=1)
    g.stamp(7)
    dma_iter(A)
    A(f"""
    buffer_load_dwordx2 {V(Q1A,2)}, v{vL8}, s[12:15], s35 offen {SC}
    buffer_load_dwordx2 {V(Q1A+2,2)}, v{vL8}, s[12:15], s35 offen offset:512 {SC}
    buffer_load_dwordx2 {V(Q1B,2)}, v{vL8}, s[12:15], s35 offen offset:1024 {SC}
    buffer_load_dwordx2 {V(Q1B+2,2)}, v{vL8}, s[12:15], s35 offen offset:1536 {SC}
    buffer_load_dwordx2 {V(Q2A,2)}, v{aT2}, s[12:15], s37 offen {SC}
    buffer_load_dwordx2 {V(Q2B,2)}, v{aT2}, s[12:15], s37 offen offset:256 {SC}
    s_cmp_lt_u32 s2, 224
    s_cbranch_scc1 La_n12
    """)
    dma_n(g, 2)
    A(f"""
    v_mov_b32 v{TMP}, {4 << 8}
    ds_add_u32 v{vCA}, v{TMP}
La_n12:
    s_waitcnt vmcnt(0)
    """)
    g.post(9, TMP)
    for Q in (Q2A, Q2B):
        A(f"""
        v_cndmask_b32 v{Q+2}, 0, v{Q}, s[60:61]
        v_cndmask_b32 v{Q+3}, 0, v{Q+1}, s[62:63]
        v_cndmask_b32 v{Q}, 0, v{Q}, s[56:57]
        v_cndmask_b32 v{Q+1}, 0, v{Q+1}, s[58:59]
        """)
    g.wait_words(SY, 9, TMP)
    g.stamp(8)
    A(f"""
    ds_read2st64_b64 {V(KB[0],4)}, v{vKM0} offset0:0 offset1:1
    ds_read_b64 {V(KL,2)}, v{vKL0}
    s_waitcnt lgkmcnt(0)
    {m16(SA, KB[0], Q1A, 0)}
    {m16(SB, KB[0], Q1B, 0)}
    {m8(SA, KL, Q2A)}
    {m8(SB, KL, Q2B)}
    s_nop 10
    """)
    maxtree(A, aT0, SA)
    maxtree(A, aT1, SB)
    A(f"""
La_setm:
    v_mov_b32 v{aT2}, v{aT0}
    v_mov_b32 v{aT3}, v{aT1}
    v_mov_b32 v{vKM}, v{vKM0}
    v_mov_b32 v{vKL}, v{vKL0}
    v_permlane32_swap_b32 v{aT0}, v{aT2}
    v_permlane32_swap_b32 v{aT1}, v{aT3}
    v_mov_b32 v{vV}, v{vV0}
    ds_read_b128 {V(VB[0],4)}, v{vV0}
    ds_read_b128 {V(VB[0]+4,4)}, v{vV0} offset:576
    v_max_f32 v{aT0}, v{aT0}, v{aT2}
    v_max_f32 v{aT1}, v{aT1}, v{aT3}
    """)
    for i in range(16): A(f"v_sub_f32 v{NMA+i}, 0, v{aT0}")
    A(f"""
    v_sub_f32 v{NMB}, 0, v{aT1}
    s_mov_b32 s51, 0
    {m16(SA, KB[0], Q1A, V(NMA,16))}
    {m8(SA, KL, Q2A)}
    """)
    for i in range(1, 16): A(f"v_sub_f32 v{NMB+i}, 0, v{aT1}")
    A("s_setprio 0")
    g.stamp(9)
    if g.dbg and 'its' in EXP: A("s_mov_b32 s55, 0\nv_mov_b32 v214, 0\nv_writelane_b32 v214, s88, 0\nv_writelane_b32 v214, s90, 32")
    A(".p2align 6\nLa_loop:")
    for j in range(4):
        b = j & 1; nb = b ^ 1
        koff = 2*(j+1)
        ex = [[f"ds_read2st64_b64 {V(KB[nb],4)}, v{vKM} offset0:{koff} offset1:{koff+1}"], [], [], ["s_waitcnt lgkmcnt(0)"]]
        if j == 0:
            ex[0].append(f"ds_read_b64 {V(KL+2,2)}, v{vKL} offset:512")
            ex[2] = ["s_min_u32 s53, s51, 14"]
        if j == 1: ex[0].append(f"ds_add_rtn_u32 v{vCR}, v{vCA}, v{vOne}")
        if j == 2: ex[2] = ["s_lshr_b32 s52, s52, 8"]
        if j == 3:
            ex[0].append(f"ds_read_b64 {V(KL,2)}, v{vKL} offset:1024")
            ex[1] = [f"v_add_u32 v{vV}, v{vVinc}, v{vV}"]
            ex[2] = ["s_cmp_lt_u32 s51, 16"]
        klp = KL + 2*(j >> 1)
        phase(A, SA, PA, [m16(SB, KB[b], Q1B, V(NMB,16)), m8(SB, klp, Q2B + 2*(j & 1)),
                          m16(OB, VB[nb], PB, V(OB,16)), m16(OB, VB[nb]+4, PB+4, V(OB,16))], ex)
        jn = (j+1) & 3
        klp = KL + 2*(jn >> 1)
        ex = [[], [], [f"ds_read_b128 {V(VB[nb],4)}, v{vV} offset:{jn*VT}"], [f"ds_read_b128 {V(VB[nb]+4,4)}, v{vV} offset:{jn*VT+576}"]]
        if j == 0: ex[0] = ["s_add_u32 s51, s51, 1"]
        if j == 1: ex[1] = [f"v_readfirstlane_b32 s52, v{vCR}"]
        if j == 2:
            ex[0] = ["s_cmp_gt_u32 s53, s52"]
            ex[3] += ["s_cbranch_scc1 La_chk", "La_chkd:"]
        if j == 3:
            ex[1] = [f"v_add_u32 v{vKM}, 4096, v{vKM}", f"v_add_u32 v{vKL}, 1024, v{vKL}"]
        phase(A, SB, PB, [m16(SA, KB[nb], Q1A, V(NMA,16)), m8(SA, klp, Q2A + 2*(jn & 1)),
                          m16(OA, VB[b], PA, V(OA,16)), m16(OA, VB[b]+4, PA+4, V(OA,16))], ex)
    if g.dbg and 'its' in EXP:
        A(f"""
        s_memrealtime s[88:89]
        s_memtime s[90:91]
        s_mov_b32 m0, s51
        s_waitcnt lgkmcnt(0)
        v_writelane_b32 v214, s88, m0
        s_add_u32 m0, s51, 32
        s_nop 0
        v_writelane_b32 v214, s90, m0
        s_cmp_lt_u32 s51, 16
        """)
    A("s_cbranch_scc1 La_loop")
    A(f"""
    s_setprio 2
    {m16(OB, VB[1], PB, V(OB,16))}
    {m16(OB, VB[1]+4, PB+4, V(OB,16))}
    """)
    g.stamp(10)
    A(f"v_lshlrev_b32 v{aT2}, 2, v0\nv_mov_b32 v{aT3}, 0")
    for n, (O, P) in enumerate(((OA, PA), (OB, PB))):
        A(f"""
        v_mov_b32 v{aT0}, v{O+10}
        v_mov_b32 v{aT1}, v{O+10}
        """)
        for i in range(11): A(f"v_add_f32 v{aT3}, |v{O+i}|, v{aT3}")
        A(f"""
        v_permlane32_swap_b32 v{aT0}, v{aT1}
        s_nop 1
        v_rcp_f32 v{aT0}, v{aT0}
        s_add_u32 s25, s48, {n*36*1024}
        s_add_u32 s27, s49, {n*36*1024}
        """)
        for i in range(10): A(f"v_mul_f32 v{O+i}, v{O+i}, v{aT0}")
        for i in range(5): A(f"v_cvt_pk_bf16_f32 v{P+i}, v{O+2*i}, v{O+2*i+1}")
        A(f"""
        buffer_store_dwordx4 {V(P,4)}, v{vL16}, s[12:15], s25 offen {SC}
        s_mov_b32 exec_hi, 0
        buffer_store_dword v{P+4}, v{aT2}, s[12:15], s27 offen {SC}
        s_mov_b32 exec_hi, -1
        """)
    A(f"""
    v_mov_b32 v{aT1}, 0x71800000
    v_cmp_nlt_f32 vcc, v{aT3}, v{aT1}
    v_mov_b32 v{aT3}, {FLAG}
    v_mov_b32 v{aT2}, 1
    s_cmp_lg_u32 s50, 0
    s_cbranch_scc1 Lp3
    s_cbranch_vccz Lp3
    ds_write_b32 v{aT3}, v{aT2}
    s_branch Lp3
La_chk:
    s_mov_b32 s93, {SPIN}
La_chk1:
    ds_read_b32 v{vCR}, v{vCA}
    s_waitcnt lgkmcnt(0)
    v_readfirstlane_b32 s52, v{vCR}
    s_lshr_b32 s52, s52, 8
    s_cmp_le_u32 s53, s52
    s_cbranch_scc1 La_chkd
    s_sleep 1
    s_sub_u32 s93, s93, 1
    s_cmp_lg_u32 s93, 0
    s_cbranch_scc1 La_chk1
    s_branch La_chkd
La_slow:
    s_mov_b32 s50, 1
    s_barrier
    v_mov_b32 v{aT0}, {14 << 8}
    ds_write_b32 v{vCA}, v{aT0}
    v_mov_b32 v{aT3}, {FLAG}
    v_mov_b32 v{aT2}, 0
    ds_write_b32 v{aT3}, v{aT2}
    v_mov_b32 v{vKM}, v{vKM0}
    v_mov_b32 v{vKL}, v{vKL0}
    v_mov_b32 v{aT0}, 0xff800000
    v_mov_b32 v{aT1}, 0xff800000
    s_mov_b32 s51, 16
    s_waitcnt lgkmcnt(0)
    s_barrier
La_maxloop:
    ds_read2st64_b64 {V(KL,4)}, v{vKL} offset0:0 offset1:1
    """)
    for j in range(4):
        A(f"""
        ds_read2st64_b64 {V(KB[0],4)}, v{vKM} offset0:{2*j} offset1:{2*j+1}
        s_waitcnt lgkmcnt(0)
        {m16(SA, KB[0], Q1A, 0)}
        {m16(SB, KB[0], Q1B, 0)}
        {m8(SA, KL+2*(j>>1), Q2A+2*(j&1))}
        {m8(SB, KL+2*(j>>1), Q2B+2*(j&1))}
        s_nop 11
        """)
        maxtree(A, aT0, SA, True)
        maxtree(A, aT1, SB, True)
    A(f"""
    v_add_u32 v{vKM}, 4096, v{vKM}
    v_add_u32 v{vKL}, 1024, v{vKL}
    s_sub_u32 s51, s51, 1
    s_cmp_lg_u32 s51, 0
    s_cbranch_scc1 La_maxloop
    ds_read2st64_b64 {V(KB[0],4)}, v{vKM0} offset0:0 offset1:1
    ds_read_b64 {V(KL,2)}, v{vKL0}
    """)
    zero_acc(A)
    A("s_waitcnt lgkmcnt(0)\ns_branch La_setm")

def gen_p3(g):
    A = g.A
    BW, ACC_, AF = 40, 184, 16
    wA = 196
    A(f"""
Lh_slow:
    s_barrier
    """)
    dma_skip(A, -8)
    dma_n(g, 8)
    A(f"""
    s_waitcnt vmcnt(0)
    s_barrier
Lh_p3:
    s_and_b32 s19, s2, 7
    s_lshr_b32 s33, s2, 3
    v_lshlrev_b32 v{TMP}, 7, v0
    s_cmp_ge_u32 s33, 24
    s_cbranch_scc0 Lh_wo
    s_sub_u32 s25, s33, 24
    s_lshl_b32 s27, s19, 3
    s_add_u32 s25, s25, s27
    s_mul_i32 s25, s25, {32*1152}
    s_mul_i32 s27, s20, {72*128}
    s_add_u32 s25, s25, s27
    v_add_u32 v{TMP+1}, s25, v{TMP}
    global_load_dword v210, v{TMP+1}, s[{pQ}:{pQ+1}]
    global_load_dword v211, v{TMP+1}, s[{pQ}:{pQ+1}] offset:1024
    s_branch Lp3
Lh_wo:
    s_lshl_b32 s25, s33, 2
    s_add_u32 s25, s25, s20
    s_mul_i32 s25, s25, {54*128}
    """)
    g.srd(4, pWO, WOB)
    A(f"""
    s_mov_b32 exec_hi, 0x3fffff
    buffer_load_dword v210, v{TMP}, s[4:7], s25 offen
    s_mov_b32 exec_hi, -1
    """)
    for i in range(3):
        A(f"""
        v_add_u32 v1, {64*i}, v0
        v_mul_u32_u24 v2, 5462, v1
        v_lshrrev_b32 v2, 16, v2
        v_mul_u32_u24 v3, 12, v2
        v_sub_u32 v1, v1, v3
        v_mul_u32_u24 v2, 1152, v2
        v_lshl_add_u32 v{wA+i}, v1, 4, v2
        """)
    A(f"""
    v_subrev_u32 v{wA+1}, 1024, v{wA+1}
    v_subrev_u32 v{wA+2}, 2048, v{wA+2}
    s_lshr_b32 s25, s33, 2
    s_mul_i32 s28, s25, 192
    s_mul_i32 s25, s20, {16*1152}
    s_add_u32 s28, s28, s25
    """)
    for half, (n, base) in enumerate(((13, "s23"), (15, "s22"))):
        wait_progress(g, n, 6)
        A(f"""
        s_add_u32 s27, s28, {half*288*1152}
        s_mul_i32 s25, s20, 3072
        s_add_u32 s25, s25, {base}
        s_mov_b32 s31, s20
Lo_wo{half}:
        s_mov_b32 m0, s25
        s_add_u32 s31, s31, 4
        buffer_load_dwordx4 v{wA}, s[4:7], s27 offen lds
        buffer_load_dwordx4 v{wA+1}, s[4:7], s27 offen offset:1024 lds
        buffer_load_dwordx4 v{wA+2}, s[4:7], s27 offen offset:2048 lds
        s_add_u32 s27, s27, {4*16*1152}
        s_add_u32 s25, s25, {4*3072}
        s_cmp_lt_u32 s31, 18
        s_cbranch_scc1 Lo_wo{half}
        """)
    A(f"""
Lp3:
    v_mov_b32 v{TMP+1}, {FLAG}
    s_lshl_b32 s30, s18, 2
    s_lshr_b32 s25, s17, 3
    s_add_u32 s30, s30, s25
    s_add_u32 s30, s30, 32
    s_waitcnt vmcnt(0) lgkmcnt(0)
    s_barrier
    ds_read_b32 v{TMP}, v{TMP+1}
    s_and_b32 s19, s2, 7
    s_lshr_b32 s33, s2, 3
    s_waitcnt lgkmcnt(0)
    v_readfirstlane_b32 s25, v{TMP}
    s_cmp_eq_u32 s25, 0
    s_cbranch_scc1 Lp3_ok
    s_cmp_lt_u32 s16, 4
    s_cbranch_scc1 La_slow
    s_branch Lh_slow
Lp3_ok:
    """)
    g.stamp(11)
    A("s_cmp_lg_u32 s16, 7\ns_cbranch_scc1 Lp3_1")
    g.signal("s30", 14)
    A(f"""
Lp3_1:
    s_cmp_ge_u32 s33, 24
    s_cbranch_scc1 Lp3_s3
    s_and_b32 s17, s33, 3
    s_lshl_b32 s19, s19, 2
    s_add_u32 s17, s17, s19            ; tb
    s_lshr_b32 s18, s33, 2             ; ng
    s_mov_b32 s28, s23
    s_mov_b32 s29, s22
    s_and_b32 s23, s16, 1
    s_lshr_b32 s24, s16, 1
    v_lshlrev_b32 v12, 4, v0
    s_cmp_ge_u32 s16, 6
    s_cbranch_scc1 Lo_nopre
    v_lshrrev_b32 v1, 5, v0
    v_bfe_u32 v2, v0, 2, 2
    v_bfe_u32 v3, v0, 4, 1
    v_lshlrev_b32 v3, 5, v3
    v_and_b32 v7, 3, v0
    v_lshl_add_u32 v3, v7, 3, v3
    s_lshl_b32 s25, s24, 6
    v_add_u32 v3, s25, v3
    v_lshl_add_u32 v7, v1, 2, v2
    v_mul_u32_u24 v7, 192, v7
    v_add3_u32 v8, v7, v3, s28
    v_add3_u32 v9, v7, v3, s29
    v_mul_u32_u24 v7, 72, v1
    v_lshrrev_b32 v10, 1, v2
    v_mul_u32_u24 v10, 18, v10
    v_add_u32 v7, v7, v10
    v_and_b32 v10, 1, v2
    v_add3_u32 v7, v7, v10, 16
    v_mul_u32_u24 v7, 192, v7
    v_add3_u32 v10, v7, v3, s28
    v_add3_u32 v11, v7, v3, s29
    """)
    for s_ in range(36):
        for e in range(2):
            if s_ < 32: base, off = (8, (18*s_ + 8*e)*192) if s_ < 16 else (9, (18*(s_-16) + 8*e)*192)
            else: base, off = (10 + ((s_-32) >> 1), (144*((s_-32) & 1) + 36*e)*192)
            A(f"ds_read_b64_tr_b16 {V(BW+4*s_+2*e,2)}, v{base} offset:{off}")
        if s_ % 6 == 5: A("s_waitcnt lgkmcnt(4)")
    A("Lo_nopre:")
    g.srd(44, pOUT, OUTB)
    for i in range(16): A(f"v_mov_b32 v{ACC_+i}, 0")
    TR = 81920
    A(f"""
    s_mul_i32 s20, s17, {2*36*1024}
    s_add_u32 s20, s20, {OF}
    s_mul_i32 s21, s23, {36*1024}
    s_add_u32 s20, s20, s21
    s_lshl_b32 s21, s24, 10
    s_add_u32 s20, s20, s21
    s_lshl_b32 s21, s23, 10
    v_add_u32 v13, s21, v12
    v_and_b32 v1, 31, v0
    v_lshlrev_b32 v1, 2, v1
    v_lshrrev_b32 v2, 5, v0
    v_lshl_add_u32 v1, v2, 9, v1
    s_add_u32 s21, s21, 65536
    v_add_u32 v201, s21, v1
    v_add_u32 v202, 2048, v201
    v_add_u32 v203, 4096, v201
    v_add_u32 v204, 6144, v201
    v_and_b32 v1, 31, v0
    s_lshl_b32 s21, s23, 5
    v_add_u32 v1, s21, v1
    v_mul_u32_u24 v1, 208, v1
    v_lshl_add_u32 v1, v2, 3, v1
    s_lshl_b32 s21, s24, 6
    s_add_u32 s21, s21, {TR}
    v_add_u32 v200, s21, v1
    s_mul_i32 s26, s17, {64*2304}
    s_mul_i32 s22, s18, 192
    s_add_u32 s26, s26, s22
    s_lshl_b32 s22, s16, 7
    """)
    for i in range(2):
        A(f"""
        v_add_u32 v1, s22, v0
        v_add_u32 v1, {64*i}, v1
        v_mul_u32_u24 v2, 5462, v1
        v_lshrrev_b32 v2, 16, v2
        v_mul_u32_u24 v3, 12, v2
        v_sub_u32 v1, v1, v3
        v_lshlrev_b32 v1, 4, v1
        v_mul_u32_u24 v3, 208, v2
        v_add_u32 v{4+i}, v3, v1
        v_add_u32 v{4+i}, {TR}, v{4+i}
        v_mul_u32_u24 v3, 2304, v2
        v_add_u32 v{6+i}, v3, v1
        """)
    A("s_lshl_b32 s21, s16, 10\ns_waitcnt lgkmcnt(0)")
    g.stamp(12)
    A("s_cmp_lg_u32 s16, 7\ns_cbranch_scc1 Lp3_h\ns_add_u32 s25, s19, 32")
    g.poll("s25", 4, 8, 16)
    A("Lp3_h:\ns_barrier")
    g.stamp(13)
    for rr in range(9):
        A(f"""
        s_mov_b32 m0, s21
        s_add_u32 s21, s21, 8192
        buffer_load_dwordx4 v12, s[12:15], s20 offen lds {SC}
        s_add_u32 s20, s20, 4096
        """)
    for c in range(3):
        A(f"s_waitcnt vmcnt({6-3*c})\ns_barrier")
        if c == 0: A(f"s_cmp_ge_u32 s16, 6\ns_cbranch_scc1 Lo_idle")
        if c == 2: A(f"v_add_u32 v13, 49152, v13")
        for half in range(2):
            for i in range(6):
                s_ = 12*c + 6*half + i
                off = 2048*s_ - (49152 if c == 2 else 0)
                if s_ < 32: A(f"ds_read_b128 {V(AF+4*i,4)}, v13 offset:{off}")
                else:
                    A(f"ds_read2_b32 {V(AF+4*i,2)}, v{201+s_-32} offset0:0 offset1:32")
                    A(f"ds_read2_b32 {V(AF+4*i+2,2)}, v{201+s_-32} offset0:64 offset1:96")
            for i in range(6):
                s_ = 12*c + 6*half + i
                last = 12*c + 6*half + 5
                A(f"s_waitcnt lgkmcnt({sum(1 if x < 32 else 2 for x in range(s_+1, last+1))})")
                A(f"v_mfma_f32_32x32x16_bf16 {V(ACC_,16)}, {V(BW+4*s_,4)}, {V(AF+4*i,4)}, {V(ACC_,16)}")
    g.stamp(14)
    A("s_nop 11")
    for q in range(4):
        A(f"""
        v_cvt_pk_bf16_f32 v{AF+2*q}, v{ACC_+4*q}, v{ACC_+4*q+1}
        v_cvt_pk_bf16_f32 v{AF+2*q+1}, v{ACC_+4*q+2}, v{ACC_+4*q+3}
        ds_write_b64 v200, {V(AF+2*q,2)} offset:{16*q}
        """)
    A(f"""
    s_waitcnt lgkmcnt(0)
    s_barrier
    ds_read_b128 {V(AF,4)}, v4
    ds_read_b128 {V(AF+4,4)}, v5
    s_waitcnt lgkmcnt(1)
    buffer_store_dwordx4 {V(AF,4)}, v6, s[44:47], s26 offen
    s_waitcnt lgkmcnt(0)
    buffer_store_dwordx4 {V(AF+4,4)}, v7, s[44:47], s26 offen
    s_branch Lfin
Lo_idle:
    s_waitcnt vmcnt(3)
    s_barrier
    s_waitcnt vmcnt(0)
    s_barrier
    s_branch Lfin
Lp3_s3:
    s_sub_u32 s20, s33, 24
    s_lshl_b32 s17, s19, 3
    s_add_u32 s17, s17, s20
    s_mov_b64 s[6:7], s[{pOUT}:{pOUT+1}]
    s_mov_b64 s[48:49], s[{pWS}:{pWS+1}]
    s_mov_b64 s[50:51], s[{pQ}:{pQ+1}]
    """)
    g.poll(16, 16, 18, 16)
    k3.gen_stage3(A, "Ls3", False, SC)
    A("Lfin:")
    g.end()

def gen(name, dbg=False):
    g = G(dbg); A = g.A
    A("Lcode_begin:")
    A(f"""
    s_cmp_ge_u32 s2, 256
    s_cbranch_scc1 Lend
    s_load_dwordx16 s[64:79], s[0:1], 0
    s_load_dwordx8 s[80:87], s[0:1], 64
    v_lshrrev_b32 v1, 6, v0
    v_and_b32 v0, 63, v0
    v_readfirstlane_b32 s16, v1
    """)
    if dbg: A(f"v_mov_b32 v{vST}, 0")
    g.stamp(0)
    A(f"""
    s_lshl_b32 s3, s16, 2
    s_add_u32 s3, s3, {SY}
    s_and_b32 s94, s3, {0xffffffff & ~15}
    s_cmp_ge_u32 s2, 224
    s_cbranch_scc1 Ls1
    """)
    gen_gemm(g)
    A("Ls1:")
    gen_stage1(g)
    gen_attn(g)
    gen_p3(g)
    A("Lend:\ns_endpgm\nLcode_end:")
    return A.text()

if __name__ == "__main__":
    import sys
    out = sys.argv[1]; dbg = len(sys.argv) > 2 and sys.argv[2] == "dbg"
    name = "concat_heads__softmax_full_mha__ssm_conv_h3__prompt_kernel"
    HDR = open("concat_heads__softmax_full_mha__ssm_conv_h3__prompt.s.ref").read().split("; Override launch")[0]
    s = HDR
    if (dbg and not os.environ.get('DD') and not os.environ.get('AMP')) or 'list' in EXP: s += f"; @launch kernel={name} grid=(256,1,1) block=(512,1,1) lds={LDS_BYTES}\n"
    else: s += f"; @launch grid=(256,1,1) block=(512,1,1) lds={LDS_BYTES}\n"
    s += '.amdgcn_target "amdgcn-amd-amdhsa--gfx950"\n.text\n' + kernel_head(name) + gen(name, dbg)
    s += '.section .rodata,"a"\n' + kernel_desc(name, NVGPR, 102)
    open(out, "w").write(s)
```

```python
import os, struct, math
from asmlib import *
from layout import *
import kconv
EXP = os.environ.get('FEXP', '').split(',')
def opt(name, default): return int(os.environ.get(name, default))

CS_BITS = struct.unpack("<I", struct.pack("<f", math.log2(math.e)/math.sqrt(18)))[0]
XB, WB, OUTB, WOB = 2048*1152, 576*3456, 2048*2304, 576*1152
NVGPR = 248
LDS_BYTES = 163840
vST = 215
pX, pW, pWO, pQ, pK, pV, pSH, pH, pD, pOUT, pDBG, pWS = [64+2*i for i in range(12)]
WIN = 65536 + VSZ + 16384
CONST = WIN
UC = WIN + 4352
XCH = WIN + 6144
SY = WIN + 5376
SC = "sc1"
NTG = 'nt' if 'ntg' in EXP else ''
NTB = 'nt' if 'ntb' in EXP else ''
SPIN = 200000
NREP = opt('NREP', 8)

class G:
    def __init__(self, dbg):
        self.A = Asm(); self.dbg = dbg; self.n = 0
    def lab(self, p="L"):
        self.n += 1; return f"{p}{self.n}"
    def stamp(self, i):
        if self.dbg:
            self.A(f"""
            s_memrealtime s[88:89]
            s_memtime s[90:91]
            s_waitcnt lgkmcnt(0)
            v_writelane_b32 v{vST}, s88, {i}
            v_writelane_b32 v{vST}, s90, {32+i}
            """)
    def srd(self, d, p, n):
        self.A(f"s_mov_b32 s{d}, s{p}\ns_mov_b32 s{d+1}, s{p+1}\ns_mov_b32 s{d+2}, {n}\ns_mov_b32 s{d+3}, 0x20000")
    def end(self):
        A = self.A
        if self.dbg:
            A("s_mov_b64 exec, -1\ns_waitcnt vmcnt(0)")
            self.stamp(31)
            A(f"""
            s_lshl_b32 s25, s2, 3
            s_add_u32 s25, s25, s16
            s_lshl_b32 s25, s25, 8
            s_add_u32 s25, s25, {STAMP}
            v_lshlrev_b32 v1, 2, v0
            buffer_store_dword v{vST}, v1, s[12:15], s25 offen
            s_add_u32 s25, s25, {2048*256}
            buffer_store_dword v214, v1, s[12:15], s25 offen
            """)
        amp = os.environ.get('AMP')
        if self.dbg and amp:
            wg, w, i, j = [int(x) for x in amp.split(',')]
            A(f"""
            s_cmp_lg_u32 s2, {wg}
            s_cbranch_scc1 Lam_e
            s_cmp_lg_u32 s16, {w}
            s_cbranch_scc1 Lam_e
            v_readlane_b32 s40, v{vST}, {i}
            v_readlane_b32 s41, v{vST}, {j}
            s_memrealtime s[42:43]
            s_nop 3
            s_sub_u32 s41, s41, s40
            s_min_u32 s41, s41, 10000
            s_lshl_b32 s41, s41, 3
            s_add_u32 s41, s41, {os.environ.get('AMPC', '0')}
            s_waitcnt lgkmcnt(0)
Lam_l:
            s_memrealtime s[44:45]
            s_waitcnt lgkmcnt(0)
            s_sub_u32 s44, s44, s42
            s_cmp_lt_u32 s44, s41
            s_cbranch_scc1 Lam_l
Lam_e:
            """)
        dd = os.environ.get('DD')
        if self.dbg and dd:
            wg, w, *idx = [int(x) for x in dd.split(',')]
            A(f"""
            s_cmp_lg_u32 s2, {wg}
            s_cbranch_scc1 Ldd_e
            s_cmp_lg_u32 s16, {w}
            s_cbranch_scc1 Ldd_e
            v_readlane_b32 s40, v{vST}, 0
            v_mov_b32 v2, 0
            """)
            for k, i in enumerate(idx):
                A(f"""
                v_readlane_b32 s41, v{vST}, {i}
                s_nop 3
                s_sub_u32 s41, s41, s40
                v_mov_b32 v3, s41
                global_store_dword v2, v3, s[{pDBG}:{pDBG+1}] offset:{32+4*k}
                """)
            A("Ldd_e:")
        A("s_endpgm")
    def post(self, val, t):
        self.A(f"""
        v_mov_b32 v{t}, s3
        v_mov_b32 v{t+1}, {val}
        ds_write_b32 v{t}, v{t+1}
        """)
    def wait_words(self, addr, val, t, n=4, sl=1):
        l = self.lab("Lw"); d = self.lab("Ld")
        rd = f"ds_read_b128 {V(t,4)}, v{t+4}" if n == 4 else f"ds_read_b32 v{t}, v{t+4}"
        mn = f"v_min_u32 v{t}, v{t}, v{t+1}\nv_min3_u32 v{t}, v{t}, v{t+2}, v{t+3}\ns_nop 0" if n == 4 else ""
        self.A(f"""
        v_mov_b32 v{t+4}, {addr}
        s_mov_b32 s93, {SPIN}
{l}:
        {rd}
        s_waitcnt lgkmcnt(0)
        {mn}
        v_readfirstlane_b32 s92, v{t}
        s_cmp_ge_u32 s92, {val}
        s_cbranch_scc1 {d}
        s_sleep {sl}
        s_sub_u32 s93, s93, 1
        s_cmp_lg_u32 s93, 0
        s_cbranch_scc1 {l}
{d}:
        """)
    def gsync(self, val, t):
        self.post(val, t)
        self.wait_words("s94", val, t)
    def ready(self, t):
        l = self.lab("Lr"); d = self.lab("Ld")
        self.A(f"""
        v_and_b32 v{t+1}, {NREP-1}, v0
        v_lshlrev_b32 v{t+1}, 2, v{t+1}
        s_mov_b32 s93, {SPIN}
{l}:
        global_load_dword v{t}, v{t+1}, s[{pDBG}:{pDBG+1}] {SC}
        s_waitcnt vmcnt(0)
        v_cmp_eq_u32 vcc, 0, v{t}
        s_nop 3
        s_cmp_eq_u64 vcc, 0
        s_cbranch_scc1 {d}
        s_sleep 2
        s_sub_u32 s93, s93, 1
        s_cmp_lg_u32 s93, 0
        s_cbranch_scc1 {l}
{d}:
        """)
    def signal(self, sidx, t):
        self.A(f"""
        s_lshl_b32 s92, {sidx}, 8
        s_add_u32 s92, s92, {CNT}
        v_lshlrev_b32 v{t}, 15, v0
        v_mov_b32 v{t+1}, 1
        s_mov_b64 exec, {(1 << NREP) - 1}
        buffer_atomic_add v{t+1}, v{t}, s[12:15], s92 offen {SC}
        s_mov_b64 exec, -1
        """)
    def poll(self, first, n, target, t, sl=None, fast=False):
        l = self.lab("Lp"); d = self.lab("Ld")
        self.A(f"""
        v_min_u32 v{t+1}, {n-1}, v0
        v_add_u32 v{t+1}, {first}, v{t+1}
        v_lshlrev_b32 v{t+1}, 8, v{t+1}
        s_mov_b32 s93, {SPIN}
        s_and_b32 s92, s2, {NREP-1}
        s_lshl_b32 s92, s92, 15
        s_add_u32 s92, s92, {CNT}
        s_mov_b64 exec, {(1 << n) - 1}
        {"" if not fast else f"buffer_load_dword v{t+2}, v{t+1}, s[12:15], s92 offen {SC}" + chr(10) + f"s_sleep {opt('FSL', 3)}"}
{l}:
        buffer_load_dword v{t}, v{t+1}, s[12:15], s92 offen {SC}
        s_waitcnt vmcnt({1 if fast else 0})
        v_cmp_le_u32 vcc, {target}, v{t+2 if fast else t}
        s_nop 3
        s_cmp_eq_u64 vcc, exec
        s_cbranch_scc1 {d}
        {"" if not fast else f"buffer_load_dword v{t+2}, v{t+1}, s[12:15], s92 offen {SC}" + chr(10) + "s_waitcnt vmcnt(1)" + chr(10) + f"v_cmp_le_u32 vcc, {target}, v{t}" + chr(10) + "s_nop 3" + chr(10) + "s_cmp_eq_u64 vcc, exec" + chr(10) + f"s_cbranch_scc1 {d}"}
        {"" if fast else f"s_sleep {sl or opt('PSLEEP', 2)}"}
        s_sub_u32 s93, s93, 1
        s_cmp_lg_u32 s93, 0
        s_cbranch_scc1 {l}
{d}:
        s_mov_b64 exec, -1
        """)

vT0, vT1, vT2, vT3, vTok, vHf = 1, 2, 3, 4, 5, 6
vXb, vWb, vX, vW, vEA, FR, ACC, PK = 8, 12, 14, 18, 20, 36, 68, 132
RING = 98304
def XF(b, i): return FR + 16*b + 4*i
def WF(b, j): return FR + 16*b + 8 + 4*j
def acc(i, j): return ACC + 16*(2*i + j)
def g_reads(b, s):
    return [f"ds_read_b128 {V(XF(b,0),4)}, v{vX+s}",
            f"ds_read_b64_tr_b16 {V(WF(b,0),2)}, v{vW} offset:{16384 + 4096*s}",
            f"ds_read_b64_tr_b16 {V(WF(b,0)+2,2)}, v{vW} offset:{16384 + 4096*s + 1024}",
            f"ds_read_b64_tr_b16 {V(WF(b,1),2)}, v{vW+1} offset:{16384 + 4096*s}",
            f"ds_read_b64_tr_b16 {V(WF(b,1)+2,2)}, v{vW+1} offset:{16384 + 4096*s + 1024}",
            f"ds_read_b128 {V(XF(b,1),4)}, v{vX+s} offset:4096"]
def g_mf(b, i, j, vtype):
    a, bb = (XF(b,i), WF(b,j)) if vtype else (WF(b,j), XF(b,i))
    return f"v_mfma_f32_32x32x16_bf16 {V(acc(i,j),16)}, {V(a,4)}, {V(bb,4)}, {V(acc(i,j),16)}"
def g_setaddr(A):
    for s in range(4): A(f"v_add_u32 v{vX+s}, s30, v{vXb+s}")
    for j in range(2): A(f"v_add_u32 v{vW+j}, s30, v{vWb+j}")
def g_loop(g, name, vtype):
    A = g.A
    A("s_mov_b32 s31, 9\ns_barrier")
    for r in g_reads(0, 0): A(r)

    A(f".p2align 6\n{name}:")
    for s in range(4):
        b = s & 1
        A("s_waitcnt lgkmcnt(0)")
        A(g_mf(b, 0, 0, vtype))
        if s < 3:
            rd = g_reads(b ^ 1, s+1)
            for r in rd[:3]: A(r)
            A(g_mf(b, 0, 1, vtype))
            for r in rd[3:]: A(r)
            A(g_mf(b, 1, 0, vtype)); A(g_mf(b, 1, 1, vtype))
        else:
            A(f"""
            s_add_u32 s30, s30, 32768
            s_cmp_eq_u32 s30, {RING}
            s_cselect_b32 s30, 0, s30
            s_sub_u32 s31, s31, 1
            s_cmp_eq_u32 s31, 0
            s_cbranch_scc1 {name}_nb
            s_barrier
{name}_nb:
            """)
            g_setaddr(A)
            A(g_mf(b, 0, 1, vtype))
            rd = g_reads(0, 0)
            for r in rd[:3]: A(r)
            A(g_mf(b, 1, 0, vtype))
            for r in rd[3:]: A(r)
            A(g_mf(b, 1, 1, vtype))
    A(f"s_cbranch_scc0 {name}")

def ld_chunk(g, skip=True):
    A = g.A; l = g.lab("Lk")
    if skip: A(f"s_cmp_lg_u32 s95, 0\ns_cbranch_scc1 {l}")
    A(f"""
    s_mov_b32 m0, s42
    s_add_u32 s26, s40, 8192
    buffer_load_dwordx4 v8, s[8:11], s40 offen lds
    s_add_u32 s27, s40, 16384
    buffer_load_dwordx4 v9, s[8:11], s26 offen offset:1024 lds
    s_add_u32 s26, s40, 24576
    buffer_load_dwordx4 v8, s[8:11], s27 offen offset:2048 lds
    s_add_u32 s28, s42, 16384
    buffer_load_dwordx4 v9, s[8:11], s26 offen offset:3072 lds
    s_mov_b32 m0, s28
    s_add_u32 s26, s41, {13824-1024}
    buffer_load_dwordx4 v10, s[44:47], s41 offen lds
    s_add_u32 s27, s41, {2*(13824-1024)}
    buffer_load_dwordx4 v10, s[44:47], s26 offen offset:1024 lds
    s_add_u32 s26, s41, {3*(13824-1024)}
    buffer_load_dwordx4 v10, s[44:47], s27 offen offset:2048 lds
    s_add_u32 s40, s40, 128
    buffer_load_dwordx4 v10, s[44:47], s26 offen offset:3072 lds
    s_add_u32 s41, s41, {64*3456}
    s_add_u32 s24, s24, 1
    s_cmp_eq_u32 s24, 9
    s_cselect_b32 s26, 1152, 0
    s_cselect_b32 s27, {WB}, 0
    s_sub_u32 s40, s40, s26
    s_sub_u32 s41, s41, s27
    s_add_u32 s42, s42, 32768
    s_cmp_ge_u32 s42, {RING}
    s_cselect_b32 s26, {RING}, 0
    s_sub_u32 s42, s42, s26
{l}:
    """)

def gen_gemm(g):
    A = g.A
    ROT = opt('ROT', 1)
    A(f"""
    s_and_b32 s17, s2, 7               ; xcd
    s_lshr_b32 s18, s2, 3              ; idx 0..27
    s_and_b32 s19, s17, 3
    s_lshl_b32 s19, s19, 2
    s_and_b32 s20, s18, 3
    s_add_u32 s19, s19, s20            ; mb
    s_lshr_b32 s21, s17, 2
    s_mul_i32 s21, s21, 7
    s_lshr_b32 s22, s18, 2
    s_add_u32 s21, s21, s22            ; ng
    s_cmp_lt_u32 s16, 4
    s_cbranch_scc1 Lg_compute
    s_and_b32 s23, s16, 3              ; u
    """)
    if ROT:
        A("""
        s_mul_i32 s24, s20, 5
        s_lshr_b32 s24, s24, 1
        s_add_u32 s24, s24, s22
        s_cmp_ge_u32 s24, 9
        s_cselect_b32 s25, 9, 0
        s_sub_u32 s24, s24, s25
        """)
    else: A("s_mov_b32 s24, 0")
    A(f"""
    s_lshl_b32 s25, s19, 7
    s_lshl_b32 s26, s23, 5
    s_add_u32 s25, s25, s26
    s_mul_i32 s25, s25, 1152
    s_lshl_b32 s26, s24, 7
    s_add_u32 s40, s25, s26            ; sX
    s_lshl_b32 s25, s24, 2
    s_add_u32 s25, s25, s23
    s_mul_i32 s25, s25, {16*3456}
    s_lshl_b32 s26, s21, 8
    s_add_u32 s41, s25, s26            ; sW
    s_lshl_b32 s42, s23, 12
    v_lshrrev_b32 v{vT0}, 3, v0
    v_mul_u32_u24 v{vT0}, 1152, v{vT0}
    v_lshrrev_b32 v{vT1}, 4, v0
    v_and_b32 v{vT2}, 7, v0
    v_xor_b32 v{vT2}, v{vT2}, v{vT1}
    v_lshl_add_u32 v8, v{vT2}, 4, v{vT0}
    v_xor_b32 v{vT2}, 4, v{vT2}
    v_lshl_add_u32 v9, v{vT2}, 4, v{vT0}       ; odd i
    v_mul_u32_u24 v{vT0}, 3456, v{vT1}
    v_and_b32 v{vT2}, 15, v0
    v_lshlrev_b32 v{vT1}, 2, v{vT1}
    v_xor_b32 v{vT2}, v{vT2}, v{vT1}
    v_lshl_add_u32 v10, v{vT2}, 4, v{vT0}      ; W addr
    s_mov_b32 s95, 0
    s_setprio {opt('LPRIO', 0)}
    s_waitcnt lgkmcnt(0)
    """)
    g.srd(8, pX, XB); g.srd(44, pW, WB)
    A(f"""
    s_mov_b32 s31, 0
Lld:
    s_cmp_lt_u32 s31, 2
    s_cbranch_scc1 Lld_go
    s_waitcnt vmcnt(8)
    s_barrier
Lld_go:
    """)
    ld_chunk(g, False)
    A(f"""
    s_add_u32 s31, s31, 1
    s_cmp_lt_u32 s31, 9
    s_cbranch_scc1 Lld
    s_waitcnt vmcnt(8)
    s_barrier
    """)
    g.srd(12, pWS, WS_END)
    A(f"""
    s_waitcnt vmcnt(0)
    s_barrier
    s_branch Lh_start
Lg_compute:
    s_and_b32 s23, s16, 1              ; wm
    s_lshr_b32 s24, s16, 1             ; wn
    v_and_b32 v{vTok}, 31, v0
    v_lshrrev_b32 v{vHf}, 5, v0
    s_lshl_b32 s25, s23, 13
    v_lshlrev_b32 v{vT0}, 7, v{vTok}
    v_add_u32 v{vT0}, s25, v{vT0}
    v_bfe_u32 v{vT1}, v0, 1, 3
    v_xor_b32 v{vT1}, v{vT1}, v{vHf}
    """)
    for s in range(4):
        A(f"v_xor_b32 v{vT2}, {2*s}, v{vT1}\nv_lshl_add_u32 v{vXb+s}, v{vT2}, 4, v{vT0}")
    A(f"""
    v_bfe_u32 v{vT0}, v0, 2, 2
    v_lshl_add_u32 v{vT1}, v{vHf}, 3, v{vT0}
    v_lshlrev_b32 v{vT1}, 8, v{vT1}
    v_bfe_u32 v{vT2}, v0, 4, 1
    v_lshl_add_u32 v{vT1}, v{vT2}, 5, v{vT1}
    v_and_b32 v{vT2}, 3, v0
    v_lshl_add_u32 v{vT1}, v{vT2}, 3, v{vT1}
    s_lshl_b32 s25, s24, 1
    v_xor_b32 v{vT2}, s25, v{vT0}
    v_lshl_add_u32 v{vWb}, v{vT2}, 6, v{vT1}
    v_xor_b32 v{vT2}, 1, v{vT2}
    v_lshl_add_u32 v{vWb+1}, v{vT2}, 6, v{vT1}
    s_mov_b32 s30, 0
    s_waitcnt lgkmcnt(0)
    """)
    g.srd(12, pWS, WS_END)
    gen_init_misc(g, PK+8)
    g_setaddr(A)
    for i in range(64): A(f"v_mov_b32 v{ACC+i}, 0")
    A(f"""
    s_lshl_b32 s26, s19, 2
    s_lshl_b32 s27, s23, 1
    s_add_u32 s26, s26, s27            ; T0
    s_waitcnt lgkmcnt(0)
    s_cmp_ge_u32 s21, 9
    s_cbranch_scc1 Lg_vtype
    s_lshl_b32 s27, s21, 5
    s_lshl_b32 s28, s24, 4
    s_add_u32 s27, s27, s28
    v_add_u32 v{vT0}, s27, v{vHf}      ; G0
    s_lshl_b32 s28, s26, 10
    s_lshl_b32 s29, s26, 8
    s_add_u32 s29, s29, {LEFT}
    v_lshlrev_b32 v{vTok}, 3, v{vTok}
    v_add_u32 v{PK}, s29, v{vTok}
    v_add_u32 v{PK+1}, s28, v{vTok}
    v_add_u32 v{PK+2}, {MB-1280}, v{PK+1}
    v_mov_b32 v{PK+3}, 256
    v_mov_b32 v{PK+4}, 1024
    s_mov_b32 s32, {PAIR}
    """)
    for jg in range(8):
        A(f"""
        v_add_u32 v{vT1}, {8*(jg>>2) + 2*(jg&3)}, v{vT0}
        v_mul_u32_u24 v{vT2}, 7282, v{vT1}
        v_lshrrev_b32 v{vT2}, 16, v{vT2}
        v_mul_u32_u24 v{vT3}, 9, v{vT2}
        v_sub_u32 v{vT1}, v{vT1}, v{vT3}
        v_cmp_lt_u32 vcc, 4, v{vT1}
        v_cmp_eq_u32 s[34:35], 4, v{vT1}
        v_mul_u32_u24 v{vT2}, s32, v{vT2}
        v_cndmask_b32 v{vT3}, v{PK+1}, v{PK+2}, vcc
        v_lshl_add_u32 v{vT3}, v{vT1}, 8, v{vT3}
        v_cndmask_b32 v{vT3}, v{vT3}, v{PK}, s[34:35]
        v_cndmask_b32 v{vT1}, v{PK+4}, v{PK+3}, s[34:35]
        v_add_u32 v{vEA+jg}, v{vT2}, v{vT3}
        v_add_u32 v{vEA+8+jg}, v{vEA+jg}, v{vT1}
        """)
    g.stamp(1)
    g_loop(g, "Lg_qk", False)
    g.stamp(2)
    A(f"""
    s_lshl_b32 s27, s21, 2
    s_lshl_b32 s28, s24, 1
    s_add_u32 s27, s27, s28
    s_cmp_lt_u32 s27, 18
    s_cselect_b32 s28, {CS_BITS}, 1.0
    s_mov_b32 s29, s28
    s_nop 6
    """)
    n = 0
    for i in range(2):
        for j in range(2):
            for q in range(4):
                a = acc(i, j) + 4*q
                p = PK + 2*(n % 8); n += 1
                for e in range(2): A(f"v_pk_mul_f32 {V(a+2*e,2)}, {V(a+2*e,2)}, s[28:29]")
                A(f"v_cvt_pk_bf16_f32 v{p}, v{a}, v{a+1}\nv_cvt_pk_bf16_f32 v{p+1}, v{a+2}, v{a+3}")
                A(f"buffer_store_dwordx2 {V(p,2)}, v{vEA+8*i+4*j+q}, s[12:15], 0 offen {SC}")
    A(f"""
    s_branch Lg_done
Lg_vtype:
    s_sub_u32 s27, s21, 9
    s_lshl_b32 s27, s27, 7
    s_lshl_b32 s28, s24, 6
    s_add_u32 s27, s27, s28
    s_mul_i32 s28, s26, 36864
    s_add_u32 s28, s28, {VG}
    v_mul_u32_u24 v{vT3}, 9216, v{vHf}
    v_add_u32 v{vT0}, s27, v{vTok}
    v_lshl_add_u32 v{vEA}, v{vT0}, 4, v{vT3}
    """)
    g.stamp(1)
    g_loop(g, "Lg_v", True)
    g.stamp(2)
    A(f"""
    s_cmp_ge_u32 s27, 576
    s_cbranch_scc1 Lg_done
    s_nop 7
    """)
    n = 0
    for i in range(2):
        for j in range(2):
            for m in range(2):
                a = acc(i, j) + 8*m
                p = PK + 4*(n % 4); n += 1
                for e in range(4): A(f"v_cvt_pk_bf16_f32 v{p+e}, v{a+2*e}, v{a+2*e+1}")
                A(f"s_add_u32 s29, s28, {i*36864+m*18432}")
                A(f"buffer_store_dwordx4 {V(p,4)}, v{vEA}, s[12:15], s29 offen offset:{512*j} {SC}")
    A(f"""
Lg_done:
    s_setprio 2
    """)
    g.stamp(15)
    A("s_cmp_lg_u32 s16, 0\ns_cbranch_scc1 Lg_d2")
    g.ready(8)
    A("Lg_d2:\ns_waitcnt vmcnt(0) lgkmcnt(0)")
    g.stamp(3)
    g.gsync(5, 8)
    A("s_cmp_lg_u32 s16, 0\ns_cbranch_scc1 Lattn")
    g.stamp(16)
    g.signal("s21", 8)
    if g.dbg: A("s_waitcnt vmcnt(0)")
    g.stamp(17)
    A("s_branch Lattn")

def gen_init_misc(g, t):
    A = g.A
    for i in range(2):
        A(f"""
        s_and_b32 s25, s16, 3
        s_lshl_b32 s25, s25, 7
        s_add_u32 s25, s25, {64*i-14 & 0xffffffff}
        v_add_u32 v{t+4}, s25, v0
        v_mul_u32_u24 v{t+5}, 1821, v{t+4}
        v_lshrrev_b32 v{t+5}, 16, v{t+5}
        v_mul_u32_u24 v{t+5}, 36, v{t+5}
        v_cmp_eq_u32 s[34:35], v{t+5}, v{t+4}
        v_cmp_gt_u32 vcc, {36*8}, v{t+4}
        v_mov_b32 v{t+5}, 0x3f803f80
        v_lshlrev_b32 v{t+4}, 4, v{t+4}
        s_and_b64 vcc, vcc, s[34:35]
        v_add_u32 v{t+4}, {CONST+224}, v{t+4}
        v_cndmask_b32 v{t}, 0, v{t+5}, vcc
        v_cndmask_b32 v{t+1}, 0, v{t+5}, vcc
        v_cndmask_b32 v{t+2}, 0, v{t+5}, vcc
        v_cndmask_b32 v{t+3}, 0, v{t+5}, vcc
        ds_write_b128 v{t+4}, {V(t,4)}
        """)

import k2, k3
from k2 import m16, m8, phase, maxtree
from k2 import vL8, vKM, vKL, vV, vL16, vV0, vVinc, Q1A, Q1B, Q2A, Q2B, NMA, NMB, SA, SB, PA, PB, OA, OB, KB, KL, VB
aT0, aT1, aT2, aT3 = 5, 6, 7, 8
TMP = 168
vCA, vCR, vOne, vKM0, vKL0, vG0, vG1, vG2 = range(176, 184)
bKG, bVG, b5G, bRD, bTR, bBW, bBR, bUO, bZP, bPG = range(184, 194)
CM = 216
FLAG = SY + 40

def head_params(A):
    A(f"""
    s_and_b32 s17, s2, 7
    s_lshl_b32 s17, s17, 2
    s_bfe_u32 s25, s2, 0x20003
    s_add_u32 s17, s17, s25            ; h
    s_lshr_b32 s18, s2, 5              ; qb
    s_and_b32 s20, s16, 3              ; qg / u
    s_and_b32 s21, s17, 1              ; parity
    s_lshr_b32 s26, s17, 1             ; pair
    v_lshlrev_b32 v{vL16}, 4, v0
    s_mul_i32 s39, s26, {PAIR}
    s_mul_i32 s28, s21, {LEFT}
    s_add_u32 s27, s39, s28
    s_add_u32 s27, s27, {KV}
    s_add_u32 s8, s{pWS}, s27
    s_addc_u32 s9, s{pWS+1}, 0
    s_mov_b32 s10, {WIN}
    s_mov_b32 s11, 0x20000
    s_lshl_b32 s22, s21, 14
    s_add_u32 s23, s22, 65536
    s_cmp_eq_u32 s21, 0
    s_cselect_b32 s24, {LEFT}, 0
    s_lshl_b32 s25, s20, 10
    s_add_u32 s40, s22, s25
    s_add_u32 s41, s23, s25
    s_add_u32 s42, s23, 8192
    s_and_b32 s44, s20, 1
    s_lshl_b32 s44, s44, 10
    s_add_u32 s44, s44, s24
    s_mul_i32 s43, s17, 288
    s_add_u32 s43, s43, {VG}
    s_add_u32 s46, s44, s27
    s_cmp_eq_u32 s20, 0
    s_cselect_b32 s42, s42, s44
    s_cselect_b32 s44, s43, s46
    s_cselect_b32 s45, 9, 2
    s_cselect_b32 s47, 288, 2
    s_cselect_b64 vcc, -1, 0
    s_lshl_b32 s45, s45, 10
    s_lshl_b32 s47, s47, 10
    s_lshl_b32 s25, s20, 6
    s_add_u32 s46, s25, 256
    """)
    for r, base in ((vG0, "s25"), (vG1, "s46"), (vG2, "512")):
        A(f"""
        v_add_u32 v{aT0}, {base}, v0
        v_mul_u32_u24 v{aT2}, 3641, v{aT0}
        v_lshrrev_b32 v{aT2}, 16, v{aT2}
        v_mul_u32_u24 v{aT3}, {9216-288}, v{aT2}
        v_lshl_add_u32 v{r}, v{aT0}, 4, v{aT3}
        """)
    A(f"v_cndmask_b32 v{vG2}, v{vL16}, v{vG2}, vcc")

def dma_skip(A, n):
    A(f"""
    s_add_u32 s40, s40, {(n*8192) & 0xffffffff}
    s_add_u32 s41, s41, {(n*9216) & 0xffffffff}
    s_add_u32 s43, s43, {(n*8*36864) & 0xffffffff}
    s_mul_i32 s25, s45, {n}
    s_add_u32 s42, s42, s25
    s_mul_i32 s25, s47, {n}
    s_add_u32 s44, s44, s25
    """)

def dma_iter(A):
    A(f"""
    s_mov_b32 m0, s40
    s_add_u32 s46, s40, 4096
    buffer_load_dwordx4 v{vL16}, s[8:11], s40 offen lds {SC}
    s_mov_b32 m0, s46
    s_add_u32 s40, s40, 8192
    buffer_load_dwordx4 v{vL16}, s[8:11], s46 offen lds {SC}
    s_mov_b32 m0, s41
    s_add_u32 s46, s41, 4096
    buffer_load_dwordx4 v{vG0}, s[12:15], s43 offen lds {SC}
    s_mov_b32 m0, s46
    s_add_u32 s41, s41, 9216
    buffer_load_dwordx4 v{vG1}, s[12:15], s43 offen lds {SC}
    s_mov_b32 m0, s42
    s_add_u32 s43, s43, {8*36864}
    buffer_load_dwordx4 v{vG2}, s[12:15], s44 offen lds {SC}
    s_add_u32 s42, s42, s45
    s_add_u32 s44, s44, s47
    """)
def dma_n(g, n):
    l = g.lab("Ldm")
    g.A(f"s_mov_b32 s31, {n}\n{l}:")
    dma_iter(g.A)
    g.A(f"s_sub_u32 s31, s31, 1\ns_cmp_lg_u32 s31, 0\ns_cbranch_scc1 {l}")

def avail_add(g, units):
    l = g.lab("Lav")
    g.A(f"""
    s_cmp_lg_u32 s16, 4
    s_cbranch_scc1 {l}
    v_mov_b32 v{TMP}, {units << 8}
    s_mov_b64 exec, 15
    ds_add_u32 v{bPG}, v{TMP}
    s_mov_b64 exec, -1
{l}:
    """)
def wait_progress(g, n, sl=4):
    l = g.lab("Lq"); d = g.lab("Ld")
    g.A(f"""
    s_mov_b32 s93, {SPIN}
{l}:
    ds_read_b32 v{TMP}, v{bPG}
    s_waitcnt lgkmcnt(0)
    v_and_b32 v{TMP}, 0xff, v{TMP}
    v_cmp_gt_u32 vcc, {n}, v{TMP}
    s_nop 3
    s_cmp_eq_u64 vcc, 0
    s_cbranch_scc1 {d}
    s_sleep {sl}
    s_sub_u32 s93, s93, 1
    s_cmp_lg_u32 s93, 0
    s_cbranch_scc1 {l}
{d}:
    """)

def gen_stage1(g):
    A = g.A
    KR, VR, CR, UU, OUT = 40, 60, 68, 84, 136
    T = TMP
    R = kconv.ConvRegs(16)
    A("s_waitcnt lgkmcnt(0)")
    g.srd(12, pWS, WS_END)
    A(f"""
    s_sub_u32 s17, s2, 224
    s_cmp_lt_u32 s16, 4
    s_cbranch_scc1 Lx_a
    s_mov_b32 s95, 1
    s_mov_b32 s18, 8
    s_lshl_b32 s19, s17, 1
    s_add_u32 s19, s19, 512
    s_bfe_u32 s25, s2, 0x10003
    s_lshl_b32 s25, s25, 14
    s_add_u32 s96, s25, 40960
    s_add_u32 s97, s25, {65536+46080}
    s_add_u32 s99, s97, 9344
    s_add_u32 s3, s3, 32
    s_add_u32 s94, s94, 32
    s_branch Lb_setup
Lx_a:
    s_cmp_ge_u32 s17, {NREP}
    s_cbranch_scc1 Lx_1
    s_cmp_lg_u32 s16, 0
    s_cbranch_scc1 Lx_1
    v_lshlrev_b32 v11, 8, v0
    v_mov_b32 v12, 0
    s_lshl_b32 s25, s17, 15
    s_add_u32 s25, s25, {CNT}
    buffer_store_dword v12, v11, s[12:15], s25 offen {SC}
    s_add_u32 s25, s25, 16384
    s_mov_b64 exec, 0xfffff
    buffer_store_dword v12, v11, s[12:15], s25 offen {SC}
    s_mov_b64 exec, -1
Lx_1:
    s_getpc_b64 s[26:27]
Lpc0:
    s_add_u32 s26, s26, Lcode_begin-Lpc0
    s_addc_u32 s27, s27, -1
    s_lshl_b32 s25, s16, 13
    v_lshlrev_b32 v13, 7, v0
    v_add_u32 v13, s25, v13
    v_min_u32 v13, Lcode_end-Lcode_begin-4, v13
    v_mov_b32 v15, s27
    v_add_co_u32 v14, vcc, s26, v13
    s_nop 1
    v_addc_co_u32 v15, vcc, 0, v15, vcc
    global_load_dword v210, v[14:15], off
    """)
    gen_init_misc(g, 144)
    A(f"""
    s_cmp_ge_u32 s17, {NREP}
    s_cbranch_scc1 Lx_2
    s_cmp_lg_u32 s16, 0
    s_cbranch_scc1 Lx_2
    s_lshl_b32 s27, s17, 2
    v_mov_b32 v11, s27
    v_mov_b32 v12, 1
    s_mov_b64 exec, 1
    s_waitcnt vmcnt(1)
    global_store_dword v11, v12, s[{pDBG}:{pDBG+1}] {SC}
    s_mov_b64 exec, -1
Lx_2:
    s_waitcnt lgkmcnt(0)
    s_barrier
    s_cmp_lg_u32 s16, 0
    s_cbranch_scc1 Lattn
    """)
    g.wait_words(SY+36, 1, T, n=1, sl=8)
    A(f"""
    s_branch Lattn
Lh_restart:
    s_sub_u32 s3, s3, 32
    s_sub_u32 s94, s94, 32
Lh_start:
    s_mov_b32 s95, 0
    s_lshr_b32 s17, s2, 3              ; tb
    s_and_b32 s18, s2, 7               ; cb
    s_lshl_b32 s19, s2, 1
    s_bfe_u32 s25, s2, 0x10003
    s_lshl_b32 s96, s25, 14
    s_add_u32 s97, s96, 65536          ; V blocks 0..2
    s_add_u32 s99, s96, {65536+6*9216}
Lb_setup:
    s_and_b32 s23, s16, 3              ; u
    v_and_b32 v{vT0}, 7, v0            ; cc
    v_lshrrev_b32 v{vT1}, 3, v0        ; tg
    s_lshl_b32 s21, s18, 9
    v_lshlrev_b32 v{vT3}, 6, v{vT0}
    """)
    g.srd(4, pSH, 576*8)
    for i in range(4): A(f"buffer_load_dwordx4 {V(CR+4*i,4)}, v{vT3}, s[4:7], s21 offen offset:{16*i}")
    A(f"""
    s_mul_i32 s20, s17, {64*1152}
    s_lshl_b32 s21, s18, 7
    s_add_u32 s20, s20, s21
    v_mul_u32_u24 v{vT2}, 1152, v{vT1}
    v_lshl_add_u32 v{vT2}, v{vT0}, 4, v{vT2}
    v_add_u32 v{vT2}, s20, v{vT2}
    v_add_u32 v{b5G}, {61*1152}, v{vT2}
    s_mul_i32 s20, s23, {8*1152}
    v_add_u32 v{bVG}, s20, v{vT2}
    v_subrev_u32 v{bKG}, {3*1152}, v{bVG}
    v_lshlrev_b32 v{vL16}, 4, v0
    s_add_u32 s28, s97, 9344
    s_lshr_b32 s25, s23, 1
    s_add_u32 s98, s19, s25            ; channel
    s_cmp_eq_u32 s25, 0
    s_cselect_b32 s96, s96, s28
    s_mul_i32 s25, s25, 4672
    s_add_u32 s97, s97, s25
    s_add_u32 s97, s97, 576
    s_lshl_b32 s25, s19, 1
    s_load_dword s100, s[{pD}:{pD+1}], s25
    s_cmp_eq_u32 s95, 1
    s_cbranch_scc1 Lb_load
Lb_setup2:
    v_lshlrev_b32 v{bRD}, 8, v{vT1}
    v_lshl_add_u32 v{bRD}, v{vT0}, 4, v{bRD}
    s_lshl_b32 s25, s23, 11
    s_add_u32 s25, s25, s99
    v_add_u32 v{bRD}, s25, v{bRD}
    v_lshrrev_b32 v{vT2}, 4, v0
    v_and_b32 v{vT3}, 15, v0
    v_lshlrev_b32 v{vT3}, 7, v{vT3}
    v_lshl_add_u32 v{bBW}, v{vT2}, 4, v{vT3}
    v_add_u32 v{bBW}, s25, v{bBW}
    v_add_u32 v{bBR}, s25, v{vL16}
    v_bfe_u32 v{vT3}, v0, 2, 2
    v_lshl_add_u32 v{bTR}, v{vT2}, 3, v{vT3}
    v_lshlrev_b32 v{bTR}, 7, v{bTR}
    v_and_b32 v{vT3}, 3, v0
    v_lshl_add_u32 v{bTR}, v{vT3}, 3, v{bTR}
    v_lshlrev_b32 v{bPG}, 8, v{vT3}
    v_add_u32 v{bPG}, {UC}, v{bPG}
    s_lshl_b32 s25, s23, 5
    s_add_u32 s25, s25, s99
    v_add_u32 v{bTR}, s25, v{bTR}
    v_lshlrev_b32 v{bUO}, 12, v{vT1}
    v_lshl_add_u32 v{bUO}, v{vT0}, 4, v{bUO}
    s_lshl_b32 s22, s18, 2
    s_add_u32 s22, s22, s23
    s_lshl_b32 s22, s22, 16
    s_lshl_b32 s25, s17, 7
    s_add_u32 s22, s22, s25
    s_add_u32 s22, s22, {UT}
    v_add_u32 v{bUO}, s22, v{bUO}
    v_min_u32 v{bZP}, 35, v0
    v_lshlrev_b32 v{bZP}, 4, v{bZP}
    s_sub_u32 s25, s97, 576
    v_add_u32 v{bZP}, s25, v{bZP}
    s_waitcnt lgkmcnt(0)
    """)
    conv_setup(A, R)
    A("s_mov_b32 s29, 0xffff0000\ns_mov_b32 s28, 0xffff\ns_waitcnt vmcnt(0)")
    for c in range(8):
        for j in range(4):
            d, e, src = CM + 8*(c >> 1) + 2*j + (c & 1), c & 1, CR + 2*c + (j >> 1)
            if (j & 1) == e: A(f"v_and_b32 v{d}, {'s29' if e else 's28'}, v{src}")
            elif e: A(f"v_lshlrev_b32 v{d}, 16, v{src}")
            else: A(f"v_lshrrev_b32 v{d}, 16, v{src}")
    A(f"""
    s_cmp_eq_u32 s95, 0
    s_cbranch_scc1 Lh_kv
    s_barrier
    s_branch Lb_s0
Lh_kv:
    """)
    EARLY = opt('S1EARLY', 0)
    def kv_first():
        g.wait_words(SY, 9, T, sl=2)
        A(f"s_setprio {opt('CPRIO', 1)}")
        A("s_cmp_ge_u32 s2, 224\ns_cbranch_scc1 Lh_kx")
        dma_n(g, 5)
        A("s_waitcnt vmcnt(15)")
        g.gsync(1 + 10*(EARLY > 0), T)
        avail_add(g, 4)
        A("s_branch Lh_ky\nLh_kx:")
        dma_skip(A, 2)
        dma_n(g, 3)
        A("Lh_ky:")
    head_params(A)
    dma_skip(A, 1)
    if not EARLY: kv_first()
    elif EARLY == 2:
        A("s_cmp_ge_u32 s2, 224\ns_cbranch_scc1 Lb_load")
        g.wait_words(SY, 5, T, sl=2)
    A(f"""
Lb_load:
    s_and_b32 s28, s16, 3
    s_lshl_b32 s25, s28, 10
    s_add_u32 s25, s25, s99
    """)
    g.srd(4, pK, XB)
    A(f"""
    s_mov_b32 m0, s25
    s_add_u32 s27, s25, 4096
    buffer_load_dwordx4 v{bKG}, s[4:7], 0 offen {NTB} lds
    s_mov_b32 m0, s27
    v_add_u32 v{bKG}, {32*1152}, v{bKG}
    s_add_u32 s27, s99, 8192
    buffer_load_dwordx4 v{bKG}, s[4:7], 0 offen {NTB} lds
    s_mov_b32 m0, s27
    s_add_u32 s27, s25, 9216
    buffer_load_dwordx4 v{b5G}, s[4:7], 0 offen lds
    s_mov_b32 s4, s{pV}
    s_mov_b32 s5, s{pV+1}
    s_mov_b32 m0, s27
    s_add_u32 s27, s27, 4096
    buffer_load_dwordx4 v{bVG}, s[4:7], 0 offen {NTB} lds
    s_mov_b32 m0, s27
    s_mov_b32 s27, {32*1152}
    buffer_load_dwordx4 v{bVG}, s[4:7], s27 offen {NTB} lds
    s_mov_b32 s4, s{pH}
    s_mov_b32 s5, s{pH+1}
    s_and_b32 s25, s28, 1
    s_lshl_b32 s25, s25, 11
    s_lshl_b32 s27, s98, 12
    s_add_u32 s27, s27, s25
    v_lshlrev_b32 v{T}, 3, v{vL16}
    s_mov_b64 exec, 0xffff
    buffer_load_dword v209, v{T}, s[4:7], s27 offen
    s_mov_b64 exec, -1
    s_cmp_eq_u32 s95, 1
    s_cbranch_scc1 Lb_setup2
    """)
    def kv_second(val):
        g.post(val, T)
        A("s_cmp_lg_u32 s16, 4\ns_cbranch_scc1 Lb_a6")
        g.wait_words("s94", val, T)
        A("s_cmp_lt_u32 s2, 224\ns_cbranch_scc1 Lb_a5")
        g.wait_words(SY, 10, T, sl=4)
        A("Lb_a5:")
        avail_add(g, 6)
        A("Lb_a6:")
    if not EARLY:
        A("s_waitcnt vmcnt(6)")
        kv_second(2)
    A("s_waitcnt vmcnt(1)\nLb_s0:")
    g.gsync(3, T)
    g.stamp(1)
    for n in range(5): A(f"ds_read_b128 {V(KR+4*n,4)}, v{bRD} offset:{128*n}")
    for t in range(2): A(f"ds_read_b128 {V(VR+4*t,4)}, v{bRD} offset:{9216+128*t}")
    A("s_mov_b32 s29, 0xffff0000\ns_waitcnt lgkmcnt(2)")
    for j in range(4):
        for d in range(4):
            for t in range(2):
                for e in range(2):
                    u = UU + 4*d + 2*t + e
                    if j == 0: A(f"v_dot2_f32_bf16 v{u}, v{KR+4*(t+3)+d}, v{CM+8*d+e}, 0")
                    else: A(f"v_dot2c_f32_bf16 v{u}, v{KR+4*(t+3-j)+d}, v{CM+8*d+2*j+e}")
    A("s_waitcnt lgkmcnt(0)")
    for d in range(4):
        for t in range(2):
            x = UU + 16 + 4*d + 2*t
            A(f"v_lshlrev_b32 v{x}, 16, v{VR+4*t+d}\nv_and_b32 v{x+1}, s29, v{VR+4*t+d}")
    for i in range(8): A(f"v_pk_mul_f32 {V(UU+2*i,2)}, {V(UU+2*i,2)}, {V(UU+16+2*i,2)}")
    for d in range(4):
        for t in range(2): A(f"v_cvt_pk_bf16_f32 v{OUT+4*t+d}, v{UU+4*d+2*t}, v{UU+4*d+2*t+1}")
    A(f"""
    ds_write_b128 v{bRD}, {V(OUT,4)} offset:9216
    ds_write_b128 v{bRD}, {V(OUT+4,4)} offset:{9216+128}
    s_waitcnt lgkmcnt(0)
    """)
    g.gsync(4, T)
    for i in range(2):
        A(f"ds_read_b64_tr_b16 {V(OUT+4*i,2)}, v{bTR} offset:{9216+4096*i}")
        A(f"ds_read_b64_tr_b16 {V(OUT+4*i+2,2)}, v{bTR} offset:{9216+4096*i+512}")
    A(f"""
    s_mov_b32 s27, 32768
    s_waitcnt lgkmcnt(0)
    ds_write_b128 v{bBW}, {V(OUT,4)}
    ds_write_b128 v{bBW}, {V(OUT+4,4)} offset:64
    ds_read_b128 {V(OUT+8,4)}, v{bBR}
    ds_read_b128 {V(OUT+12,4)}, v{bBR} offset:1024
    s_waitcnt lgkmcnt(0)
    buffer_store_dwordx4 {V(OUT+8,4)}, v{bUO}, s[12:15], 0 offen {SC}
    buffer_store_dwordx4 {V(OUT+12,4)}, v{bUO}, s[12:15], s27 offen {SC}
    """)
    g.stamp(2)
    A("s_cmp_lg_u32 s16, 4\ns_cbranch_scc1 Lb_nr" + ("" if EARLY else "\ns_cmp_eq_u32 s95, 0\ns_cbranch_scc1 Lb_nr"))
    g.ready(T)
    A("Lb_nr:\ns_waitcnt vmcnt(0)")
    g.stamp(3)
    g.gsync(5, T)
    A("s_cmp_eq_u32 s95, 1\ns_cbranch_scc1 Lc_x")
    A("s_cmp_lg_u32 s16, 4\ns_cbranch_scc1 Lc_k\ns_and_b32 s25, s2, 15\ns_add_u32 s25, s25, 64")
    g.signal("s25", T)
    A("Lc_k:")
    if EARLY:
        kv_first()
        dma_n(g, 2)
        A("s_waitcnt vmcnt(10)")
        kv_second(12)
    else: dma_n(g, 2)
    A("s_waitcnt vmcnt(0)")
    g.post(6 + 10*(EARLY > 0), T)
    A(f"""
    s_lshr_b32 s25, s2, 3
    s_lshl_b32 s25, s25, 2
    s_add_u32 s25, s25, s20            ; 0..127
    s_mul_i32 s27, s25, {41*128}
    v_lshlrev_b32 v{T}, 7, v0
    v_add_u32 v{T+1}, s27, v{T}
    v_min_u32 v{T+1}, {WOB-4}, v{T+1}
    s_mov_b32 exec_hi, 0x1ff
    global_load_dword v210, v{T+1}, s[{pWO}:{pWO+1}]
    s_and_b32 s27, s2, 7
    s_mul_i32 s27, s27, {256*1152}
    s_mul_i32 s25, s25, {18*128}
    s_add_u32 s27, s27, s25
    v_add_u32 v{T+1}, s27, v{T}
    s_mov_b64 exec, 0x3ffff
    global_load_dword v211, v{T+1}, s[{pQ}:{pQ+1}]
    s_mov_b64 exec, -1
    """)
    A("s_cmp_lg_u32 s16, 4\ns_cbranch_scc1 Lc_w")
    g.wait_words("s94", 6 + 10*(EARLY > 0), T)
    avail_add(g, 4)
    wait_progress(g, 7, 8)
    g.poll(64, 16, 16, T, sl=opt('USLEEP', 4))
    A("s_branch Lc_pd\nLc_x:\ns_cmp_lg_u32 s16, 4\ns_cbranch_scc1 Lc_w\ns_and_b32 s25, s2, 3\ns_add_u32 s25, s25, 80")
    g.signal("s25", T)
    g.poll(80, 4, 8, T, sl=2)
    A(f"""
Lc_pd:
    s_sub_u32 s25, 2, s95
    v_mov_b32 v{T}, {SY+36}
    v_mov_b32 v{T+1}, s25
    ds_write_b32 v{T}, v{T+1}
Lc_w:
    s_sub_u32 s91, 2, s95
    """)
    g.wait_words(SY+36, "s91", T, n=1, sl=opt('WSL', 8))
    g.stamp(4)
    A(f"""
    s_and_b32 s28, s16, 1
    s_lshl_b32 s25, s28, 11
    s_add_u32 s27, s97, s25
    s_mov_b32 m0, s27
    s_lshl_b32 s27, s98, 12
    s_add_u32 s27, s27, s25
    buffer_load_dwordx4 v{vL16}, s[4:7], s27 offen lds
    buffer_load_dwordx4 v{vL16}, s[4:7], s27 offen offset:1024 lds
    ds_write_b128 v{bZP}, {V(R.acc,4)}
    s_mul_i32 s25, s28, {2*4160}
    s_add_u32 s25, s25, s96
    s_add_u32 s25, s25, 64
    s_lshl_b32 s27, s28, 2
    s_sub_u32 s27, s101, s27
    s_sub_u32 s27, s27, {YT-UT}
    """)
    for c in range(2):
        A("s_mov_b32 m0, s25\ns_nop 0")
        for i in range(4): A(f"buffer_load_dwordx4 v{vL16}, s[12:15], s27 offen offset:{1024*i} lds {SC}")
        if c == 0: A("s_add_u32 s25, s25, 4160\ns_sub_u32 s27, s27, 2")
    A("s_waitcnt vmcnt(0) lgkmcnt(0)")
    g.gsync(17, T)
    A(f"s_setprio {opt('VPRIO', 0)}")
    g.stamp(5)
    A("s_cmp_eq_u32 s28, 0\ns_cbranch_scc0 Lc_set1")
    kconv.conv_main(A, R, "Lc_l0", 0)
    A("s_setprio 1")
    conv_epi(A, R, 0, "s96", "s100", "s101", "s[12:15]", SC)
    A("s_branch Lc_done\nLc_set1:")
    kconv.conv_main(A, R, "Lc_l1", 1)
    A("s_setprio 1")
    conv_epi(A, R, 1, "s96", "s100", "s101", "s[12:15]", SC)
    A("Lc_done:\ns_waitcnt vmcnt(0)")
    g.stamp(6)
    g.gsync(18, T)
    A("s_and_b32 s25, s16, 3\ns_cmp_lg_u32 s25, 0\ns_cbranch_scc1 Lc_e\ns_and_b32 s25, s2, 15\ns_add_u32 s25, s25, 16")
    g.signal("s25", T)
    A("Lc_e:\ns_cmp_eq_u32 s95, 0\ns_cbranch_scc1 Lh_p3\ns_branch Lh_restart")

def conv_epi(A, R, st, s_slot, s_D, s_out, srd, flags=""):
    S_ = kconv.SETS[st]
    A(f"v_add_u32 v{R.t0}, {s_slot}, v{R.aU}")
    for ti, tau in enumerate(S_): A(f"ds_read_b64 {V(R.A[0]+2*ti,2)}, v{R.t0} offset:{64+512*tau}")
    A("s_waitcnt lgkmcnt(0)")
    for ti in range(4):
        for e in range(4): A(f"v_dot2c_f32_bf16 v{R.acc+4*ti+e}, v{R.A[0]+2*ti+(e >> 1)}, v{194+(e & 1)}")
    A("s_nop 1")
    for ti, tau in enumerate(S_):
        t = R.B[0]+2*ti; ac = R.acc+4*ti
        A(f"""
        v_cvt_pk_bf16_f32 v{t}, v{ac}, v{ac+1}
        v_cvt_pk_bf16_f32 v{t+1}, v{ac+2}, v{ac+3}
        buffer_store_dwordx2 {V(t,2)}, v{R.aU}, {srd}, {s_out} offen offset:{512*tau} {flags}
        """)

def conv_setup(A, R):
    A(f"""
    v_bfe_u32 v{R.t0}, v0, 2, 2
    v_mul_u32_u24 v{R.aA}, 4160, v{R.t0}
    v_and_b32 v{R.t0}, 3, v0
    v_lshl_add_u32 v{R.aA}, v{R.t0}, 3, v{R.aA}
    v_lshrrev_b32 v{R.t0}, 4, v0
    v_lshlrev_b32 v{R.aB}, 4, v{R.t0}
    v_sub_u32 v{R.aA}, v{R.aA}, v{R.aB}
    s_add_u32 s25, s96, {64+32-8}
    v_add_u32 v{R.aA}, s25, v{R.aA}
    v_and_b32 v{R.aU}, 15, v0
    v_lshlrev_b32 v{R.aU}, 5, v{R.aU}
    v_add_u32 v{R.aB}, v{R.aB}, v{R.aU}
    s_sub_u32 s25, s97, 96
    v_add_u32 v{R.aB}, s25, v{R.aB}
    v_lshl_add_u32 v{R.aU}, v{R.t0}, 3, v{R.aU}
    v_and_b32 v{R.mask}, 15, v0
    v_lshlrev_b32 v{R.t0}, 3, v{R.t0}
    v_sub_u32 v{R.t0}, v{R.mask}, v{R.t0}
    v_add_u32 v{R.t0}, 17, v{R.t0}
    v_mov_b32 v{R.acc}, 0xffff
    v_mov_b32 v{R.acc+1}, 0xffff0000
    """)
    for d in range(4):
        A(f"""
        v_cmp_lt_i32 vcc, {2*d}, v{R.t0}
        v_cmp_lt_i32 s[26:27], {2*d+1}, v{R.t0}
        s_nop 0
        v_cndmask_b32 v{R.mask+d}, 0, v{R.acc}, vcc
        v_cndmask_b32 v{R.acc+2}, 0, v{R.acc+1}, s[26:27]
        v_or_b32 v{R.mask+d}, v{R.mask+d}, v{R.acc+2}
        """)
    for i in range(16): A(f"v_mov_b32 v{R.acc+i}, 0")
    A(f"""
    s_lshl_b32 s101, s98, 12
    s_add_u32 s101, s101, {YT}
    s_lshl_b32 s25, s100, 16
    s_and_b32 s27, s100, 0xffff0000
    s_bitcmp0_b32 s98, 0
    s_cselect_b32 s100, s25, s27
    s_lshr_b32 s25, s100, 16
    v_mov_b32 v194, s25
    v_mov_b32 v195, s100
    """)

def zero_acc(A):
    for i in range(16): A(f"v_mov_b32 v{OA+i}, 0")
    for i in range(16): A(f"v_mov_b32 v{OB+i}, 0")
    for i in range(8): A(f"v_mov_b32 v{PB+i}, 0")
    for i in range(8): A(f"v_mov_b32 v{VB[1]+i}, 0")

def gen_attn(g):
    A = g.A
    A("Lattn:\ns_setprio 2")
    head_params(A)
    A(f"""
    v_lshlrev_b32 v{vL8}, 3, v0
    s_lshl_b32 s31, s18, 3
    s_lshl_b32 s32, s20, 1
    s_add_u32 s32, s31, s32
    s_mul_i32 s34, s21, {MB}
    s_add_u32 s34, s34, s39
    s_lshl_b32 s35, s32, 10
    s_add_u32 s35, s35, s34
    s_add_u32 s34, s39, {LEFT}
    s_lshl_b32 s37, s32, 8
    s_add_u32 s37, s37, s34
    v_and_b32 v{aT1}, 31, v0
    v_lshrrev_b32 v{aT0}, 5, v0
    v_mul_u32_u24 v{aT3}, 288, v{aT0}
    v_lshl_add_u32 v{aT2}, v{aT1}, 4, v{aT3}
    v_add_u32 v{vV0}, s23, v{aT2}
    v_mov_b32 v{vVinc}, {4*VT}
    v_mov_b32 v{aT2}, {CONST+240}
    v_mov_b32 v{aT3}, {CONST+224}
    v_cmp_eq_u32 vcc, 18, v{aT1}
    v_subrev_u32 v{aT0}, 20, v{aT1}
    v_cmp_gt_u32 s[52:53], 8, v{aT0}
    v_cndmask_b32 v{aT2}, v{aT2}, v{aT3}, vcc
    v_mov_b32 v{aT3}, {CONST+176}
    v_cmp_lt_u32 vcc, 17, v{aT1}
    v_cndmask_b32 v{aT2}, v{aT2}, v{aT3}, s[52:53]
    s_mov_b32 s50, 0
    v_cndmask_b32 v{vV0}, v{vV0}, v{aT2}, vcc
    v_cndmask_b32 v{vVinc}, v{vVinc}, 0, vcc
    v_cmp_gt_u32 vcc, 32, v0
    s_cmp_eq_u32 s21, 0
    s_cselect_b64 s[52:53], -1, 0
    s_cselect_b64 s[54:55], 0, -1
    s_and_b64 s[56:57], s[52:53], vcc
    s_and_b64 s[58:59], s[54:55], vcc
    s_andn2_b64 s[60:61], s[52:53], vcc
    s_andn2_b64 s[62:63], s[54:55], vcc
    v_lshlrev_b32 v{aT2}, 3, v{aT1}
    v_add_u32 v{vKM0}, s22, v{vL8}
    v_add_u32 v{vKL0}, s24, v{vL8}
    s_lshl_b32 s25, s20, 8
    s_add_u32 s25, s25, {UC}
    v_lshlrev_b32 v{vCA}, 2, v0
    v_add_u32 v{vCA}, s25, v{vCA}
    v_mov_b32 v{vOne}, 1
    s_mul_i32 s25, s32, {36*1024}
    s_add_u32 s25, s25, {OF}
    s_lshl_b32 s48, s17, 10
    s_add_u32 s48, s48, s25
    s_lshl_b32 s49, s17, 7
    s_add_u32 s49, s49, s25
    s_add_u32 s49, s49, 32768
    """)
    zero_acc(A)
    A("s_cmp_lg_u32 s16, 0\ns_cbranch_scc1 La_w")
    g.poll(0, 14, 16, 204, fast=opt('FASTP', 0))
    A(f"""
    v_mov_b32 v{TMP}, {SY+32}
    v_mov_b32 v{TMP+1}, 1
    ds_write_b32 v{TMP}, v{TMP+1}
La_w:
    """)
    g.wait_words(SY+32, 1, TMP, n=1)
    g.stamp(7)
    dma_iter(A)
    A(f"""
    buffer_load_dwordx2 {V(Q1A,2)}, v{vL8}, s[12:15], s35 offen {SC}
    buffer_load_dwordx2 {V(Q1A+2,2)}, v{vL8}, s[12:15], s35 offen offset:512 {SC}
    buffer_load_dwordx2 {V(Q1B,2)}, v{vL8}, s[12:15], s35 offen offset:1024 {SC}
    buffer_load_dwordx2 {V(Q1B+2,2)}, v{vL8}, s[12:15], s35 offen offset:1536 {SC}
    buffer_load_dwordx2 {V(Q2A,2)}, v{aT2}, s[12:15], s37 offen {SC}
    buffer_load_dwordx2 {V(Q2B,2)}, v{aT2}, s[12:15], s37 offen offset:256 {SC}
    s_cmp_lt_u32 s2, 224
    s_cbranch_scc1 La_n12
    """)
    dma_n(g, 2)
    A(f"""
    s_mov_b32 s30, 1
    s_waitcnt vmcnt(10)
    s_branch La_n13
La_n12:
    s_mov_b32 s30, 0
    s_waitcnt vmcnt(0)
La_n13:
    """)
    g.post(9, TMP)
    for Q in (Q2A, Q2B):
        A(f"""
        v_cndmask_b32 v{Q+2}, 0, v{Q}, s[60:61]
        v_cndmask_b32 v{Q+3}, 0, v{Q+1}, s[62:63]
        v_cndmask_b32 v{Q}, 0, v{Q}, s[56:57]
        v_cndmask_b32 v{Q+1}, 0, v{Q+1}, s[58:59]
        """)
    g.wait_words(SY, 9, TMP)
    g.stamp(8)
    A(f"""
    ds_read2st64_b64 {V(KB[0],4)}, v{vKM0} offset0:0 offset1:1
    ds_read_b64 {V(KL,2)}, v{vKL0}
    s_waitcnt lgkmcnt(0)
    {m16(SA, KB[0], Q1A, 0)}
    {m16(SB, KB[0], Q1B, 0)}
    {m8(SA, KL, Q2A)}
    {m8(SB, KL, Q2B)}
    s_nop 10
    """)
    maxtree(A, aT0, SA)
    maxtree(A, aT1, SB)
    A(f"""
La_setm:
    v_mov_b32 v{aT2}, v{aT0}
    v_mov_b32 v{aT3}, v{aT1}
    v_mov_b32 v{vKM}, v{vKM0}
    v_mov_b32 v{vKL}, v{vKL0}
    v_permlane32_swap_b32 v{aT0}, v{aT2}
    v_permlane32_swap_b32 v{aT1}, v{aT3}
    v_mov_b32 v{vV}, v{vV0}
    ds_read_b128 {V(VB[0],4)}, v{vV0}
    ds_read_b128 {V(VB[0]+4,4)}, v{vV0} offset:576
    v_max_f32 v{aT0}, v{aT0}, v{aT2}
    v_max_f32 v{aT1}, v{aT1}, v{aT3}
    """)
    for i in range(16): A(f"v_sub_f32 v{NMA+i}, 0, v{aT0}")
    A(f"""
    v_sub_f32 v{NMB}, 0, v{aT1}
    s_mov_b32 s51, 0
    {m16(SA, KB[0], Q1A, V(NMA,16))}
    {m8(SA, KL, Q2A)}
    """)
    for i in range(1, 16): A(f"v_sub_f32 v{NMB+i}, 0, v{aT1}")
    A("s_setprio 0")
    g.stamp(9)
    if g.dbg and 'its' in EXP: A("s_mov_b32 s55, 0\nv_mov_b32 v214, 0\nv_writelane_b32 v214, s88, 0\nv_writelane_b32 v214, s90, 32")
    A(".p2align 6\nLa_loop:")
    for j in range(4):
        b = j & 1; nb = b ^ 1
        koff = 2*(j+1)
        ex = [[f"ds_read2st64_b64 {V(KB[nb],4)}, v{vKM} offset0:{koff} offset1:{koff+1}"], [], [], ["s_waitcnt lgkmcnt(0)"]]
        if j == 0:
            ex[0].append(f"ds_read_b64 {V(KL+2,2)}, v{vKL} offset:512")
            ex[2] = ["s_min_u32 s53, s51, 14"]
        if j == 1: ex[0].append(f"ds_add_rtn_u32 v{vCR}, v{vCA}, v{vOne}")
        if j == 2: ex[2] = ["s_lshr_b32 s52, s52, 8"]
        if j == 3:
            ex[0].append(f"ds_read_b64 {V(KL,2)}, v{vKL} offset:1024")
            ex[1] = [f"v_add_u32 v{vV}, v{vVinc}, v{vV}"]
            ex[2] = ["s_cmp_lt_u32 s51, 16"]
        klp = KL + 2*(j >> 1)
        phase(A, SA, PA, [m16(SB, KB[b], Q1B, V(NMB,16)), m8(SB, klp, Q2B + 2*(j & 1)),
                          m16(OB, VB[nb], PB, V(OB,16)), m16(OB, VB[nb]+4, PB+4, V(OB,16))], ex)
        jn = (j+1) & 3
        klp = KL + 2*(jn >> 1)
        ex = [[], [], [f"ds_read_b128 {V(VB[nb],4)}, v{vV} offset:{jn*VT}"], [f"ds_read_b128 {V(VB[nb]+4,4)}, v{vV} offset:{jn*VT+576}"]]
        if j == 0: ex[0] = ["s_add_u32 s51, s51, 1"]
        if j == 1: ex[1] = [f"v_readfirstlane_b32 s52, v{vCR}"]
        if j == 2:
            ex[0] = ["s_cmp_gt_u32 s53, s52"]
            ex[3] += ["s_cbranch_scc1 La_chk", "La_chkd:"]
        if j == 3:
            ex[1] = [f"v_add_u32 v{vKM}, 4096, v{vKM}", f"v_add_u32 v{vKL}, 1024, v{vKL}"]
        phase(A, SB, PB, [m16(SA, KB[nb], Q1A, V(NMA,16)), m8(SA, klp, Q2A + 2*(jn & 1)),
                          m16(OA, VB[b], PA, V(OA,16)), m16(OA, VB[b]+4, PA+4, V(OA,16))], ex)
    if g.dbg and 'its' in EXP:
        A(f"""
        s_memrealtime s[88:89]
        s_memtime s[90:91]
        s_mov_b32 m0, s51
        s_waitcnt lgkmcnt(0)
        v_writelane_b32 v214, s88, m0
        s_add_u32 m0, s51, 32
        s_nop 0
        v_writelane_b32 v214, s90, m0
        s_cmp_lt_u32 s51, 16
        """)
    A("s_cbranch_scc1 La_loop")
    A(f"""
    s_setprio 2
    {m16(OB, VB[1], PB, V(OB,16))}
    {m16(OB, VB[1]+4, PB+4, V(OB,16))}
    """)
    g.stamp(10)
    A(f"v_lshlrev_b32 v{aT2}, 2, v0\nv_mov_b32 v{aT3}, 0")
    for n, (O, P) in enumerate(((OA, PA), (OB, PB))):
        A(f"""
        v_mov_b32 v{aT0}, v{O+10}
        v_mov_b32 v{aT1}, v{O+10}
        """)
        for i in range(11): A(f"v_add_f32 v{aT3}, |v{O+i}|, v{aT3}")
        A(f"""
        v_permlane32_swap_b32 v{aT0}, v{aT1}
        s_nop 1
        v_rcp_f32 v{aT0}, v{aT0}
        s_add_u32 s25, s48, {n*36*1024}
        s_add_u32 s27, s49, {n*36*1024}
        """)
        for i in range(10): A(f"v_mul_f32 v{O+i}, v{O+i}, v{aT0}")
        for i in range(5): A(f"v_cvt_pk_bf16_f32 v{P+i}, v{O+2*i}, v{O+2*i+1}")
        A(f"""
        buffer_store_dwordx4 {V(P,4)}, v{vL16}, s[12:15], s25 offen {SC}
        s_mov_b32 exec_hi, 0
        buffer_store_dword v{P+4}, v{aT2}, s[12:15], s27 offen {SC}
        s_mov_b32 exec_hi, -1
        """)
    A(f"""
    v_mov_b32 v{aT1}, 0x71800000
    v_cmp_nlt_f32 vcc, v{aT3}, v{aT1}
    v_mov_b32 v{aT3}, {FLAG}
    v_mov_b32 v{aT2}, 1
    s_cmp_lg_u32 s50, 0
    s_cbranch_scc1 Lp3
    s_cbranch_vccz Lp3
    ds_write_b32 v{aT3}, v{aT2}
    s_branch Lp3
La_chk:
    s_cmp_eq_u32 s30, 0
    s_cbranch_scc1 La_chk0
    s_mov_b32 s30, 0
    s_waitcnt vmcnt(0)
    """)
    g.gsync(10, TMP)
    A(f"""
    v_mov_b32 v{TMP}, {4 << 8}
    ds_add_u32 v{vCA}, v{TMP}
La_chk0:
    s_mov_b32 s93, {SPIN}
La_chk1:
    ds_read_b32 v{vCR}, v{vCA}
    s_waitcnt lgkmcnt(0)
    v_readfirstlane_b32 s52, v{vCR}
    s_lshr_b32 s52, s52, 8
    s_cmp_le_u32 s53, s52
    s_cbranch_scc1 La_chkd
    s_sleep 1
    s_sub_u32 s93, s93, 1
    s_cmp_lg_u32 s93, 0
    s_cbranch_scc1 La_chk1
    s_branch La_chkd
La_slow:
    s_mov_b32 s50, 1
    s_barrier
    v_mov_b32 v{aT0}, {14 << 8}
    ds_write_b32 v{vCA}, v{aT0}
    v_mov_b32 v{aT3}, {FLAG}
    v_mov_b32 v{aT2}, 0
    ds_write_b32 v{aT3}, v{aT2}
    v_mov_b32 v{vKM}, v{vKM0}
    v_mov_b32 v{vKL}, v{vKL0}
    v_mov_b32 v{aT0}, 0xff800000
    v_mov_b32 v{aT1}, 0xff800000
    s_mov_b32 s51, 16
    s_waitcnt lgkmcnt(0)
    s_barrier
La_maxloop:
    ds_read2st64_b64 {V(KL,4)}, v{vKL} offset0:0 offset1:1
    """)
    for j in range(4):
        A(f"""
        ds_read2st64_b64 {V(KB[0],4)}, v{vKM} offset0:{2*j} offset1:{2*j+1}
        s_waitcnt lgkmcnt(0)
        {m16(SA, KB[0], Q1A, 0)}
        {m16(SB, KB[0], Q1B, 0)}
        {m8(SA, KL+2*(j>>1), Q2A+2*(j&1))}
        {m8(SB, KL+2*(j>>1), Q2B+2*(j&1))}
        s_nop 11
        """)
        maxtree(A, aT0, SA, True)
        maxtree(A, aT1, SB, True)
    A(f"""
    v_add_u32 v{vKM}, 4096, v{vKM}
    v_add_u32 v{vKL}, 1024, v{vKL}
    s_sub_u32 s51, s51, 1
    s_cmp_lg_u32 s51, 0
    s_cbranch_scc1 La_maxloop
    ds_read2st64_b64 {V(KB[0],4)}, v{vKM0} offset0:0 offset1:1
    ds_read_b64 {V(KL,2)}, v{vKL0}
    """)
    zero_acc(A)
    A("s_waitcnt lgkmcnt(0)\ns_branch La_setm")

def gen_p3(g):
    A = g.A
    BW, ACC_, AF = 40, 184, 16
    wA = 196
    A(f"""
Lh_slow:
    s_barrier
    """)
    dma_skip(A, -8)
    dma_n(g, 8)
    A(f"""
    s_waitcnt vmcnt(0)
    s_barrier
Lh_p3:
    s_and_b32 s19, s2, 7
    s_lshr_b32 s33, s2, 3
    v_lshlrev_b32 v{TMP}, 7, v0
    s_cmp_ge_u32 s33, 24
    s_cbranch_scc0 Lh_wo
    s_branch Lp3
Lh_wo:
    """)
    g.srd(4, pWO, WOB)

    for i in range(3):
        A(f"""
        v_add_u32 v1, {64*i}, v0
        v_mul_u32_u24 v2, 5462, v1
        v_lshrrev_b32 v2, 16, v2
        v_mul_u32_u24 v3, 12, v2
        v_sub_u32 v1, v1, v3
        v_mul_u32_u24 v2, 1152, v2
        v_lshl_add_u32 v{wA+i}, v1, 4, v2
        """)
    A(f"""
    v_subrev_u32 v{wA+1}, 1024, v{wA+1}
    v_subrev_u32 v{wA+2}, 2048, v{wA+2}
    s_lshr_b32 s25, s33, 2
    s_mul_i32 s28, s25, 192
    s_mul_i32 s25, s20, {16*1152}
    s_add_u32 s28, s28, s25
    """)
    for half, (n, base) in enumerate(((13, "s23"), (15, "s22"))):
        wait_progress(g, n, 6)
        A(f"""
        s_add_u32 s27, s28, {half*288*1152}
        s_mul_i32 s25, s20, 3072
        s_add_u32 s25, s25, {base}
        s_mov_b32 s31, s20
Lo_wo{half}:
        s_mov_b32 m0, s25
        s_add_u32 s31, s31, 4
        buffer_load_dwordx4 v{wA}, s[4:7], s27 offen lds
        buffer_load_dwordx4 v{wA+1}, s[4:7], s27 offen offset:1024 lds
        buffer_load_dwordx4 v{wA+2}, s[4:7], s27 offen offset:2048 lds
        s_add_u32 s27, s27, {4*16*1152}
        s_add_u32 s25, s25, {4*3072}
        s_cmp_lt_u32 s31, 18
        s_cbranch_scc1 Lo_wo{half}
        """)
    A(f"""
Lp3:
    v_mov_b32 v{TMP+1}, {FLAG}
    s_lshl_b32 s30, s18, 2
    s_lshr_b32 s25, s17, 3
    s_add_u32 s30, s30, s25
    s_add_u32 s30, s30, 32
    s_waitcnt vmcnt(0) lgkmcnt(0)
    s_barrier
    ds_read_b32 v{TMP}, v{TMP+1}
    s_and_b32 s19, s2, 7
    s_lshr_b32 s33, s2, 3
    s_waitcnt lgkmcnt(0)
    v_readfirstlane_b32 s25, v{TMP}
    s_cmp_eq_u32 s25, 0
    s_cbranch_scc1 Lp3_ok
    s_cmp_lt_u32 s16, 4
    s_cbranch_scc1 La_slow
    s_branch Lh_slow
Lp3_ok:
    """)
    g.stamp(11)
    A("s_cmp_lg_u32 s16, 7\ns_cbranch_scc1 Lp3_1")
    g.signal("s30", 14)
    A(f"""
Lp3_1:
    s_cmp_ge_u32 s33, 24
    s_cbranch_scc1 Lp3_s3
    s_and_b32 s17, s33, 3
    s_lshl_b32 s19, s19, 2
    s_add_u32 s17, s17, s19            ; tb
    s_lshr_b32 s18, s33, 2             ; ng
    s_mov_b32 s28, s23
    s_mov_b32 s29, s22
    s_and_b32 s23, s16, 1
    s_lshr_b32 s24, s16, 1
    v_lshlrev_b32 v12, 4, v0
    s_cmp_ge_u32 s16, 6
    s_cbranch_scc1 Lo_nopre
    v_lshrrev_b32 v1, 5, v0
    v_bfe_u32 v2, v0, 2, 2
    v_bfe_u32 v3, v0, 4, 1
    v_lshlrev_b32 v3, 5, v3
    v_and_b32 v7, 3, v0
    v_lshl_add_u32 v3, v7, 3, v3
    s_lshl_b32 s25, s24, 6
    v_add_u32 v3, s25, v3
    v_lshl_add_u32 v7, v1, 2, v2
    v_mul_u32_u24 v7, 192, v7
    v_add3_u32 v8, v7, v3, s28
    v_add3_u32 v9, v7, v3, s29
    v_mul_u32_u24 v7, 72, v1
    v_lshrrev_b32 v10, 1, v2
    v_mul_u32_u24 v10, 18, v10
    v_add_u32 v7, v7, v10
    v_and_b32 v10, 1, v2
    v_add3_u32 v7, v7, v10, 16
    v_mul_u32_u24 v7, 192, v7
    v_add3_u32 v10, v7, v3, s28
    v_add3_u32 v11, v7, v3, s29
    """)
    for s_ in range(36):
        for e in range(2):
            if s_ < 32: base, off = (8, (18*s_ + 8*e)*192) if s_ < 16 else (9, (18*(s_-16) + 8*e)*192)
            else: base, off = (10 + ((s_-32) >> 1), (144*((s_-32) & 1) + 36*e)*192)
            A(f"ds_read_b64_tr_b16 {V(BW+4*s_+2*e,2)}, v{base} offset:{off}")
        if s_ % 6 == 5: A("s_waitcnt lgkmcnt(4)")
    A("Lo_nopre:")
    g.srd(44, pOUT, OUTB)
    for i in range(16): A(f"v_mov_b32 v{ACC_+i}, 0")
    TR = 81920
    A(f"""
    s_mul_i32 s20, s17, {2*36*1024}
    s_add_u32 s20, s20, {OF}
    s_mul_i32 s21, s23, {36*1024}
    s_add_u32 s20, s20, s21
    s_lshl_b32 s21, s24, 10
    s_add_u32 s20, s20, s21
    s_lshl_b32 s21, s23, 10
    v_add_u32 v13, s21, v12
    v_and_b32 v1, 31, v0
    v_lshlrev_b32 v1, 2, v1
    v_lshrrev_b32 v2, 5, v0
    v_lshl_add_u32 v1, v2, 9, v1
    s_add_u32 s21, s21, 65536
    v_add_u32 v201, s21, v1
    v_add_u32 v202, 2048, v201
    v_add_u32 v203, 4096, v201
    v_add_u32 v204, 6144, v201
    v_and_b32 v1, 31, v0
    s_lshl_b32 s21, s23, 5
    v_add_u32 v1, s21, v1
    v_mul_u32_u24 v1, 208, v1
    v_lshl_add_u32 v1, v2, 3, v1
    s_lshl_b32 s21, s24, 6
    s_add_u32 s21, s21, {TR}
    v_add_u32 v200, s21, v1
    s_mul_i32 s26, s17, {64*2304}
    s_mul_i32 s22, s18, 192
    s_add_u32 s26, s26, s22
    s_lshl_b32 s22, s16, 7
    """)
    for i in range(2):
        A(f"""
        v_add_u32 v1, s22, v0
        v_add_u32 v1, {64*i}, v1
        v_mul_u32_u24 v2, 5462, v1
        v_lshrrev_b32 v2, 16, v2
        v_mul_u32_u24 v3, 12, v2
        v_sub_u32 v1, v1, v3
        v_lshlrev_b32 v1, 4, v1
        v_mul_u32_u24 v3, 208, v2
        v_add_u32 v{4+i}, v3, v1
        v_add_u32 v{4+i}, {TR}, v{4+i}
        v_mul_u32_u24 v3, 2304, v2
        v_add_u32 v{6+i}, v3, v1
        """)
    A("s_lshl_b32 s21, s16, 10\ns_waitcnt lgkmcnt(0)")
    g.stamp(12)
    A("s_cmp_lg_u32 s16, 7\ns_cbranch_scc1 Lp3_h\ns_add_u32 s25, s19, 32")
    g.poll("s25", 4, 8, 208, fast=opt('FASTP', 0))
    A("Lp3_h:\ns_barrier")
    g.stamp(13)
    for rr in range(9):
        A(f"""
        s_mov_b32 m0, s21
        s_add_u32 s21, s21, 8192
        buffer_load_dwordx4 v12, s[12:15], s20 offen lds {SC}
        s_add_u32 s20, s20, 4096
        """)
    AFB = [16, 216]
    def rd(s_, reg):
        off = 2048*s_ - (49152 if s_ >= 24 else 0)
        if s_ < 32: return [f"ds_read_b128 {V(reg,4)}, v{13 if s_ < 24 else 14} offset:{off}"]
        return [f"ds_read2_b32 {V(reg,2)}, v{201+s_-32} offset0:0 offset1:32", f"ds_read2_b32 {V(reg+2,2)}, v{201+s_-32} offset0:64 offset1:96"]
    A("v_add_u32 v14, 49152, v13")
    A("s_waitcnt vmcnt(6)\ns_barrier\ns_cmp_ge_u32 s16, 6\ns_cbranch_scc1 Lo_idle")
    for i in range(6):
        for r in rd(i, AFB[0]+4*i): A(r)
    for grp in range(6):
        nxt = grp + 1
        if nxt < 6 and nxt % 2 == 0: A(f"s_waitcnt vmcnt({6-3*(nxt//2)})\ns_barrier")
        for i in range(6):
            s_ = 6*grp + i
            n_rest = sum(len(rd(x, 0)) for x in range(s_+1, 6*grp+6))
            n_next = sum(len(rd(6*nxt+x, 0)) for x in range(i)) if nxt < 6 else 0
            A(f"s_waitcnt lgkmcnt({min(15, n_rest + n_next)})")
            A(f"v_mfma_f32_32x32x16_bf16 {V(ACC_,16)}, {V(BW+4*s_,4)}, {V(AFB[grp & 1]+4*i,4)}, {V(ACC_,16)}")
            if nxt < 6:
                for r in rd(6*nxt+i, AFB[nxt & 1]+4*i): A(r)
    g.stamp(14)
    A("s_nop 11")
    for q in range(4):
        A(f"""
        v_cvt_pk_bf16_f32 v{AF+2*q}, v{ACC_+4*q}, v{ACC_+4*q+1}
        v_cvt_pk_bf16_f32 v{AF+2*q+1}, v{ACC_+4*q+2}, v{ACC_+4*q+3}
        ds_write_b64 v200, {V(AF+2*q,2)} offset:{16*q}
        """)
    A(f"""
    s_waitcnt lgkmcnt(0)
    s_barrier
    ds_read_b128 {V(AF,4)}, v4
    ds_read_b128 {V(AF+4,4)}, v5
    s_waitcnt lgkmcnt(1)
    buffer_store_dwordx4 {V(AF,4)}, v6, s[44:47], s26 offen {SC}
    s_waitcnt lgkmcnt(0)
    buffer_store_dwordx4 {V(AF+4,4)}, v7, s[44:47], s26 offen {SC}
    s_branch Lfin
Lo_idle:
    s_waitcnt vmcnt(3)
    s_barrier
    s_waitcnt vmcnt(0)
    s_barrier
    s_branch Lfin
Lp3_s3:
    s_sub_u32 s20, s33, 24
    s_lshl_b32 s17, s19, 3
    s_add_u32 s17, s17, s20
    s_mov_b64 s[6:7], s[{pOUT}:{pOUT+1}]
    s_mov_b64 s[48:49], s[{pWS}:{pWS+1}]
    s_mov_b64 s[50:51], s[{pQ}:{pQ+1}]
    """)
    g.poll(16, 16, 18, 16)
    k3.gen_stage3(A, "Ls3", False, SC)
    A("Lfin:")
    g.end()

def gen(name, dbg=False):
    g = G(dbg); A = g.A
    A("Lcode_begin:")
    A(f"""
    s_cmp_ge_u32 s2, 256
    s_cbranch_scc1 Lend
    s_load_dwordx16 s[64:79], s[0:1], 0
    s_load_dwordx8 s[80:87], s[0:1], 64
    v_lshrrev_b32 v1, 6, v0
    v_and_b32 v0, 63, v0
    v_readfirstlane_b32 s16, v1
    """)
    if dbg: A(f"v_mov_b32 v{vST}, 0")
    g.stamp(0)
    A(f"""
    s_lshl_b32 s3, s16, 2
    s_add_u32 s3, s3, {SY}
    s_and_b32 s94, s3, {0xffffffff & ~15}
    s_cmp_ge_u32 s2, 224
    s_cbranch_scc1 Ls1
    """)
    gen_gemm(g)
    A("Ls1:")
    gen_stage1(g)
    gen_attn(g)
    gen_p3(g)
    A("Lend:\ns_endpgm\nLcode_end:")
    return A.text()

if __name__ == "__main__":
    import sys
    out = sys.argv[1]; dbg = len(sys.argv) > 2 and sys.argv[2] == "dbg"
    name = "concat_heads__softmax_full_mha__ssm_conv_h3__prompt_kernel"
    HDR = open("concat_heads__softmax_full_mha__ssm_conv_h3__prompt.s.ref").read().split("; Override launch")[0]
    s = HDR
    if (dbg and not os.environ.get('DD') and not os.environ.get('AMP')) or 'list' in EXP: s += f"; @launch kernel={name} grid=(256,1,1) block=(512,1,1) lds={LDS_BYTES}\n"
    else: s += f"; @launch grid=(256,1,1) block=(512,1,1) lds={LDS_BYTES}\n"
    s += '.amdgcn_target "amdgcn-amd-amdhsa--gfx950"\n.text\n' + kernel_head(name) + gen(name, dbg)
    s += '.section .rodata,"a"\n' + kernel_desc(name, NVGPR, 102)
    open(out, "w").write(s)
```

```python
import os, struct, math
from asmlib import *
from layout import *
import kconv
EXP = os.environ.get('FEXP', '').split(',')
def opt(name, default): return int(os.environ.get(name, default))

CS_BITS = struct.unpack("<I", struct.pack("<f", math.log2(math.e)/math.sqrt(18)))[0]
XB, WB, OUTB, WOB = 2048*1152, 576*3456, 2048*2304, 576*1152
NVGPR = 248
LDS_BYTES = 163840
vST = 215
pX, pW, pWO, pQ, pK, pV, pSH, pH, pD, pOUT, pDBG, pWS = [64+2*i for i in range(12)]
WIN = 65536 + VSZ + 16384
CONST = WIN
UC = WIN + 4352
XCH = WIN + 6144
SY = WIN + 5376
SC = "sc1"
NTG = 'nt' if 'ntg' in EXP else ''
NTB = 'nt' if 'ntb' in EXP else ''
SPIN = 200000
NREP = opt('NREP', 8)

class G:
    def __init__(self, dbg):
        self.A = Asm(); self.dbg = dbg; self.n = 0
    def lab(self, p="L"):
        self.n += 1; return f"{p}{self.n}"
    def stamp(self, i):
        if self.dbg:
            self.A(f"""
            s_memrealtime s[88:89]
            s_memtime s[90:91]
            s_waitcnt lgkmcnt(0)
            v_writelane_b32 v{vST}, s88, {i}
            v_writelane_b32 v{vST}, s90, {32+i}
            """)
    def srd(self, d, p, n):
        self.A(f"s_mov_b32 s{d}, s{p}\ns_mov_b32 s{d+1}, s{p+1}\ns_mov_b32 s{d+2}, {n}\ns_mov_b32 s{d+3}, 0x20000")
    def end(self):
        A = self.A
        if self.dbg:
            A("s_mov_b64 exec, -1\ns_waitcnt vmcnt(0)")
            self.stamp(31)
            A(f"""
            s_lshl_b32 s25, s2, 3
            s_add_u32 s25, s25, s16
            s_lshl_b32 s25, s25, 8
            s_add_u32 s25, s25, {STAMP}
            v_lshlrev_b32 v1, 2, v0
            buffer_store_dword v{vST}, v1, s[12:15], s25 offen
            s_add_u32 s25, s25, {2048*256}
            buffer_store_dword v214, v1, s[12:15], s25 offen
            """)
        amp = os.environ.get('AMP')
        if self.dbg and amp:
            wg, w, i, j = [int(x) for x in amp.split(',')]
            A(f"""
            s_cmp_lg_u32 s2, {wg}
            s_cbranch_scc1 Lam_e
            s_cmp_lg_u32 s16, {w}
            s_cbranch_scc1 Lam_e
            v_readlane_b32 s40, v{vST}, {i}
            v_readlane_b32 s41, v{vST}, {j}
            s_memrealtime s[42:43]
            s_nop 3
            s_sub_u32 s41, s41, s40
            s_min_u32 s41, s41, 10000
            s_lshl_b32 s41, s41, 3
            s_add_u32 s41, s41, {os.environ.get('AMPC', '0')}
            s_waitcnt lgkmcnt(0)
Lam_l:
            s_memrealtime s[44:45]
            s_waitcnt lgkmcnt(0)
            s_sub_u32 s44, s44, s42
            s_cmp_lt_u32 s44, s41
            s_cbranch_scc1 Lam_l
Lam_e:
            """)
        dd = os.environ.get('DD')
        if self.dbg and dd:
            wg, w, *idx = [int(x) for x in dd.split(',')]
            A(f"""
            s_cmp_lg_u32 s2, {wg}
            s_cbranch_scc1 Ldd_e
            s_cmp_lg_u32 s16, {w}
            s_cbranch_scc1 Ldd_e
            v_readlane_b32 s40, v{vST}, 0
            v_mov_b32 v2, 0
            """)
            for k, i in enumerate(idx):
                A(f"""
                v_readlane_b32 s41, v{vST}, {i}
                s_nop 3
                s_sub_u32 s41, s41, s40
                v_mov_b32 v3, s41
                global_store_dword v2, v3, s[{pDBG}:{pDBG+1}] offset:{32+4*k}
                """)
            A("Ldd_e:")
        A("s_endpgm")
    def post(self, val, t):
        self.A(f"""
        v_mov_b32 v{t}, s3
        v_mov_b32 v{t+1}, {val}
        ds_write_b32 v{t}, v{t+1}
        """)
    def wait_words(self, addr, val, t, n=4, sl=1):
        l = self.lab("Lw"); d = self.lab("Ld")
        rd = f"ds_read_b128 {V(t,4)}, v{t+4}" if n == 4 else f"ds_read_b32 v{t}, v{t+4}"
        mn = f"v_min_u32 v{t}, v{t}, v{t+1}\nv_min3_u32 v{t}, v{t}, v{t+2}, v{t+3}\ns_nop 0" if n == 4 else ""
        self.A(f"""
        v_mov_b32 v{t+4}, {addr}
        s_mov_b32 s93, {SPIN}
{l}:
        {rd}
        s_waitcnt lgkmcnt(0)
        {mn}
        v_readfirstlane_b32 s92, v{t}
        s_cmp_ge_u32 s92, {val}
        s_cbranch_scc1 {d}
        s_sleep {sl}
        s_sub_u32 s93, s93, 1
        s_cmp_lg_u32 s93, 0
        s_cbranch_scc1 {l}
{d}:
        """)
    def gsync(self, val, t):
        self.post(val, t)
        self.wait_words("s94", val, t)
    def ready(self, t):
        l = self.lab("Lr"); d = self.lab("Ld")
        self.A(f"""
        v_and_b32 v{t+1}, {NREP-1}, v0
        v_lshlrev_b32 v{t+1}, 2, v{t+1}
        s_mov_b32 s93, {SPIN}
{l}:
        global_load_dword v{t}, v{t+1}, s[{pDBG}:{pDBG+1}] {SC}
        s_waitcnt vmcnt(0)
        v_cmp_eq_u32 vcc, 0, v{t}
        s_nop 3
        s_cmp_eq_u64 vcc, 0
        s_cbranch_scc1 {d}
        s_sleep 2
        s_sub_u32 s93, s93, 1
        s_cmp_lg_u32 s93, 0
        s_cbranch_scc1 {l}
{d}:
        """)
    def signal(self, sidx, t):
        self.A(f"""
        s_lshl_b32 s92, {sidx}, 8
        s_add_u32 s92, s92, {CNT}
        v_lshlrev_b32 v{t}, 15, v0
        v_mov_b32 v{t+1}, 1
        s_mov_b64 exec, {(1 << NREP) - 1}
        buffer_atomic_add v{t+1}, v{t}, s[12:15], s92 offen {SC}
        s_mov_b64 exec, -1
        """)
    def poll(self, first, n, target, t, sl=None, fast=False):
        l = self.lab("Lp"); d = self.lab("Ld")
        self.A(f"""
        v_min_u32 v{t+1}, {n-1}, v0
        v_add_u32 v{t+1}, {first}, v{t+1}
        v_lshlrev_b32 v{t+1}, 8, v{t+1}
        s_mov_b32 s93, {SPIN}
        s_and_b32 s92, s2, {NREP-1}
        s_lshl_b32 s92, s92, 15
        s_add_u32 s92, s92, {CNT}
        s_mov_b64 exec, {(1 << n) - 1}
        {"" if not fast else f"buffer_load_dword v{t+2}, v{t+1}, s[12:15], s92 offen {SC}" + chr(10) + f"s_sleep {opt('FSL', 3)}"}
{l}:
        buffer_load_dword v{t}, v{t+1}, s[12:15], s92 offen {SC}
        s_waitcnt vmcnt({1 if fast else 0})
        v_cmp_le_u32 vcc, {target}, v{t+2 if fast else t}
        s_nop 3
        s_cmp_eq_u64 vcc, exec
        s_cbranch_scc1 {d}
        {"" if not fast else f"buffer_load_dword v{t+2}, v{t+1}, s[12:15], s92 offen {SC}" + chr(10) + "s_waitcnt vmcnt(1)" + chr(10) + f"v_cmp_le_u32 vcc, {target}, v{t}" + chr(10) + "s_nop 3" + chr(10) + "s_cmp_eq_u64 vcc, exec" + chr(10) + f"s_cbranch_scc1 {d}"}
        {"" if fast else f"s_sleep {sl or opt('PSLEEP', 2)}"}
        s_sub_u32 s93, s93, 1
        s_cmp_lg_u32 s93, 0
        s_cbranch_scc1 {l}
{d}:
        s_mov_b64 exec, -1
        """)

vT0, vT1, vT2, vT3, vTok, vHf = 1, 2, 3, 4, 5, 6
vXb, vWb, vX, vW, vEA, FR, ACC, PK = 8, 12, 14, 18, 20, 36, 68, 132
RING = 98304
def XF(b, i): return FR + 16*b + 4*i
def WF(b, j): return FR + 16*b + 8 + 4*j
def acc(i, j): return ACC + 16*(2*i + j)
def g_reads(b, s):
    return [f"ds_read_b128 {V(XF(b,0),4)}, v{vX+s}",
            f"ds_read_b64_tr_b16 {V(WF(b,0),2)}, v{vW} offset:{16384 + 4096*s}",
            f"ds_read_b64_tr_b16 {V(WF(b,0)+2,2)}, v{vW} offset:{16384 + 4096*s + 1024}",
            f"ds_read_b64_tr_b16 {V(WF(b,1),2)}, v{vW+1} offset:{16384 + 4096*s}",
            f"ds_read_b64_tr_b16 {V(WF(b,1)+2,2)}, v{vW+1} offset:{16384 + 4096*s + 1024}",
            f"ds_read_b128 {V(XF(b,1),4)}, v{vX+s} offset:4096"]
def g_mf(b, i, j, vtype):
    a, bb = (XF(b,i), WF(b,j)) if vtype else (WF(b,j), XF(b,i))
    return f"v_mfma_f32_32x32x16_bf16 {V(acc(i,j),16)}, {V(a,4)}, {V(bb,4)}, {V(acc(i,j),16)}"
def g_setaddr(A):
    for s in range(4): A(f"v_add_u32 v{vX+s}, s30, v{vXb+s}")
    for j in range(2): A(f"v_add_u32 v{vW+j}, s30, v{vWb+j}")
def g_loop(g, name, vtype):
    A = g.A
    A("s_mov_b32 s31, 9\ns_barrier")
    for r in g_reads(0, 0): A(r)

    A(f".p2align 6\n{name}:")
    for s in range(4):
        b = s & 1
        A("s_waitcnt lgkmcnt(0)")
        A(g_mf(b, 0, 0, vtype))
        if s < 3:
            rd = g_reads(b ^ 1, s+1)
            for r in rd[:3]: A(r)
            A(g_mf(b, 0, 1, vtype))
            for r in rd[3:]: A(r)
            A(g_mf(b, 1, 0, vtype)); A(g_mf(b, 1, 1, vtype))
        else:
            A(f"""
            s_add_u32 s30, s30, 32768
            s_cmp_eq_u32 s30, {RING}
            s_cselect_b32 s30, 0, s30
            s_sub_u32 s31, s31, 1
            s_cmp_eq_u32 s31, 0
            s_cbranch_scc1 {name}_nb
            s_barrier
{name}_nb:
            """)
            g_setaddr(A)
            A(g_mf(b, 0, 1, vtype))
            rd = g_reads(0, 0)
            for r in rd[:3]: A(r)
            A(g_mf(b, 1, 0, vtype))
            for r in rd[3:]: A(r)
            A(g_mf(b, 1, 1, vtype))
    A(f"s_cbranch_scc0 {name}")

def ld_chunk(g, skip=True):
    A = g.A; l = g.lab("Lk")
    if skip: A(f"s_cmp_lg_u32 s95, 0\ns_cbranch_scc1 {l}")
    A(f"""
    s_mov_b32 m0, s42
    s_add_u32 s26, s40, 8192
    buffer_load_dwordx4 v8, s[8:11], s40 offen lds
    s_add_u32 s27, s40, 16384
    buffer_load_dwordx4 v9, s[8:11], s26 offen offset:1024 lds
    s_add_u32 s26, s40, 24576
    buffer_load_dwordx4 v8, s[8:11], s27 offen offset:2048 lds
    s_add_u32 s28, s42, 16384
    buffer_load_dwordx4 v9, s[8:11], s26 offen offset:3072 lds
    s_mov_b32 m0, s28
    s_add_u32 s26, s41, {13824-1024}
    buffer_load_dwordx4 v10, s[44:47], s41 offen lds
    s_add_u32 s27, s41, {2*(13824-1024)}
    buffer_load_dwordx4 v10, s[44:47], s26 offen offset:1024 lds
    s_add_u32 s26, s41, {3*(13824-1024)}
    buffer_load_dwordx4 v10, s[44:47], s27 offen offset:2048 lds
    s_add_u32 s40, s40, 128
    buffer_load_dwordx4 v10, s[44:47], s26 offen offset:3072 lds
    s_add_u32 s41, s41, {64*3456}
    s_add_u32 s24, s24, 1
    s_cmp_eq_u32 s24, 9
    s_cselect_b32 s26, 1152, 0
    s_cselect_b32 s27, {WB}, 0
    s_sub_u32 s40, s40, s26
    s_sub_u32 s41, s41, s27
    s_add_u32 s42, s42, 32768
    s_cmp_ge_u32 s42, {RING}
    s_cselect_b32 s26, {RING}, 0
    s_sub_u32 s42, s42, s26
{l}:
    """)

def gen_gemm(g):
    A = g.A
    ROT = opt('ROT', 1)
    A(f"""
    s_and_b32 s17, s2, 7               ; xcd
    s_lshr_b32 s18, s2, 3              ; idx 0..27
    s_and_b32 s19, s17, 3
    s_lshl_b32 s19, s19, 2
    s_and_b32 s20, s18, 3
    s_add_u32 s19, s19, s20            ; mb
    s_lshr_b32 s21, s17, 2
    s_mul_i32 s21, s21, 7
    s_lshr_b32 s22, s18, 2
    s_add_u32 s21, s21, s22            ; ng
    s_cmp_lt_u32 s16, 4
    s_cbranch_scc1 Lg_compute
    s_and_b32 s23, s16, 3              ; u
    """)
    if ROT:
        A("""
        s_mul_i32 s24, s20, 5
        s_lshr_b32 s24, s24, 1
        s_add_u32 s24, s24, s22
        s_cmp_ge_u32 s24, 9
        s_cselect_b32 s25, 9, 0
        s_sub_u32 s24, s24, s25
        """)
    else: A("s_mov_b32 s24, 0")
    A(f"""
    s_lshl_b32 s25, s19, 7
    s_lshl_b32 s26, s23, 5
    s_add_u32 s25, s25, s26
    s_mul_i32 s25, s25, 1152
    s_lshl_b32 s26, s24, 7
    s_add_u32 s40, s25, s26            ; sX
    s_lshl_b32 s25, s24, 2
    s_add_u32 s25, s25, s23
    s_mul_i32 s25, s25, {16*3456}
    s_lshl_b32 s26, s21, 8
    s_add_u32 s41, s25, s26            ; sW
    s_lshl_b32 s42, s23, 12
    v_lshrrev_b32 v{vT0}, 3, v0
    v_mul_u32_u24 v{vT0}, 1152, v{vT0}
    v_lshrrev_b32 v{vT1}, 4, v0
    v_and_b32 v{vT2}, 7, v0
    v_xor_b32 v{vT2}, v{vT2}, v{vT1}
    v_lshl_add_u32 v8, v{vT2}, 4, v{vT0}
    v_xor_b32 v{vT2}, 4, v{vT2}
    v_lshl_add_u32 v9, v{vT2}, 4, v{vT0}       ; odd i
    v_mul_u32_u24 v{vT0}, 3456, v{vT1}
    v_and_b32 v{vT2}, 15, v0
    v_lshlrev_b32 v{vT1}, 2, v{vT1}
    v_xor_b32 v{vT2}, v{vT2}, v{vT1}
    v_lshl_add_u32 v10, v{vT2}, 4, v{vT0}      ; W addr
    s_mov_b32 s95, 0
    s_setprio {opt('LPRIO', 0)}
    s_waitcnt lgkmcnt(0)
    """)
    g.srd(8, pX, XB); g.srd(44, pW, WB)
    A(f"""
    s_mov_b32 s31, 0
Lld:
    s_cmp_lt_u32 s31, 2
    s_cbranch_scc1 Lld_go
    s_waitcnt vmcnt(8)
    s_barrier
Lld_go:
    """)
    ld_chunk(g, False)
    A(f"""
    s_add_u32 s31, s31, 1
    s_cmp_lt_u32 s31, 9
    s_cbranch_scc1 Lld
    s_waitcnt vmcnt(8)
    s_barrier
    """)
    g.srd(12, pWS, WS_END)
    A(f"""
    s_waitcnt vmcnt(0)
    s_barrier
    s_branch Lh_start
Lg_compute:
    s_and_b32 s23, s16, 1              ; wm
    s_lshr_b32 s24, s16, 1             ; wn
    v_and_b32 v{vTok}, 31, v0
    v_lshrrev_b32 v{vHf}, 5, v0
    s_lshl_b32 s25, s23, 13
    v_lshlrev_b32 v{vT0}, 7, v{vTok}
    v_add_u32 v{vT0}, s25, v{vT0}
    v_bfe_u32 v{vT1}, v0, 1, 3
    v_xor_b32 v{vT1}, v{vT1}, v{vHf}
    """)
    for s in range(4):
        A(f"v_xor_b32 v{vT2}, {2*s}, v{vT1}\nv_lshl_add_u32 v{vXb+s}, v{vT2}, 4, v{vT0}")
    A(f"""
    v_bfe_u32 v{vT0}, v0, 2, 2
    v_lshl_add_u32 v{vT1}, v{vHf}, 3, v{vT0}
    v_lshlrev_b32 v{vT1}, 8, v{vT1}
    v_bfe_u32 v{vT2}, v0, 4, 1
    v_lshl_add_u32 v{vT1}, v{vT2}, 5, v{vT1}
    v_and_b32 v{vT2}, 3, v0
    v_lshl_add_u32 v{vT1}, v{vT2}, 3, v{vT1}
    s_lshl_b32 s25, s24, 1
    v_xor_b32 v{vT2}, s25, v{vT0}
    v_lshl_add_u32 v{vWb}, v{vT2}, 6, v{vT1}
    v_xor_b32 v{vT2}, 1, v{vT2}
    v_lshl_add_u32 v{vWb+1}, v{vT2}, 6, v{vT1}
    s_mov_b32 s30, 0
    s_waitcnt lgkmcnt(0)
    """)
    g.srd(12, pWS, WS_END)
    gen_init_misc(g, PK+8)
    g_setaddr(A)
    for i in range(64): A(f"v_mov_b32 v{ACC+i}, 0")
    A(f"""
    s_lshl_b32 s26, s19, 2
    s_lshl_b32 s27, s23, 1
    s_add_u32 s26, s26, s27            ; T0
    s_waitcnt lgkmcnt(0)
    s_cmp_ge_u32 s21, 9
    s_cbranch_scc1 Lg_vtype
    s_lshl_b32 s27, s21, 5
    s_lshl_b32 s28, s24, 4
    s_add_u32 s27, s27, s28
    v_add_u32 v{vT0}, s27, v{vHf}      ; G0
    s_lshl_b32 s28, s26, 10
    s_lshl_b32 s29, s26, 8
    s_add_u32 s29, s29, {LEFT}
    v_lshlrev_b32 v{vTok}, 3, v{vTok}
    v_add_u32 v{PK}, s29, v{vTok}
    v_add_u32 v{PK+1}, s28, v{vTok}
    v_add_u32 v{PK+2}, {MB-1280}, v{PK+1}
    v_mov_b32 v{PK+3}, 256
    v_mov_b32 v{PK+4}, 1024
    s_mov_b32 s32, {PAIR}
    """)
    for jg in range(8):
        A(f"""
        v_add_u32 v{vT1}, {8*(jg>>2) + 2*(jg&3)}, v{vT0}
        v_mul_u32_u24 v{vT2}, 7282, v{vT1}
        v_lshrrev_b32 v{vT2}, 16, v{vT2}
        v_mul_u32_u24 v{vT3}, 9, v{vT2}
        v_sub_u32 v{vT1}, v{vT1}, v{vT3}
        v_cmp_lt_u32 vcc, 4, v{vT1}
        v_cmp_eq_u32 s[34:35], 4, v{vT1}
        v_mul_u32_u24 v{vT2}, s32, v{vT2}
        v_cndmask_b32 v{vT3}, v{PK+1}, v{PK+2}, vcc
        v_lshl_add_u32 v{vT3}, v{vT1}, 8, v{vT3}
        v_cndmask_b32 v{vT3}, v{vT3}, v{PK}, s[34:35]
        v_cndmask_b32 v{vT1}, v{PK+4}, v{PK+3}, s[34:35]
        v_add_u32 v{vEA+jg}, v{vT2}, v{vT3}
        v_add_u32 v{vEA+8+jg}, v{vEA+jg}, v{vT1}
        """)
    g.stamp(1)
    g_loop(g, "Lg_qk", False)
    g.stamp(2)
    A(f"""
    s_lshl_b32 s27, s21, 2
    s_lshl_b32 s28, s24, 1
    s_add_u32 s27, s27, s28
    s_cmp_lt_u32 s27, 18
    s_cselect_b32 s28, {CS_BITS}, 1.0
    s_mov_b32 s29, s28
    s_nop 6
    """)
    n = 0
    for i in range(2):
        for j in range(2):
            for q in range(4):
                a = acc(i, j) + 4*q
                p = PK + 2*(n % 8); n += 1
                for e in range(2): A(f"v_pk_mul_f32 {V(a+2*e,2)}, {V(a+2*e,2)}, s[28:29]")
                A(f"v_cvt_pk_bf16_f32 v{p}, v{a}, v{a+1}\nv_cvt_pk_bf16_f32 v{p+1}, v{a+2}, v{a+3}")
                A(f"buffer_store_dwordx2 {V(p,2)}, v{vEA+8*i+4*j+q}, s[12:15], 0 offen {SC}")
    A(f"""
    s_branch Lg_done
Lg_vtype:
    s_sub_u32 s27, s21, 9
    s_lshl_b32 s27, s27, 7
    s_lshl_b32 s28, s24, 6
    s_add_u32 s27, s27, s28
    s_mul_i32 s28, s26, 36864
    s_add_u32 s28, s28, {VG}
    v_mul_u32_u24 v{vT3}, 9216, v{vHf}
    v_add_u32 v{vT0}, s27, v{vTok}
    v_lshl_add_u32 v{vEA}, v{vT0}, 4, v{vT3}
    """)
    g.stamp(1)
    g_loop(g, "Lg_v", True)
    g.stamp(2)
    A(f"""
    s_cmp_ge_u32 s27, 576
    s_cbranch_scc1 Lg_done
    s_nop 7
    """)
    n = 0
    for i in range(2):
        for j in range(2):
            for m in range(2):
                a = acc(i, j) + 8*m
                p = PK + 4*(n % 4); n += 1
                for e in range(4): A(f"v_cvt_pk_bf16_f32 v{p+e}, v{a+2*e}, v{a+2*e+1}")
                A(f"s_add_u32 s29, s28, {i*36864+m*18432}")
                A(f"buffer_store_dwordx4 {V(p,4)}, v{vEA}, s[12:15], s29 offen offset:{512*j} {SC}")
    A(f"""
Lg_done:
    s_setprio 2
    """)
    g.stamp(15)
    A("s_cmp_lg_u32 s16, 0\ns_cbranch_scc1 Lg_d2")
    g.ready(8)
    A("Lg_d2:\ns_waitcnt vmcnt(0) lgkmcnt(0)")
    g.stamp(3)
    g.gsync(5, 8)
    A("s_cmp_lg_u32 s16, 0\ns_cbranch_scc1 Lattn")
    g.stamp(16)
    g.signal("s21", 8)
    if g.dbg: A("s_waitcnt vmcnt(0)")
    g.stamp(17)
    A("s_branch Lattn")

def gen_init_misc(g, t):
    A = g.A
    for i in range(2):
        A(f"""
        s_and_b32 s25, s16, 3
        s_lshl_b32 s25, s25, 7
        s_add_u32 s25, s25, {64*i-14 & 0xffffffff}
        v_add_u32 v{t+4}, s25, v0
        v_mul_u32_u24 v{t+5}, 1821, v{t+4}
        v_lshrrev_b32 v{t+5}, 16, v{t+5}
        v_mul_u32_u24 v{t+5}, 36, v{t+5}
        v_cmp_eq_u32 s[34:35], v{t+5}, v{t+4}
        v_cmp_gt_u32 vcc, {36*8}, v{t+4}
        v_mov_b32 v{t+5}, 0x3f803f80
        v_lshlrev_b32 v{t+4}, 4, v{t+4}
        s_and_b64 vcc, vcc, s[34:35]
        v_add_u32 v{t+4}, {CONST+224}, v{t+4}
        v_cndmask_b32 v{t}, 0, v{t+5}, vcc
        v_cndmask_b32 v{t+1}, 0, v{t+5}, vcc
        v_cndmask_b32 v{t+2}, 0, v{t+5}, vcc
        v_cndmask_b32 v{t+3}, 0, v{t+5}, vcc
        ds_write_b128 v{t+4}, {V(t,4)}
        """)

import k2, k3
from k2 import m16, m8, phase, maxtree
from k2 import vL8, vKM, vKL, vV, vL16, vV0, vVinc, Q1A, Q1B, Q2A, Q2B, NMA, NMB, SA, SB, PA, PB, OA, OB, KB, KL, VB
aT0, aT1, aT2, aT3 = 5, 6, 7, 8
TMP = 168
vCA, vCR, vOne, vKM0, vKL0, vG0, vG1, vG2 = range(176, 184)
bKG, bVG, b5G, bRD, bTR, bBW, bBR, bUO, bZP, bPG = range(184, 194)
CM = 216
FLAG = SY + 40
KL2 = 184

def head_params(A):
    A(f"""
    s_and_b32 s17, s2, 7
    s_lshl_b32 s17, s17, 2
    s_bfe_u32 s25, s2, 0x20003
    s_add_u32 s17, s17, s25            ; h
    s_lshr_b32 s18, s2, 5              ; qb
    s_and_b32 s20, s16, 3              ; qg / u
    s_and_b32 s21, s17, 1              ; parity
    s_lshr_b32 s26, s17, 1             ; pair
    v_lshlrev_b32 v{vL16}, 4, v0
    s_mul_i32 s39, s26, {PAIR}
    s_mul_i32 s28, s21, {LEFT}
    s_add_u32 s27, s39, s28
    s_add_u32 s27, s27, {KV}
    s_add_u32 s8, s{pWS}, s27
    s_addc_u32 s9, s{pWS+1}, 0
    s_mov_b32 s10, {WIN}
    s_mov_b32 s11, 0x20000
    s_lshl_b32 s22, s21, 14
    s_add_u32 s23, s22, 65536
    s_cmp_eq_u32 s21, 0
    s_cselect_b32 s24, {LEFT}, 0
    s_lshl_b32 s25, s20, 10
    s_add_u32 s40, s22, s25
    s_add_u32 s41, s23, s25
    s_add_u32 s42, s23, 8192
    s_and_b32 s44, s20, 1
    s_lshl_b32 s44, s44, 10
    s_add_u32 s44, s44, s24
    s_mul_i32 s43, s17, 288
    s_add_u32 s43, s43, {VG}
    s_add_u32 s46, s44, s27
    s_cmp_eq_u32 s20, 0
    s_cselect_b32 s42, s42, s44
    s_cselect_b32 s44, s43, s46
    s_cselect_b32 s45, 9, 2
    s_cselect_b32 s47, 288, 2
    s_cselect_b64 vcc, -1, 0
    s_lshl_b32 s45, s45, 10
    s_lshl_b32 s47, s47, 10
    s_lshl_b32 s25, s20, 6
    s_add_u32 s46, s25, 256
    """)
    for r, base in ((vG0, "s25"), (vG1, "s46"), (vG2, "512")):
        A(f"""
        v_add_u32 v{aT0}, {base}, v0
        v_mul_u32_u24 v{aT2}, 3641, v{aT0}
        v_lshrrev_b32 v{aT2}, 16, v{aT2}
        v_mul_u32_u24 v{aT3}, {9216-288}, v{aT2}
        v_lshl_add_u32 v{r}, v{aT0}, 4, v{aT3}
        """)
    A(f"v_cndmask_b32 v{vG2}, v{vL16}, v{vG2}, vcc")

def dma_skip(A, n):
    A(f"""
    s_add_u32 s40, s40, {(n*8192) & 0xffffffff}
    s_add_u32 s41, s41, {(n*9216) & 0xffffffff}
    s_add_u32 s43, s43, {(n*8*36864) & 0xffffffff}
    s_mul_i32 s25, s45, {n}
    s_add_u32 s42, s42, s25
    s_mul_i32 s25, s47, {n}
    s_add_u32 s44, s44, s25
    """)

def dma_iter(A):
    A(f"""
    s_mov_b32 m0, s40
    s_add_u32 s46, s40, 4096
    buffer_load_dwordx4 v{vL16}, s[8:11], s40 offen lds {SC}
    s_mov_b32 m0, s46
    s_add_u32 s40, s40, 8192
    buffer_load_dwordx4 v{vL16}, s[8:11], s46 offen lds {SC}
    s_mov_b32 m0, s41
    s_add_u32 s46, s41, 4096
    buffer_load_dwordx4 v{vG0}, s[12:15], s43 offen lds {SC}
    s_mov_b32 m0, s46
    s_add_u32 s41, s41, 9216
    buffer_load_dwordx4 v{vG1}, s[12:15], s43 offen lds {SC}
    s_mov_b32 m0, s42
    s_add_u32 s43, s43, {8*36864}
    buffer_load_dwordx4 v{vG2}, s[12:15], s44 offen lds {SC}
    s_add_u32 s42, s42, s45
    s_add_u32 s44, s44, s47
    """)
def dma_n(g, n):
    l = g.lab("Ldm")
    g.A(f"s_mov_b32 s31, {n}\n{l}:")
    dma_iter(g.A)
    g.A(f"s_sub_u32 s31, s31, 1\ns_cmp_lg_u32 s31, 0\ns_cbranch_scc1 {l}")

def avail_add(g, units):
    l = g.lab("Lav")
    g.A(f"""
    s_cmp_lg_u32 s16, 4
    s_cbranch_scc1 {l}
    v_mov_b32 v{TMP}, {units << 8}
    s_mov_b64 exec, 15
    ds_add_u32 v{bPG}, v{TMP}
    s_mov_b64 exec, -1
{l}:
    """)
def wait_progress(g, n, sl=4):
    l = g.lab("Lq"); d = g.lab("Ld")
    g.A(f"""
    s_mov_b32 s93, {SPIN}
{l}:
    ds_read_b32 v{TMP}, v{bPG}
    s_waitcnt lgkmcnt(0)
    v_and_b32 v{TMP}, 0xff, v{TMP}
    v_cmp_gt_u32 vcc, {n}, v{TMP}
    s_nop 3
    s_cmp_eq_u64 vcc, 0
    s_cbranch_scc1 {d}
    s_sleep {sl}
    s_sub_u32 s93, s93, 1
    s_cmp_lg_u32 s93, 0
    s_cbranch_scc1 {l}
{d}:
    """)

def gen_stage1(g):
    A = g.A
    KR, VR, CR, UU, OUT = 40, 60, 68, 84, 136
    T = TMP
    R = kconv.ConvRegs(16)
    A("s_waitcnt lgkmcnt(0)")
    g.srd(12, pWS, WS_END)
    A(f"""
    s_sub_u32 s17, s2, 224
    s_cmp_lt_u32 s16, 4
    s_cbranch_scc1 Lx_a
    s_mov_b32 s95, 1
    s_mov_b32 s18, 8
    s_lshl_b32 s19, s17, 1
    s_add_u32 s19, s19, 512
    s_bfe_u32 s25, s2, 0x10003
    s_lshl_b32 s25, s25, 14
    s_add_u32 s96, s25, 40960
    s_add_u32 s97, s25, {65536+46080}
    s_add_u32 s99, s97, 9344
    s_add_u32 s3, s3, 32
    s_add_u32 s94, s94, 32
    s_branch Lb_setup
Lx_a:
    s_cmp_ge_u32 s17, {NREP}
    s_cbranch_scc1 Lx_1
    s_cmp_lg_u32 s16, 0
    s_cbranch_scc1 Lx_1
    v_lshlrev_b32 v11, 8, v0
    v_mov_b32 v12, 0
    s_lshl_b32 s25, s17, 15
    s_add_u32 s25, s25, {CNT}
    buffer_store_dword v12, v11, s[12:15], s25 offen {SC}
    s_add_u32 s25, s25, 16384
    s_mov_b64 exec, 0xfffff
    buffer_store_dword v12, v11, s[12:15], s25 offen {SC}
    s_mov_b64 exec, -1
Lx_1:
    s_getpc_b64 s[26:27]
Lpc0:
    s_add_u32 s26, s26, Lcode_begin-Lpc0
    s_addc_u32 s27, s27, -1
    s_lshl_b32 s25, s16, 13
    v_lshlrev_b32 v13, 7, v0
    v_add_u32 v13, s25, v13
    v_min_u32 v13, Lcode_end-Lcode_begin-4, v13
    v_mov_b32 v15, s27
    v_add_co_u32 v14, vcc, s26, v13
    s_nop 1
    v_addc_co_u32 v15, vcc, 0, v15, vcc
    global_load_dword v210, v[14:15], off
    """)
    gen_init_misc(g, 144)
    A(f"""
    s_cmp_ge_u32 s17, {NREP}
    s_cbranch_scc1 Lx_2
    s_cmp_lg_u32 s16, 0
    s_cbranch_scc1 Lx_2
    s_lshl_b32 s27, s17, 2
    v_mov_b32 v11, s27
    v_mov_b32 v12, 1
    s_mov_b64 exec, 1
    s_waitcnt vmcnt(1)
    global_store_dword v11, v12, s[{pDBG}:{pDBG+1}] {SC}
    s_mov_b64 exec, -1
Lx_2:
    s_mov_b32 s95, 1
    s_lshr_b32 s17, s2, 3
    s_and_b32 s18, s2, 7
    s_lshl_b32 s19, s2, 1
    s_mov_b32 s96, 0
    s_mov_b32 s97, 0
    s_mov_b32 s99, 0
    s_branch Lb_setup
Lh_restart:
    s_sub_u32 s3, s3, 32
    s_sub_u32 s94, s94, 32
Lh_start:
    s_mov_b32 s95, 0
    s_lshr_b32 s17, s2, 3              ; tb
    s_and_b32 s18, s2, 7               ; cb
    s_lshl_b32 s19, s2, 1
    s_bfe_u32 s25, s2, 0x10003
    s_lshl_b32 s96, s25, 14
    s_add_u32 s97, s96, 65536          ; V blocks 0..2
    s_add_u32 s99, s96, {65536+6*9216}
Lb_setup:
    s_and_b32 s23, s16, 3              ; u
    v_and_b32 v{vT0}, 7, v0            ; cc
    v_lshrrev_b32 v{vT1}, 3, v0        ; tg
    s_lshl_b32 s21, s18, 9
    v_lshlrev_b32 v{vT3}, 6, v{vT0}
    """)
    g.srd(4, pSH, 576*8)
    for i in range(4): A(f"buffer_load_dwordx4 {V(CR+4*i,4)}, v{vT3}, s[4:7], s21 offen offset:{16*i}")
    A(f"""
    s_mul_i32 s20, s17, {64*1152}
    s_lshl_b32 s21, s18, 7
    s_add_u32 s20, s20, s21
    v_mul_u32_u24 v{vT2}, 1152, v{vT1}
    v_lshl_add_u32 v{vT2}, v{vT0}, 4, v{vT2}
    v_add_u32 v{vT2}, s20, v{vT2}
    v_add_u32 v{b5G}, {61*1152}, v{vT2}
    s_mul_i32 s20, s23, {8*1152}
    v_add_u32 v{bVG}, s20, v{vT2}
    v_subrev_u32 v{bKG}, {3*1152}, v{bVG}
    v_lshlrev_b32 v{vL16}, 4, v0
    s_add_u32 s28, s97, 9344
    s_lshr_b32 s25, s23, 1
    s_add_u32 s98, s19, s25            ; channel
    s_cmp_eq_u32 s25, 0
    s_cselect_b32 s96, s96, s28
    s_mul_i32 s25, s25, 4672
    s_add_u32 s97, s97, s25
    s_add_u32 s97, s97, 576
    s_lshl_b32 s25, s19, 1
    s_load_dword s100, s[{pD}:{pD+1}], s25
    s_cmp_eq_u32 s95, 1
    s_cbranch_scc1 Lb_load
Lb_setup2:
    v_lshlrev_b32 v{bRD}, 8, v{vT1}
    v_lshl_add_u32 v{bRD}, v{vT0}, 4, v{bRD}
    s_lshl_b32 s25, s23, 11
    s_add_u32 s25, s25, s99
    v_add_u32 v{bRD}, s25, v{bRD}
    v_lshrrev_b32 v{vT2}, 4, v0
    v_and_b32 v{vT3}, 15, v0
    v_lshlrev_b32 v{vT3}, 7, v{vT3}
    v_lshl_add_u32 v{bBW}, v{vT2}, 4, v{vT3}
    v_add_u32 v{bBW}, s25, v{bBW}
    v_add_u32 v{bBR}, s25, v{vL16}
    v_bfe_u32 v{vT3}, v0, 2, 2
    v_lshl_add_u32 v{bTR}, v{vT2}, 3, v{vT3}
    v_lshlrev_b32 v{bTR}, 7, v{bTR}
    v_and_b32 v{vT3}, 3, v0
    v_lshl_add_u32 v{bTR}, v{vT3}, 3, v{bTR}
    v_lshlrev_b32 v{bPG}, 8, v{vT3}
    v_add_u32 v{bPG}, {UC}, v{bPG}
    s_lshl_b32 s25, s23, 5
    s_add_u32 s25, s25, s99
    v_add_u32 v{bTR}, s25, v{bTR}
    v_lshlrev_b32 v{bUO}, 12, v{vT1}
    v_lshl_add_u32 v{bUO}, v{vT0}, 4, v{bUO}
    s_lshl_b32 s22, s18, 2
    s_add_u32 s22, s22, s23
    s_lshl_b32 s22, s22, 16
    s_lshl_b32 s25, s17, 7
    s_add_u32 s22, s22, s25
    s_add_u32 s22, s22, {UT}
    v_add_u32 v{bUO}, s22, v{bUO}
    v_min_u32 v{bZP}, 35, v0
    v_lshlrev_b32 v{bZP}, 4, v{bZP}
    s_sub_u32 s25, s97, 576
    v_add_u32 v{bZP}, s25, v{bZP}
    s_waitcnt lgkmcnt(0)
    """)
    conv_setup(A, R)
    A("s_mov_b32 s29, 0xffff0000\ns_mov_b32 s28, 0xffff\ns_waitcnt vmcnt(0)")
    for c in range(8):
        for j in range(4):
            d, e, src = CM + 8*(c >> 1) + 2*j + (c & 1), c & 1, CR + 2*c + (j >> 1)
            if (j & 1) == e: A(f"v_and_b32 v{d}, {'s29' if e else 's28'}, v{src}")
            elif e: A(f"v_lshlrev_b32 v{d}, 16, v{src}")
            else: A(f"v_lshrrev_b32 v{d}, 16, v{src}")
    A(f"""
    s_cmp_eq_u32 s95, 0
    s_cbranch_scc1 Lh_kv
    s_barrier
    s_branch Lb_s0
Lh_kv:
    """)
    EARLY = opt('S1EARLY', 0)
    def kv_first():
        g.wait_words(SY, 9, T, sl=2)
        A(f"s_setprio {opt('CPRIO', 1)}")
        A("s_cmp_ge_u32 s2, 224\ns_cbranch_scc1 Lh_kx")
        dma_n(g, 5)
        A("s_waitcnt vmcnt(15)")
        g.gsync(1 + 10*(EARLY > 0), T)
        avail_add(g, 4)
        A("s_branch Lh_ky\nLh_kx:")
        dma_skip(A, 2)
        dma_n(g, 3)
        g.srd(4, pH, XB)
        A("s_waitcnt vmcnt(0)")
        g.gsync(2, T)
        A("s_cmp_lg_u32 s16, 4\ns_cbranch_scc1 Lc_k")
        g.wait_words(SY, 10, T, sl=4)
        avail_add(g, 6)
        A("s_branch Lc_k\nLh_ky:")
    head_params(A)
    dma_skip(A, 1)
    if not EARLY: kv_first()
    elif EARLY == 2:
        A("s_cmp_ge_u32 s2, 224\ns_cbranch_scc1 Lb_load")
        g.wait_words(SY, 5, T, sl=2)
    A(f"""
Lb_load:
    s_and_b32 s28, s16, 3
    s_lshl_b32 s25, s28, 10
    s_add_u32 s25, s25, s99
    """)
    g.srd(4, pK, XB)
    A(f"""
    s_mov_b32 m0, s25
    s_add_u32 s27, s25, 4096
    buffer_load_dwordx4 v{bKG}, s[4:7], 0 offen {NTB} lds
    s_mov_b32 m0, s27
    v_add_u32 v{bKG}, {32*1152}, v{bKG}
    s_add_u32 s27, s99, 8192
    buffer_load_dwordx4 v{bKG}, s[4:7], 0 offen {NTB} lds
    s_mov_b32 m0, s27
    s_add_u32 s27, s25, 9216
    buffer_load_dwordx4 v{b5G}, s[4:7], 0 offen lds
    s_mov_b32 s4, s{pV}
    s_mov_b32 s5, s{pV+1}
    s_mov_b32 m0, s27
    s_add_u32 s27, s27, 4096
    buffer_load_dwordx4 v{bVG}, s[4:7], 0 offen {NTB} lds
    s_mov_b32 m0, s27
    s_mov_b32 s27, {32*1152}
    buffer_load_dwordx4 v{bVG}, s[4:7], s27 offen {NTB} lds
    s_mov_b32 s4, s{pH}
    s_mov_b32 s5, s{pH+1}
    s_and_b32 s25, s28, 1
    s_lshl_b32 s25, s25, 11
    s_lshl_b32 s27, s98, 12
    s_add_u32 s27, s27, s25
    v_lshlrev_b32 v{T}, 3, v{vL16}
    s_mov_b64 exec, 0xffff
    buffer_load_dword v209, v{T}, s[4:7], s27 offen
    s_mov_b64 exec, -1
    s_cmp_eq_u32 s95, 1
    s_cbranch_scc1 Lb_setup2
    """)
    def kv_second(val):
        g.post(val, T)
        A("s_cmp_lg_u32 s16, 4\ns_cbranch_scc1 Lb_a6")
        g.wait_words("s94", val, T)
        avail_add(g, 6)
        A("Lb_a6:")
    if not EARLY:
        A("s_waitcnt vmcnt(6)")
        kv_second(2)
    A("s_waitcnt vmcnt(1)\nLb_s0:")
    g.gsync(3, T)
    g.stamp(1)
    for n in range(5): A(f"ds_read_b128 {V(KR+4*n,4)}, v{bRD} offset:{128*n}")
    for t in range(2): A(f"ds_read_b128 {V(VR+4*t,4)}, v{bRD} offset:{9216+128*t}")
    A("s_mov_b32 s29, 0xffff0000\ns_waitcnt lgkmcnt(2)")
    for j in range(4):
        for d in range(4):
            for t in range(2):
                for e in range(2):
                    u = UU + 4*d + 2*t + e
                    if j == 0: A(f"v_dot2_f32_bf16 v{u}, v{KR+4*(t+3)+d}, v{CM+8*d+e}, 0")
                    else: A(f"v_dot2c_f32_bf16 v{u}, v{KR+4*(t+3-j)+d}, v{CM+8*d+2*j+e}")
    A("s_waitcnt lgkmcnt(0)")
    for d in range(4):
        for t in range(2):
            x = UU + 16 + 4*d + 2*t
            A(f"v_lshlrev_b32 v{x}, 16, v{VR+4*t+d}\nv_and_b32 v{x+1}, s29, v{VR+4*t+d}")
    for i in range(8): A(f"v_pk_mul_f32 {V(UU+2*i,2)}, {V(UU+2*i,2)}, {V(UU+16+2*i,2)}")
    for d in range(4):
        for t in range(2): A(f"v_cvt_pk_bf16_f32 v{OUT+4*t+d}, v{UU+4*d+2*t}, v{UU+4*d+2*t+1}")
    A(f"""
    ds_write_b128 v{bRD}, {V(OUT,4)} offset:9216
    ds_write_b128 v{bRD}, {V(OUT+4,4)} offset:{9216+128}
    s_waitcnt lgkmcnt(0)
    """)
    g.gsync(4, T)
    for i in range(2):
        A(f"ds_read_b64_tr_b16 {V(OUT+4*i,2)}, v{bTR} offset:{9216+4096*i}")
        A(f"ds_read_b64_tr_b16 {V(OUT+4*i+2,2)}, v{bTR} offset:{9216+4096*i+512}")
    A(f"""
    s_mov_b32 s27, 32768
    s_waitcnt lgkmcnt(0)
    ds_write_b128 v{bBW}, {V(OUT,4)}
    ds_write_b128 v{bBW}, {V(OUT+4,4)} offset:64
    ds_read_b128 {V(OUT+8,4)}, v{bBR}
    ds_read_b128 {V(OUT+12,4)}, v{bBR} offset:1024
    s_waitcnt lgkmcnt(0)
    buffer_store_dwordx4 {V(OUT+8,4)}, v{bUO}, s[12:15], 0 offen {SC}
    buffer_store_dwordx4 {V(OUT+12,4)}, v{bUO}, s[12:15], s27 offen {SC}
    """)
    g.stamp(2)
    A("s_and_b32 s25, s16, 3\ns_cmp_lg_u32 s25, 0\ns_cbranch_scc1 Lb_nr" + ("" if EARLY else "\ns_cmp_eq_u32 s95, 0\ns_cbranch_scc1 Lb_nr"))
    g.ready(T)
    A("Lb_nr:\ns_waitcnt vmcnt(0)")
    g.stamp(3)
    g.gsync(5, T)
    A("s_cmp_lt_u32 s16, 4\ns_cbranch_scc1 Lc_m\ns_cmp_eq_u32 s95, 1\ns_cbranch_scc1 Lc_x\nLc_m:")
    A("s_and_b32 s25, s16, 3\ns_cmp_lg_u32 s25, 0\ns_cbranch_scc1 Lc_k0\ns_and_b32 s25, s2, 15\ns_add_u32 s25, s25, 64")
    g.signal("s25", T)
    A("s_cmp_lg_u32 s16, 0\ns_cbranch_scc1 Lc_k0")
    g.wait_words(SY+36, 1, T, n=1, sl=8)
    A("Lc_k0:\ns_cmp_lt_u32 s16, 4\ns_cbranch_scc1 Lattn\nLc_k:")
    if EARLY:
        kv_first()
        dma_n(g, 2)
        A("s_waitcnt vmcnt(10)")
        kv_second(12)
    else: dma_n(g, 2)
    A("s_waitcnt vmcnt(0)")
    g.post(6 + 10*(EARLY > 0), T)
    A(f"""
    s_lshr_b32 s25, s2, 3
    s_lshl_b32 s25, s25, 2
    s_add_u32 s25, s25, s20            ; 0..127
    s_mul_i32 s27, s25, {41*128}
    v_lshlrev_b32 v{T}, 7, v0
    v_add_u32 v{T+1}, s27, v{T}
    v_min_u32 v{T+1}, {WOB-4}, v{T+1}
    s_mov_b32 exec_hi, 0x1ff
    global_load_dword v210, v{T+1}, s[{pWO}:{pWO+1}]
    s_and_b32 s27, s2, 7
    s_mul_i32 s27, s27, {256*1152}
    s_mul_i32 s25, s25, {18*128}
    s_add_u32 s27, s27, s25
    v_add_u32 v{T+1}, s27, v{T}
    s_mov_b64 exec, 0x3ffff
    global_load_dword v211, v{T+1}, s[{pQ}:{pQ+1}]
    s_mov_b64 exec, -1
    """)
    A("s_cmp_lg_u32 s16, 4\ns_cbranch_scc1 Lc_w")
    g.wait_words("s94", 6 + 10*(EARLY > 0), T)
    avail_add(g, 4)
    wait_progress(g, 7, 8)
    g.poll(64, 16, 16, T, sl=opt('USLEEP', 4))
    A("s_branch Lc_pd\nLc_x:\ns_cmp_lg_u32 s16, 4\ns_cbranch_scc1 Lc_w\ns_and_b32 s25, s2, 3\ns_add_u32 s25, s25, 80")
    g.signal("s25", T)
    g.poll(80, 4, 8, T, sl=2)
    A(f"""
Lc_pd:
    s_sub_u32 s25, 2, s95
    v_mov_b32 v{T}, {SY+36}
    v_mov_b32 v{T+1}, s25
    ds_write_b32 v{T}, v{T+1}
Lc_w:
    s_sub_u32 s91, 2, s95
    """)
    g.wait_words(SY+36, "s91", T, n=1, sl=opt('WSL', 8))
    g.stamp(4)
    A(f"""
    s_and_b32 s28, s16, 1
    s_lshl_b32 s25, s28, 11
    s_add_u32 s27, s97, s25
    s_mov_b32 m0, s27
    s_lshl_b32 s27, s98, 12
    s_add_u32 s27, s27, s25
    buffer_load_dwordx4 v{vL16}, s[4:7], s27 offen lds
    buffer_load_dwordx4 v{vL16}, s[4:7], s27 offen offset:1024 lds
    ds_write_b128 v{bZP}, {V(R.acc,4)}
    s_mul_i32 s25, s28, {2*4160}
    s_add_u32 s25, s25, s96
    s_add_u32 s25, s25, 64
    s_lshl_b32 s27, s28, 2
    s_sub_u32 s27, s101, s27
    s_sub_u32 s27, s27, {YT-UT}
    """)
    for c in range(2):
        A("s_mov_b32 m0, s25\ns_nop 0")
        for i in range(4): A(f"buffer_load_dwordx4 v{vL16}, s[12:15], s27 offen offset:{1024*i} lds {SC}")
        if c == 0: A("s_add_u32 s25, s25, 4160\ns_sub_u32 s27, s27, 2")
    A("s_waitcnt vmcnt(0) lgkmcnt(0)")
    g.gsync(17, T)
    A(f"s_setprio {opt('VPRIO', 0)}")
    g.stamp(5)
    A("s_cmp_eq_u32 s28, 0\ns_cbranch_scc0 Lc_set1")
    kconv.conv_main(A, R, "Lc_l0", 0)
    A("s_setprio 1")
    conv_epi(A, R, 0, "s96", "s100", "s101", "s[12:15]", SC)
    A("s_branch Lc_done\nLc_set1:")
    kconv.conv_main(A, R, "Lc_l1", 1)
    A("s_setprio 1")
    conv_epi(A, R, 1, "s96", "s100", "s101", "s[12:15]", SC)
    A("Lc_done:\ns_waitcnt vmcnt(0)")
    g.stamp(6)
    g.gsync(18, T)
    A("s_and_b32 s25, s16, 3\ns_cmp_lg_u32 s25, 0\ns_cbranch_scc1 Lc_e\ns_and_b32 s25, s2, 15\ns_add_u32 s25, s25, 16")
    g.signal("s25", T)
    A("Lc_e:\ns_cmp_eq_u32 s95, 0\ns_cbranch_scc1 Lh_p3\ns_branch Lh_restart")

def conv_epi(A, R, st, s_slot, s_D, s_out, srd, flags=""):
    S_ = kconv.SETS[st]
    A(f"v_add_u32 v{R.t0}, {s_slot}, v{R.aU}")
    for ti, tau in enumerate(S_): A(f"ds_read_b64 {V(R.A[0]+2*ti,2)}, v{R.t0} offset:{64+512*tau}")
    A("s_waitcnt lgkmcnt(0)")
    for ti in range(4):
        for e in range(4): A(f"v_dot2c_f32_bf16 v{R.acc+4*ti+e}, v{R.A[0]+2*ti+(e >> 1)}, v{194+(e & 1)}")
    A("s_nop 1")
    for ti, tau in enumerate(S_):
        t = R.B[0]+2*ti; ac = R.acc+4*ti
        A(f"""
        v_cvt_pk_bf16_f32 v{t}, v{ac}, v{ac+1}
        v_cvt_pk_bf16_f32 v{t+1}, v{ac+2}, v{ac+3}
        buffer_store_dwordx2 {V(t,2)}, v{R.aU}, {srd}, {s_out} offen offset:{512*tau} {flags}
        """)

def conv_setup(A, R):
    A(f"""
    v_bfe_u32 v{R.t0}, v0, 2, 2
    v_mul_u32_u24 v{R.aA}, 4160, v{R.t0}
    v_and_b32 v{R.t0}, 3, v0
    v_lshl_add_u32 v{R.aA}, v{R.t0}, 3, v{R.aA}
    v_lshrrev_b32 v{R.t0}, 4, v0
    v_lshlrev_b32 v{R.aB}, 4, v{R.t0}
    v_sub_u32 v{R.aA}, v{R.aA}, v{R.aB}
    s_add_u32 s25, s96, {64+32-8}
    v_add_u32 v{R.aA}, s25, v{R.aA}
    v_and_b32 v{R.aU}, 15, v0
    v_lshlrev_b32 v{R.aU}, 5, v{R.aU}
    v_add_u32 v{R.aB}, v{R.aB}, v{R.aU}
    s_sub_u32 s25, s97, 96
    v_add_u32 v{R.aB}, s25, v{R.aB}
    v_lshl_add_u32 v{R.aU}, v{R.t0}, 3, v{R.aU}
    v_and_b32 v{R.mask}, 15, v0
    v_lshlrev_b32 v{R.t0}, 3, v{R.t0}
    v_sub_u32 v{R.t0}, v{R.mask}, v{R.t0}
    v_add_u32 v{R.t0}, 17, v{R.t0}
    v_mov_b32 v{R.acc}, 0xffff
    v_mov_b32 v{R.acc+1}, 0xffff0000
    """)
    for d in range(4):
        A(f"""
        v_cmp_lt_i32 vcc, {2*d}, v{R.t0}
        v_cmp_lt_i32 s[26:27], {2*d+1}, v{R.t0}
        s_nop 0
        v_cndmask_b32 v{R.mask+d}, 0, v{R.acc}, vcc
        v_cndmask_b32 v{R.acc+2}, 0, v{R.acc+1}, s[26:27]
        v_or_b32 v{R.mask+d}, v{R.mask+d}, v{R.acc+2}
        """)
    for i in range(16): A(f"v_mov_b32 v{R.acc+i}, 0")
    A(f"""
    s_lshl_b32 s101, s98, 12
    s_add_u32 s101, s101, {YT}
    s_lshl_b32 s25, s100, 16
    s_and_b32 s27, s100, 0xffff0000
    s_bitcmp0_b32 s98, 0
    s_cselect_b32 s100, s25, s27
    s_lshr_b32 s25, s100, 16
    v_mov_b32 v194, s25
    v_mov_b32 v195, s100
    """)

def zero_acc(A):
    for i in range(16): A(f"v_mov_b32 v{OA+i}, 0")
    for i in range(16): A(f"v_mov_b32 v{OB+i}, 0")
    for i in range(8): A(f"v_mov_b32 v{PB+i}, 0")
    for i in range(8): A(f"v_mov_b32 v{VB[1]+i}, 0")

def gen_attn(g):
    A = g.A
    A("Lattn:\ns_setprio 2")
    head_params(A)
    A(f"""
    v_lshlrev_b32 v{vL8}, 3, v0
    s_lshl_b32 s31, s18, 3
    s_lshl_b32 s32, s20, 1
    s_add_u32 s32, s31, s32
    s_mul_i32 s34, s21, {MB}
    s_add_u32 s34, s34, s39
    s_lshl_b32 s35, s32, 10
    s_add_u32 s35, s35, s34
    s_add_u32 s34, s39, {LEFT}
    s_lshl_b32 s37, s32, 8
    s_add_u32 s37, s37, s34
    v_and_b32 v{aT1}, 31, v0
    v_lshrrev_b32 v{aT0}, 5, v0
    v_mul_u32_u24 v{aT3}, 288, v{aT0}
    v_lshl_add_u32 v{aT2}, v{aT1}, 4, v{aT3}
    v_add_u32 v{vV0}, s23, v{aT2}
    v_mov_b32 v{vVinc}, {4*VT}
    v_mov_b32 v{aT2}, {CONST+240}
    v_mov_b32 v{aT3}, {CONST+224}
    v_cmp_eq_u32 vcc, 18, v{aT1}
    v_subrev_u32 v{aT0}, 20, v{aT1}
    v_cmp_gt_u32 s[52:53], 8, v{aT0}
    v_cndmask_b32 v{aT2}, v{aT2}, v{aT3}, vcc
    v_mov_b32 v{aT3}, {CONST+176}
    v_cmp_lt_u32 vcc, 17, v{aT1}
    v_cndmask_b32 v{aT2}, v{aT2}, v{aT3}, s[52:53]
    s_mov_b32 s50, 0
    v_cndmask_b32 v{vV0}, v{vV0}, v{aT2}, vcc
    v_cndmask_b32 v{vVinc}, v{vVinc}, 0, vcc
    v_cmp_gt_u32 vcc, 32, v0
    s_cmp_eq_u32 s21, 0
    s_cselect_b64 s[52:53], -1, 0
    s_cselect_b64 s[54:55], 0, -1
    s_and_b64 s[56:57], s[52:53], vcc
    s_and_b64 s[58:59], s[54:55], vcc
    s_andn2_b64 s[60:61], s[52:53], vcc
    s_andn2_b64 s[62:63], s[54:55], vcc
    v_lshlrev_b32 v{aT2}, 3, v{aT1}
    v_add_u32 v{vKM0}, s22, v{vL8}
    v_add_u32 v{vKL0}, s24, v{vL8}
    s_lshl_b32 s25, s20, 8
    s_add_u32 s25, s25, {UC}
    v_lshlrev_b32 v{vCA}, 2, v0
    v_add_u32 v{vCA}, s25, v{vCA}
    v_mov_b32 v{vOne}, 2
    s_mul_i32 s25, s32, {36*1024}
    s_add_u32 s25, s25, {OF}
    s_lshl_b32 s48, s17, 10
    s_add_u32 s48, s48, s25
    s_lshl_b32 s49, s17, 7
    s_add_u32 s49, s49, s25
    s_add_u32 s49, s49, 32768
    """)
    zero_acc(A)
    A("s_cmp_lg_u32 s16, 0\ns_cbranch_scc1 La_w")
    g.poll(0, 14, 16, 204, fast=opt('FASTP', 0))
    A(f"""
    v_mov_b32 v{TMP}, {SY+32}
    v_mov_b32 v{TMP+1}, 1
    ds_write_b32 v{TMP}, v{TMP+1}
La_w:
    """)
    g.wait_words(SY+32, 1, TMP, n=1)
    g.stamp(7)
    dma_iter(A)
    A(f"""
    buffer_load_dwordx2 {V(Q1A,2)}, v{vL8}, s[12:15], s35 offen {SC}
    buffer_load_dwordx2 {V(Q1A+2,2)}, v{vL8}, s[12:15], s35 offen offset:512 {SC}
    buffer_load_dwordx2 {V(Q1B,2)}, v{vL8}, s[12:15], s35 offen offset:1024 {SC}
    buffer_load_dwordx2 {V(Q1B+2,2)}, v{vL8}, s[12:15], s35 offen offset:1536 {SC}
    buffer_load_dwordx2 {V(Q2A,2)}, v{aT2}, s[12:15], s37 offen {SC}
    buffer_load_dwordx2 {V(Q2B,2)}, v{aT2}, s[12:15], s37 offen offset:256 {SC}
    s_cmp_lt_u32 s2, 224
    s_cbranch_scc1 La_n12
    """)
    dma_n(g, 2)
    A(f"""
    s_mov_b32 s30, 1
    s_waitcnt vmcnt(10)
    s_branch La_n13
La_n12:
    s_mov_b32 s30, 0
    s_waitcnt vmcnt(0)
La_n13:
    """)
    g.post(9, TMP)
    for Q in (Q2A, Q2B):
        A(f"""
        v_cndmask_b32 v{Q+2}, 0, v{Q}, s[60:61]
        v_cndmask_b32 v{Q+3}, 0, v{Q+1}, s[62:63]
        v_cndmask_b32 v{Q}, 0, v{Q}, s[56:57]
        v_cndmask_b32 v{Q+1}, 0, v{Q+1}, s[58:59]
        """)
    g.wait_words(SY, 9, TMP)
    g.stamp(8)
    A(f"""
    ds_read2st64_b64 {V(KB[0],4)}, v{vKM0} offset0:0 offset1:1
    ds_read2st64_b64 {V(KL,4)}, v{vKL0} offset0:0 offset1:1
    s_waitcnt lgkmcnt(0)
    {m16(SA, KB[0], Q1A, 0)}
    {m16(SB, KB[0], Q1B, 0)}
    {m8(SA, KL, Q2A)}
    {m8(SB, KL, Q2B)}
    s_nop 10
    """)
    maxtree(A, aT0, SA)
    maxtree(A, aT1, SB)
    A(f"""
La_setm:
    v_mov_b32 v{aT2}, v{aT0}
    v_mov_b32 v{aT3}, v{aT1}
    v_mov_b32 v{vKM}, v{vKM0}
    v_mov_b32 v{vKL}, v{vKL0}
    v_permlane32_swap_b32 v{aT0}, v{aT2}
    v_permlane32_swap_b32 v{aT1}, v{aT3}
    v_mov_b32 v{vV}, v{vV0}
    ds_read_b128 {V(VB[0],4)}, v{vV0}
    ds_read_b128 {V(VB[0]+4,4)}, v{vV0} offset:576
    v_max_f32 v{aT0}, v{aT0}, v{aT2}
    v_max_f32 v{aT1}, v{aT1}, v{aT3}
    """)
    for i in range(16): A(f"v_sub_f32 v{NMA+i}, 0, v{aT0}")
    A(f"""
    v_sub_f32 v{NMB}, 0, v{aT1}
    s_mov_b32 s51, 0
    {m16(SA, KB[0], Q1A, V(NMA,16))}
    {m8(SA, KL, Q2A)}
    """)
    for i in range(1, 16): A(f"v_sub_f32 v{NMB+i}, 0, v{aT1}")
    A("s_setprio 0")
    g.stamp(9)
    if g.dbg and 'its' in EXP: A("s_mov_b32 s55, 0\nv_mov_b32 v214, 0\nv_writelane_b32 v214, s88, 0\nv_writelane_b32 v214, s90, 32")
    A(".p2align 6\nLa_loop:")
    KLB = [KL, KL2]
    for J in range(8):
        j = J & 3; hb = J >> 2
        b = j & 1; nb = b ^ 1
        koff = 2*(J+1)
        ex = [[f"ds_read2st64_b64 {V(KB[nb],4)}, v{vKM} offset0:{koff} offset1:{koff+1}"], [], [], ["s_waitcnt lgkmcnt(0)"]]
        if J == 0: ex[2] = ["s_min_u32 s53, s51, 12"]
        if J == 1: ex[0].append(f"ds_add_rtn_u32 v{vCR}, v{vCA}, v{vOne}")
        if J == 2: ex[2] = ["s_lshr_b32 s52, s52, 8"]
        if j == 3:
            ex[0].append(f"ds_read2st64_b64 {V(KLB[hb ^ 1],4)}, v{vKL} offset0:{2*hb+2} offset1:{2*hb+3}")
            ex[1] = [f"v_add_u32 v{vV}, v{vVinc}, v{vV}"]
        if J == 7: ex[2] = ["s_cmp_lt_u32 s51, 16"]
        klp = KLB[hb] + 2*(j >> 1)
        phase(A, SA, PA, [m16(SB, KB[b], Q1B, V(NMB,16)), m8(SB, klp, Q2B + 2*(j & 1)),
                          m16(OB, VB[nb], PB, V(OB,16)), m16(OB, VB[nb]+4, PB+4, V(OB,16))], ex)
        jn = (j+1) & 3; hn = ((J+1) & 7) >> 2
        klp = KLB[hn] + 2*(jn >> 1)
        ex = [[], [], [f"ds_read_b128 {V(VB[nb],4)}, v{vV} offset:{jn*VT}"], [f"ds_read_b128 {V(VB[nb]+4,4)}, v{vV} offset:{jn*VT+576}"]]
        if J == 0: ex[0] = ["s_add_u32 s51, s51, 2"]
        if J == 1: ex[1] = [f"v_readfirstlane_b32 s52, v{vCR}"]
        if J == 6:
            ex[0] = ["s_cmp_ge_u32 s53, s52"]
            ex[3] += ["s_cbranch_scc1 La_chk", "La_chkd:"]
        if J == 7:
            ex[1] = [f"v_add_u32 v{vKM}, 8192, v{vKM}", f"v_add_u32 v{vKL}, 2048, v{vKL}"]
        phase(A, SB, PB, [m16(SA, KB[nb], Q1A, V(NMA,16)), m8(SA, klp, Q2A + 2*(jn & 1)),
                          m16(OA, VB[b], PA, V(OA,16)), m16(OA, VB[b]+4, PA+4, V(OA,16))], ex)
    if g.dbg and 'its' in EXP:
        A(f"""
        s_memrealtime s[88:89]
        s_memtime s[90:91]
        s_mov_b32 m0, s51
        s_waitcnt lgkmcnt(0)
        v_writelane_b32 v214, s88, m0
        s_add_u32 m0, s51, 32
        s_nop 0
        v_writelane_b32 v214, s90, m0
        s_cmp_lt_u32 s51, 16
        """)
    A("s_cbranch_scc1 La_loop")
    A(f"""
    s_setprio 2
    {m16(OB, VB[1], PB, V(OB,16))}
    {m16(OB, VB[1]+4, PB+4, V(OB,16))}
    """)
    g.stamp(10)
    A(f"v_lshlrev_b32 v{aT2}, 2, v0\nv_mov_b32 v{aT3}, 0")
    for n, (O, P) in enumerate(((OA, PA), (OB, PB))):
        A(f"""
        v_mov_b32 v{aT0}, v{O+10}
        v_mov_b32 v{aT1}, v{O+10}
        """)
        for i in range(11): A(f"v_add_f32 v{aT3}, |v{O+i}|, v{aT3}")
        A(f"""
        v_permlane32_swap_b32 v{aT0}, v{aT1}
        s_nop 1
        v_rcp_f32 v{aT0}, v{aT0}
        s_add_u32 s25, s48, {n*36*1024}
        s_add_u32 s27, s49, {n*36*1024}
        """)
        for i in range(10): A(f"v_mul_f32 v{O+i}, v{O+i}, v{aT0}")
        for i in range(5): A(f"v_cvt_pk_bf16_f32 v{P+i}, v{O+2*i}, v{O+2*i+1}")
        A(f"""
        buffer_store_dwordx4 {V(P,4)}, v{vL16}, s[12:15], s25 offen {SC}
        s_mov_b32 exec_hi, 0
        buffer_store_dword v{P+4}, v{aT2}, s[12:15], s27 offen {SC}
        s_mov_b32 exec_hi, -1
        """)
    A(f"""
    v_mov_b32 v{aT1}, 0x71800000
    v_cmp_nlt_f32 vcc, v{aT3}, v{aT1}
    v_mov_b32 v{aT3}, {FLAG}
    v_mov_b32 v{aT2}, 1
    s_cmp_lg_u32 s50, 0
    s_cbranch_scc1 Lp3
    s_cbranch_vccz Lp3
    ds_write_b32 v{aT3}, v{aT2}
    s_branch Lp3
La_chk:
    s_cmp_eq_u32 s30, 0
    s_cbranch_scc1 La_chk0
    s_mov_b32 s30, 0
    s_waitcnt vmcnt(0)
    """)
    g.gsync(10, TMP)
    A(f"""
    v_mov_b32 v{TMP}, {4 << 8}
    ds_add_u32 v{vCA}, v{TMP}
La_chk0:
    s_mov_b32 s93, {SPIN}
La_chk1:
    ds_read_b32 v{vCR}, v{vCA}
    s_waitcnt lgkmcnt(0)
    v_readfirstlane_b32 s52, v{vCR}
    s_lshr_b32 s52, s52, 8
    s_cmp_lt_u32 s53, s52
    s_cbranch_scc1 La_chkd
    s_sleep 1
    s_sub_u32 s93, s93, 1
    s_cmp_lg_u32 s93, 0
    s_cbranch_scc1 La_chk1
    s_branch La_chkd
La_slow:
    s_mov_b32 s50, 1
    s_barrier
    v_mov_b32 v{aT0}, {14 << 8}
    ds_write_b32 v{vCA}, v{aT0}
    v_mov_b32 v{aT3}, {FLAG}
    v_mov_b32 v{aT2}, 0
    ds_write_b32 v{aT3}, v{aT2}
    v_mov_b32 v{vKM}, v{vKM0}
    v_mov_b32 v{vKL}, v{vKL0}
    v_mov_b32 v{aT0}, 0xff800000
    v_mov_b32 v{aT1}, 0xff800000
    s_mov_b32 s51, 16
    s_waitcnt lgkmcnt(0)
    s_barrier
La_maxloop:
    ds_read2st64_b64 {V(KL,4)}, v{vKL} offset0:0 offset1:1
    """)
    for j in range(4):
        A(f"""
        ds_read2st64_b64 {V(KB[0],4)}, v{vKM} offset0:{2*j} offset1:{2*j+1}
        s_waitcnt lgkmcnt(0)
        {m16(SA, KB[0], Q1A, 0)}
        {m16(SB, KB[0], Q1B, 0)}
        {m8(SA, KL+2*(j>>1), Q2A+2*(j&1))}
        {m8(SB, KL+2*(j>>1), Q2B+2*(j&1))}
        s_nop 11
        """)
        maxtree(A, aT0, SA, True)
        maxtree(A, aT1, SB, True)
    A(f"""
    v_add_u32 v{vKM}, 4096, v{vKM}
    v_add_u32 v{vKL}, 1024, v{vKL}
    s_sub_u32 s51, s51, 1
    s_cmp_lg_u32 s51, 0
    s_cbranch_scc1 La_maxloop
    ds_read2st64_b64 {V(KB[0],4)}, v{vKM0} offset0:0 offset1:1
    ds_read2st64_b64 {V(KL,4)}, v{vKL0} offset0:0 offset1:1
    """)
    zero_acc(A)
    A("s_waitcnt lgkmcnt(0)\ns_branch La_setm")

def gen_p3(g):
    A = g.A
    BW, ACC_, AF = 40, 184, 16
    wA = 196
    A(f"""
Lh_slow:
    s_barrier
    """)
    dma_skip(A, -8)
    dma_n(g, 8)
    A(f"""
    s_waitcnt vmcnt(0)
    s_barrier
Lh_p3:
    s_and_b32 s19, s2, 7
    s_lshr_b32 s33, s2, 3
    v_lshlrev_b32 v{TMP}, 7, v0
    s_cmp_ge_u32 s33, 24
    s_cbranch_scc0 Lh_wo
    s_branch Lp3
Lh_wo:
    """)
    g.srd(4, pWO, WOB)

    for i in range(3):
        A(f"""
        v_add_u32 v1, {64*i}, v0
        v_mul_u32_u24 v2, 5462, v1
        v_lshrrev_b32 v2, 16, v2
        v_mul_u32_u24 v3, 12, v2
        v_sub_u32 v1, v1, v3
        v_mul_u32_u24 v2, 1152, v2
        v_lshl_add_u32 v{wA+i}, v1, 4, v2
        """)
    A(f"""
    v_subrev_u32 v{wA+1}, 1024, v{wA+1}
    v_subrev_u32 v{wA+2}, 2048, v{wA+2}
    s_lshr_b32 s25, s33, 2
    s_mul_i32 s28, s25, 192
    s_mul_i32 s25, s20, {16*1152}
    s_add_u32 s28, s28, s25
    """)
    for half, (n, base) in enumerate(((13, "s23"), (15, "s22"))):
        wait_progress(g, n, 6)
        A(f"""
        s_add_u32 s27, s28, {half*288*1152}
        s_mul_i32 s25, s20, 3072
        s_add_u32 s25, s25, {base}
        s_mov_b32 s31, s20
Lo_wo{half}:
        s_mov_b32 m0, s25
        s_add_u32 s31, s31, 4
        buffer_load_dwordx4 v{wA}, s[4:7], s27 offen lds
        buffer_load_dwordx4 v{wA+1}, s[4:7], s27 offen offset:1024 lds
        buffer_load_dwordx4 v{wA+2}, s[4:7], s27 offen offset:2048 lds
        s_add_u32 s27, s27, {4*16*1152}
        s_add_u32 s25, s25, {4*3072}
        s_cmp_lt_u32 s31, 18
        s_cbranch_scc1 Lo_wo{half}
        """)
    A(f"""
Lp3:
    v_mov_b32 v{TMP+1}, {FLAG}
    s_lshl_b32 s30, s18, 2
    s_lshr_b32 s25, s17, 3
    s_add_u32 s30, s30, s25
    s_add_u32 s30, s30, 32
    s_waitcnt vmcnt(0) lgkmcnt(0)
    s_barrier
    ds_read_b32 v{TMP}, v{TMP+1}
    s_and_b32 s19, s2, 7
    s_lshr_b32 s33, s2, 3
    s_waitcnt lgkmcnt(0)
    v_readfirstlane_b32 s25, v{TMP}
    s_cmp_eq_u32 s25, 0
    s_cbranch_scc1 Lp3_ok
    s_cmp_lt_u32 s16, 4
    s_cbranch_scc1 La_slow
    s_branch Lh_slow
Lp3_ok:
    """)
    g.stamp(11)
    A("s_cmp_lg_u32 s16, 7\ns_cbranch_scc1 Lp3_1")
    g.signal("s30", 14)
    A(f"""
Lp3_1:
    s_cmp_ge_u32 s33, 24
    s_cbranch_scc1 Lp3_s3
    s_and_b32 s17, s33, 3
    s_lshl_b32 s19, s19, 2
    s_add_u32 s17, s17, s19            ; tb
    s_lshr_b32 s18, s33, 2             ; ng
    s_mov_b32 s28, s23
    s_mov_b32 s29, s22
    s_and_b32 s23, s16, 1
    s_lshr_b32 s24, s16, 1
    v_lshlrev_b32 v12, 4, v0
    s_cmp_ge_u32 s16, 6
    s_cbranch_scc1 Lo_nopre
    v_lshrrev_b32 v1, 5, v0
    v_bfe_u32 v2, v0, 2, 2
    v_bfe_u32 v3, v0, 4, 1
    v_lshlrev_b32 v3, 5, v3
    v_and_b32 v7, 3, v0
    v_lshl_add_u32 v3, v7, 3, v3
    s_lshl_b32 s25, s24, 6
    v_add_u32 v3, s25, v3
    v_lshl_add_u32 v7, v1, 2, v2
    v_mul_u32_u24 v7, 192, v7
    v_add3_u32 v8, v7, v3, s28
    v_add3_u32 v9, v7, v3, s29
    v_mul_u32_u24 v7, 72, v1
    v_lshrrev_b32 v10, 1, v2
    v_mul_u32_u24 v10, 18, v10
    v_add_u32 v7, v7, v10
    v_and_b32 v10, 1, v2
    v_add3_u32 v7, v7, v10, 16
    v_mul_u32_u24 v7, 192, v7
    v_add3_u32 v10, v7, v3, s28
    v_add3_u32 v11, v7, v3, s29
    """)
    for s_ in range(36):
        for e in range(2):
            if s_ < 32: base, off = (8, (18*s_ + 8*e)*192) if s_ < 16 else (9, (18*(s_-16) + 8*e)*192)
            else: base, off = (10 + ((s_-32) >> 1), (144*((s_-32) & 1) + 36*e)*192)
            A(f"ds_read_b64_tr_b16 {V(BW+4*s_+2*e,2)}, v{base} offset:{off}")
        if s_ % 6 == 5: A("s_waitcnt lgkmcnt(4)")
    A("Lo_nopre:")
    g.srd(44, pOUT, OUTB)
    for i in range(16): A(f"v_mov_b32 v{ACC_+i}, 0")
    TR = 81920
    A(f"""
    s_mul_i32 s20, s17, {2*36*1024}
    s_add_u32 s20, s20, {OF}
    s_mul_i32 s21, s23, {36*1024}
    s_add_u32 s20, s20, s21
    s_lshl_b32 s21, s24, 10
    s_add_u32 s20, s20, s21
    s_lshl_b32 s21, s23, 10
    v_add_u32 v13, s21, v12
    v_and_b32 v1, 31, v0
    v_lshlrev_b32 v1, 2, v1
    v_lshrrev_b32 v2, 5, v0
    v_lshl_add_u32 v1, v2, 9, v1
    s_add_u32 s21, s21, 65536
    v_add_u32 v201, s21, v1
    v_add_u32 v202, 2048, v201
    v_add_u32 v203, 4096, v201
    v_add_u32 v204, 6144, v201
    v_and_b32 v1, 31, v0
    s_lshl_b32 s21, s23, 5
    v_add_u32 v1, s21, v1
    v_mul_u32_u24 v1, 208, v1
    v_lshl_add_u32 v1, v2, 3, v1
    s_lshl_b32 s21, s24, 6
    s_add_u32 s21, s21, {TR}
    v_add_u32 v200, s21, v1
    s_mul_i32 s26, s17, {64*2304}
    s_mul_i32 s22, s18, 192
    s_add_u32 s26, s26, s22
    s_lshl_b32 s22, s16, 7
    """)
    for i in range(2):
        A(f"""
        v_add_u32 v1, s22, v0
        v_add_u32 v1, {64*i}, v1
        v_mul_u32_u24 v2, 5462, v1
        v_lshrrev_b32 v2, 16, v2
        v_mul_u32_u24 v3, 12, v2
        v_sub_u32 v1, v1, v3
        v_lshlrev_b32 v1, 4, v1
        v_mul_u32_u24 v3, 208, v2
        v_add_u32 v{4+i}, v3, v1
        v_add_u32 v{4+i}, {TR}, v{4+i}
        v_mul_u32_u24 v3, 2304, v2
        v_add_u32 v{6+i}, v3, v1
        """)
    A("s_lshl_b32 s21, s16, 10\ns_waitcnt lgkmcnt(0)")
    g.stamp(12)
    A("s_cmp_lg_u32 s16, 7\ns_cbranch_scc1 Lp3_h\ns_add_u32 s25, s19, 32")
    g.poll("s25", 4, 8, 208, fast=opt('FASTP', 0))
    A("Lp3_h:\ns_barrier")
    g.stamp(13)
    for rr in range(9):
        A(f"""
        s_mov_b32 m0, s21
        s_add_u32 s21, s21, 8192
        buffer_load_dwordx4 v12, s[12:15], s20 offen lds {SC}
        s_add_u32 s20, s20, 4096
        """)
    AFB = [16, 216]
    def rd(s_, reg):
        off = 2048*s_ - (49152 if s_ >= 24 else 0)
        if s_ < 32: return [f"ds_read_b128 {V(reg,4)}, v{13 if s_ < 24 else 14} offset:{off}"]
        return [f"ds_read2_b32 {V(reg,2)}, v{201+s_-32} offset0:0 offset1:32", f"ds_read2_b32 {V(reg+2,2)}, v{201+s_-32} offset0:64 offset1:96"]
    A("v_add_u32 v14, 49152, v13")
    A("s_waitcnt vmcnt(6)\ns_barrier\ns_cmp_ge_u32 s16, 6\ns_cbranch_scc1 Lo_idle")
    for i in range(6):
        for r in rd(i, AFB[0]+4*i): A(r)
    for grp in range(6):
        nxt = grp + 1
        if nxt < 6 and nxt % 2 == 0: A(f"s_waitcnt vmcnt({6-3*(nxt//2)})\ns_barrier")
        for i in range(6):
            s_ = 6*grp + i
            n_rest = sum(len(rd(x, 0)) for x in range(s_+1, 6*grp+6))
            n_next = sum(len(rd(6*nxt+x, 0)) for x in range(i)) if nxt < 6 else 0
            A(f"s_waitcnt lgkmcnt({min(15, n_rest + n_next)})")
            A(f"v_mfma_f32_32x32x16_bf16 {V(ACC_,16)}, {V(BW+4*s_,4)}, {V(AFB[grp & 1]+4*i,4)}, {V(ACC_,16)}")
            if nxt < 6:
                for r in rd(6*nxt+i, AFB[nxt & 1]+4*i): A(r)
    g.stamp(14)
    A("s_nop 11")
    for q in range(4):
        A(f"""
        v_cvt_pk_bf16_f32 v{AF+2*q}, v{ACC_+4*q}, v{ACC_+4*q+1}
        v_cvt_pk_bf16_f32 v{AF+2*q+1}, v{ACC_+4*q+2}, v{ACC_+4*q+3}
        ds_write_b64 v200, {V(AF+2*q,2)} offset:{16*q}
        """)
    A(f"""
    s_waitcnt lgkmcnt(0)
    s_barrier
    ds_read_b128 {V(AF,4)}, v4
    ds_read_b128 {V(AF+4,4)}, v5
    s_waitcnt lgkmcnt(1)
    buffer_store_dwordx4 {V(AF,4)}, v6, s[44:47], s26 offen {SC}
    s_waitcnt lgkmcnt(0)
    buffer_store_dwordx4 {V(AF+4,4)}, v7, s[44:47], s26 offen {SC}
    s_branch Lfin
Lo_idle:
    s_waitcnt vmcnt(3)
    s_barrier
    s_waitcnt vmcnt(0)
    s_barrier
    s_branch Lfin
Lp3_s3:
    s_sub_u32 s20, s33, 24
    s_lshl_b32 s17, s19, 3
    s_add_u32 s17, s17, s20
    s_mov_b64 s[6:7], s[{pOUT}:{pOUT+1}]
    s_mov_b64 s[48:49], s[{pWS}:{pWS+1}]
    s_mov_b64 s[50:51], s[{pQ}:{pQ+1}]
    """)
    g.poll(16, 16, 18, 16)
    k3.gen_stage3(A, "Ls3", False, SC)
    A("Lfin:")
    g.end()

def gen(name, dbg=False):
    g = G(dbg); A = g.A
    A("Lcode_begin:")
    A(f"""
    s_cmp_ge_u32 s2, 256
    s_cbranch_scc1 Lend
    s_load_dwordx16 s[64:79], s[0:1], 0
    s_load_dwordx8 s[80:87], s[0:1], 64
    v_lshrrev_b32 v1, 6, v0
    v_and_b32 v0, 63, v0
    v_readfirstlane_b32 s16, v1
    """)
    if dbg: A(f"v_mov_b32 v{vST}, 0")
    g.stamp(0)
    A(f"""
    s_lshl_b32 s3, s16, 2
    s_add_u32 s3, s3, {SY}
    s_and_b32 s94, s3, {0xffffffff & ~15}
    s_cmp_ge_u32 s2, 224
    s_cbranch_scc1 Ls1
    """)
    gen_gemm(g)
    A("Ls1:")
    gen_stage1(g)
    gen_attn(g)
    gen_p3(g)
    A("Lend:\ns_endpgm\nLcode_end:")
    return A.text()

if __name__ == "__main__":
    import sys
    out = sys.argv[1]; dbg = len(sys.argv) > 2 and sys.argv[2] == "dbg"
    name = "concat_heads__softmax_full_mha__ssm_conv_h3__prompt_kernel"
    HDR = open("concat_heads__softmax_full_mha__ssm_conv_h3__prompt.s.ref").read().split("; Override launch")[0]
    s = HDR
    if (dbg and not os.environ.get('DD') and not os.environ.get('AMP')) or 'list' in EXP: s += f"; @launch kernel={name} grid=(256,1,1) block=(512,1,1) lds={LDS_BYTES}\n"
    else: s += f"; @launch grid=(256,1,1) block=(512,1,1) lds={LDS_BYTES}\n"
    s += '.amdgcn_target "amdgcn-amd-amdhsa--gfx950"\n.text\n' + kernel_head(name) + gen(name, dbg)
    s += '.section .rodata,"a"\n' + kernel_desc(name, NVGPR, 102)
    open(out, "w").write(s)
```

```python
import os, struct, math
from asmlib import *
from layout import *
import kconv
EXP = os.environ.get('FEXP', '').split(',')
def opt(name, default): return int(os.environ.get(name, default))

CS_BITS = struct.unpack("<I", struct.pack("<f", math.log2(math.e)/math.sqrt(18)))[0]
XB, WB, OUTB, WOB = 2048*1152, 576*3456, 2048*2304, 576*1152
NVGPR = 248
LDS_BYTES = 163840
vST = 215
pX, pW, pWO, pQ, pK, pV, pSH, pH, pD, pOUT, pDBG, pWS = [64+2*i for i in range(12)]
WIN = 65536 + VSZ + 16384
CONST = WIN
UC = WIN + 4352
XCH = WIN + 6144
SY = WIN + 5376
SC = "sc1"
NTG = 'nt' if 'ntg' in EXP else ''
NTB = 'nt' if 'ntb' in EXP else ''
SPIN = 200000
NREP = opt('NREP', 8)
GOFF = 120*256

class G:
    def __init__(self, dbg):
        self.A = Asm(); self.dbg = dbg; self.n = 0
    def lab(self, p="L"):
        self.n += 1; return f"{p}{self.n}"
    def stamp(self, i):
        if self.dbg:
            self.A(f"""
            s_memrealtime s[88:89]
            s_memtime s[90:91]
            s_waitcnt lgkmcnt(0)
            v_writelane_b32 v{vST}, s88, {i}
            v_writelane_b32 v{vST}, s90, {32+i}
            """)
    def srd(self, d, p, n):
        self.A(f"s_mov_b32 s{d}, s{p}\ns_mov_b32 s{d+1}, s{p+1}\ns_mov_b32 s{d+2}, {n}\ns_mov_b32 s{d+3}, 0x20000")
    def end(self):
        A = self.A
        if self.dbg:
            A("s_mov_b64 exec, -1\ns_waitcnt vmcnt(0)")
            self.stamp(31)
            A(f"""
            s_lshl_b32 s25, s2, 3
            s_add_u32 s25, s25, s16
            s_lshl_b32 s25, s25, 8
            s_add_u32 s25, s25, {STAMP}
            v_lshlrev_b32 v1, 2, v0
            buffer_store_dword v{vST}, v1, s[12:15], s25 offen
            s_add_u32 s25, s25, {2048*256}
            buffer_store_dword v214, v1, s[12:15], s25 offen
            """)
        amp = os.environ.get('AMP')
        if self.dbg and amp:
            wg, w, i, j = [int(x) for x in amp.split(',')]
            A(f"""
            s_cmp_lg_u32 s2, {wg}
            s_cbranch_scc1 Lam_e
            s_cmp_lg_u32 s16, {w}
            s_cbranch_scc1 Lam_e
            v_readlane_b32 s40, v{vST}, {i}
            v_readlane_b32 s41, v{vST}, {j}
            s_memrealtime s[42:43]
            s_nop 3
            s_sub_u32 s41, s41, s40
            s_min_u32 s41, s41, 10000
            s_lshl_b32 s41, s41, 3
            s_add_u32 s41, s41, {os.environ.get('AMPC', '0')}
            s_waitcnt lgkmcnt(0)
Lam_l:
            s_memrealtime s[44:45]
            s_waitcnt lgkmcnt(0)
            s_sub_u32 s44, s44, s42
            s_cmp_lt_u32 s44, s41
            s_cbranch_scc1 Lam_l
Lam_e:
            """)
        dd = os.environ.get('DD')
        if self.dbg and dd:
            wg, w, *idx = [int(x) for x in dd.split(',')]
            A(f"""
            s_cmp_lg_u32 s2, {wg}
            s_cbranch_scc1 Ldd_e
            s_cmp_lg_u32 s16, {w}
            s_cbranch_scc1 Ldd_e
            v_readlane_b32 s40, v{vST}, 0
            v_mov_b32 v2, 0
            """)
            for k, i in enumerate(idx):
                A(f"""
                v_readlane_b32 s41, v{vST}, {i}
                s_nop 3
                s_sub_u32 s41, s41, s40
                v_mov_b32 v3, s41
                global_store_dword v2, v3, s[{pDBG}:{pDBG+1}] offset:{32+4*k}
                """)
            A("Ldd_e:")
        A("s_endpgm")
    def post(self, val, t):
        self.A(f"""
        v_mov_b32 v{t}, s3
        v_mov_b32 v{t+1}, {val}
        ds_write_b32 v{t}, v{t+1}
        """)
    def wait_words(self, addr, val, t, n=4, sl=1):
        l = self.lab("Lw"); d = self.lab("Ld")
        rd = f"ds_read_b128 {V(t,4)}, v{t+4}" if n == 4 else f"ds_read_b32 v{t}, v{t+4}"
        mn = f"v_min_u32 v{t}, v{t}, v{t+1}\nv_min3_u32 v{t}, v{t}, v{t+2}, v{t+3}\ns_nop 0" if n == 4 else ""
        self.A(f"""
        v_mov_b32 v{t+4}, {addr}
        s_mov_b32 s93, {SPIN}
{l}:
        {rd}
        s_waitcnt lgkmcnt(0)
        {mn}
        v_readfirstlane_b32 s92, v{t}
        s_cmp_ge_u32 s92, {val}
        s_cbranch_scc1 {d}
        s_sleep {sl}
        s_sub_u32 s93, s93, 1
        s_cmp_lg_u32 s93, 0
        s_cbranch_scc1 {l}
{d}:
        """)
    def gsync(self, val, t):
        self.post(val, t)
        self.wait_words("s94", val, t)
    def ready(self, t):
        l = self.lab("Lr"); d = self.lab("Ld")
        self.A(f"""
        v_and_b32 v{t+1}, {NREP-1}, v0
        v_lshlrev_b32 v{t+1}, 2, v{t+1}
        s_mov_b32 s93, {SPIN}
{l}:
        global_load_dword v{t}, v{t+1}, s[{pDBG}:{pDBG+1}] {SC}
        s_waitcnt vmcnt(0)
        v_cmp_eq_u32 vcc, 0, v{t}
        s_nop 3
        s_cmp_eq_u64 vcc, 0
        s_cbranch_scc1 {d}
        s_sleep 2
        s_sub_u32 s93, s93, 1
        s_cmp_lg_u32 s93, 0
        s_cbranch_scc1 {l}
{d}:
        """)
    def signal(self, sidx, t, mask=None):
        self.A(f"""
        s_lshl_b32 s92, {sidx}, 8
        s_add_u32 s92, s92, {CNT}
        v_lshlrev_b32 v{t}, 15, v0
        v_mov_b32 v{t+1}, 1
        s_mov_b64 exec, {mask or (1 << NREP) - 1}
        buffer_atomic_add v{t+1}, v{t}, s[12:15], s92 offen {SC}
        s_mov_b64 exec, -1
        """)
    def poll(self, first, n, target, t, sl=None, fast=False, mask=None, sh=8):
        l = self.lab("Lp"); d = self.lab("Ld")
        self.A(f"""
        v_min_u32 v{t+1}, {n-1}, v0
        v_add_u32 v{t+1}, {first}, v{t+1}
        v_lshlrev_b32 v{t+1}, {sh}, v{t+1}
        s_mov_b32 s93, {SPIN}
        s_and_b32 s92, s2, {NREP-1}
        s_lshl_b32 s92, s92, 15
        s_add_u32 s92, s92, {CNT}
        s_mov_b64 exec, {mask or (1 << n) - 1}
        {"" if not fast else f"buffer_load_dword v{t+2}, v{t+1}, s[12:15], s92 offen {SC}" + chr(10) + f"s_sleep {opt('FSL', 3)}"}
{l}:
        buffer_load_dword v{t}, v{t+1}, s[12:15], s92 offen {SC}
        s_waitcnt vmcnt({1 if fast else 0})
        v_cmp_le_u32 vcc, {target}, v{t+2 if fast else t}
        s_nop 3
        s_cmp_eq_u64 vcc, exec
        s_cbranch_scc1 {d}
        {"" if not fast else f"buffer_load_dword v{t+2}, v{t+1}, s[12:15], s92 offen {SC}" + chr(10) + "s_waitcnt vmcnt(1)" + chr(10) + f"v_cmp_le_u32 vcc, {target}, v{t}" + chr(10) + "s_nop 3" + chr(10) + "s_cmp_eq_u64 vcc, exec" + chr(10) + f"s_cbranch_scc1 {d}"}
        {"" if fast else f"s_sleep {sl or opt('PSLEEP', 2)}"}
        s_sub_u32 s93, s93, 1
        s_cmp_lg_u32 s93, 0
        s_cbranch_scc1 {l}
{d}:
        s_mov_b64 exec, -1
        """)

vT0, vT1, vT2, vT3, vTok, vHf = 1, 2, 3, 4, 5, 6
vXb, vWb, vX, vW, vEA, FR, ACC, PK = 8, 12, 14, 18, 20, 36, 68, 132
RING = 131072
def XF(b, i): return FR + 16*b + 4*i
def WF(b, j): return FR + 16*b + 8 + 4*j
def acc(i, j): return ACC + 16*(2*i + j)
def g_reads(b, s):
    return [f"ds_read_b128 {V(XF(b,0),4)}, v{vX+s}",
            f"ds_read_b64_tr_b16 {V(WF(b,0),2)}, v{vW} offset:{16384 + 4096*s}",
            f"ds_read_b64_tr_b16 {V(WF(b,0)+2,2)}, v{vW} offset:{16384 + 4096*s + 1024}",
            f"ds_read_b64_tr_b16 {V(WF(b,1),2)}, v{vW+1} offset:{16384 + 4096*s}",
            f"ds_read_b64_tr_b16 {V(WF(b,1)+2,2)}, v{vW+1} offset:{16384 + 4096*s + 1024}",
            f"ds_read_b128 {V(XF(b,1),4)}, v{vX+s} offset:4096"]
def g_mf(b, i, j, vtype):
    a, bb = (XF(b,i), WF(b,j)) if vtype else (WF(b,j), XF(b,i))
    return f"v_mfma_f32_32x32x16_bf16 {V(acc(i,j),16)}, {V(a,4)}, {V(bb,4)}, {V(acc(i,j),16)}"
def g_setaddr(A):
    for s in range(4): A(f"v_add_u32 v{vX+s}, s30, v{vXb+s}")
    for j in range(2): A(f"v_add_u32 v{vW+j}, s30, v{vWb+j}")
def g_loop(g, name, vtype):
    A = g.A
    A("s_mov_b32 s31, 9\ns_barrier")
    for r in g_reads(0, 0): A(r)
    A(f".p2align 6\n{name}:")
    for s_ in range(4):
        b = s_ & 1
        rd = g_reads(b ^ 1, (s_+1) & 3)
        if s_ == 3:
            A(f"""
            s_cbranch_scc1 {name}_nb
            s_barrier
{name}_nb:
            """)
            g_setaddr(A)
        A("s_waitcnt lgkmcnt(3)")
        A(g_mf(b, 0, 0, vtype))
        for r in rd[:3]: A(r)
        A("s_waitcnt lgkmcnt(4)")
        A(g_mf(b, 0, 1, vtype))
        for r in rd[3:]: A(r)
        A("s_waitcnt lgkmcnt(6)")
        A(g_mf(b, 1, 0, vtype))
        if s_ == 2:
            A(f"""
            s_add_u32 s30, s30, 32768
            s_and_b32 s30, s30, {RING-1}
            s_sub_u32 s31, s31, 1
            s_cmp_eq_u32 s31, 0
            """)
        A(g_mf(b, 1, 1, vtype))
    A(f"s_cbranch_scc0 {name}")

def ld_chunk(g, skip=True):
    A = g.A; l = g.lab("Lk")
    if skip: A(f"s_cmp_lg_u32 s95, 0\ns_cbranch_scc1 {l}")
    A(f"""
    s_mov_b32 m0, s42
    s_add_u32 s26, s40, 8192
    buffer_load_dwordx4 v8, s[8:11], s40 offen lds
    s_add_u32 s27, s40, 16384
    buffer_load_dwordx4 v9, s[8:11], s26 offen offset:1024 lds
    s_add_u32 s26, s40, 24576
    buffer_load_dwordx4 v8, s[8:11], s27 offen offset:2048 lds
    s_add_u32 s28, s42, 16384
    buffer_load_dwordx4 v9, s[8:11], s26 offen offset:3072 lds
    s_mov_b32 m0, s28
    s_add_u32 s26, s41, {13824-1024}
    buffer_load_dwordx4 v10, s[44:47], s41 offen lds
    s_add_u32 s27, s41, {2*(13824-1024)}
    buffer_load_dwordx4 v10, s[44:47], s26 offen offset:1024 lds
    s_add_u32 s26, s41, {3*(13824-1024)}
    buffer_load_dwordx4 v10, s[44:47], s27 offen offset:2048 lds
    s_add_u32 s40, s40, 128
    buffer_load_dwordx4 v10, s[44:47], s26 offen offset:3072 lds
    s_add_u32 s41, s41, {64*3456}
    s_add_u32 s24, s24, 1
    s_cmp_eq_u32 s24, 9
    s_cselect_b32 s26, 1152, 0
    s_cselect_b32 s27, {WB}, 0
    s_sub_u32 s40, s40, s26
    s_sub_u32 s41, s41, s27
    s_add_u32 s42, s42, 32768
    s_cmp_ge_u32 s42, {RING}
    s_cselect_b32 s26, {RING}, 0
    s_sub_u32 s42, s42, s26
{l}:
    """)

def gen_gemm(g):
    A = g.A
    ROT = opt('ROT', 1)
    A(f"""
    s_and_b32 s17, s2, 7               ; xcd
    s_lshr_b32 s18, s2, 3              ; idx 0..27
    s_and_b32 s19, s17, 3
    s_lshl_b32 s19, s19, 2
    s_and_b32 s20, s18, 3
    s_add_u32 s19, s19, s20            ; mb
    s_lshr_b32 s21, s17, 2
    s_mul_i32 s21, s21, 7
    s_lshr_b32 s22, s18, 2
    s_add_u32 s21, s21, s22            ; ng
    s_cmp_lt_u32 s16, 4
    s_cbranch_scc1 Lg_compute
    s_and_b32 s23, s16, 3              ; u
    """)
    if ROT:
        A("""
        s_mul_i32 s24, s20, 5
        s_lshr_b32 s24, s24, 1
        s_add_u32 s24, s24, s22
        s_cmp_ge_u32 s24, 9
        s_cselect_b32 s25, 9, 0
        s_sub_u32 s24, s24, s25
        """)
    else: A("s_mov_b32 s24, 0")
    A(f"""
    s_lshl_b32 s25, s19, 7
    s_lshl_b32 s26, s23, 5
    s_add_u32 s25, s25, s26
    s_mul_i32 s25, s25, 1152
    s_lshl_b32 s26, s24, 7
    s_add_u32 s40, s25, s26            ; sX
    s_lshl_b32 s25, s24, 2
    s_add_u32 s25, s25, s23
    s_mul_i32 s25, s25, {16*3456}
    s_lshl_b32 s26, s21, 8
    s_add_u32 s41, s25, s26            ; sW
    s_lshl_b32 s42, s23, 12
    v_lshrrev_b32 v{vT0}, 3, v0
    v_mul_u32_u24 v{vT0}, 1152, v{vT0}
    v_lshrrev_b32 v{vT1}, 4, v0
    v_and_b32 v{vT2}, 7, v0
    v_xor_b32 v{vT2}, v{vT2}, v{vT1}
    v_lshl_add_u32 v8, v{vT2}, 4, v{vT0}
    v_xor_b32 v{vT2}, 4, v{vT2}
    v_lshl_add_u32 v9, v{vT2}, 4, v{vT0}       ; odd i
    v_mul_u32_u24 v{vT0}, 3456, v{vT1}
    v_and_b32 v{vT2}, 15, v0
    v_lshlrev_b32 v{vT1}, 2, v{vT1}
    v_xor_b32 v{vT2}, v{vT2}, v{vT1}
    v_lshl_add_u32 v10, v{vT2}, 4, v{vT0}      ; W addr
    s_mov_b32 s95, 0
    s_setprio {opt('LPRIO', 0)}
    s_waitcnt lgkmcnt(0)
    """)
    g.srd(8, pX, XB); g.srd(44, pW, WB)
    A(f"""
    s_mov_b32 s31, 0
Lld:
    s_cmp_lt_u32 s31, 2
    s_cbranch_scc1 Lld_go
    s_waitcnt vmcnt(8)
    s_barrier
Lld_go:
    """)
    ld_chunk(g, False)
    A(f"""
    s_add_u32 s31, s31, 1
    s_cmp_lt_u32 s31, 9
    s_cbranch_scc1 Lld
    s_waitcnt vmcnt(8)
    s_barrier
    """)
    g.srd(12, pWS, WS_END)
    A(f"""
    s_waitcnt vmcnt(0)
    s_barrier
    s_branch Lh_start
Lg_compute:
    s_and_b32 s23, s16, 1              ; wm
    s_lshr_b32 s24, s16, 1             ; wn
    v_and_b32 v{vTok}, 31, v0
    v_lshrrev_b32 v{vHf}, 5, v0
    s_lshl_b32 s25, s23, 13
    v_lshlrev_b32 v{vT0}, 7, v{vTok}
    v_add_u32 v{vT0}, s25, v{vT0}
    v_bfe_u32 v{vT1}, v0, 1, 3
    v_xor_b32 v{vT1}, v{vT1}, v{vHf}
    """)
    for s in range(4):
        A(f"v_xor_b32 v{vT2}, {2*s}, v{vT1}\nv_lshl_add_u32 v{vXb+s}, v{vT2}, 4, v{vT0}")
    A(f"""
    v_bfe_u32 v{vT0}, v0, 2, 2
    v_lshl_add_u32 v{vT1}, v{vHf}, 3, v{vT0}
    v_lshlrev_b32 v{vT1}, 8, v{vT1}
    v_bfe_u32 v{vT2}, v0, 4, 1
    v_lshl_add_u32 v{vT1}, v{vT2}, 5, v{vT1}
    v_and_b32 v{vT2}, 3, v0
    v_lshl_add_u32 v{vT1}, v{vT2}, 3, v{vT1}
    s_lshl_b32 s25, s24, 1
    v_xor_b32 v{vT2}, s25, v{vT0}
    v_lshl_add_u32 v{vWb}, v{vT2}, 6, v{vT1}
    v_xor_b32 v{vT2}, 1, v{vT2}
    v_lshl_add_u32 v{vWb+1}, v{vT2}, 6, v{vT1}
    s_mov_b32 s30, 0
    s_waitcnt lgkmcnt(0)
    """)
    g.srd(12, pWS, WS_END)
    gen_init_misc(g, PK+8)
    g_setaddr(A)
    for i in range(64): A(f"v_mov_b32 v{ACC+i}, 0")
    A(f"""
    s_lshl_b32 s25, s21, 7
    s_sub_u32 s25, 71, s25
    v_mul_u32_u24 v{vT0}, 72, v0
    v_add_u32 v{vT0}, s25, v{vT0}
    v_add_u32 v{vT1}, 576, v{vT0}
    v_add_u32 v{vT2}, 1152, v{vT0}
    v_min_u32 v{vT0}, v{vT0}, v{vT1}
    v_min_u32 v{vT0}, v{vT0}, v{vT2}
    v_cmp_gt_u32 vcc, 199, v{vT0}
    s_nop 3
    s_and_b64 s[36:37], vcc, 0xff
    """)
    A(f"""
    s_lshl_b32 s26, s19, 2
    s_lshl_b32 s27, s23, 1
    s_add_u32 s26, s26, s27            ; T0
    s_waitcnt lgkmcnt(0)
    s_cmp_ge_u32 s21, 9
    s_cbranch_scc1 Lg_vtype
    s_lshl_b32 s27, s21, 5
    s_lshl_b32 s28, s24, 4
    s_add_u32 s27, s27, s28
    v_add_u32 v{vT0}, s27, v{vHf}      ; G0
    s_lshl_b32 s28, s26, 10
    s_lshl_b32 s29, s26, 8
    s_add_u32 s29, s29, {LEFT}
    v_lshlrev_b32 v{vTok}, 3, v{vTok}
    v_add_u32 v{PK}, s29, v{vTok}
    v_add_u32 v{PK+1}, s28, v{vTok}
    v_add_u32 v{PK+2}, {MB-1280}, v{PK+1}
    v_mov_b32 v{PK+3}, 256
    v_mov_b32 v{PK+4}, 1024
    s_mov_b32 s32, {PAIR}
    """)
    for jg in range(8):
        A(f"""
        v_add_u32 v{vT1}, {8*(jg>>2) + 2*(jg&3)}, v{vT0}
        v_mul_u32_u24 v{vT2}, 7282, v{vT1}
        v_lshrrev_b32 v{vT2}, 16, v{vT2}
        v_mul_u32_u24 v{vT3}, 9, v{vT2}
        v_sub_u32 v{vT1}, v{vT1}, v{vT3}
        v_cmp_lt_u32 vcc, 4, v{vT1}
        v_cmp_eq_u32 s[34:35], 4, v{vT1}
        v_mul_u32_u24 v{vT2}, s32, v{vT2}
        v_cndmask_b32 v{vT3}, v{PK+1}, v{PK+2}, vcc
        v_lshl_add_u32 v{vT3}, v{vT1}, 8, v{vT3}
        v_cndmask_b32 v{vT3}, v{vT3}, v{PK}, s[34:35]
        v_cndmask_b32 v{vT1}, v{PK+4}, v{PK+3}, s[34:35]
        v_add_u32 v{vEA+jg}, v{vT2}, v{vT3}
        v_add_u32 v{vEA+8+jg}, v{vEA+jg}, v{vT1}
        """)
    g.stamp(1)
    g_loop(g, "Lg_qk", False)
    g.stamp(2)
    A(f"""
    s_lshl_b32 s27, s21, 2
    s_lshl_b32 s28, s24, 1
    s_add_u32 s27, s27, s28
    s_cmp_lt_u32 s27, 18
    s_cselect_b32 s28, {CS_BITS}, 1.0
    s_mov_b32 s29, s28
    s_nop 6
    """)
    n = 0
    for i in range(2):
        for j in range(2):
            for q in range(4):
                a = acc(i, j) + 4*q
                p = PK + 2*(n % 8); n += 1
                for e in range(2): A(f"v_pk_mul_f32 {V(a+2*e,2)}, {V(a+2*e,2)}, s[28:29]")
                A(f"v_cvt_pk_bf16_f32 v{p}, v{a}, v{a+1}\nv_cvt_pk_bf16_f32 v{p+1}, v{a+2}, v{a+3}")
                A(f"buffer_store_dwordx2 {V(p,2)}, v{vEA+8*i+4*j+q}, s[12:15], 0 offen {SC}")
    A(f"""
    s_branch Lg_done
Lg_vtype:
    s_sub_u32 s27, s21, 9
    s_lshl_b32 s27, s27, 7
    s_lshl_b32 s28, s24, 6
    s_add_u32 s27, s27, s28
    s_mul_i32 s28, s26, 36864
    s_add_u32 s28, s28, {VG}
    v_mul_u32_u24 v{vT3}, 9216, v{vHf}
    v_add_u32 v{vT0}, s27, v{vTok}
    v_lshl_add_u32 v{vEA}, v{vT0}, 4, v{vT3}
    """)
    g.stamp(1)
    g_loop(g, "Lg_v", True)
    g.stamp(2)
    A(f"""
    s_cmp_ge_u32 s27, 576
    s_cbranch_scc1 Lg_done
    s_nop 9
    """)
    n = 0
    for i in range(2):
        for j in range(2):
            for m in range(2):
                a = acc(i, j) + 8*m
                p = PK + 4*(n % 4); n += 1
                for e in range(4): A(f"v_cvt_pk_bf16_f32 v{p+e}, v{a+2*e}, v{a+2*e+1}")
                A(f"s_add_u32 s29, s28, {i*36864+m*18432}")
                A(f"buffer_store_dwordx4 {V(p,4)}, v{vEA}, s[12:15], s29 offen offset:{512*j} {SC}")
    A(f"""
Lg_done:
    s_setprio 2
    """)
    g.stamp(15)
    A("s_cmp_lg_u32 s16, 0\ns_cbranch_scc1 Lg_d2")
    g.ready(8)
    A("Lg_d2:\ns_waitcnt vmcnt(0) lgkmcnt(0)")
    g.stamp(3)
    g.gsync(5, 8)
    A("s_cmp_lg_u32 s16, 0\ns_cbranch_scc1 Lattn")
    g.stamp(16)
    if opt('HIER', 0):
        A(f"""
        s_lshl_b32 s92, s21, 8
        s_add_u32 s92, s92, {CNT}
        v_mov_b32 v8, 0
        v_mov_b32 v9, 1
        s_mov_b64 exec, 1
        buffer_atomic_add v9, v8, s[12:15], s92 offen sc0 {SC}
        s_mov_b64 exec, -1
        s_lshl_b32 s92, s21, 2
        s_add_u32 s92, s92, {CNT+GOFF}
        v_lshlrev_b32 v8, 15, v0
        v_mov_b32 v10, 16
        s_waitcnt vmcnt(0)
        v_readfirstlane_b32 s25, v9
        s_cmp_lg_u32 s25, 15
        s_cbranch_scc1 Lg_nl
        s_mov_b64 exec, s[36:37]
        buffer_store_dword v10, v8, s[12:15], s92 offen {SC}
        s_mov_b64 exec, -1
Lg_nl:
        """)
    else:
        g.signal("s21", 8, mask="s[36:37]" if opt('PMASK', 1) else None)
        A("s_waitcnt vmcnt(0)")
    g.stamp(17)
    A("s_branch Lattn")

def gen_init_misc(g, t):
    A = g.A
    for i in range(2):
        A(f"""
        s_and_b32 s25, s16, 3
        s_lshl_b32 s25, s25, 7
        s_add_u32 s25, s25, {64*i-14 & 0xffffffff}
        v_add_u32 v{t+4}, s25, v0
        v_mul_u32_u24 v{t+5}, 1821, v{t+4}
        v_lshrrev_b32 v{t+5}, 16, v{t+5}
        v_mul_u32_u24 v{t+5}, 36, v{t+5}
        v_cmp_eq_u32 s[34:35], v{t+5}, v{t+4}
        v_cmp_gt_u32 vcc, {36*8}, v{t+4}
        v_mov_b32 v{t+5}, 0x3f803f80
        v_lshlrev_b32 v{t+4}, 4, v{t+4}
        s_and_b64 vcc, vcc, s[34:35]
        v_add_u32 v{t+4}, {CONST+224}, v{t+4}
        v_cndmask_b32 v{t}, 0, v{t+5}, vcc
        v_cndmask_b32 v{t+1}, 0, v{t+5}, vcc
        v_cndmask_b32 v{t+2}, 0, v{t+5}, vcc
        v_cndmask_b32 v{t+3}, 0, v{t+5}, vcc
        ds_write_b128 v{t+4}, {V(t,4)}
        """)

import k2, k3
from k2 import m16, m8, phase, maxtree
from k2 import vL8, vKM, vKL, vV, vL16, vV0, vVinc, Q1A, Q1B, Q2A, Q2B, NMA, NMB, SA, SB, PA, PB, OA, OB, KB, KL, VB
aT0, aT1, aT2, aT3 = 5, 6, 7, 8
TMP = 168
vCA, vCR, vOne, vKM0, vKL0, vG0, vG1, vG2 = range(176, 184)
bKG, bVG, b5G, bRD, bTR, bBW, bBR, bUO, bZP, bPG = range(184, 194)
CM = 216
FLAG = SY + 40
KL2 = 184

def head_params(A):
    A(f"""
    s_and_b32 s17, s2, 7
    s_lshl_b32 s17, s17, 2
    s_bfe_u32 s25, s2, 0x20003
    s_add_u32 s17, s17, s25            ; h
    s_lshr_b32 s18, s2, 5              ; qb
    s_and_b32 s20, s16, 3              ; qg / u
    s_and_b32 s21, s17, 1              ; parity
    s_lshr_b32 s26, s17, 1             ; pair
    v_lshlrev_b32 v{vL16}, 4, v0
    s_mul_i32 s39, s26, {PAIR}
    s_mul_i32 s28, s21, {LEFT}
    s_add_u32 s27, s39, s28
    s_add_u32 s27, s27, {KV}
    s_add_u32 s8, s{pWS}, s27
    s_addc_u32 s9, s{pWS+1}, 0
    s_mov_b32 s10, {WIN}
    s_mov_b32 s11, 0x20000
    s_lshl_b32 s22, s21, 14
    s_add_u32 s23, s22, 65536
    s_cmp_eq_u32 s21, 0
    s_cselect_b32 s24, {LEFT}, 0
    s_lshl_b32 s25, s20, 10
    s_add_u32 s40, s22, s25
    s_add_u32 s41, s23, s25
    s_add_u32 s42, s23, 8192
    s_and_b32 s44, s20, 1
    s_lshl_b32 s44, s44, 10
    s_add_u32 s44, s44, s24
    s_mul_i32 s43, s17, 288
    s_add_u32 s43, s43, {VG}
    s_add_u32 s46, s44, s27
    s_cmp_eq_u32 s20, 0
    s_cselect_b32 s42, s42, s44
    s_cselect_b32 s44, s43, s46
    s_cselect_b32 s45, 9, 2
    s_cselect_b32 s47, 288, 2
    s_cselect_b64 vcc, -1, 0
    s_lshl_b32 s45, s45, 10
    s_lshl_b32 s47, s47, 10
    s_lshl_b32 s25, s20, 6
    s_add_u32 s46, s25, 256
    """)
    for r, base in ((vG0, "s25"), (vG1, "s46"), (vG2, "512")):
        A(f"""
        v_add_u32 v{aT0}, {base}, v0
        v_mul_u32_u24 v{aT2}, 3641, v{aT0}
        v_lshrrev_b32 v{aT2}, 16, v{aT2}
        v_mul_u32_u24 v{aT3}, {9216-288}, v{aT2}
        v_lshl_add_u32 v{r}, v{aT0}, 4, v{aT3}
        """)
    A(f"v_cndmask_b32 v{vG2}, v{vL16}, v{vG2}, vcc")

def dma_skip(A, n):
    A(f"""
    s_add_u32 s40, s40, {(n*8192) & 0xffffffff}
    s_add_u32 s41, s41, {(n*9216) & 0xffffffff}
    s_add_u32 s43, s43, {(n*8*36864) & 0xffffffff}
    s_mul_i32 s25, s45, {n}
    s_add_u32 s42, s42, s25
    s_mul_i32 s25, s47, {n}
    s_add_u32 s44, s44, s25
    """)

def dma_iter(A):
    A(f"""
    s_mov_b32 m0, s40
    s_add_u32 s46, s40, 4096
    buffer_load_dwordx4 v{vL16}, s[8:11], s40 offen lds {SC}
    s_mov_b32 m0, s46
    s_add_u32 s40, s40, 8192
    buffer_load_dwordx4 v{vL16}, s[8:11], s46 offen lds {SC}
    s_mov_b32 m0, s41
    s_add_u32 s46, s41, 4096
    buffer_load_dwordx4 v{vG0}, s[12:15], s43 offen lds {SC}
    s_mov_b32 m0, s46
    s_add_u32 s41, s41, 9216
    buffer_load_dwordx4 v{vG1}, s[12:15], s43 offen lds {SC}
    s_mov_b32 m0, s42
    s_add_u32 s43, s43, {8*36864}
    buffer_load_dwordx4 v{vG2}, s[12:15], s44 offen lds {SC}
    s_add_u32 s42, s42, s45
    s_add_u32 s44, s44, s47
    """)
def dma_n(g, n):
    l = g.lab("Ldm")
    g.A(f"s_mov_b32 s31, {n}\n{l}:")
    dma_iter(g.A)
    g.A(f"s_sub_u32 s31, s31, 1\ns_cmp_lg_u32 s31, 0\ns_cbranch_scc1 {l}")

def avail_add(g, units):
    l = g.lab("Lav")
    g.A(f"""
    s_cmp_lg_u32 s16, 4
    s_cbranch_scc1 {l}
    v_mov_b32 v{TMP}, {units << 8}
    s_mov_b64 exec, 15
    ds_add_u32 v{bPG}, v{TMP}
    s_mov_b64 exec, -1
{l}:
    """)
def wait_progress(g, n, sl=4):
    l = g.lab("Lq"); d = g.lab("Ld")
    g.A(f"""
    s_mov_b32 s93, {SPIN}
{l}:
    ds_read_b32 v{TMP}, v{bPG}
    s_waitcnt lgkmcnt(0)
    v_and_b32 v{TMP}, 0xff, v{TMP}
    v_cmp_gt_u32 vcc, {n}, v{TMP}
    s_nop 3
    s_cmp_eq_u64 vcc, 0
    s_cbranch_scc1 {d}
    s_sleep {sl}
    s_sub_u32 s93, s93, 1
    s_cmp_lg_u32 s93, 0
    s_cbranch_scc1 {l}
{d}:
    """)

def gen_stage1(g):
    A = g.A
    KR, VR, CR, UU, OUT = 40, 60, 68, 84, 136
    T = TMP
    R = kconv.ConvRegs(16)
    A("s_waitcnt lgkmcnt(0)")
    g.srd(12, pWS, WS_END)
    A(f"""
    s_sub_u32 s17, s2, 224
    s_cmp_lt_u32 s16, 4
    s_cbranch_scc1 Lx_a
    s_mov_b32 s95, 1
    s_mov_b32 s18, 8
    s_lshl_b32 s19, s17, 1
    s_add_u32 s19, s19, 512
    s_bfe_u32 s25, s2, 0x10003
    s_lshl_b32 s25, s25, 14
    s_add_u32 s96, s25, 40960
    s_add_u32 s97, s25, {65536+46080}
    s_add_u32 s99, s97, 9344
    s_add_u32 s3, s3, 32
    s_add_u32 s94, s94, 32
    s_branch Lb_setup
Lx_a:
    s_cmp_ge_u32 s17, {NREP}
    s_cbranch_scc1 Lx_1
    s_cmp_lg_u32 s16, 0
    s_cbranch_scc1 Lx_1
    v_lshlrev_b32 v11, 8, v0
    v_mov_b32 v12, 0
    s_lshl_b32 s25, s17, 15
    s_add_u32 s25, s25, {CNT}
    buffer_store_dword v12, v11, s[12:15], s25 offen {SC}
    s_add_u32 s25, s25, 16384
    s_mov_b64 exec, 0xfffff
    buffer_store_dword v12, v11, s[12:15], s25 offen {SC}
    s_mov_b64 exec, -1
    v_lshlrev_b32 v11, 2, v0
    s_add_u32 s25, s25, {GOFF-16384}
    buffer_store_dword v12, v11, s[12:15], s25 offen {SC}
Lx_1:
    s_getpc_b64 s[26:27]
Lpc0:
    s_add_u32 s26, s26, Lcode_begin-Lpc0
    s_addc_u32 s27, s27, -1
    s_lshl_b32 s25, s16, 13
    v_lshlrev_b32 v13, 7, v0
    v_add_u32 v13, s25, v13
    v_min_u32 v13, Lcode_end-Lcode_begin-4, v13
    v_mov_b32 v15, s27
    v_add_co_u32 v14, vcc, s26, v13
    s_nop 1
    v_addc_co_u32 v15, vcc, 0, v15, vcc
    global_load_dword v210, v[14:15], off
    """)
    gen_init_misc(g, 144)
    A(f"""
    s_cmp_ge_u32 s17, {NREP}
    s_cbranch_scc1 Lx_2
    s_cmp_lg_u32 s16, 0
    s_cbranch_scc1 Lx_2
    s_lshl_b32 s27, s17, 2
    v_mov_b32 v11, s27
    v_mov_b32 v12, 1
    s_mov_b64 exec, 1
    s_waitcnt vmcnt(1)
    global_store_dword v11, v12, s[{pDBG}:{pDBG+1}] {SC}
    s_mov_b64 exec, -1
Lx_2:
    s_mov_b32 s95, 1
    s_lshr_b32 s17, s2, 3
    s_and_b32 s18, s2, 7
    s_lshl_b32 s19, s2, 1
    s_mov_b32 s96, 0
    s_mov_b32 s97, 0
    s_mov_b32 s99, 0
    s_branch Lb_setup
Lh_restart:
    s_sub_u32 s3, s3, 32
    s_sub_u32 s94, s94, 32
Lh_start:
    s_mov_b32 s95, 0
    s_lshr_b32 s17, s2, 3              ; tb
    s_and_b32 s18, s2, 7               ; cb
    s_lshl_b32 s19, s2, 1
    s_bfe_u32 s25, s2, 0x10003
    s_lshl_b32 s96, s25, 14
    s_add_u32 s97, s96, 65536          ; V blocks 0..2
    s_add_u32 s99, s96, {65536+6*9216}
Lb_setup:
    s_and_b32 s23, s16, 3              ; u
    v_and_b32 v{vT0}, 7, v0            ; cc
    v_lshrrev_b32 v{vT1}, 3, v0        ; tg
    s_lshl_b32 s21, s18, 9
    v_lshlrev_b32 v{vT3}, 6, v{vT0}
    """)
    g.srd(4, pSH, 576*8)
    for i in range(4): A(f"buffer_load_dwordx4 {V(CR+4*i,4)}, v{vT3}, s[4:7], s21 offen offset:{16*i}")
    A(f"""
    s_mul_i32 s20, s17, {64*1152}
    s_lshl_b32 s21, s18, 7
    s_add_u32 s20, s20, s21
    v_mul_u32_u24 v{vT2}, 1152, v{vT1}
    v_lshl_add_u32 v{vT2}, v{vT0}, 4, v{vT2}
    v_add_u32 v{vT2}, s20, v{vT2}
    v_add_u32 v{b5G}, {61*1152}, v{vT2}
    s_mul_i32 s20, s23, {8*1152}
    v_add_u32 v{bVG}, s20, v{vT2}
    v_subrev_u32 v{bKG}, {3*1152}, v{bVG}
    v_lshlrev_b32 v{vL16}, 4, v0
    s_add_u32 s28, s97, 9344
    s_lshr_b32 s25, s23, 1
    s_add_u32 s98, s19, s25            ; channel
    s_cmp_eq_u32 s25, 0
    s_cselect_b32 s96, s96, s28
    s_mul_i32 s25, s25, 4672
    s_add_u32 s97, s97, s25
    s_add_u32 s97, s97, 576
    s_lshl_b32 s25, s19, 1
    s_load_dword s100, s[{pD}:{pD+1}], s25
    s_cmp_eq_u32 s95, 1
    s_cbranch_scc1 Lb_load
Lb_setup2:
    v_lshlrev_b32 v{bRD}, 8, v{vT1}
    v_lshl_add_u32 v{bRD}, v{vT0}, 4, v{bRD}
    s_lshl_b32 s25, s23, 11
    s_add_u32 s25, s25, s99
    v_add_u32 v{bRD}, s25, v{bRD}
    v_lshrrev_b32 v{vT2}, 4, v0
    v_and_b32 v{vT3}, 15, v0
    v_lshlrev_b32 v{vT3}, 7, v{vT3}
    v_lshl_add_u32 v{bBW}, v{vT2}, 4, v{vT3}
    v_add_u32 v{bBW}, s25, v{bBW}
    v_add_u32 v{bBR}, s25, v{vL16}
    v_bfe_u32 v{vT3}, v0, 2, 2
    v_lshl_add_u32 v{bTR}, v{vT2}, 3, v{vT3}
    v_lshlrev_b32 v{bTR}, 7, v{bTR}
    v_and_b32 v{vT3}, 3, v0
    v_lshl_add_u32 v{bTR}, v{vT3}, 3, v{bTR}
    v_lshlrev_b32 v{bPG}, 8, v{vT3}
    v_add_u32 v{bPG}, {UC}, v{bPG}
    s_lshl_b32 s25, s23, 5
    s_add_u32 s25, s25, s99
    v_add_u32 v{bTR}, s25, v{bTR}
    v_lshlrev_b32 v{bUO}, 12, v{vT1}
    v_lshl_add_u32 v{bUO}, v{vT0}, 4, v{bUO}
    s_lshl_b32 s22, s18, 2
    s_add_u32 s22, s22, s23
    s_lshl_b32 s22, s22, 16
    s_lshl_b32 s25, s17, 7
    s_add_u32 s22, s22, s25
    s_add_u32 s22, s22, {UT}
    v_add_u32 v{bUO}, s22, v{bUO}
    v_min_u32 v{bZP}, 35, v0
    v_lshlrev_b32 v{bZP}, 4, v{bZP}
    s_sub_u32 s25, s97, 576
    v_add_u32 v{bZP}, s25, v{bZP}
    s_waitcnt lgkmcnt(0)
    """)
    conv_setup(A, R)
    A("s_mov_b32 s29, 0xffff0000\ns_mov_b32 s28, 0xffff\ns_waitcnt vmcnt(0)")
    for c in range(8):
        for j in range(4):
            d, e, src = CM + 8*(c >> 1) + 2*j + (c & 1), c & 1, CR + 2*c + (j >> 1)
            if (j & 1) == e: A(f"v_and_b32 v{d}, {'s29' if e else 's28'}, v{src}")
            elif e: A(f"v_lshlrev_b32 v{d}, 16, v{src}")
            else: A(f"v_lshrrev_b32 v{d}, 16, v{src}")
    A(f"""
    s_cmp_eq_u32 s95, 0
    s_cbranch_scc1 Lh_kv
    s_barrier
    s_branch Lb_s0
Lh_kv:
    """)
    EARLY = opt('S1EARLY', 0)
    def kv_first():
        g.wait_words(SY, 9, T, sl=2)
        A(f"s_setprio {opt('CPRIO', 1)}")
        A("s_cmp_ge_u32 s2, 224\ns_cbranch_scc1 Lh_kx")
        dma_n(g, 5)
        A("s_waitcnt vmcnt(15)")
        g.gsync(1 + 10*(EARLY > 0), T)
        avail_add(g, 4)
        A("s_branch Lh_ky\nLh_kx:")
        dma_skip(A, 2)
        dma_n(g, 3)
        g.srd(4, pH, XB)
        A("s_waitcnt vmcnt(0)")
        g.gsync(2, T)
        A("s_cmp_lg_u32 s16, 4\ns_cbranch_scc1 Lc_k")
        g.wait_words(SY, 10, T, sl=4)
        avail_add(g, 6)
        A("s_branch Lc_k\nLh_ky:")
    head_params(A)
    dma_skip(A, 1)
    if not EARLY: kv_first()
    elif EARLY == 2:
        A("s_cmp_ge_u32 s2, 224\ns_cbranch_scc1 Lb_load")
        g.wait_words(SY, 5, T, sl=2)
    A(f"""
Lb_load:
    s_and_b32 s28, s16, 3
    s_lshl_b32 s25, s28, 10
    s_add_u32 s25, s25, s99
    """)
    g.srd(4, pK, XB)
    A(f"""
    s_mov_b32 m0, s25
    s_add_u32 s27, s25, 4096
    buffer_load_dwordx4 v{bKG}, s[4:7], 0 offen {NTB} lds
    s_mov_b32 m0, s27
    v_add_u32 v{bKG}, {32*1152}, v{bKG}
    s_add_u32 s27, s99, 8192
    buffer_load_dwordx4 v{bKG}, s[4:7], 0 offen {NTB} lds
    s_mov_b32 m0, s27
    s_add_u32 s27, s25, 9216
    buffer_load_dwordx4 v{b5G}, s[4:7], 0 offen lds
    s_mov_b32 s4, s{pV}
    s_mov_b32 s5, s{pV+1}
    s_mov_b32 m0, s27
    s_add_u32 s27, s27, 4096
    buffer_load_dwordx4 v{bVG}, s[4:7], 0 offen {NTB} lds
    s_mov_b32 m0, s27
    s_mov_b32 s27, {32*1152}
    buffer_load_dwordx4 v{bVG}, s[4:7], s27 offen {NTB} lds
    s_mov_b32 s4, s{pH}
    s_mov_b32 s5, s{pH+1}
    s_and_b32 s25, s28, 1
    s_lshl_b32 s25, s25, 11
    s_lshl_b32 s27, s98, 12
    s_add_u32 s27, s27, s25
    v_lshlrev_b32 v{T}, 3, v{vL16}
    s_mov_b64 exec, 0xffff
    buffer_load_dword v209, v{T}, s[4:7], s27 offen
    s_mov_b64 exec, -1
    s_cmp_eq_u32 s95, 1
    s_cbranch_scc1 Lb_setup2
    """)
    def kv_second(val):
        g.post(val, T)
        A("s_cmp_lg_u32 s16, 4\ns_cbranch_scc1 Lb_a6")
        g.wait_words("s94", val, T)
        avail_add(g, 6)
        A("Lb_a6:")
    if not EARLY:
        A("s_waitcnt vmcnt(6)")
        kv_second(2)
    A("s_waitcnt vmcnt(1)\nLb_s0:")
    g.gsync(3, T)
    g.stamp(1)
    for n in range(5): A(f"ds_read_b128 {V(KR+4*n,4)}, v{bRD} offset:{128*n}")
    for t in range(2): A(f"ds_read_b128 {V(VR+4*t,4)}, v{bRD} offset:{9216+128*t}")
    A("s_mov_b32 s29, 0xffff0000\ns_waitcnt lgkmcnt(2)")
    for j in range(4):
        for d in range(4):
            for t in range(2):
                for e in range(2):
                    u = UU + 4*d + 2*t + e
                    if j == 0: A(f"v_dot2_f32_bf16 v{u}, v{KR+4*(t+3)+d}, v{CM+8*d+e}, 0")
                    else: A(f"v_dot2c_f32_bf16 v{u}, v{KR+4*(t+3-j)+d}, v{CM+8*d+2*j+e}")
    A("s_waitcnt lgkmcnt(0)")
    for d in range(4):
        for t in range(2):
            x = UU + 16 + 4*d + 2*t
            A(f"v_lshlrev_b32 v{x}, 16, v{VR+4*t+d}\nv_and_b32 v{x+1}, s29, v{VR+4*t+d}")
    for i in range(8): A(f"v_pk_mul_f32 {V(UU+2*i,2)}, {V(UU+2*i,2)}, {V(UU+16+2*i,2)}")
    for d in range(4):
        for t in range(2): A(f"v_cvt_pk_bf16_f32 v{OUT+4*t+d}, v{UU+4*d+2*t}, v{UU+4*d+2*t+1}")
    A(f"""
    ds_write_b128 v{bRD}, {V(OUT,4)} offset:9216
    ds_write_b128 v{bRD}, {V(OUT+4,4)} offset:{9216+128}
    s_waitcnt lgkmcnt(0)
    """)
    g.gsync(4, T)
    for i in range(2):
        A(f"ds_read_b64_tr_b16 {V(OUT+4*i,2)}, v{bTR} offset:{9216+4096*i}")
        A(f"ds_read_b64_tr_b16 {V(OUT+4*i+2,2)}, v{bTR} offset:{9216+4096*i+512}")
    A(f"""
    s_mov_b32 s27, 32768
    s_waitcnt lgkmcnt(0)
    ds_write_b128 v{bBW}, {V(OUT,4)}
    ds_write_b128 v{bBW}, {V(OUT+4,4)} offset:64
    ds_read_b128 {V(OUT+8,4)}, v{bBR}
    ds_read_b128 {V(OUT+12,4)}, v{bBR} offset:1024
    s_waitcnt lgkmcnt(0)
    buffer_store_dwordx4 {V(OUT+8,4)}, v{bUO}, s[12:15], 0 offen {SC}
    buffer_store_dwordx4 {V(OUT+12,4)}, v{bUO}, s[12:15], s27 offen {SC}
    """)
    g.stamp(2)
    A("s_and_b32 s25, s16, 3\ns_cmp_lg_u32 s25, 0\ns_cbranch_scc1 Lb_nr" + ("" if EARLY else "\ns_cmp_eq_u32 s95, 0\ns_cbranch_scc1 Lb_nr"))
    g.ready(T)
    A("Lb_nr:\ns_waitcnt vmcnt(0)")
    g.stamp(3)
    g.gsync(5, T)
    A("s_cmp_lt_u32 s16, 4\ns_cbranch_scc1 Lc_m\ns_cmp_eq_u32 s95, 1\ns_cbranch_scc1 Lc_x\nLc_m:")
    A("s_and_b32 s25, s16, 3\ns_cmp_lg_u32 s25, 0\ns_cbranch_scc1 Lc_k0\ns_and_b32 s25, s2, 15\ns_add_u32 s25, s25, 64")
    g.signal("s25", T)
    A("s_cmp_lg_u32 s16, 0\ns_cbranch_scc1 Lc_k0")
    g.wait_words(SY+36, 1, T, n=1, sl=8)
    A("Lc_k0:\ns_cmp_lt_u32 s16, 4\ns_cbranch_scc1 Lattn\nLc_k:")
    if EARLY:
        kv_first()
        dma_n(g, 2)
        A("s_waitcnt vmcnt(10)")
        kv_second(12)
    else: dma_n(g, 2)
    A("s_waitcnt vmcnt(0)")
    g.post(6 + 10*(EARLY > 0), T)
    A(f"""
    s_lshr_b32 s25, s2, 3
    s_lshl_b32 s25, s25, 2
    s_add_u32 s25, s25, s20            ; 0..127
    s_mul_i32 s27, s25, {41*128}
    v_lshlrev_b32 v{T}, 7, v0
    v_add_u32 v{T+1}, s27, v{T}
    v_min_u32 v{T+1}, {WOB-4}, v{T+1}
    s_mov_b32 exec_hi, 0x1ff
    global_load_dword v210, v{T+1}, s[{pWO}:{pWO+1}]
    s_and_b32 s27, s2, 7
    s_mul_i32 s27, s27, {256*1152}
    s_mul_i32 s25, s25, {18*128}
    s_add_u32 s27, s27, s25
    v_add_u32 v{T+1}, s27, v{T}
    s_mov_b64 exec, 0x3ffff
    global_load_dword v211, v{T+1}, s[{pQ}:{pQ+1}]
    s_mov_b64 exec, -1
    """)
    A("s_cmp_lg_u32 s16, 4\ns_cbranch_scc1 Lc_w")
    g.wait_words("s94", 6 + 10*(EARLY > 0), T)
    avail_add(g, 4)
    g.poll(64, 16, 16, T, sl=opt('USLEEP', 8))
    wait_progress(g, 7, 4)
    A("s_branch Lc_pd\nLc_x:\ns_cmp_lg_u32 s16, 4\ns_cbranch_scc1 Lc_w\ns_and_b32 s25, s2, 3\ns_add_u32 s25, s25, 80")
    g.signal("s25", T)
    g.poll(80, 4, 8, T, sl=2)
    A(f"""
Lc_pd:
    s_sub_u32 s25, 2, s95
    v_mov_b32 v{T}, {SY+36}
    v_mov_b32 v{T+1}, s25
    ds_write_b32 v{T}, v{T+1}
Lc_w:
    s_sub_u32 s91, 2, s95
    """)
    g.wait_words(SY+36, "s91", T, n=1, sl=opt('WSL', 5))
    g.stamp(4)
    A(f"""
    s_and_b32 s28, s16, 1
    s_lshl_b32 s25, s28, 11
    s_add_u32 s27, s97, s25
    s_mov_b32 m0, s27
    s_lshl_b32 s27, s98, 12
    s_add_u32 s27, s27, s25
    buffer_load_dwordx4 v{vL16}, s[4:7], s27 offen lds
    buffer_load_dwordx4 v{vL16}, s[4:7], s27 offen offset:1024 lds
    ds_write_b128 v{bZP}, {V(R.acc,4)}
    s_mul_i32 s25, s28, {2*4160}
    s_add_u32 s25, s25, s96
    s_add_u32 s25, s25, 64
    s_lshl_b32 s27, s28, 2
    s_sub_u32 s27, s101, s27
    s_sub_u32 s27, s27, {YT-UT}
    """)
    for c in range(2):
        A("s_mov_b32 m0, s25\ns_nop 0")
        for i in range(4): A(f"buffer_load_dwordx4 v{vL16}, s[12:15], s27 offen offset:{1024*i} lds {SC}")
        if c == 0: A("s_add_u32 s25, s25, 4160\ns_sub_u32 s27, s27, 2")
    A("s_waitcnt vmcnt(0) lgkmcnt(0)")
    g.gsync(17, T)
    A(f"s_setprio {opt('VPRIO', 0)}")
    g.stamp(5)
    A("s_cmp_eq_u32 s28, 0\ns_cbranch_scc0 Lc_set1")
    kconv.conv_main(A, R, "Lc_l0", 0)
    A("s_setprio 1")
    conv_epi(A, R, 0, "s96", "s100", "s101", "s[12:15]", SC)
    A("s_branch Lc_done\nLc_set1:")
    kconv.conv_main(A, R, "Lc_l1", 1)
    A("s_setprio 1")
    conv_epi(A, R, 1, "s96", "s100", "s101", "s[12:15]", SC)
    A("Lc_done:\ns_waitcnt vmcnt(0)")
    g.stamp(6)
    g.gsync(18, T)
    A("s_and_b32 s25, s16, 3\ns_cmp_lg_u32 s25, 0\ns_cbranch_scc1 Lc_e\ns_and_b32 s25, s2, 15\ns_add_u32 s25, s25, 16")
    g.signal("s25", T)
    A("Lc_e:\ns_cmp_eq_u32 s95, 0\ns_cbranch_scc1 Lh_p3\ns_branch Lh_restart")

def conv_epi(A, R, st, s_slot, s_D, s_out, srd, flags=""):
    S_ = kconv.SETS[st]
    A(f"v_add_u32 v{R.t0}, {s_slot}, v{R.aU}")
    for ti, tau in enumerate(S_): A(f"ds_read_b64 {V(R.A[0]+2*ti,2)}, v{R.t0} offset:{64+512*tau}")
    A("s_waitcnt lgkmcnt(0)")
    for ti in range(4):
        for e in range(4): A(f"v_dot2c_f32_bf16 v{R.acc+4*ti+e}, v{R.A[0]+2*ti+(e >> 1)}, v{194+(e & 1)}")
    A("s_nop 1")
    for ti, tau in enumerate(S_):
        t = R.B[0]+2*ti; ac = R.acc+4*ti
        A(f"""
        v_cvt_pk_bf16_f32 v{t}, v{ac}, v{ac+1}
        v_cvt_pk_bf16_f32 v{t+1}, v{ac+2}, v{ac+3}
        buffer_store_dwordx2 {V(t,2)}, v{R.aU}, {srd}, {s_out} offen offset:{512*tau} {flags}
        """)

def conv_setup(A, R):
    A(f"""
    v_bfe_u32 v{R.t0}, v0, 2, 2
    v_mul_u32_u24 v{R.aA}, 4160, v{R.t0}
    v_and_b32 v{R.t0}, 3, v0
    v_lshl_add_u32 v{R.aA}, v{R.t0}, 3, v{R.aA}
    v_lshrrev_b32 v{R.t0}, 4, v0
    v_lshlrev_b32 v{R.aB}, 4, v{R.t0}
    v_sub_u32 v{R.aA}, v{R.aA}, v{R.aB}
    s_add_u32 s25, s96, {64+32-8}
    v_add_u32 v{R.aA}, s25, v{R.aA}
    v_and_b32 v{R.aU}, 15, v0
    v_lshlrev_b32 v{R.aU}, 5, v{R.aU}
    v_add_u32 v{R.aB}, v{R.aB}, v{R.aU}
    s_sub_u32 s25, s97, 96
    v_add_u32 v{R.aB}, s25, v{R.aB}
    v_lshl_add_u32 v{R.aU}, v{R.t0}, 3, v{R.aU}
    v_and_b32 v{R.mask}, 15, v0
    v_lshlrev_b32 v{R.t0}, 3, v{R.t0}
    v_sub_u32 v{R.t0}, v{R.mask}, v{R.t0}
    v_add_u32 v{R.t0}, 17, v{R.t0}
    v_mov_b32 v{R.acc}, 0xffff
    v_mov_b32 v{R.acc+1}, 0xffff0000
    """)
    for d in range(4):
        A(f"""
        v_cmp_lt_i32 vcc, {2*d}, v{R.t0}
        v_cmp_lt_i32 s[26:27], {2*d+1}, v{R.t0}
        s_nop 0
        v_cndmask_b32 v{R.mask+d}, 0, v{R.acc}, vcc
        v_cndmask_b32 v{R.acc+2}, 0, v{R.acc+1}, s[26:27]
        v_or_b32 v{R.mask+d}, v{R.mask+d}, v{R.acc+2}
        """)
    for i in range(16): A(f"v_mov_b32 v{R.acc+i}, 0")
    A(f"""
    s_lshl_b32 s101, s98, 12
    s_add_u32 s101, s101, {YT}
    s_lshl_b32 s25, s100, 16
    s_and_b32 s27, s100, 0xffff0000
    s_bitcmp0_b32 s98, 0
    s_cselect_b32 s100, s25, s27
    s_lshr_b32 s25, s100, 16
    v_mov_b32 v194, s25
    v_mov_b32 v195, s100
    """)

def zero_acc(A):
    for i in range(16): A(f"v_mov_b32 v{OA+i}, 0")
    for i in range(16): A(f"v_mov_b32 v{OB+i}, 0")
    for i in range(8): A(f"v_mov_b32 v{PB+i}, 0")
    for i in range(8): A(f"v_mov_b32 v{VB[1]+i}, 0")

def gen_attn(g):
    A = g.A
    A("Lattn:\ns_setprio 2")
    head_params(A)
    A(f"""
    v_lshlrev_b32 v{vL8}, 3, v0
    s_lshl_b32 s31, s18, 3
    s_lshl_b32 s32, s20, 1
    s_add_u32 s32, s31, s32
    s_mul_i32 s34, s21, {MB}
    s_add_u32 s34, s34, s39
    s_lshl_b32 s35, s32, 10
    s_add_u32 s35, s35, s34
    s_add_u32 s34, s39, {LEFT}
    s_lshl_b32 s37, s32, 8
    s_add_u32 s37, s37, s34
    v_and_b32 v{aT1}, 31, v0
    v_lshrrev_b32 v{aT0}, 5, v0
    v_mul_u32_u24 v{aT3}, 288, v{aT0}
    v_lshl_add_u32 v{aT2}, v{aT1}, 4, v{aT3}
    v_add_u32 v{vV0}, s23, v{aT2}
    v_mov_b32 v{vVinc}, {4*VT}
    v_mov_b32 v{aT2}, {CONST+240}
    v_mov_b32 v{aT3}, {CONST+224}
    v_cmp_eq_u32 vcc, 18, v{aT1}
    v_subrev_u32 v{aT0}, 20, v{aT1}
    v_cmp_gt_u32 s[52:53], 8, v{aT0}
    v_cndmask_b32 v{aT2}, v{aT2}, v{aT3}, vcc
    v_mov_b32 v{aT3}, {CONST+176}
    v_cmp_lt_u32 vcc, 17, v{aT1}
    v_cndmask_b32 v{aT2}, v{aT2}, v{aT3}, s[52:53]
    s_mov_b32 s50, 0
    v_cndmask_b32 v{vV0}, v{vV0}, v{aT2}, vcc
    v_cndmask_b32 v{vVinc}, v{vVinc}, 0, vcc
    v_cmp_gt_u32 vcc, 32, v0
    s_cmp_eq_u32 s21, 0
    s_cselect_b64 s[52:53], -1, 0
    s_cselect_b64 s[54:55], 0, -1
    s_and_b64 s[56:57], s[52:53], vcc
    s_and_b64 s[58:59], s[54:55], vcc
    s_andn2_b64 s[60:61], s[52:53], vcc
    s_andn2_b64 s[62:63], s[54:55], vcc
    v_lshlrev_b32 v{aT2}, 3, v{aT1}
    v_add_u32 v{vKM0}, s22, v{vL8}
    v_add_u32 v{vKL0}, s24, v{vL8}
    s_lshl_b32 s25, s20, 8
    s_add_u32 s25, s25, {UC}
    v_lshlrev_b32 v{vCA}, 2, v0
    v_add_u32 v{vCA}, s25, v{vCA}
    v_mov_b32 v{vOne}, 2
    s_mul_i32 s25, s32, {36*1024}
    s_add_u32 s25, s25, {OF}
    s_lshl_b32 s48, s17, 10
    s_add_u32 s48, s48, s25
    s_lshl_b32 s49, s17, 7
    s_add_u32 s49, s49, s25
    s_add_u32 s49, s49, 32768
    """)
    zero_acc(A)
    A("s_cmp_lg_u32 s16, 0\ns_cbranch_scc1 La_w")
    if opt('NEED', 1):
        A(f"""
        s_mul_i32 s25, s26, 36
        s_mov_b64 s[28:29], 0
        s_lshr_b32 s27, s25, 7
        s_bitset1_b32 s28, s27
        s_add_u32 s27, s25, 35
        s_lshr_b32 s27, s27, 7
        s_bitset1_b32 s28, s27
        s_add_u32 s27, s25, 576
        s_lshr_b32 s27, s27, 7
        s_bitset1_b32 s28, s27
        s_add_u32 s27, s25, 611
        s_lshr_b32 s27, s27, 7
        s_bitset1_b32 s28, s27
        s_add_u32 s27, s25, 1152
        s_lshr_b32 s27, s27, 7
        s_bitset1_b32 s28, s27
        s_add_u32 s27, s25, 1187
        s_lshr_b32 s27, s27, 7
        s_bitset1_b32 s28, s27
        """)
    if opt('HIER', 0): g.poll(GOFF//4, 14, 16, 204, sl=opt('P1SL', 1), mask="s[28:29]", sh=2)
    else: g.poll(0, 14, 16, 204, mask="s[28:29]")
    A(f"""
    v_mov_b32 v{TMP}, {SY+32}
    v_mov_b32 v{TMP+1}, 1
    ds_write_b32 v{TMP}, v{TMP+1}
La_w:
    """)
    g.wait_words(SY+32, 1, TMP, n=1)
    g.stamp(7)
    dma_iter(A)
    A(f"""
    buffer_load_dwordx2 {V(Q1A,2)}, v{vL8}, s[12:15], s35 offen {SC}
    buffer_load_dwordx2 {V(Q1A+2,2)}, v{vL8}, s[12:15], s35 offen offset:512 {SC}
    buffer_load_dwordx2 {V(Q1B,2)}, v{vL8}, s[12:15], s35 offen offset:1024 {SC}
    buffer_load_dwordx2 {V(Q1B+2,2)}, v{vL8}, s[12:15], s35 offen offset:1536 {SC}
    buffer_load_dwordx2 {V(Q2A,2)}, v{aT2}, s[12:15], s37 offen {SC}
    buffer_load_dwordx2 {V(Q2B,2)}, v{aT2}, s[12:15], s37 offen offset:256 {SC}
    s_cmp_lt_u32 s2, 224
    s_cbranch_scc1 La_n12
    """)
    dma_n(g, 2)
    A(f"""
    s_mov_b32 s30, 1
    s_waitcnt vmcnt(10)
    s_branch La_n13
La_n12:
    s_mov_b32 s30, 0
    s_waitcnt vmcnt(0)
La_n13:
    """)
    g.post(9, TMP)
    for Q in (Q2A, Q2B):
        A(f"""
        v_cndmask_b32 v{Q+2}, 0, v{Q}, s[60:61]
        v_cndmask_b32 v{Q+3}, 0, v{Q+1}, s[62:63]
        v_cndmask_b32 v{Q}, 0, v{Q}, s[56:57]
        v_cndmask_b32 v{Q+1}, 0, v{Q+1}, s[58:59]
        """)
    g.wait_words(SY, 9, TMP)
    g.stamp(8)
    A(f"""
    ds_read2st64_b64 {V(KB[0],4)}, v{vKM0} offset0:0 offset1:1
    ds_read2st64_b64 {V(KL,4)}, v{vKL0} offset0:0 offset1:1
    s_waitcnt lgkmcnt(0)
    {m16(SA, KB[0], Q1A, 0)}
    {m16(SB, KB[0], Q1B, 0)}
    {m8(SA, KL, Q2A)}
    {m8(SB, KL, Q2B)}
    s_nop 10
    """)
    maxtree(A, aT0, SA)
    maxtree(A, aT1, SB)
    A(f"""
La_setm:
    v_mov_b32 v{aT2}, v{aT0}
    v_mov_b32 v{aT3}, v{aT1}
    v_mov_b32 v{vKM}, v{vKM0}
    v_mov_b32 v{vKL}, v{vKL0}
    v_permlane32_swap_b32 v{aT0}, v{aT2}
    v_permlane32_swap_b32 v{aT1}, v{aT3}
    v_mov_b32 v{vV}, v{vV0}
    ds_read_b128 {V(VB[0],4)}, v{vV0}
    ds_read_b128 {V(VB[0]+4,4)}, v{vV0} offset:576
    v_max_f32 v{aT0}, v{aT0}, v{aT2}
    v_max_f32 v{aT1}, v{aT1}, v{aT3}
    """)
    for i in range(16): A(f"v_sub_f32 v{NMA+i}, 0, v{aT0}")
    A(f"""
    v_sub_f32 v{NMB}, 0, v{aT1}
    s_mov_b32 s51, 0
    {m16(SA, KB[0], Q1A, V(NMA,16))}
    {m8(SA, KL, Q2A)}
    """)
    for i in range(1, 16): A(f"v_sub_f32 v{NMB+i}, 0, v{aT1}")
    A("s_setprio 0")
    g.stamp(9)
    if g.dbg and 'its' in EXP: A("s_mov_b32 s55, 0\nv_mov_b32 v214, 0\nv_writelane_b32 v214, s88, 0\nv_writelane_b32 v214, s90, 32")
    A(".p2align 6\nLa_loop:")
    KLB = [KL, KL2]
    for J in range(8):
        j = J & 3; hb = J >> 2
        b = j & 1; nb = b ^ 1
        koff = 2*(J+1)
        ex = [[f"ds_read2st64_b64 {V(KB[nb],4)}, v{vKM} offset0:{koff} offset1:{koff+1}"], [], [], ["s_waitcnt lgkmcnt(0)"]]
        if J == 0: ex[2] = ["s_min_u32 s53, s51, 12"]
        if J == 1: ex[0].append(f"ds_add_rtn_u32 v{vCR}, v{vCA}, v{vOne}")
        if J == 2: ex[2] = ["s_lshr_b32 s52, s52, 8"]
        if j == 3:
            ex[0].append(f"ds_read2st64_b64 {V(KLB[hb ^ 1],4)}, v{vKL} offset0:{2*hb+2} offset1:{2*hb+3}")
            ex[1] = [f"v_add_u32 v{vV}, v{vVinc}, v{vV}"]
        if J == 7: ex[2] = ["s_cmp_lt_u32 s51, 16"]
        klp = KLB[hb] + 2*(j >> 1)
        phase(A, SA, PA, [m16(SB, KB[b], Q1B, V(NMB,16)), m8(SB, klp, Q2B + 2*(j & 1)),
                          m16(OB, VB[nb], PB, V(OB,16)), m16(OB, VB[nb]+4, PB+4, V(OB,16))], ex)
        jn = (j+1) & 3; hn = ((J+1) & 7) >> 2
        klp = KLB[hn] + 2*(jn >> 1)
        ex = [[], [], [f"ds_read_b128 {V(VB[nb],4)}, v{vV} offset:{jn*VT}"], [f"ds_read_b128 {V(VB[nb]+4,4)}, v{vV} offset:{jn*VT+576}"]]
        if J == 0: ex[0] = ["s_add_u32 s51, s51, 2"]
        if J == 1: ex[1] = [f"v_readfirstlane_b32 s52, v{vCR}"]
        if J == 6:
            ex[0] = ["s_cmp_ge_u32 s53, s52"]
            ex[3] += ["s_cbranch_scc1 La_chk", "La_chkd:"]
        if J == 7:
            ex[1] = [f"v_add_u32 v{vKM}, 8192, v{vKM}", f"v_add_u32 v{vKL}, 2048, v{vKL}"]
        phase(A, SB, PB, [m16(SA, KB[nb], Q1A, V(NMA,16)), m8(SA, klp, Q2A + 2*(jn & 1)),
                          m16(OA, VB[b], PA, V(OA,16)), m16(OA, VB[b]+4, PA+4, V(OA,16))], ex)
    if g.dbg and 'its' in EXP:
        A(f"""
        s_memrealtime s[88:89]
        s_memtime s[90:91]
        s_mov_b32 m0, s51
        s_waitcnt lgkmcnt(0)
        v_writelane_b32 v214, s88, m0
        s_add_u32 m0, s51, 32
        s_nop 0
        v_writelane_b32 v214, s90, m0
        s_cmp_lt_u32 s51, 16
        """)
    A("s_cbranch_scc1 La_loop")
    A(f"""
    s_setprio 2
    {m16(OB, VB[1], PB, V(OB,16))}
    {m16(OB, VB[1]+4, PB+4, V(OB,16))}
    """)
    g.stamp(10)
    A(f"v_lshlrev_b32 v{aT2}, 2, v0\nv_mov_b32 v{aT3}, 0")
    for n, (O, P) in enumerate(((OA, PA), (OB, PB))):
        A(f"""
        v_mov_b32 v{aT0}, v{O+10}
        v_mov_b32 v{aT1}, v{O+10}
        """)
        for i in range(11): A(f"v_add_f32 v{aT3}, |v{O+i}|, v{aT3}")
        A(f"""
        v_permlane32_swap_b32 v{aT0}, v{aT1}
        s_nop 1
        v_rcp_f32 v{aT0}, v{aT0}
        s_add_u32 s25, s48, {n*36*1024}
        s_add_u32 s27, s49, {n*36*1024}
        """)
        for i in range(10): A(f"v_mul_f32 v{O+i}, v{O+i}, v{aT0}")
        for i in range(5): A(f"v_cvt_pk_bf16_f32 v{P+i}, v{O+2*i}, v{O+2*i+1}")
        A(f"""
        buffer_store_dwordx4 {V(P,4)}, v{vL16}, s[12:15], s25 offen {SC}
        s_mov_b32 exec_hi, 0
        buffer_store_dword v{P+4}, v{aT2}, s[12:15], s27 offen {SC}
        s_mov_b32 exec_hi, -1
        """)
    A(f"""
    v_mov_b32 v{aT1}, 0x71800000
    v_cmp_nlt_f32 vcc, v{aT3}, v{aT1}
    v_mov_b32 v{aT3}, {FLAG}
    v_mov_b32 v{aT2}, 1
    s_cmp_lg_u32 s50, 0
    s_cbranch_scc1 Lp3
    s_cbranch_vccz Lp3
    ds_write_b32 v{aT3}, v{aT2}
    s_branch Lp3
La_chk:
    s_cmp_eq_u32 s30, 0
    s_cbranch_scc1 La_chk0
    s_mov_b32 s30, 0
    s_waitcnt vmcnt(0)
    """)
    g.gsync(10, TMP)
    A(f"""
    v_mov_b32 v{TMP}, {4 << 8}
    ds_add_u32 v{vCA}, v{TMP}
La_chk0:
    s_mov_b32 s93, {SPIN}
La_chk1:
    ds_read_b32 v{vCR}, v{vCA}
    s_waitcnt lgkmcnt(0)
    v_readfirstlane_b32 s52, v{vCR}
    s_lshr_b32 s52, s52, 8
    s_cmp_lt_u32 s53, s52
    s_cbranch_scc1 La_chkd
    s_sleep 1
    s_sub_u32 s93, s93, 1
    s_cmp_lg_u32 s93, 0
    s_cbranch_scc1 La_chk1
    s_branch La_chkd
La_slow:
    s_mov_b32 s50, 1
    s_barrier
    v_mov_b32 v{aT0}, {14 << 8}
    ds_write_b32 v{vCA}, v{aT0}
    v_mov_b32 v{aT3}, {FLAG}
    v_mov_b32 v{aT2}, 0
    ds_write_b32 v{aT3}, v{aT2}
    v_mov_b32 v{vKM}, v{vKM0}
    v_mov_b32 v{vKL}, v{vKL0}
    v_mov_b32 v{aT0}, 0xff800000
    v_mov_b32 v{aT1}, 0xff800000
    s_mov_b32 s51, 16
    s_waitcnt lgkmcnt(0)
    s_barrier
La_maxloop:
    ds_read2st64_b64 {V(KL,4)}, v{vKL} offset0:0 offset1:1
    """)
    for j in range(4):
        A(f"""
        ds_read2st64_b64 {V(KB[0],4)}, v{vKM} offset0:{2*j} offset1:{2*j+1}
        s_waitcnt lgkmcnt(0)
        {m16(SA, KB[0], Q1A, 0)}
        {m16(SB, KB[0], Q1B, 0)}
        {m8(SA, KL+2*(j>>1), Q2A+2*(j&1))}
        {m8(SB, KL+2*(j>>1), Q2B+2*(j&1))}
        s_nop 11
        """)
        maxtree(A, aT0, SA, True)
        maxtree(A, aT1, SB, True)
    A(f"""
    v_add_u32 v{vKM}, 4096, v{vKM}
    v_add_u32 v{vKL}, 1024, v{vKL}
    s_sub_u32 s51, s51, 1
    s_cmp_lg_u32 s51, 0
    s_cbranch_scc1 La_maxloop
    ds_read2st64_b64 {V(KB[0],4)}, v{vKM0} offset0:0 offset1:1
    ds_read2st64_b64 {V(KL,4)}, v{vKL0} offset0:0 offset1:1
    """)
    zero_acc(A)
    A("s_waitcnt lgkmcnt(0)\ns_branch La_setm")

def gen_p3(g):
    A = g.A
    BW, ACC_, AF = 40, 184, 16
    wA = 196
    A(f"""
Lh_slow:
    s_barrier
    """)
    dma_skip(A, -8)
    dma_n(g, 8)
    A(f"""
    s_waitcnt vmcnt(0)
    s_barrier
Lh_p3:
    s_and_b32 s19, s2, 7
    s_lshr_b32 s33, s2, 3
    v_lshlrev_b32 v{TMP}, 7, v0
    s_cmp_ge_u32 s33, 24
    s_cbranch_scc0 Lh_wo
    s_branch Lp3
Lh_wo:
    """)
    g.srd(4, pWO, WOB)

    for i in range(3):
        A(f"""
        v_add_u32 v1, {64*i}, v0
        v_mul_u32_u24 v2, 5462, v1
        v_lshrrev_b32 v2, 16, v2
        v_mul_u32_u24 v3, 12, v2
        v_sub_u32 v1, v1, v3
        v_mul_u32_u24 v2, 1152, v2
        v_lshl_add_u32 v{wA+i}, v1, 4, v2
        """)
    A(f"""
    v_subrev_u32 v{wA+1}, 1024, v{wA+1}
    v_subrev_u32 v{wA+2}, 2048, v{wA+2}
    s_lshr_b32 s25, s33, 2
    s_mul_i32 s28, s25, 192
    s_mul_i32 s25, s20, {16*1152}
    s_add_u32 s28, s28, s25
    """)
    for half, (n, base) in enumerate(((13, "s23"), (15, "s22"))):
        wait_progress(g, n, 6)
        A(f"""
        s_add_u32 s27, s28, {half*288*1152}
        s_mul_i32 s25, s20, 3072
        s_add_u32 s25, s25, {base}
        s_mov_b32 s31, s20
Lo_wo{half}:
        s_mov_b32 m0, s25
        s_add_u32 s31, s31, 4
        buffer_load_dwordx4 v{wA}, s[4:7], s27 offen lds
        buffer_load_dwordx4 v{wA+1}, s[4:7], s27 offen offset:1024 lds
        buffer_load_dwordx4 v{wA+2}, s[4:7], s27 offen offset:2048 lds
        s_add_u32 s27, s27, {4*16*1152}
        s_add_u32 s25, s25, {4*3072}
        s_cmp_lt_u32 s31, 18
        s_cbranch_scc1 Lo_wo{half}
        """)
    A(f"""
Lp3:
    v_mov_b32 v{TMP+1}, {FLAG}
    s_lshl_b32 s30, s18, 2
    s_lshr_b32 s25, s17, 3
    s_add_u32 s30, s30, s25
    s_add_u32 s30, s30, 32
    s_waitcnt vmcnt(0) lgkmcnt(0)
    s_barrier
    ds_read_b32 v{TMP}, v{TMP+1}
    s_and_b32 s19, s2, 7
    s_lshr_b32 s33, s2, 3
    s_waitcnt lgkmcnt(0)
    v_readfirstlane_b32 s25, v{TMP}
    s_cmp_eq_u32 s25, 0
    s_cbranch_scc1 Lp3_ok
    s_cmp_lt_u32 s16, 4
    s_cbranch_scc1 La_slow
    s_branch Lh_slow
Lp3_ok:
    """)
    g.stamp(11)
    A("s_cmp_lg_u32 s16, 7\ns_cbranch_scc1 Lp3_1")
    A("s_lshl_b64 s[28:29], 1, s18")
    g.signal("s30", 14, mask="s[28:29]" if opt('PMASK', 1) else None)
    A(f"""
Lp3_1:
    s_cmp_ge_u32 s33, 24
    s_cbranch_scc1 Lp3_s3
    s_and_b32 s17, s33, 3
    s_lshl_b32 s19, s19, 2
    s_add_u32 s17, s17, s19            ; tb
    s_lshr_b32 s18, s33, 2             ; ng
    s_mov_b32 s28, s23
    s_mov_b32 s29, s22
    s_and_b32 s23, s16, 1
    s_lshr_b32 s24, s16, 1
    v_lshlrev_b32 v12, 4, v0
    s_cmp_ge_u32 s16, 6
    s_cbranch_scc1 Lo_nopre
    v_lshrrev_b32 v1, 5, v0
    v_bfe_u32 v2, v0, 2, 2
    v_bfe_u32 v3, v0, 4, 1
    v_lshlrev_b32 v3, 5, v3
    v_and_b32 v7, 3, v0
    v_lshl_add_u32 v3, v7, 3, v3
    s_lshl_b32 s25, s24, 6
    v_add_u32 v3, s25, v3
    v_lshl_add_u32 v7, v1, 2, v2
    v_mul_u32_u24 v7, 192, v7
    v_add3_u32 v8, v7, v3, s28
    v_add3_u32 v9, v7, v3, s29
    v_mul_u32_u24 v7, 72, v1
    v_lshrrev_b32 v10, 1, v2
    v_mul_u32_u24 v10, 18, v10
    v_add_u32 v7, v7, v10
    v_and_b32 v10, 1, v2
    v_add3_u32 v7, v7, v10, 16
    v_mul_u32_u24 v7, 192, v7
    v_add3_u32 v10, v7, v3, s28
    v_add3_u32 v11, v7, v3, s29
    """)
    for s_ in range(36):
        for e in range(2):
            if s_ < 32: base, off = (8, (18*s_ + 8*e)*192) if s_ < 16 else (9, (18*(s_-16) + 8*e)*192)
            else: base, off = (10 + ((s_-32) >> 1), (144*((s_-32) & 1) + 36*e)*192)
            A(f"ds_read_b64_tr_b16 {V(BW+4*s_+2*e,2)}, v{base} offset:{off}")
        if s_ % 6 == 5: A("s_waitcnt lgkmcnt(4)")
    A("Lo_nopre:")
    g.srd(44, pOUT, OUTB)
    for i in range(16): A(f"v_mov_b32 v{ACC_+i}, 0")
    TR = 81920
    A(f"""
    s_mul_i32 s20, s17, {2*36*1024}
    s_add_u32 s20, s20, {OF}
    s_mul_i32 s21, s23, {36*1024}
    s_add_u32 s20, s20, s21
    s_lshl_b32 s21, s24, 10
    s_add_u32 s20, s20, s21
    s_lshl_b32 s21, s23, 10
    v_add_u32 v13, s21, v12
    v_and_b32 v1, 31, v0
    v_lshlrev_b32 v1, 2, v1
    v_lshrrev_b32 v2, 5, v0
    v_lshl_add_u32 v1, v2, 9, v1
    s_add_u32 s21, s21, 65536
    v_add_u32 v201, s21, v1
    v_add_u32 v202, 2048, v201
    v_add_u32 v203, 4096, v201
    v_add_u32 v204, 6144, v201
    v_and_b32 v1, 31, v0
    s_lshl_b32 s21, s23, 5
    v_add_u32 v1, s21, v1
    v_mul_u32_u24 v1, 208, v1
    v_lshl_add_u32 v1, v2, 3, v1
    s_lshl_b32 s21, s24, 6
    s_add_u32 s21, s21, {TR}
    v_add_u32 v200, s21, v1
    s_mul_i32 s26, s17, {64*2304}
    s_mul_i32 s22, s18, 192
    s_add_u32 s26, s26, s22
    s_lshl_b32 s22, s16, 7
    """)
    for i in range(2):
        A(f"""
        v_add_u32 v1, s22, v0
        v_add_u32 v1, {64*i}, v1
        v_mul_u32_u24 v2, 5462, v1
        v_lshrrev_b32 v2, 16, v2
        v_mul_u32_u24 v3, 12, v2
        v_sub_u32 v1, v1, v3
        v_lshlrev_b32 v1, 4, v1
        v_mul_u32_u24 v3, 208, v2
        v_add_u32 v{4+i}, v3, v1
        v_add_u32 v{4+i}, {TR}, v{4+i}
        v_mul_u32_u24 v3, 2304, v2
        v_add_u32 v{6+i}, v3, v1
        """)
    A("s_lshl_b32 s21, s16, 10\ns_waitcnt lgkmcnt(0)")
    g.stamp(12)
    A("s_cmp_lg_u32 s16, 7\ns_cbranch_scc1 Lp3_h\ns_add_u32 s25, s19, 32")
    g.poll("s25", 4, 8, 208, fast=opt('FASTP', 0))
    A("Lp3_h:\ns_barrier")
    g.stamp(13)
    for rr in range(9):
        A(f"""
        s_mov_b32 m0, s21
        s_add_u32 s21, s21, 8192
        buffer_load_dwordx4 v12, s[12:15], s20 offen lds {SC}
        s_add_u32 s20, s20, 4096
        """)
    AFB = [16, 216]
    def rd(s_, reg):
        off = 2048*s_ - (49152 if s_ >= 24 else 0)
        if s_ < 32: return [f"ds_read_b128 {V(reg,4)}, v{13 if s_ < 24 else 14} offset:{off}"]
        return [f"ds_read2_b32 {V(reg,2)}, v{201+s_-32} offset0:0 offset1:32", f"ds_read2_b32 {V(reg+2,2)}, v{201+s_-32} offset0:64 offset1:96"]
    A("v_add_u32 v14, 49152, v13")
    A("s_waitcnt vmcnt(6)\ns_barrier\ns_cmp_ge_u32 s16, 6\ns_cbranch_scc1 Lo_idle")
    for i in range(6):
        for r in rd(i, AFB[0]+4*i): A(r)
    for grp in range(6):
        nxt = grp + 1
        if nxt < 6 and nxt % 2 == 0: A(f"s_waitcnt vmcnt({6-3*(nxt//2)})\ns_barrier")
        for i in range(6):
            s_ = 6*grp + i
            n_rest = sum(len(rd(x, 0)) for x in range(s_+1, 6*grp+6))
            n_next = sum(len(rd(6*nxt+x, 0)) for x in range(i)) if nxt < 6 else 0
            A(f"s_waitcnt lgkmcnt({min(15, n_rest + n_next)})")
            A(f"v_mfma_f32_32x32x16_bf16 {V(ACC_,16)}, {V(BW+4*s_,4)}, {V(AFB[grp & 1]+4*i,4)}, {V(ACC_,16)}")
            if nxt < 6:
                for r in rd(6*nxt+i, AFB[nxt & 1]+4*i): A(r)
    g.stamp(14)
    A("s_nop 11")
    for q in range(4):
        A(f"""
        v_cvt_pk_bf16_f32 v{AF+2*q}, v{ACC_+4*q}, v{ACC_+4*q+1}
        v_cvt_pk_bf16_f32 v{AF+2*q+1}, v{ACC_+4*q+2}, v{ACC_+4*q+3}
        ds_write_b64 v200, {V(AF+2*q,2)} offset:{16*q}
        """)
    A(f"""
    s_waitcnt lgkmcnt(0)
    s_barrier
    ds_read_b128 {V(AF,4)}, v4
    ds_read_b128 {V(AF+4,4)}, v5
    s_waitcnt lgkmcnt(1)
    buffer_store_dwordx4 {V(AF,4)}, v6, s[44:47], s26 offen {SC}
    s_waitcnt lgkmcnt(0)
    buffer_store_dwordx4 {V(AF+4,4)}, v7, s[44:47], s26 offen {SC}
    s_branch Lfin
Lo_idle:
    s_waitcnt vmcnt(3)
    s_barrier
    s_waitcnt vmcnt(0)
    s_barrier
    s_branch Lfin
Lp3_s3:
    s_sub_u32 s20, s33, 24
    s_lshl_b32 s17, s19, 3
    s_add_u32 s17, s17, s20
    s_mov_b64 s[6:7], s[{pOUT}:{pOUT+1}]
    s_mov_b64 s[48:49], s[{pWS}:{pWS+1}]
    s_mov_b64 s[50:51], s[{pQ}:{pQ+1}]
    """)
    g.poll(16, 16, 18, 16)
    k3.gen_stage3(A, "Ls3", False, SC)
    A("Lfin:")
    g.end()

def gen(name, dbg=False):
    g = G(dbg); A = g.A
    A("Lcode_begin:")
    A(f"""
    s_cmp_ge_u32 s2, 256
    s_cbranch_scc1 Lend
    s_load_dwordx16 s[64:79], s[0:1], 0
    s_load_dwordx8 s[80:87], s[0:1], 64
    v_lshrrev_b32 v1, 6, v0
    v_and_b32 v0, 63, v0
    v_readfirstlane_b32 s16, v1
    """)
    if dbg: A(f"v_mov_b32 v{vST}, 0")
    g.stamp(0)
    A(f"""
    s_lshl_b32 s3, s16, 2
    s_add_u32 s3, s3, {SY}
    s_and_b32 s94, s3, {0xffffffff & ~15}
    s_cmp_ge_u32 s2, 224
    s_cbranch_scc1 Ls1
    """)
    gen_gemm(g)
    A("Ls1:")
    gen_stage1(g)
    gen_attn(g)
    gen_p3(g)
    A("Lend:\ns_endpgm\nLcode_end:")
    return A.text()

if __name__ == "__main__":
    import sys
    out = sys.argv[1]; dbg = len(sys.argv) > 2 and sys.argv[2] == "dbg"
    name = "concat_heads__softmax_full_mha__ssm_conv_h3__prompt_kernel"
    HDR = open("concat_heads__softmax_full_mha__ssm_conv_h3__prompt.s.ref").read().split("; Override launch")[0]
    s = HDR
    if (dbg and not os.environ.get('DD') and not os.environ.get('AMP')) or 'list' in EXP: s += f"; @launch kernel={name} grid=(256,1,1) block=(512,1,1) lds={LDS_BYTES}\n"
    else: s += f"; @launch grid=(256,1,1) block=(512,1,1) lds={LDS_BYTES}\n"
    s += '.amdgcn_target "amdgcn-amd-amdhsa--gfx950"\n.text\n' + kernel_head(name) + gen(name, dbg)
    s += '.section .rodata,"a"\n' + kernel_desc(name, NVGPR, 102)
    open(out, "w").write(s)
```

```python
import os, struct, math
from asmlib import *
from layout import *
import kconv
EXP = os.environ.get('FEXP', '').split(',')
def opt(name, default): return int(os.environ.get(name, default))

CS_BITS = struct.unpack("<I", struct.pack("<f", math.log2(math.e)/math.sqrt(18)))[0]
XB, WB, OUTB, WOB = 2048*1152, 576*3456, 2048*2304, 576*1152
NVGPR = 248
LDS_BYTES = 163840
vST = 215
pX, pW, pWO, pQ, pK, pV, pSH, pH, pD, pOUT, pDBG, pWS = [64+2*i for i in range(12)]
WIN = 65536 + VSZ + 16384
CONST = WIN
UC = WIN + 4352
XCH = WIN + 6144
SY = WIN + 5376
SC = "sc1"
NTG = 'nt' if 'ntg' in EXP else ''
NTB = 'nt' if 'ntb' in EXP else ''
SPIN = 200000
NREP = opt('NREP', 8)
GOFF = 120*256

class G:
    def __init__(self, dbg):
        self.A = Asm(); self.dbg = dbg; self.n = 0
    def lab(self, p="L"):
        self.n += 1; return f"{p}{self.n}"
    def stamp(self, i):
        if self.dbg:
            self.A(f"""
            s_memrealtime s[88:89]
            s_memtime s[90:91]
            s_waitcnt lgkmcnt(0)
            v_writelane_b32 v{vST}, s88, {i}
            v_writelane_b32 v{vST}, s90, {32+i}
            """)
    def srd(self, d, p, n):
        self.A(f"s_mov_b32 s{d}, s{p}\ns_mov_b32 s{d+1}, s{p+1}\ns_mov_b32 s{d+2}, {n}\ns_mov_b32 s{d+3}, 0x20000")
    def end(self):
        A = self.A
        if self.dbg:
            A("s_mov_b64 exec, -1\ns_waitcnt vmcnt(0)")
            self.stamp(31)
            A(f"""
            s_lshl_b32 s25, s2, 3
            s_add_u32 s25, s25, s16
            s_lshl_b32 s25, s25, 8
            s_add_u32 s25, s25, {STAMP}
            v_lshlrev_b32 v1, 2, v0
            buffer_store_dword v{vST}, v1, s[12:15], s25 offen
            s_add_u32 s25, s25, {2048*256}
            buffer_store_dword v214, v1, s[12:15], s25 offen
            """)
        amp = os.environ.get('AMP')
        if self.dbg and amp:
            wg, w, i, j = [int(x) for x in amp.split(',')]
            A(f"""
            s_cmp_lg_u32 s2, {wg}
            s_cbranch_scc1 Lam_e
            s_cmp_lg_u32 s16, {w}
            s_cbranch_scc1 Lam_e
            v_readlane_b32 s40, v{vST}, {i}
            v_readlane_b32 s41, v{vST}, {j}
            s_memrealtime s[42:43]
            s_nop 3
            s_sub_u32 s41, s41, s40
            s_min_u32 s41, s41, 10000
            s_lshl_b32 s41, s41, 3
            s_add_u32 s41, s41, {os.environ.get('AMPC', '0')}
            s_waitcnt lgkmcnt(0)
Lam_l:
            s_memrealtime s[44:45]
            s_waitcnt lgkmcnt(0)
            s_sub_u32 s44, s44, s42
            s_cmp_lt_u32 s44, s41
            s_cbranch_scc1 Lam_l
Lam_e:
            """)
        dd = os.environ.get('DD')
        if self.dbg and dd:
            wg, w, *idx = [int(x) for x in dd.split(',')]
            A(f"""
            s_cmp_lg_u32 s2, {wg}
            s_cbranch_scc1 Ldd_e
            s_cmp_lg_u32 s16, {w}
            s_cbranch_scc1 Ldd_e
            v_readlane_b32 s40, v{vST}, 0
            v_mov_b32 v2, 0
            """)
            for k, i in enumerate(idx):
                A(f"""
                v_readlane_b32 s41, v{vST}, {i}
                s_nop 3
                s_sub_u32 s41, s41, s40
                v_mov_b32 v3, s41
                global_store_dword v2, v3, s[{pDBG}:{pDBG+1}] offset:{32+4*k}
                """)
            A("Ldd_e:")
        A("s_endpgm")
    def post(self, val, t):
        self.A(f"""
        v_mov_b32 v{t}, s3
        v_mov_b32 v{t+1}, {val}
        ds_write_b32 v{t}, v{t+1}
        """)
    def wait_words(self, addr, val, t, n=4, sl=1):
        l = self.lab("Lw"); d = self.lab("Ld")
        rd = f"ds_read_b128 {V(t,4)}, v{t+4}" if n == 4 else f"ds_read_b32 v{t}, v{t+4}"
        mn = f"v_min_u32 v{t}, v{t}, v{t+1}\nv_min3_u32 v{t}, v{t}, v{t+2}, v{t+3}\ns_nop 0" if n == 4 else ""
        self.A(f"""
        v_mov_b32 v{t+4}, {addr}
        s_mov_b32 s93, {SPIN}
{l}:
        {rd}
        s_waitcnt lgkmcnt(0)
        {mn}
        v_readfirstlane_b32 s92, v{t}
        s_cmp_ge_u32 s92, {val}
        s_cbranch_scc1 {d}
        s_sleep {sl}
        s_sub_u32 s93, s93, 1
        s_cmp_lg_u32 s93, 0
        s_cbranch_scc1 {l}
{d}:
        """)
    def gsync(self, val, t):
        self.post(val, t)
        self.wait_words("s94", val, t)
    def ready(self, t):
        l = self.lab("Lr"); d = self.lab("Ld")
        self.A(f"""
        v_and_b32 v{t+1}, {NREP-1}, v0
        v_lshlrev_b32 v{t+1}, 2, v{t+1}
        s_mov_b32 s93, {SPIN}
{l}:
        global_load_dword v{t}, v{t+1}, s[{pDBG}:{pDBG+1}] {SC}
        s_waitcnt vmcnt(0)
        v_cmp_eq_u32 vcc, 0, v{t}
        s_nop 3
        s_cmp_eq_u64 vcc, 0
        s_cbranch_scc1 {d}
        s_sleep 2
        s_sub_u32 s93, s93, 1
        s_cmp_lg_u32 s93, 0
        s_cbranch_scc1 {l}
{d}:
        """)
    def signal(self, sidx, t, mask=None):
        self.A(f"""
        s_lshl_b32 s92, {sidx}, 8
        s_add_u32 s92, s92, {CNT}
        v_lshlrev_b32 v{t}, 15, v0
        v_mov_b32 v{t+1}, 1
        s_mov_b64 exec, {mask or (1 << NREP) - 1}
        buffer_atomic_add v{t+1}, v{t}, s[12:15], s92 offen {SC}
        s_mov_b64 exec, -1
        """)
    def poll(self, first, n, target, t, sl=None, fast=False, mask=None, sh=8):
        l = self.lab("Lp"); d = self.lab("Ld")
        self.A(f"""
        v_min_u32 v{t+1}, {n-1}, v0
        v_add_u32 v{t+1}, {first}, v{t+1}
        v_lshlrev_b32 v{t+1}, {sh}, v{t+1}
        s_mov_b32 s93, {SPIN}
        s_and_b32 s92, s2, {NREP-1}
        s_lshl_b32 s92, s92, 15
        s_add_u32 s92, s92, {CNT}
        s_mov_b64 exec, {mask or (1 << n) - 1}
        {"" if not fast else f"buffer_load_dword v{t+2}, v{t+1}, s[12:15], s92 offen {SC}" + chr(10) + f"s_sleep {opt('FSL', 3)}"}
{l}:
        buffer_load_dword v{t}, v{t+1}, s[12:15], s92 offen {SC}
        s_waitcnt vmcnt({1 if fast else 0})
        v_cmp_le_u32 vcc, {target}, v{t+2 if fast else t}
        s_nop 3
        s_cmp_eq_u64 vcc, exec
        s_cbranch_scc1 {d}
        {"" if not fast else f"buffer_load_dword v{t+2}, v{t+1}, s[12:15], s92 offen {SC}" + chr(10) + "s_waitcnt vmcnt(1)" + chr(10) + f"v_cmp_le_u32 vcc, {target}, v{t}" + chr(10) + "s_nop 3" + chr(10) + "s_cmp_eq_u64 vcc, exec" + chr(10) + f"s_cbranch_scc1 {d}"}
        {"" if fast else f"s_sleep {sl or opt('PSLEEP', 2)}"}
        s_sub_u32 s93, s93, 1
        s_cmp_lg_u32 s93, 0
        s_cbranch_scc1 {l}
{d}:
        s_mov_b64 exec, -1
        """)

vT0, vT1, vT2, vT3, vTok, vHf = 1, 2, 3, 4, 5, 6
vXb, vWb, vX, vW, vEA, FR, ACC, PK = 8, 12, 14, 18, 20, 36, 68, 132
RING = 131072
def XF(b, i): return FR + 16*b + 4*i
def WF(b, j): return FR + 16*b + 8 + 4*j
def acc(i, j): return ACC + 16*(2*i + j)
def g_reads(b, s):
    return [f"ds_read_b128 {V(XF(b,0),4)}, v{vX+s}",
            f"ds_read_b64_tr_b16 {V(WF(b,0),2)}, v{vW} offset:{16384 + 4096*s}",
            f"ds_read_b64_tr_b16 {V(WF(b,0)+2,2)}, v{vW} offset:{16384 + 4096*s + 1024}",
            f"ds_read_b64_tr_b16 {V(WF(b,1),2)}, v{vW+1} offset:{16384 + 4096*s}",
            f"ds_read_b64_tr_b16 {V(WF(b,1)+2,2)}, v{vW+1} offset:{16384 + 4096*s + 1024}",
            f"ds_read_b128 {V(XF(b,1),4)}, v{vX+s} offset:4096"]
def g_mf(b, i, j, vtype):
    a, bb = (XF(b,i), WF(b,j)) if vtype else (WF(b,j), XF(b,i))
    return f"v_mfma_f32_32x32x16_bf16 {V(acc(i,j),16)}, {V(a,4)}, {V(bb,4)}, {V(acc(i,j),16)}"
def g_setaddr(A):
    for s in range(4): A(f"v_add_u32 v{vX+s}, s30, v{vXb+s}")
    for j in range(2): A(f"v_add_u32 v{vW+j}, s30, v{vWb+j}")
def g_loop(g, name, vtype):
    A = g.A
    A("s_mov_b32 s31, 9\ns_barrier")
    for r in g_reads(0, 0): A(r)
    A(f".p2align 6\n{name}:")
    for s_ in range(4):
        b = s_ & 1
        rd = g_reads(b ^ 1, (s_+1) & 3)
        if s_ == 3:
            A(f"""
            s_cbranch_scc1 {name}_nb
            s_barrier
{name}_nb:
            """)
            g_setaddr(A)
        A("s_waitcnt lgkmcnt(3)")
        A(g_mf(b, 0, 0, vtype))
        for r in rd[:3]: A(r)
        A("s_waitcnt lgkmcnt(4)")
        A(g_mf(b, 0, 1, vtype))
        for r in rd[3:]: A(r)
        A("s_waitcnt lgkmcnt(6)")
        A(g_mf(b, 1, 0, vtype))
        if s_ == 2:
            A(f"""
            s_add_u32 s30, s30, 32768
            s_and_b32 s30, s30, {RING-1}
            s_sub_u32 s31, s31, 1
            s_cmp_eq_u32 s31, 0
            """)
        A(g_mf(b, 1, 1, vtype))
    A(f"s_cbranch_scc0 {name}")

def ld_chunk(g, skip=True):
    A = g.A; l = g.lab("Lk")
    if skip: A(f"s_cmp_lg_u32 s95, 0\ns_cbranch_scc1 {l}")
    A(f"""
    s_mov_b32 m0, s42
    s_add_u32 s26, s40, 8192
    buffer_load_dwordx4 v8, s[8:11], s40 offen lds
    s_add_u32 s27, s40, 16384
    buffer_load_dwordx4 v9, s[8:11], s26 offen offset:1024 lds
    s_add_u32 s26, s40, 24576
    buffer_load_dwordx4 v8, s[8:11], s27 offen offset:2048 lds
    s_add_u32 s28, s42, 16384
    buffer_load_dwordx4 v9, s[8:11], s26 offen offset:3072 lds
    s_mov_b32 m0, s28
    s_add_u32 s26, s41, {13824-1024}
    buffer_load_dwordx4 v10, s[44:47], s41 offen lds
    s_add_u32 s27, s41, {2*(13824-1024)}
    buffer_load_dwordx4 v10, s[44:47], s26 offen offset:1024 lds
    s_add_u32 s26, s41, {3*(13824-1024)}
    buffer_load_dwordx4 v10, s[44:47], s27 offen offset:2048 lds
    s_add_u32 s40, s40, 128
    buffer_load_dwordx4 v10, s[44:47], s26 offen offset:3072 lds
    s_add_u32 s41, s41, {64*3456}
    s_add_u32 s24, s24, 1
    s_cmp_eq_u32 s24, 9
    s_cselect_b32 s26, 1152, 0
    s_cselect_b32 s27, {WB}, 0
    s_sub_u32 s40, s40, s26
    s_sub_u32 s41, s41, s27
    s_add_u32 s42, s42, 32768
    s_cmp_ge_u32 s42, {RING}
    s_cselect_b32 s26, {RING}, 0
    s_sub_u32 s42, s42, s26
{l}:
    """)

def gen_gemm(g):
    A = g.A
    ROT = opt('ROT', 1)
    A(f"""
    s_and_b32 s17, s2, 7               ; xcd
    s_lshr_b32 s18, s2, 3              ; idx 0..27
    s_and_b32 s19, s17, 3
    s_lshl_b32 s19, s19, 2
    s_and_b32 s20, s18, 3
    s_add_u32 s19, s19, s20            ; mb
    s_lshr_b32 s21, s17, 2
    s_mul_i32 s21, s21, 7
    s_lshr_b32 s22, s18, 2
    s_add_u32 s21, s21, s22            ; ng
    s_cmp_lt_u32 s16, 4
    s_cbranch_scc1 Lg_compute
    s_and_b32 s23, s16, 3              ; u
    """)
    if ROT:
        A("""
        s_mul_i32 s24, s20, 5
        s_lshr_b32 s24, s24, 1
        s_add_u32 s24, s24, s22
        s_cmp_ge_u32 s24, 9
        s_cselect_b32 s25, 9, 0
        s_sub_u32 s24, s24, s25
        """)
    else: A("s_mov_b32 s24, 0")
    A(f"""
    s_lshl_b32 s25, s19, 7
    s_lshl_b32 s26, s23, 5
    s_add_u32 s25, s25, s26
    s_mul_i32 s25, s25, 1152
    s_lshl_b32 s26, s24, 7
    s_add_u32 s40, s25, s26            ; sX
    s_lshl_b32 s25, s24, 2
    s_add_u32 s25, s25, s23
    s_mul_i32 s25, s25, {16*3456}
    s_lshl_b32 s26, s21, 8
    s_add_u32 s41, s25, s26            ; sW
    s_lshl_b32 s42, s23, 12
    v_lshrrev_b32 v{vT0}, 3, v0
    v_mul_u32_u24 v{vT0}, 1152, v{vT0}
    v_lshrrev_b32 v{vT1}, 4, v0
    v_and_b32 v{vT2}, 7, v0
    v_xor_b32 v{vT2}, v{vT2}, v{vT1}
    v_lshl_add_u32 v8, v{vT2}, 4, v{vT0}
    v_xor_b32 v{vT2}, 4, v{vT2}
    v_lshl_add_u32 v9, v{vT2}, 4, v{vT0}       ; odd i
    v_mul_u32_u24 v{vT0}, 3456, v{vT1}
    v_and_b32 v{vT2}, 15, v0
    v_lshlrev_b32 v{vT1}, 2, v{vT1}
    v_xor_b32 v{vT2}, v{vT2}, v{vT1}
    v_lshl_add_u32 v10, v{vT2}, 4, v{vT0}      ; W addr
    s_mov_b32 s95, 0
    s_setprio {opt('LPRIO', 0)}
    s_waitcnt lgkmcnt(0)
    """)
    g.srd(8, pX, XB); g.srd(44, pW, WB)
    A(f"""
    s_mov_b32 s31, 0
Lld:
    s_cmp_lt_u32 s31, 2
    s_cbranch_scc1 Lld_go
    s_waitcnt vmcnt(8)
    s_barrier
Lld_go:
    """)
    ld_chunk(g, False)
    A(f"""
    s_add_u32 s31, s31, 1
    s_cmp_lt_u32 s31, 9
    s_cbranch_scc1 Lld
    s_waitcnt vmcnt(8)
    s_barrier
    """)
    g.srd(12, pWS, WS_END)
    A(f"""
    s_waitcnt vmcnt(0)
    s_barrier
    s_branch Lh_start
Lg_compute:
    s_and_b32 s23, s16, 1              ; wm
    s_lshr_b32 s24, s16, 1             ; wn
    v_and_b32 v{vTok}, 31, v0
    v_lshrrev_b32 v{vHf}, 5, v0
    s_lshl_b32 s25, s23, 13
    v_lshlrev_b32 v{vT0}, 7, v{vTok}
    v_add_u32 v{vT0}, s25, v{vT0}
    v_bfe_u32 v{vT1}, v0, 1, 3
    v_xor_b32 v{vT1}, v{vT1}, v{vHf}
    """)
    for s in range(4):
        A(f"v_xor_b32 v{vT2}, {2*s}, v{vT1}\nv_lshl_add_u32 v{vXb+s}, v{vT2}, 4, v{vT0}")
    A(f"""
    v_bfe_u32 v{vT0}, v0, 2, 2
    v_lshl_add_u32 v{vT1}, v{vHf}, 3, v{vT0}
    v_lshlrev_b32 v{vT1}, 8, v{vT1}
    v_bfe_u32 v{vT2}, v0, 4, 1
    v_lshl_add_u32 v{vT1}, v{vT2}, 5, v{vT1}
    v_and_b32 v{vT2}, 3, v0
    v_lshl_add_u32 v{vT1}, v{vT2}, 3, v{vT1}
    s_lshl_b32 s25, s24, 1
    v_xor_b32 v{vT2}, s25, v{vT0}
    v_lshl_add_u32 v{vWb}, v{vT2}, 6, v{vT1}
    v_xor_b32 v{vT2}, 1, v{vT2}
    v_lshl_add_u32 v{vWb+1}, v{vT2}, 6, v{vT1}
    s_mov_b32 s30, 0
    s_waitcnt lgkmcnt(0)
    """)
    g.srd(12, pWS, WS_END)
    gen_init_misc(g, PK+8)
    g_setaddr(A)
    for i in range(64): A(f"v_mov_b32 v{ACC+i}, 0")
    A(f"""
    s_lshl_b32 s25, s21, 7
    s_sub_u32 s25, 71, s25
    v_mul_u32_u24 v{vT0}, 72, v0
    v_add_u32 v{vT0}, s25, v{vT0}
    v_add_u32 v{vT1}, 576, v{vT0}
    v_add_u32 v{vT2}, 1152, v{vT0}
    v_min_u32 v{vT0}, v{vT0}, v{vT1}
    v_min_u32 v{vT0}, v{vT0}, v{vT2}
    v_cmp_gt_u32 vcc, 199, v{vT0}
    s_nop 3
    s_and_b64 s[36:37], vcc, 0xff
    """)
    A(f"""
    s_lshl_b32 s26, s19, 2
    s_lshl_b32 s27, s23, 1
    s_add_u32 s26, s26, s27            ; T0
    s_waitcnt lgkmcnt(0)
    s_cmp_ge_u32 s21, 9
    s_cbranch_scc1 Lg_vtype
    s_lshl_b32 s27, s21, 5
    s_lshl_b32 s28, s24, 4
    s_add_u32 s27, s27, s28
    v_add_u32 v{vT0}, s27, v{vHf}      ; G0
    s_lshl_b32 s28, s26, 10
    s_lshl_b32 s29, s26, 8
    s_add_u32 s29, s29, {LEFT}
    v_lshlrev_b32 v{vTok}, 3, v{vTok}
    v_add_u32 v{PK}, s29, v{vTok}
    v_add_u32 v{PK+1}, s28, v{vTok}
    v_add_u32 v{PK+2}, {MB-1280}, v{PK+1}
    v_mov_b32 v{PK+3}, 256
    v_mov_b32 v{PK+4}, 1024
    s_mov_b32 s32, {PAIR}
    """)
    for jg in range(8):
        A(f"""
        v_add_u32 v{vT1}, {8*(jg>>2) + 2*(jg&3)}, v{vT0}
        v_mul_u32_u24 v{vT2}, 7282, v{vT1}
        v_lshrrev_b32 v{vT2}, 16, v{vT2}
        v_mul_u32_u24 v{vT3}, 9, v{vT2}
        v_sub_u32 v{vT1}, v{vT1}, v{vT3}
        v_cmp_lt_u32 vcc, 4, v{vT1}
        v_cmp_eq_u32 s[34:35], 4, v{vT1}
        v_mul_u32_u24 v{vT2}, s32, v{vT2}
        v_cndmask_b32 v{vT3}, v{PK+1}, v{PK+2}, vcc
        v_lshl_add_u32 v{vT3}, v{vT1}, 8, v{vT3}
        v_cndmask_b32 v{vT3}, v{vT3}, v{PK}, s[34:35]
        v_cndmask_b32 v{vT1}, v{PK+4}, v{PK+3}, s[34:35]
        v_add_u32 v{vEA+jg}, v{vT2}, v{vT3}
        v_add_u32 v{vEA+8+jg}, v{vEA+jg}, v{vT1}
        """)
    g.stamp(1)
    g_loop(g, "Lg_qk", False)
    g.stamp(2)
    A(f"""
    s_lshl_b32 s27, s21, 2
    s_lshl_b32 s28, s24, 1
    s_add_u32 s27, s27, s28
    s_cmp_lt_u32 s27, 18
    s_cselect_b32 s28, {CS_BITS}, 1.0
    s_mov_b32 s29, s28
    s_nop 6
    """)
    n = 0
    for i in range(2):
        for j in range(2):
            for q in range(4):
                a = acc(i, j) + 4*q
                p = PK + 2*(n % 8); n += 1
                for e in range(2): A(f"v_pk_mul_f32 {V(a+2*e,2)}, {V(a+2*e,2)}, s[28:29]")
                A(f"v_cvt_pk_bf16_f32 v{p}, v{a}, v{a+1}\nv_cvt_pk_bf16_f32 v{p+1}, v{a+2}, v{a+3}")
                A(f"buffer_store_dwordx2 {V(p,2)}, v{vEA+8*i+4*j+q}, s[12:15], 0 offen {SC}")
    A(f"""
    s_branch Lg_done
Lg_vtype:
    s_sub_u32 s27, s21, 9
    s_lshl_b32 s27, s27, 7
    s_lshl_b32 s28, s24, 6
    s_add_u32 s27, s27, s28
    s_mul_i32 s28, s26, 36864
    s_add_u32 s28, s28, {VG}
    v_mul_u32_u24 v{vT3}, 9216, v{vHf}
    v_add_u32 v{vT0}, s27, v{vTok}
    v_lshl_add_u32 v{vEA}, v{vT0}, 4, v{vT3}
    """)
    g.stamp(1)
    g_loop(g, "Lg_v", True)
    g.stamp(2)
    A(f"""
    s_cmp_ge_u32 s27, 576
    s_cbranch_scc1 Lg_done
    s_nop 9
    """)
    n = 0
    for i in range(2):
        for j in range(2):
            for m in range(2):
                a = acc(i, j) + 8*m
                p = PK + 4*(n % 4); n += 1
                for e in range(4): A(f"v_cvt_pk_bf16_f32 v{p+e}, v{a+2*e}, v{a+2*e+1}")
                A(f"s_add_u32 s29, s28, {i*36864+m*18432}")
                A(f"buffer_store_dwordx4 {V(p,4)}, v{vEA}, s[12:15], s29 offen offset:{512*j} {SC}")
    A(f"""
Lg_done:
    s_setprio 2
    """)
    g.stamp(15)
    A("s_cmp_lg_u32 s16, 0\ns_cbranch_scc1 Lg_d2")
    g.ready(8)
    A("Lg_d2:\ns_waitcnt vmcnt(0) lgkmcnt(0)")
    g.stamp(3)
    g.gsync(5, 8)
    A("s_cmp_lg_u32 s16, 0\ns_cbranch_scc1 Lattn")
    g.stamp(16)
    if opt('HIER', 0):
        A(f"""
        s_lshl_b32 s92, s21, 8
        s_add_u32 s92, s92, {CNT}
        v_mov_b32 v8, 0
        v_mov_b32 v9, 1
        s_mov_b64 exec, 1
        buffer_atomic_add v9, v8, s[12:15], s92 offen sc0 {SC}
        s_mov_b64 exec, -1
        s_lshl_b32 s92, s21, 2
        s_add_u32 s92, s92, {CNT+GOFF}
        v_lshlrev_b32 v8, 15, v0
        v_mov_b32 v10, 16
        s_waitcnt vmcnt(0)
        v_readfirstlane_b32 s25, v9
        s_cmp_lg_u32 s25, 15
        s_cbranch_scc1 Lg_nl
        s_mov_b64 exec, s[36:37]
        buffer_store_dword v10, v8, s[12:15], s92 offen {SC}
        s_mov_b64 exec, -1
Lg_nl:
        """)
    else:
        g.signal("s21", 8, mask="s[36:37]" if opt('PMASK', 1) else None)
        A("s_waitcnt vmcnt(0)")
    g.stamp(17)
    A("s_branch Lattn")

def gen_init_misc(g, t):
    A = g.A
    for i in range(2):
        A(f"""
        s_and_b32 s25, s16, 3
        s_lshl_b32 s25, s25, 7
        s_add_u32 s25, s25, {64*i-14 & 0xffffffff}
        v_add_u32 v{t+4}, s25, v0
        v_mul_u32_u24 v{t+5}, 1821, v{t+4}
        v_lshrrev_b32 v{t+5}, 16, v{t+5}
        v_mul_u32_u24 v{t+5}, 36, v{t+5}
        v_cmp_eq_u32 s[34:35], v{t+5}, v{t+4}
        v_cmp_gt_u32 vcc, {36*8}, v{t+4}
        v_mov_b32 v{t+5}, 0x3f803f80
        v_lshlrev_b32 v{t+4}, 4, v{t+4}
        s_and_b64 vcc, vcc, s[34:35]
        v_add_u32 v{t+4}, {CONST+224}, v{t+4}
        v_cndmask_b32 v{t}, 0, v{t+5}, vcc
        v_cndmask_b32 v{t+1}, 0, v{t+5}, vcc
        v_cndmask_b32 v{t+2}, 0, v{t+5}, vcc
        v_cndmask_b32 v{t+3}, 0, v{t+5}, vcc
        ds_write_b128 v{t+4}, {V(t,4)}
        """)

import k2, k3
from k2 import m16, m8, phase, maxtree
from k2 import vL8, vKM, vKL, vV, vL16, vV0, vVinc, Q1A, Q1B, Q2A, Q2B, NMA, NMB, SA, SB, PA, PB, OA, OB, KB, KL, VB
aT0, aT1, aT2, aT3 = 5, 6, 7, 8
TMP = 168
vCA, vCR, vOne, vKM0, vKL0, vG0, vG1, vG2 = range(176, 184)
bKG, bVG, b5G, bRD, bTR, bBW, bBR, bUO, bZP, bPG = range(184, 194)
CM = 216
FLAG = SY + 40
KL2 = 184

def head_params(A):
    A(f"""
    s_and_b32 s17, s2, 7
    s_lshl_b32 s17, s17, 2
    s_bfe_u32 s25, s2, 0x20003
    s_add_u32 s17, s17, s25            ; h
    s_lshr_b32 s18, s2, 5              ; qb
    s_and_b32 s20, s16, 3              ; qg / u
    s_and_b32 s21, s17, 1              ; parity
    s_lshr_b32 s26, s17, 1             ; pair
    v_lshlrev_b32 v{vL16}, 4, v0
    s_mul_i32 s39, s26, {PAIR}
    s_mul_i32 s28, s21, {LEFT}
    s_add_u32 s27, s39, s28
    s_add_u32 s27, s27, {KV}
    s_add_u32 s8, s{pWS}, s27
    s_addc_u32 s9, s{pWS+1}, 0
    s_mov_b32 s10, {WIN}
    s_mov_b32 s11, 0x20000
    s_lshl_b32 s22, s21, 14
    s_add_u32 s23, s22, 65536
    s_cmp_eq_u32 s21, 0
    s_cselect_b32 s24, {LEFT}, 0
    s_lshl_b32 s25, s20, 10
    s_add_u32 s40, s22, s25
    s_add_u32 s41, s23, s25
    s_add_u32 s42, s23, 8192
    s_and_b32 s44, s20, 1
    s_lshl_b32 s44, s44, 10
    s_add_u32 s44, s44, s24
    s_mul_i32 s43, s17, 288
    s_add_u32 s43, s43, {VG}
    s_add_u32 s46, s44, s27
    s_cmp_eq_u32 s20, 0
    s_cselect_b32 s42, s42, s44
    s_cselect_b32 s44, s43, s46
    s_cselect_b32 s45, 9, 2
    s_cselect_b32 s47, 288, 2
    s_cselect_b64 vcc, -1, 0
    s_lshl_b32 s45, s45, 10
    s_lshl_b32 s47, s47, 10
    s_lshl_b32 s25, s20, 6
    s_add_u32 s46, s25, 256
    """)
    for r, base in ((vG0, "s25"), (vG1, "s46"), (vG2, "512")):
        A(f"""
        v_add_u32 v{aT0}, {base}, v0
        v_mul_u32_u24 v{aT2}, 3641, v{aT0}
        v_lshrrev_b32 v{aT2}, 16, v{aT2}
        v_mul_u32_u24 v{aT3}, {9216-288}, v{aT2}
        v_lshl_add_u32 v{r}, v{aT0}, 4, v{aT3}
        """)
    A(f"v_cndmask_b32 v{vG2}, v{vL16}, v{vG2}, vcc")

def dma_skip(A, n):
    A(f"""
    s_add_u32 s40, s40, {(n*8192) & 0xffffffff}
    s_add_u32 s41, s41, {(n*9216) & 0xffffffff}
    s_add_u32 s43, s43, {(n*8*36864) & 0xffffffff}
    s_mul_i32 s25, s45, {n}
    s_add_u32 s42, s42, s25
    s_mul_i32 s25, s47, {n}
    s_add_u32 s44, s44, s25
    """)

def dma_iter(A):
    A(f"""
    s_mov_b32 m0, s40
    s_add_u32 s46, s40, 4096
    buffer_load_dwordx4 v{vL16}, s[8:11], s40 offen lds {SC}
    s_mov_b32 m0, s46
    s_add_u32 s40, s40, 8192
    buffer_load_dwordx4 v{vL16}, s[8:11], s46 offen lds {SC}
    s_mov_b32 m0, s41
    s_add_u32 s46, s41, 4096
    buffer_load_dwordx4 v{vG0}, s[12:15], s43 offen lds {SC}
    s_mov_b32 m0, s46
    s_add_u32 s41, s41, 9216
    buffer_load_dwordx4 v{vG1}, s[12:15], s43 offen lds {SC}
    s_mov_b32 m0, s42
    s_add_u32 s43, s43, {8*36864}
    buffer_load_dwordx4 v{vG2}, s[12:15], s44 offen lds {SC}
    s_add_u32 s42, s42, s45
    s_add_u32 s44, s44, s47
    """)
def dma_n(g, n):
    l = g.lab("Ldm")
    g.A(f"s_mov_b32 s31, {n}\n{l}:")
    dma_iter(g.A)
    g.A(f"s_sub_u32 s31, s31, 1\ns_cmp_lg_u32 s31, 0\ns_cbranch_scc1 {l}")

def avail_add(g, units):
    l = g.lab("Lav")
    g.A(f"""
    s_cmp_lg_u32 s16, 4
    s_cbranch_scc1 {l}
    v_mov_b32 v{TMP}, {units << 8}
    s_mov_b64 exec, 15
    ds_add_u32 v{bPG}, v{TMP}
    s_mov_b64 exec, -1
{l}:
    """)
def wait_progress(g, n, sl=4):
    l = g.lab("Lq"); d = g.lab("Ld")
    g.A(f"""
    s_mov_b32 s93, {SPIN}
{l}:
    ds_read_b32 v{TMP}, v{bPG}
    s_waitcnt lgkmcnt(0)
    v_and_b32 v{TMP}, 0xff, v{TMP}
    v_cmp_gt_u32 vcc, {n}, v{TMP}
    s_nop 3
    s_cmp_eq_u64 vcc, 0
    s_cbranch_scc1 {d}
    s_sleep {sl}
    s_sub_u32 s93, s93, 1
    s_cmp_lg_u32 s93, 0
    s_cbranch_scc1 {l}
{d}:
    """)

def gen_stage1(g):
    A = g.A
    KR, VR, CR, UU, OUT = 40, 60, 68, 84, 136
    T = TMP
    R = kconv.ConvRegs(16)
    A("s_waitcnt lgkmcnt(0)")
    g.srd(12, pWS, WS_END)
    A(f"""
    s_sub_u32 s17, s2, 224
    s_cmp_lt_u32 s16, 4
    s_cbranch_scc1 Lx_a
    s_mov_b32 s95, 1
    s_mov_b32 s18, 8
    s_lshl_b32 s19, s17, 1
    s_add_u32 s19, s19, 512
    s_bfe_u32 s25, s2, 0x10003
    s_lshl_b32 s25, s25, 14
    s_add_u32 s96, s25, 40960
    s_add_u32 s97, s25, {65536+46080}
    s_add_u32 s99, s97, 9344
    s_add_u32 s3, s3, 32
    s_add_u32 s94, s94, 32
    s_branch Lb_setup
Lx_a:
    s_cmp_ge_u32 s17, {NREP}
    s_cbranch_scc1 Lx_1
    s_cmp_lg_u32 s16, 0
    s_cbranch_scc1 Lx_1
    v_lshlrev_b32 v11, 8, v0
    v_mov_b32 v12, 0
    s_lshl_b32 s25, s17, 15
    s_add_u32 s25, s25, {CNT}
    buffer_store_dword v12, v11, s[12:15], s25 offen {SC}
    s_add_u32 s25, s25, 16384
    s_mov_b64 exec, 0xfffff
    buffer_store_dword v12, v11, s[12:15], s25 offen {SC}
    s_mov_b64 exec, -1
    v_lshlrev_b32 v11, 2, v0
    s_add_u32 s25, s25, {GOFF-16384}
    buffer_store_dword v12, v11, s[12:15], s25 offen {SC}
Lx_1:
    s_getpc_b64 s[26:27]
Lpc0:
    s_add_u32 s26, s26, Lcode_begin-Lpc0
    s_addc_u32 s27, s27, -1
    s_lshl_b32 s25, s16, 13
    v_lshlrev_b32 v13, 7, v0
    v_add_u32 v13, s25, v13
    v_min_u32 v13, Lcode_end-Lcode_begin-4, v13
    v_mov_b32 v15, s27
    v_add_co_u32 v14, vcc, s26, v13
    s_nop 1
    v_addc_co_u32 v15, vcc, 0, v15, vcc
    global_load_dword v210, v[14:15], off
    """)
    gen_init_misc(g, 144)
    A(f"""
    s_cmp_ge_u32 s17, {NREP}
    s_cbranch_scc1 Lx_2
    s_cmp_lg_u32 s16, 0
    s_cbranch_scc1 Lx_2
    s_lshl_b32 s27, s17, 2
    v_mov_b32 v11, s27
    v_mov_b32 v12, 1
    s_mov_b64 exec, 1
    s_waitcnt vmcnt(1)
    global_store_dword v11, v12, s[{pDBG}:{pDBG+1}] {SC}
    s_mov_b64 exec, -1
Lx_2:
    s_mov_b32 s95, 1
    s_lshr_b32 s17, s2, 3
    s_and_b32 s18, s2, 7
    s_lshl_b32 s19, s2, 1
    s_mov_b32 s96, 0
    s_mov_b32 s97, 0
    s_mov_b32 s99, 0
    s_branch Lb_setup
Lh_restart:
    s_sub_u32 s3, s3, 32
    s_sub_u32 s94, s94, 32
Lh_start:
    s_mov_b32 s95, 0
    s_lshr_b32 s17, s2, 3              ; tb
    s_and_b32 s18, s2, 7               ; cb
    s_lshl_b32 s19, s2, 1
    s_bfe_u32 s25, s2, 0x10003
    s_lshl_b32 s96, s25, 14
    s_add_u32 s97, s96, 65536          ; V blocks 0..2
    s_add_u32 s99, s96, {65536+6*9216}
Lb_setup:
    s_and_b32 s23, s16, 3              ; u
    v_and_b32 v{vT0}, 7, v0            ; cc
    v_lshrrev_b32 v{vT1}, 3, v0        ; tg
    s_lshl_b32 s21, s18, 9
    v_lshlrev_b32 v{vT3}, 6, v{vT0}
    """)
    g.srd(4, pSH, 576*8)
    for i in range(4): A(f"buffer_load_dwordx4 {V(CR+4*i,4)}, v{vT3}, s[4:7], s21 offen offset:{16*i}")
    A(f"""
    s_mul_i32 s20, s17, {64*1152}
    s_lshl_b32 s21, s18, 7
    s_add_u32 s20, s20, s21
    v_mul_u32_u24 v{vT2}, 1152, v{vT1}
    v_lshl_add_u32 v{vT2}, v{vT0}, 4, v{vT2}
    v_add_u32 v{vT2}, s20, v{vT2}
    v_add_u32 v{b5G}, {61*1152}, v{vT2}
    s_mul_i32 s20, s23, {8*1152}
    v_add_u32 v{bVG}, s20, v{vT2}
    v_subrev_u32 v{bKG}, {3*1152}, v{bVG}
    v_lshlrev_b32 v{vL16}, 4, v0
    s_add_u32 s28, s97, 9344
    s_lshr_b32 s25, s23, 1
    s_add_u32 s98, s19, s25            ; channel
    s_cmp_eq_u32 s25, 0
    s_cselect_b32 s96, s96, s28
    s_mul_i32 s25, s25, 4672
    s_add_u32 s97, s97, s25
    s_add_u32 s97, s97, 576
    s_lshl_b32 s25, s19, 1
    s_load_dword s100, s[{pD}:{pD+1}], s25
    s_cmp_eq_u32 s95, 1
    s_cbranch_scc1 Lb_load
Lb_setup2:
    v_lshlrev_b32 v{bRD}, 8, v{vT1}
    v_lshl_add_u32 v{bRD}, v{vT0}, 4, v{bRD}
    s_lshl_b32 s25, s23, 11
    s_add_u32 s25, s25, s99
    v_add_u32 v{bRD}, s25, v{bRD}
    v_lshrrev_b32 v{vT2}, 4, v0
    v_and_b32 v{vT3}, 15, v0
    v_lshlrev_b32 v{vT3}, 7, v{vT3}
    v_lshl_add_u32 v{bBW}, v{vT2}, 4, v{vT3}
    v_add_u32 v{bBW}, s25, v{bBW}
    v_add_u32 v{bBR}, s25, v{vL16}
    v_bfe_u32 v{vT3}, v0, 2, 2
    v_lshl_add_u32 v{bTR}, v{vT2}, 3, v{vT3}
    v_lshlrev_b32 v{bTR}, 7, v{bTR}
    v_and_b32 v{vT3}, 3, v0
    v_lshl_add_u32 v{bTR}, v{vT3}, 3, v{bTR}
    v_lshlrev_b32 v{bPG}, 8, v{vT3}
    v_add_u32 v{bPG}, {UC}, v{bPG}
    s_lshl_b32 s25, s23, 5
    s_add_u32 s25, s25, s99
    v_add_u32 v{bTR}, s25, v{bTR}
    v_lshlrev_b32 v{bUO}, 12, v{vT1}
    v_lshl_add_u32 v{bUO}, v{vT0}, 4, v{bUO}
    s_lshl_b32 s22, s18, 2
    s_add_u32 s22, s22, s23
    s_lshl_b32 s22, s22, 16
    s_lshl_b32 s25, s17, 7
    s_add_u32 s22, s22, s25
    s_add_u32 s22, s22, {UT}
    s_lshr_b32 s25, s18, 3
    s_lshl_b32 s25, s25, 12
    s_add_u32 s22, s22, s25
    v_add_u32 v{bUO}, s22, v{bUO}
    v_min_u32 v{bZP}, 35, v0
    v_lshlrev_b32 v{bZP}, 4, v{bZP}
    s_sub_u32 s25, s97, 576
    v_add_u32 v{bZP}, s25, v{bZP}
    s_waitcnt lgkmcnt(0)
    """)
    conv_setup(A, R)
    A("s_mov_b32 s29, 0xffff0000\ns_mov_b32 s28, 0xffff\ns_waitcnt vmcnt(0)")
    for c in range(8):
        for j in range(4):
            d, e, src = CM + 8*(c >> 1) + 2*j + (c & 1), c & 1, CR + 2*c + (j >> 1)
            if (j & 1) == e: A(f"v_and_b32 v{d}, {'s29' if e else 's28'}, v{src}")
            elif e: A(f"v_lshlrev_b32 v{d}, 16, v{src}")
            else: A(f"v_lshrrev_b32 v{d}, 16, v{src}")
    A(f"""
    s_cmp_eq_u32 s95, 0
    s_cbranch_scc1 Lh_kv
    s_barrier
    s_branch Lb_s0
Lh_kv:
    """)
    EARLY = opt('S1EARLY', 0)
    def kv_first():
        g.wait_words(SY, 9, T, sl=2)
        A(f"s_setprio {opt('CPRIO', 1)}")
        A("s_cmp_ge_u32 s2, 224\ns_cbranch_scc1 Lh_kx")
        dma_n(g, 5)
        A("s_waitcnt vmcnt(15)")
        g.gsync(1 + 10*(EARLY > 0), T)
        avail_add(g, 4)
        A("s_branch Lh_ky\nLh_kx:")
        dma_skip(A, 2)
        dma_n(g, 3)
        g.srd(4, pH, XB)
        A("s_waitcnt vmcnt(0)")
        g.gsync(2, T)
        A("s_cmp_lg_u32 s16, 4\ns_cbranch_scc1 Lc_k")
        g.wait_words(SY, 10, T, sl=4)
        avail_add(g, 6)
        A("s_branch Lc_k\nLh_ky:")
    head_params(A)
    dma_skip(A, 1)
    if not EARLY: kv_first()
    elif EARLY == 2:
        A("s_cmp_ge_u32 s2, 224\ns_cbranch_scc1 Lb_load")
        g.wait_words(SY, 5, T, sl=2)
    A(f"""
Lb_load:
    s_and_b32 s28, s16, 3
    s_lshl_b32 s25, s28, 10
    s_add_u32 s25, s25, s99
    """)
    g.srd(4, pK, XB)
    A(f"""
    s_mov_b32 m0, s25
    s_add_u32 s27, s25, 4096
    buffer_load_dwordx4 v{bKG}, s[4:7], 0 offen {NTB} lds
    s_mov_b32 m0, s27
    v_add_u32 v{bKG}, {32*1152}, v{bKG}
    s_add_u32 s27, s99, 8192
    buffer_load_dwordx4 v{bKG}, s[4:7], 0 offen {NTB} lds
    s_mov_b32 m0, s27
    s_add_u32 s27, s25, 9216
    buffer_load_dwordx4 v{b5G}, s[4:7], 0 offen lds
    s_mov_b32 s4, s{pV}
    s_mov_b32 s5, s{pV+1}
    s_mov_b32 m0, s27
    s_add_u32 s27, s27, 4096
    buffer_load_dwordx4 v{bVG}, s[4:7], 0 offen {NTB} lds
    s_mov_b32 m0, s27
    s_mov_b32 s27, {32*1152}
    buffer_load_dwordx4 v{bVG}, s[4:7], s27 offen {NTB} lds
    s_mov_b32 s4, s{pH}
    s_mov_b32 s5, s{pH+1}
    s_and_b32 s25, s28, 1
    s_lshl_b32 s25, s25, 11
    s_lshl_b32 s27, s98, 12
    s_add_u32 s27, s27, s25
    v_lshlrev_b32 v{T}, 3, v{vL16}
    s_mov_b64 exec, 0xffff
    buffer_load_dword v209, v{T}, s[4:7], s27 offen
    s_mov_b64 exec, -1
    s_cmp_eq_u32 s95, 1
    s_cbranch_scc1 Lb_setup2
    """)
    def kv_second(val):
        g.post(val, T)
        A("s_cmp_lg_u32 s16, 4\ns_cbranch_scc1 Lb_a6")
        g.wait_words("s94", val, T)
        avail_add(g, 6)
        A("Lb_a6:")
    if not EARLY:
        A("s_waitcnt vmcnt(6)")
        kv_second(2)
    A("s_waitcnt vmcnt(1)\nLb_s0:")
    g.gsync(3, T)
    g.stamp(1)
    for n in range(5): A(f"ds_read_b128 {V(KR+4*n,4)}, v{bRD} offset:{128*n}")
    for t in range(2): A(f"ds_read_b128 {V(VR+4*t,4)}, v{bRD} offset:{9216+128*t}")
    A("s_mov_b32 s29, 0xffff0000\ns_waitcnt lgkmcnt(2)")
    for j in range(4):
        for d in range(4):
            for t in range(2):
                for e in range(2):
                    u = UU + 4*d + 2*t + e
                    if j == 0: A(f"v_dot2_f32_bf16 v{u}, v{KR+4*(t+3)+d}, v{CM+8*d+e}, 0")
                    else: A(f"v_dot2c_f32_bf16 v{u}, v{KR+4*(t+3-j)+d}, v{CM+8*d+2*j+e}")
    A("s_waitcnt lgkmcnt(0)")
    for d in range(4):
        for t in range(2):
            x = UU + 16 + 4*d + 2*t
            A(f"v_lshlrev_b32 v{x}, 16, v{VR+4*t+d}\nv_and_b32 v{x+1}, s29, v{VR+4*t+d}")
    for i in range(8): A(f"v_pk_mul_f32 {V(UU+2*i,2)}, {V(UU+2*i,2)}, {V(UU+16+2*i,2)}")
    for d in range(4):
        for t in range(2): A(f"v_cvt_pk_bf16_f32 v{OUT+4*t+d}, v{UU+4*d+2*t}, v{UU+4*d+2*t+1}")
    A(f"""
    ds_write_b128 v{bRD}, {V(OUT,4)} offset:9216
    ds_write_b128 v{bRD}, {V(OUT+4,4)} offset:{9216+128}
    s_waitcnt lgkmcnt(0)
    """)
    g.gsync(4, T)
    for i in range(2):
        A(f"ds_read_b64_tr_b16 {V(OUT+4*i,2)}, v{bTR} offset:{9216+4096*i}")
        A(f"ds_read_b64_tr_b16 {V(OUT+4*i+2,2)}, v{bTR} offset:{9216+4096*i+512}")
    A(f"""
    s_mov_b32 s27, 32768
    s_waitcnt lgkmcnt(0)
    ds_write_b128 v{bBW}, {V(OUT,4)}
    ds_write_b128 v{bBW}, {V(OUT+4,4)} offset:64
    ds_read_b128 {V(OUT+8,4)}, v{bBR}
    ds_read_b128 {V(OUT+12,4)}, v{bBR} offset:1024
    s_waitcnt lgkmcnt(0)
    buffer_store_dwordx4 {V(OUT+8,4)}, v{bUO}, s[12:15], 0 offen {SC}
    buffer_store_dwordx4 {V(OUT+12,4)}, v{bUO}, s[12:15], s27 offen {SC}
    """)
    g.stamp(2)
    A("s_and_b32 s25, s16, 3\ns_cmp_lg_u32 s25, 0\ns_cbranch_scc1 Lb_nr" + ("" if EARLY else "\ns_cmp_eq_u32 s95, 0\ns_cbranch_scc1 Lb_nr"))
    g.ready(T)
    A("Lb_nr:\ns_waitcnt vmcnt(0)")
    g.stamp(3)
    g.gsync(5, T)
    A("s_cmp_lt_u32 s16, 4\ns_cbranch_scc1 Lc_m\ns_cmp_eq_u32 s95, 1\ns_cbranch_scc1 Lc_x\nLc_m:")
    A("s_and_b32 s25, s16, 3\ns_cmp_lg_u32 s25, 0\ns_cbranch_scc1 Lc_k0\ns_and_b32 s25, s2, 15\ns_add_u32 s25, s25, 64")
    g.signal("s25", T)
    A("s_cmp_lg_u32 s16, 0\ns_cbranch_scc1 Lc_k0")
    g.wait_words(SY+36, 1, T, n=1, sl=8)
    A("Lc_k0:\ns_cmp_lt_u32 s16, 4\ns_cbranch_scc1 Lattn\nLc_k:")
    if EARLY:
        kv_first()
        dma_n(g, 2)
        A("s_waitcnt vmcnt(10)")
        kv_second(12)
    else: dma_n(g, 2)
    A("s_waitcnt vmcnt(0)")
    g.post(6 + 10*(EARLY > 0), T)
    A(f"""
    s_lshr_b32 s25, s2, 3
    s_lshl_b32 s25, s25, 2
    s_add_u32 s25, s25, s20            ; 0..127
    s_mul_i32 s27, s25, {41*128}
    v_lshlrev_b32 v{T}, 7, v0
    v_add_u32 v{T+1}, s27, v{T}
    v_min_u32 v{T+1}, {WOB-4}, v{T+1}
    s_mov_b32 exec_hi, 0x1ff
    global_load_dword v210, v{T+1}, s[{pWO}:{pWO+1}]
    s_and_b32 s27, s2, 7
    s_mul_i32 s27, s27, {256*1152}
    s_mul_i32 s25, s25, {18*128}
    s_add_u32 s27, s27, s25
    v_add_u32 v{T+1}, s27, v{T}
    s_mov_b64 exec, 0x3ffff
    global_load_dword v211, v{T+1}, s[{pQ}:{pQ+1}]
    s_mov_b64 exec, -1
    """)
    A("s_cmp_lg_u32 s16, 4\ns_cbranch_scc1 Lc_w")
    g.wait_words("s94", 6 + 10*(EARLY > 0), T)
    avail_add(g, 4)
    g.poll(64, 16, 16, T, sl=opt('USLEEP', 8))
    wait_progress(g, 7, 4)
    A("s_branch Lc_pd\nLc_x:\ns_cmp_lg_u32 s16, 4\ns_cbranch_scc1 Lc_w\ns_and_b32 s25, s2, 3\ns_add_u32 s25, s25, 80")
    g.signal("s25", T)
    g.poll(80, 4, 8, T, sl=2)
    A(f"""
Lc_pd:
    s_sub_u32 s25, 2, s95
    v_mov_b32 v{T}, {SY+36}
    v_mov_b32 v{T+1}, s25
    ds_write_b32 v{T}, v{T+1}
Lc_w:
    s_sub_u32 s91, 2, s95
    """)
    g.wait_words(SY+36, "s91", T, n=1, sl=opt('WSL', 5))
    g.stamp(4)
    A(f"""
    s_and_b32 s28, s16, 1
    s_lshl_b32 s25, s28, 11
    s_add_u32 s27, s97, s25
    s_mov_b32 m0, s27
    s_lshl_b32 s27, s98, 12
    s_add_u32 s27, s27, s25
    buffer_load_dwordx4 v{vL16}, s[4:7], s27 offen lds
    buffer_load_dwordx4 v{vL16}, s[4:7], s27 offen offset:1024 lds
    ds_write_b128 v{bZP}, {V(R.acc,4)}
    s_mul_i32 s25, s28, {2*4160}
    s_add_u32 s25, s25, s96
    s_add_u32 s25, s25, 64
    s_lshl_b32 s27, s28, 2
    s_sub_u32 s27, s101, s27
    s_sub_u32 s27, s27, {YT-UT}
    s_lshr_b32 s29, s98, 9
    s_lshl_b32 s29, s29, 12
    s_add_u32 s27, s27, s29
    """)
    for c in range(2):
        A("s_mov_b32 m0, s25\ns_nop 0")
        for i in range(4): A(f"buffer_load_dwordx4 v{vL16}, s[12:15], s27 offen offset:{1024*i} lds {SC}")
        if c == 0: A("s_add_u32 s25, s25, 4160\ns_sub_u32 s27, s27, 2")
    A("s_waitcnt vmcnt(0) lgkmcnt(0)")
    g.gsync(17, T)
    A(f"s_setprio {opt('VPRIO', 0)}")
    g.stamp(5)
    A("s_cmp_eq_u32 s28, 0\ns_cbranch_scc0 Lc_set1")
    kconv.conv_main(A, R, "Lc_l0", 0)
    A("s_setprio 1")
    conv_epi(A, R, 0, "s96", "s100", "s101", "s[12:15]", SC)
    A("s_branch Lc_done\nLc_set1:")
    kconv.conv_main(A, R, "Lc_l1", 1)
    A("s_setprio 1")
    conv_epi(A, R, 1, "s96", "s100", "s101", "s[12:15]", SC)
    A("Lc_done:\ns_waitcnt vmcnt(0)")
    g.stamp(6)
    g.gsync(18, T)
    A("s_and_b32 s25, s16, 3\ns_cmp_lg_u32 s25, 0\ns_cbranch_scc1 Lc_e\ns_and_b32 s25, s2, 15\ns_add_u32 s25, s25, 16")
    g.signal("s25", T)
    A("Lc_e:\ns_cmp_eq_u32 s95, 0\ns_cbranch_scc1 Lh_p3\ns_branch Lh_restart")

def conv_epi(A, R, st, s_slot, s_D, s_out, srd, flags=""):
    S_ = kconv.SETS[st]
    A(f"v_add_u32 v{R.t0}, {s_slot}, v{R.aU}")
    for ti, tau in enumerate(S_): A(f"ds_read_b64 {V(R.A[0]+2*ti,2)}, v{R.t0} offset:{64+512*tau}")
    A("s_waitcnt lgkmcnt(0)")
    for ti in range(4):
        for e in range(4): A(f"v_dot2c_f32_bf16 v{R.acc+4*ti+e}, v{R.A[0]+2*ti+(e >> 1)}, v{194+(e & 1)}")
    A("s_nop 1")
    for ti, tau in enumerate(S_):
        t = R.B[0]+2*ti; ac = R.acc+4*ti
        A(f"""
        v_cvt_pk_bf16_f32 v{t}, v{ac}, v{ac+1}
        v_cvt_pk_bf16_f32 v{t+1}, v{ac+2}, v{ac+3}
        buffer_store_dwordx2 {V(t,2)}, v{R.aU}, {srd}, {s_out} offen offset:{512*tau} {flags}
        """)

def conv_setup(A, R):
    A(f"""
    v_bfe_u32 v{R.t0}, v0, 2, 2
    v_mul_u32_u24 v{R.aA}, 4160, v{R.t0}
    v_and_b32 v{R.t0}, 3, v0
    v_lshl_add_u32 v{R.aA}, v{R.t0}, 3, v{R.aA}
    v_lshrrev_b32 v{R.t0}, 4, v0
    v_lshlrev_b32 v{R.aB}, 4, v{R.t0}
    v_sub_u32 v{R.aA}, v{R.aA}, v{R.aB}
    s_add_u32 s25, s96, {64+32-8}
    v_add_u32 v{R.aA}, s25, v{R.aA}
    v_and_b32 v{R.aU}, 15, v0
    v_lshlrev_b32 v{R.aU}, 5, v{R.aU}
    v_add_u32 v{R.aB}, v{R.aB}, v{R.aU}
    s_sub_u32 s25, s97, 96
    v_add_u32 v{R.aB}, s25, v{R.aB}
    v_lshl_add_u32 v{R.aU}, v{R.t0}, 3, v{R.aU}
    v_and_b32 v{R.mask}, 15, v0
    v_lshlrev_b32 v{R.t0}, 3, v{R.t0}
    v_sub_u32 v{R.t0}, v{R.mask}, v{R.t0}
    v_add_u32 v{R.t0}, 17, v{R.t0}
    v_mov_b32 v{R.acc}, 0xffff
    v_mov_b32 v{R.acc+1}, 0xffff0000
    """)
    for d in range(4):
        A(f"""
        v_cmp_lt_i32 vcc, {2*d}, v{R.t0}
        v_cmp_lt_i32 s[26:27], {2*d+1}, v{R.t0}
        s_nop 0
        v_cndmask_b32 v{R.mask+d}, 0, v{R.acc}, vcc
        v_cndmask_b32 v{R.acc+2}, 0, v{R.acc+1}, s[26:27]
        v_or_b32 v{R.mask+d}, v{R.mask+d}, v{R.acc+2}
        """)
    for i in range(16): A(f"v_mov_b32 v{R.acc+i}, 0")
    A(f"""
    s_lshl_b32 s101, s98, 12
    s_add_u32 s101, s101, {YT}
    s_lshl_b32 s25, s100, 16
    s_and_b32 s27, s100, 0xffff0000
    s_bitcmp0_b32 s98, 0
    s_cselect_b32 s100, s25, s27
    s_lshr_b32 s25, s100, 16
    v_mov_b32 v194, s25
    v_mov_b32 v195, s100
    """)

def zero_acc(A):
    for i in range(16): A(f"v_mov_b32 v{OA+i}, 0")
    for i in range(16): A(f"v_mov_b32 v{OB+i}, 0")
    for i in range(8): A(f"v_mov_b32 v{PB+i}, 0")
    for i in range(8): A(f"v_mov_b32 v{VB[1]+i}, 0")

def gen_attn(g):
    A = g.A
    A("Lattn:\ns_setprio 2")
    head_params(A)
    A(f"""
    v_lshlrev_b32 v{vL8}, 3, v0
    s_lshl_b32 s31, s18, 3
    s_lshl_b32 s32, s20, 1
    s_add_u32 s32, s31, s32
    s_mul_i32 s34, s21, {MB}
    s_add_u32 s34, s34, s39
    s_lshl_b32 s35, s32, 10
    s_add_u32 s35, s35, s34
    s_add_u32 s34, s39, {LEFT}
    s_lshl_b32 s37, s32, 8
    s_add_u32 s37, s37, s34
    v_and_b32 v{aT1}, 31, v0
    v_lshrrev_b32 v{aT0}, 5, v0
    v_mul_u32_u24 v{aT3}, 288, v{aT0}
    v_lshl_add_u32 v{aT2}, v{aT1}, 4, v{aT3}
    v_add_u32 v{vV0}, s23, v{aT2}
    v_mov_b32 v{vVinc}, {4*VT}
    v_mov_b32 v{aT2}, {CONST+240}
    v_mov_b32 v{aT3}, {CONST+224}
    v_cmp_eq_u32 vcc, 18, v{aT1}
    v_subrev_u32 v{aT0}, 20, v{aT1}
    v_cmp_gt_u32 s[52:53], 8, v{aT0}
    v_cndmask_b32 v{aT2}, v{aT2}, v{aT3}, vcc
    v_mov_b32 v{aT3}, {CONST+176}
    v_cmp_lt_u32 vcc, 17, v{aT1}
    v_cndmask_b32 v{aT2}, v{aT2}, v{aT3}, s[52:53]
    s_mov_b32 s50, 0
    v_cndmask_b32 v{vV0}, v{vV0}, v{aT2}, vcc
    v_cndmask_b32 v{vVinc}, v{vVinc}, 0, vcc
    v_cmp_gt_u32 vcc, 32, v0
    s_cmp_eq_u32 s21, 0
    s_cselect_b64 s[52:53], -1, 0
    s_cselect_b64 s[54:55], 0, -1
    s_and_b64 s[56:57], s[52:53], vcc
    s_and_b64 s[58:59], s[54:55], vcc
    s_andn2_b64 s[60:61], s[52:53], vcc
    s_andn2_b64 s[62:63], s[54:55], vcc
    v_lshlrev_b32 v{aT2}, 3, v{aT1}
    v_add_u32 v{vKM0}, s22, v{vL8}
    v_add_u32 v{vKL0}, s24, v{vL8}
    s_lshl_b32 s25, s20, 8
    s_add_u32 s25, s25, {UC}
    v_lshlrev_b32 v{vCA}, 2, v0
    v_add_u32 v{vCA}, s25, v{vCA}
    v_mov_b32 v{vOne}, 2
    s_mul_i32 s25, s32, {36*1024}
    s_add_u32 s25, s25, {OF}
    s_lshl_b32 s48, s17, 10
    s_add_u32 s48, s48, s25
    s_lshl_b32 s49, s17, 7
    s_add_u32 s49, s49, s25
    s_add_u32 s49, s49, 32768
    """)
    zero_acc(A)
    A("s_cmp_lg_u32 s16, 0\ns_cbranch_scc1 La_w")
    if opt('NEED', 1):
        A(f"""
        s_mul_i32 s25, s26, 36
        s_mov_b64 s[28:29], 0
        s_lshr_b32 s27, s25, 7
        s_bitset1_b32 s28, s27
        s_add_u32 s27, s25, 35
        s_lshr_b32 s27, s27, 7
        s_bitset1_b32 s28, s27
        s_add_u32 s27, s25, 576
        s_lshr_b32 s27, s27, 7
        s_bitset1_b32 s28, s27
        s_add_u32 s27, s25, 611
        s_lshr_b32 s27, s27, 7
        s_bitset1_b32 s28, s27
        s_add_u32 s27, s25, 1152
        s_lshr_b32 s27, s27, 7
        s_bitset1_b32 s28, s27
        s_add_u32 s27, s25, 1187
        s_lshr_b32 s27, s27, 7
        s_bitset1_b32 s28, s27
        """)
    if opt('HIER', 0): g.poll(GOFF//4, 14, 16, 204, sl=opt('P1SL', 1), mask="s[28:29]", sh=2)
    else: g.poll(0, 14, 16, 204, mask="s[28:29]")
    A(f"""
    v_mov_b32 v{TMP}, {SY+32}
    v_mov_b32 v{TMP+1}, 1
    ds_write_b32 v{TMP}, v{TMP+1}
La_w:
    """)
    g.wait_words(SY+32, 1, TMP, n=1)
    g.stamp(7)
    dma_iter(A)
    A(f"""
    buffer_load_dwordx2 {V(Q1A,2)}, v{vL8}, s[12:15], s35 offen {SC}
    buffer_load_dwordx2 {V(Q1A+2,2)}, v{vL8}, s[12:15], s35 offen offset:512 {SC}
    buffer_load_dwordx2 {V(Q1B,2)}, v{vL8}, s[12:15], s35 offen offset:1024 {SC}
    buffer_load_dwordx2 {V(Q1B+2,2)}, v{vL8}, s[12:15], s35 offen offset:1536 {SC}
    buffer_load_dwordx2 {V(Q2A,2)}, v{aT2}, s[12:15], s37 offen {SC}
    buffer_load_dwordx2 {V(Q2B,2)}, v{aT2}, s[12:15], s37 offen offset:256 {SC}
    s_cmp_lt_u32 s2, 224
    s_cbranch_scc1 La_n12
    """)
    dma_n(g, 2)
    A(f"""
    s_mov_b32 s30, 1
    s_waitcnt vmcnt(10)
    s_branch La_n13
La_n12:
    s_mov_b32 s30, 0
    s_waitcnt vmcnt(0)
La_n13:
    """)
    g.post(9, TMP)
    for Q in (Q2A, Q2B):
        A(f"""
        v_cndmask_b32 v{Q+2}, 0, v{Q}, s[60:61]
        v_cndmask_b32 v{Q+3}, 0, v{Q+1}, s[62:63]
        v_cndmask_b32 v{Q}, 0, v{Q}, s[56:57]
        v_cndmask_b32 v{Q+1}, 0, v{Q+1}, s[58:59]
        """)
    g.wait_words(SY, 9, TMP)
    g.stamp(8)
    A(f"""
    ds_read2st64_b64 {V(KB[0],4)}, v{vKM0} offset0:0 offset1:1
    ds_read2st64_b64 {V(KL,4)}, v{vKL0} offset0:0 offset1:1
    s_waitcnt lgkmcnt(0)
    {m16(SA, KB[0], Q1A, 0)}
    {m16(SB, KB[0], Q1B, 0)}
    {m8(SA, KL, Q2A)}
    {m8(SB, KL, Q2B)}
    s_nop 10
    """)
    maxtree(A, aT0, SA)
    maxtree(A, aT1, SB)
    A(f"""
La_setm:
    v_mov_b32 v{aT2}, v{aT0}
    v_mov_b32 v{aT3}, v{aT1}
    v_mov_b32 v{vKM}, v{vKM0}
    v_mov_b32 v{vKL}, v{vKL0}
    v_permlane32_swap_b32 v{aT0}, v{aT2}
    v_permlane32_swap_b32 v{aT1}, v{aT3}
    v_mov_b32 v{vV}, v{vV0}
    ds_read_b128 {V(VB[0],4)}, v{vV0}
    ds_read_b128 {V(VB[0]+4,4)}, v{vV0} offset:576
    v_max_f32 v{aT0}, v{aT0}, v{aT2}
    v_max_f32 v{aT1}, v{aT1}, v{aT3}
    """)
    for i in range(16): A(f"v_sub_f32 v{NMA+i}, 0, v{aT0}")
    A(f"""
    v_sub_f32 v{NMB}, 0, v{aT1}
    s_mov_b32 s51, 0
    {m16(SA, KB[0], Q1A, V(NMA,16))}
    {m8(SA, KL, Q2A)}
    """)
    for i in range(1, 16): A(f"v_sub_f32 v{NMB+i}, 0, v{aT1}")
    A("s_setprio 0")
    g.stamp(9)
    if g.dbg and 'its' in EXP: A("s_mov_b32 s55, 0\nv_mov_b32 v214, 0\nv_writelane_b32 v214, s88, 0\nv_writelane_b32 v214, s90, 32")
    A(".p2align 6\nLa_loop:")
    KLB = [KL, KL2]
    for J in range(8):
        j = J & 3; hb = J >> 2
        b = j & 1; nb = b ^ 1
        koff = 2*(J+1)
        ex = [[f"ds_read2st64_b64 {V(KB[nb],4)}, v{vKM} offset0:{koff} offset1:{koff+1}"], [], [], ["s_waitcnt lgkmcnt(0)"]]
        if J == 0: ex[2] = ["s_min_u32 s53, s51, 12"]
        if J == 1: ex[0].append(f"ds_add_rtn_u32 v{vCR}, v{vCA}, v{vOne}")
        if J == 2: ex[2] = ["s_lshr_b32 s52, s52, 8"]
        if j == 3:
            ex[0].append(f"ds_read2st64_b64 {V(KLB[hb ^ 1],4)}, v{vKL} offset0:{2*hb+2} offset1:{2*hb+3}")
            ex[1] = [f"v_add_u32 v{vV}, v{vVinc}, v{vV}"]
        if J == 7: ex[2] = ["s_cmp_lt_u32 s51, 16"]
        klp = KLB[hb] + 2*(j >> 1)
        phase(A, SA, PA, [m16(SB, KB[b], Q1B, V(NMB,16)), m8(SB, klp, Q2B + 2*(j & 1)),
                          m16(OB, VB[nb], PB, V(OB,16)), m16(OB, VB[nb]+4, PB+4, V(OB,16))], ex)
        jn = (j+1) & 3; hn = ((J+1) & 7) >> 2
        klp = KLB[hn] + 2*(jn >> 1)
        ex = [[], [], [f"ds_read_b128 {V(VB[nb],4)}, v{vV} offset:{jn*VT}"], [f"ds_read_b128 {V(VB[nb]+4,4)}, v{vV} offset:{jn*VT+576}"]]
        if J == 0: ex[0] = ["s_add_u32 s51, s51, 2"]
        if J == 1: ex[1] = [f"v_readfirstlane_b32 s52, v{vCR}"]
        if J == 6:
            ex[0] = ["s_cmp_ge_u32 s53, s52"]
            ex[3] += ["s_cbranch_scc1 La_chk", "La_chkd:"]
        if J == 7:
            ex[1] = [f"v_add_u32 v{vKM}, 8192, v{vKM}", f"v_add_u32 v{vKL}, 2048, v{vKL}"]
        phase(A, SB, PB, [m16(SA, KB[nb], Q1A, V(NMA,16)), m8(SA, klp, Q2A + 2*(jn & 1)),
                          m16(OA, VB[b], PA, V(OA,16)), m16(OA, VB[b]+4, PA+4, V(OA,16))], ex)
    if g.dbg and 'its' in EXP:
        A(f"""
        s_memrealtime s[88:89]
        s_memtime s[90:91]
        s_mov_b32 m0, s51
        s_waitcnt lgkmcnt(0)
        v_writelane_b32 v214, s88, m0
        s_add_u32 m0, s51, 32
        s_nop 0
        v_writelane_b32 v214, s90, m0
        s_cmp_lt_u32 s51, 16
        """)
    A("s_cbranch_scc1 La_loop")
    A(f"""
    s_setprio 2
    {m16(OB, VB[1], PB, V(OB,16))}
    {m16(OB, VB[1]+4, PB+4, V(OB,16))}
    """)
    g.stamp(10)
    A(f"v_lshlrev_b32 v{aT2}, 2, v0\nv_mov_b32 v{aT3}, 0")
    for n, (O, P) in enumerate(((OA, PA), (OB, PB))):
        A(f"""
        v_mov_b32 v{aT0}, v{O+10}
        v_mov_b32 v{aT1}, v{O+10}
        """)
        for i in range(11): A(f"v_add_f32 v{aT3}, |v{O+i}|, v{aT3}")
        A(f"""
        v_permlane32_swap_b32 v{aT0}, v{aT1}
        s_nop 1
        v_rcp_f32 v{aT0}, v{aT0}
        s_add_u32 s25, s48, {n*36*1024}
        s_add_u32 s27, s49, {n*36*1024}
        """)
        for i in range(10): A(f"v_mul_f32 v{O+i}, v{O+i}, v{aT0}")
        for i in range(5): A(f"v_cvt_pk_bf16_f32 v{P+i}, v{O+2*i}, v{O+2*i+1}")
        A(f"""
        buffer_store_dwordx4 {V(P,4)}, v{vL16}, s[12:15], s25 offen {SC}
        s_mov_b32 exec_hi, 0
        buffer_store_dword v{P+4}, v{aT2}, s[12:15], s27 offen {SC}
        s_mov_b32 exec_hi, -1
        """)
    A(f"""
    v_mov_b32 v{aT1}, 0x71800000
    v_cmp_nlt_f32 vcc, v{aT3}, v{aT1}
    v_mov_b32 v{aT3}, {FLAG}
    v_mov_b32 v{aT2}, 1
    s_cmp_lg_u32 s50, 0
    s_cbranch_scc1 Lp3
    s_cbranch_vccz Lp3
    ds_write_b32 v{aT3}, v{aT2}
    s_branch Lp3
La_chk:
    s_cmp_eq_u32 s30, 0
    s_cbranch_scc1 La_chk0
    s_mov_b32 s30, 0
    s_waitcnt vmcnt(0)
    """)
    g.gsync(10, TMP)
    A(f"""
    v_mov_b32 v{TMP}, {4 << 8}
    ds_add_u32 v{vCA}, v{TMP}
La_chk0:
    s_mov_b32 s93, {SPIN}
La_chk1:
    ds_read_b32 v{vCR}, v{vCA}
    s_waitcnt lgkmcnt(0)
    v_readfirstlane_b32 s52, v{vCR}
    s_lshr_b32 s52, s52, 8
    s_cmp_lt_u32 s53, s52
    s_cbranch_scc1 La_chkd
    s_sleep 1
    s_sub_u32 s93, s93, 1
    s_cmp_lg_u32 s93, 0
    s_cbranch_scc1 La_chk1
    s_branch La_chkd
La_slow:
    s_mov_b32 s50, 1
    s_barrier
    v_mov_b32 v{aT0}, {14 << 8}
    ds_write_b32 v{vCA}, v{aT0}
    v_mov_b32 v{aT3}, {FLAG}
    v_mov_b32 v{aT2}, 0
    ds_write_b32 v{aT3}, v{aT2}
    v_mov_b32 v{vKM}, v{vKM0}
    v_mov_b32 v{vKL}, v{vKL0}
    v_mov_b32 v{aT0}, 0xff800000
    v_mov_b32 v{aT1}, 0xff800000
    s_mov_b32 s51, 16
    s_waitcnt lgkmcnt(0)
    s_barrier
La_maxloop:
    ds_read2st64_b64 {V(KL,4)}, v{vKL} offset0:0 offset1:1
    """)
    for j in range(4):
        A(f"""
        ds_read2st64_b64 {V(KB[0],4)}, v{vKM} offset0:{2*j} offset1:{2*j+1}
        s_waitcnt lgkmcnt(0)
        {m16(SA, KB[0], Q1A, 0)}
        {m16(SB, KB[0], Q1B, 0)}
        {m8(SA, KL+2*(j>>1), Q2A+2*(j&1))}
        {m8(SB, KL+2*(j>>1), Q2B+2*(j&1))}
        s_nop 11
        """)
        maxtree(A, aT0, SA, True)
        maxtree(A, aT1, SB, True)
    A(f"""
    v_add_u32 v{vKM}, 4096, v{vKM}
    v_add_u32 v{vKL}, 1024, v{vKL}
    s_sub_u32 s51, s51, 1
    s_cmp_lg_u32 s51, 0
    s_cbranch_scc1 La_maxloop
    ds_read2st64_b64 {V(KB[0],4)}, v{vKM0} offset0:0 offset1:1
    ds_read2st64_b64 {V(KL,4)}, v{vKL0} offset0:0 offset1:1
    """)
    zero_acc(A)
    A("s_waitcnt lgkmcnt(0)\ns_branch La_setm")

def gen_p3(g):
    A = g.A
    BW, ACC_, AF = 40, 184, 16
    wA = 196
    A(f"""
Lh_slow:
    s_barrier
    """)
    dma_skip(A, -8)
    dma_n(g, 8)
    A(f"""
    s_waitcnt vmcnt(0)
    s_barrier
Lh_p3:
    s_and_b32 s19, s2, 7
    s_lshr_b32 s33, s2, 3
    v_lshlrev_b32 v{TMP}, 7, v0
    s_cmp_ge_u32 s33, 24
    s_cbranch_scc0 Lh_wo
    s_branch Lp3
Lh_wo:
    """)
    g.srd(4, pWO, WOB)

    for i in range(3):
        A(f"""
        v_add_u32 v1, {64*i}, v0
        v_mul_u32_u24 v2, 5462, v1
        v_lshrrev_b32 v2, 16, v2
        v_mul_u32_u24 v3, 12, v2
        v_sub_u32 v1, v1, v3
        v_mul_u32_u24 v2, 1152, v2
        v_lshl_add_u32 v{wA+i}, v1, 4, v2
        """)
    A(f"""
    v_subrev_u32 v{wA+1}, 1024, v{wA+1}
    v_subrev_u32 v{wA+2}, 2048, v{wA+2}
    s_lshr_b32 s25, s33, 2
    s_mul_i32 s28, s25, 192
    s_mul_i32 s25, s20, {16*1152}
    s_add_u32 s28, s28, s25
    """)
    for half, (n, base) in enumerate(((13, "s23"), (15, "s22"))):
        wait_progress(g, n, 6)
        A(f"""
        s_add_u32 s27, s28, {half*288*1152}
        s_mul_i32 s25, s20, 3072
        s_add_u32 s25, s25, {base}
        s_mov_b32 s31, s20
Lo_wo{half}:
        s_mov_b32 m0, s25
        s_add_u32 s31, s31, 4
        buffer_load_dwordx4 v{wA}, s[4:7], s27 offen lds
        buffer_load_dwordx4 v{wA+1}, s[4:7], s27 offen offset:1024 lds
        buffer_load_dwordx4 v{wA+2}, s[4:7], s27 offen offset:2048 lds
        s_add_u32 s27, s27, {4*16*1152}
        s_add_u32 s25, s25, {4*3072}
        s_cmp_lt_u32 s31, 18
        s_cbranch_scc1 Lo_wo{half}
        """)
    A(f"""
Lp3:
    v_mov_b32 v{TMP+1}, {FLAG}
    s_lshl_b32 s30, s18, 2
    s_lshr_b32 s25, s17, 3
    s_add_u32 s30, s30, s25
    s_add_u32 s30, s30, 32
    s_waitcnt vmcnt(0) lgkmcnt(0)
    s_barrier
    ds_read_b32 v{TMP}, v{TMP+1}
    s_and_b32 s19, s2, 7
    s_lshr_b32 s33, s2, 3
    s_waitcnt lgkmcnt(0)
    v_readfirstlane_b32 s25, v{TMP}
    s_cmp_eq_u32 s25, 0
    s_cbranch_scc1 Lp3_ok
    s_cmp_lt_u32 s16, 4
    s_cbranch_scc1 La_slow
    s_branch Lh_slow
Lp3_ok:
    """)
    g.stamp(11)
    A("s_cmp_lg_u32 s16, 7\ns_cbranch_scc1 Lp3_1")
    A("s_lshl_b64 s[28:29], 1, s18")
    g.signal("s30", 14, mask="s[28:29]" if opt('PMASK', 1) else None)
    A(f"""
Lp3_1:
    s_cmp_ge_u32 s33, 24
    s_cbranch_scc1 Lp3_s3
    s_and_b32 s17, s33, 3
    s_lshl_b32 s19, s19, 2
    s_add_u32 s17, s17, s19            ; tb
    s_lshr_b32 s18, s33, 2             ; ng
    s_mov_b32 s28, s23
    s_mov_b32 s29, s22
    s_and_b32 s23, s16, 1
    s_lshr_b32 s24, s16, 1
    v_lshlrev_b32 v12, 4, v0
    s_cmp_ge_u32 s16, 6
    s_cbranch_scc1 Lo_nopre
    v_lshrrev_b32 v1, 5, v0
    v_bfe_u32 v2, v0, 2, 2
    v_bfe_u32 v3, v0, 4, 1
    v_lshlrev_b32 v3, 5, v3
    v_and_b32 v7, 3, v0
    v_lshl_add_u32 v3, v7, 3, v3
    s_lshl_b32 s25, s24, 6
    v_add_u32 v3, s25, v3
    v_lshl_add_u32 v7, v1, 2, v2
    v_mul_u32_u24 v7, 192, v7
    v_add3_u32 v8, v7, v3, s28
    v_add3_u32 v9, v7, v3, s29
    v_mul_u32_u24 v7, 72, v1
    v_lshrrev_b32 v10, 1, v2
    v_mul_u32_u24 v10, 18, v10
    v_add_u32 v7, v7, v10
    v_and_b32 v10, 1, v2
    v_add3_u32 v7, v7, v10, 16
    v_mul_u32_u24 v7, 192, v7
    v_add3_u32 v10, v7, v3, s28
    v_add3_u32 v11, v7, v3, s29
    """)
    for s_ in range(36):
        for e in range(2):
            if s_ < 32: base, off = (8, (18*s_ + 8*e)*192) if s_ < 16 else (9, (18*(s_-16) + 8*e)*192)
            else: base, off = (10 + ((s_-32) >> 1), (144*((s_-32) & 1) + 36*e)*192)
            A(f"ds_read_b64_tr_b16 {V(BW+4*s_+2*e,2)}, v{base} offset:{off}")
        if s_ % 6 == 5: A("s_waitcnt lgkmcnt(4)")
    A("Lo_nopre:")
    g.srd(44, pOUT, OUTB)
    for i in range(16): A(f"v_mov_b32 v{ACC_+i}, 0")
    TR = 81920
    A(f"""
    s_mul_i32 s20, s17, {2*36*1024}
    s_add_u32 s20, s20, {OF}
    s_mul_i32 s21, s23, {36*1024}
    s_add_u32 s20, s20, s21
    s_lshl_b32 s21, s24, 10
    s_add_u32 s20, s20, s21
    s_lshl_b32 s21, s23, 10
    v_add_u32 v13, s21, v12
    v_and_b32 v1, 31, v0
    v_lshlrev_b32 v1, 2, v1
    v_lshrrev_b32 v2, 5, v0
    v_lshl_add_u32 v1, v2, 9, v1
    s_add_u32 s21, s21, 65536
    v_add_u32 v201, s21, v1
    v_add_u32 v202, 2048, v201
    v_add_u32 v203, 4096, v201
    v_add_u32 v204, 6144, v201
    v_and_b32 v1, 31, v0
    s_lshl_b32 s21, s23, 5
    v_add_u32 v1, s21, v1
    v_mul_u32_u24 v1, 208, v1
    v_lshl_add_u32 v1, v2, 3, v1
    s_lshl_b32 s21, s24, 6
    s_add_u32 s21, s21, {TR}
    v_add_u32 v200, s21, v1
    s_mul_i32 s26, s17, {64*2304}
    s_mul_i32 s22, s18, 192
    s_add_u32 s26, s26, s22
    s_lshl_b32 s22, s16, 7
    """)
    for i in range(2):
        A(f"""
        v_add_u32 v1, s22, v0
        v_add_u32 v1, {64*i}, v1
        v_mul_u32_u24 v2, 5462, v1
        v_lshrrev_b32 v2, 16, v2
        v_mul_u32_u24 v3, 12, v2
        v_sub_u32 v1, v1, v3
        v_lshlrev_b32 v1, 4, v1
        v_mul_u32_u24 v3, 208, v2
        v_add_u32 v{4+i}, v3, v1
        v_add_u32 v{4+i}, {TR}, v{4+i}
        v_mul_u32_u24 v3, 2304, v2
        v_add_u32 v{6+i}, v3, v1
        """)
    A("s_lshl_b32 s21, s16, 10\ns_waitcnt lgkmcnt(0)")
    g.stamp(12)
    A("s_cmp_lg_u32 s16, 7\ns_cbranch_scc1 Lp3_h\ns_add_u32 s25, s19, 32")
    g.poll("s25", 4, 8, 208, fast=opt('FASTP', 0))
    A("Lp3_h:\ns_barrier")
    g.stamp(13)
    for rr in range(9):
        A(f"""
        s_mov_b32 m0, s21
        s_add_u32 s21, s21, 8192
        buffer_load_dwordx4 v12, s[12:15], s20 offen lds {SC}
        s_add_u32 s20, s20, 4096
        """)
    AFB = [16, 216]
    def rd(s_, reg):
        off = 2048*s_ - (49152 if s_ >= 24 else 0)
        if s_ < 32: return [f"ds_read_b128 {V(reg,4)}, v{13 if s_ < 24 else 14} offset:{off}"]
        return [f"ds_read2_b32 {V(reg,2)}, v{201+s_-32} offset0:0 offset1:32", f"ds_read2_b32 {V(reg+2,2)}, v{201+s_-32} offset0:64 offset1:96"]
    A("v_add_u32 v14, 49152, v13")
    A("s_waitcnt vmcnt(6)\ns_barrier\ns_cmp_ge_u32 s16, 6\ns_cbranch_scc1 Lo_idle")
    for i in range(6):
        for r in rd(i, AFB[0]+4*i): A(r)
    for grp in range(6):
        nxt = grp + 1
        if nxt < 6 and nxt % 2 == 0: A(f"s_waitcnt vmcnt({6-3*(nxt//2)})\ns_barrier")
        for i in range(6):
            s_ = 6*grp + i
            n_rest = sum(len(rd(x, 0)) for x in range(s_+1, 6*grp+6))
            n_next = sum(len(rd(6*nxt+x, 0)) for x in range(i)) if nxt < 6 else 0
            A(f"s_waitcnt lgkmcnt({min(15, n_rest + n_next)})")
            A(f"v_mfma_f32_32x32x16_bf16 {V(ACC_,16)}, {V(BW+4*s_,4)}, {V(AFB[grp & 1]+4*i,4)}, {V(ACC_,16)}")
            if nxt < 6:
                for r in rd(6*nxt+i, AFB[nxt & 1]+4*i): A(r)
    g.stamp(14)
    A("s_nop 11")
    for q in range(4):
        A(f"""
        v_cvt_pk_bf16_f32 v{AF+2*q}, v{ACC_+4*q}, v{ACC_+4*q+1}
        v_cvt_pk_bf16_f32 v{AF+2*q+1}, v{ACC_+4*q+2}, v{ACC_+4*q+3}
        ds_write_b64 v200, {V(AF+2*q,2)} offset:{16*q}
        """)
    A(f"""
    s_waitcnt lgkmcnt(0)
    s_barrier
    ds_read_b128 {V(AF,4)}, v4
    ds_read_b128 {V(AF+4,4)}, v5
    s_waitcnt lgkmcnt(1)
    buffer_store_dwordx4 {V(AF,4)}, v6, s[44:47], s26 offen {SC}
    s_waitcnt lgkmcnt(0)
    buffer_store_dwordx4 {V(AF+4,4)}, v7, s[44:47], s26 offen {SC}
    s_branch Lfin
Lo_idle:
    s_waitcnt vmcnt(3)
    s_barrier
    s_waitcnt vmcnt(0)
    s_barrier
    s_branch Lfin
Lp3_s3:
    s_sub_u32 s20, s33, 24
    s_lshl_b32 s17, s19, 3
    s_add_u32 s17, s17, s20
    s_mov_b64 s[6:7], s[{pOUT}:{pOUT+1}]
    s_mov_b64 s[48:49], s[{pWS}:{pWS+1}]
    s_mov_b64 s[50:51], s[{pQ}:{pQ+1}]
    """)
    g.poll(16, 16, 18, 16)
    k3.gen_stage3(A, "Ls3", False, SC)
    A("Lfin:")
    g.end()

def gen(name, dbg=False):
    g = G(dbg); A = g.A
    A("Lcode_begin:")
    A(f"""
    s_cmp_ge_u32 s2, 256
    s_cbranch_scc1 Lend
    s_load_dwordx16 s[64:79], s[0:1], 0
    s_load_dwordx8 s[80:87], s[0:1], 64
    v_lshrrev_b32 v1, 6, v0
    v_and_b32 v0, 63, v0
    v_readfirstlane_b32 s16, v1
    """)
    if dbg: A(f"v_mov_b32 v{vST}, 0")
    g.stamp(0)
    A(f"""
    s_lshl_b32 s3, s16, 2
    s_add_u32 s3, s3, {SY}
    s_and_b32 s94, s3, {0xffffffff & ~15}
    s_cmp_ge_u32 s2, 224
    s_cbranch_scc1 Ls1
    """)
    gen_gemm(g)
    A("Ls1:")
    gen_stage1(g)
    gen_attn(g)
    gen_p3(g)
    A("Lend:\ns_endpgm\nLcode_end:")
    return A.text()

DOC = """; ---------------------------------------------------------------------------------------------------
;  launch zeroes itself (ready words in d_debug); consumers poll with sc1 loads and read the data with sc1 loads,
; ---------------------------------------------------------------------------------------------------
"""
if __name__ == "__main__":
    import sys
    out = sys.argv[1]; dbg = len(sys.argv) > 2 and sys.argv[2] == "dbg"
    name = "concat_heads__softmax_full_mha__ssm_conv_h3__prompt_kernel"
    HDR = open("concat_heads__softmax_full_mha__ssm_conv_h3__prompt.s.ref").read().split("; Override launch")[0]
    s = HDR
    if (dbg and not os.environ.get('DD') and not os.environ.get('AMP')) or 'list' in EXP: s += f"; @launch kernel={name} grid=(256,1,1) block=(512,1,1) lds={LDS_BYTES}\n"
    else: s += f"; @launch grid=(256,1,1) block=(512,1,1) lds={LDS_BYTES}\n"
    s += DOC
    s += '.amdgcn_target "amdgcn-amd-amdhsa--gfx950"\n.text\n' + kernel_head(name) + gen(name, dbg)
    s += '.section .rodata,"a"\n' + kernel_desc(name, NVGPR, 102)
    open(out, "w").write(s)
```

```python
import os, struct, math
from asmlib import *
from layout import *
import kconv
EXP = os.environ.get('FEXP', '').split(',')
def opt(name, default): return int(os.environ.get(name, default))

CS_BITS = struct.unpack("<I", struct.pack("<f", math.log2(math.e)/math.sqrt(18)))[0]
XB, WB, OUTB, WOB = 2048*1152, 576*3456, 2048*2304, 576*1152
NVGPR = 248
LDS_BYTES = 163840
vST = 215
pX, pW, pWO, pQ, pK, pV, pSH, pH, pD, pOUT, pDBG, pWS = [64+2*i for i in range(12)]
WIN = 65536 + VSZ + 16384
CONST = WIN
UC = WIN + 4352
XCH = WIN + 6144
SY = WIN + 5376
SC = "sc1"
NTG = 'nt' if 'ntg' in EXP else ''
NTB = 'nt' if 'ntb' in EXP else ''
SPIN = 200000
NREP = opt('NREP', 8)
GOFF = 120*256

class G:
    def __init__(self, dbg):
        self.A = Asm(); self.dbg = dbg; self.n = 0
    def lab(self, p="L"):
        self.n += 1; return f"{p}{self.n}"
    def stamp(self, i):
        if self.dbg:
            self.A(f"""
            s_memrealtime s[88:89]
            s_memtime s[90:91]
            s_waitcnt lgkmcnt(0)
            v_writelane_b32 v{vST}, s88, {i}
            v_writelane_b32 v{vST}, s90, {32+i}
            """)
    def srd(self, d, p, n):
        self.A(f"s_mov_b32 s{d}, s{p}\ns_mov_b32 s{d+1}, s{p+1}\ns_mov_b32 s{d+2}, {n}\ns_mov_b32 s{d+3}, 0x20000")
    def end(self):
        A = self.A
        if self.dbg:
            A("s_mov_b64 exec, -1\ns_waitcnt vmcnt(0)")
            self.stamp(31)
            A(f"""
            s_lshl_b32 s25, s2, 3
            s_add_u32 s25, s25, s16
            s_lshl_b32 s25, s25, 8
            s_add_u32 s25, s25, {STAMP}
            v_lshlrev_b32 v1, 2, v0
            buffer_store_dword v{vST}, v1, s[12:15], s25 offen
            s_add_u32 s25, s25, {2048*256}
            buffer_store_dword v214, v1, s[12:15], s25 offen
            """)
        amp = os.environ.get('AMP')
        if self.dbg and amp:
            wg, w, i, j = [int(x) for x in amp.split(',')]
            A(f"""
            s_cmp_lg_u32 s2, {wg}
            s_cbranch_scc1 Lam_e
            s_cmp_lg_u32 s16, {w}
            s_cbranch_scc1 Lam_e
            v_readlane_b32 s40, v{vST}, {i}
            v_readlane_b32 s41, v{vST}, {j}
            s_memrealtime s[42:43]
            s_nop 3
            s_sub_u32 s41, s41, s40
            s_min_u32 s41, s41, 10000
            s_lshl_b32 s41, s41, 3
            s_add_u32 s41, s41, {os.environ.get('AMPC', '0')}
            s_waitcnt lgkmcnt(0)
Lam_l:
            s_memrealtime s[44:45]
            s_waitcnt lgkmcnt(0)
            s_sub_u32 s44, s44, s42
            s_cmp_lt_u32 s44, s41
            s_cbranch_scc1 Lam_l
Lam_e:
            """)
        dd = os.environ.get('DD')
        if self.dbg and dd:
            wg, w, *idx = [int(x) for x in dd.split(',')]
            A(f"""
            s_cmp_lg_u32 s2, {wg}
            s_cbranch_scc1 Ldd_e
            s_cmp_lg_u32 s16, {w}
            s_cbranch_scc1 Ldd_e
            v_readlane_b32 s40, v{vST}, 0
            v_mov_b32 v2, 0
            """)
            for k, i in enumerate(idx):
                A(f"""
                v_readlane_b32 s41, v{vST}, {i}
                s_nop 3
                s_sub_u32 s41, s41, s40
                v_mov_b32 v3, s41
                global_store_dword v2, v3, s[{pDBG}:{pDBG+1}] offset:{32+4*k}
                """)
            A("Ldd_e:")
        A("s_endpgm")
    def post(self, val, t):
        self.A(f"""
        v_mov_b32 v{t}, s3
        v_mov_b32 v{t+1}, {val}
        ds_write_b32 v{t}, v{t+1}
        """)
    def wait_words(self, addr, val, t, n=4, sl=1):
        l = self.lab("Lw"); d = self.lab("Ld")
        rd = f"ds_read_b128 {V(t,4)}, v{t+4}" if n == 4 else f"ds_read_b32 v{t}, v{t+4}"
        mn = f"v_min_u32 v{t}, v{t}, v{t+1}\nv_min3_u32 v{t}, v{t}, v{t+2}, v{t+3}\ns_nop 0" if n == 4 else ""
        self.A(f"""
        v_mov_b32 v{t+4}, {addr}
        s_mov_b32 s93, {SPIN}
{l}:
        {rd}
        s_waitcnt lgkmcnt(0)
        {mn}
        v_readfirstlane_b32 s92, v{t}
        s_cmp_ge_u32 s92, {val}
        s_cbranch_scc1 {d}
        s_sleep {sl}
        s_sub_u32 s93, s93, 1
        s_cmp_lg_u32 s93, 0
        s_cbranch_scc1 {l}
{d}:
        """)
    def gsync(self, val, t):
        self.post(val, t)
        self.wait_words("s94", val, t)
    def ready(self, t):
        l = self.lab("Lr"); d = self.lab("Ld")
        self.A(f"""
        v_and_b32 v{t+1}, {NREP-1}, v0
        v_lshlrev_b32 v{t+1}, 2, v{t+1}
        s_mov_b32 s93, {SPIN}
{l}:
        global_load_dword v{t}, v{t+1}, s[{pDBG}:{pDBG+1}] {SC}
        s_waitcnt vmcnt(0)
        v_cmp_eq_u32 vcc, 0, v{t}
        s_nop 3
        s_cmp_eq_u64 vcc, 0
        s_cbranch_scc1 {d}
        s_sleep 2
        s_sub_u32 s93, s93, 1
        s_cmp_lg_u32 s93, 0
        s_cbranch_scc1 {l}
{d}:
        """)
    def signal(self, sidx, t, mask=None):
        self.A(f"""
        s_lshl_b32 s92, {sidx}, 8
        s_add_u32 s92, s92, {CNT}
        v_lshlrev_b32 v{t}, 15, v0
        v_mov_b32 v{t+1}, 1
        s_mov_b64 exec, {mask or (1 << NREP) - 1}
        buffer_atomic_add v{t+1}, v{t}, s[12:15], s92 offen {SC}
        s_mov_b64 exec, -1
        """)
    def poll(self, first, n, target, t, sl=None, fast=False, mask=None, sh=8):
        l = self.lab("Lp"); d = self.lab("Ld")
        self.A(f"""
        v_min_u32 v{t+1}, {n-1}, v0
        v_add_u32 v{t+1}, {first}, v{t+1}
        v_lshlrev_b32 v{t+1}, {sh}, v{t+1}
        s_mov_b32 s93, {SPIN}
        s_and_b32 s92, s2, {NREP-1}
        s_lshl_b32 s92, s92, 15
        s_add_u32 s92, s92, {CNT}
        s_mov_b64 exec, {mask or (1 << n) - 1}
        {"" if not fast else f"buffer_load_dword v{t+2}, v{t+1}, s[12:15], s92 offen {SC}" + chr(10) + f"s_sleep {opt('FSL', 3)}"}
{l}:
        buffer_load_dword v{t}, v{t+1}, s[12:15], s92 offen {SC}
        s_waitcnt vmcnt({1 if fast else 0})
        v_cmp_le_u32 vcc, {target}, v{t+2 if fast else t}
        s_nop 3
        s_cmp_eq_u64 vcc, exec
        s_cbranch_scc1 {d}
        {"" if not fast else f"buffer_load_dword v{t+2}, v{t+1}, s[12:15], s92 offen {SC}" + chr(10) + "s_waitcnt vmcnt(1)" + chr(10) + f"v_cmp_le_u32 vcc, {target}, v{t}" + chr(10) + "s_nop 3" + chr(10) + "s_cmp_eq_u64 vcc, exec" + chr(10) + f"s_cbranch_scc1 {d}"}
        {"" if fast else f"s_sleep {sl or opt('PSLEEP', 2)}"}
        s_sub_u32 s93, s93, 1
        s_cmp_lg_u32 s93, 0
        s_cbranch_scc1 {l}
{d}:
        s_mov_b64 exec, -1
        """)

vT0, vT1, vT2, vT3, vTok, vHf = 1, 2, 3, 4, 5, 6
vXb, vWb, vX, vW, vEA, FR, ACC, PK = 8, 12, 14, 18, 20, 36, 68, 132
RING = 131072
FRB = [FR, FR+16, 148, 164]
def XF(b, i): return FRB[b] + 4*i
def WF(b, j): return FRB[b] + 8 + 4*j
def acc(i, j): return ACC + 16*(2*i + j)
def g_reads(b, s):
    return [f"ds_read_b128 {V(XF(b,0),4)}, v{vX+s}",
            f"ds_read_b64_tr_b16 {V(WF(b,0),2)}, v{vW} offset:{16384 + 4096*s}",
            f"ds_read_b64_tr_b16 {V(WF(b,0)+2,2)}, v{vW} offset:{16384 + 4096*s + 1024}",
            f"ds_read_b64_tr_b16 {V(WF(b,1),2)}, v{vW+1} offset:{16384 + 4096*s}",
            f"ds_read_b64_tr_b16 {V(WF(b,1)+2,2)}, v{vW+1} offset:{16384 + 4096*s + 1024}",
            f"ds_read_b128 {V(XF(b,1),4)}, v{vX+s} offset:4096"]
def g_mf(b, i, j, vtype):
    a, bb = (XF(b,i), WF(b,j)) if vtype else (WF(b,j), XF(b,i))
    return f"v_mfma_f32_32x32x16_bf16 {V(acc(i,j),16)}, {V(a,4)}, {V(bb,4)}, {V(acc(i,j),16)}"
def g_setaddr(A):
    for s in range(4): A(f"v_add_u32 v{vX+s}, s30, v{vXb+s}")
    for j in range(2): A(f"v_add_u32 v{vW+j}, s30, v{vWb+j}")
def g_loop(g, name, vtype, epi):
    A = g.A
    A("s_mov_b32 s31, 8\ns_barrier")
    for r in g_reads(0, 0): A(r)
    A(f".p2align 6\n{name}:")
    for s_ in range(4):
        b = s_ & 1
        rd = g_reads(b ^ 1, (s_+1) & 3)
        if s_ == 3:
            A("s_barrier")
            g_setaddr(A)
        A("s_waitcnt lgkmcnt(3)")
        A(g_mf(b, 0, 0, vtype))
        for r in rd[:3]: A(r)
        A("s_waitcnt lgkmcnt(4)")
        A(g_mf(b, 0, 1, vtype))
        for r in rd[3:]: A(r)
        A("s_waitcnt lgkmcnt(6)")
        A(g_mf(b, 1, 0, vtype))
        if s_ == 2:
            A(f"""
            s_add_u32 s30, s30, 32768
            s_and_b32 s30, s30, {RING-1}
            s_sub_u32 s31, s31, 1
            s_cmp_eq_u32 s31, 0
            """)
        A(g_mf(b, 1, 1, vtype))
    A(f"s_cbranch_scc0 {name}")
    first = [r for s_ in (1, 2, 3) for r in g_reads(s_, s_)[:3]]
    rest = [r for s_ in (1, 2, 3) for r in g_reads(s_, s_)[3:5]] + [g_reads(s_, s_)[5] for s_ in (1, 2, 3)]
    for r in first: A(r)
    for s_ in range(4):
        A(f"s_waitcnt lgkmcnt({9 - 3*s_ + 3*s_ if False else (9-3*s_) + min(3*s_, 9)})" if False else f"s_waitcnt lgkmcnt({9 - 3*s_ + 2*s_})")
        A(g_mf(s_, 0, 0, vtype))
        for r in rest[2*s_:2*s_+2] if s_ < 3 else rest[6:]: A(r)
    tiles = [(0, 1), (1, 0), (1, 1)]
    prev = (0, 0)
    for n, (i, j) in enumerate(tiles):
        e = epi(*prev)
        if n == 0: A("s_waitcnt lgkmcnt(3)")
        if n == 1: A("s_waitcnt lgkmcnt(0)")
        A(g_mf(0, i, j, vtype)); A("s_nop 7" if True else ""); A(g_mf(1, i, j, vtype))
        A("s_nop 1")
        h = len(e)//2
        for x in e[:h]: A(x)
        A(g_mf(2, i, j, vtype))
        for x in e[h:]: A(x)
        A(g_mf(3, i, j, vtype))
        prev = (i, j)
    g.stamp(2)
    A("s_nop 11")
    for x in epi(*prev): A(x)

def ld_chunk(g, skip=True):
    A = g.A; l = g.lab("Lk")
    if skip: A(f"s_cmp_lg_u32 s95, 0\ns_cbranch_scc1 {l}")
    A(f"""
    s_mov_b32 m0, s42
    s_add_u32 s26, s40, 8192
    buffer_load_dwordx4 v8, s[8:11], s40 offen lds
    s_add_u32 s27, s40, 16384
    buffer_load_dwordx4 v9, s[8:11], s26 offen offset:1024 lds
    s_add_u32 s26, s40, 24576
    buffer_load_dwordx4 v8, s[8:11], s27 offen offset:2048 lds
    s_add_u32 s28, s42, 16384
    buffer_load_dwordx4 v9, s[8:11], s26 offen offset:3072 lds
    s_mov_b32 m0, s28
    s_add_u32 s26, s41, {13824-1024}
    buffer_load_dwordx4 v10, s[44:47], s41 offen lds
    s_add_u32 s27, s41, {2*(13824-1024)}
    buffer_load_dwordx4 v10, s[44:47], s26 offen offset:1024 lds
    s_add_u32 s26, s41, {3*(13824-1024)}
    buffer_load_dwordx4 v10, s[44:47], s27 offen offset:2048 lds
    s_add_u32 s40, s40, 128
    buffer_load_dwordx4 v10, s[44:47], s26 offen offset:3072 lds
    s_add_u32 s41, s41, {64*3456}
    s_add_u32 s24, s24, 1
    s_cmp_eq_u32 s24, 9
    s_cselect_b32 s26, 1152, 0
    s_cselect_b32 s27, {WB}, 0
    s_sub_u32 s40, s40, s26
    s_sub_u32 s41, s41, s27
    s_add_u32 s42, s42, 32768
    s_cmp_ge_u32 s42, {RING}
    s_cselect_b32 s26, {RING}, 0
    s_sub_u32 s42, s42, s26
{l}:
    """)

def gen_gemm(g):
    A = g.A
    ROT = opt('ROT', 1)
    A(f"""
    s_and_b32 s17, s2, 7               ; xcd
    s_lshr_b32 s18, s2, 3              ; idx 0..27
    s_and_b32 s19, s17, 3
    s_lshl_b32 s19, s19, 2
    s_and_b32 s20, s18, 3
    s_add_u32 s19, s19, s20            ; mb
    s_lshr_b32 s21, s17, 2
    s_mul_i32 s21, s21, 7
    s_lshr_b32 s22, s18, 2
    s_add_u32 s21, s21, s22            ; ng
    s_cmp_lt_u32 s16, 4
    s_cbranch_scc1 Lg_compute
    s_and_b32 s23, s16, 3              ; u
    """)
    if ROT:
        A("""
        s_mul_i32 s24, s20, 5
        s_lshr_b32 s24, s24, 1
        s_add_u32 s24, s24, s22
        s_cmp_ge_u32 s24, 9
        s_cselect_b32 s25, 9, 0
        s_sub_u32 s24, s24, s25
        """)
    else: A("s_mov_b32 s24, 0")
    A(f"""
    s_lshl_b32 s25, s19, 7
    s_lshl_b32 s26, s23, 5
    s_add_u32 s25, s25, s26
    s_mul_i32 s25, s25, 1152
    s_lshl_b32 s26, s24, 7
    s_add_u32 s40, s25, s26            ; sX
    s_lshl_b32 s25, s24, 2
    s_add_u32 s25, s25, s23
    s_mul_i32 s25, s25, {16*3456}
    s_lshl_b32 s26, s21, 8
    s_add_u32 s41, s25, s26            ; sW
    s_lshl_b32 s42, s23, 12
    v_lshrrev_b32 v{vT0}, 3, v0
    v_mul_u32_u24 v{vT0}, 1152, v{vT0}
    v_lshrrev_b32 v{vT1}, 4, v0
    v_and_b32 v{vT2}, 7, v0
    v_xor_b32 v{vT2}, v{vT2}, v{vT1}
    v_lshl_add_u32 v8, v{vT2}, 4, v{vT0}
    v_xor_b32 v{vT2}, 4, v{vT2}
    v_lshl_add_u32 v9, v{vT2}, 4, v{vT0}       ; odd i
    v_mul_u32_u24 v{vT0}, 3456, v{vT1}
    v_and_b32 v{vT2}, 15, v0
    v_lshlrev_b32 v{vT1}, 2, v{vT1}
    v_xor_b32 v{vT2}, v{vT2}, v{vT1}
    v_lshl_add_u32 v10, v{vT2}, 4, v{vT0}      ; W addr
    s_mov_b32 s95, 0
    s_setprio {opt('LPRIO', 0)}
    s_waitcnt lgkmcnt(0)
    """)
    g.srd(8, pX, XB); g.srd(44, pW, WB)
    A(f"""
    s_mov_b32 s31, 0
Lld:
    s_cmp_lt_u32 s31, 2
    s_cbranch_scc1 Lld_go
    s_waitcnt vmcnt(8)
    s_barrier
Lld_go:
    """)
    ld_chunk(g, False)
    A(f"""
    s_add_u32 s31, s31, 1
    s_cmp_lt_u32 s31, 9
    s_cbranch_scc1 Lld
    s_waitcnt vmcnt(8)
    s_barrier
    """)
    g.srd(12, pWS, WS_END)
    A(f"""
    s_waitcnt vmcnt(0)
    s_barrier
    s_branch Lh_start
Lg_compute:
    s_and_b32 s23, s16, 1              ; wm
    s_lshr_b32 s24, s16, 1             ; wn
    v_and_b32 v{vTok}, 31, v0
    v_lshrrev_b32 v{vHf}, 5, v0
    s_lshl_b32 s25, s23, 13
    v_lshlrev_b32 v{vT0}, 7, v{vTok}
    v_add_u32 v{vT0}, s25, v{vT0}
    v_bfe_u32 v{vT1}, v0, 1, 3
    v_xor_b32 v{vT1}, v{vT1}, v{vHf}
    """)
    for s in range(4):
        A(f"v_xor_b32 v{vT2}, {2*s}, v{vT1}\nv_lshl_add_u32 v{vXb+s}, v{vT2}, 4, v{vT0}")
    A(f"""
    v_bfe_u32 v{vT0}, v0, 2, 2
    v_lshl_add_u32 v{vT1}, v{vHf}, 3, v{vT0}
    v_lshlrev_b32 v{vT1}, 8, v{vT1}
    v_bfe_u32 v{vT2}, v0, 4, 1
    v_lshl_add_u32 v{vT1}, v{vT2}, 5, v{vT1}
    v_and_b32 v{vT2}, 3, v0
    v_lshl_add_u32 v{vT1}, v{vT2}, 3, v{vT1}
    s_lshl_b32 s25, s24, 1
    v_xor_b32 v{vT2}, s25, v{vT0}
    v_lshl_add_u32 v{vWb}, v{vT2}, 6, v{vT1}
    v_xor_b32 v{vT2}, 1, v{vT2}
    v_lshl_add_u32 v{vWb+1}, v{vT2}, 6, v{vT1}
    s_mov_b32 s30, 0
    s_waitcnt lgkmcnt(0)
    """)
    g.srd(12, pWS, WS_END)
    gen_init_misc(g, PK+8)
    g_setaddr(A)
    for i in range(64): A(f"v_mov_b32 v{ACC+i}, 0")
    A(f"""
    s_lshl_b32 s25, s21, 7
    s_sub_u32 s25, 71, s25
    v_mul_u32_u24 v{vT0}, 72, v0
    v_add_u32 v{vT0}, s25, v{vT0}
    v_add_u32 v{vT1}, 576, v{vT0}
    v_add_u32 v{vT2}, 1152, v{vT0}
    v_min_u32 v{vT0}, v{vT0}, v{vT1}
    v_min_u32 v{vT0}, v{vT0}, v{vT2}
    v_cmp_gt_u32 vcc, 199, v{vT0}
    s_nop 3
    s_and_b64 s[36:37], vcc, 0xff
    """)
    A(f"""
    s_lshl_b32 s26, s19, 2
    s_lshl_b32 s27, s23, 1
    s_add_u32 s26, s26, s27            ; T0
    s_waitcnt lgkmcnt(0)
    s_cmp_ge_u32 s21, 9
    s_cbranch_scc1 Lg_vtype
    s_lshl_b32 s27, s21, 5
    s_lshl_b32 s28, s24, 4
    s_add_u32 s27, s27, s28
    v_add_u32 v{vT0}, s27, v{vHf}      ; G0
    s_lshl_b32 s28, s26, 10
    s_lshl_b32 s29, s26, 8
    s_add_u32 s29, s29, {LEFT}
    v_lshlrev_b32 v{vTok}, 3, v{vTok}
    v_add_u32 v{PK}, s29, v{vTok}
    v_add_u32 v{PK+1}, s28, v{vTok}
    v_add_u32 v{PK+2}, {MB-1280}, v{PK+1}
    v_mov_b32 v{PK+3}, 256
    v_mov_b32 v{PK+4}, 1024
    s_mov_b32 s32, {PAIR}
    """)
    for jg in range(8):
        A(f"""
        v_add_u32 v{vT1}, {8*(jg>>2) + 2*(jg&3)}, v{vT0}
        v_mul_u32_u24 v{vT2}, 7282, v{vT1}
        v_lshrrev_b32 v{vT2}, 16, v{vT2}
        v_mul_u32_u24 v{vT3}, 9, v{vT2}
        v_sub_u32 v{vT1}, v{vT1}, v{vT3}
        v_cmp_lt_u32 vcc, 4, v{vT1}
        v_cmp_eq_u32 s[34:35], 4, v{vT1}
        v_mul_u32_u24 v{vT2}, s32, v{vT2}
        v_cndmask_b32 v{vT3}, v{PK+1}, v{PK+2}, vcc
        v_lshl_add_u32 v{vT3}, v{vT1}, 8, v{vT3}
        v_cndmask_b32 v{vT3}, v{vT3}, v{PK}, s[34:35]
        v_cndmask_b32 v{vT1}, v{PK+4}, v{PK+3}, s[34:35]
        v_add_u32 v{vEA+jg}, v{vT2}, v{vT3}
        v_add_u32 v{vEA+8+jg}, v{vEA+jg}, v{vT1}
        """)
    g.stamp(1)
    A(f"""
    s_lshl_b32 s27, s21, 2
    s_lshl_b32 s28, s24, 1
    s_add_u32 s27, s27, s28
    s_cmp_lt_u32 s27, 18
    s_cselect_b32 s28, {CS_BITS}, 1.0
    s_mov_b32 s29, s28
    """)
    def epi_qk(i, j):
        r = []
        for q in range(4):
            a_ = acc(i, j) + 4*q; p = PK + 2*q + 8*j
            r += [f"v_mul_f32 v{a_+e}, s28, v{a_+e}" for e in range(4)]
            r += [f"v_cvt_pk_bf16_f32 v{p}, v{a_}, v{a_+1}", f"v_cvt_pk_bf16_f32 v{p+1}, v{a_+2}, v{a_+3}",
                  f"buffer_store_dwordx2 {V(p,2)}, v{vEA+8*i+4*j+q}, s[12:15], 0 offen {SC}"]
        return r
    g_loop(g, "Lg_qk", False, epi_qk)
    A(f"""
    s_branch Lg_done
Lg_vtype:
    s_sub_u32 s27, s21, 9
    s_lshl_b32 s27, s27, 7
    s_lshl_b32 s28, s24, 6
    s_add_u32 s27, s27, s28
    s_mul_i32 s28, s26, 36864
    s_add_u32 s28, s28, {VG}
    v_mul_u32_u24 v{vT3}, 9216, v{vHf}
    v_add_u32 v{vT0}, s27, v{vTok}
    v_lshl_add_u32 v{vEA}, v{vT0}, 4, v{vT3}
    """)
    g.stamp(1)
    A(f"""
    s_cmp_ge_u32 s27, 576
    s_cselect_b32 s29, 0x7f000000, 0
    v_add_u32 v{vEA}, s29, v{vEA}
    """)
    def epi_v(i, j):
        r = []
        for m in range(2):
            a_ = acc(i, j) + 8*m; p = PK + 4*m + 8*j
            r += [f"v_cvt_pk_bf16_f32 v{p+e}, v{a_+2*e}, v{a_+2*e+1}" for e in range(4)]
            r += [f"s_add_u32 s29, s28, {i*36864+m*18432}", f"buffer_store_dwordx4 {V(p,4)}, v{vEA}, s[12:15], s29 offen offset:{512*j} {SC}"]
        return r
    g_loop(g, "Lg_v", True, epi_v)
    A(f"""
Lg_done:
    s_setprio 2
    """)
    g.stamp(15)
    A("s_cmp_lg_u32 s16, 0\ns_cbranch_scc1 Lg_d2")
    g.ready(8)
    A("Lg_d2:\ns_waitcnt vmcnt(0) lgkmcnt(0)")
    g.stamp(3)
    g.gsync(5, 8)
    A("s_cmp_lg_u32 s16, 0\ns_cbranch_scc1 Lattn")
    g.stamp(16)
    if opt('HIER', 0):
        A(f"""
        s_lshl_b32 s92, s21, 8
        s_add_u32 s92, s92, {CNT}
        v_mov_b32 v8, 0
        v_mov_b32 v9, 1
        s_mov_b64 exec, 1
        buffer_atomic_add v9, v8, s[12:15], s92 offen sc0 {SC}
        s_mov_b64 exec, -1
        s_lshl_b32 s92, s21, 2
        s_add_u32 s92, s92, {CNT+GOFF}
        v_lshlrev_b32 v8, 15, v0
        v_mov_b32 v10, 16
        s_waitcnt vmcnt(0)
        v_readfirstlane_b32 s25, v9
        s_cmp_lg_u32 s25, 15
        s_cbranch_scc1 Lg_nl
        s_mov_b64 exec, s[36:37]
        buffer_store_dword v10, v8, s[12:15], s92 offen {SC}
        s_mov_b64 exec, -1
Lg_nl:
        """)
    else:
        g.signal("s21", 8, mask="s[36:37]" if opt('PMASK', 1) else None)
        A("s_waitcnt vmcnt(0)")
    g.stamp(17)
    A("s_branch Lattn")

def gen_init_misc(g, t):
    A = g.A
    for i in range(2):
        A(f"""
        s_and_b32 s25, s16, 3
        s_lshl_b32 s25, s25, 7
        s_add_u32 s25, s25, {64*i-14 & 0xffffffff}
        v_add_u32 v{t+4}, s25, v0
        v_mul_u32_u24 v{t+5}, 1821, v{t+4}
        v_lshrrev_b32 v{t+5}, 16, v{t+5}
        v_mul_u32_u24 v{t+5}, 36, v{t+5}
        v_cmp_eq_u32 s[34:35], v{t+5}, v{t+4}
        v_cmp_gt_u32 vcc, {36*8}, v{t+4}
        v_mov_b32 v{t+5}, 0x3f803f80
        v_lshlrev_b32 v{t+4}, 4, v{t+4}
        s_and_b64 vcc, vcc, s[34:35]
        v_add_u32 v{t+4}, {CONST+224}, v{t+4}
        v_cndmask_b32 v{t}, 0, v{t+5}, vcc
        v_cndmask_b32 v{t+1}, 0, v{t+5}, vcc
        v_cndmask_b32 v{t+2}, 0, v{t+5}, vcc
        v_cndmask_b32 v{t+3}, 0, v{t+5}, vcc
        ds_write_b128 v{t+4}, {V(t,4)}
        """)

import k2, k3
from k2 import m16, m8, phase, maxtree
from k2 import vL8, vKM, vKL, vV, vL16, vV0, vVinc, Q1A, Q1B, Q2A, Q2B, NMA, NMB, SA, SB, PA, PB, OA, OB, KB, KL, VB
aT0, aT1, aT2, aT3 = 5, 6, 7, 8
TMP = 168
vCA, vCR, vOne, vKM0, vKL0, vG0, vG1, vG2 = range(176, 184)
bKG, bVG, b5G, bRD, bTR, bBW, bBR, bUO, bZP, bPG = range(184, 194)
CM = 216
FLAG = SY + 40
KL2 = 184

def head_params(A):
    A(f"""
    s_and_b32 s17, s2, 7
    s_lshl_b32 s17, s17, 2
    s_bfe_u32 s25, s2, 0x20003
    s_add_u32 s17, s17, s25            ; h
    s_lshr_b32 s18, s2, 5              ; qb
    s_and_b32 s20, s16, 3              ; qg / u
    s_and_b32 s21, s17, 1              ; parity
    s_lshr_b32 s26, s17, 1             ; pair
    v_lshlrev_b32 v{vL16}, 4, v0
    s_mul_i32 s39, s26, {PAIR}
    s_mul_i32 s28, s21, {LEFT}
    s_add_u32 s27, s39, s28
    s_add_u32 s27, s27, {KV}
    s_add_u32 s8, s{pWS}, s27
    s_addc_u32 s9, s{pWS+1}, 0
    s_mov_b32 s10, {WIN}
    s_mov_b32 s11, 0x20000
    s_lshl_b32 s22, s21, 14
    s_add_u32 s23, s22, 65536
    s_cmp_eq_u32 s21, 0
    s_cselect_b32 s24, {LEFT}, 0
    s_lshl_b32 s25, s20, 10
    s_add_u32 s40, s22, s25
    s_add_u32 s41, s23, s25
    s_add_u32 s42, s23, 8192
    s_and_b32 s44, s20, 1
    s_lshl_b32 s44, s44, 10
    s_add_u32 s44, s44, s24
    s_mul_i32 s43, s17, 288
    s_add_u32 s43, s43, {VG}
    s_add_u32 s46, s44, s27
    s_cmp_eq_u32 s20, 0
    s_cselect_b32 s42, s42, s44
    s_cselect_b32 s44, s43, s46
    s_cselect_b32 s45, 9, 2
    s_cselect_b32 s47, 288, 2
    s_cselect_b64 vcc, -1, 0
    s_lshl_b32 s45, s45, 10
    s_lshl_b32 s47, s47, 10
    s_lshl_b32 s25, s20, 6
    s_add_u32 s46, s25, 256
    """)
    for r, base in ((vG0, "s25"), (vG1, "s46"), (vG2, "512")):
        A(f"""
        v_add_u32 v{aT0}, {base}, v0
        v_mul_u32_u24 v{aT2}, 3641, v{aT0}
        v_lshrrev_b32 v{aT2}, 16, v{aT2}
        v_mul_u32_u24 v{aT3}, {9216-288}, v{aT2}
        v_lshl_add_u32 v{r}, v{aT0}, 4, v{aT3}
        """)
    A(f"v_cndmask_b32 v{vG2}, v{vL16}, v{vG2}, vcc")

def dma_skip(A, n):
    A(f"""
    s_add_u32 s40, s40, {(n*8192) & 0xffffffff}
    s_add_u32 s41, s41, {(n*9216) & 0xffffffff}
    s_add_u32 s43, s43, {(n*8*36864) & 0xffffffff}
    s_mul_i32 s25, s45, {n}
    s_add_u32 s42, s42, s25
    s_mul_i32 s25, s47, {n}
    s_add_u32 s44, s44, s25
    """)

def dma_iter(A):
    A(f"""
    s_mov_b32 m0, s40
    s_add_u32 s46, s40, 4096
    buffer_load_dwordx4 v{vL16}, s[8:11], s40 offen lds {SC}
    s_mov_b32 m0, s46
    s_add_u32 s40, s40, 8192
    buffer_load_dwordx4 v{vL16}, s[8:11], s46 offen lds {SC}
    s_mov_b32 m0, s41
    s_add_u32 s46, s41, 4096
    buffer_load_dwordx4 v{vG0}, s[12:15], s43 offen lds {SC}
    s_mov_b32 m0, s46
    s_add_u32 s41, s41, 9216
    buffer_load_dwordx4 v{vG1}, s[12:15], s43 offen lds {SC}
    s_mov_b32 m0, s42
    s_add_u32 s43, s43, {8*36864}
    buffer_load_dwordx4 v{vG2}, s[12:15], s44 offen lds {SC}
    s_add_u32 s42, s42, s45
    s_add_u32 s44, s44, s47
    """)
def dma_n(g, n):
    l = g.lab("Ldm")
    g.A(f"s_mov_b32 s31, {n}\n{l}:")
    dma_iter(g.A)
    g.A(f"s_sub_u32 s31, s31, 1\ns_cmp_lg_u32 s31, 0\ns_cbranch_scc1 {l}")

def avail_add(g, units):
    l = g.lab("Lav")
    g.A(f"""
    s_cmp_lg_u32 s16, 4
    s_cbranch_scc1 {l}
    v_mov_b32 v{TMP}, {units << 8}
    s_mov_b64 exec, 15
    ds_add_u32 v{bPG}, v{TMP}
    s_mov_b64 exec, -1
{l}:
    """)
def wait_progress(g, n, sl=4):
    l = g.lab("Lq"); d = g.lab("Ld")
    g.A(f"""
    s_mov_b32 s93, {SPIN}
{l}:
    ds_read_b32 v{TMP}, v{bPG}
    s_waitcnt lgkmcnt(0)
    v_and_b32 v{TMP}, 0xff, v{TMP}
    v_cmp_gt_u32 vcc, {n}, v{TMP}
    s_nop 3
    s_cmp_eq_u64 vcc, 0
    s_cbranch_scc1 {d}
    s_sleep {sl}
    s_sub_u32 s93, s93, 1
    s_cmp_lg_u32 s93, 0
    s_cbranch_scc1 {l}
{d}:
    """)

def gen_stage1(g):
    A = g.A
    KR, VR, CR, UU, OUT = 40, 60, 68, 84, 136
    T = TMP
    R = kconv.ConvRegs(16)
    A("s_waitcnt lgkmcnt(0)")
    g.srd(12, pWS, WS_END)
    A(f"""
    s_sub_u32 s17, s2, 224
    s_cmp_lt_u32 s16, 4
    s_cbranch_scc1 Lx_a
    s_mov_b32 s95, 1
    s_mov_b32 s18, 8
    s_lshl_b32 s19, s17, 1
    s_add_u32 s19, s19, 512
    s_bfe_u32 s25, s2, 0x10003
    s_lshl_b32 s25, s25, 14
    s_add_u32 s96, s25, 40960
    s_add_u32 s97, s25, {65536+46080}
    s_add_u32 s99, s97, 9344
    s_add_u32 s3, s3, 32
    s_add_u32 s94, s94, 32
    s_branch Lb_setup
Lx_a:
    s_cmp_ge_u32 s17, {NREP}
    s_cbranch_scc1 Lx_1
    s_cmp_lg_u32 s16, 0
    s_cbranch_scc1 Lx_1
    v_lshlrev_b32 v11, 8, v0
    v_mov_b32 v12, 0
    s_lshl_b32 s25, s17, 15
    s_add_u32 s25, s25, {CNT}
    buffer_store_dword v12, v11, s[12:15], s25 offen {SC}
    s_add_u32 s25, s25, 16384
    s_mov_b64 exec, 0xfffff
    buffer_store_dword v12, v11, s[12:15], s25 offen {SC}
    s_mov_b64 exec, -1
    v_lshlrev_b32 v11, 2, v0
    s_add_u32 s25, s25, {GOFF-16384}
    buffer_store_dword v12, v11, s[12:15], s25 offen {SC}
Lx_1:
    s_getpc_b64 s[26:27]
Lpc0:
    s_add_u32 s26, s26, Lcode_begin-Lpc0
    s_addc_u32 s27, s27, -1
    s_lshl_b32 s25, s16, 13
    v_lshlrev_b32 v13, 7, v0
    v_add_u32 v13, s25, v13
    v_min_u32 v13, Lcode_end-Lcode_begin-4, v13
    v_mov_b32 v15, s27
    v_add_co_u32 v14, vcc, s26, v13
    s_nop 1
    v_addc_co_u32 v15, vcc, 0, v15, vcc
    global_load_dword v210, v[14:15], off
    """)
    gen_init_misc(g, 144)
    A(f"""
    s_cmp_ge_u32 s17, {NREP}
    s_cbranch_scc1 Lx_2
    s_cmp_lg_u32 s16, 0
    s_cbranch_scc1 Lx_2
    s_lshl_b32 s27, s17, 2
    v_mov_b32 v11, s27
    v_mov_b32 v12, 1
    s_mov_b64 exec, 1
    s_waitcnt vmcnt(1)
    global_store_dword v11, v12, s[{pDBG}:{pDBG+1}] {SC}
    s_mov_b64 exec, -1
Lx_2:
    s_mov_b32 s95, 1
    s_lshr_b32 s17, s2, 3
    s_and_b32 s18, s2, 7
    s_lshl_b32 s19, s2, 1
    s_mov_b32 s96, 0
    s_mov_b32 s97, 0
    s_mov_b32 s99, 0
    s_branch Lb_setup
Lh_restart:
    s_sub_u32 s3, s3, 32
    s_sub_u32 s94, s94, 32
Lh_start:
    s_mov_b32 s95, 0
    s_lshr_b32 s17, s2, 3              ; tb
    s_and_b32 s18, s2, 7               ; cb
    s_lshl_b32 s19, s2, 1
    s_bfe_u32 s25, s2, 0x10003
    s_lshl_b32 s96, s25, 14
    s_add_u32 s97, s96, 65536          ; V blocks 0..2
    s_add_u32 s99, s96, {65536+6*9216}
Lb_setup:
    s_and_b32 s23, s16, 3              ; u
    v_and_b32 v{vT0}, 7, v0            ; cc
    v_lshrrev_b32 v{vT1}, 3, v0        ; tg
    s_lshl_b32 s21, s18, 9
    v_lshlrev_b32 v{vT3}, 6, v{vT0}
    """)
    g.srd(4, pSH, 576*8)
    for i in range(4): A(f"buffer_load_dwordx4 {V(CR+4*i,4)}, v{vT3}, s[4:7], s21 offen offset:{16*i}")
    A(f"""
    s_mul_i32 s20, s17, {64*1152}
    s_lshl_b32 s21, s18, 7
    s_add_u32 s20, s20, s21
    v_mul_u32_u24 v{vT2}, 1152, v{vT1}
    v_lshl_add_u32 v{vT2}, v{vT0}, 4, v{vT2}
    v_add_u32 v{vT2}, s20, v{vT2}
    v_add_u32 v{b5G}, {61*1152}, v{vT2}
    s_mul_i32 s20, s23, {8*1152}
    v_add_u32 v{bVG}, s20, v{vT2}
    v_subrev_u32 v{bKG}, {3*1152}, v{bVG}
    v_lshlrev_b32 v{vL16}, 4, v0
    s_add_u32 s28, s97, 9344
    s_lshr_b32 s25, s23, 1
    s_add_u32 s98, s19, s25            ; channel
    s_cmp_eq_u32 s25, 0
    s_cselect_b32 s96, s96, s28
    s_mul_i32 s25, s25, 4672
    s_add_u32 s97, s97, s25
    s_add_u32 s97, s97, 576
    s_lshl_b32 s25, s19, 1
    s_load_dword s100, s[{pD}:{pD+1}], s25
    s_cmp_eq_u32 s95, 1
    s_cbranch_scc1 Lb_load
Lb_setup2:
    v_lshlrev_b32 v{bRD}, 8, v{vT1}
    v_lshl_add_u32 v{bRD}, v{vT0}, 4, v{bRD}
    s_lshl_b32 s25, s23, 11
    s_add_u32 s25, s25, s99
    v_add_u32 v{bRD}, s25, v{bRD}
    v_lshrrev_b32 v{vT2}, 4, v0
    v_and_b32 v{vT3}, 15, v0
    v_lshlrev_b32 v{vT3}, 7, v{vT3}
    v_lshl_add_u32 v{bBW}, v{vT2}, 4, v{vT3}
    v_add_u32 v{bBW}, s25, v{bBW}
    v_add_u32 v{bBR}, s25, v{vL16}
    v_bfe_u32 v{vT3}, v0, 2, 2
    v_lshl_add_u32 v{bTR}, v{vT2}, 3, v{vT3}
    v_lshlrev_b32 v{bTR}, 7, v{bTR}
    v_and_b32 v{vT3}, 3, v0
    v_lshl_add_u32 v{bTR}, v{vT3}, 3, v{bTR}
    v_lshlrev_b32 v{bPG}, 8, v{vT3}
    v_add_u32 v{bPG}, {UC}, v{bPG}
    s_lshl_b32 s25, s23, 5
    s_add_u32 s25, s25, s99
    v_add_u32 v{bTR}, s25, v{bTR}
    v_lshlrev_b32 v{bUO}, 12, v{vT1}
    v_lshl_add_u32 v{bUO}, v{vT0}, 4, v{bUO}
    s_lshl_b32 s22, s18, 2
    s_add_u32 s22, s22, s23
    s_lshl_b32 s22, s22, 16
    s_lshl_b32 s25, s17, 7
    s_add_u32 s22, s22, s25
    s_add_u32 s22, s22, {UT}
    s_lshr_b32 s25, s18, 3
    s_lshl_b32 s25, s25, 12
    s_add_u32 s22, s22, s25
    v_add_u32 v{bUO}, s22, v{bUO}
    v_min_u32 v{bZP}, 35, v0
    v_lshlrev_b32 v{bZP}, 4, v{bZP}
    s_sub_u32 s25, s97, 576
    v_add_u32 v{bZP}, s25, v{bZP}
    s_waitcnt lgkmcnt(0)
    """)
    conv_setup(A, R)
    A("s_mov_b32 s29, 0xffff0000\ns_mov_b32 s28, 0xffff\ns_waitcnt vmcnt(0)")
    for c in range(8):
        for j in range(4):
            d, e, src = CM + 8*(c >> 1) + 2*j + (c & 1), c & 1, CR + 2*c + (j >> 1)
            if (j & 1) == e: A(f"v_and_b32 v{d}, {'s29' if e else 's28'}, v{src}")
            elif e: A(f"v_lshlrev_b32 v{d}, 16, v{src}")
            else: A(f"v_lshrrev_b32 v{d}, 16, v{src}")
    A(f"""
    s_cmp_eq_u32 s95, 0
    s_cbranch_scc1 Lh_kv
    s_barrier
    s_branch Lb_s0
Lh_kv:
    """)
    EARLY = opt('S1EARLY', 0)
    def kv_first():
        g.wait_words(SY, 9, T, sl=2)
        A(f"s_setprio {opt('CPRIO', 1)}")
        A("s_cmp_ge_u32 s2, 224\ns_cbranch_scc1 Lh_kx")
        dma_n(g, 5)
        A("s_waitcnt vmcnt(15)")
        g.gsync(1 + 10*(EARLY > 0), T)
        avail_add(g, 4)
        A("s_branch Lh_ky\nLh_kx:")
        dma_skip(A, 2)
        dma_n(g, 3)
        g.srd(4, pH, XB)
        A("s_waitcnt vmcnt(0)")
        g.gsync(2, T)
        A("s_cmp_lg_u32 s16, 4\ns_cbranch_scc1 Lc_k")
        g.wait_words(SY, 10, T, sl=4)
        avail_add(g, 6)
        A("s_branch Lc_k\nLh_ky:")
    head_params(A)
    dma_skip(A, 1)
    if not EARLY: kv_first()
    elif EARLY == 2:
        A("s_cmp_ge_u32 s2, 224\ns_cbranch_scc1 Lb_load")
        g.wait_words(SY, 5, T, sl=2)
    A(f"""
Lb_load:
    s_and_b32 s28, s16, 3
    s_lshl_b32 s25, s28, 10
    s_add_u32 s25, s25, s99
    """)
    g.srd(4, pK, XB)
    A(f"""
    s_mov_b32 m0, s25
    s_add_u32 s27, s25, 4096
    buffer_load_dwordx4 v{bKG}, s[4:7], 0 offen {NTB} lds
    s_mov_b32 m0, s27
    v_add_u32 v{bKG}, {32*1152}, v{bKG}
    s_add_u32 s27, s99, 8192
    buffer_load_dwordx4 v{bKG}, s[4:7], 0 offen {NTB} lds
    s_mov_b32 m0, s27
    s_add_u32 s27, s25, 9216
    buffer_load_dwordx4 v{b5G}, s[4:7], 0 offen lds
    s_mov_b32 s4, s{pV}
    s_mov_b32 s5, s{pV+1}
    s_mov_b32 m0, s27
    s_add_u32 s27, s27, 4096
    buffer_load_dwordx4 v{bVG}, s[4:7], 0 offen {NTB} lds
    s_mov_b32 m0, s27
    s_mov_b32 s27, {32*1152}
    buffer_load_dwordx4 v{bVG}, s[4:7], s27 offen {NTB} lds
    s_mov_b32 s4, s{pH}
    s_mov_b32 s5, s{pH+1}
    s_and_b32 s25, s28, 1
    s_lshl_b32 s25, s25, 11
    s_lshl_b32 s27, s98, 12
    s_add_u32 s27, s27, s25
    v_lshlrev_b32 v{T}, 3, v{vL16}
    s_mov_b64 exec, 0xffff
    buffer_load_dword v209, v{T}, s[4:7], s27 offen
    s_mov_b64 exec, -1
    s_cmp_eq_u32 s95, 1
    s_cbranch_scc1 Lb_setup2
    """)
    def kv_second(val):
        g.post(val, T)
        A("s_cmp_lg_u32 s16, 4\ns_cbranch_scc1 Lb_a6")
        g.wait_words("s94", val, T)
        avail_add(g, 6)
        A("Lb_a6:")
    if not EARLY:
        A("s_waitcnt vmcnt(6)")
        kv_second(2)
    A("s_waitcnt vmcnt(1)\nLb_s0:")
    g.gsync(3, T)
    g.stamp(1)
    for n in range(5): A(f"ds_read_b128 {V(KR+4*n,4)}, v{bRD} offset:{128*n}")
    for t in range(2): A(f"ds_read_b128 {V(VR+4*t,4)}, v{bRD} offset:{9216+128*t}")
    A("s_mov_b32 s29, 0xffff0000\ns_waitcnt lgkmcnt(2)")
    for j in range(4):
        for d in range(4):
            for t in range(2):
                for e in range(2):
                    u = UU + 4*d + 2*t + e
                    if j == 0: A(f"v_dot2_f32_bf16 v{u}, v{KR+4*(t+3)+d}, v{CM+8*d+e}, 0")
                    else: A(f"v_dot2c_f32_bf16 v{u}, v{KR+4*(t+3-j)+d}, v{CM+8*d+2*j+e}")
    A("s_waitcnt lgkmcnt(0)")
    for d in range(4):
        for t in range(2):
            x = UU + 16 + 4*d + 2*t
            A(f"v_lshlrev_b32 v{x}, 16, v{VR+4*t+d}\nv_and_b32 v{x+1}, s29, v{VR+4*t+d}")
    for i in range(8): A(f"v_pk_mul_f32 {V(UU+2*i,2)}, {V(UU+2*i,2)}, {V(UU+16+2*i,2)}")
    for d in range(4):
        for t in range(2): A(f"v_cvt_pk_bf16_f32 v{OUT+4*t+d}, v{UU+4*d+2*t}, v{UU+4*d+2*t+1}")
    A(f"""
    ds_write_b128 v{bRD}, {V(OUT,4)} offset:9216
    ds_write_b128 v{bRD}, {V(OUT+4,4)} offset:{9216+128}
    s_waitcnt lgkmcnt(0)
    """)
    g.gsync(4, T)
    for i in range(2):
        A(f"ds_read_b64_tr_b16 {V(OUT+4*i,2)}, v{bTR} offset:{9216+4096*i}")
        A(f"ds_read_b64_tr_b16 {V(OUT+4*i+2,2)}, v{bTR} offset:{9216+4096*i+512}")
    A(f"""
    s_mov_b32 s27, 32768
    s_waitcnt lgkmcnt(0)
    ds_write_b128 v{bBW}, {V(OUT,4)}
    ds_write_b128 v{bBW}, {V(OUT+4,4)} offset:64
    ds_read_b128 {V(OUT+8,4)}, v{bBR}
    ds_read_b128 {V(OUT+12,4)}, v{bBR} offset:1024
    s_waitcnt lgkmcnt(0)
    buffer_store_dwordx4 {V(OUT+8,4)}, v{bUO}, s[12:15], 0 offen {SC}
    buffer_store_dwordx4 {V(OUT+12,4)}, v{bUO}, s[12:15], s27 offen {SC}
    """)
    g.stamp(2)
    A("s_and_b32 s25, s16, 3\ns_cmp_lg_u32 s25, 0\ns_cbranch_scc1 Lb_nr" + ("" if EARLY else "\ns_cmp_eq_u32 s95, 0\ns_cbranch_scc1 Lb_nr"))
    g.ready(T)
    A("Lb_nr:\ns_waitcnt vmcnt(0)")
    g.stamp(3)
    g.gsync(5, T)
    A("s_cmp_lt_u32 s16, 4\ns_cbranch_scc1 Lc_m\ns_cmp_eq_u32 s95, 1\ns_cbranch_scc1 Lc_x\nLc_m:")
    A("s_and_b32 s25, s16, 3\ns_cmp_lg_u32 s25, 0\ns_cbranch_scc1 Lc_k0\ns_and_b32 s25, s2, 15\ns_add_u32 s25, s25, 64")
    g.signal("s25", T)
    A("s_cmp_lg_u32 s16, 0\ns_cbranch_scc1 Lc_k0")
    g.wait_words(SY+36, 1, T, n=1, sl=8)
    A("Lc_k0:\ns_cmp_lt_u32 s16, 4\ns_cbranch_scc1 Lattn\nLc_k:")
    if EARLY:
        kv_first()
        dma_n(g, 2)
        A("s_waitcnt vmcnt(10)")
        kv_second(12)
    else: dma_n(g, 2)
    A("s_waitcnt vmcnt(0)")
    g.post(6 + 10*(EARLY > 0), T)
    A(f"""
    s_lshr_b32 s25, s2, 3
    s_lshl_b32 s25, s25, 2
    s_add_u32 s25, s25, s20            ; 0..127
    s_mul_i32 s27, s25, {41*128}
    v_lshlrev_b32 v{T}, 7, v0
    v_add_u32 v{T+1}, s27, v{T}
    v_min_u32 v{T+1}, {WOB-4}, v{T+1}
    s_mov_b32 exec_hi, 0x1ff
    global_load_dword v210, v{T+1}, s[{pWO}:{pWO+1}]
    s_and_b32 s27, s2, 7
    s_mul_i32 s27, s27, {256*1152}
    s_mul_i32 s25, s25, {18*128}
    s_add_u32 s27, s27, s25
    v_add_u32 v{T+1}, s27, v{T}
    s_mov_b64 exec, 0x3ffff
    global_load_dword v211, v{T+1}, s[{pQ}:{pQ+1}]
    s_mov_b64 exec, -1
    """)
    A("s_cmp_lg_u32 s16, 4\ns_cbranch_scc1 Lc_w")
    g.wait_words("s94", 6 + 10*(EARLY > 0), T)
    avail_add(g, 4)
    g.poll(64, 16, 16, T, sl=opt('USLEEP', 8))
    wait_progress(g, 7, 4)
    A("s_branch Lc_pd\nLc_x:\ns_cmp_lg_u32 s16, 4\ns_cbranch_scc1 Lc_w\ns_and_b32 s25, s2, 3\ns_add_u32 s25, s25, 80")
    g.signal("s25", T)
    g.poll(80, 4, 8, T, sl=2)
    A(f"""
Lc_pd:
    s_sub_u32 s25, 2, s95
    v_mov_b32 v{T}, {SY+36}
    v_mov_b32 v{T+1}, s25
    ds_write_b32 v{T}, v{T+1}
Lc_w:
    s_sub_u32 s91, 2, s95
    """)
    g.wait_words(SY+36, "s91", T, n=1, sl=opt('WSL', 5))
    g.stamp(4)
    A(f"""
    s_and_b32 s28, s16, 1
    s_lshl_b32 s25, s28, 11
    s_add_u32 s27, s97, s25
    s_mov_b32 m0, s27
    s_lshl_b32 s27, s98, 12
    s_add_u32 s27, s27, s25
    buffer_load_dwordx4 v{vL16}, s[4:7], s27 offen lds
    buffer_load_dwordx4 v{vL16}, s[4:7], s27 offen offset:1024 lds
    ds_write_b128 v{bZP}, {V(R.acc,4)}
    s_mul_i32 s25, s28, {2*4160}
    s_add_u32 s25, s25, s96
    s_add_u32 s25, s25, 64
    s_lshl_b32 s27, s28, 2
    s_sub_u32 s27, s101, s27
    s_sub_u32 s27, s27, {YT-UT}
    s_lshr_b32 s29, s98, 9
    s_lshl_b32 s29, s29, 12
    s_add_u32 s27, s27, s29
    """)
    for c in range(2):
        A("s_mov_b32 m0, s25\ns_nop 0")
        for i in range(4): A(f"buffer_load_dwordx4 v{vL16}, s[12:15], s27 offen offset:{1024*i} lds {SC}")
        if c == 0: A("s_add_u32 s25, s25, 4160\ns_sub_u32 s27, s27, 2")
    A("s_waitcnt vmcnt(0) lgkmcnt(0)")
    g.gsync(17, T)
    A(f"s_setprio {opt('VPRIO', 0)}")
    g.stamp(5)
    A("s_cmp_eq_u32 s28, 0\ns_cbranch_scc0 Lc_set1")
    kconv.conv_main(A, R, "Lc_l0", 0)
    A("s_setprio 1")
    conv_epi(A, R, 0, "s96", "s100", "s101", "s[12:15]", SC)
    A("s_branch Lc_done\nLc_set1:")
    kconv.conv_main(A, R, "Lc_l1", 1)
    A("s_setprio 1")
    conv_epi(A, R, 1, "s96", "s100", "s101", "s[12:15]", SC)
    A("Lc_done:\ns_waitcnt vmcnt(0)")
    g.stamp(6)
    g.gsync(18, T)
    A("s_and_b32 s25, s16, 3\ns_cmp_lg_u32 s25, 0\ns_cbranch_scc1 Lc_e\ns_and_b32 s25, s2, 15\ns_add_u32 s25, s25, 16")
    g.signal("s25", T)
    A("Lc_e:\ns_cmp_eq_u32 s95, 0\ns_cbranch_scc1 Lh_p3\ns_branch Lh_restart")

def conv_epi(A, R, st, s_slot, s_D, s_out, srd, flags=""):
    S_ = kconv.SETS[st]
    A(f"v_add_u32 v{R.t0}, {s_slot}, v{R.aU}")
    for ti, tau in enumerate(S_): A(f"ds_read_b64 {V(R.A[0]+2*ti,2)}, v{R.t0} offset:{64+512*tau}")
    A("s_waitcnt lgkmcnt(0)")
    for ti in range(4):
        for e in range(4): A(f"v_dot2c_f32_bf16 v{R.acc+4*ti+e}, v{R.A[0]+2*ti+(e >> 1)}, v{194+(e & 1)}")
    A("s_nop 1")
    for ti, tau in enumerate(S_):
        t = R.B[0]+2*ti; ac = R.acc+4*ti
        A(f"""
        v_cvt_pk_bf16_f32 v{t}, v{ac}, v{ac+1}
        v_cvt_pk_bf16_f32 v{t+1}, v{ac+2}, v{ac+3}
        buffer_store_dwordx2 {V(t,2)}, v{R.aU}, {srd}, {s_out} offen offset:{512*tau} {flags}
        """)

def conv_setup(A, R):
    A(f"""
    v_bfe_u32 v{R.t0}, v0, 2, 2
    v_mul_u32_u24 v{R.aA}, 4160, v{R.t0}
    v_and_b32 v{R.t0}, 3, v0
    v_lshl_add_u32 v{R.aA}, v{R.t0}, 3, v{R.aA}
    v_lshrrev_b32 v{R.t0}, 4, v0
    v_lshlrev_b32 v{R.aB}, 4, v{R.t0}
    v_sub_u32 v{R.aA}, v{R.aA}, v{R.aB}
    s_add_u32 s25, s96, {64+32-8}
    v_add_u32 v{R.aA}, s25, v{R.aA}
    v_and_b32 v{R.aU}, 15, v0
    v_lshlrev_b32 v{R.aU}, 5, v{R.aU}
    v_add_u32 v{R.aB}, v{R.aB}, v{R.aU}
    s_sub_u32 s25, s97, 96
    v_add_u32 v{R.aB}, s25, v{R.aB}
    v_lshl_add_u32 v{R.aU}, v{R.t0}, 3, v{R.aU}
    v_and_b32 v{R.mask}, 15, v0
    v_lshlrev_b32 v{R.t0}, 3, v{R.t0}
    v_sub_u32 v{R.t0}, v{R.mask}, v{R.t0}
    v_add_u32 v{R.t0}, 17, v{R.t0}
    v_mov_b32 v{R.acc}, 0xffff
    v_mov_b32 v{R.acc+1}, 0xffff0000
    """)
    for d in range(4):
        A(f"""
        v_cmp_lt_i32 vcc, {2*d}, v{R.t0}
        v_cmp_lt_i32 s[26:27], {2*d+1}, v{R.t0}
        s_nop 0
        v_cndmask_b32 v{R.mask+d}, 0, v{R.acc}, vcc
        v_cndmask_b32 v{R.acc+2}, 0, v{R.acc+1}, s[26:27]
        v_or_b32 v{R.mask+d}, v{R.mask+d}, v{R.acc+2}
        """)
    for i in range(16): A(f"v_mov_b32 v{R.acc+i}, 0")
    A(f"""
    s_lshl_b32 s101, s98, 12
    s_add_u32 s101, s101, {YT}
    s_lshl_b32 s25, s100, 16
    s_and_b32 s27, s100, 0xffff0000
    s_bitcmp0_b32 s98, 0
    s_cselect_b32 s100, s25, s27
    s_lshr_b32 s25, s100, 16
    v_mov_b32 v194, s25
    v_mov_b32 v195, s100
    """)

def zero_acc(A):
    for i in range(16): A(f"v_mov_b32 v{OA+i}, 0")
    for i in range(16): A(f"v_mov_b32 v{OB+i}, 0")
    for i in range(8): A(f"v_mov_b32 v{PB+i}, 0")
    for i in range(8): A(f"v_mov_b32 v{VB[1]+i}, 0")

def gen_attn(g):
    A = g.A
    A("Lattn:\ns_setprio 2")
    head_params(A)
    A(f"""
    v_lshlrev_b32 v{vL8}, 3, v0
    s_lshl_b32 s31, s18, 3
    s_lshl_b32 s32, s20, 1
    s_add_u32 s32, s31, s32
    s_mul_i32 s34, s21, {MB}
    s_add_u32 s34, s34, s39
    s_lshl_b32 s35, s32, 10
    s_add_u32 s35, s35, s34
    s_add_u32 s34, s39, {LEFT}
    s_lshl_b32 s37, s32, 8
    s_add_u32 s37, s37, s34
    v_and_b32 v{aT1}, 31, v0
    v_lshrrev_b32 v{aT0}, 5, v0
    v_mul_u32_u24 v{aT3}, 288, v{aT0}
    v_lshl_add_u32 v{aT2}, v{aT1}, 4, v{aT3}
    v_add_u32 v{vV0}, s23, v{aT2}
    v_mov_b32 v{vVinc}, {4*VT}
    v_mov_b32 v{aT2}, {CONST+240}
    v_mov_b32 v{aT3}, {CONST+224}
    v_cmp_eq_u32 vcc, 18, v{aT1}
    v_subrev_u32 v{aT0}, 20, v{aT1}
    v_cmp_gt_u32 s[52:53], 8, v{aT0}
    v_cndmask_b32 v{aT2}, v{aT2}, v{aT3}, vcc
    v_mov_b32 v{aT3}, {CONST+176}
    v_cmp_lt_u32 vcc, 17, v{aT1}
    v_cndmask_b32 v{aT2}, v{aT2}, v{aT3}, s[52:53]
    s_mov_b32 s50, 0
    v_cndmask_b32 v{vV0}, v{vV0}, v{aT2}, vcc
    v_cndmask_b32 v{vVinc}, v{vVinc}, 0, vcc
    v_cmp_gt_u32 vcc, 32, v0
    s_cmp_eq_u32 s21, 0
    s_cselect_b64 s[52:53], -1, 0
    s_cselect_b64 s[54:55], 0, -1
    s_and_b64 s[56:57], s[52:53], vcc
    s_and_b64 s[58:59], s[54:55], vcc
    s_andn2_b64 s[60:61], s[52:53], vcc
    s_andn2_b64 s[62:63], s[54:55], vcc
    v_lshlrev_b32 v{aT2}, 3, v{aT1}
    v_add_u32 v{vKM0}, s22, v{vL8}
    v_add_u32 v{vKL0}, s24, v{vL8}
    s_lshl_b32 s25, s20, 8
    s_add_u32 s25, s25, {UC}
    v_lshlrev_b32 v{vCA}, 2, v0
    v_add_u32 v{vCA}, s25, v{vCA}
    v_mov_b32 v{vOne}, 2
    s_mul_i32 s25, s32, {36*1024}
    s_add_u32 s25, s25, {OF}
    s_lshl_b32 s48, s17, 10
    s_add_u32 s48, s48, s25
    s_lshl_b32 s49, s17, 7
    s_add_u32 s49, s49, s25
    s_add_u32 s49, s49, 32768
    """)
    zero_acc(A)
    A("s_cmp_lg_u32 s16, 0\ns_cbranch_scc1 La_w")
    if opt('NEED', 1):
        A(f"""
        s_mul_i32 s25, s26, 36
        s_mov_b64 s[28:29], 0
        s_lshr_b32 s27, s25, 7
        s_bitset1_b32 s28, s27
        s_add_u32 s27, s25, 35
        s_lshr_b32 s27, s27, 7
        s_bitset1_b32 s28, s27
        s_add_u32 s27, s25, 576
        s_lshr_b32 s27, s27, 7
        s_bitset1_b32 s28, s27
        s_add_u32 s27, s25, 611
        s_lshr_b32 s27, s27, 7
        s_bitset1_b32 s28, s27
        s_add_u32 s27, s25, 1152
        s_lshr_b32 s27, s27, 7
        s_bitset1_b32 s28, s27
        s_add_u32 s27, s25, 1187
        s_lshr_b32 s27, s27, 7
        s_bitset1_b32 s28, s27
        """)
    if opt('HIER', 0): g.poll(GOFF//4, 14, 16, 204, sl=opt('P1SL', 1), mask="s[28:29]", sh=2)
    else: g.poll(0, 14, 16, 204, mask="s[28:29]")
    A(f"""
    v_mov_b32 v{TMP}, {SY+32}
    v_mov_b32 v{TMP+1}, 1
    ds_write_b32 v{TMP}, v{TMP+1}
La_w:
    """)
    g.wait_words(SY+32, 1, TMP, n=1)
    g.stamp(7)
    dma_iter(A)
    A(f"""
    buffer_load_dwordx2 {V(Q1A,2)}, v{vL8}, s[12:15], s35 offen {SC}
    buffer_load_dwordx2 {V(Q1A+2,2)}, v{vL8}, s[12:15], s35 offen offset:512 {SC}
    buffer_load_dwordx2 {V(Q1B,2)}, v{vL8}, s[12:15], s35 offen offset:1024 {SC}
    buffer_load_dwordx2 {V(Q1B+2,2)}, v{vL8}, s[12:15], s35 offen offset:1536 {SC}
    buffer_load_dwordx2 {V(Q2A,2)}, v{aT2}, s[12:15], s37 offen {SC}
    buffer_load_dwordx2 {V(Q2B,2)}, v{aT2}, s[12:15], s37 offen offset:256 {SC}
    s_cmp_lt_u32 s2, 224
    s_cbranch_scc1 La_n12
    """)
    dma_n(g, 2)
    A(f"""
    s_mov_b32 s30, 1
    s_waitcnt vmcnt(10)
    s_branch La_n13
La_n12:
    s_mov_b32 s30, 0
    s_waitcnt vmcnt(0)
La_n13:
    """)
    g.post(9, TMP)
    for Q in (Q2A, Q2B):
        A(f"""
        v_cndmask_b32 v{Q+2}, 0, v{Q}, s[60:61]
        v_cndmask_b32 v{Q+3}, 0, v{Q+1}, s[62:63]
        v_cndmask_b32 v{Q}, 0, v{Q}, s[56:57]
        v_cndmask_b32 v{Q+1}, 0, v{Q+1}, s[58:59]
        """)
    g.wait_words(SY, 9, TMP)
    g.stamp(8)
    A(f"""
    ds_read2st64_b64 {V(KB[0],4)}, v{vKM0} offset0:0 offset1:1
    ds_read2st64_b64 {V(KL,4)}, v{vKL0} offset0:0 offset1:1
    s_waitcnt lgkmcnt(0)
    {m16(SA, KB[0], Q1A, 0)}
    {m16(SB, KB[0], Q1B, 0)}
    {m8(SA, KL, Q2A)}
    {m8(SB, KL, Q2B)}
    s_nop 10
    """)
    maxtree(A, aT0, SA)
    maxtree(A, aT1, SB)
    A(f"""
La_setm:
    v_mov_b32 v{aT2}, v{aT0}
    v_mov_b32 v{aT3}, v{aT1}
    v_mov_b32 v{vKM}, v{vKM0}
    v_mov_b32 v{vKL}, v{vKL0}
    v_permlane32_swap_b32 v{aT0}, v{aT2}
    v_permlane32_swap_b32 v{aT1}, v{aT3}
    v_mov_b32 v{vV}, v{vV0}
    ds_read_b128 {V(VB[0],4)}, v{vV0}
    ds_read_b128 {V(VB[0]+4,4)}, v{vV0} offset:576
    v_max_f32 v{aT0}, v{aT0}, v{aT2}
    v_max_f32 v{aT1}, v{aT1}, v{aT3}
    """)
    for i in range(16): A(f"v_sub_f32 v{NMA+i}, 0, v{aT0}")
    A(f"""
    v_sub_f32 v{NMB}, 0, v{aT1}
    s_mov_b32 s51, 0
    {m16(SA, KB[0], Q1A, V(NMA,16))}
    {m8(SA, KL, Q2A)}
    """)
    for i in range(1, 16): A(f"v_sub_f32 v{NMB+i}, 0, v{aT1}")
    A("s_setprio 0")
    g.stamp(9)
    if g.dbg and 'its' in EXP: A("s_mov_b32 s55, 0\nv_mov_b32 v214, 0\nv_writelane_b32 v214, s88, 0\nv_writelane_b32 v214, s90, 32")
    A(".p2align 6\nLa_loop:")
    KLB = [KL, KL2]
    for J in range(8):
        j = J & 3; hb = J >> 2
        b = j & 1; nb = b ^ 1
        koff = 2*(J+1)
        ex = [[f"ds_read2st64_b64 {V(KB[nb],4)}, v{vKM} offset0:{koff} offset1:{koff+1}"], [], [], ["s_waitcnt lgkmcnt(0)"]]
        if J == 0: ex[2] = ["s_min_u32 s53, s51, 12"]
        if J == 1: ex[0].append(f"ds_add_rtn_u32 v{vCR}, v{vCA}, v{vOne}")
        if J == 2: ex[2] = ["s_lshr_b32 s52, s52, 8"]
        if j == 3:
            ex[0].append(f"ds_read2st64_b64 {V(KLB[hb ^ 1],4)}, v{vKL} offset0:{2*hb+2} offset1:{2*hb+3}")
            ex[1] = [f"v_add_u32 v{vV}, v{vVinc}, v{vV}"]
        if J == 7: ex[2] = ["s_cmp_lt_u32 s51, 16"]
        klp = KLB[hb] + 2*(j >> 1)
        phase(A, SA, PA, [m16(SB, KB[b], Q1B, V(NMB,16)), m8(SB, klp, Q2B + 2*(j & 1)),
                          m16(OB, VB[nb], PB, V(OB,16)), m16(OB, VB[nb]+4, PB+4, V(OB,16))], ex)
        jn = (j+1) & 3; hn = ((J+1) & 7) >> 2
        klp = KLB[hn] + 2*(jn >> 1)
        ex = [[], [], [f"ds_read_b128 {V(VB[nb],4)}, v{vV} offset:{jn*VT}"], [f"ds_read_b128 {V(VB[nb]+4,4)}, v{vV} offset:{jn*VT+576}"]]
        if J == 0: ex[0] = ["s_add_u32 s51, s51, 2"]
        if J == 1: ex[1] = [f"v_readfirstlane_b32 s52, v{vCR}"]
        if J == 6:
            ex[0] = ["s_cmp_ge_u32 s53, s52"]
            ex[3] += ["s_cbranch_scc1 La_chk", "La_chkd:"]
        if J == 7:
            ex[1] = [f"v_add_u32 v{vKM}, 8192, v{vKM}", f"v_add_u32 v{vKL}, 2048, v{vKL}"]
        phase(A, SB, PB, [m16(SA, KB[nb], Q1A, V(NMA,16)), m8(SA, klp, Q2A + 2*(jn & 1)),
                          m16(OA, VB[b], PA, V(OA,16)), m16(OA, VB[b]+4, PA+4, V(OA,16))], ex)
    if g.dbg and 'its' in EXP:
        A(f"""
        s_memrealtime s[88:89]
        s_memtime s[90:91]
        s_mov_b32 m0, s51
        s_waitcnt lgkmcnt(0)
        v_writelane_b32 v214, s88, m0
        s_add_u32 m0, s51, 32
        s_nop 0
        v_writelane_b32 v214, s90, m0
        s_cmp_lt_u32 s51, 16
        """)
    A("s_cbranch_scc1 La_loop")
    A(f"""
    s_setprio 2
    {m16(OB, VB[1], PB, V(OB,16))}
    {m16(OB, VB[1]+4, PB+4, V(OB,16))}
    """)
    g.stamp(10)
    A(f"v_lshlrev_b32 v{aT2}, 2, v0\nv_mov_b32 v{aT3}, 0")
    for n, (O, P) in enumerate(((OA, PA), (OB, PB))):
        A(f"""
        v_mov_b32 v{aT0}, v{O+10}
        v_mov_b32 v{aT1}, v{O+10}
        """)
        for i in range(11): A(f"v_add_f32 v{aT3}, |v{O+i}|, v{aT3}")
        A(f"""
        v_permlane32_swap_b32 v{aT0}, v{aT1}
        s_nop 1
        v_rcp_f32 v{aT0}, v{aT0}
        s_add_u32 s25, s48, {n*36*1024}
        s_add_u32 s27, s49, {n*36*1024}
        """)
        for i in range(10): A(f"v_mul_f32 v{O+i}, v{O+i}, v{aT0}")
        for i in range(5): A(f"v_cvt_pk_bf16_f32 v{P+i}, v{O+2*i}, v{O+2*i+1}")
        A(f"""
        buffer_store_dwordx4 {V(P,4)}, v{vL16}, s[12:15], s25 offen {SC}
        s_mov_b32 exec_hi, 0
        buffer_store_dword v{P+4}, v{aT2}, s[12:15], s27 offen {SC}
        s_mov_b32 exec_hi, -1
        """)
    A(f"""
    v_mov_b32 v{aT1}, 0x71800000
    v_cmp_nlt_f32 vcc, v{aT3}, v{aT1}
    v_mov_b32 v{aT3}, {FLAG}
    v_mov_b32 v{aT2}, 1
    s_cmp_lg_u32 s50, 0
    s_cbranch_scc1 Lp3
    s_cbranch_vccz Lp3
    ds_write_b32 v{aT3}, v{aT2}
    s_branch Lp3
La_chk:
    s_cmp_eq_u32 s30, 0
    s_cbranch_scc1 La_chk0
    s_mov_b32 s30, 0
    s_waitcnt vmcnt(0)
    """)
    g.gsync(10, TMP)
    A(f"""
    v_mov_b32 v{TMP}, {4 << 8}
    ds_add_u32 v{vCA}, v{TMP}
La_chk0:
    s_mov_b32 s93, {SPIN}
La_chk1:
    ds_read_b32 v{vCR}, v{vCA}
    s_waitcnt lgkmcnt(0)
    v_readfirstlane_b32 s52, v{vCR}
    s_lshr_b32 s52, s52, 8
    s_cmp_lt_u32 s53, s52
    s_cbranch_scc1 La_chkd
    s_sleep 1
    s_sub_u32 s93, s93, 1
    s_cmp_lg_u32 s93, 0
    s_cbranch_scc1 La_chk1
    s_branch La_chkd
La_slow:
    s_mov_b32 s50, 1
    s_barrier
    v_mov_b32 v{aT0}, {14 << 8}
    ds_write_b32 v{vCA}, v{aT0}
    v_mov_b32 v{aT3}, {FLAG}
    v_mov_b32 v{aT2}, 0
    ds_write_b32 v{aT3}, v{aT2}
    v_mov_b32 v{vKM}, v{vKM0}
    v_mov_b32 v{vKL}, v{vKL0}
    v_mov_b32 v{aT0}, 0xff800000
    v_mov_b32 v{aT1}, 0xff800000
    s_mov_b32 s51, 16
    s_waitcnt lgkmcnt(0)
    s_barrier
La_maxloop:
    ds_read2st64_b64 {V(KL,4)}, v{vKL} offset0:0 offset1:1
    """)
    for j in range(4):
        A(f"""
        ds_read2st64_b64 {V(KB[0],4)}, v{vKM} offset0:{2*j} offset1:{2*j+1}
        s_waitcnt lgkmcnt(0)
        {m16(SA, KB[0], Q1A, 0)}
        {m16(SB, KB[0], Q1B, 0)}
        {m8(SA, KL+2*(j>>1), Q2A+2*(j&1))}
        {m8(SB, KL+2*(j>>1), Q2B+2*(j&1))}
        s_nop 11
        """)
        maxtree(A, aT0, SA, True)
        maxtree(A, aT1, SB, True)
    A(f"""
    v_add_u32 v{vKM}, 4096, v{vKM}
    v_add_u32 v{vKL}, 1024, v{vKL}
    s_sub_u32 s51, s51, 1
    s_cmp_lg_u32 s51, 0
    s_cbranch_scc1 La_maxloop
    ds_read2st64_b64 {V(KB[0],4)}, v{vKM0} offset0:0 offset1:1
    ds_read2st64_b64 {V(KL,4)}, v{vKL0} offset0:0 offset1:1
    """)
    zero_acc(A)
    A("s_waitcnt lgkmcnt(0)\ns_branch La_setm")

def gen_p3(g):
    A = g.A
    BW, ACC_, AF = 40, 184, 16
    wA = 196
    A(f"""
Lh_slow:
    s_barrier
    """)
    dma_skip(A, -8)
    dma_n(g, 8)
    A(f"""
    s_waitcnt vmcnt(0)
    s_barrier
Lh_p3:
    s_and_b32 s19, s2, 7
    s_lshr_b32 s33, s2, 3
    v_lshlrev_b32 v{TMP}, 7, v0
    s_cmp_ge_u32 s33, 24
    s_cbranch_scc0 Lh_wo
    s_branch Lp3
Lh_wo:
    """)
    g.srd(4, pWO, WOB)

    for i in range(3):
        A(f"""
        v_add_u32 v1, {64*i}, v0
        v_mul_u32_u24 v2, 5462, v1
        v_lshrrev_b32 v2, 16, v2
        v_mul_u32_u24 v3, 12, v2
        v_sub_u32 v1, v1, v3
        v_mul_u32_u24 v2, 1152, v2
        v_lshl_add_u32 v{wA+i}, v1, 4, v2
        """)
    A(f"""
    v_subrev_u32 v{wA+1}, 1024, v{wA+1}
    v_subrev_u32 v{wA+2}, 2048, v{wA+2}
    s_lshr_b32 s25, s33, 2
    s_mul_i32 s28, s25, 192
    s_mul_i32 s25, s20, {16*1152}
    s_add_u32 s28, s28, s25
    """)
    for half, (n, base) in enumerate(((13, "s23"), (15, "s22"))):
        wait_progress(g, n, 6)
        A(f"""
        s_add_u32 s27, s28, {half*288*1152}
        s_mul_i32 s25, s20, 3072
        s_add_u32 s25, s25, {base}
        s_mov_b32 s31, s20
Lo_wo{half}:
        s_mov_b32 m0, s25
        s_add_u32 s31, s31, 4
        buffer_load_dwordx4 v{wA}, s[4:7], s27 offen lds
        buffer_load_dwordx4 v{wA+1}, s[4:7], s27 offen offset:1024 lds
        buffer_load_dwordx4 v{wA+2}, s[4:7], s27 offen offset:2048 lds
        s_add_u32 s27, s27, {4*16*1152}
        s_add_u32 s25, s25, {4*3072}
        s_cmp_lt_u32 s31, 18
        s_cbranch_scc1 Lo_wo{half}
        """)
    A(f"""
Lp3:
    v_mov_b32 v{TMP+1}, {FLAG}
    s_lshl_b32 s30, s18, 2
    s_lshr_b32 s25, s17, 3
    s_add_u32 s30, s30, s25
    s_add_u32 s30, s30, 32
    s_waitcnt vmcnt(0) lgkmcnt(0)
    s_barrier
    ds_read_b32 v{TMP}, v{TMP+1}
    s_and_b32 s19, s2, 7
    s_lshr_b32 s33, s2, 3
    s_waitcnt lgkmcnt(0)
    v_readfirstlane_b32 s25, v{TMP}
    s_cmp_eq_u32 s25, 0
    s_cbranch_scc1 Lp3_ok
    s_cmp_lt_u32 s16, 4
    s_cbranch_scc1 La_slow
    s_branch Lh_slow
Lp3_ok:
    """)
    g.stamp(11)
    A("s_cmp_lg_u32 s16, 7\ns_cbranch_scc1 Lp3_1")
    A("s_lshl_b64 s[28:29], 1, s18")
    g.signal("s30", 14, mask="s[28:29]" if opt('PMASK', 1) else None)
    A(f"""
Lp3_1:
    s_cmp_ge_u32 s33, 24
    s_cbranch_scc1 Lp3_s3
    s_and_b32 s17, s33, 3
    s_lshl_b32 s19, s19, 2
    s_add_u32 s17, s17, s19            ; tb
    s_lshr_b32 s18, s33, 2             ; ng
    s_mov_b32 s28, s23
    s_mov_b32 s29, s22
    s_and_b32 s23, s16, 1
    s_lshr_b32 s24, s16, 1
    v_lshlrev_b32 v12, 4, v0
    s_cmp_ge_u32 s16, 6
    s_cbranch_scc1 Lo_nopre
    v_lshrrev_b32 v1, 5, v0
    v_bfe_u32 v2, v0, 2, 2
    v_bfe_u32 v3, v0, 4, 1
    v_lshlrev_b32 v3, 5, v3
    v_and_b32 v7, 3, v0
    v_lshl_add_u32 v3, v7, 3, v3
    s_lshl_b32 s25, s24, 6
    v_add_u32 v3, s25, v3
    v_lshl_add_u32 v7, v1, 2, v2
    v_mul_u32_u24 v7, 192, v7
    v_add3_u32 v8, v7, v3, s28
    v_add3_u32 v9, v7, v3, s29
    v_mul_u32_u24 v7, 72, v1
    v_lshrrev_b32 v10, 1, v2
    v_mul_u32_u24 v10, 18, v10
    v_add_u32 v7, v7, v10
    v_and_b32 v10, 1, v2
    v_add3_u32 v7, v7, v10, 16
    v_mul_u32_u24 v7, 192, v7
    v_add3_u32 v10, v7, v3, s28
    v_add3_u32 v11, v7, v3, s29
    """)
    for s_ in range(36):
        for e in range(2):
            if s_ < 32: base, off = (8, (18*s_ + 8*e)*192) if s_ < 16 else (9, (18*(s_-16) + 8*e)*192)
            else: base, off = (10 + ((s_-32) >> 1), (144*((s_-32) & 1) + 36*e)*192)
            A(f"ds_read_b64_tr_b16 {V(BW+4*s_+2*e,2)}, v{base} offset:{off}")
        if s_ % 6 == 5: A("s_waitcnt lgkmcnt(4)")
    A("Lo_nopre:")
    g.srd(44, pOUT, OUTB)
    for i in range(16): A(f"v_mov_b32 v{ACC_+i}, 0")
    TR = 81920
    A(f"""
    s_mul_i32 s20, s17, {2*36*1024}
    s_add_u32 s20, s20, {OF}
    s_mul_i32 s21, s23, {36*1024}
    s_add_u32 s20, s20, s21
    s_lshl_b32 s21, s24, 10
    s_add_u32 s20, s20, s21
    s_lshl_b32 s21, s23, 10
    v_add_u32 v13, s21, v12
    v_and_b32 v1, 31, v0
    v_lshlrev_b32 v1, 2, v1
    v_lshrrev_b32 v2, 5, v0
    v_lshl_add_u32 v1, v2, 9, v1
    s_add_u32 s21, s21, 65536
    v_add_u32 v201, s21, v1
    v_add_u32 v202, 2048, v201
    v_add_u32 v203, 4096, v201
    v_add_u32 v204, 6144, v201
    v_and_b32 v1, 31, v0
    s_lshl_b32 s21, s23, 5
    v_add_u32 v1, s21, v1
    v_mul_u32_u24 v1, 208, v1
    v_lshl_add_u32 v1, v2, 3, v1
    s_lshl_b32 s21, s24, 6
    s_add_u32 s21, s21, {TR}
    v_add_u32 v200, s21, v1
    s_mul_i32 s26, s17, {64*2304}
    s_mul_i32 s22, s18, 192
    s_add_u32 s26, s26, s22
    s_lshl_b32 s22, s16, 7
    """)
    for i in range(2):
        A(f"""
        v_add_u32 v1, s22, v0
        v_add_u32 v1, {64*i}, v1
        v_mul_u32_u24 v2, 5462, v1
        v_lshrrev_b32 v2, 16, v2
        v_mul_u32_u24 v3, 12, v2
        v_sub_u32 v1, v1, v3
        v_lshlrev_b32 v1, 4, v1
        v_mul_u32_u24 v3, 208, v2
        v_add_u32 v{4+i}, v3, v1
        v_add_u32 v{4+i}, {TR}, v{4+i}
        v_mul_u32_u24 v3, 2304, v2
        v_add_u32 v{6+i}, v3, v1
        """)
    A("s_lshl_b32 s21, s16, 10\ns_waitcnt lgkmcnt(0)")
    g.stamp(12)
    A("s_cmp_lg_u32 s16, 7\ns_cbranch_scc1 Lp3_h\ns_add_u32 s25, s19, 32")
    g.poll("s25", 4, 8, 208, fast=opt('FASTP', 0))
    A("Lp3_h:\ns_barrier")
    g.stamp(13)
    for rr in range(9):
        A(f"""
        s_mov_b32 m0, s21
        s_add_u32 s21, s21, 8192
        buffer_load_dwordx4 v12, s[12:15], s20 offen lds {SC}
        s_add_u32 s20, s20, 4096
        """)
    AFB = [16, 216]
    def rd(s_, reg):
        off = 2048*s_ - (49152 if s_ >= 24 else 0)
        if s_ < 32: return [f"ds_read_b128 {V(reg,4)}, v{13 if s_ < 24 else 14} offset:{off}"]
        return [f"ds_read2_b32 {V(reg,2)}, v{201+s_-32} offset0:0 offset1:32", f"ds_read2_b32 {V(reg+2,2)}, v{201+s_-32} offset0:64 offset1:96"]
    A("v_add_u32 v14, 49152, v13")
    A("s_waitcnt vmcnt(6)\ns_barrier\ns_cmp_ge_u32 s16, 6\ns_cbranch_scc1 Lo_idle")
    for i in range(6):
        for r in rd(i, AFB[0]+4*i): A(r)
    for grp in range(6):
        nxt = grp + 1
        if nxt < 6 and nxt % 2 == 0: A(f"s_waitcnt vmcnt({6-3*(nxt//2)})\ns_barrier")
        for i in range(6):
            s_ = 6*grp + i
            n_rest = sum(len(rd(x, 0)) for x in range(s_+1, 6*grp+6))
            n_next = sum(len(rd(6*nxt+x, 0)) for x in range(i)) if nxt < 6 else 0
            A(f"s_waitcnt lgkmcnt({min(15, n_rest + n_next)})")
            A(f"v_mfma_f32_32x32x16_bf16 {V(ACC_,16)}, {V(BW+4*s_,4)}, {V(AFB[grp & 1]+4*i,4)}, {V(ACC_,16)}")
            if nxt < 6:
                for r in rd(6*nxt+i, AFB[nxt & 1]+4*i): A(r)
    g.stamp(14)
    A("s_nop 11")
    for q in range(4):
        A(f"""
        v_cvt_pk_bf16_f32 v{AF+2*q}, v{ACC_+4*q}, v{ACC_+4*q+1}
        v_cvt_pk_bf16_f32 v{AF+2*q+1}, v{ACC_+4*q+2}, v{ACC_+4*q+3}
        ds_write_b64 v200, {V(AF+2*q,2)} offset:{16*q}
        """)
    A(f"""
    s_waitcnt lgkmcnt(0)
    s_barrier
    ds_read_b128 {V(AF,4)}, v4
    ds_read_b128 {V(AF+4,4)}, v5
    s_waitcnt lgkmcnt(1)
    buffer_store_dwordx4 {V(AF,4)}, v6, s[44:47], s26 offen {SC}
    s_waitcnt lgkmcnt(0)
    buffer_store_dwordx4 {V(AF+4,4)}, v7, s[44:47], s26 offen {SC}
    s_branch Lfin
Lo_idle:
    s_waitcnt vmcnt(3)
    s_barrier
    s_waitcnt vmcnt(0)
    s_barrier
    s_branch Lfin
Lp3_s3:
    s_sub_u32 s20, s33, 24
    s_lshl_b32 s17, s19, 3
    s_add_u32 s17, s17, s20
    s_mov_b64 s[6:7], s[{pOUT}:{pOUT+1}]
    s_mov_b64 s[48:49], s[{pWS}:{pWS+1}]
    s_mov_b64 s[50:51], s[{pQ}:{pQ+1}]
    """)
    g.poll(16, 16, 18, 16)
    k3.gen_stage3(A, "Ls3", False, SC)
    A("Lfin:")
    g.end()

def gen(name, dbg=False):
    g = G(dbg); A = g.A
    A("Lcode_begin:")
    A(f"""
    s_cmp_ge_u32 s2, 256
    s_cbranch_scc1 Lend
    s_load_dwordx16 s[64:79], s[0:1], 0
    s_load_dwordx8 s[80:87], s[0:1], 64
    v_lshrrev_b32 v1, 6, v0
    v_and_b32 v0, 63, v0
    v_readfirstlane_b32 s16, v1
    """)
    if dbg: A(f"v_mov_b32 v{vST}, 0")
    g.stamp(0)
    A(f"""
    s_lshl_b32 s3, s16, 2
    s_add_u32 s3, s3, {SY}
    s_and_b32 s94, s3, {0xffffffff & ~15}
    s_cmp_ge_u32 s2, 224
    s_cbranch_scc1 Ls1
    """)
    gen_gemm(g)
    A("Ls1:")
    gen_stage1(g)
    gen_attn(g)
    gen_p3(g)
    A("Lend:\ns_endpgm\nLcode_end:")
    return A.text()

DOC = """; ---------------------------------------------------------------------------------------------------
;  launch zeroes itself (ready words in d_debug); consumers poll with sc1 loads and read the data with sc1 loads,
; ---------------------------------------------------------------------------------------------------
"""
if __name__ == "__main__":
    import sys
    out = sys.argv[1]; dbg = len(sys.argv) > 2 and sys.argv[2] == "dbg"
    name = "concat_heads__softmax_full_mha__ssm_conv_h3__prompt_kernel"
    HDR = open("concat_heads__softmax_full_mha__ssm_conv_h3__prompt.s.ref").read().split("; Override launch")[0]
    s = HDR
    if (dbg and not os.environ.get('DD') and not os.environ.get('AMP')) or 'list' in EXP: s += f"; @launch kernel={name} grid=(256,1,1) block=(512,1,1) lds={LDS_BYTES}\n"
    else: s += f"; @launch grid=(256,1,1) block=(512,1,1) lds={LDS_BYTES}\n"
    s += DOC
    s += '.amdgcn_target "amdgcn-amd-amdhsa--gfx950"\n.text\n' + kernel_head(name) + gen(name, dbg)
    s += '.section .rodata,"a"\n' + kernel_desc(name, NVGPR, 102)
    open(out, "w").write(s)
```

```python
import os, struct, math
from asmlib import *
from layout import *
import kconv
EXP = os.environ.get('FEXP', '').split(',')
def opt(name, default): return int(os.environ.get(name, default))

CS_BITS = struct.unpack("<I", struct.pack("<f", math.log2(math.e)/math.sqrt(18)))[0]
XB, WB, OUTB, WOB = 2048*1152, 576*3456, 2048*2304, 576*1152
NVGPR = 248
LDS_BYTES = 163840
vST = 215
pX, pW, pWO, pQ, pK, pV, pSH, pH, pD, pOUT, pDBG, pWS = [64+2*i for i in range(12)]
WIN = 65536 + VSZ + 16384
CONST = WIN
UC = WIN + 4352
XCH = WIN + 6144
SY = WIN + 5376
SC = "sc1"
NTG = 'nt' if 'ntg' in EXP else ''
NTB = 'nt' if 'ntb' in EXP else ''
SPIN = 200000
NREP = opt('NREP', 8)
GOFF = 120*256

class G:
    def __init__(self, dbg):
        self.A = Asm(); self.dbg = dbg; self.n = 0
    def lab(self, p="L"):
        self.n += 1; return f"{p}{self.n}"
    def stamp(self, i):
        if self.dbg:
            self.A(f"""
            s_memrealtime s[88:89]
            s_memtime s[90:91]
            s_waitcnt lgkmcnt(0)
            v_writelane_b32 v{vST}, s88, {i}
            v_writelane_b32 v{vST}, s90, {32+i}
            """)
    def srd(self, d, p, n):
        self.A(f"s_mov_b32 s{d}, s{p}\ns_mov_b32 s{d+1}, s{p+1}\ns_mov_b32 s{d+2}, {n}\ns_mov_b32 s{d+3}, 0x20000")
    def end(self):
        A = self.A
        if self.dbg:
            A("s_mov_b64 exec, -1\ns_waitcnt vmcnt(0)")
            self.stamp(31)
            A(f"""
            s_lshl_b32 s25, s2, 3
            s_add_u32 s25, s25, s16
            s_lshl_b32 s25, s25, 8
            s_add_u32 s25, s25, {STAMP}
            v_lshlrev_b32 v1, 2, v0
            buffer_store_dword v{vST}, v1, s[12:15], s25 offen
            s_add_u32 s25, s25, {2048*256}
            buffer_store_dword v214, v1, s[12:15], s25 offen
            """)
        amp = os.environ.get('AMP')
        if self.dbg and amp:
            wg, w, i, j = [int(x) for x in amp.split(',')]
            A(f"""
            s_cmp_lg_u32 s2, {wg}
            s_cbranch_scc1 Lam_e
            s_cmp_lg_u32 s16, {w}
            s_cbranch_scc1 Lam_e
            v_readlane_b32 s40, v{vST}, {i}
            v_readlane_b32 s41, v{vST}, {j}
            s_memrealtime s[42:43]
            s_nop 3
            s_sub_u32 s41, s41, s40
            s_min_u32 s41, s41, 10000
            s_lshl_b32 s41, s41, 3
            s_add_u32 s41, s41, {os.environ.get('AMPC', '0')}
            s_waitcnt lgkmcnt(0)
Lam_l:
            s_memrealtime s[44:45]
            s_waitcnt lgkmcnt(0)
            s_sub_u32 s44, s44, s42
            s_cmp_lt_u32 s44, s41
            s_cbranch_scc1 Lam_l
Lam_e:
            """)
        dd = os.environ.get('DD')
        if self.dbg and dd:
            wg, w, *idx = [int(x) for x in dd.split(',')]
            A(f"""
            s_cmp_lg_u32 s2, {wg}
            s_cbranch_scc1 Ldd_e
            s_cmp_lg_u32 s16, {w}
            s_cbranch_scc1 Ldd_e
            v_readlane_b32 s40, v{vST}, 0
            v_mov_b32 v2, 0
            """)
            for k, i in enumerate(idx):
                A(f"""
                v_readlane_b32 s41, v{vST}, {i}
                s_nop 3
                s_sub_u32 s41, s41, s40
                v_mov_b32 v3, s41
                global_store_dword v2, v3, s[{pDBG}:{pDBG+1}] offset:{32+4*k}
                """)
            A("Ldd_e:")
        A("s_endpgm")
    def post(self, val, t):
        self.A(f"""
        v_mov_b32 v{t}, s3
        v_mov_b32 v{t+1}, {val}
        ds_write_b32 v{t}, v{t+1}
        """)
    def wait_words(self, addr, val, t, n=4, sl=1):
        l = self.lab("Lw"); d = self.lab("Ld")
        rd = f"ds_read_b128 {V(t,4)}, v{t+4}" if n == 4 else f"ds_read_b32 v{t}, v{t+4}"
        mn = f"v_min_u32 v{t}, v{t}, v{t+1}\nv_min3_u32 v{t}, v{t}, v{t+2}, v{t+3}\ns_nop 0" if n == 4 else ""
        self.A(f"""
        v_mov_b32 v{t+4}, {addr}
        s_mov_b32 s93, {SPIN}
{l}:
        {rd}
        s_waitcnt lgkmcnt(0)
        {mn}
        v_readfirstlane_b32 s92, v{t}
        s_cmp_ge_u32 s92, {val}
        s_cbranch_scc1 {d}
        s_sleep {sl}
        s_sub_u32 s93, s93, 1
        s_cmp_lg_u32 s93, 0
        s_cbranch_scc1 {l}
{d}:
        """)
    def gsync(self, val, t):
        self.post(val, t)
        self.wait_words("s94", val, t)
    def ready(self, t):
        l = self.lab("Lr"); d = self.lab("Ld")
        self.A(f"""
        v_and_b32 v{t+1}, {NREP-1}, v0
        v_lshlrev_b32 v{t+1}, 2, v{t+1}
        s_mov_b32 s93, {SPIN}
{l}:
        global_load_dword v{t}, v{t+1}, s[{pDBG}:{pDBG+1}] {SC}
        s_waitcnt vmcnt(0)
        v_cmp_eq_u32 vcc, 0, v{t}
        s_nop 3
        s_cmp_eq_u64 vcc, 0
        s_cbranch_scc1 {d}
        s_sleep 2
        s_sub_u32 s93, s93, 1
        s_cmp_lg_u32 s93, 0
        s_cbranch_scc1 {l}
{d}:
        """)
    def signal(self, sidx, t, mask=None):
        self.A(f"""
        s_lshl_b32 s92, {sidx}, 8
        s_add_u32 s92, s92, {CNT}
        v_lshlrev_b32 v{t}, 15, v0
        v_mov_b32 v{t+1}, 1
        s_mov_b64 exec, {mask or (1 << NREP) - 1}
        buffer_atomic_add v{t+1}, v{t}, s[12:15], s92 offen {SC}
        s_mov_b64 exec, -1
        """)
    def poll(self, first, n, target, t, sl=None, fast=False, mask=None, sh=8):
        l = self.lab("Lp"); d = self.lab("Ld")
        self.A(f"""
        v_min_u32 v{t+1}, {n-1}, v0
        v_add_u32 v{t+1}, {first}, v{t+1}
        v_lshlrev_b32 v{t+1}, {sh}, v{t+1}
        s_mov_b32 s93, {SPIN}
        s_and_b32 s92, s2, {NREP-1}
        s_lshl_b32 s92, s92, 15
        s_add_u32 s92, s92, {CNT}
        s_mov_b64 exec, {mask or (1 << n) - 1}
        {"" if not fast else f"buffer_load_dword v{t+2}, v{t+1}, s[12:15], s92 offen {SC}" + chr(10) + f"s_sleep {opt('FSL', 3)}"}
{l}:
        buffer_load_dword v{t}, v{t+1}, s[12:15], s92 offen {SC}
        s_waitcnt vmcnt({1 if fast else 0})
        v_cmp_le_u32 vcc, {target}, v{t+2 if fast else t}
        s_nop 3
        s_cmp_eq_u64 vcc, exec
        s_cbranch_scc1 {d}
        {"" if not fast else f"buffer_load_dword v{t+2}, v{t+1}, s[12:15], s92 offen {SC}" + chr(10) + "s_waitcnt vmcnt(1)" + chr(10) + f"v_cmp_le_u32 vcc, {target}, v{t}" + chr(10) + "s_nop 3" + chr(10) + "s_cmp_eq_u64 vcc, exec" + chr(10) + f"s_cbranch_scc1 {d}"}
        {"" if fast else f"s_sleep {sl or opt('PSLEEP', 2)}"}
        s_sub_u32 s93, s93, 1
        s_cmp_lg_u32 s93, 0
        s_cbranch_scc1 {l}
{d}:
        s_mov_b64 exec, -1
        """)

vT0, vT1, vT2, vT3, vTok, vHf = 1, 2, 3, 4, 5, 6
vXb, vWb, vX, vW, vEA, FR, ACC, PK = 8, 12, 14, 18, 20, 36, 68, 132
RING = 131072
FRB = [FR, FR+16, 148, 164, 180, 196, 216, 232]
def XF(b, i): return FRB[b] + 4*i
def WF(b, j): return FRB[b] + 8 + 4*j
def acc(i, j): return ACC + 16*(2*i + j)
def g_reads(b, s):
    return [f"ds_read_b128 {V(XF(b,0),4)}, v{vX+s}",
            f"ds_read_b64_tr_b16 {V(WF(b,0),2)}, v{vW} offset:{16384 + 4096*s}",
            f"ds_read_b64_tr_b16 {V(WF(b,0)+2,2)}, v{vW} offset:{16384 + 4096*s + 1024}",
            f"ds_read_b64_tr_b16 {V(WF(b,1),2)}, v{vW+1} offset:{16384 + 4096*s}",
            f"ds_read_b64_tr_b16 {V(WF(b,1)+2,2)}, v{vW+1} offset:{16384 + 4096*s + 1024}",
            f"ds_read_b128 {V(XF(b,1),4)}, v{vX+s} offset:4096"]
def g_mf(b, i, j, vtype):
    a, bb = (XF(b,i), WF(b,j)) if vtype else (WF(b,j), XF(b,i))
    return f"v_mfma_f32_32x32x16_bf16 {V(acc(i,j),16)}, {V(a,4)}, {V(bb,4)}, {V(acc(i,j),16)}"
def g_setaddr(A):
    for s in range(4): A(f"v_add_u32 v{vX+s}, s30, v{vXb+s}")
    for j in range(2): A(f"v_add_u32 v{vW+j}, s30, v{vWb+j}")
def g_loop(g, name, vtype, epi):
    A = g.A
    A("s_mov_b32 s31, 7\ns_barrier")
    for r in g_reads(0, 0): A(r)
    A(f".p2align 6\n{name}:")
    for s_ in range(4):
        b = s_ & 1
        rd = g_reads(b ^ 1, (s_+1) & 3)
        if s_ == 3:
            A("s_barrier")
            g_setaddr(A)
        A("s_waitcnt lgkmcnt(3)")
        A(g_mf(b, 0, 0, vtype))
        for r in rd[:3]: A(r)
        A("s_waitcnt lgkmcnt(4)")
        A(g_mf(b, 0, 1, vtype))
        for r in rd[3:]: A(r)
        A("s_waitcnt lgkmcnt(6)")
        A(g_mf(b, 1, 0, vtype))
        if s_ == 2:
            A(f"""
            s_add_u32 s30, s30, 32768
            s_and_b32 s30, s30, {RING-1}
            s_sub_u32 s31, s31, 1
            s_cmp_eq_u32 s31, 0
            """)
        A(g_mf(b, 1, 1, vtype))
    A(f"s_cbranch_scc0 {name}")
    first = [r for s_ in (1, 2, 3) for r in g_reads(s_, s_)[:3]]
    rest = [r for s_ in (1, 2, 3) for r in g_reads(s_, s_)[3:5]] + [g_reads(s_, s_)[5] for s_ in (1, 2, 3)]
    for r in first: A(r)
    for s_ in range(4):
        A(f"s_waitcnt lgkmcnt({9 - 3*s_ + 3*s_ if False else (9-3*s_) + min(3*s_, 9)})" if False else f"s_waitcnt lgkmcnt({9 - 3*s_ + 2*s_})")
        A(g_mf(s_, 0, 0, vtype))
        for r in rest[2*s_:2*s_+2] if s_ < 3 else rest[6:]: A(r)
    A(f"""
    s_add_u32 s30, s30, 32768
    s_and_b32 s30, s30, {RING-1}
    s_barrier
    """)
    g_setaddr(A)
    first = [r for s_ in range(4) for r in g_reads(4+s_, s_)[:3]]
    rest = [r for s_ in range(4) for r in g_reads(4+s_, s_)[3:5]] + [g_reads(4+s_, s_)[5] for s_ in range(4)]
    A("s_waitcnt lgkmcnt(3)")
    for s_ in range(4):
        A(g_mf(s_, 0, 1, vtype))
        for r in first[3*s_:3*s_+3]: A(r)
    for s_ in range(4):
        A(f"s_waitcnt lgkmcnt({9 - 3*s_ + 2*s_})")
        A(g_mf(4+s_, 0, 0, vtype))
        for r in rest[2*s_:2*s_+2]: A(r)
    seq = [(4+s_, 0, 1) for s_ in range(4)] + [(s_, 1, 0) for s_ in range(8)] + [(s_, 1, 1) for s_ in range(8)]
    def split(e, n): return [e[len(e)*k//n:len(e)*(k+1)//n] for k in range(n)]
    sched = {}
    for start, t, n in ((1, (0, 0), 4), (5, (0, 1), 4), (13, (1, 0), 4)):
        for k, piece in enumerate(split(epi(*t), n)): sched[start+k] = piece
    for n, (b_, i, j) in enumerate(seq):
        if n == 0: A("s_waitcnt lgkmcnt(0)")
        if n == 8: A("s_waitcnt lgkmcnt(0)")
        A(g_mf(b_, i, j, vtype))
        if n == 0:
            for r in rest[8:]: A(r)
            A("s_nop 3")
        if n in (4, 12): A("s_nop 7")
        if n in (5, 13): A("s_nop 1")
        for x in sched.get(n, []): A(x)
    prev = (1, 1)
    g.stamp(2)
    A("s_nop 11")
    for x in epi(*prev): A(x)

def ld_chunk(g, skip=True):
    A = g.A; l = g.lab("Lk")
    if skip: A(f"s_cmp_lg_u32 s95, 0\ns_cbranch_scc1 {l}")
    A(f"""
    s_mov_b32 m0, s42
    s_add_u32 s26, s40, 8192
    buffer_load_dwordx4 v8, s[8:11], s40 offen lds
    s_add_u32 s27, s40, 16384
    buffer_load_dwordx4 v9, s[8:11], s26 offen offset:1024 lds
    s_add_u32 s26, s40, 24576
    buffer_load_dwordx4 v8, s[8:11], s27 offen offset:2048 lds
    s_add_u32 s28, s42, 16384
    buffer_load_dwordx4 v9, s[8:11], s26 offen offset:3072 lds
    s_mov_b32 m0, s28
    s_add_u32 s26, s41, {13824-1024}
    buffer_load_dwordx4 v10, s[44:47], s41 offen lds
    s_add_u32 s27, s41, {2*(13824-1024)}
    buffer_load_dwordx4 v10, s[44:47], s26 offen offset:1024 lds
    s_add_u32 s26, s41, {3*(13824-1024)}
    buffer_load_dwordx4 v10, s[44:47], s27 offen offset:2048 lds
    s_add_u32 s40, s40, 128
    buffer_load_dwordx4 v10, s[44:47], s26 offen offset:3072 lds
    s_add_u32 s41, s41, {64*3456}
    s_add_u32 s24, s24, 1
    s_cmp_eq_u32 s24, 9
    s_cselect_b32 s26, 1152, 0
    s_cselect_b32 s27, {WB}, 0
    s_sub_u32 s40, s40, s26
    s_sub_u32 s41, s41, s27
    s_add_u32 s42, s42, 32768
    s_cmp_ge_u32 s42, {RING}
    s_cselect_b32 s26, {RING}, 0
    s_sub_u32 s42, s42, s26
{l}:
    """)

def gen_gemm(g):
    A = g.A
    ROT = opt('ROT', 1)
    A(f"""
    s_and_b32 s17, s2, 7               ; xcd
    s_lshr_b32 s18, s2, 3              ; idx 0..27
    s_and_b32 s19, s17, 3
    s_lshl_b32 s19, s19, 2
    s_and_b32 s20, s18, 3
    s_add_u32 s19, s19, s20            ; mb
    s_lshr_b32 s21, s17, 2
    s_mul_i32 s21, s21, 7
    s_lshr_b32 s22, s18, 2
    s_add_u32 s21, s21, s22            ; ng
    s_cmp_lt_u32 s16, 4
    s_cbranch_scc1 Lg_compute
    s_and_b32 s23, s16, 3              ; u
    """)
    if ROT:
        A("""
        s_mul_i32 s24, s20, 5
        s_lshr_b32 s24, s24, 1
        s_add_u32 s24, s24, s22
        s_cmp_ge_u32 s24, 9
        s_cselect_b32 s25, 9, 0
        s_sub_u32 s24, s24, s25
        """)
    else: A("s_mov_b32 s24, 0")
    A(f"""
    s_lshl_b32 s25, s19, 7
    s_lshl_b32 s26, s23, 5
    s_add_u32 s25, s25, s26
    s_mul_i32 s25, s25, 1152
    s_lshl_b32 s26, s24, 7
    s_add_u32 s40, s25, s26            ; sX
    s_lshl_b32 s25, s24, 2
    s_add_u32 s25, s25, s23
    s_mul_i32 s25, s25, {16*3456}
    s_lshl_b32 s26, s21, 8
    s_add_u32 s41, s25, s26            ; sW
    s_lshl_b32 s42, s23, 12
    v_lshrrev_b32 v{vT0}, 3, v0
    v_mul_u32_u24 v{vT0}, 1152, v{vT0}
    v_lshrrev_b32 v{vT1}, 4, v0
    v_and_b32 v{vT2}, 7, v0
    v_xor_b32 v{vT2}, v{vT2}, v{vT1}
    v_lshl_add_u32 v8, v{vT2}, 4, v{vT0}
    v_xor_b32 v{vT2}, 4, v{vT2}
    v_lshl_add_u32 v9, v{vT2}, 4, v{vT0}       ; odd i
    v_mul_u32_u24 v{vT0}, 3456, v{vT1}
    v_and_b32 v{vT2}, 15, v0
    v_lshlrev_b32 v{vT1}, 2, v{vT1}
    v_xor_b32 v{vT2}, v{vT2}, v{vT1}
    v_lshl_add_u32 v10, v{vT2}, 4, v{vT0}      ; W addr
    s_mov_b32 s95, 0
    s_setprio {opt('LPRIO', 0)}
    s_waitcnt lgkmcnt(0)
    """)
    g.srd(8, pX, XB); g.srd(44, pW, WB)
    A(f"""
    s_mov_b32 s31, 0
Lld:
    s_cmp_lt_u32 s31, 2
    s_cbranch_scc1 Lld_go
    s_waitcnt vmcnt(8)
    s_barrier
Lld_go:
    """)
    ld_chunk(g, False)
    A(f"""
    s_add_u32 s31, s31, 1
    s_cmp_lt_u32 s31, 9
    s_cbranch_scc1 Lld
    s_waitcnt vmcnt(8)
    s_barrier
    """)
    g.srd(12, pWS, WS_END)
    A(f"""
    s_waitcnt vmcnt(0)
    s_barrier
    s_branch Lh_start
Lg_compute:
    s_and_b32 s23, s16, 1              ; wm
    s_lshr_b32 s24, s16, 1             ; wn
    v_and_b32 v{vTok}, 31, v0
    v_lshrrev_b32 v{vHf}, 5, v0
    s_lshl_b32 s25, s23, 13
    v_lshlrev_b32 v{vT0}, 7, v{vTok}
    v_add_u32 v{vT0}, s25, v{vT0}
    v_bfe_u32 v{vT1}, v0, 1, 3
    v_xor_b32 v{vT1}, v{vT1}, v{vHf}
    """)
    for s in range(4):
        A(f"v_xor_b32 v{vT2}, {2*s}, v{vT1}\nv_lshl_add_u32 v{vXb+s}, v{vT2}, 4, v{vT0}")
    A(f"""
    v_bfe_u32 v{vT0}, v0, 2, 2
    v_lshl_add_u32 v{vT1}, v{vHf}, 3, v{vT0}
    v_lshlrev_b32 v{vT1}, 8, v{vT1}
    v_bfe_u32 v{vT2}, v0, 4, 1
    v_lshl_add_u32 v{vT1}, v{vT2}, 5, v{vT1}
    v_and_b32 v{vT2}, 3, v0
    v_lshl_add_u32 v{vT1}, v{vT2}, 3, v{vT1}
    s_lshl_b32 s25, s24, 1
    v_xor_b32 v{vT2}, s25, v{vT0}
    v_lshl_add_u32 v{vWb}, v{vT2}, 6, v{vT1}
    v_xor_b32 v{vT2}, 1, v{vT2}
    v_lshl_add_u32 v{vWb+1}, v{vT2}, 6, v{vT1}
    s_mov_b32 s30, 0
    s_waitcnt lgkmcnt(0)
    """)
    g.srd(12, pWS, WS_END)
    gen_init_misc(g, PK+8)
    g_setaddr(A)
    for i in range(64): A(f"v_mov_b32 v{ACC+i}, 0")
    A(f"""
    s_lshl_b32 s25, s21, 7
    s_sub_u32 s25, 71, s25
    v_mul_u32_u24 v{vT0}, 72, v0
    v_add_u32 v{vT0}, s25, v{vT0}
    v_add_u32 v{vT1}, 576, v{vT0}
    v_add_u32 v{vT2}, 1152, v{vT0}
    v_min_u32 v{vT0}, v{vT0}, v{vT1}
    v_min_u32 v{vT0}, v{vT0}, v{vT2}
    v_cmp_gt_u32 vcc, 199, v{vT0}
    s_nop 3
    s_and_b64 s[36:37], vcc, 0xff
    """)
    A(f"""
    s_lshl_b32 s26, s19, 2
    s_lshl_b32 s27, s23, 1
    s_add_u32 s26, s26, s27            ; T0
    s_waitcnt lgkmcnt(0)
    s_cmp_ge_u32 s21, 9
    s_cbranch_scc1 Lg_vtype
    s_lshl_b32 s27, s21, 5
    s_lshl_b32 s28, s24, 4
    s_add_u32 s27, s27, s28
    v_add_u32 v{vT0}, s27, v{vHf}      ; G0
    s_lshl_b32 s28, s26, 10
    s_lshl_b32 s29, s26, 8
    s_add_u32 s29, s29, {LEFT}
    v_lshlrev_b32 v{vTok}, 3, v{vTok}
    v_add_u32 v{PK}, s29, v{vTok}
    v_add_u32 v{PK+1}, s28, v{vTok}
    v_add_u32 v{PK+2}, {MB-1280}, v{PK+1}
    v_mov_b32 v{PK+3}, 256
    v_mov_b32 v{PK+4}, 1024
    s_mov_b32 s32, {PAIR}
    """)
    for jg in range(8):
        A(f"""
        v_add_u32 v{vT1}, {8*(jg>>2) + 2*(jg&3)}, v{vT0}
        v_mul_u32_u24 v{vT2}, 7282, v{vT1}
        v_lshrrev_b32 v{vT2}, 16, v{vT2}
        v_mul_u32_u24 v{vT3}, 9, v{vT2}
        v_sub_u32 v{vT1}, v{vT1}, v{vT3}
        v_cmp_lt_u32 vcc, 4, v{vT1}
        v_cmp_eq_u32 s[34:35], 4, v{vT1}
        v_mul_u32_u24 v{vT2}, s32, v{vT2}
        v_cndmask_b32 v{vT3}, v{PK+1}, v{PK+2}, vcc
        v_lshl_add_u32 v{vT3}, v{vT1}, 8, v{vT3}
        v_cndmask_b32 v{vT3}, v{vT3}, v{PK}, s[34:35]
        v_cndmask_b32 v{vT1}, v{PK+4}, v{PK+3}, s[34:35]
        v_add_u32 v{vEA+jg}, v{vT2}, v{vT3}
        v_add_u32 v{vEA+8+jg}, v{vEA+jg}, v{vT1}
        """)
    g.stamp(1)
    A(f"""
    s_lshl_b32 s27, s21, 2
    s_lshl_b32 s28, s24, 1
    s_add_u32 s27, s27, s28
    s_cmp_lt_u32 s27, 18
    s_cselect_b32 s28, {CS_BITS}, 1.0
    s_mov_b32 s29, s28
    """)
    def epi_qk(i, j):
        r = []
        for q in range(4):
            a_ = acc(i, j) + 4*q; p = PK + 2*q + 8*j
            r += [f"v_mul_f32 v{a_+e}, s28, v{a_+e}" for e in range(4)]
            r += [f"v_cvt_pk_bf16_f32 v{p}, v{a_}, v{a_+1}", f"v_cvt_pk_bf16_f32 v{p+1}, v{a_+2}, v{a_+3}",
                  f"buffer_store_dwordx2 {V(p,2)}, v{vEA+8*i+4*j+q}, s[12:15], 0 offen {SC}"]
        return r
    g_loop(g, "Lg_qk", False, epi_qk)
    A(f"""
    s_branch Lg_done
Lg_vtype:
    s_sub_u32 s27, s21, 9
    s_lshl_b32 s27, s27, 7
    s_lshl_b32 s28, s24, 6
    s_add_u32 s27, s27, s28
    s_mul_i32 s28, s26, 36864
    s_add_u32 s28, s28, {VG}
    v_mul_u32_u24 v{vT3}, 9216, v{vHf}
    v_add_u32 v{vT0}, s27, v{vTok}
    v_lshl_add_u32 v{vEA}, v{vT0}, 4, v{vT3}
    """)
    g.stamp(1)
    A(f"""
    s_cmp_ge_u32 s27, 576
    s_cselect_b32 s29, 0x7f000000, 0
    v_add_u32 v{vEA}, s29, v{vEA}
    """)
    def epi_v(i, j):
        r = []
        for m in range(2):
            a_ = acc(i, j) + 8*m; p = PK + 4*m + 8*j
            r += [f"v_cvt_pk_bf16_f32 v{p+e}, v{a_+2*e}, v{a_+2*e+1}" for e in range(4)]
            r += [f"s_add_u32 s29, s28, {i*36864+m*18432}", f"buffer_store_dwordx4 {V(p,4)}, v{vEA}, s[12:15], s29 offen offset:{512*j} {SC}"]
        return r
    g_loop(g, "Lg_v", True, epi_v)
    A(f"""
Lg_done:
    s_setprio 2
    """)
    g.stamp(15)
    A("s_cmp_lg_u32 s16, 0\ns_cbranch_scc1 Lg_d2")
    g.ready(8)
    A("Lg_d2:\ns_waitcnt vmcnt(0) lgkmcnt(0)")
    g.stamp(3)
    g.gsync(5, 8)
    A("s_cmp_lg_u32 s16, 0\ns_cbranch_scc1 Lattn")
    g.stamp(16)
    if opt('HIER', 0):
        A(f"""
        s_lshl_b32 s92, s21, 8
        s_add_u32 s92, s92, {CNT}
        v_mov_b32 v8, 0
        v_mov_b32 v9, 1
        s_mov_b64 exec, 1
        buffer_atomic_add v9, v8, s[12:15], s92 offen sc0 {SC}
        s_mov_b64 exec, -1
        s_lshl_b32 s92, s21, 2
        s_add_u32 s92, s92, {CNT+GOFF}
        v_lshlrev_b32 v8, 15, v0
        v_mov_b32 v10, 16
        s_waitcnt vmcnt(0)
        v_readfirstlane_b32 s25, v9
        s_cmp_lg_u32 s25, 15
        s_cbranch_scc1 Lg_nl
        s_mov_b64 exec, s[36:37]
        buffer_store_dword v10, v8, s[12:15], s92 offen {SC}
        s_mov_b64 exec, -1
Lg_nl:
        """)
    else:
        g.signal("s21", 8, mask="s[36:37]" if opt('PMASK', 1) else None)
        A("s_waitcnt vmcnt(0)")
    g.stamp(17)
    A("s_branch Lattn")

def gen_init_misc(g, t):
    A = g.A
    for i in range(2):
        A(f"""
        s_and_b32 s25, s16, 3
        s_lshl_b32 s25, s25, 7
        s_add_u32 s25, s25, {64*i-14 & 0xffffffff}
        v_add_u32 v{t+4}, s25, v0
        v_mul_u32_u24 v{t+5}, 1821, v{t+4}
        v_lshrrev_b32 v{t+5}, 16, v{t+5}
        v_mul_u32_u24 v{t+5}, 36, v{t+5}
        v_cmp_eq_u32 s[34:35], v{t+5}, v{t+4}
        v_cmp_gt_u32 vcc, {36*8}, v{t+4}
        v_mov_b32 v{t+5}, 0x3f803f80
        v_lshlrev_b32 v{t+4}, 4, v{t+4}
        s_and_b64 vcc, vcc, s[34:35]
        v_add_u32 v{t+4}, {CONST+224}, v{t+4}
        v_cndmask_b32 v{t}, 0, v{t+5}, vcc
        v_cndmask_b32 v{t+1}, 0, v{t+5}, vcc
        v_cndmask_b32 v{t+2}, 0, v{t+5}, vcc
        v_cndmask_b32 v{t+3}, 0, v{t+5}, vcc
        ds_write_b128 v{t+4}, {V(t,4)}
        """)

import k2, k3
from k2 import m16, m8, phase, maxtree
from k2 import vL8, vKM, vKL, vV, vL16, vV0, vVinc, Q1A, Q1B, Q2A, Q2B, NMA, NMB, SA, SB, PA, PB, OA, OB, KB, KL, VB
aT0, aT1, aT2, aT3 = 5, 6, 7, 8
TMP = 168
vCA, vCR, vOne, vKM0, vKL0, vG0, vG1, vG2 = range(176, 184)
bKG, bVG, b5G, bRD, bTR, bBW, bBR, bUO, bZP, bPG = range(184, 194)
CM = 216
FLAG = SY + 40
KL2 = 184

def head_params(A):
    A(f"""
    s_and_b32 s17, s2, 7
    s_lshl_b32 s17, s17, 2
    s_bfe_u32 s25, s2, 0x20003
    s_add_u32 s17, s17, s25            ; h
    s_lshr_b32 s18, s2, 5              ; qb
    s_and_b32 s20, s16, 3              ; qg / u
    s_and_b32 s21, s17, 1              ; parity
    s_lshr_b32 s26, s17, 1             ; pair
    v_lshlrev_b32 v{vL16}, 4, v0
    s_mul_i32 s39, s26, {PAIR}
    s_mul_i32 s28, s21, {LEFT}
    s_add_u32 s27, s39, s28
    s_add_u32 s27, s27, {KV}
    s_add_u32 s8, s{pWS}, s27
    s_addc_u32 s9, s{pWS+1}, 0
    s_mov_b32 s10, {WIN}
    s_mov_b32 s11, 0x20000
    s_lshl_b32 s22, s21, 14
    s_add_u32 s23, s22, 65536
    s_cmp_eq_u32 s21, 0
    s_cselect_b32 s24, {LEFT}, 0
    s_lshl_b32 s25, s20, 10
    s_add_u32 s40, s22, s25
    s_add_u32 s41, s23, s25
    s_add_u32 s42, s23, 8192
    s_and_b32 s44, s20, 1
    s_lshl_b32 s44, s44, 10
    s_add_u32 s44, s44, s24
    s_mul_i32 s43, s17, 288
    s_add_u32 s43, s43, {VG}
    s_add_u32 s46, s44, s27
    s_cmp_eq_u32 s20, 0
    s_cselect_b32 s42, s42, s44
    s_cselect_b32 s44, s43, s46
    s_cselect_b32 s45, 9, 2
    s_cselect_b32 s47, 288, 2
    s_cselect_b64 vcc, -1, 0
    s_lshl_b32 s45, s45, 10
    s_lshl_b32 s47, s47, 10
    s_lshl_b32 s25, s20, 6
    s_add_u32 s46, s25, 256
    """)
    for r, base in ((vG0, "s25"), (vG1, "s46"), (vG2, "512")):
        A(f"""
        v_add_u32 v{aT0}, {base}, v0
        v_mul_u32_u24 v{aT2}, 3641, v{aT0}
        v_lshrrev_b32 v{aT2}, 16, v{aT2}
        v_mul_u32_u24 v{aT3}, {9216-288}, v{aT2}
        v_lshl_add_u32 v{r}, v{aT0}, 4, v{aT3}
        """)
    A(f"v_cndmask_b32 v{vG2}, v{vL16}, v{vG2}, vcc")

def dma_skip(A, n):
    A(f"""
    s_add_u32 s40, s40, {(n*8192) & 0xffffffff}
    s_add_u32 s41, s41, {(n*9216) & 0xffffffff}
    s_add_u32 s43, s43, {(n*8*36864) & 0xffffffff}
    s_mul_i32 s25, s45, {n}
    s_add_u32 s42, s42, s25
    s_mul_i32 s25, s47, {n}
    s_add_u32 s44, s44, s25
    """)

def dma_iter(A):
    A(f"""
    s_mov_b32 m0, s40
    s_add_u32 s46, s40, 4096
    buffer_load_dwordx4 v{vL16}, s[8:11], s40 offen lds {SC}
    s_mov_b32 m0, s46
    s_add_u32 s40, s40, 8192
    buffer_load_dwordx4 v{vL16}, s[8:11], s46 offen lds {SC}
    s_mov_b32 m0, s41
    s_add_u32 s46, s41, 4096
    buffer_load_dwordx4 v{vG0}, s[12:15], s43 offen lds {SC}
    s_mov_b32 m0, s46
    s_add_u32 s41, s41, 9216
    buffer_load_dwordx4 v{vG1}, s[12:15], s43 offen lds {SC}
    s_mov_b32 m0, s42
    s_add_u32 s43, s43, {8*36864}
    buffer_load_dwordx4 v{vG2}, s[12:15], s44 offen lds {SC}
    s_add_u32 s42, s42, s45
    s_add_u32 s44, s44, s47
    """)
def dma_n(g, n):
    l = g.lab("Ldm")
    g.A(f"s_mov_b32 s31, {n}\n{l}:")
    dma_iter(g.A)
    g.A(f"s_sub_u32 s31, s31, 1\ns_cmp_lg_u32 s31, 0\ns_cbranch_scc1 {l}")

def avail_add(g, units):
    l = g.lab("Lav")
    g.A(f"""
    s_cmp_lg_u32 s16, 4
    s_cbranch_scc1 {l}
    v_mov_b32 v{TMP}, {units << 8}
    s_mov_b64 exec, 15
    ds_add_u32 v{bPG}, v{TMP}
    s_mov_b64 exec, -1
{l}:
    """)
def wait_progress(g, n, sl=4):
    l = g.lab("Lq"); d = g.lab("Ld")
    g.A(f"""
    s_mov_b32 s93, {SPIN}
{l}:
    ds_read_b32 v{TMP}, v{bPG}
    s_waitcnt lgkmcnt(0)
    v_and_b32 v{TMP}, 0xff, v{TMP}
    v_cmp_gt_u32 vcc, {n}, v{TMP}
    s_nop 3
    s_cmp_eq_u64 vcc, 0
    s_cbranch_scc1 {d}
    s_sleep {sl}
    s_sub_u32 s93, s93, 1
    s_cmp_lg_u32 s93, 0
    s_cbranch_scc1 {l}
{d}:
    """)

def gen_stage1(g):
    A = g.A
    KR, VR, CR, UU, OUT = 40, 60, 68, 84, 136
    T = TMP
    R = kconv.ConvRegs(16)
    A("s_waitcnt lgkmcnt(0)")
    g.srd(12, pWS, WS_END)
    A(f"""
    s_sub_u32 s17, s2, 224
    s_cmp_lt_u32 s16, 4
    s_cbranch_scc1 Lx_a
    s_mov_b32 s95, 1
    s_mov_b32 s18, 8
    s_lshl_b32 s19, s17, 1
    s_add_u32 s19, s19, 512
    s_bfe_u32 s25, s2, 0x10003
    s_lshl_b32 s25, s25, 14
    s_add_u32 s96, s25, 40960
    s_add_u32 s97, s25, {65536+46080}
    s_add_u32 s99, s97, 9344
    s_add_u32 s3, s3, 32
    s_add_u32 s94, s94, 32
    s_branch Lb_setup
Lx_a:
    s_cmp_ge_u32 s17, {NREP}
    s_cbranch_scc1 Lx_1
    s_cmp_lg_u32 s16, 0
    s_cbranch_scc1 Lx_1
    v_lshlrev_b32 v11, 8, v0
    v_mov_b32 v12, 0
    s_lshl_b32 s25, s17, 15
    s_add_u32 s25, s25, {CNT}
    buffer_store_dword v12, v11, s[12:15], s25 offen {SC}
    s_add_u32 s25, s25, 16384
    s_mov_b64 exec, 0xfffff
    buffer_store_dword v12, v11, s[12:15], s25 offen {SC}
    s_mov_b64 exec, -1
    v_lshlrev_b32 v11, 2, v0
    s_add_u32 s25, s25, {GOFF-16384}
    buffer_store_dword v12, v11, s[12:15], s25 offen {SC}
Lx_1:
    s_getpc_b64 s[26:27]
Lpc0:
    s_add_u32 s26, s26, Lcode_begin-Lpc0
    s_addc_u32 s27, s27, -1
    s_lshl_b32 s25, s16, 13
    v_lshlrev_b32 v13, 7, v0
    v_add_u32 v13, s25, v13
    v_min_u32 v13, Lcode_end-Lcode_begin-4, v13
    v_mov_b32 v15, s27
    v_add_co_u32 v14, vcc, s26, v13
    s_nop 1
    v_addc_co_u32 v15, vcc, 0, v15, vcc
    global_load_dword v210, v[14:15], off
    """)
    gen_init_misc(g, 144)
    A(f"""
    s_cmp_ge_u32 s17, {NREP}
    s_cbranch_scc1 Lx_2
    s_cmp_lg_u32 s16, 0
    s_cbranch_scc1 Lx_2
    s_lshl_b32 s27, s17, 2
    v_mov_b32 v11, s27
    v_mov_b32 v12, 1
    s_mov_b64 exec, 1
    s_waitcnt vmcnt(1)
    global_store_dword v11, v12, s[{pDBG}:{pDBG+1}] {SC}
    s_mov_b64 exec, -1
Lx_2:
    s_mov_b32 s95, 1
    s_lshr_b32 s17, s2, 3
    s_and_b32 s18, s2, 7
    s_lshl_b32 s19, s2, 1
    s_mov_b32 s96, 0
    s_mov_b32 s97, 0
    s_mov_b32 s99, 0
    s_branch Lb_setup
Lh_restart:
    s_sub_u32 s3, s3, 32
    s_sub_u32 s94, s94, 32
Lh_start:
    s_mov_b32 s95, 0
    s_lshr_b32 s17, s2, 3              ; tb
    s_and_b32 s18, s2, 7               ; cb
    s_lshl_b32 s19, s2, 1
    s_bfe_u32 s25, s2, 0x10003
    s_lshl_b32 s96, s25, 14
    s_add_u32 s97, s96, 65536          ; V blocks 0..2
    s_add_u32 s99, s96, {65536+6*9216}
Lb_setup:
    s_and_b32 s23, s16, 3              ; u
    v_and_b32 v{vT0}, 7, v0            ; cc
    v_lshrrev_b32 v{vT1}, 3, v0        ; tg
    s_lshl_b32 s21, s18, 9
    v_lshlrev_b32 v{vT3}, 6, v{vT0}
    """)
    g.srd(4, pSH, 576*8)
    for i in range(4): A(f"buffer_load_dwordx4 {V(CR+4*i,4)}, v{vT3}, s[4:7], s21 offen offset:{16*i}")
    A(f"""
    s_mul_i32 s20, s17, {64*1152}
    s_lshl_b32 s21, s18, 7
    s_add_u32 s20, s20, s21
    v_mul_u32_u24 v{vT2}, 1152, v{vT1}
    v_lshl_add_u32 v{vT2}, v{vT0}, 4, v{vT2}
    v_add_u32 v{vT2}, s20, v{vT2}
    v_add_u32 v{b5G}, {61*1152}, v{vT2}
    s_mul_i32 s20, s23, {8*1152}
    v_add_u32 v{bVG}, s20, v{vT2}
    v_subrev_u32 v{bKG}, {3*1152}, v{bVG}
    v_lshlrev_b32 v{vL16}, 4, v0
    s_add_u32 s28, s97, 9344
    s_lshr_b32 s25, s23, 1
    s_add_u32 s98, s19, s25            ; channel
    s_cmp_eq_u32 s25, 0
    s_cselect_b32 s96, s96, s28
    s_mul_i32 s25, s25, 4672
    s_add_u32 s97, s97, s25
    s_add_u32 s97, s97, 576
    s_lshl_b32 s25, s19, 1
    s_load_dword s100, s[{pD}:{pD+1}], s25
    s_cmp_eq_u32 s95, 1
    s_cbranch_scc1 Lb_load
Lb_setup2:
    v_lshlrev_b32 v{bRD}, 8, v{vT1}
    v_lshl_add_u32 v{bRD}, v{vT0}, 4, v{bRD}
    s_lshl_b32 s25, s23, 11
    s_add_u32 s25, s25, s99
    v_add_u32 v{bRD}, s25, v{bRD}
    v_lshrrev_b32 v{vT2}, 4, v0
    v_and_b32 v{vT3}, 15, v0
    v_lshlrev_b32 v{vT3}, 7, v{vT3}
    v_lshl_add_u32 v{bBW}, v{vT2}, 4, v{vT3}
    v_add_u32 v{bBW}, s25, v{bBW}
    v_add_u32 v{bBR}, s25, v{vL16}
    v_bfe_u32 v{vT3}, v0, 2, 2
    v_lshl_add_u32 v{bTR}, v{vT2}, 3, v{vT3}
    v_lshlrev_b32 v{bTR}, 7, v{bTR}
    v_and_b32 v{vT3}, 3, v0
    v_lshl_add_u32 v{bTR}, v{vT3}, 3, v{bTR}
    v_lshlrev_b32 v{bPG}, 8, v{vT3}
    v_add_u32 v{bPG}, {UC}, v{bPG}
    s_lshl_b32 s25, s23, 5
    s_add_u32 s25, s25, s99
    v_add_u32 v{bTR}, s25, v{bTR}
    v_lshlrev_b32 v{bUO}, 12, v{vT1}
    v_lshl_add_u32 v{bUO}, v{vT0}, 4, v{bUO}
    s_lshl_b32 s22, s18, 2
    s_add_u32 s22, s22, s23
    s_lshl_b32 s22, s22, 16
    s_lshl_b32 s25, s17, 7
    s_add_u32 s22, s22, s25
    s_add_u32 s22, s22, {UT}
    s_lshr_b32 s25, s18, 3
    s_lshl_b32 s25, s25, 12
    s_add_u32 s22, s22, s25
    v_add_u32 v{bUO}, s22, v{bUO}
    v_min_u32 v{bZP}, 35, v0
    v_lshlrev_b32 v{bZP}, 4, v{bZP}
    s_sub_u32 s25, s97, 576
    v_add_u32 v{bZP}, s25, v{bZP}
    s_waitcnt lgkmcnt(0)
    """)
    conv_setup(A, R)
    A("s_mov_b32 s29, 0xffff0000\ns_mov_b32 s28, 0xffff\ns_waitcnt vmcnt(0)")
    for c in range(8):
        for j in range(4):
            d, e, src = CM + 8*(c >> 1) + 2*j + (c & 1), c & 1, CR + 2*c + (j >> 1)
            if (j & 1) == e: A(f"v_and_b32 v{d}, {'s29' if e else 's28'}, v{src}")
            elif e: A(f"v_lshlrev_b32 v{d}, 16, v{src}")
            else: A(f"v_lshrrev_b32 v{d}, 16, v{src}")
    A(f"""
    s_cmp_eq_u32 s95, 0
    s_cbranch_scc1 Lh_kv
    s_barrier
    s_branch Lb_s0
Lh_kv:
    """)
    EARLY = opt('S1EARLY', 0)
    def kv_first():
        g.wait_words(SY, 9, T, sl=2)
        A(f"s_setprio {opt('CPRIO', 1)}")
        A("s_cmp_ge_u32 s2, 224\ns_cbranch_scc1 Lh_kx")
        dma_n(g, 5)
        A("s_waitcnt vmcnt(15)")
        g.gsync(1 + 10*(EARLY > 0), T)
        avail_add(g, 4)
        A("s_branch Lh_ky\nLh_kx:")
        dma_skip(A, 2)
        dma_n(g, 3)
        g.srd(4, pH, XB)
        A("s_waitcnt vmcnt(0)")
        g.gsync(2, T)
        A("s_cmp_lg_u32 s16, 4\ns_cbranch_scc1 Lc_k")
        g.wait_words(SY, 10, T, sl=4)
        avail_add(g, 6)
        A("s_branch Lc_k\nLh_ky:")
    head_params(A)
    dma_skip(A, 1)
    if not EARLY: kv_first()
    elif EARLY == 2:
        A("s_cmp_ge_u32 s2, 224\ns_cbranch_scc1 Lb_load")
        g.wait_words(SY, 5, T, sl=2)
    A(f"""
Lb_load:
    s_and_b32 s28, s16, 3
    s_lshl_b32 s25, s28, 10
    s_add_u32 s25, s25, s99
    """)
    g.srd(4, pK, XB)
    A(f"""
    s_mov_b32 m0, s25
    s_add_u32 s27, s25, 4096
    buffer_load_dwordx4 v{bKG}, s[4:7], 0 offen {NTB} lds
    s_mov_b32 m0, s27
    v_add_u32 v{bKG}, {32*1152}, v{bKG}
    s_add_u32 s27, s99, 8192
    buffer_load_dwordx4 v{bKG}, s[4:7], 0 offen {NTB} lds
    s_mov_b32 m0, s27
    s_add_u32 s27, s25, 9216
    buffer_load_dwordx4 v{b5G}, s[4:7], 0 offen lds
    s_mov_b32 s4, s{pV}
    s_mov_b32 s5, s{pV+1}
    s_mov_b32 m0, s27
    s_add_u32 s27, s27, 4096
    buffer_load_dwordx4 v{bVG}, s[4:7], 0 offen {NTB} lds
    s_mov_b32 m0, s27
    s_mov_b32 s27, {32*1152}
    buffer_load_dwordx4 v{bVG}, s[4:7], s27 offen {NTB} lds
    s_mov_b32 s4, s{pH}
    s_mov_b32 s5, s{pH+1}
    s_and_b32 s25, s28, 1
    s_lshl_b32 s25, s25, 11
    s_lshl_b32 s27, s98, 12
    s_add_u32 s27, s27, s25
    v_lshlrev_b32 v{T}, 3, v{vL16}
    s_mov_b64 exec, 0xffff
    buffer_load_dword v209, v{T}, s[4:7], s27 offen
    s_mov_b64 exec, -1
    s_cmp_eq_u32 s95, 1
    s_cbranch_scc1 Lb_setup2
    """)
    def kv_second(val):
        g.post(val, T)
        A("s_cmp_lg_u32 s16, 4\ns_cbranch_scc1 Lb_a6")
        g.wait_words("s94", val, T)
        avail_add(g, 6)
        A("Lb_a6:")
    if not EARLY:
        A("s_waitcnt vmcnt(6)")
        kv_second(2)
    A("s_waitcnt vmcnt(1)\nLb_s0:")
    g.gsync(3, T)
    g.stamp(1)
    for n in range(5): A(f"ds_read_b128 {V(KR+4*n,4)}, v{bRD} offset:{128*n}")
    for t in range(2): A(f"ds_read_b128 {V(VR+4*t,4)}, v{bRD} offset:{9216+128*t}")
    A("s_mov_b32 s29, 0xffff0000\ns_waitcnt lgkmcnt(2)")
    for j in range(4):
        for d in range(4):
            for t in range(2):
                for e in range(2):
                    u = UU + 4*d + 2*t + e
                    if j == 0: A(f"v_dot2_f32_bf16 v{u}, v{KR+4*(t+3)+d}, v{CM+8*d+e}, 0")
                    else: A(f"v_dot2c_f32_bf16 v{u}, v{KR+4*(t+3-j)+d}, v{CM+8*d+2*j+e}")
    A("s_waitcnt lgkmcnt(0)")
    for d in range(4):
        for t in range(2):
            x = UU + 16 + 4*d + 2*t
            A(f"v_lshlrev_b32 v{x}, 16, v{VR+4*t+d}\nv_and_b32 v{x+1}, s29, v{VR+4*t+d}")
    for i in range(8): A(f"v_pk_mul_f32 {V(UU+2*i,2)}, {V(UU+2*i,2)}, {V(UU+16+2*i,2)}")
    for d in range(4):
        for t in range(2): A(f"v_cvt_pk_bf16_f32 v{OUT+4*t+d}, v{UU+4*d+2*t}, v{UU+4*d+2*t+1}")
    A(f"""
    ds_write_b128 v{bRD}, {V(OUT,4)} offset:9216
    ds_write_b128 v{bRD}, {V(OUT+4,4)} offset:{9216+128}
    s_waitcnt lgkmcnt(0)
    """)
    g.gsync(4, T)
    for i in range(2):
        A(f"ds_read_b64_tr_b16 {V(OUT+4*i,2)}, v{bTR} offset:{9216+4096*i}")
        A(f"ds_read_b64_tr_b16 {V(OUT+4*i+2,2)}, v{bTR} offset:{9216+4096*i+512}")
    A(f"""
    s_mov_b32 s27, 32768
    s_waitcnt lgkmcnt(0)
    ds_write_b128 v{bBW}, {V(OUT,4)}
    ds_write_b128 v{bBW}, {V(OUT+4,4)} offset:64
    ds_read_b128 {V(OUT+8,4)}, v{bBR}
    ds_read_b128 {V(OUT+12,4)}, v{bBR} offset:1024
    s_waitcnt lgkmcnt(0)
    buffer_store_dwordx4 {V(OUT+8,4)}, v{bUO}, s[12:15], 0 offen {SC}
    buffer_store_dwordx4 {V(OUT+12,4)}, v{bUO}, s[12:15], s27 offen {SC}
    """)
    g.stamp(2)
    A("s_and_b32 s25, s16, 3\ns_cmp_lg_u32 s25, 0\ns_cbranch_scc1 Lb_nr" + ("" if EARLY else "\ns_cmp_eq_u32 s95, 0\ns_cbranch_scc1 Lb_nr"))
    g.ready(T)
    A("Lb_nr:\ns_waitcnt vmcnt(0)")
    g.stamp(3)
    g.gsync(5, T)
    A("s_cmp_lt_u32 s16, 4\ns_cbranch_scc1 Lc_m\ns_cmp_eq_u32 s95, 1\ns_cbranch_scc1 Lc_x\nLc_m:")
    A("s_and_b32 s25, s16, 3\ns_cmp_lg_u32 s25, 0\ns_cbranch_scc1 Lc_k0\ns_and_b32 s25, s2, 15\ns_add_u32 s25, s25, 64")
    g.signal("s25", T)
    A("s_cmp_lg_u32 s16, 0\ns_cbranch_scc1 Lc_k0")
    g.wait_words(SY+36, 1, T, n=1, sl=8)
    A("Lc_k0:\ns_cmp_lt_u32 s16, 4\ns_cbranch_scc1 Lattn\nLc_k:")
    if EARLY:
        kv_first()
        dma_n(g, 2)
        A("s_waitcnt vmcnt(10)")
        kv_second(12)
    else: dma_n(g, 2)
    A("s_waitcnt vmcnt(0)")
    g.post(6 + 10*(EARLY > 0), T)
    A(f"""
    s_lshr_b32 s25, s2, 3
    s_lshl_b32 s25, s25, 2
    s_add_u32 s25, s25, s20            ; 0..127
    s_mul_i32 s27, s25, {41*128}
    v_lshlrev_b32 v{T}, 7, v0
    v_add_u32 v{T+1}, s27, v{T}
    v_min_u32 v{T+1}, {WOB-4}, v{T+1}
    s_mov_b32 exec_hi, 0x1ff
    global_load_dword v210, v{T+1}, s[{pWO}:{pWO+1}]
    s_and_b32 s27, s2, 7
    s_mul_i32 s27, s27, {256*1152}
    s_mul_i32 s25, s25, {18*128}
    s_add_u32 s27, s27, s25
    v_add_u32 v{T+1}, s27, v{T}
    s_mov_b64 exec, 0x3ffff
    global_load_dword v211, v{T+1}, s[{pQ}:{pQ+1}]
    s_mov_b64 exec, -1
    """)
    A("s_cmp_lg_u32 s16, 4\ns_cbranch_scc1 Lc_w")
    g.wait_words("s94", 6 + 10*(EARLY > 0), T)
    avail_add(g, 4)
    g.poll(64, 16, 16, T, sl=opt('USLEEP', 8))
    wait_progress(g, 7, 4)
    A("s_branch Lc_pd\nLc_x:\ns_cmp_lg_u32 s16, 4\ns_cbranch_scc1 Lc_w\ns_and_b32 s25, s2, 3\ns_add_u32 s25, s25, 80")
    g.signal("s25", T)
    g.poll(80, 4, 8, T, sl=2)
    A(f"""
Lc_pd:
    s_sub_u32 s25, 2, s95
    v_mov_b32 v{T}, {SY+36}
    v_mov_b32 v{T+1}, s25
    ds_write_b32 v{T}, v{T+1}
Lc_w:
    s_sub_u32 s91, 2, s95
    """)
    g.wait_words(SY+36, "s91", T, n=1, sl=opt('WSL', 5))
    g.stamp(4)
    A(f"""
    s_and_b32 s28, s16, 1
    s_lshl_b32 s25, s28, 11
    s_add_u32 s27, s97, s25
    s_mov_b32 m0, s27
    s_lshl_b32 s27, s98, 12
    s_add_u32 s27, s27, s25
    buffer_load_dwordx4 v{vL16}, s[4:7], s27 offen lds
    buffer_load_dwordx4 v{vL16}, s[4:7], s27 offen offset:1024 lds
    ds_write_b128 v{bZP}, {V(R.acc,4)}
    s_mul_i32 s25, s28, {2*4160}
    s_add_u32 s25, s25, s96
    s_add_u32 s25, s25, 64
    s_lshl_b32 s27, s28, 2
    s_sub_u32 s27, s101, s27
    s_sub_u32 s27, s27, {YT-UT}
    s_lshr_b32 s29, s98, 9
    s_lshl_b32 s29, s29, 12
    s_add_u32 s27, s27, s29
    """)
    for c in range(2):
        A("s_mov_b32 m0, s25\ns_nop 0")
        for i in range(4): A(f"buffer_load_dwordx4 v{vL16}, s[12:15], s27 offen offset:{1024*i} lds {SC}")
        if c == 0: A("s_add_u32 s25, s25, 4160\ns_sub_u32 s27, s27, 2")
    A("s_waitcnt vmcnt(0) lgkmcnt(0)")
    g.gsync(17, T)
    A(f"s_setprio {opt('VPRIO', 0)}")
    g.stamp(5)
    A("s_cmp_eq_u32 s28, 0\ns_cbranch_scc0 Lc_set1")
    kconv.conv_main(A, R, "Lc_l0", 0)
    A("s_setprio 1")
    conv_epi(A, R, 0, "s96", "s100", "s101", "s[12:15]", SC)
    A("s_branch Lc_done\nLc_set1:")
    kconv.conv_main(A, R, "Lc_l1", 1)
    A("s_setprio 1")
    conv_epi(A, R, 1, "s96", "s100", "s101", "s[12:15]", SC)
    A("Lc_done:\ns_waitcnt vmcnt(0)")
    g.stamp(6)
    g.gsync(18, T)
    A("s_and_b32 s25, s16, 3\ns_cmp_lg_u32 s25, 0\ns_cbranch_scc1 Lc_e\ns_and_b32 s25, s2, 15\ns_add_u32 s25, s25, 16")
    g.signal("s25", T)
    A("Lc_e:\ns_cmp_eq_u32 s95, 0\ns_cbranch_scc1 Lh_p3\ns_branch Lh_restart")

def conv_epi(A, R, st, s_slot, s_D, s_out, srd, flags=""):
    S_ = kconv.SETS[st]
    A(f"v_add_u32 v{R.t0}, {s_slot}, v{R.aU}")
    for ti, tau in enumerate(S_): A(f"ds_read_b64 {V(R.A[0]+2*ti,2)}, v{R.t0} offset:{64+512*tau}")
    A("s_waitcnt lgkmcnt(0)")
    for ti in range(4):
        for e in range(4): A(f"v_dot2c_f32_bf16 v{R.acc+4*ti+e}, v{R.A[0]+2*ti+(e >> 1)}, v{194+(e & 1)}")
    A("s_nop 1")
    for ti, tau in enumerate(S_):
        t = R.B[0]+2*ti; ac = R.acc+4*ti
        A(f"""
        v_cvt_pk_bf16_f32 v{t}, v{ac}, v{ac+1}
        v_cvt_pk_bf16_f32 v{t+1}, v{ac+2}, v{ac+3}
        buffer_store_dwordx2 {V(t,2)}, v{R.aU}, {srd}, {s_out} offen offset:{512*tau} {flags}
        """)

def conv_setup(A, R):
    A(f"""
    v_bfe_u32 v{R.t0}, v0, 2, 2
    v_mul_u32_u24 v{R.aA}, 4160, v{R.t0}
    v_and_b32 v{R.t0}, 3, v0
    v_lshl_add_u32 v{R.aA}, v{R.t0}, 3, v{R.aA}
    v_lshrrev_b32 v{R.t0}, 4, v0
    v_lshlrev_b32 v{R.aB}, 4, v{R.t0}
    v_sub_u32 v{R.aA}, v{R.aA}, v{R.aB}
    s_add_u32 s25, s96, {64+32-8}
    v_add_u32 v{R.aA}, s25, v{R.aA}
    v_and_b32 v{R.aU}, 15, v0
    v_lshlrev_b32 v{R.aU}, 5, v{R.aU}
    v_add_u32 v{R.aB}, v{R.aB}, v{R.aU}
    s_sub_u32 s25, s97, 96
    v_add_u32 v{R.aB}, s25, v{R.aB}
    v_lshl_add_u32 v{R.aU}, v{R.t0}, 3, v{R.aU}
    v_and_b32 v{R.mask}, 15, v0
    v_lshlrev_b32 v{R.t0}, 3, v{R.t0}
    v_sub_u32 v{R.t0}, v{R.mask}, v{R.t0}
    v_add_u32 v{R.t0}, 17, v{R.t0}
    v_mov_b32 v{R.acc}, 0xffff
    v_mov_b32 v{R.acc+1}, 0xffff0000
    """)
    for d in range(4):
        A(f"""
        v_cmp_lt_i32 vcc, {2*d}, v{R.t0}
        v_cmp_lt_i32 s[26:27], {2*d+1}, v{R.t0}
        s_nop 0
        v_cndmask_b32 v{R.mask+d}, 0, v{R.acc}, vcc
        v_cndmask_b32 v{R.acc+2}, 0, v{R.acc+1}, s[26:27]
        v_or_b32 v{R.mask+d}, v{R.mask+d}, v{R.acc+2}
        """)
    for i in range(16): A(f"v_mov_b32 v{R.acc+i}, 0")
    A(f"""
    s_lshl_b32 s101, s98, 12
    s_add_u32 s101, s101, {YT}
    s_lshl_b32 s25, s100, 16
    s_and_b32 s27, s100, 0xffff0000
    s_bitcmp0_b32 s98, 0
    s_cselect_b32 s100, s25, s27
    s_lshr_b32 s25, s100, 16
    v_mov_b32 v194, s25
    v_mov_b32 v195, s100
    """)

def zero_acc(A):
    for i in range(16): A(f"v_mov_b32 v{OA+i}, 0")
    for i in range(16): A(f"v_mov_b32 v{OB+i}, 0")
    for i in range(8): A(f"v_mov_b32 v{PB+i}, 0")
    for i in range(8): A(f"v_mov_b32 v{VB[1]+i}, 0")

def gen_attn(g):
    A = g.A
    A("Lattn:\ns_setprio 2")
    head_params(A)
    A(f"""
    v_lshlrev_b32 v{vL8}, 3, v0
    s_lshl_b32 s31, s18, 3
    s_lshl_b32 s32, s20, 1
    s_add_u32 s32, s31, s32
    s_mul_i32 s34, s21, {MB}
    s_add_u32 s34, s34, s39
    s_lshl_b32 s35, s32, 10
    s_add_u32 s35, s35, s34
    s_add_u32 s34, s39, {LEFT}
    s_lshl_b32 s37, s32, 8
    s_add_u32 s37, s37, s34
    v_and_b32 v{aT1}, 31, v0
    v_lshrrev_b32 v{aT0}, 5, v0
    v_mul_u32_u24 v{aT3}, 288, v{aT0}
    v_lshl_add_u32 v{aT2}, v{aT1}, 4, v{aT3}
    v_add_u32 v{vV0}, s23, v{aT2}
    v_mov_b32 v{vVinc}, {4*VT}
    v_mov_b32 v{aT2}, {CONST+240}
    v_mov_b32 v{aT3}, {CONST+224}
    v_cmp_eq_u32 vcc, 18, v{aT1}
    v_subrev_u32 v{aT0}, 20, v{aT1}
    v_cmp_gt_u32 s[52:53], 8, v{aT0}
    v_cndmask_b32 v{aT2}, v{aT2}, v{aT3}, vcc
    v_mov_b32 v{aT3}, {CONST+176}
    v_cmp_lt_u32 vcc, 17, v{aT1}
    v_cndmask_b32 v{aT2}, v{aT2}, v{aT3}, s[52:53]
    s_mov_b32 s50, 0
    v_cndmask_b32 v{vV0}, v{vV0}, v{aT2}, vcc
    v_cndmask_b32 v{vVinc}, v{vVinc}, 0, vcc
    v_cmp_gt_u32 vcc, 32, v0
    s_cmp_eq_u32 s21, 0
    s_cselect_b64 s[52:53], -1, 0
    s_cselect_b64 s[54:55], 0, -1
    s_and_b64 s[56:57], s[52:53], vcc
    s_and_b64 s[58:59], s[54:55], vcc
    s_andn2_b64 s[60:61], s[52:53], vcc
    s_andn2_b64 s[62:63], s[54:55], vcc
    v_lshlrev_b32 v{aT2}, 3, v{aT1}
    v_add_u32 v{vKM0}, s22, v{vL8}
    v_add_u32 v{vKL0}, s24, v{vL8}
    s_lshl_b32 s25, s20, 8
    s_add_u32 s25, s25, {UC}
    v_lshlrev_b32 v{vCA}, 2, v0
    v_add_u32 v{vCA}, s25, v{vCA}
    v_mov_b32 v{vOne}, 2
    s_mul_i32 s25, s32, {36*1024}
    s_add_u32 s25, s25, {OF}
    s_lshl_b32 s48, s17, 10
    s_add_u32 s48, s48, s25
    s_lshl_b32 s49, s17, 7
    s_add_u32 s49, s49, s25
    s_add_u32 s49, s49, 32768
    """)
    zero_acc(A)
    A("s_cmp_lg_u32 s16, 0\ns_cbranch_scc1 La_w")
    if opt('NEED', 1):
        A(f"""
        s_mul_i32 s25, s26, 36
        s_mov_b64 s[28:29], 0
        s_lshr_b32 s27, s25, 7
        s_bitset1_b32 s28, s27
        s_add_u32 s27, s25, 35
        s_lshr_b32 s27, s27, 7
        s_bitset1_b32 s28, s27
        s_add_u32 s27, s25, 576
        s_lshr_b32 s27, s27, 7
        s_bitset1_b32 s28, s27
        s_add_u32 s27, s25, 611
        s_lshr_b32 s27, s27, 7
        s_bitset1_b32 s28, s27
        s_add_u32 s27, s25, 1152
        s_lshr_b32 s27, s27, 7
        s_bitset1_b32 s28, s27
        s_add_u32 s27, s25, 1187
        s_lshr_b32 s27, s27, 7
        s_bitset1_b32 s28, s27
        """)
    if opt('HIER', 0): g.poll(GOFF//4, 14, 16, 204, sl=opt('P1SL', 1), mask="s[28:29]", sh=2)
    else: g.poll(0, 14, 16, 204, mask="s[28:29]")
    A(f"""
    v_mov_b32 v{TMP}, {SY+32}
    v_mov_b32 v{TMP+1}, 1
    ds_write_b32 v{TMP}, v{TMP+1}
La_w:
    """)
    g.wait_words(SY+32, 1, TMP, n=1)
    g.stamp(7)
    dma_iter(A)
    A(f"""
    buffer_load_dwordx2 {V(Q1A,2)}, v{vL8}, s[12:15], s35 offen {SC}
    buffer_load_dwordx2 {V(Q1A+2,2)}, v{vL8}, s[12:15], s35 offen offset:512 {SC}
    buffer_load_dwordx2 {V(Q1B,2)}, v{vL8}, s[12:15], s35 offen offset:1024 {SC}
    buffer_load_dwordx2 {V(Q1B+2,2)}, v{vL8}, s[12:15], s35 offen offset:1536 {SC}
    buffer_load_dwordx2 {V(Q2A,2)}, v{aT2}, s[12:15], s37 offen {SC}
    buffer_load_dwordx2 {V(Q2B,2)}, v{aT2}, s[12:15], s37 offen offset:256 {SC}
    s_cmp_lt_u32 s2, 224
    s_cbranch_scc1 La_n12
    """)
    dma_n(g, 2)
    A(f"""
    s_mov_b32 s30, 1
    s_waitcnt vmcnt(10)
    s_branch La_n13
La_n12:
    s_mov_b32 s30, 0
    s_waitcnt vmcnt(0)
La_n13:
    """)
    g.post(9, TMP)
    for Q in (Q2A, Q2B):
        A(f"""
        v_cndmask_b32 v{Q+2}, 0, v{Q}, s[60:61]
        v_cndmask_b32 v{Q+3}, 0, v{Q+1}, s[62:63]
        v_cndmask_b32 v{Q}, 0, v{Q}, s[56:57]
        v_cndmask_b32 v{Q+1}, 0, v{Q+1}, s[58:59]
        """)
    g.wait_words(SY, 9, TMP)
    g.stamp(8)
    A(f"""
    ds_read2st64_b64 {V(KB[0],4)}, v{vKM0} offset0:0 offset1:1
    ds_read2st64_b64 {V(KL,4)}, v{vKL0} offset0:0 offset1:1
    s_waitcnt lgkmcnt(0)
    {m16(SA, KB[0], Q1A, 0)}
    {m16(SB, KB[0], Q1B, 0)}
    {m8(SA, KL, Q2A)}
    {m8(SB, KL, Q2B)}
    s_nop 10
    """)
    maxtree(A, aT0, SA)
    maxtree(A, aT1, SB)
    A(f"""
La_setm:
    v_mov_b32 v{aT2}, v{aT0}
    v_mov_b32 v{aT3}, v{aT1}
    v_mov_b32 v{vKM}, v{vKM0}
    v_mov_b32 v{vKL}, v{vKL0}
    v_permlane32_swap_b32 v{aT0}, v{aT2}
    v_permlane32_swap_b32 v{aT1}, v{aT3}
    v_mov_b32 v{vV}, v{vV0}
    ds_read_b128 {V(VB[0],4)}, v{vV0}
    ds_read_b128 {V(VB[0]+4,4)}, v{vV0} offset:576
    v_max_f32 v{aT0}, v{aT0}, v{aT2}
    v_max_f32 v{aT1}, v{aT1}, v{aT3}
    """)
    for i in range(16): A(f"v_sub_f32 v{NMA+i}, 0, v{aT0}")
    A(f"""
    v_sub_f32 v{NMB}, 0, v{aT1}
    s_mov_b32 s51, 0
    {m16(SA, KB[0], Q1A, V(NMA,16))}
    {m8(SA, KL, Q2A)}
    """)
    for i in range(1, 16): A(f"v_sub_f32 v{NMB+i}, 0, v{aT1}")
    A("s_setprio 0")
    g.stamp(9)
    if g.dbg and 'its' in EXP: A("s_mov_b32 s55, 0\nv_mov_b32 v214, 0\nv_writelane_b32 v214, s88, 0\nv_writelane_b32 v214, s90, 32")
    A(".p2align 6\nLa_loop:")
    KLB = [KL, KL2]
    for J in range(8):
        j = J & 3; hb = J >> 2
        b = j & 1; nb = b ^ 1
        koff = 2*(J+1)
        ex = [[f"ds_read2st64_b64 {V(KB[nb],4)}, v{vKM} offset0:{koff} offset1:{koff+1}"], [], [], ["s_waitcnt lgkmcnt(0)"]]
        if J == 0: ex[2] = ["s_min_u32 s53, s51, 12"]
        if J == 1: ex[0].append(f"ds_add_rtn_u32 v{vCR}, v{vCA}, v{vOne}")
        if J == 2: ex[2] = ["s_lshr_b32 s52, s52, 8"]
        if j == 3:
            ex[0].append(f"ds_read2st64_b64 {V(KLB[hb ^ 1],4)}, v{vKL} offset0:{2*hb+2} offset1:{2*hb+3}")
            ex[1] = [f"v_add_u32 v{vV}, v{vVinc}, v{vV}"]
        if J == 7: ex[2] = ["s_cmp_lt_u32 s51, 16"]
        klp = KLB[hb] + 2*(j >> 1)
        phase(A, SA, PA, [m16(SB, KB[b], Q1B, V(NMB,16)), m8(SB, klp, Q2B + 2*(j & 1)),
                          m16(OB, VB[nb], PB, V(OB,16)), m16(OB, VB[nb]+4, PB+4, V(OB,16))], ex)
        jn = (j+1) & 3; hn = ((J+1) & 7) >> 2
        klp = KLB[hn] + 2*(jn >> 1)
        ex = [[], [], [f"ds_read_b128 {V(VB[nb],4)}, v{vV} offset:{jn*VT}"], [f"ds_read_b128 {V(VB[nb]+4,4)}, v{vV} offset:{jn*VT+576}"]]
        if J == 0: ex[0] = ["s_add_u32 s51, s51, 2"]
        if J == 1: ex[1] = [f"v_readfirstlane_b32 s52, v{vCR}"]
        if J == 6:
            ex[0] = ["s_cmp_ge_u32 s53, s52"]
            ex[3] += ["s_cbranch_scc1 La_chk", "La_chkd:"]
        if J == 7:
            ex[1] = [f"v_add_u32 v{vKM}, 8192, v{vKM}", f"v_add_u32 v{vKL}, 2048, v{vKL}"]
        phase(A, SB, PB, [m16(SA, KB[nb], Q1A, V(NMA,16)), m8(SA, klp, Q2A + 2*(jn & 1)),
                          m16(OA, VB[b], PA, V(OA,16)), m16(OA, VB[b]+4, PA+4, V(OA,16))], ex)
    if g.dbg and 'its' in EXP:
        A(f"""
        s_memrealtime s[88:89]
        s_memtime s[90:91]
        s_mov_b32 m0, s51
        s_waitcnt lgkmcnt(0)
        v_writelane_b32 v214, s88, m0
        s_add_u32 m0, s51, 32
        s_nop 0
        v_writelane_b32 v214, s90, m0
        s_cmp_lt_u32 s51, 16
        """)
    A("s_cbranch_scc1 La_loop")
    A(f"""
    s_setprio 2
    {m16(OB, VB[1], PB, V(OB,16))}
    {m16(OB, VB[1]+4, PB+4, V(OB,16))}
    """)
    g.stamp(10)
    A(f"v_lshlrev_b32 v{aT2}, 2, v0\nv_mov_b32 v{aT3}, 0")
    for n, (O, P) in enumerate(((OA, PA), (OB, PB))):
        A(f"""
        v_mov_b32 v{aT0}, v{O+10}
        v_mov_b32 v{aT1}, v{O+10}
        """)
        for i in range(11): A(f"v_add_f32 v{aT3}, |v{O+i}|, v{aT3}")
        A(f"""
        v_permlane32_swap_b32 v{aT0}, v{aT1}
        s_nop 1
        v_rcp_f32 v{aT0}, v{aT0}
        s_add_u32 s25, s48, {n*36*1024}
        s_add_u32 s27, s49, {n*36*1024}
        """)
        for i in range(10): A(f"v_mul_f32 v{O+i}, v{O+i}, v{aT0}")
        for i in range(5): A(f"v_cvt_pk_bf16_f32 v{P+i}, v{O+2*i}, v{O+2*i+1}")
        A(f"""
        buffer_store_dwordx4 {V(P,4)}, v{vL16}, s[12:15], s25 offen {SC}
        s_mov_b32 exec_hi, 0
        buffer_store_dword v{P+4}, v{aT2}, s[12:15], s27 offen {SC}
        s_mov_b32 exec_hi, -1
        """)
    A(f"""
    v_mov_b32 v{aT1}, 0x71800000
    v_cmp_nlt_f32 vcc, v{aT3}, v{aT1}
    v_mov_b32 v{aT3}, {FLAG}
    v_mov_b32 v{aT2}, 1
    s_cmp_lg_u32 s50, 0
    s_cbranch_scc1 Lp3
    s_cbranch_vccz Lp3
    ds_write_b32 v{aT3}, v{aT2}
    s_branch Lp3
La_chk:
    s_cmp_eq_u32 s30, 0
    s_cbranch_scc1 La_chk0
    s_mov_b32 s30, 0
    s_waitcnt vmcnt(0)
    """)
    g.gsync(10, TMP)
    A(f"""
    v_mov_b32 v{TMP}, {4 << 8}
    ds_add_u32 v{vCA}, v{TMP}
La_chk0:
    s_mov_b32 s93, {SPIN}
La_chk1:
    ds_read_b32 v{vCR}, v{vCA}
    s_waitcnt lgkmcnt(0)
    v_readfirstlane_b32 s52, v{vCR}
    s_lshr_b32 s52, s52, 8
    s_cmp_lt_u32 s53, s52
    s_cbranch_scc1 La_chkd
    s_sleep 1
    s_sub_u32 s93, s93, 1
    s_cmp_lg_u32 s93, 0
    s_cbranch_scc1 La_chk1
    s_branch La_chkd
La_slow:
    s_mov_b32 s50, 1
    s_barrier
    v_mov_b32 v{aT0}, {14 << 8}
    ds_write_b32 v{vCA}, v{aT0}
    v_mov_b32 v{aT3}, {FLAG}
    v_mov_b32 v{aT2}, 0
    ds_write_b32 v{aT3}, v{aT2}
    v_mov_b32 v{vKM}, v{vKM0}
    v_mov_b32 v{vKL}, v{vKL0}
    v_mov_b32 v{aT0}, 0xff800000
    v_mov_b32 v{aT1}, 0xff800000
    s_mov_b32 s51, 16
    s_waitcnt lgkmcnt(0)
    s_barrier
La_maxloop:
    ds_read2st64_b64 {V(KL,4)}, v{vKL} offset0:0 offset1:1
    """)
    for j in range(4):
        A(f"""
        ds_read2st64_b64 {V(KB[0],4)}, v{vKM} offset0:{2*j} offset1:{2*j+1}
        s_waitcnt lgkmcnt(0)
        {m16(SA, KB[0], Q1A, 0)}
        {m16(SB, KB[0], Q1B, 0)}
        {m8(SA, KL+2*(j>>1), Q2A+2*(j&1))}
        {m8(SB, KL+2*(j>>1), Q2B+2*(j&1))}
        s_nop 11
        """)
        maxtree(A, aT0, SA, True)
        maxtree(A, aT1, SB, True)
    A(f"""
    v_add_u32 v{vKM}, 4096, v{vKM}
    v_add_u32 v{vKL}, 1024, v{vKL}
    s_sub_u32 s51, s51, 1
    s_cmp_lg_u32 s51, 0
    s_cbranch_scc1 La_maxloop
    ds_read2st64_b64 {V(KB[0],4)}, v{vKM0} offset0:0 offset1:1
    ds_read2st64_b64 {V(KL,4)}, v{vKL0} offset0:0 offset1:1
    """)
    zero_acc(A)
    A("s_waitcnt lgkmcnt(0)\ns_branch La_setm")

def gen_p3(g):
    A = g.A
    BW, ACC_, AF = 40, 184, 16
    wA = 196
    A(f"""
Lh_slow:
    s_barrier
    """)
    dma_skip(A, -8)
    dma_n(g, 8)
    A(f"""
    s_waitcnt vmcnt(0)
    s_barrier
Lh_p3:
    s_and_b32 s19, s2, 7
    s_lshr_b32 s33, s2, 3
    v_lshlrev_b32 v{TMP}, 7, v0
    s_cmp_ge_u32 s33, 24
    s_cbranch_scc0 Lh_wo
    s_branch Lp3
Lh_wo:
    """)
    g.srd(4, pWO, WOB)

    for i in range(3):
        A(f"""
        v_add_u32 v1, {64*i}, v0
        v_mul_u32_u24 v2, 5462, v1
        v_lshrrev_b32 v2, 16, v2
        v_mul_u32_u24 v3, 12, v2
        v_sub_u32 v1, v1, v3
        v_mul_u32_u24 v2, 1152, v2
        v_lshl_add_u32 v{wA+i}, v1, 4, v2
        """)
    A(f"""
    v_subrev_u32 v{wA+1}, 1024, v{wA+1}
    v_subrev_u32 v{wA+2}, 2048, v{wA+2}
    s_lshr_b32 s25, s33, 2
    s_mul_i32 s28, s25, 192
    s_mul_i32 s25, s20, {16*1152}
    s_add_u32 s28, s28, s25
    """)
    for half, (n, base) in enumerate(((13, "s23"), (15, "s22"))):
        wait_progress(g, n, 6)
        A(f"""
        s_add_u32 s27, s28, {half*288*1152}
        s_mul_i32 s25, s20, 3072
        s_add_u32 s25, s25, {base}
        s_mov_b32 s31, s20
Lo_wo{half}:
        s_mov_b32 m0, s25
        s_add_u32 s31, s31, 4
        buffer_load_dwordx4 v{wA}, s[4:7], s27 offen lds
        buffer_load_dwordx4 v{wA+1}, s[4:7], s27 offen offset:1024 lds
        buffer_load_dwordx4 v{wA+2}, s[4:7], s27 offen offset:2048 lds
        s_add_u32 s27, s27, {4*16*1152}
        s_add_u32 s25, s25, {4*3072}
        s_cmp_lt_u32 s31, 18
        s_cbranch_scc1 Lo_wo{half}
        """)
    A(f"""
Lp3:
    v_mov_b32 v{TMP+1}, {FLAG}
    s_lshl_b32 s30, s18, 2
    s_lshr_b32 s25, s17, 3
    s_add_u32 s30, s30, s25
    s_add_u32 s30, s30, 32
    s_waitcnt vmcnt(0) lgkmcnt(0)
    s_barrier
    ds_read_b32 v{TMP}, v{TMP+1}
    s_and_b32 s19, s2, 7
    s_lshr_b32 s33, s2, 3
    s_waitcnt lgkmcnt(0)
    v_readfirstlane_b32 s25, v{TMP}
    s_cmp_eq_u32 s25, 0
    s_cbranch_scc1 Lp3_ok
    s_cmp_lt_u32 s16, 4
    s_cbranch_scc1 La_slow
    s_branch Lh_slow
Lp3_ok:
    """)
    g.stamp(11)
    A("s_cmp_lg_u32 s16, 7\ns_cbranch_scc1 Lp3_1")
    A("s_lshl_b64 s[28:29], 1, s18")
    g.signal("s30", 14, mask="s[28:29]" if opt('PMASK', 1) else None)
    A(f"""
Lp3_1:
    s_cmp_ge_u32 s33, 24
    s_cbranch_scc1 Lp3_s3
    s_and_b32 s17, s33, 3
    s_lshl_b32 s19, s19, 2
    s_add_u32 s17, s17, s19            ; tb
    s_lshr_b32 s18, s33, 2             ; ng
    s_mov_b32 s28, s23
    s_mov_b32 s29, s22
    s_and_b32 s23, s16, 1
    s_lshr_b32 s24, s16, 1
    v_lshlrev_b32 v12, 4, v0
    s_cmp_ge_u32 s16, 6
    s_cbranch_scc1 Lo_nopre
    v_lshrrev_b32 v1, 5, v0
    v_bfe_u32 v2, v0, 2, 2
    v_bfe_u32 v3, v0, 4, 1
    v_lshlrev_b32 v3, 5, v3
    v_and_b32 v7, 3, v0
    v_lshl_add_u32 v3, v7, 3, v3
    s_lshl_b32 s25, s24, 6
    v_add_u32 v3, s25, v3
    v_lshl_add_u32 v7, v1, 2, v2
    v_mul_u32_u24 v7, 192, v7
    v_add3_u32 v8, v7, v3, s28
    v_add3_u32 v9, v7, v3, s29
    v_mul_u32_u24 v7, 72, v1
    v_lshrrev_b32 v10, 1, v2
    v_mul_u32_u24 v10, 18, v10
    v_add_u32 v7, v7, v10
    v_and_b32 v10, 1, v2
    v_add3_u32 v7, v7, v10, 16
    v_mul_u32_u24 v7, 192, v7
    v_add3_u32 v10, v7, v3, s28
    v_add3_u32 v11, v7, v3, s29
    """)
    for s_ in range(36):
        for e in range(2):
            if s_ < 32: base, off = (8, (18*s_ + 8*e)*192) if s_ < 16 else (9, (18*(s_-16) + 8*e)*192)
            else: base, off = (10 + ((s_-32) >> 1), (144*((s_-32) & 1) + 36*e)*192)
            A(f"ds_read_b64_tr_b16 {V(BW+4*s_+2*e,2)}, v{base} offset:{off}")
        if s_ % 6 == 5: A("s_waitcnt lgkmcnt(4)")
    A("Lo_nopre:")
    g.srd(44, pOUT, OUTB)
    for i in range(16): A(f"v_mov_b32 v{ACC_+i}, 0")
    TR = 81920
    A(f"""
    s_mul_i32 s20, s17, {2*36*1024}
    s_add_u32 s20, s20, {OF}
    s_mul_i32 s21, s23, {36*1024}
    s_add_u32 s20, s20, s21
    s_lshl_b32 s21, s24, 10
    s_add_u32 s20, s20, s21
    s_lshl_b32 s21, s23, 10
    v_add_u32 v13, s21, v12
    v_and_b32 v1, 31, v0
    v_lshlrev_b32 v1, 2, v1
    v_lshrrev_b32 v2, 5, v0
    v_lshl_add_u32 v1, v2, 9, v1
    s_add_u32 s21, s21, 65536
    v_add_u32 v201, s21, v1
    v_add_u32 v202, 2048, v201
    v_add_u32 v203, 4096, v201
    v_add_u32 v204, 6144, v201
    v_and_b32 v1, 31, v0
    s_lshl_b32 s21, s23, 5
    v_add_u32 v1, s21, v1
    v_mul_u32_u24 v1, 208, v1
    v_lshl_add_u32 v1, v2, 3, v1
    s_lshl_b32 s21, s24, 6
    s_add_u32 s21, s21, {TR}
    v_add_u32 v200, s21, v1
    s_mul_i32 s26, s17, {64*2304}
    s_mul_i32 s22, s18, 192
    s_add_u32 s26, s26, s22
    s_lshl_b32 s22, s16, 7
    """)
    for i in range(2):
        A(f"""
        v_add_u32 v1, s22, v0
        v_add_u32 v1, {64*i}, v1
        v_mul_u32_u24 v2, 5462, v1
        v_lshrrev_b32 v2, 16, v2
        v_mul_u32_u24 v3, 12, v2
        v_sub_u32 v1, v1, v3
        v_lshlrev_b32 v1, 4, v1
        v_mul_u32_u24 v3, 208, v2
        v_add_u32 v{4+i}, v3, v1
        v_add_u32 v{4+i}, {TR}, v{4+i}
        v_mul_u32_u24 v3, 2304, v2
        v_add_u32 v{6+i}, v3, v1
        """)
    A("s_lshl_b32 s21, s16, 10\ns_waitcnt lgkmcnt(0)")
    g.stamp(12)
    A("s_cmp_lg_u32 s16, 7\ns_cbranch_scc1 Lp3_h\ns_add_u32 s25, s19, 32")
    g.poll("s25", 4, 8, 208, fast=opt('FASTP', 0))
    A("Lp3_h:\ns_barrier")
    g.stamp(13)
    for rr in range(9):
        A(f"""
        s_mov_b32 m0, s21
        s_add_u32 s21, s21, 8192
        buffer_load_dwordx4 v12, s[12:15], s20 offen lds {SC}
        s_add_u32 s20, s20, 4096
        """)
    AFB = [16, 216]
    def rd(s_, reg):
        off = 2048*s_ - (49152 if s_ >= 24 else 0)
        if s_ < 32: return [f"ds_read_b128 {V(reg,4)}, v{13 if s_ < 24 else 14} offset:{off}"]
        return [f"ds_read2_b32 {V(reg,2)}, v{201+s_-32} offset0:0 offset1:32", f"ds_read2_b32 {V(reg+2,2)}, v{201+s_-32} offset0:64 offset1:96"]
    A("v_add_u32 v14, 49152, v13")
    A("s_waitcnt vmcnt(6)\ns_barrier\ns_cmp_ge_u32 s16, 6\ns_cbranch_scc1 Lo_idle")
    for i in range(6):
        for r in rd(i, AFB[0]+4*i): A(r)
    for grp in range(6):
        nxt = grp + 1
        if nxt < 6 and nxt % 2 == 0: A(f"s_waitcnt vmcnt({6-3*(nxt//2)})\ns_barrier")
        for i in range(6):
            s_ = 6*grp + i
            n_rest = sum(len(rd(x, 0)) for x in range(s_+1, 6*grp+6))
            n_next = sum(len(rd(6*nxt+x, 0)) for x in range(i)) if nxt < 6 else 0
            A(f"s_waitcnt lgkmcnt({min(15, n_rest + n_next)})")
            A(f"v_mfma_f32_32x32x16_bf16 {V(ACC_,16)}, {V(BW+4*s_,4)}, {V(AFB[grp & 1]+4*i,4)}, {V(ACC_,16)}")
            if nxt < 6:
                for r in rd(6*nxt+i, AFB[nxt & 1]+4*i): A(r)
    g.stamp(14)
    A("s_nop 11")
    for q in range(4):
        A(f"""
        v_cvt_pk_bf16_f32 v{AF+2*q}, v{ACC_+4*q}, v{ACC_+4*q+1}
        v_cvt_pk_bf16_f32 v{AF+2*q+1}, v{ACC_+4*q+2}, v{ACC_+4*q+3}
        ds_write_b64 v200, {V(AF+2*q,2)} offset:{16*q}
        """)
    A(f"""
    s_waitcnt lgkmcnt(0)
    s_barrier
    ds_read_b128 {V(AF,4)}, v4
    ds_read_b128 {V(AF+4,4)}, v5
    s_waitcnt lgkmcnt(1)
    buffer_store_dwordx4 {V(AF,4)}, v6, s[44:47], s26 offen {SC}
    s_waitcnt lgkmcnt(0)
    buffer_store_dwordx4 {V(AF+4,4)}, v7, s[44:47], s26 offen {SC}
    s_branch Lfin
Lo_idle:
    s_waitcnt vmcnt(3)
    s_barrier
    s_waitcnt vmcnt(0)
    s_barrier
    s_branch Lfin
Lp3_s3:
    s_sub_u32 s20, s33, 24
    s_lshl_b32 s17, s19, 3
    s_add_u32 s17, s17, s20
    s_mov_b64 s[6:7], s[{pOUT}:{pOUT+1}]
    s_mov_b64 s[48:49], s[{pWS}:{pWS+1}]
    s_mov_b64 s[50:51], s[{pQ}:{pQ+1}]
    """)
    g.poll(16, 16, 18, 16)
    k3.gen_stage3(A, "Ls3", False, SC)
    A("Lfin:")
    g.end()

def gen(name, dbg=False):
    g = G(dbg); A = g.A
    A("Lcode_begin:")
    A(f"""
    s_cmp_ge_u32 s2, 256
    s_cbranch_scc1 Lend
    s_load_dwordx16 s[64:79], s[0:1], 0
    s_load_dwordx8 s[80:87], s[0:1], 64
    v_lshrrev_b32 v1, 6, v0
    v_and_b32 v0, 63, v0
    v_readfirstlane_b32 s16, v1
    """)
    if dbg: A(f"v_mov_b32 v{vST}, 0")
    g.stamp(0)
    A(f"""
    s_lshl_b32 s3, s16, 2
    s_add_u32 s3, s3, {SY}
    s_and_b32 s94, s3, {0xffffffff & ~15}
    s_cmp_ge_u32 s2, 224
    s_cbranch_scc1 Ls1
    """)
    gen_gemm(g)
    A("Ls1:")
    gen_stage1(g)
    gen_attn(g)
    gen_p3(g)
    A("Lend:\ns_endpgm\nLcode_end:")
    return A.text()

DOC = """; ---------------------------------------------------------------------------------------------------
;  launch zeroes itself (ready words in d_debug); consumers poll with sc1 loads and read the data with sc1 loads,
; ---------------------------------------------------------------------------------------------------
"""
if __name__ == "__main__":
    import sys
    out = sys.argv[1]; dbg = len(sys.argv) > 2 and sys.argv[2] == "dbg"
    name = "concat_heads__softmax_full_mha__ssm_conv_h3__prompt_kernel"
    HDR = open("concat_heads__softmax_full_mha__ssm_conv_h3__prompt.s.ref").read().split("; Override launch")[0]
    s = HDR
    if (dbg and not os.environ.get('DD') and not os.environ.get('AMP')) or 'list' in EXP: s += f"; @launch kernel={name} grid=(256,1,1) block=(512,1,1) lds={LDS_BYTES}\n"
    else: s += f"; @launch grid=(256,1,1) block=(512,1,1) lds={LDS_BYTES}\n"
    s += DOC
    s += '.amdgcn_target "amdgcn-amd-amdhsa--gfx950"\n.text\n' + kernel_head(name) + gen(name, dbg)
    s += '.section .rodata,"a"\n' + kernel_desc(name, NVGPR, 102)
    open(out, "w").write(s)
```

```python
import os, struct, math
from asmlib import *
from layout import *
import kconv
EXP = os.environ.get('FEXP', '').split(',')
def opt(name, default): return int(os.environ.get(name, default))

CS_BITS = struct.unpack("<I", struct.pack("<f", math.log2(math.e)/math.sqrt(18)))[0]
XB, WB, OUTB, WOB = 2048*1152, 576*3456, 2048*2304, 576*1152
NVGPR = 248
LDS_BYTES = 163840
vST = 215
pX, pW, pWO, pQ, pK, pV, pSH, pH, pD, pOUT, pDBG, pWS = [64+2*i for i in range(12)]
WIN = 65536 + VSZ + 16384
CONST = WIN
UC = WIN + 4352
XCH = WIN + 6144
SY = WIN + 5376
SC = "sc1"
NTG = 'nt' if 'ntg' in EXP else ''
NTB = 'nt' if 'ntb' in EXP else ''
SPIN = 200000
NREP = opt('NREP', 8)
GOFF = 120*256

class G:
    def __init__(self, dbg):
        self.A = Asm(); self.dbg = dbg; self.n = 0
    def lab(self, p="L"):
        self.n += 1; return f"{p}{self.n}"
    def stamp(self, i):
        if self.dbg:
            self.A(f"""
            s_memrealtime s[88:89]
            s_memtime s[90:91]
            s_waitcnt lgkmcnt(0)
            v_writelane_b32 v{vST}, s88, {i}
            v_writelane_b32 v{vST}, s90, {32+i}
            """)
    def srd(self, d, p, n):
        self.A(f"s_mov_b32 s{d}, s{p}\ns_mov_b32 s{d+1}, s{p+1}\ns_mov_b32 s{d+2}, {n}\ns_mov_b32 s{d+3}, 0x20000")
    def end(self):
        A = self.A
        if self.dbg:
            A("s_mov_b64 exec, -1\ns_waitcnt vmcnt(0)")
            self.stamp(31)
            A(f"""
            s_lshl_b32 s25, s2, 3
            s_add_u32 s25, s25, s16
            s_lshl_b32 s25, s25, 8
            s_add_u32 s25, s25, {STAMP}
            v_lshlrev_b32 v1, 2, v0
            buffer_store_dword v{vST}, v1, s[12:15], s25 offen
            s_add_u32 s25, s25, {2048*256}
            buffer_store_dword v214, v1, s[12:15], s25 offen
            """)
        amp = os.environ.get('AMP')
        if self.dbg and amp:
            wg, w, i, j = [int(x) for x in amp.split(',')]
            A(f"""
            s_cmp_lg_u32 s2, {wg}
            s_cbranch_scc1 Lam_e
            s_cmp_lg_u32 s16, {w}
            s_cbranch_scc1 Lam_e
            v_readlane_b32 s40, v{vST}, {i}
            v_readlane_b32 s41, v{vST}, {j}
            s_memrealtime s[42:43]
            s_nop 3
            s_sub_u32 s41, s41, s40
            s_min_u32 s41, s41, 10000
            s_lshl_b32 s41, s41, 3
            s_add_u32 s41, s41, {os.environ.get('AMPC', '0')}
            s_waitcnt lgkmcnt(0)
Lam_l:
            s_memrealtime s[44:45]
            s_waitcnt lgkmcnt(0)
            s_sub_u32 s44, s44, s42
            s_cmp_lt_u32 s44, s41
            s_cbranch_scc1 Lam_l
Lam_e:
            """)
        dd = os.environ.get('DD')
        if self.dbg and dd:
            wg, w, *idx = [int(x) for x in dd.split(',')]
            A(f"""
            s_cmp_lg_u32 s2, {wg}
            s_cbranch_scc1 Ldd_e
            s_cmp_lg_u32 s16, {w}
            s_cbranch_scc1 Ldd_e
            v_readlane_b32 s40, v{vST}, 0
            v_mov_b32 v2, 0
            """)
            for k, i in enumerate(idx):
                A(f"""
                v_readlane_b32 s41, v{vST}, {i}
                s_nop 3
                s_sub_u32 s41, s41, s40
                v_mov_b32 v3, s41
                global_store_dword v2, v3, s[{pDBG}:{pDBG+1}] offset:{32+4*k}
                """)
            A("Ldd_e:")
        A("s_endpgm")
    def post(self, val, t):
        self.A(f"""
        v_mov_b32 v{t}, s3
        v_mov_b32 v{t+1}, {val}
        ds_write_b32 v{t}, v{t+1}
        """)
    def wait_words(self, addr, val, t, n=4, sl=1):
        l = self.lab("Lw"); d = self.lab("Ld")
        rd = f"ds_read_b128 {V(t,4)}, v{t+4}" if n == 4 else f"ds_read_b32 v{t}, v{t+4}"
        mn = f"v_min_u32 v{t}, v{t}, v{t+1}\nv_min3_u32 v{t}, v{t}, v{t+2}, v{t+3}\ns_nop 0" if n == 4 else ""
        self.A(f"""
        v_mov_b32 v{t+4}, {addr}
        s_mov_b32 s93, {SPIN}
{l}:
        {rd}
        s_waitcnt lgkmcnt(0)
        {mn}
        v_readfirstlane_b32 s92, v{t}
        s_cmp_ge_u32 s92, {val}
        s_cbranch_scc1 {d}
        s_sleep {sl}
        s_sub_u32 s93, s93, 1
        s_cmp_lg_u32 s93, 0
        s_cbranch_scc1 {l}
{d}:
        """)
    def gsync(self, val, t):
        self.post(val, t)
        self.wait_words("s94", val, t)
    def ready(self, t):
        l = self.lab("Lr"); d = self.lab("Ld")
        self.A(f"""
        v_and_b32 v{t+1}, {NREP-1}, v0
        v_lshlrev_b32 v{t+1}, 2, v{t+1}
        s_mov_b32 s93, {SPIN}
{l}:
        global_load_dword v{t}, v{t+1}, s[{pDBG}:{pDBG+1}] {SC}
        s_waitcnt vmcnt(0)
        v_cmp_eq_u32 vcc, 0, v{t}
        s_nop 3
        s_cmp_eq_u64 vcc, 0
        s_cbranch_scc1 {d}
        s_sleep 2
        s_sub_u32 s93, s93, 1
        s_cmp_lg_u32 s93, 0
        s_cbranch_scc1 {l}
{d}:
        """)
    def signal(self, sidx, t, mask=None):
        self.A(f"""
        s_lshl_b32 s92, {sidx}, 8
        s_add_u32 s92, s92, {CNT}
        v_lshlrev_b32 v{t}, 15, v0
        v_mov_b32 v{t+1}, 1
        s_mov_b64 exec, {mask or (1 << NREP) - 1}
        buffer_atomic_add v{t+1}, v{t}, s[12:15], s92 offen {SC}
        s_mov_b64 exec, -1
        """)
    def poll(self, first, n, target, t, sl=None, fast=False, mask=None, sh=8):
        l = self.lab("Lp"); d = self.lab("Ld")
        self.A(f"""
        v_min_u32 v{t+1}, {n-1}, v0
        v_add_u32 v{t+1}, {first}, v{t+1}
        v_lshlrev_b32 v{t+1}, {sh}, v{t+1}
        s_mov_b32 s93, {SPIN}
        s_and_b32 s92, s2, {NREP-1}
        s_lshl_b32 s92, s92, 15
        s_add_u32 s92, s92, {CNT}
        s_mov_b64 exec, {mask or (1 << n) - 1}
        {"" if not fast else f"buffer_load_dword v{t+2}, v{t+1}, s[12:15], s92 offen {SC}" + chr(10) + f"s_sleep {opt('FSL', 3)}"}
{l}:
        buffer_load_dword v{t}, v{t+1}, s[12:15], s92 offen {SC}
        s_waitcnt vmcnt({1 if fast else 0})
        v_cmp_le_u32 vcc, {target}, v{t+2 if fast else t}
        s_nop 3
        s_cmp_eq_u64 vcc, exec
        s_cbranch_scc1 {d}
        {"" if not fast else f"buffer_load_dword v{t+2}, v{t+1}, s[12:15], s92 offen {SC}" + chr(10) + "s_waitcnt vmcnt(1)" + chr(10) + f"v_cmp_le_u32 vcc, {target}, v{t}" + chr(10) + "s_nop 3" + chr(10) + "s_cmp_eq_u64 vcc, exec" + chr(10) + f"s_cbranch_scc1 {d}"}
        {"" if fast else f"s_sleep {sl or opt('PSLEEP', 2)}"}
        s_sub_u32 s93, s93, 1
        s_cmp_lg_u32 s93, 0
        s_cbranch_scc1 {l}
{d}:
        s_mov_b64 exec, -1
        """)

vT0, vT1, vT2, vT3, vTok, vHf = 1, 2, 3, 4, 5, 6
vXb, vWb, vX, vW, vEA, FR, ACC, PK = 8, 12, 14, 18, 20, 36, 68, 132
RING = 131072
FRB = [FR, FR+16, 148, 164, 180, 196, 216, 232]
def XF(b, i): return FRB[b] + 4*i
def WF(b, j): return FRB[b] + 8 + 4*j
def acc(i, j): return ACC + 16*(2*i + j)
def g_reads(b, s):
    return [f"ds_read_b128 {V(XF(b,0),4)}, v{vX+s}",
            f"ds_read_b64_tr_b16 {V(WF(b,0),2)}, v{vW} offset:{16384 + 4096*s}",
            f"ds_read_b64_tr_b16 {V(WF(b,0)+2,2)}, v{vW} offset:{16384 + 4096*s + 1024}",
            f"ds_read_b64_tr_b16 {V(WF(b,1),2)}, v{vW+1} offset:{16384 + 4096*s}",
            f"ds_read_b64_tr_b16 {V(WF(b,1)+2,2)}, v{vW+1} offset:{16384 + 4096*s + 1024}",
            f"ds_read_b128 {V(XF(b,1),4)}, v{vX+s} offset:4096"]
def g_mf(b, i, j, vtype):
    a, bb = (XF(b,i), WF(b,j)) if vtype else (WF(b,j), XF(b,i))
    return f"v_mfma_f32_32x32x16_bf16 {V(acc(i,j),16)}, {V(a,4)}, {V(bb,4)}, {V(acc(i,j),16)}"
def g_setaddr(A):
    for s in range(4): A(f"v_add_u32 v{vX+s}, s30, v{vXb+s}")
    for j in range(2): A(f"v_add_u32 v{vW+j}, s30, v{vWb+j}")
def g_loop(g, name, vtype, epi):
    A = g.A
    A("s_mov_b32 s31, 7\ns_barrier")
    for r in g_reads(0, 0): A(r)
    A(f".p2align 6\n{name}:")
    for s_ in range(4):
        b = s_ & 1
        rd = g_reads(b ^ 1, (s_+1) & 3)
        if s_ == 3:
            A("s_barrier")
            g_setaddr(A)
        A("s_waitcnt lgkmcnt(3)")
        A(g_mf(b, 0, 0, vtype))
        for r in rd[:3]: A(r)
        A("s_waitcnt lgkmcnt(4)")
        A(g_mf(b, 0, 1, vtype))
        for r in rd[3:]: A(r)
        A("s_waitcnt lgkmcnt(6)")
        A(g_mf(b, 1, 0, vtype))
        if s_ == 2:
            A(f"""
            s_add_u32 s30, s30, 32768
            s_and_b32 s30, s30, {RING-1}
            s_sub_u32 s31, s31, 1
            s_cmp_eq_u32 s31, 0
            """)
        A(g_mf(b, 1, 1, vtype))
    A(f"s_cbranch_scc0 {name}")
    first = [r for s_ in (1, 2, 3) for r in g_reads(s_, s_)[:3]]
    rest = [r for s_ in (1, 2, 3) for r in g_reads(s_, s_)[3:5]] + [g_reads(s_, s_)[5] for s_ in (1, 2, 3)]
    for r in first: A(r)
    for s_ in range(4):
        A(f"s_waitcnt lgkmcnt({9 - 3*s_ + 3*s_ if False else (9-3*s_) + min(3*s_, 9)})" if False else f"s_waitcnt lgkmcnt({9 - 3*s_ + 2*s_})")
        A(g_mf(s_, 0, 0, vtype))
        for r in rest[2*s_:2*s_+2] if s_ < 3 else rest[6:]: A(r)
    A(f"""
    s_add_u32 s30, s30, 32768
    s_and_b32 s30, s30, {RING-1}
    s_barrier
    """)
    g_setaddr(A)
    first = [r for s_ in range(4) for r in g_reads(4+s_, s_)[:3]]
    rest = [r for s_ in range(4) for r in g_reads(4+s_, s_)[3:5]] + [g_reads(4+s_, s_)[5] for s_ in range(4)]
    A("s_waitcnt lgkmcnt(3)")
    for s_ in range(4):
        A(g_mf(s_, 0, 1, vtype))
        for r in first[3*s_:3*s_+3]: A(r)
    for s_ in range(4):
        A(f"s_waitcnt lgkmcnt({9 - 3*s_ + 2*s_})")
        A(g_mf(4+s_, 0, 0, vtype))
        for r in rest[2*s_:2*s_+2]: A(r)
    seq = [(4+s_, 0, 1) for s_ in range(4)] + [(s_, 1, 0) for s_ in range(8)] + [(s_, 1, 1) for s_ in range(8)]
    def split(e, n): return [e[len(e)*k//n:len(e)*(k+1)//n] for k in range(n)]
    sched = {}
    for start, t, n in ((1, (0, 0), 4), (5, (0, 1), 4), (13, (1, 0), 4)):
        for k, piece in enumerate(split(epi(*t), n)): sched[start+k] = piece
    for n, (b_, i, j) in enumerate(seq):
        if n == 0: A("s_waitcnt lgkmcnt(0)")
        if n == 8: A("s_waitcnt lgkmcnt(0)")
        A(g_mf(b_, i, j, vtype))
        if n == 0:
            for r in rest[8:]: A(r)
            A("s_nop 3")
        if n in (4, 12): A("s_nop 7")
        if n in (5, 13): A("s_nop 1")
        for x in sched.get(n, []): A(x)
    prev = (1, 1)
    g.stamp(2)
    A("s_nop 11")
    for x in epi(*prev): A(x)

def ld_chunk(g, skip=True):
    A = g.A; l = g.lab("Lk")
    if skip: A(f"s_cmp_lg_u32 s95, 0\ns_cbranch_scc1 {l}")
    A(f"""
    s_mov_b32 m0, s42
    s_add_u32 s26, s40, 8192
    buffer_load_dwordx4 v8, s[8:11], s40 offen lds
    s_add_u32 s27, s40, 16384
    buffer_load_dwordx4 v9, s[8:11], s26 offen offset:1024 lds
    s_add_u32 s26, s40, 24576
    buffer_load_dwordx4 v8, s[8:11], s27 offen offset:2048 lds
    s_add_u32 s28, s42, 16384
    buffer_load_dwordx4 v9, s[8:11], s26 offen offset:3072 lds
    s_mov_b32 m0, s28
    s_add_u32 s26, s41, {13824-1024}
    buffer_load_dwordx4 v10, s[44:47], s41 offen lds
    s_add_u32 s27, s41, {2*(13824-1024)}
    buffer_load_dwordx4 v10, s[44:47], s26 offen offset:1024 lds
    s_add_u32 s26, s41, {3*(13824-1024)}
    buffer_load_dwordx4 v10, s[44:47], s27 offen offset:2048 lds
    s_add_u32 s40, s40, 128
    buffer_load_dwordx4 v10, s[44:47], s26 offen offset:3072 lds
    s_add_u32 s41, s41, {64*3456}
    s_add_u32 s24, s24, 1
    s_cmp_eq_u32 s24, 9
    s_cselect_b32 s26, 1152, 0
    s_cselect_b32 s27, {WB}, 0
    s_sub_u32 s40, s40, s26
    s_sub_u32 s41, s41, s27
    s_add_u32 s42, s42, 32768
    s_cmp_ge_u32 s42, {RING}
    s_cselect_b32 s26, {RING}, 0
    s_sub_u32 s42, s42, s26
{l}:
    """)

def gen_gemm(g):
    A = g.A
    ROT = opt('ROT', 1)
    A(f"""
    s_and_b32 s17, s2, 7               ; xcd
    s_lshr_b32 s18, s2, 3              ; idx 0..27
    s_and_b32 s19, s17, 3
    s_lshl_b32 s19, s19, 2
    s_and_b32 s20, s18, 3
    s_add_u32 s19, s19, s20            ; mb
    s_lshr_b32 s21, s17, 2
    s_mul_i32 s21, s21, 7
    s_lshr_b32 s22, s18, 2
    s_add_u32 s21, s21, s22            ; ng
    s_cmp_lt_u32 s16, 4
    s_cbranch_scc1 Lg_compute
    s_and_b32 s23, s16, 3              ; u
    """)
    if ROT:
        A("""
        s_mul_i32 s24, s20, 5
        s_lshr_b32 s24, s24, 1
        s_add_u32 s24, s24, s22
        s_cmp_ge_u32 s24, 9
        s_cselect_b32 s25, 9, 0
        s_sub_u32 s24, s24, s25
        """)
    else: A("s_mov_b32 s24, 0")
    A(f"""
    s_lshl_b32 s25, s19, 7
    s_lshl_b32 s26, s23, 5
    s_add_u32 s25, s25, s26
    s_mul_i32 s25, s25, 1152
    s_lshl_b32 s26, s24, 7
    s_add_u32 s40, s25, s26            ; sX
    s_lshl_b32 s25, s24, 2
    s_add_u32 s25, s25, s23
    s_mul_i32 s25, s25, {16*3456}
    s_lshl_b32 s26, s21, 8
    s_add_u32 s41, s25, s26            ; sW
    s_lshl_b32 s42, s23, 12
    v_lshrrev_b32 v{vT0}, 3, v0
    v_mul_u32_u24 v{vT0}, 1152, v{vT0}
    v_lshrrev_b32 v{vT1}, 4, v0
    v_and_b32 v{vT2}, 7, v0
    v_xor_b32 v{vT2}, v{vT2}, v{vT1}
    v_lshl_add_u32 v8, v{vT2}, 4, v{vT0}
    v_xor_b32 v{vT2}, 4, v{vT2}
    v_lshl_add_u32 v9, v{vT2}, 4, v{vT0}       ; odd i
    v_mul_u32_u24 v{vT0}, 3456, v{vT1}
    v_and_b32 v{vT2}, 15, v0
    v_lshlrev_b32 v{vT1}, 2, v{vT1}
    v_xor_b32 v{vT2}, v{vT2}, v{vT1}
    v_lshl_add_u32 v10, v{vT2}, 4, v{vT0}      ; W addr
    s_mov_b32 s95, 0
    s_setprio {opt('LPRIO', 0)}
    s_waitcnt lgkmcnt(0)
    """)
    g.srd(8, pX, XB); g.srd(44, pW, WB)
    A(f"""
    s_mov_b32 s31, 0
Lld:
    s_cmp_lt_u32 s31, 2
    s_cbranch_scc1 Lld_go
    s_waitcnt vmcnt(8)
    s_barrier
Lld_go:
    """)
    ld_chunk(g, False)
    A(f"""
    s_add_u32 s31, s31, 1
    s_cmp_lt_u32 s31, 9
    s_cbranch_scc1 Lld
    s_waitcnt vmcnt(8)
    s_barrier
    """)
    g.srd(12, pWS, WS_END)
    A(f"""
    s_waitcnt vmcnt(0)
    s_barrier
    s_branch Lh_start
Lg_compute:
    s_and_b32 s23, s16, 1              ; wm
    s_lshr_b32 s24, s16, 1             ; wn
    v_and_b32 v{vTok}, 31, v0
    v_lshrrev_b32 v{vHf}, 5, v0
    s_lshl_b32 s25, s23, 13
    v_lshlrev_b32 v{vT0}, 7, v{vTok}
    v_add_u32 v{vT0}, s25, v{vT0}
    v_bfe_u32 v{vT1}, v0, 1, 3
    v_xor_b32 v{vT1}, v{vT1}, v{vHf}
    """)
    for s in range(4):
        A(f"v_xor_b32 v{vT2}, {2*s}, v{vT1}\nv_lshl_add_u32 v{vXb+s}, v{vT2}, 4, v{vT0}")
    A(f"""
    v_bfe_u32 v{vT0}, v0, 2, 2
    v_lshl_add_u32 v{vT1}, v{vHf}, 3, v{vT0}
    v_lshlrev_b32 v{vT1}, 8, v{vT1}
    v_bfe_u32 v{vT2}, v0, 4, 1
    v_lshl_add_u32 v{vT1}, v{vT2}, 5, v{vT1}
    v_and_b32 v{vT2}, 3, v0
    v_lshl_add_u32 v{vT1}, v{vT2}, 3, v{vT1}
    s_lshl_b32 s25, s24, 1
    v_xor_b32 v{vT2}, s25, v{vT0}
    v_lshl_add_u32 v{vWb}, v{vT2}, 6, v{vT1}
    v_xor_b32 v{vT2}, 1, v{vT2}
    v_lshl_add_u32 v{vWb+1}, v{vT2}, 6, v{vT1}
    s_mov_b32 s30, 0
    s_waitcnt lgkmcnt(0)
    """)
    g.srd(12, pWS, WS_END)
    gen_init_misc(g, PK+8)
    g_setaddr(A)
    for i in range(64): A(f"v_mov_b32 v{ACC+i}, 0")
    A(f"""
    s_lshl_b32 s25, s21, 7
    s_sub_u32 s25, 71, s25
    v_mul_u32_u24 v{vT0}, 72, v0
    v_add_u32 v{vT0}, s25, v{vT0}
    v_add_u32 v{vT1}, 576, v{vT0}
    v_add_u32 v{vT2}, 1152, v{vT0}
    v_min_u32 v{vT0}, v{vT0}, v{vT1}
    v_min_u32 v{vT0}, v{vT0}, v{vT2}
    v_cmp_gt_u32 vcc, 199, v{vT0}
    s_nop 3
    s_and_b64 s[36:37], vcc, 0xff
    """)
    A(f"""
    s_lshl_b32 s26, s19, 2
    s_lshl_b32 s27, s23, 1
    s_add_u32 s26, s26, s27            ; T0
    s_waitcnt lgkmcnt(0)
    s_cmp_ge_u32 s21, 9
    s_cbranch_scc1 Lg_vtype
    s_lshl_b32 s27, s21, 5
    s_lshl_b32 s28, s24, 4
    s_add_u32 s27, s27, s28
    v_add_u32 v{vT0}, s27, v{vHf}      ; G0
    s_lshl_b32 s28, s26, 10
    s_lshl_b32 s29, s26, 8
    s_add_u32 s29, s29, {LEFT}
    v_lshlrev_b32 v{vTok}, 3, v{vTok}
    v_add_u32 v{PK}, s29, v{vTok}
    v_add_u32 v{PK+1}, s28, v{vTok}
    v_add_u32 v{PK+2}, {MB-1280}, v{PK+1}
    v_mov_b32 v{PK+3}, 256
    v_mov_b32 v{PK+4}, 1024
    s_mov_b32 s32, {PAIR}
    """)
    for jg in range(8):
        A(f"""
        v_add_u32 v{vT1}, {8*(jg>>2) + 2*(jg&3)}, v{vT0}
        v_mul_u32_u24 v{vT2}, 7282, v{vT1}
        v_lshrrev_b32 v{vT2}, 16, v{vT2}
        v_mul_u32_u24 v{vT3}, 9, v{vT2}
        v_sub_u32 v{vT1}, v{vT1}, v{vT3}
        v_cmp_lt_u32 vcc, 4, v{vT1}
        v_cmp_eq_u32 s[34:35], 4, v{vT1}
        v_mul_u32_u24 v{vT2}, s32, v{vT2}
        v_cndmask_b32 v{vT3}, v{PK+1}, v{PK+2}, vcc
        v_lshl_add_u32 v{vT3}, v{vT1}, 8, v{vT3}
        v_cndmask_b32 v{vT3}, v{vT3}, v{PK}, s[34:35]
        v_cndmask_b32 v{vT1}, v{PK+4}, v{PK+3}, s[34:35]
        v_add_u32 v{vEA+jg}, v{vT2}, v{vT3}
        v_add_u32 v{vEA+8+jg}, v{vEA+jg}, v{vT1}
        """)
    g.stamp(1)
    A(f"""
    s_lshl_b32 s27, s21, 2
    s_lshl_b32 s28, s24, 1
    s_add_u32 s27, s27, s28
    s_cmp_lt_u32 s27, 18
    s_cselect_b32 s28, {CS_BITS}, 1.0
    s_mov_b32 s29, s28
    """)
    def epi_qk(i, j):
        r = []
        for q in range(4):
            a_ = acc(i, j) + 4*q; p = PK + 2*q + 8*j
            r += [f"v_mul_f32 v{a_+e}, s28, v{a_+e}" for e in range(4)]
            r += [f"v_cvt_pk_bf16_f32 v{p}, v{a_}, v{a_+1}", f"v_cvt_pk_bf16_f32 v{p+1}, v{a_+2}, v{a_+3}",
                  f"buffer_store_dwordx2 {V(p,2)}, v{vEA+8*i+4*j+q}, s[12:15], 0 offen {SC}"]
        return r
    g_loop(g, "Lg_qk", False, epi_qk)
    A(f"""
    s_branch Lg_done
Lg_vtype:
    s_sub_u32 s27, s21, 9
    s_lshl_b32 s27, s27, 7
    s_lshl_b32 s28, s24, 6
    s_add_u32 s27, s27, s28
    s_mul_i32 s28, s26, 36864
    s_add_u32 s28, s28, {VG}
    v_mul_u32_u24 v{vT3}, 9216, v{vHf}
    v_add_u32 v{vT0}, s27, v{vTok}
    v_lshl_add_u32 v{vEA}, v{vT0}, 4, v{vT3}
    """)
    g.stamp(1)
    A(f"""
    s_cmp_ge_u32 s27, 576
    s_cselect_b32 s29, 0x7f000000, 0
    v_add_u32 v{vEA}, s29, v{vEA}
    """)
    def epi_v(i, j):
        r = []
        for m in range(2):
            a_ = acc(i, j) + 8*m; p = PK + 4*m + 8*j
            r += [f"v_cvt_pk_bf16_f32 v{p+e}, v{a_+2*e}, v{a_+2*e+1}" for e in range(4)]
            r += [f"s_add_u32 s29, s28, {i*36864+m*18432}", f"buffer_store_dwordx4 {V(p,4)}, v{vEA}, s[12:15], s29 offen offset:{512*j} {SC}"]
        return r
    g_loop(g, "Lg_v", True, epi_v)
    A(f"""
Lg_done:
    s_setprio 2
    """)
    g.stamp(15)
    A("s_cmp_lg_u32 s16, 0\ns_cbranch_scc1 Lg_d2")
    g.ready(8)
    A("Lg_d2:\ns_waitcnt vmcnt(0) lgkmcnt(0)")
    g.stamp(3)
    g.gsync(5, 8)
    A("s_cmp_lg_u32 s16, 0\ns_cbranch_scc1 Lattn")
    g.stamp(16)
    if opt('HIER', 0):
        A(f"""
        s_lshl_b32 s92, s21, 8
        s_add_u32 s92, s92, {CNT}
        v_mov_b32 v8, 0
        v_mov_b32 v9, 1
        s_mov_b64 exec, 1
        buffer_atomic_add v9, v8, s[12:15], s92 offen sc0 {SC}
        s_mov_b64 exec, -1
        s_lshl_b32 s92, s21, 2
        s_add_u32 s92, s92, {CNT+GOFF}
        v_lshlrev_b32 v8, 15, v0
        v_mov_b32 v10, 16
        s_waitcnt vmcnt(0)
        v_readfirstlane_b32 s25, v9
        s_cmp_lg_u32 s25, 15
        s_cbranch_scc1 Lg_nl
        s_mov_b64 exec, s[36:37]
        buffer_store_dword v10, v8, s[12:15], s92 offen {SC}
        s_mov_b64 exec, -1
Lg_nl:
        """)
    else:
        g.signal("s21", 8, mask="s[36:37]" if opt('PMASK', 1) else None)
        A("s_waitcnt vmcnt(0)")
    g.stamp(17)
    A("s_branch Lattn")

def gen_init_misc(g, t):
    A = g.A
    for i in range(2):
        A(f"""
        s_and_b32 s25, s16, 3
        s_lshl_b32 s25, s25, 7
        s_add_u32 s25, s25, {64*i-14 & 0xffffffff}
        v_add_u32 v{t+4}, s25, v0
        v_mul_u32_u24 v{t+5}, 1821, v{t+4}
        v_lshrrev_b32 v{t+5}, 16, v{t+5}
        v_mul_u32_u24 v{t+5}, 36, v{t+5}
        v_cmp_eq_u32 s[34:35], v{t+5}, v{t+4}
        v_cmp_gt_u32 vcc, {36*8}, v{t+4}
        v_mov_b32 v{t+5}, 0x3f803f80
        v_lshlrev_b32 v{t+4}, 4, v{t+4}
        s_and_b64 vcc, vcc, s[34:35]
        v_add_u32 v{t+4}, {CONST+224}, v{t+4}
        v_cndmask_b32 v{t}, 0, v{t+5}, vcc
        v_cndmask_b32 v{t+1}, 0, v{t+5}, vcc
        v_cndmask_b32 v{t+2}, 0, v{t+5}, vcc
        v_cndmask_b32 v{t+3}, 0, v{t+5}, vcc
        ds_write_b128 v{t+4}, {V(t,4)}
        """)

import k2, k3
from k2 import m16, m8, phase, maxtree
from k2 import vL8, vKM, vKL, vV, vL16, vV0, vVinc, Q1A, Q1B, Q2A, Q2B, NMA, NMB, SA, SB, PA, PB, OA, OB, KB, KL, VB
aT0, aT1, aT2, aT3 = 5, 6, 7, 8
TMP = 168
vCA, vCR, vOne, vKM0, vKL0, vG0, vG1, vG2 = range(176, 184)
bKG, bVG, b5G, bRD, bTR, bBW, bBR, bUO, bZP, bPG = range(184, 194)
CM = 216
FLAG = SY + 40
KL2 = 184

def head_params(A):
    A(f"""
    s_and_b32 s17, s2, 7
    s_lshl_b32 s17, s17, 2
    s_bfe_u32 s25, s2, 0x20003
    s_add_u32 s17, s17, s25            ; h
    s_lshr_b32 s18, s2, 5              ; qb
    s_and_b32 s20, s16, 3              ; qg / u
    s_and_b32 s21, s17, 1              ; parity
    s_lshr_b32 s26, s17, 1             ; pair
    v_lshlrev_b32 v{vL16}, 4, v0
    s_mul_i32 s39, s26, {PAIR}
    s_mul_i32 s28, s21, {LEFT}
    s_add_u32 s27, s39, s28
    s_add_u32 s27, s27, {KV}
    s_add_u32 s8, s{pWS}, s27
    s_addc_u32 s9, s{pWS+1}, 0
    s_mov_b32 s10, {WIN}
    s_mov_b32 s11, 0x20000
    s_lshl_b32 s22, s21, 14
    s_add_u32 s23, s22, 65536
    s_cmp_eq_u32 s21, 0
    s_cselect_b32 s24, {LEFT}, 0
    s_lshl_b32 s25, s20, 10
    s_add_u32 s40, s22, s25
    s_add_u32 s41, s23, s25
    s_add_u32 s42, s23, 8192
    s_and_b32 s44, s20, 1
    s_lshl_b32 s44, s44, 10
    s_add_u32 s44, s44, s24
    s_mul_i32 s43, s17, 288
    s_add_u32 s43, s43, {VG}
    s_add_u32 s46, s44, s27
    s_cmp_eq_u32 s20, 0
    s_cselect_b32 s42, s42, s44
    s_cselect_b32 s44, s43, s46
    s_cselect_b32 s45, 9, 2
    s_cselect_b32 s47, 288, 2
    s_cselect_b64 vcc, -1, 0
    s_lshl_b32 s45, s45, 10
    s_lshl_b32 s47, s47, 10
    s_lshl_b32 s25, s20, 6
    s_add_u32 s46, s25, 256
    """)
    for r, base in ((vG0, "s25"), (vG1, "s46"), (vG2, "512")):
        A(f"""
        v_add_u32 v{aT0}, {base}, v0
        v_mul_u32_u24 v{aT2}, 3641, v{aT0}
        v_lshrrev_b32 v{aT2}, 16, v{aT2}
        v_mul_u32_u24 v{aT3}, {9216-288}, v{aT2}
        v_lshl_add_u32 v{r}, v{aT0}, 4, v{aT3}
        """)
    A(f"v_cndmask_b32 v{vG2}, v{vL16}, v{vG2}, vcc")

def dma_skip(A, n):
    A(f"""
    s_add_u32 s40, s40, {(n*8192) & 0xffffffff}
    s_add_u32 s41, s41, {(n*9216) & 0xffffffff}
    s_add_u32 s43, s43, {(n*8*36864) & 0xffffffff}
    s_mul_i32 s25, s45, {n}
    s_add_u32 s42, s42, s25
    s_mul_i32 s25, s47, {n}
    s_add_u32 s44, s44, s25
    """)

def dma_iter(A):
    A(f"""
    s_mov_b32 m0, s40
    s_add_u32 s46, s40, 4096
    buffer_load_dwordx4 v{vL16}, s[8:11], s40 offen lds {SC}
    s_mov_b32 m0, s46
    s_add_u32 s40, s40, 8192
    buffer_load_dwordx4 v{vL16}, s[8:11], s46 offen lds {SC}
    s_mov_b32 m0, s41
    s_add_u32 s46, s41, 4096
    buffer_load_dwordx4 v{vG0}, s[12:15], s43 offen lds {SC}
    s_mov_b32 m0, s46
    s_add_u32 s41, s41, 9216
    buffer_load_dwordx4 v{vG1}, s[12:15], s43 offen lds {SC}
    s_mov_b32 m0, s42
    s_add_u32 s43, s43, {8*36864}
    buffer_load_dwordx4 v{vG2}, s[12:15], s44 offen lds {SC}
    s_add_u32 s42, s42, s45
    s_add_u32 s44, s44, s47
    """)
def dma_n(g, n):
    l = g.lab("Ldm")
    g.A(f"s_mov_b32 s31, {n}\n{l}:")
    dma_iter(g.A)
    g.A(f"s_sub_u32 s31, s31, 1\ns_cmp_lg_u32 s31, 0\ns_cbranch_scc1 {l}")

def avail_add(g, units):
    l = g.lab("Lav")
    g.A(f"""
    s_cmp_lg_u32 s16, 4
    s_cbranch_scc1 {l}
    v_mov_b32 v{TMP}, {units << 8}
    s_mov_b64 exec, 15
    ds_add_u32 v{bPG}, v{TMP}
    s_mov_b64 exec, -1
{l}:
    """)
def wait_progress(g, n, sl=4):
    l = g.lab("Lq"); d = g.lab("Ld")
    g.A(f"""
    s_mov_b32 s93, {SPIN}
{l}:
    ds_read_b32 v{TMP}, v{bPG}
    s_waitcnt lgkmcnt(0)
    v_and_b32 v{TMP}, 0xff, v{TMP}
    v_cmp_gt_u32 vcc, {n}, v{TMP}
    s_nop 3
    s_cmp_eq_u64 vcc, 0
    s_cbranch_scc1 {d}
    s_sleep {sl}
    s_sub_u32 s93, s93, 1
    s_cmp_lg_u32 s93, 0
    s_cbranch_scc1 {l}
{d}:
    """)

def gen_stage1(g):
    A = g.A
    KR, VR, CR, UU, OUT = 40, 60, 68, 84, 136
    T = TMP
    R = kconv.ConvRegs(16)
    A("s_waitcnt lgkmcnt(0)")
    g.srd(12, pWS, WS_END)
    A(f"""
    s_sub_u32 s17, s2, 224
    s_cmp_lt_u32 s16, 4
    s_cbranch_scc1 Lx_a
    s_mov_b32 s95, 1
    s_mov_b32 s18, 8
    s_lshl_b32 s19, s17, 1
    s_add_u32 s19, s19, 512
    s_bfe_u32 s25, s2, 0x10003
    s_lshl_b32 s25, s25, 14
    s_add_u32 s96, s25, 40960
    s_add_u32 s97, s25, {65536+46080}
    s_add_u32 s99, s97, 9344
    s_add_u32 s3, s3, 32
    s_add_u32 s94, s94, 32
    s_branch Lb_setup
Lx_a:
    s_cmp_ge_u32 s17, {NREP}
    s_cbranch_scc1 Lx_1
    s_cmp_lg_u32 s16, 0
    s_cbranch_scc1 Lx_1
    v_lshlrev_b32 v11, 8, v0
    v_mov_b32 v12, 0
    s_lshl_b32 s25, s17, 15
    s_add_u32 s25, s25, {CNT}
    buffer_store_dword v12, v11, s[12:15], s25 offen {SC}
    s_add_u32 s25, s25, 16384
    s_mov_b64 exec, 0xfffff
    buffer_store_dword v12, v11, s[12:15], s25 offen {SC}
    s_mov_b64 exec, -1
    v_lshlrev_b32 v11, 2, v0
    s_add_u32 s25, s25, {GOFF-16384}
    buffer_store_dword v12, v11, s[12:15], s25 offen {SC}
Lx_1:
    s_getpc_b64 s[26:27]
Lpc0:
    s_add_u32 s26, s26, Lcode_begin-Lpc0
    s_addc_u32 s27, s27, -1
    s_lshl_b32 s25, s16, 13
    v_lshlrev_b32 v13, 7, v0
    v_add_u32 v13, s25, v13
    v_min_u32 v13, Lcode_end-Lcode_begin-4, v13
    v_mov_b32 v15, s27
    v_add_co_u32 v14, vcc, s26, v13
    s_nop 1
    v_addc_co_u32 v15, vcc, 0, v15, vcc
    global_load_dword v210, v[14:15], off
    """)
    gen_init_misc(g, 144)
    A(f"""
    s_cmp_ge_u32 s17, {NREP}
    s_cbranch_scc1 Lx_2
    s_cmp_lg_u32 s16, 0
    s_cbranch_scc1 Lx_2
    s_lshl_b32 s27, s17, 2
    v_mov_b32 v11, s27
    v_mov_b32 v12, 1
    s_mov_b64 exec, 1
    s_waitcnt vmcnt(1)
    global_store_dword v11, v12, s[{pDBG}:{pDBG+1}] {SC}
    s_mov_b64 exec, -1
Lx_2:
    s_mov_b32 s95, 1
    s_lshr_b32 s17, s2, 3
    s_and_b32 s18, s2, 7
    s_lshl_b32 s19, s2, 1
    s_mov_b32 s96, 0
    s_mov_b32 s97, 0
    s_mov_b32 s99, 0
    s_branch Lb_setup
Lh_restart:
    s_sub_u32 s3, s3, 32
    s_sub_u32 s94, s94, 32
Lh_start:
    s_mov_b32 s95, 0
    s_lshr_b32 s17, s2, 3              ; tb
    s_and_b32 s18, s2, 7               ; cb
    s_lshl_b32 s19, s2, 1
    s_bfe_u32 s25, s2, 0x10003
    s_lshl_b32 s96, s25, 14
    s_add_u32 s97, s96, 65536          ; V blocks 0..2
    s_add_u32 s99, s96, {65536+6*9216}
Lb_setup:
    s_and_b32 s23, s16, 3              ; u
    v_and_b32 v{vT0}, 7, v0            ; cc
    v_lshrrev_b32 v{vT1}, 3, v0        ; tg
    s_lshl_b32 s21, s18, 9
    v_lshlrev_b32 v{vT3}, 6, v{vT0}
    """)
    g.srd(4, pSH, 576*8)
    for i in range(4): A(f"buffer_load_dwordx4 {V(CR+4*i,4)}, v{vT3}, s[4:7], s21 offen offset:{16*i}")
    A(f"""
    s_mul_i32 s20, s17, {64*1152}
    s_lshl_b32 s21, s18, 7
    s_add_u32 s20, s20, s21
    v_mul_u32_u24 v{vT2}, 1152, v{vT1}
    v_lshl_add_u32 v{vT2}, v{vT0}, 4, v{vT2}
    v_add_u32 v{vT2}, s20, v{vT2}
    v_add_u32 v{b5G}, {61*1152}, v{vT2}
    s_mul_i32 s20, s23, {8*1152}
    v_add_u32 v{bVG}, s20, v{vT2}
    v_subrev_u32 v{bKG}, {3*1152}, v{bVG}
    v_lshlrev_b32 v{vL16}, 4, v0
    s_add_u32 s28, s97, 9344
    s_lshr_b32 s25, s23, 1
    s_add_u32 s98, s19, s25            ; channel
    s_cmp_eq_u32 s25, 0
    s_cselect_b32 s96, s96, s28
    s_mul_i32 s25, s25, 4672
    s_add_u32 s97, s97, s25
    s_add_u32 s97, s97, 576
    s_lshl_b32 s25, s19, 1
    s_load_dword s100, s[{pD}:{pD+1}], s25
    s_cmp_eq_u32 s95, 1
    s_cbranch_scc1 Lb_load
Lb_setup2:
    v_lshlrev_b32 v{bRD}, 8, v{vT1}
    v_lshl_add_u32 v{bRD}, v{vT0}, 4, v{bRD}
    s_lshl_b32 s25, s23, 11
    s_add_u32 s25, s25, s99
    v_add_u32 v{bRD}, s25, v{bRD}
    v_lshrrev_b32 v{vT2}, 4, v0
    v_and_b32 v{vT3}, 15, v0
    v_lshlrev_b32 v{vT3}, 7, v{vT3}
    v_lshl_add_u32 v{bBW}, v{vT2}, 4, v{vT3}
    v_add_u32 v{bBW}, s25, v{bBW}
    v_add_u32 v{bBR}, s25, v{vL16}
    v_bfe_u32 v{vT3}, v0, 2, 2
    v_lshl_add_u32 v{bTR}, v{vT2}, 3, v{vT3}
    v_lshlrev_b32 v{bTR}, 7, v{bTR}
    v_and_b32 v{vT3}, 3, v0
    v_lshl_add_u32 v{bTR}, v{vT3}, 3, v{bTR}
    v_lshlrev_b32 v{bPG}, 8, v{vT3}
    v_add_u32 v{bPG}, {UC}, v{bPG}
    s_lshl_b32 s25, s23, 5
    s_add_u32 s25, s25, s99
    v_add_u32 v{bTR}, s25, v{bTR}
    v_lshlrev_b32 v{bUO}, 12, v{vT1}
    v_lshl_add_u32 v{bUO}, v{vT0}, 4, v{bUO}
    s_lshl_b32 s22, s18, 2
    s_add_u32 s22, s22, s23
    s_lshl_b32 s22, s22, 16
    s_lshl_b32 s25, s17, 7
    s_add_u32 s22, s22, s25
    s_add_u32 s22, s22, {UT}
    s_lshr_b32 s25, s18, 3
    s_lshl_b32 s25, s25, 12
    s_add_u32 s22, s22, s25
    v_add_u32 v{bUO}, s22, v{bUO}
    v_min_u32 v{bZP}, 35, v0
    v_lshlrev_b32 v{bZP}, 4, v{bZP}
    s_sub_u32 s25, s97, 576
    v_add_u32 v{bZP}, s25, v{bZP}
    s_waitcnt lgkmcnt(0)
    """)
    conv_setup(A, R)
    A("s_mov_b32 s29, 0xffff0000\ns_mov_b32 s28, 0xffff\ns_waitcnt vmcnt(0)")
    for c in range(8):
        for j in range(4):
            d, e, src = CM + 8*(c >> 1) + 2*j + (c & 1), c & 1, CR + 2*c + (j >> 1)
            if (j & 1) == e: A(f"v_and_b32 v{d}, {'s29' if e else 's28'}, v{src}")
            elif e: A(f"v_lshlrev_b32 v{d}, 16, v{src}")
            else: A(f"v_lshrrev_b32 v{d}, 16, v{src}")
    A(f"""
    s_cmp_eq_u32 s95, 0
    s_cbranch_scc1 Lh_kv
    s_barrier
    s_branch Lb_s0
Lh_kv:
    """)
    EARLY = opt('S1EARLY', 0)
    def kv_first():
        g.wait_words(SY, 9, T, sl=2)
        A(f"s_setprio {opt('CPRIO', 1)}")
        A("s_cmp_ge_u32 s2, 224\ns_cbranch_scc1 Lh_kx")
        dma_n(g, 5)
        A("s_waitcnt vmcnt(15)")
        g.gsync(1 + 10*(EARLY > 0), T)
        avail_add(g, 4)
        A("s_branch Lh_ky\nLh_kx:")
        dma_skip(A, 2)
        dma_n(g, 3)
        g.srd(4, pH, XB)
        A("s_waitcnt vmcnt(0)")
        g.gsync(2, T)
        A("s_cmp_lg_u32 s16, 4\ns_cbranch_scc1 Lc_k")
        g.wait_words(SY, 10, T, sl=4)
        avail_add(g, 6)
        A("s_branch Lc_k\nLh_ky:")
    head_params(A)
    dma_skip(A, 1)
    if not EARLY: kv_first()
    elif EARLY == 2:
        A("s_cmp_ge_u32 s2, 224\ns_cbranch_scc1 Lb_load")
        g.wait_words(SY, 5, T, sl=2)
    A(f"""
Lb_load:
    s_and_b32 s28, s16, 3
    s_lshl_b32 s25, s28, 10
    s_add_u32 s25, s25, s99
    """)
    g.srd(4, pK, XB)
    A(f"""
    s_mov_b32 m0, s25
    s_add_u32 s27, s25, 4096
    buffer_load_dwordx4 v{bKG}, s[4:7], 0 offen {NTB} lds
    s_mov_b32 m0, s27
    v_add_u32 v{bKG}, {32*1152}, v{bKG}
    s_add_u32 s27, s99, 8192
    buffer_load_dwordx4 v{bKG}, s[4:7], 0 offen {NTB} lds
    s_mov_b32 m0, s27
    s_add_u32 s27, s25, 9216
    buffer_load_dwordx4 v{b5G}, s[4:7], 0 offen lds
    s_mov_b32 s4, s{pV}
    s_mov_b32 s5, s{pV+1}
    s_mov_b32 m0, s27
    s_add_u32 s27, s27, 4096
    buffer_load_dwordx4 v{bVG}, s[4:7], 0 offen {NTB} lds
    s_mov_b32 m0, s27
    s_mov_b32 s27, {32*1152}
    buffer_load_dwordx4 v{bVG}, s[4:7], s27 offen {NTB} lds
    s_mov_b32 s4, s{pH}
    s_mov_b32 s5, s{pH+1}
    s_and_b32 s25, s28, 1
    s_lshl_b32 s25, s25, 11
    s_lshl_b32 s27, s98, 12
    s_add_u32 s27, s27, s25
    v_lshlrev_b32 v{T}, 3, v{vL16}
    s_mov_b64 exec, 0xffff
    buffer_load_dword v209, v{T}, s[4:7], s27 offen
    s_mov_b64 exec, -1
    s_cmp_eq_u32 s95, 1
    s_cbranch_scc1 Lb_setup2
    """)
    def kv_second(val):
        g.post(val, T)
        A("s_cmp_lg_u32 s16, 4\ns_cbranch_scc1 Lb_a6")
        g.wait_words("s94", val, T)
        avail_add(g, 6)
        A("Lb_a6:")
    if not EARLY:
        A("s_waitcnt vmcnt(6)")
        kv_second(2)
    A("s_waitcnt vmcnt(1)\nLb_s0:")
    g.gsync(3, T)
    g.stamp(1)
    for n in range(5): A(f"ds_read_b128 {V(KR+4*n,4)}, v{bRD} offset:{128*n}")
    for t in range(2): A(f"ds_read_b128 {V(VR+4*t,4)}, v{bRD} offset:{9216+128*t}")
    A("s_mov_b32 s29, 0xffff0000\ns_waitcnt lgkmcnt(2)")
    for j in range(4):
        for d in range(4):
            for t in range(2):
                for e in range(2):
                    u = UU + 4*d + 2*t + e
                    if j == 0: A(f"v_dot2_f32_bf16 v{u}, v{KR+4*(t+3)+d}, v{CM+8*d+e}, 0")
                    else: A(f"v_dot2c_f32_bf16 v{u}, v{KR+4*(t+3-j)+d}, v{CM+8*d+2*j+e}")
    A("s_waitcnt lgkmcnt(0)")
    for d in range(4):
        for t in range(2):
            x = UU + 16 + 4*d + 2*t
            A(f"v_lshlrev_b32 v{x}, 16, v{VR+4*t+d}\nv_and_b32 v{x+1}, s29, v{VR+4*t+d}")
    for i in range(8): A(f"v_pk_mul_f32 {V(UU+2*i,2)}, {V(UU+2*i,2)}, {V(UU+16+2*i,2)}")
    for d in range(4):
        for t in range(2): A(f"v_cvt_pk_bf16_f32 v{OUT+4*t+d}, v{UU+4*d+2*t}, v{UU+4*d+2*t+1}")
    A(f"""
    ds_write_b128 v{bRD}, {V(OUT,4)} offset:9216
    ds_write_b128 v{bRD}, {V(OUT+4,4)} offset:{9216+128}
    s_waitcnt lgkmcnt(0)
    """)
    g.gsync(4, T)
    for i in range(2):
        A(f"ds_read_b64_tr_b16 {V(OUT+4*i,2)}, v{bTR} offset:{9216+4096*i}")
        A(f"ds_read_b64_tr_b16 {V(OUT+4*i+2,2)}, v{bTR} offset:{9216+4096*i+512}")
    A(f"""
    s_mov_b32 s27, 32768
    s_waitcnt lgkmcnt(0)
    ds_write_b128 v{bBW}, {V(OUT,4)}
    ds_write_b128 v{bBW}, {V(OUT+4,4)} offset:64
    ds_read_b128 {V(OUT+8,4)}, v{bBR}
    ds_read_b128 {V(OUT+12,4)}, v{bBR} offset:1024
    s_waitcnt lgkmcnt(0)
    buffer_store_dwordx4 {V(OUT+8,4)}, v{bUO}, s[12:15], 0 offen {SC}
    buffer_store_dwordx4 {V(OUT+12,4)}, v{bUO}, s[12:15], s27 offen {SC}
    """)
    g.stamp(2)
    A("s_and_b32 s25, s16, 3\ns_cmp_lg_u32 s25, 0\ns_cbranch_scc1 Lb_nr" + ("" if EARLY else "\ns_cmp_eq_u32 s95, 0\ns_cbranch_scc1 Lb_nr"))
    g.ready(T)
    A("Lb_nr:\ns_waitcnt vmcnt(0)")
    g.stamp(3)
    g.gsync(5, T)
    A("s_cmp_lt_u32 s16, 4\ns_cbranch_scc1 Lc_m\ns_cmp_eq_u32 s95, 1\ns_cbranch_scc1 Lc_x\nLc_m:")
    A("s_and_b32 s25, s16, 3\ns_cmp_lg_u32 s25, 0\ns_cbranch_scc1 Lc_k0\ns_and_b32 s25, s2, 15\ns_add_u32 s25, s25, 64")
    g.signal("s25", T)
    A("s_cmp_lg_u32 s16, 0\ns_cbranch_scc1 Lc_k0")
    g.wait_words(SY+36, 1, T, n=1, sl=8)
    A("Lc_k0:\ns_cmp_lt_u32 s16, 4\ns_cbranch_scc1 Lattn\nLc_k:")
    if EARLY:
        kv_first()
        dma_n(g, 2)
        A("s_waitcnt vmcnt(10)")
        kv_second(12)
    else: dma_n(g, 2)
    A("s_waitcnt vmcnt(0)")
    g.post(6 + 10*(EARLY > 0), T)
    A(f"""
    s_lshr_b32 s25, s2, 3
    s_lshl_b32 s25, s25, 2
    s_add_u32 s25, s25, s20            ; 0..127
    s_mul_i32 s27, s25, {41*128}
    v_lshlrev_b32 v{T}, 7, v0
    v_add_u32 v{T+1}, s27, v{T}
    v_min_u32 v{T+1}, {WOB-4}, v{T+1}
    s_mov_b32 exec_hi, 0x1ff
    global_load_dword v210, v{T+1}, s[{pWO}:{pWO+1}]
    s_and_b32 s27, s2, 7
    s_mul_i32 s27, s27, {256*1152}
    s_mul_i32 s25, s25, {18*128}
    s_add_u32 s27, s27, s25
    v_add_u32 v{T+1}, s27, v{T}
    s_mov_b64 exec, 0x3ffff
    global_load_dword v211, v{T+1}, s[{pQ}:{pQ+1}]
    s_mov_b64 exec, -1
    """)
    A("s_cmp_lg_u32 s16, 4\ns_cbranch_scc1 Lc_w")
    g.wait_words("s94", 6 + 10*(EARLY > 0), T)
    avail_add(g, 4)
    g.poll(64, 16, 16, T, sl=opt('USLEEP', 8))
    wait_progress(g, 7, 4)
    A("s_branch Lc_pd\nLc_x:\ns_cmp_lg_u32 s16, 4\ns_cbranch_scc1 Lc_w\ns_and_b32 s25, s2, 3\ns_add_u32 s25, s25, 80")
    g.signal("s25", T)
    g.poll(80, 4, 8, T, sl=2)
    A(f"""
Lc_pd:
    s_sub_u32 s25, 2, s95
    v_mov_b32 v{T}, {SY+36}
    v_mov_b32 v{T+1}, s25
    ds_write_b32 v{T}, v{T+1}
Lc_w:
    s_sub_u32 s91, 2, s95
    """)
    g.wait_words(SY+36, "s91", T, n=1, sl=opt('WSL', 5))
    g.stamp(4)
    A(f"""
    s_and_b32 s28, s16, 1
    s_lshl_b32 s25, s28, 11
    s_add_u32 s27, s97, s25
    s_mov_b32 m0, s27
    s_lshl_b32 s27, s98, 12
    s_add_u32 s27, s27, s25
    buffer_load_dwordx4 v{vL16}, s[4:7], s27 offen lds
    buffer_load_dwordx4 v{vL16}, s[4:7], s27 offen offset:1024 lds
    ds_write_b128 v{bZP}, {V(R.acc,4)}
    s_mul_i32 s25, s28, {2*4160}
    s_add_u32 s25, s25, s96
    s_add_u32 s25, s25, 64
    s_lshl_b32 s27, s28, 2
    s_sub_u32 s27, s101, s27
    s_sub_u32 s27, s27, {YT-UT}
    s_lshr_b32 s29, s98, 9
    s_lshl_b32 s29, s29, 12
    s_add_u32 s27, s27, s29
    """)
    for c in range(2):
        A("s_mov_b32 m0, s25\ns_nop 0")
        for i in range(4): A(f"buffer_load_dwordx4 v{vL16}, s[12:15], s27 offen offset:{1024*i} lds {SC}")
        if c == 0: A("s_add_u32 s25, s25, 4160\ns_sub_u32 s27, s27, 2")
    A("s_waitcnt vmcnt(0) lgkmcnt(0)")
    g.gsync(17, T)
    A(f"s_setprio {opt('VPRIO', 0)}")
    g.stamp(5)
    A("s_cmp_eq_u32 s28, 0\ns_cbranch_scc0 Lc_set1")
    kconv.conv_main(A, R, "Lc_l0", 0)
    A("s_setprio 1")
    conv_epi(A, R, 0, "s96", "s100", "s101", "s[12:15]", SC)
    A("s_branch Lc_done\nLc_set1:")
    kconv.conv_main(A, R, "Lc_l1", 1)
    A("s_setprio 1")
    conv_epi(A, R, 1, "s96", "s100", "s101", "s[12:15]", SC)
    A("Lc_done:\ns_waitcnt vmcnt(0)")
    g.stamp(6)
    g.gsync(18, T)
    A("s_and_b32 s25, s16, 3\ns_cmp_lg_u32 s25, 0\ns_cbranch_scc1 Lc_e\ns_and_b32 s25, s2, 15\ns_add_u32 s25, s25, 16")
    g.signal("s25", T)
    A("Lc_e:\ns_cmp_eq_u32 s95, 0\ns_cbranch_scc1 Lh_p3\ns_branch Lh_restart")

def conv_epi(A, R, st, s_slot, s_D, s_out, srd, flags=""):
    S_ = kconv.SETS[st]
    A(f"v_add_u32 v{R.t0}, {s_slot}, v{R.aU}")
    for ti, tau in enumerate(S_): A(f"ds_read_b64 {V(R.A[0]+2*ti,2)}, v{R.t0} offset:{64+512*tau}")
    A("s_waitcnt lgkmcnt(0)")
    for ti in range(4):
        for e in range(4): A(f"v_dot2c_f32_bf16 v{R.acc+4*ti+e}, v{R.A[0]+2*ti+(e >> 1)}, v{194+(e & 1)}")
    A("s_nop 1")
    for ti, tau in enumerate(S_):
        t = R.B[0]+2*ti; ac = R.acc+4*ti
        A(f"""
        v_cvt_pk_bf16_f32 v{t}, v{ac}, v{ac+1}
        v_cvt_pk_bf16_f32 v{t+1}, v{ac+2}, v{ac+3}
        buffer_store_dwordx2 {V(t,2)}, v{R.aU}, {srd}, {s_out} offen offset:{512*tau} {flags}
        """)

def conv_setup(A, R):
    A(f"""
    v_bfe_u32 v{R.t0}, v0, 2, 2
    v_mul_u32_u24 v{R.aA}, 4160, v{R.t0}
    v_and_b32 v{R.t0}, 3, v0
    v_lshl_add_u32 v{R.aA}, v{R.t0}, 3, v{R.aA}
    v_lshrrev_b32 v{R.t0}, 4, v0
    v_lshlrev_b32 v{R.aB}, 4, v{R.t0}
    v_sub_u32 v{R.aA}, v{R.aA}, v{R.aB}
    s_add_u32 s25, s96, {64+32-8}
    v_add_u32 v{R.aA}, s25, v{R.aA}
    v_and_b32 v{R.aU}, 15, v0
    v_lshlrev_b32 v{R.aU}, 5, v{R.aU}
    v_add_u32 v{R.aB}, v{R.aB}, v{R.aU}
    s_sub_u32 s25, s97, 96
    v_add_u32 v{R.aB}, s25, v{R.aB}
    v_lshl_add_u32 v{R.aU}, v{R.t0}, 3, v{R.aU}
    v_and_b32 v{R.mask}, 15, v0
    v_lshlrev_b32 v{R.t0}, 3, v{R.t0}
    v_sub_u32 v{R.t0}, v{R.mask}, v{R.t0}
    v_add_u32 v{R.t0}, 17, v{R.t0}
    v_mov_b32 v{R.acc}, 0xffff
    v_mov_b32 v{R.acc+1}, 0xffff0000
    """)
    for d in range(4):
        A(f"""
        v_cmp_lt_i32 vcc, {2*d}, v{R.t0}
        v_cmp_lt_i32 s[26:27], {2*d+1}, v{R.t0}
        s_nop 0
        v_cndmask_b32 v{R.mask+d}, 0, v{R.acc}, vcc
        v_cndmask_b32 v{R.acc+2}, 0, v{R.acc+1}, s[26:27]
        v_or_b32 v{R.mask+d}, v{R.mask+d}, v{R.acc+2}
        """)
    for i in range(16): A(f"v_mov_b32 v{R.acc+i}, 0")
    A(f"""
    s_lshl_b32 s101, s98, 12
    s_add_u32 s101, s101, {YT}
    s_lshl_b32 s25, s100, 16
    s_and_b32 s27, s100, 0xffff0000
    s_bitcmp0_b32 s98, 0
    s_cselect_b32 s100, s25, s27
    s_lshr_b32 s25, s100, 16
    v_mov_b32 v194, s25
    v_mov_b32 v195, s100
    """)

def zero_acc(A):
    for i in range(16): A(f"v_mov_b32 v{OA+i}, 0")
    for i in range(16): A(f"v_mov_b32 v{OB+i}, 0")
    for i in range(8): A(f"v_mov_b32 v{PB+i}, 0")
    for i in range(8): A(f"v_mov_b32 v{VB[1]+i}, 0")

def gen_attn(g):
    A = g.A
    A("Lattn:\ns_setprio 2")
    head_params(A)
    A(f"""
    v_lshlrev_b32 v{vL8}, 3, v0
    s_lshl_b32 s31, s18, 3
    s_lshl_b32 s32, s20, 1
    s_add_u32 s32, s31, s32
    s_mul_i32 s34, s21, {MB}
    s_add_u32 s34, s34, s39
    s_lshl_b32 s35, s32, 10
    s_add_u32 s35, s35, s34
    s_add_u32 s34, s39, {LEFT}
    s_lshl_b32 s37, s32, 8
    s_add_u32 s37, s37, s34
    v_and_b32 v{aT1}, 31, v0
    v_lshrrev_b32 v{aT0}, 5, v0
    v_mul_u32_u24 v{aT3}, 288, v{aT0}
    v_lshl_add_u32 v{aT2}, v{aT1}, 4, v{aT3}
    v_add_u32 v{vV0}, s23, v{aT2}
    v_mov_b32 v{vVinc}, {4*VT}
    v_mov_b32 v{aT2}, {CONST+240}
    v_mov_b32 v{aT3}, {CONST+224}
    v_cmp_eq_u32 vcc, 18, v{aT1}
    v_subrev_u32 v{aT0}, 20, v{aT1}
    v_cmp_gt_u32 s[52:53], 8, v{aT0}
    v_cndmask_b32 v{aT2}, v{aT2}, v{aT3}, vcc
    v_mov_b32 v{aT3}, {CONST+176}
    v_cmp_lt_u32 vcc, 17, v{aT1}
    v_cndmask_b32 v{aT2}, v{aT2}, v{aT3}, s[52:53]
    s_mov_b32 s50, 0
    v_cndmask_b32 v{vV0}, v{vV0}, v{aT2}, vcc
    v_cndmask_b32 v{vVinc}, v{vVinc}, 0, vcc
    v_cmp_gt_u32 vcc, 32, v0
    s_cmp_eq_u32 s21, 0
    s_cselect_b64 s[52:53], -1, 0
    s_cselect_b64 s[54:55], 0, -1
    s_and_b64 s[56:57], s[52:53], vcc
    s_and_b64 s[58:59], s[54:55], vcc
    s_andn2_b64 s[60:61], s[52:53], vcc
    s_andn2_b64 s[62:63], s[54:55], vcc
    v_lshlrev_b32 v{aT2}, 3, v{aT1}
    v_add_u32 v{vKM0}, s22, v{vL8}
    v_add_u32 v{vKL0}, s24, v{vL8}
    s_lshl_b32 s25, s20, 8
    s_add_u32 s25, s25, {UC}
    v_lshlrev_b32 v{vCA}, 2, v0
    v_add_u32 v{vCA}, s25, v{vCA}
    v_mov_b32 v{vOne}, 2
    s_mul_i32 s25, s32, {36*1024}
    s_add_u32 s25, s25, {OF}
    s_lshl_b32 s48, s17, 10
    s_add_u32 s48, s48, s25
    s_lshl_b32 s49, s17, 7
    s_add_u32 s49, s49, s25
    s_add_u32 s49, s49, 32768
    """)
    zero_acc(A)
    if opt('POLLW', 0):
        A("s_cmp_lt_u32 s2, 224\ns_cselect_b32 s25, 1, 0\ns_cmp_lg_u32 s16, s25\ns_cbranch_scc1 La_w")
    else: A("s_cmp_lg_u32 s16, 0\ns_cbranch_scc1 La_w")
    if opt('NEED', 1):
        A(f"""
        s_mul_i32 s25, s26, 36
        s_mov_b64 s[28:29], 0
        s_lshr_b32 s27, s25, 7
        s_bitset1_b32 s28, s27
        s_add_u32 s27, s25, 35
        s_lshr_b32 s27, s27, 7
        s_bitset1_b32 s28, s27
        s_add_u32 s27, s25, 576
        s_lshr_b32 s27, s27, 7
        s_bitset1_b32 s28, s27
        s_add_u32 s27, s25, 611
        s_lshr_b32 s27, s27, 7
        s_bitset1_b32 s28, s27
        s_add_u32 s27, s25, 1152
        s_lshr_b32 s27, s27, 7
        s_bitset1_b32 s28, s27
        s_add_u32 s27, s25, 1187
        s_lshr_b32 s27, s27, 7
        s_bitset1_b32 s28, s27
        """)
    if opt('HIER', 0): g.poll(GOFF//4, 14, 16, 204, sl=opt('P1SL', 1), mask="s[28:29]", sh=2)
    else: g.poll(0, 14, 16, 204, sl=opt('P1SL', 2), mask="s[28:29]")
    A(f"""
    v_mov_b32 v{TMP}, {SY+32}
    v_mov_b32 v{TMP+1}, 1
    ds_write_b32 v{TMP}, v{TMP+1}
La_w:
    """)
    g.wait_words(SY+32, 1, TMP, n=1)
    g.stamp(7)
    dma_iter(A)
    A(f"""
    buffer_load_dwordx2 {V(Q1A,2)}, v{vL8}, s[12:15], s35 offen {SC}
    buffer_load_dwordx2 {V(Q1A+2,2)}, v{vL8}, s[12:15], s35 offen offset:512 {SC}
    buffer_load_dwordx2 {V(Q1B,2)}, v{vL8}, s[12:15], s35 offen offset:1024 {SC}
    buffer_load_dwordx2 {V(Q1B+2,2)}, v{vL8}, s[12:15], s35 offen offset:1536 {SC}
    buffer_load_dwordx2 {V(Q2A,2)}, v{aT2}, s[12:15], s37 offen {SC}
    buffer_load_dwordx2 {V(Q2B,2)}, v{aT2}, s[12:15], s37 offen offset:256 {SC}
    s_cmp_lt_u32 s2, 224
    s_cbranch_scc1 La_n12
    """)
    dma_n(g, 2)
    A(f"""
    s_mov_b32 s30, 1
    s_waitcnt vmcnt(10)
    s_branch La_n13
La_n12:
    s_mov_b32 s30, 0
    s_waitcnt vmcnt(0)
La_n13:
    """)
    g.post(9, TMP)
    for Q in (Q2A, Q2B):
        A(f"""
        v_cndmask_b32 v{Q+2}, 0, v{Q}, s[60:61]
        v_cndmask_b32 v{Q+3}, 0, v{Q+1}, s[62:63]
        v_cndmask_b32 v{Q}, 0, v{Q}, s[56:57]
        v_cndmask_b32 v{Q+1}, 0, v{Q+1}, s[58:59]
        """)
    g.wait_words(SY, 9, TMP)
    g.stamp(8)
    A(f"""
    ds_read2st64_b64 {V(KB[0],4)}, v{vKM0} offset0:0 offset1:1
    ds_read2st64_b64 {V(KL,4)}, v{vKL0} offset0:0 offset1:1
    s_waitcnt lgkmcnt(0)
    {m16(SA, KB[0], Q1A, 0)}
    {m16(SB, KB[0], Q1B, 0)}
    {m8(SA, KL, Q2A)}
    {m8(SB, KL, Q2B)}
    s_nop 10
    """)
    maxtree(A, aT0, SA)
    maxtree(A, aT1, SB)
    A(f"""
La_setm:
    v_mov_b32 v{aT2}, v{aT0}
    v_mov_b32 v{aT3}, v{aT1}
    v_mov_b32 v{vKM}, v{vKM0}
    v_mov_b32 v{vKL}, v{vKL0}
    v_permlane32_swap_b32 v{aT0}, v{aT2}
    v_permlane32_swap_b32 v{aT1}, v{aT3}
    v_mov_b32 v{vV}, v{vV0}
    ds_read_b128 {V(VB[0],4)}, v{vV0}
    ds_read_b128 {V(VB[0]+4,4)}, v{vV0} offset:576
    v_max_f32 v{aT0}, v{aT0}, v{aT2}
    v_max_f32 v{aT1}, v{aT1}, v{aT3}
    """)
    for i in range(16): A(f"v_sub_f32 v{NMA+i}, 0, v{aT0}")
    A(f"""
    v_sub_f32 v{NMB}, 0, v{aT1}
    s_mov_b32 s51, 0
    {m16(SA, KB[0], Q1A, V(NMA,16))}
    {m8(SA, KL, Q2A)}
    """)
    for i in range(1, 16): A(f"v_sub_f32 v{NMB+i}, 0, v{aT1}")
    A("s_setprio 0")
    g.stamp(9)
    if g.dbg and 'its' in EXP: A("s_mov_b32 s55, 0\nv_mov_b32 v214, 0\nv_writelane_b32 v214, s88, 0\nv_writelane_b32 v214, s90, 32")
    A(".p2align 6\nLa_loop:")
    KLB = [KL, KL2]
    for J in range(8):
        j = J & 3; hb = J >> 2
        b = j & 1; nb = b ^ 1
        koff = 2*(J+1)
        ex = [[f"ds_read2st64_b64 {V(KB[nb],4)}, v{vKM} offset0:{koff} offset1:{koff+1}"], [], [], ["s_waitcnt lgkmcnt(0)"]]
        if J == 0: ex[2] = ["s_min_u32 s53, s51, 12"]
        if J == 1: ex[0].append(f"ds_add_rtn_u32 v{vCR}, v{vCA}, v{vOne}")
        if J == 2: ex[2] = ["s_lshr_b32 s52, s52, 8"]
        if j == 3:
            ex[0].append(f"ds_read2st64_b64 {V(KLB[hb ^ 1],4)}, v{vKL} offset0:{2*hb+2} offset1:{2*hb+3}")
            ex[1] = [f"v_add_u32 v{vV}, v{vVinc}, v{vV}"]
        if J == 7: ex[2] = ["s_cmp_lt_u32 s51, 16"]
        klp = KLB[hb] + 2*(j >> 1)
        phase(A, SA, PA, [m16(SB, KB[b], Q1B, V(NMB,16)), m8(SB, klp, Q2B + 2*(j & 1)),
                          m16(OB, VB[nb], PB, V(OB,16)), m16(OB, VB[nb]+4, PB+4, V(OB,16))], ex)
        jn = (j+1) & 3; hn = ((J+1) & 7) >> 2
        klp = KLB[hn] + 2*(jn >> 1)
        ex = [[], [], [f"ds_read_b128 {V(VB[nb],4)}, v{vV} offset:{jn*VT}"], [f"ds_read_b128 {V(VB[nb]+4,4)}, v{vV} offset:{jn*VT+576}"]]
        if J == 0: ex[0] = ["s_add_u32 s51, s51, 2"]
        if J == 1: ex[1] = [f"v_readfirstlane_b32 s52, v{vCR}"]
        if J == 6:
            ex[0] = ["s_cmp_ge_u32 s53, s52"]
            ex[3] += ["s_cbranch_scc1 La_chk", "La_chkd:"]
        if J == 7:
            ex[1] = [f"v_add_u32 v{vKM}, 8192, v{vKM}", f"v_add_u32 v{vKL}, 2048, v{vKL}"]
        phase(A, SB, PB, [m16(SA, KB[nb], Q1A, V(NMA,16)), m8(SA, klp, Q2A + 2*(jn & 1)),
                          m16(OA, VB[b], PA, V(OA,16)), m16(OA, VB[b]+4, PA+4, V(OA,16))], ex)
    if g.dbg and 'its' in EXP:
        A(f"""
        s_memrealtime s[88:89]
        s_memtime s[90:91]
        s_mov_b32 m0, s51
        s_waitcnt lgkmcnt(0)
        v_writelane_b32 v214, s88, m0
        s_add_u32 m0, s51, 32
        s_nop 0
        v_writelane_b32 v214, s90, m0
        s_cmp_lt_u32 s51, 16
        """)
    A("s_cbranch_scc1 La_loop")
    A(f"""
    s_setprio 2
    {m16(OB, VB[1], PB, V(OB,16))}
    {m16(OB, VB[1]+4, PB+4, V(OB,16))}
    """)
    g.stamp(10)
    A(f"v_lshlrev_b32 v{aT2}, 2, v0\nv_mov_b32 v{aT3}, 0")
    for n, (O, P) in enumerate(((OA, PA), (OB, PB))):
        A(f"""
        v_mov_b32 v{aT0}, v{O+10}
        v_mov_b32 v{aT1}, v{O+10}
        """)
        for i in range(11): A(f"v_add_f32 v{aT3}, |v{O+i}|, v{aT3}")
        A(f"""
        v_permlane32_swap_b32 v{aT0}, v{aT1}
        s_nop 1
        v_rcp_f32 v{aT0}, v{aT0}
        s_add_u32 s25, s48, {n*36*1024}
        s_add_u32 s27, s49, {n*36*1024}
        """)
        for i in range(10): A(f"v_mul_f32 v{O+i}, v{O+i}, v{aT0}")
        for i in range(5): A(f"v_cvt_pk_bf16_f32 v{P+i}, v{O+2*i}, v{O+2*i+1}")
        A(f"""
        buffer_store_dwordx4 {V(P,4)}, v{vL16}, s[12:15], s25 offen {SC}
        s_mov_b32 exec_hi, 0
        buffer_store_dword v{P+4}, v{aT2}, s[12:15], s27 offen {SC}
        s_mov_b32 exec_hi, -1
        """)
    A(f"""
    v_mov_b32 v{aT1}, 0x71800000
    v_cmp_nlt_f32 vcc, v{aT3}, v{aT1}
    v_mov_b32 v{aT3}, {FLAG}
    v_mov_b32 v{aT2}, 1
    s_cmp_lg_u32 s50, 0
    s_cbranch_scc1 Lp3
    s_cbranch_vccz Lp3
    ds_write_b32 v{aT3}, v{aT2}
    s_branch Lp3
La_chk:
    s_cmp_eq_u32 s30, 0
    s_cbranch_scc1 La_chk0
    s_mov_b32 s30, 0
    s_waitcnt vmcnt(0)
    """)
    g.gsync(10, TMP)
    A(f"""
    v_mov_b32 v{TMP}, {4 << 8}
    ds_add_u32 v{vCA}, v{TMP}
La_chk0:
    s_mov_b32 s93, {SPIN}
La_chk1:
    ds_read_b32 v{vCR}, v{vCA}
    s_waitcnt lgkmcnt(0)
    v_readfirstlane_b32 s52, v{vCR}
    s_lshr_b32 s52, s52, 8
    s_cmp_lt_u32 s53, s52
    s_cbranch_scc1 La_chkd
    s_sleep 1
    s_sub_u32 s93, s93, 1
    s_cmp_lg_u32 s93, 0
    s_cbranch_scc1 La_chk1
    s_branch La_chkd
La_slow:
    s_mov_b32 s50, 1
    s_barrier
    v_mov_b32 v{aT0}, {14 << 8}
    ds_write_b32 v{vCA}, v{aT0}
    v_mov_b32 v{aT3}, {FLAG}
    v_mov_b32 v{aT2}, 0
    ds_write_b32 v{aT3}, v{aT2}
    v_mov_b32 v{vKM}, v{vKM0}
    v_mov_b32 v{vKL}, v{vKL0}
    v_mov_b32 v{aT0}, 0xff800000
    v_mov_b32 v{aT1}, 0xff800000
    s_mov_b32 s51, 16
    s_waitcnt lgkmcnt(0)
    s_barrier
La_maxloop:
    ds_read2st64_b64 {V(KL,4)}, v{vKL} offset0:0 offset1:1
    """)
    for j in range(4):
        A(f"""
        ds_read2st64_b64 {V(KB[0],4)}, v{vKM} offset0:{2*j} offset1:{2*j+1}
        s_waitcnt lgkmcnt(0)
        {m16(SA, KB[0], Q1A, 0)}
        {m16(SB, KB[0], Q1B, 0)}
        {m8(SA, KL+2*(j>>1), Q2A+2*(j&1))}
        {m8(SB, KL+2*(j>>1), Q2B+2*(j&1))}
        s_nop 11
        """)
        maxtree(A, aT0, SA, True)
        maxtree(A, aT1, SB, True)
    A(f"""
    v_add_u32 v{vKM}, 4096, v{vKM}
    v_add_u32 v{vKL}, 1024, v{vKL}
    s_sub_u32 s51, s51, 1
    s_cmp_lg_u32 s51, 0
    s_cbranch_scc1 La_maxloop
    ds_read2st64_b64 {V(KB[0],4)}, v{vKM0} offset0:0 offset1:1
    ds_read2st64_b64 {V(KL,4)}, v{vKL0} offset0:0 offset1:1
    """)
    zero_acc(A)
    A("s_waitcnt lgkmcnt(0)\ns_branch La_setm")

def gen_p3(g):
    A = g.A
    BW, ACC_, AF = 40, 184, 16
    wA = 196
    A(f"""
Lh_slow:
    s_barrier
    """)
    dma_skip(A, -8)
    dma_n(g, 8)
    A(f"""
    s_waitcnt vmcnt(0)
    s_barrier
Lh_p3:
    s_and_b32 s19, s2, 7
    s_lshr_b32 s33, s2, 3
    v_lshlrev_b32 v{TMP}, 7, v0
    s_cmp_ge_u32 s33, 24
    s_cbranch_scc0 Lh_wo
    s_branch Lp3
Lh_wo:
    """)
    g.srd(4, pWO, WOB)

    for i in range(3):
        A(f"""
        v_add_u32 v1, {64*i}, v0
        v_mul_u32_u24 v2, 5462, v1
        v_lshrrev_b32 v2, 16, v2
        v_mul_u32_u24 v3, 12, v2
        v_sub_u32 v1, v1, v3
        v_mul_u32_u24 v2, 1152, v2
        v_lshl_add_u32 v{wA+i}, v1, 4, v2
        """)
    A(f"""
    v_subrev_u32 v{wA+1}, 1024, v{wA+1}
    v_subrev_u32 v{wA+2}, 2048, v{wA+2}
    s_lshr_b32 s25, s33, 2
    s_mul_i32 s28, s25, 192
    s_mul_i32 s25, s20, {16*1152}
    s_add_u32 s28, s28, s25
    """)
    for half, (n, base) in enumerate(((13, "s23"), (15, "s22"))):
        wait_progress(g, n, 6)
        A(f"""
        s_add_u32 s27, s28, {half*288*1152}
        s_mul_i32 s25, s20, 3072
        s_add_u32 s25, s25, {base}
        s_mov_b32 s31, s20
Lo_wo{half}:
        s_mov_b32 m0, s25
        s_add_u32 s31, s31, 4
        buffer_load_dwordx4 v{wA}, s[4:7], s27 offen lds
        buffer_load_dwordx4 v{wA+1}, s[4:7], s27 offen offset:1024 lds
        buffer_load_dwordx4 v{wA+2}, s[4:7], s27 offen offset:2048 lds
        s_add_u32 s27, s27, {4*16*1152}
        s_add_u32 s25, s25, {4*3072}
        s_cmp_lt_u32 s31, 18
        s_cbranch_scc1 Lo_wo{half}
        """)
    A(f"""
Lp3:
    v_mov_b32 v{TMP+1}, {FLAG}
    s_lshl_b32 s30, s18, 2
    s_lshr_b32 s25, s17, 3
    s_add_u32 s30, s30, s25
    s_add_u32 s30, s30, 32
    s_waitcnt vmcnt(0) lgkmcnt(0)
    s_barrier
    ds_read_b32 v{TMP}, v{TMP+1}
    s_and_b32 s19, s2, 7
    s_lshr_b32 s33, s2, 3
    s_waitcnt lgkmcnt(0)
    v_readfirstlane_b32 s25, v{TMP}
    s_cmp_eq_u32 s25, 0
    s_cbranch_scc1 Lp3_ok
    s_cmp_lt_u32 s16, 4
    s_cbranch_scc1 La_slow
    s_branch Lh_slow
Lp3_ok:
    """)
    g.stamp(11)
    A("s_cmp_lg_u32 s16, 7\ns_cbranch_scc1 Lp3_1")
    A("s_lshl_b64 s[28:29], 1, s18")
    g.signal("s30", 14, mask="s[28:29]" if opt('PMASK', 1) else None)
    A(f"""
Lp3_1:
    s_cmp_ge_u32 s33, 24
    s_cbranch_scc1 Lp3_s3
    s_and_b32 s17, s33, 3
    s_lshl_b32 s19, s19, 2
    s_add_u32 s17, s17, s19            ; tb
    s_lshr_b32 s18, s33, 2             ; ng
    s_mov_b32 s28, s23
    s_mov_b32 s29, s22
    s_and_b32 s23, s16, 1
    s_lshr_b32 s24, s16, 1
    v_lshlrev_b32 v12, 4, v0
    s_cmp_ge_u32 s16, 6
    s_cbranch_scc1 Lo_nopre
    v_lshrrev_b32 v1, 5, v0
    v_bfe_u32 v2, v0, 2, 2
    v_bfe_u32 v3, v0, 4, 1
    v_lshlrev_b32 v3, 5, v3
    v_and_b32 v7, 3, v0
    v_lshl_add_u32 v3, v7, 3, v3
    s_lshl_b32 s25, s24, 6
    v_add_u32 v3, s25, v3
    v_lshl_add_u32 v7, v1, 2, v2
    v_mul_u32_u24 v7, 192, v7
    v_add3_u32 v8, v7, v3, s28
    v_add3_u32 v9, v7, v3, s29
    v_mul_u32_u24 v7, 72, v1
    v_lshrrev_b32 v10, 1, v2
    v_mul_u32_u24 v10, 18, v10
    v_add_u32 v7, v7, v10
    v_and_b32 v10, 1, v2
    v_add3_u32 v7, v7, v10, 16
    v_mul_u32_u24 v7, 192, v7
    v_add3_u32 v10, v7, v3, s28
    v_add3_u32 v11, v7, v3, s29
    """)
    for s_ in range(36):
        for e in range(2):
            if s_ < 32: base, off = (8, (18*s_ + 8*e)*192) if s_ < 16 else (9, (18*(s_-16) + 8*e)*192)
            else: base, off = (10 + ((s_-32) >> 1), (144*((s_-32) & 1) + 36*e)*192)
            A(f"ds_read_b64_tr_b16 {V(BW+4*s_+2*e,2)}, v{base} offset:{off}")
        if s_ % 6 == 5: A("s_waitcnt lgkmcnt(4)")
    A("Lo_nopre:")
    g.srd(44, pOUT, OUTB)
    for i in range(16): A(f"v_mov_b32 v{ACC_+i}, 0")
    TR = 81920
    A(f"""
    s_mul_i32 s20, s17, {2*36*1024}
    s_add_u32 s20, s20, {OF}
    s_mul_i32 s21, s23, {36*1024}
    s_add_u32 s20, s20, s21
    s_lshl_b32 s21, s24, 10
    s_add_u32 s20, s20, s21
    s_lshl_b32 s21, s23, 10
    v_add_u32 v13, s21, v12
    v_and_b32 v1, 31, v0
    v_lshlrev_b32 v1, 2, v1
    v_lshrrev_b32 v2, 5, v0
    v_lshl_add_u32 v1, v2, 9, v1
    s_add_u32 s21, s21, 65536
    v_add_u32 v201, s21, v1
    v_add_u32 v202, 2048, v201
    v_add_u32 v203, 4096, v201
    v_add_u32 v204, 6144, v201
    v_and_b32 v1, 31, v0
    s_lshl_b32 s21, s23, 5
    v_add_u32 v1, s21, v1
    v_mul_u32_u24 v1, 208, v1
    v_lshl_add_u32 v1, v2, 3, v1
    s_lshl_b32 s21, s24, 6
    s_add_u32 s21, s21, {TR}
    v_add_u32 v200, s21, v1
    s_mul_i32 s26, s17, {64*2304}
    s_mul_i32 s22, s18, 192
    s_add_u32 s26, s26, s22
    s_lshl_b32 s22, s16, 7
    """)
    for i in range(2):
        A(f"""
        v_add_u32 v1, s22, v0
        v_add_u32 v1, {64*i}, v1
        v_mul_u32_u24 v2, 5462, v1
        v_lshrrev_b32 v2, 16, v2
        v_mul_u32_u24 v3, 12, v2
        v_sub_u32 v1, v1, v3
        v_lshlrev_b32 v1, 4, v1
        v_mul_u32_u24 v3, 208, v2
        v_add_u32 v{4+i}, v3, v1
        v_add_u32 v{4+i}, {TR}, v{4+i}
        v_mul_u32_u24 v3, 2304, v2
        v_add_u32 v{6+i}, v3, v1
        """)
    A("s_lshl_b32 s21, s16, 10\ns_waitcnt lgkmcnt(0)")
    g.stamp(12)
    A("s_cmp_lg_u32 s16, 7\ns_cbranch_scc1 Lp3_h\ns_add_u32 s25, s19, 32")
    g.poll("s25", 4, 8, 208, fast=opt('FASTP', 0))
    A("Lp3_h:\ns_barrier")
    g.stamp(13)
    for rr in range(9):
        A(f"""
        s_mov_b32 m0, s21
        s_add_u32 s21, s21, 8192
        buffer_load_dwordx4 v12, s[12:15], s20 offen lds {SC}
        s_add_u32 s20, s20, 4096
        """)
    AFB = [16, 216]
    def rd(s_, reg):
        off = 2048*s_ - (49152 if s_ >= 24 else 0)
        if s_ < 32: return [f"ds_read_b128 {V(reg,4)}, v{13 if s_ < 24 else 14} offset:{off}"]
        return [f"ds_read2_b32 {V(reg,2)}, v{201+s_-32} offset0:0 offset1:32", f"ds_read2_b32 {V(reg+2,2)}, v{201+s_-32} offset0:64 offset1:96"]
    A("v_add_u32 v14, 49152, v13")
    A("s_waitcnt vmcnt(6)\ns_barrier\ns_cmp_ge_u32 s16, 6\ns_cbranch_scc1 Lo_idle")
    for i in range(6):
        for r in rd(i, AFB[0]+4*i): A(r)
    for grp in range(6):
        nxt = grp + 1
        if nxt < 6 and nxt % 2 == 0: A(f"s_waitcnt vmcnt({6-3*(nxt//2)})\ns_barrier")
        for i in range(6):
            s_ = 6*grp + i
            n_rest = sum(len(rd(x, 0)) for x in range(s_+1, 6*grp+6))
            n_next = sum(len(rd(6*nxt+x, 0)) for x in range(i)) if nxt < 6 else 0
            A(f"s_waitcnt lgkmcnt({min(15, n_rest + n_next)})")
            A(f"v_mfma_f32_32x32x16_bf16 {V(ACC_,16)}, {V(BW+4*s_,4)}, {V(AFB[grp & 1]+4*i,4)}, {V(ACC_,16)}")
            if nxt < 6:
                for r in rd(6*nxt+i, AFB[nxt & 1]+4*i): A(r)
    g.stamp(14)
    A("s_nop 11")
    for q in range(4):
        A(f"""
        v_cvt_pk_bf16_f32 v{AF+2*q}, v{ACC_+4*q}, v{ACC_+4*q+1}
        v_cvt_pk_bf16_f32 v{AF+2*q+1}, v{ACC_+4*q+2}, v{ACC_+4*q+3}
        ds_write_b64 v200, {V(AF+2*q,2)} offset:{16*q}
        """)
    A(f"""
    s_waitcnt lgkmcnt(0)
    s_barrier
    ds_read_b128 {V(AF,4)}, v4
    ds_read_b128 {V(AF+4,4)}, v5
    s_waitcnt lgkmcnt(1)
    buffer_store_dwordx4 {V(AF,4)}, v6, s[44:47], s26 offen {SC}
    s_waitcnt lgkmcnt(0)
    buffer_store_dwordx4 {V(AF+4,4)}, v7, s[44:47], s26 offen {SC}
    s_branch Lfin
Lo_idle:
    s_waitcnt vmcnt(3)
    s_barrier
    s_waitcnt vmcnt(0)
    s_barrier
    s_branch Lfin
Lp3_s3:
    s_sub_u32 s20, s33, 24
    s_lshl_b32 s17, s19, 3
    s_add_u32 s17, s17, s20
    s_mov_b64 s[6:7], s[{pOUT}:{pOUT+1}]
    s_mov_b64 s[48:49], s[{pWS}:{pWS+1}]
    s_mov_b64 s[50:51], s[{pQ}:{pQ+1}]
    """)
    g.poll(16, 16, 18, 16)
    k3.gen_stage3(A, "Ls3", False, SC)
    A("Lfin:")
    g.end()

def gen(name, dbg=False):
    g = G(dbg); A = g.A
    A("Lcode_begin:")
    A(f"""
    s_cmp_ge_u32 s2, 256
    s_cbranch_scc1 Lend
    s_load_dwordx16 s[64:79], s[0:1], 0
    s_load_dwordx8 s[80:87], s[0:1], 64
    v_lshrrev_b32 v1, 6, v0
    v_and_b32 v0, 63, v0
    v_readfirstlane_b32 s16, v1
    """)
    if dbg: A(f"v_mov_b32 v{vST}, 0")
    g.stamp(0)
    A(f"""
    s_lshl_b32 s3, s16, 2
    s_add_u32 s3, s3, {SY}
    s_and_b32 s94, s3, {0xffffffff & ~15}
    s_cmp_ge_u32 s2, 224
    s_cbranch_scc1 Ls1
    """)
    gen_gemm(g)
    A("Ls1:")
    gen_stage1(g)
    gen_attn(g)
    gen_p3(g)
    A("Lend:\ns_endpgm\nLcode_end:")
    return A.text()

DOC = """; ---------------------------------------------------------------------------------------------------
;  launch zeroes itself (ready words in d_debug); consumers poll with sc1 loads and read the data with sc1 loads,
; ---------------------------------------------------------------------------------------------------
"""
if __name__ == "__main__":
    import sys
    out = sys.argv[1]; dbg = len(sys.argv) > 2 and sys.argv[2] == "dbg"
    name = "concat_heads__softmax_full_mha__ssm_conv_h3__prompt_kernel"
    HDR = open("concat_heads__softmax_full_mha__ssm_conv_h3__prompt.s.ref").read().split("; Override launch")[0]
    s = HDR
    if (dbg and not os.environ.get('DD') and not os.environ.get('AMP')) or 'list' in EXP: s += f"; @launch kernel={name} grid=(256,1,1) block=(512,1,1) lds={LDS_BYTES}\n"
    else: s += f"; @launch grid=(256,1,1) block=(512,1,1) lds={LDS_BYTES}\n"
    s += DOC
    s += '.amdgcn_target "amdgcn-amd-amdhsa--gfx950"\n.text\n' + kernel_head(name) + gen(name, dbg)
    s += '.section .rodata,"a"\n' + kernel_desc(name, NVGPR, 102)
    open(out, "w").write(s)
```
